```python
import torch

def _softmax(x, axis=-1):
    return torch.softmax(x, dim=axis)
def _gelu(x):
    return torch.nn.functional.gelu(x, approximate="tanh")
def _silu(x):
    return torch.nn.functional.silu(x)
def _sigmoid(x):
    return torch.sigmoid(x)
def _layernorm(x, axis=-1, eps=1e-5):
    m = x.mean(dim=axis, keepdim=True)
    v = x.var(dim=axis, keepdim=True, unbiased=False)
    return (x - m) / torch.sqrt(v + eps)
def _scatter_add(tgt, idx, src, axis=0):
    return tgt.clone().index_add_(axis, idx, src)
def _segment_sum(src, seg, n):
    out = torch.zeros((n,) + src.shape[1:], dtype=src.dtype)
    return out.index_add_(0, seg, src)
def _pad(x, pw):
    flat = tuple(v for pair in reversed(pw) for v in pair)
    return torch.nn.functional.pad(x, flat)

kernel_name = 'sequential_preLN__sliding_block_cached__glu_gated_bilinear__decode'

def setup_inputs():

    _w = (lambda a: (lambda t: t.to(torch.bfloat16) if t.is_floating_point() else t)(torch.as_tensor(a)))
    def _A_setup():
        B, Sq, D = 1, 1, 512
        Hq, Hkv, Sk, Dh = 32, 8, 65536, 128
        assert Hq % Hkv == 0, (Hq, Hkv)
        return {
            "x": _w((lambda *s: torch.randn(*s, dtype=torch.bfloat16) * 0.05)(B, Sq, D)),
            "k_cache": _w((lambda *s: torch.randn(*s, dtype=torch.bfloat16) * 1.6)(B, Hkv, Sk, Dh)),
            "v_cache": _w((lambda *s: torch.randn(*s, dtype=torch.bfloat16) * 0.8)(B, Hkv, Sk, Dh)),
            "wq": _w((lambda *s: torch.randn(*s, dtype=torch.bfloat16) * 1.6)(D, Hq * Dh) * (D ** -0.5)),
            "wo": _w((lambda *s: torch.randn(*s, dtype=torch.bfloat16) * 0.8)(Hq * Dh, D) * ((Hq * Dh) ** -0.5)),
        }
    _A_in = _A_setup()

    def _B_setup():
        B, S, D, F = 1, 1, 512, 1792
        return {
            "x": _w((lambda *s: torch.randn(*s, dtype=torch.bfloat16) * 0.05)(B, S, D)),
            "w_gate": _w((lambda *s: torch.randn(*s, dtype=torch.bfloat16) * 0.4)(D, F) * (D ** -0.5)),
            "w_up": _w((lambda *s: torch.randn(*s, dtype=torch.bfloat16) * 0.4)(D, F) * (D ** -0.5)),
            "w_down": _w((lambda *s: torch.randn(*s, dtype=torch.bfloat16) * 0.4)(F, D) * (F ** -0.5)),
        }
    _B_in = _B_setup()

    return {
        "A_x": _A_in["x"],
        "A_k_cache": _A_in["k_cache"],
        "A_v_cache": _A_in["v_cache"],
        "A_wq": _A_in["wq"],
        "A_wo": _A_in["wo"],
        "B_x": _B_in["x"],
        "B_w_gate": _B_in["w_gate"],
        "B_w_up": _B_in["w_up"],
        "B_w_down": _B_in["w_down"],
    }

def reference(A_x, A_k_cache, A_v_cache, A_wq, A_wo, B_x, B_w_gate, B_w_up, B_w_down):
    def _A_ref(x, k_cache, v_cache, wq, wo):
        B, Sq, D = x.shape
        Hq, Dh = 32, 128
        Hkv, Sk = k_cache.shape[1], k_cache.shape[2]
        W = min(4096, max(256, Sk // 4))
        rep = Hq // Hkv
        q = (lambda x, *d: x.permute(*d))((x @ wq).reshape(B, Sq, Hq, Dh), 0, 2, 1, 3)
        k = (lambda x, n, axis: torch.repeat_interleave(x, n, dim=axis))(k_cache[:, :, Sk - W:, :], rep, axis=1)
        v = (lambda x, n, axis: torch.repeat_interleave(x, n, dim=axis))(v_cache[:, :, Sk - W:, :], rep, axis=1)
        scores = torch.einsum("bhqd,bhkd->bhqk", q, k) * (Dh ** -0.5)
        p = _softmax(scores, axis=-1)
        o = torch.einsum("bhqk,bhkd->bhqd", p, v)
        return (lambda x, *d: x.permute(*d))(o, 0, 2, 1, 3).reshape(B, Sq, Hq * Dh) @ wo

    def _B_ref(x, w_gate, w_up, w_down):
        g = torch.einsum("bsd,df->bsf", x, w_gate)
        u = torch.einsum("bsd,df->bsf", x, w_up)
        h = g * u
        return torch.einsum("bsf,fd->bsd", h, w_down)

    x = A_x
    h = x + _A_ref(_layernorm(x, axis=-1), A_k_cache, A_v_cache, A_wq, A_wo)
    h2 = h + _B_ref(_layernorm(h, axis=-1), B_w_gate, B_w_up, B_w_down)
    return h2
```

```python
import re

TRANS = ("v_exp_f32", "v_log_f32", "v_rcp_f32", "v_rsq_f32", "v_sqrt_f32", "v_sin_f32", "v_cos_f32",
         "v_rcp_iflag_f32")


def regs_of(tok):
    tok = tok.strip()
    neg = tok.lstrip("-")
    m = re.fullmatch(r"abs\((.*)\)", neg)
    if m:
        neg = m.group(1)
    neg = neg.strip("|")
    m = re.fullmatch(r"([vsa])(\d+)", neg)
    if m:
        return {(m.group(1), int(m.group(2)))}
    m = re.fullmatch(r"([vsa])\[(\d+):(\d+)\]", neg)
    if m:
        return {(m.group(1), i) for i in range(int(m.group(2)), int(m.group(3)) + 1)}
    if neg in ("vcc", "vcc_lo", "vcc_hi"):
        return {("x", "vcc")}
    if neg in ("exec", "exec_lo", "exec_hi"):
        return {("x", "exec")}
    if neg == "m0":
        return {("x", "m0")}
    return set()


class Ins:
    def __init__(self, text):
        self.text = text
        body = text.split(";")[0].strip()
        self.label = None
        self.op = None
        self.dst = set()
        self.src = set()
        self.kind = "other"
        self.target = None
        if not body:
            self.kind = "empty"
            return
        if body.endswith(":"):
            self.label = body[:-1]
            self.kind = "label"
            return
        if body.startswith("."):
            self.kind = "directive"
            return
        parts = body.split(None, 1)
        self.op = op = parts[0]
        rest = parts[1] if len(parts) > 1 else ""
        ops, depth, cur = [], 0, ""
        for ch in rest:
            if ch in "[(":
                depth += 1
            if ch in "])":
                depth -= 1
            if ch == "," and depth == 0:
                ops.append(cur.strip())
                cur = ""
            else:
                cur += ch
        if cur.strip():
            ops.append(cur.strip())
        mods = ""
        if ops:
            m = re.match(r"^(\S+)\s+(.*)$", ops[-1])
            if m and not ops[-1].startswith("hwreg"):
                ops[-1], mods = m.group(1), m.group(2)
        self.ops = ops
        self.mods = mods
        R = [regs_of(o) for o in ops]

        def U(lst):
            s = set()
            for x in lst:
                s |= x
            return s

        self.dpp = any(k in mods for k in ("quad_perm", "row_", "wave_")) or op.endswith("_dpp")
        self.sdwa = op.endswith("_sdwa")
        if op.startswith("v_mfma"):
            self.kind = "mfma"
            self.dst = R[0]
            self.A, self.B, self.C = R[1], R[2], R[3]
            self.src = R[1] | R[2] | R[3]
            if "32x32x16" in op or "32x32x8" in op:
                self.passes = 8
            elif "16x16x32" in op or "16x16x16" in op:
                self.passes = 4
            else:
                raise ValueError("unknown mfma " + op)
        elif op.startswith("v_"):
            self.kind = "valu"
            base = re.sub(r"_(e32|e64|dpp|sdwa)$", "", op)
            self.base = base
            if base.startswith("v_cmpx"):
                self.dst = R[0] | {("x", "exec")}
                self.src = U(R[1:])
            elif base.startswith("v_cmp"):
                self.dst = R[0]
                self.src = U(R[1:])
            elif base.startswith("v_permlane") and base.endswith("swap_b32"):
                self.dst = R[0] | R[1]
                self.src = R[0] | R[1]
            elif base in ("v_add_co_u32", "v_sub_co_u32", "v_addc_co_u32", "v_subb_co_u32"):
                self.dst = R[0] | R[1]
                self.src = U(R[2:])
            elif base in ("v_fmac_f32", "v_dot2c_f32_bf16", "v_writelane_b32"):
                self.dst = R[0]
                self.src = U(R)
            elif base == "v_nop":
                pass
            else:
                self.dst = R[0]
                self.src = U(R[1:])
            if self.dpp:
                self.src |= R[0] if ("row_mask:0xf" not in mods or "bank_mask:0xf" not in mods) else set()
                self.dppsrc = R[1]
            if base == "v_cndmask_b32" and len(ops) == 3:
                self.src |= {("x", "vcc")}
            self.trans = base in TRANS
        elif op.startswith("ds_"):
            self.kind = "ds"
            if op.startswith("ds_read") or op.startswith("ds_bpermute") or op.startswith("ds_swizzle"):
                self.dst = R[0]
                self.src = U(R[1:])
            else:
                self.src = U(R)
        elif op.startswith("global_") or op.startswith("buffer_"):
            self.kind = "vmem"
            if op.startswith("global_load_lds") or " lds" in (" " + mods):
                self.src = U(R) | {("x", "m0")}
                self.ldsdma = True
            elif op.startswith("global_load") or op.startswith("buffer_load"):
                self.dst = R[0]
                self.src = U(R[1:])
            elif op.startswith("global_store"):
                self.src = U(R)
                self.storedata = R[1]
            elif op.startswith("buffer_store"):
                self.src = U(R)
                self.storedata = R[0]
            elif op.startswith("global_atomic"):
                if "sc0" in mods:
                    self.dst = R[0]
                    self.src = U(R[1:])
                else:
                    self.src = U(R)
            else:
                self.src = U(R)
        elif op.startswith("s_"):
            self.kind = "salu"
            if op == "s_nop":
                self.kind = "nop"
                self.n = int(ops[0], 0) + 1
            elif op.startswith("s_cbranch") or op == "s_branch":
                self.kind = "branch"
                self.target = ops[0]
            elif op == "s_endpgm":
                self.kind = "end"
            elif op.startswith("s_cmp") or op in ("s_waitcnt", "s_barrier", "s_setprio", "s_sleep") \
                    or op.startswith("s_bitcmp"):
                self.src = U(R)
            elif op.startswith("s_load") or op.startswith("s_mem"):
                self.kind = "smem"
                self.dst = R[0]
                self.src = U(R[1:])
            elif "saveexec" in op:
                self.dst = R[0] | {("x", "exec")}
                self.src = U(R[1:]) | {("x", "exec")}
            else:
                self.dst = R[0] if R else set()
                self.src = U(R[1:])

    def real(self):
        return self.kind not in ("empty", "label", "directive")

    def states(self):
        return self.n if self.kind == "nop" else 1


def vg(s):
    return {r for r in s if r[0] in ("v", "a")}


def sg(s):
    return {r for r in s if r[0] == "s" or r == ("x", "vcc")}


def required(p, c):
    need = 0
    pk, ck = p.kind, c.kind
    if pk == "valu":
        wv = vg(p.dst)
        ws = sg(p.dst)
        if ck == "valu":
            if c.dpp and (wv & c.dppsrc):
                need = max(need, 2)
            if c.base.startswith("v_permlane") and (wv & c.src):
                need = max(need, 2)
            if c.base in ("v_readlane_b32", "v_readfirstlane_b32") and (wv & c.src):
                need = max(need, 1)
            if getattr(p, "trans", False) and not c.trans and (wv & c.src):
                need = max(need, 1)
            if ws & c.src:
                need = max(need, 2)
                if c.base in ("v_readlane_b32", "v_writelane_b32"):
                    need = max(need, 4)
            if p.sdwa and (wv & (c.src | c.dst)):
                need = max(need, 1)
            if ("x", "exec") in p.dst:
                if c.dpp:
                    need = max(need, 5)
                if c.base in ("v_readlane_b32", "v_readfirstlane_b32", "v_writelane_b32") or \
                        c.base.startswith("v_permlane"):
                    need = max(need, 4)
            if p.base.startswith("v_dot2"):
                if wv & (c.src | c.dst):
                    same = c.base == p.base
                    if not (same and not (wv & (c.src - c.dst)) and c.dst == p.dst):
                        need = max(need, 3)
        if ck == "mfma":
            if wv & c.src:
                need = max(need, 2)
            if ("x", "exec") in p.dst:
                need = max(need, 4)
        if ck == "vmem" and (ws & c.src):
            need = max(need, 5)
        if ck == "smem" and (ws & c.src):
            need = max(need, 1)
        if ck in ("vmem", "ds") and getattr(p, "trans", False) and (wv & c.src):
            need = max(need, 1)
        if ck in ("vmem", "ds") and p.base.startswith("v_dot2") and (wv & c.src):
            need = max(need, 3)
    if pk == "mfma":
        tbl_v = {2: 5, 4: 8, 8: 12, 16: 20}
        tbl_c = {2: 4, 4: 6, 8: 10, 16: 18}
        tbl_war = {2: 1, 4: 3, 8: 7, 16: 15}
        if ck == "mfma":
            if p.dst & (c.A | c.B):
                need = max(need, tbl_v[p.passes])
            if p.dst & c.C:
                if not (p.dst == c.C and p.passes == c.passes):
                    need = max(need, tbl_c[p.passes])
            elif p.dst & c.dst:
                need = max(need, tbl_v[p.passes])
        if ck == "valu":
            if p.dst & (c.src | c.dst):
                need = max(need, tbl_v[p.passes])
            if p.C & c.dst:
                need = max(need, tbl_war[p.passes])
        if ck in ("vmem", "ds"):
            if p.dst & (c.src | c.dst):
                need = max(need, tbl_v[p.passes])
    if pk == "vmem" and hasattr(p, "storedata") and len(p.storedata) >= 3:
        if p.storedata & c.dst:
            need = max(need, 2 if ck in ("valu", "mfma") else 1)
    if pk == "salu" and ("x", "m0") in p.dst:
        if ck == "vmem" and getattr(c, "ldsdma", False):
            need = max(need, 1)
    return need


MAXLOOK = 21


class Asm:
    def __init__(self):
        self.lines = []

    def __call__(self, text):
        for ln in text.split("\n"):
            self.lines.append(ln.rstrip())

    def c(self, text):
        self.lines.append("    ; " + text)

    def finalize(self):
        ins = [Ins(l) for l in self.lines]
        changed = True
        guard = 0
        while changed:
            guard += 1
            assert guard < 2000
            changed = False
            labels = {x.label: i for i, x in enumerate(ins) if x.kind == "label"}
            brs = {}
            for i, x in enumerate(ins):
                if x.kind == "branch" and x.target in labels:
                    brs.setdefault(labels[x.target], []).append(i)
            for i, c in enumerate(ins):
                if not c.real() or c.kind == "nop":
                    continue
                worst = 0
                stack = [(i - 1, 0)]
                seen = set()
                while stack:
                    k, dist = stack.pop()
                    while k >= 0 and dist < MAXLOOK:
                        if (k, dist) in seen:
                            break
                        seen.add((k, dist))
                        p = ins[k]
                        if p.kind == "label":
                            for b in brs.get(k, []):
                                stack.append((b, dist))
                            k -= 1
                            kk = k
                            while kk >= 0 and not ins[kk].real() and ins[kk].kind != "label":
                                kk -= 1
                            if kk >= 0 and (ins[kk].kind == "end" or ins[kk].op == "s_branch"):
                                break
                            continue
                        if not p.real():
                            k -= 1
                            continue
                        need = required(p, c)
                        if need > dist:
                            worst = max(worst, need - dist)
                        dist += p.states()
                        k -= 1
                if worst:
                    n = worst
                    new = []
                    while n > 0:
                        m = min(n, 16)
                        new.append(Ins("    s_nop %d" % (m - 1)))
                        n -= m
                    ins[i:i] = new
                    changed = True
                    break
        return "\n".join(x.text for x in ins) + "\n"
```

```python
import sys
import os
sys.path.insert(0, os.path.dirname(os.path.abspath(__file__)))
from asmlib import Asm

NAME = "sequential_preLN__sliding_block_cached__glu_gated_bilinear__decode"

EPOCH = 0
S1 = 0x1000
S2ML = 0x11000
S3 = 0x15000
S4 = 0x1D000
S2O = 0x60000
PROFB = 0x100000

LK = 0
LV = 32768
LG = 65536
LD = 98304
LRED = 114688
LQ = 119040
LMX = 120128
LLS = 120256
LP = 120768
LH = 121856
LGP = 122880
LCS = 123904
LST = 124928
LDS_BYTES = 125056

DPP = "row_mask:0xf bank_mask:0xf"
SPIN_LIMIT = 1 << 18


class Regs:
    def __init__(self, start):
        self.n = start
        self.hi = start

    def __call__(self, cnt=1, align=None):
        if align is None:
            align = 2 if cnt > 1 else 1
        self.n = (self.n + align - 1) // align * align
        b = self.n
        self.n += cnt
        self.hi = max(self.hi, self.n)
        return b

    def mark(self):
        return self.n

    def release(self, m):
        self.n = m


def v(b, n=1):
    return "v%d" % b if n == 1 else "v[%d:%d]" % (b, b + n - 1)


def s(b, n=1):
    return "s%d" % b if n == 1 else "s[%d:%d]" % (b, b + n - 1)


def gen(prof=False, opt=None):
    opt = dict(opt or {})
    a = Asm()
    V = Regs(1)
    sX, sK, sVp, sWQ, sWO, sBX, sWG, sWU = 4, 6, 8, 10, 12, 14, 16, 18
    sWD, sOUT, sDBG, sWS = 20, 22, 24, 26
    sE, sW, sH, sJ = 28, 29, 30, 31
    sT0, sT1, sT2, sT3 = 32, 33, 34, 35
    sB0, sB1, sB2, sB3 = 36, 38, 40, 42
    sM8, sM10, sTag8, sTag10, sT32 = 44, 45, 46, 47, 48
    sSpin, sTmp, sDummy = 49, 50, 51
    sPC = 52
    sB4 = 54
    sU, sFI = 56, 57
    sMean, sVar = 58, 59
    sPROF = 60
    uid = [0]

    def stamp(i):
        if prof:
            a("    s_memrealtime %s" % s(sPROF + 2 * i, 2))

    def setexec(lo, hi):
        if lo == hi == 0xFFFFFFFF:
            a("    s_mov_b64 exec, -1")
        else:
            a("    s_mov_b32 exec_lo, 0x%x" % lo)
            a("    s_mov_b32 exec_hi, 0x%x" % hi)

    def base(dst, ptr, off_sreg):
        a("    s_add_u32 %s, %s, %s" % (s(dst), s(ptr), off_sreg))
        a("    s_addc_u32 %s, %s, 0" % (s(dst + 1), s(ptr + 1)))

    def finish():
        if prof:
            a("    s_branch L_PROF")
        else:
            a("    s_endpgm")

    def bf16r(dst, src):
        a("    v_cvt_pk_bf16_f32 %s, %s, %s" % (v(dst), v(src), v(src)))
        a("    v_and_b32 %s, 0xffff0000, %s" % (v(dst), v(dst)))

    def wavesum_to_sgpr(r, sd):
        for sh in (1, 2, 4, 8):
            a("    v_add_f32_dpp %s, %s, %s row_ror:%d %s" % (v(r), v(r), v(r), sh, DPP))
        a("    v_add_f32_dpp %s, %s, %s row_bcast:15 row_mask:0xa bank_mask:0xf" % (v(r), v(r), v(r)))
        a("    v_add_f32_dpp %s, %s, %s row_bcast:31 row_mask:0xc bank_mask:0xf" % (v(r), v(r), v(r)))
        a("    v_readlane_b32 %s, %s, 63" % (s(sd), v(r)))

    def tagcheck(regs, tagreg, tmp, first=True):
        for i, r in enumerate(regs):
            if first and i == 0:
                a("    v_xor_b32 %s, %s, %s" % (v(tmp), s(tagreg), v(r)))
            else:
                a("    v_bitop3_b32 %s, %s, %s, %s bitop3:0xf6" % (v(tmp), v(tmp), v(r), s(tagreg)))

    def poll(loads, check, firstwait, pre=None):
        uid[0] += 1
        u = uid[0]
        a("    s_waitcnt vmcnt(%d)" % firstwait)
        if pre:
            pre()
        check()
        a("    s_cbranch_vccz L_OK%d" % u)
        a("    s_mov_b32 %s, 0" % s(sSpin))
        a("L_RETRY%d:" % u)
        a("    s_mov_b64 exec, vcc")
        loads()
        a("    s_add_u32 %s, %s, 1" % (s(sSpin), s(sSpin)))
        a("    s_cmp_ge_u32 %s, 0x%x" % (s(sSpin), SPIN_LIMIT))
        a("    s_cbranch_scc1 L_GIVEUP%d" % u)
        a("    s_waitcnt vmcnt(0)")
        check()
        a("    s_cbranch_vccnz L_RETRY%d" % u)
        a("L_GIVEUP%d:" % u)
        a("    s_waitcnt vmcnt(0)")
        a("    s_mov_b64 exec, -1")
        a("L_OK%d:" % u)

    def treduce4(r):
        a("    v_permlane32_swap_b32 %s, %s" % (v(r), v(r + 2)))
        a("    v_permlane32_swap_b32 %s, %s" % (v(r + 1), v(r + 3)))
        a("    v_add_f32 %s, %s, %s" % (v(r), v(r), v(r + 2)))
        a("    v_add_f32 %s, %s, %s" % (v(r + 1), v(r + 1), v(r + 3)))
        a("    v_permlane16_swap_b32 %s, %s" % (v(r), v(r + 1)))
        a("    v_add_f32 %s, %s, %s" % (v(r), v(r), v(r + 1)))

    hdr = open(os.path.join(os.path.dirname(os.path.abspath(__file__)), "..", "cdna_kernels", NAME + ".s.ref")).read()
    head = [l for l in hdr.split("\n") if l.startswith("; Kernarg") or l.startswith(";   offset")]
    out = "\n".join(head) + "\n"
    out += "; One persistent launch: 256 workgroups (one per CU) x 8 waves.\n"
    out += "; @launch grid=(256,1,1) block=(512,1,1) lds=%d\n" % LDS_BYTES
    a('.amdgcn_target "amdgcn-amd-amdhsa--gfx950"')
    a(".text")
    a(".globl %s_kernel" % NAME)
    a(".p2align 8")
    a(".type %s_kernel,@function" % NAME)
    a("%s_kernel:" % NAME)

    vL = 0
    vM = V(4, 4)
    vTag8, vTag10 = V(), V()
    vL3, vL7, vG, vJ = V(), V(), V(), V()
    vRedW, vRedR, vC4 = V(), V(), V()
    vD = V(4, 4)
    vT = V(8, 4)
    vV0, vV1 = V(), V()
    vW = V(16, 4)
    mk = V.mark()

    a("    s_cmp_ge_u32 s2, 0x100")
    a("    s_cbranch_scc1 L_END")
    a("    s_load_dwordx16 s[4:19], s[0:1], 0x0")
    a("    s_load_dwordx8 s[20:27], s[0:1], 0x40")
    stamp(0)
    vXo, vXSo, vWQ0, vWQ1 = V(), V(), V(), V()
    vKo = V(4)
    vXf = V(4, 4)
    vXs = V()
    a("    v_lshrrev_b32 %s, 6, v0" % v(vT))
    a("    v_and_b32 v0, 63, v0")
    a("    s_and_b32 %s, s2, 7" % s(sH))
    a("    v_readfirstlane_b32 %s, %s" % (s(sW), v(vT)))
    a("    s_lshr_b32 %s, s2, 3" % s(sJ))
    a("    v_lshlrev_b32 %s, 4, v0" % v(vXo))
    a("    v_lshrrev_b32 %s, 3, v0" % v(vL3))
    a("    v_and_b32 %s, 7, v0" % v(vL7))
    a("    v_lshrrev_b32 %s, 4, v0" % v(vG))
    a("    v_and_b32 %s, 15, v0" % v(vJ))
    a("    v_lshlrev_b32 %s, 2, %s" % (v(vXSo), v(vL3)))
    a("    v_lshlrev_b32 %s, 4, %s" % (v(vT), v(vL7)))
    a("    v_lshl_or_b32 %s, %s, 14, %s" % (v(vWQ0), v(vL3), v(vT)))
    a("    v_add_u32 %s, 0x2000, %s" % (v(vWQ1), v(vWQ0)))
    a("    v_xor_b32 %s, %s, %s" % (v(vT), v(vJ), v(vG)))
    a("    v_lshlrev_b32 %s, 4, %s" % (v(vT), v(vT)))
    a("    v_lshl_or_b32 %s, %s, 8, %s" % (v(vKo), v(vG), v(vT)))
    for i in (1, 2, 3):
        a("    v_xor_b32 %s, 0x%x, %s" % (v(vKo + i), 64 * i, v(vKo)))
    a("    s_lshr_b32 %s, %s, 3" % (s(sT0), s(sJ)))
    a("    s_lshl_b32 %s, %s, 7" % (s(sT0), s(sT0)))
    a("    s_lshl_b32 %s, %s, 4" % (s(sT1), s(sW)))
    a("    s_add_u32 %s, %s, %s" % (s(sT0), s(sT0), s(sT1)))
    a("    s_lshl_b32 %s, %s, 7" % (s(sT2), s(sJ)))
    a("    s_add_u32 %s, %s, %s" % (s(sT2), s(sT2), s(sT1)))
    a("    s_add_u32 %s, %s, 0xf000" % (s(sT2), s(sT2)))
    a("    s_lshl_b32 %s, %s, 16" % (s(sT3), s(sH)))
    a("    s_add_u32 %s, %s, %s" % (s(sT2), s(sT2), s(sT3)))
    a("    s_lshl_b32 %s, %s, 8" % (s(sT2), s(sT2)))
    a("    s_lshl_b32 %s, %s, 13" % (s(sT1), s(sT0)))
    a("    s_lshl_b32 %s, %s, 10" % (s(sT3), s(sH)))
    a("    s_add_u32 %s, %s, %s" % (s(sT1), s(sT1), s(sT3)))
    a("    s_and_b32 %s, %s, 7" % (s(sT3), s(sJ)))
    a("    s_lshl_b32 %s, %s, 7" % (s(sT3), s(sT3)))
    a("    s_add_u32 %s, %s, %s" % (s(sT1), s(sT1), s(sT3)))
    a("    s_lshl_b32 %s, %s, 1" % (s(sT0), s(sT0)))
    a("    s_lshl_b32 %s, %s, 12" % (s(sTmp), s(sW)))
    a("    s_mov_b32 m0, %s" % s(sTmp))
    a("    s_waitcnt lgkmcnt(0)")
    a("    global_load_dwordx4 %s, %s, %s" % (v(vXf, 4), v(vXo), s(sX, 2)))
    base(sB0, sX, s(sT0))
    a("    global_load_dword %s, %s, %s" % (v(vXs), v(vXSo), s(sB0, 2)))
    base(sB1, sWQ, s(sT1))
    a("    global_load_dwordx4 %s, %s, %s nt" % (v(vW, 4), v(vWQ0), s(sB1, 2)))
    a("    global_load_dwordx4 %s, %s, %s nt" % (v(vW + 4, 4), v(vWQ1), s(sB1, 2)))
    base(sB2, sK, s(sT2))
    for i in range(4):
        a("    global_load_lds_dwordx4 %s, %s offset:%d nt" % (v(vKo + i), s(sB2, 2), 1024 * i))
    a("    s_load_dword %s, %s, 0x%x" % (s(sE), s(sWS, 2), EPOCH))
    a("    s_getpc_b64 %s" % s(sPC, 2))
    a("L_PC:")
    a("    s_lshl_b32 %s, %s, 3" % (s(sT0), s(sJ)))
    a("    s_add_u32 %s, %s, %s" % (s(sT0), s(sT0), s(sW)))
    a("    s_min_u32 %s, %s, (L_CODE_END-L_PC-4)/128" % (s(sT0), s(sT0)))
    a("    s_lshl_b32 %s, %s, 7" % (s(sT0), s(sT0)))
    a("    s_load_dword %s, %s, %s" % (s(sDummy), s(sPC, 2), s(sT0)))
    base(sB3, sVp, s(sT2))
    a("    v_lshlrev_b32 %s, 1, %s" % (v(vT), v(vG)))
    a("    v_xor_b32 %s, %s, %s" % (v(vT), v(vJ), v(vT)))
    a("    v_lshlrev_b32 %s, 4, %s" % (v(vT), v(vT)))
    a("    v_lshl_or_b32 %s, %s, 8, %s" % (v(vV0), v(vG), v(vT)))
    a("    v_xor_b32 %s, 0x80, %s" % (v(vV1), v(vV0)))
    a("    s_add_u32 %s, %s, 0x%x" % (s(sTmp), s(sTmp), LV))
    a("    s_mov_b32 m0, %s" % s(sTmp))
    NV0 = opt.get("nv0", 1)
    NV1 = opt.get("nv1", 3)

    def vload(i):
        a("    global_load_lds_dwordx4 %s, %s offset:%d nt" % (v(vV1 if i & 1 else vV0), s(sB3, 2), 1024 * i))
    for i in range(NV0):
        vload(i)
    a("    v_and_b32 %s, 1, v0" % v(vT))
    a("    v_lshlrev_b32 %s, 4, %s" % (v(vT), v(vT)))
    a("    v_lshlrev_b32 %s, %s, %s" % (v(vT + 1), v(vT), v(vT + 2)) if False else
      "    v_mov_b32 %s, 0xffff" % v(vT + 1))
    a("    v_lshlrev_b32 %s, %s, %s" % (v(vT + 1), v(vT), v(vT + 1)))
    a("    v_lshrrev_b32 %s, 1, %s" % (v(vT), v(vL7)))
    for r in range(4):
        a("    v_cmp_eq_u32 vcc, %d, %s" % (r, v(vT)))
        a("    v_cndmask_b32 %s, 0, %s, vcc" % (v(vM + r), v(vT + 1)))
    a("    v_lshrrev_b32 %s, 5, v0" % v(vT))
    a("    s_lshl_b32 %s, %s, 1" % (s(sT0), s(sW)))
    a("    v_add_u32 %s, %s, %s" % (v(vT), s(sT0), v(vT)))
    a("    v_mul_u32_u24 %s, 272, %s" % (v(vT), v(vT)))
    a("    v_and_b32 %s, 1, %s" % (v(vT + 1), v(vG)))
    a("    v_lshl_or_b32 %s, %s, 1, %s" % (v(vT + 1), v(vL7), v(vT + 1)))
    a("    v_lshl_add_u32 %s, %s, 4, %s" % (v(vT), v(vT + 1), v(vT)))
    a("    v_add_u32 %s, 0x%x, %s" % (v(vRedW), LRED, v(vT)))
    a("    v_lshrrev_b32 %s, 2, v0" % v(vC4))
    a("    v_lshlrev_b32 %s, 4, %s" % (v(vC4), v(vC4)))
    a("    v_and_b32 %s, 3, v0" % v(vT))
    a("    v_mul_u32_u24 %s, 1088, %s" % (v(vT), v(vT)))
    a("    v_add_u32 %s, %s, %s" % (v(vT), v(vC4), v(vT)))
    a("    v_add_u32 %s, 0x%x, %s" % (v(vRedR), LRED, v(vT)))
    a("    s_mov_b32 %s, 0xffffff00" % s(sM8))
    a("    s_mov_b32 %s, 0xfffffc00" % s(sM10))

    vXu = V(8, 4)
    a("    s_waitcnt vmcnt(%d)" % (6 + NV0))
    stamp(1)
    for i in range(4):
        a("    v_lshlrev_b32 %s, 16, %s" % (v(vXu + 2 * i), v(vXf + i)))
        a("    v_and_b32 %s, 0xffff0000, %s" % (v(vXu + 2 * i + 1), v(vXf + i)))
    for i in range(4):
        a("    v_add_f32 %s, %s, %s" % (v(vT + i), v(vXu + 2 * i), v(vXu + 2 * i + 1)))
    a("    v_add_f32 %s, %s, %s" % (v(vT), v(vT), v(vT + 1)))
    a("    v_add_f32 %s, %s, %s" % (v(vT + 2), v(vT + 2), v(vT + 3)))
    a("    v_add_f32 %s, %s, %s" % (v(vT), v(vT), v(vT + 2)))
    a("    v_mul_f32 %s, 0x3b000000, %s" % (v(vT), v(vT)))
    wavesum_to_sgpr(vT, sMean)
    for i in range(8):
        a("    v_subrev_f32 %s, %s, %s" % (v(vXu + i), s(sMean), v(vXu + i)))
    a("    v_mul_f32 %s, %s, %s" % (v(vT), v(vXu), v(vXu)))
    a("    v_mul_f32 %s, %s, %s" % (v(vT + 1), v(vXu + 1), v(vXu + 1)))
    for i in range(2, 8):
        a("    v_fmac_f32 %s, %s, %s" % (v(vT + (i & 1)), v(vXu + i), v(vXu + i)))
    a("    v_add_f32 %s, %s, %s" % (v(vT), v(vT), v(vT + 1)))
    a("    v_mul_f32 %s, 0x3b000000, %s" % (v(vT), v(vT)))
    wavesum_to_sgpr(vT, sVar)
    a("    v_mov_b32 %s, %s" % (v(vT + 1), s(sMean)))
    bf16r(vT + 1, vT + 1)
    a("    v_mov_b32 %s, %s" % (v(vT), s(sVar)))
    bf16r(vT, vT)
    a("    v_add_f32 %s, 0x3727c5ac, %s" % (v(vT), v(vT)))
    bf16r(vT, vT)
    a("    v_sqrt_f32 %s, %s" % (v(vT), v(vT)))
    bf16r(vT, vT)
    a("    v_rcp_f32 %s, %s" % (v(vT + 2), v(vT)))
    a("    v_lshlrev_b32 %s, 16, %s" % (v(vT + 3), v(vXs)))
    a("    v_and_b32 %s, 0xffff0000, %s" % (v(vT + 4), v(vXs)))
    a("    v_sub_f32 %s, %s, %s" % (v(vT + 3), v(vT + 3), v(vT + 1)))
    a("    v_sub_f32 %s, %s, %s" % (v(vT + 4), v(vT + 4), v(vT + 1)))
    bf16r(vT + 3, vT + 3)
    bf16r(vT + 4, vT + 4)
    vA = V(8, 4)
    for i in range(2):
        y, q = vT + 3 + i, vT + 5 + i
        a("    v_mul_f32 %s, %s, %s" % (v(q), v(y), v(vT + 2)))
        a("    v_fma_f32 %s, -%s, %s, %s" % (v(y), v(q), v(vT), v(y)))
        a("    v_fmac_f32 %s, %s, %s" % (v(q), v(y), v(vT + 2)))
        a("    v_cvt_pk_bf16_f32 %s, %s, %s" % (v(q), v(q), v(q)))
        for r in range(4):
            a("    v_and_b32 %s, %s, %s" % (v(vA + 4 * i + r), v(q), v(vM + r)))
    a("    s_waitcnt lgkmcnt(0)")
    a("    s_add_u32 %s, %s, 1" % (s(sT32), s(sE)))
    a("    s_and_b32 %s, %s, 0xff" % (s(sTag8), s(sT32)))
    a("    s_and_b32 %s, %s, 0x3ff" % (s(sTag10), s(sT32)))
    a("    v_mov_b32 %s, %s" % (v(vTag8), s(sTag8)))
    a("    v_mov_b32 %s, %s" % (v(vTag10), s(sTag10)))
    a("    s_waitcnt vmcnt(%d)" % (4 + NV0))
    stamp(2)
    a("    v_mfma_f32_16x16x32_bf16 %s, %s, %s, 0" % (v(vD, 4), v(vA, 4), v(vW, 4)))
    a("    v_mfma_f32_16x16x32_bf16 %s, %s, %s, %s" % (v(vD, 4), v(vA + 4, 4), v(vW + 4, 4), v(vD, 4)))

    def red_publish(tagv, mask, rnd, basepair, label):
        setexec(0x00FF00FF, 0xFF00FF00)
        a("    ds_write_b128 %s, %s" % (v(vRedW), v(vD, 4)))
        setexec(0xFFFFFFFF, 0xFFFFFFFF)
        a("    s_waitcnt lgkmcnt(0)")
        a("    s_barrier")
        a("    s_cmp_lg_u32 %s, 0" % s(sW))
        a("    s_cbranch_scc1 %s" % label)
        m = V.mark()
        r = V(16, 4)
        for i in range(4):
            a("    ds_read_b128 %s, %s offset:%d" % (v(r + 4 * i, 4), v(vRedR), 272 * i))
        a("    s_waitcnt lgkmcnt(2)")
        a("    v_pk_add_f32 %s, %s, %s" % (v(r, 2), v(r, 2), v(r + 4, 2)))
        a("    v_pk_add_f32 %s, %s, %s" % (v(r + 2, 2), v(r + 2, 2), v(r + 6, 2)))
        a("    s_waitcnt lgkmcnt(0)")
        a("    v_pk_add_f32 %s, %s, %s" % (v(r + 8, 2), v(r + 8, 2), v(r + 12, 2)))
        a("    v_pk_add_f32 %s, %s, %s" % (v(r + 10, 2), v(r + 10, 2), v(r + 14, 2)))
        a("    v_pk_add_f32 %s, %s, %s" % (v(r, 2), v(r, 2), v(r + 8, 2)))
        a("    v_pk_add_f32 %s, %s, %s" % (v(r + 2, 2), v(r + 2, 2), v(r + 10, 2)))
        for perm in ("[1,0,3,2]", "[2,3,0,1]"):
            for i in range(4):
                a("    v_add_f32_dpp %s, %s, %s quad_perm:%s %s" % (v(r + i), v(r + i), v(r + i), perm, DPP))
        for i in range(4):
            if rnd:
                a("    v_add_u32 %s, 0x%x, %s" % (v(r + i), rnd, v(r + i)))
        for i in range(4):
            a("    v_and_or_b32 %s, %s, %s, %s" % (v(r + i), v(r + i), s(mask), v(tagv)))
        setexec(0x11111111, 0x11111111)
        a("    global_store_dwordx4 %s, %s, %s sc1" % (v(vC4), v(r, 4), s(basepair, 2)))
        setexec(0xFFFFFFFF, 0xFFFFFFFF)
        V.release(m)

    a("    s_lshl_b32 %s, %s, 13" % (s(sT0), s(sH)))
    a("    s_add_u32 %s, %s, 0x%x" % (s(sT0), s(sT0), S1))
    a("    s_lshl_b32 %s, %s, 8" % (s(sT1), s(sJ)))
    a("    s_add_u32 %s, %s, %s" % (s(sT1), s(sT1), s(sT0)))
    base(sB0, sWS, s(sT1))
    a("    s_lshl_b32 %s, %s, 8" % (s(sT1), s(sW)))
    a("    s_add_u32 %s, %s, %s" % (s(sT1), s(sT1), s(sT0)))
    base(sB1, sWS, s(sT1))
    V.release(mk)
    red_publish(vTag8, sM8, 0x80, sB0, "L_QPUB")
    a("L_QPUB:")
    if opt.get("b1b", 1):
        a("    s_barrier")
    stamp(3)
    for i in range(NV0, NV1):
        vload(i)
    vQ = V(4, 4)
    vQo = V()
    a("    v_lshlrev_b32 %s, 4, %s" % (v(vQo), v(vJ)))
    a("    v_lshl_or_b32 %s, %s, 11, %s" % (v(vQo), v(vG), v(vQo)))

    def qload():
        a("    global_load_dwordx4 %s, %s, %s sc1" % (v(vQ, 4), v(vQo), s(sB1, 2)))
    qload()
    for i in range(NV1, 4):
        vload(i)
    NVA = 4 - NV1
    a("    s_cmp_lt_u32 %s, 16" % s(sJ))
    a("    s_cbranch_scc1 L_ROLE_WO")
    a("    s_cmp_lt_u32 %s, 4" % s(sH))
    a("    s_cbranch_scc1 L_ROLE_FFN")
    a("    s_cmp_lt_u32 %s, 28" % s(sJ))
    a("    s_cbranch_scc1 L_ROLE_FFN")

    def attention(ntail):
        m0 = V.mark()
        vKa = V(16, 4)
        vQb = V(16, 4)
        vPb = vQb
        vVa = vKa
        vS = V(4, 4)
        vMx, vMl = V(), V(4, 4)
        vAk = V(4)
        vAq, vAqw, vAmw, vAmr, vAlw, vApw, vApr, vAv, vAo, vAlr, vAml = [V() for _ in range(11)]
        a("    s_lshl_b32 %s, %s, 12" % (s(sT0), s(sW)))
        a("    v_xor_b32 %s, %s, %s" % (v(vT), v(vJ), v(vG)))
        a("    v_lshlrev_b32 %s, 4, %s" % (v(vT), v(vT)))
        a("    v_lshl_or_b32 %s, %s, 8, %s" % (v(vT), v(vJ), v(vT)))
        a("    v_add_u32 %s, %s, %s" % (v(vAk), s(sT0), v(vT)))
        for i in (1, 2, 3):
            a("    v_xor_b32 %s, 0x%x, %s" % (v(vAk + i), 64 * i, v(vAk)))
        a("    v_and_b32 %s, 3, v0" % v(vT))
        a("    v_mul_u32_u24 %s, 272, %s" % (v(vT + 1), v(vT)))
        a("    v_lshl_add_u32 %s, %s, 4, %s" % (v(vT + 2), v(vG), v(vT + 1)))
        a("    v_add_u32 %s, 0x%x, %s" % (v(vAq), LQ, v(vT + 2)))
        a("    v_add_u32 %s, 0x%x, %s" % (v(vApr), LP, v(vT + 2)))
        a("    s_lshr_b32 %s, %s, 1" % (s(sT0), s(sW)))
        a("    s_and_b32 %s, %s, 1" % (s(sT1), s(sW)))
        a("    s_lshl_b32 %s, %s, 6" % (s(sT2), s(sT0)))
        a("    s_lshl_b32 %s, %s, 3" % (s(sT3), s(sT1)))
        a("    s_add_u32 %s, %s, %s" % (s(sT2), s(sT2), s(sT3)))
        a("    v_add_u32 %s, %s, %s" % (v(vApw), s(sT2), v(vApr)))
        a("    s_mul_i32 %s, %s, 272" % (s(sT0), s(sT0)))
        a("    s_lshl_b32 %s, %s, 7" % (s(sT1), s(sT1)))
        a("    s_add_u32 %s, %s, %s" % (s(sT0), s(sT0), s(sT1)))
        a("    s_add_u32 %s, %s, 0x%x" % (s(sT0), s(sT0), LQ))
        a("    v_lshl_add_u32 %s, %s, 2, %s" % (v(vT + 3), v(vJ), v(vG)))
        a("    v_lshl_add_u32 %s, %s, 1, %s" % (v(vAqw), v(vT + 3), s(sT0)))
        a("    v_lshlrev_b32 %s, 5, %s" % (v(vT + 1), v(vT)))
        a("    v_add_u32 %s, 0x%x, %s" % (v(vAmr), LMX, v(vT + 1)))
        a("    s_lshl_b32 %s, %s, 2" % (s(sT0), s(sW)))
        a("    v_add_u32 %s, %s, %s" % (v(vAmw), s(sT0), v(vAmr)))
        a("    s_lshl_b32 %s, %s, 4" % (s(sT0), s(sW)))
        a("    s_add_u32 %s, %s, 0x%x" % (s(sT0), s(sT0), LLS))
        a("    v_lshlrev_b32 %s, 7, %s" % (v(vT + 1), v(vT)))
        a("    v_lshl_add_u32 %s, %s, 2, %s" % (v(vT + 1), v(vG), v(vT + 1)))
        a("    v_add_u32 %s, %s, %s" % (v(vAlw), s(sT0), v(vT + 1)))
        a("    v_lshlrev_b32 %s, 7, %s" % (v(vT + 1), v(vG)))
        a("    v_lshl_add_u32 %s, %s, 3, %s" % (v(vT + 1), v(vJ), v(vT + 1)))
        a("    v_add_u32 %s, 0x%x, %s" % (v(vAlr), LLS, v(vT + 1)))
        a("    v_lshlrev_b32 %s, 9, %s" % (v(vAml), v(vG)))
        a("    v_lshrrev_b32 %s, 2, %s" % (v(vT + 1), v(vJ)))
        a("    v_lshl_add_u32 %s, %s, 2, %s" % (v(vT + 1), v(vG), v(vT + 1)))
        a("    v_and_b32 %s, 7, %s" % (v(vT + 2), v(vT + 1)))
        a("    v_lshlrev_b32 %s, 1, %s" % (v(vT + 2), v(vT + 2)))
        a("    v_bfe_u32 %s, v0, 1, 1" % v(vT + 3))
        a("    s_lshl_b32 %s, %s, 1" % (s(sT0), s(sW)))
        a("    v_add_u32 %s, %s, %s" % (v(vT + 3), s(sT0), v(vT + 3)))
        a("    v_xor_b32 %s, %s, %s" % (v(vT + 2), v(vT + 2), v(vT + 3)))
        a("    v_lshlrev_b32 %s, 4, %s" % (v(vT + 2), v(vT + 2)))
        a("    v_lshl_or_b32 %s, %s, 8, %s" % (v(vT + 1), v(vT + 1), v(vT + 2)))
        a("    v_and_b32 %s, 1, v0" % v(vT + 2))
        a("    v_lshl_or_b32 %s, %s, 3, %s" % (v(vT + 1), v(vT + 2), v(vT + 1)))
        a("    v_add_u32 %s, 0x%x, %s" % (v(vAv), LV, v(vT + 1)))
        a("    v_lshlrev_b32 %s, 4, %s" % (v(vT + 1), v(vG)))
        a("    v_lshl_or_b32 %s, %s, 9, %s" % (v(vAo), v(vJ), v(vT + 1)))
        a("    s_lshl_b32 %s, %s, 5" % (s(sT0), s(sH)))
        a("    s_add_u32 %s, %s, %s" % (s(sT0), s(sT0), s(sJ)))
        a("    s_lshl_b32 %s, %s, 11" % (s(sT0), s(sT0)))
        a("    s_lshl_b32 %s, %s, 6" % (s(sT1), s(sW)))
        a("    s_add_u32 %s, %s, %s" % (s(sT0), s(sT0), s(sT1)))
        a("    s_add_u32 %s, %s, 0x%x" % (s(sT0), s(sT0), S2O))
        base(sB0, sWS, s(sT0))
        a("    s_lshl_b32 %s, %s, 11" % (s(sT0), s(sH)))
        a("    s_lshl_b32 %s, %s, 4" % (s(sT1), s(sJ)))
        a("    s_add_u32 %s, %s, %s" % (s(sT0), s(sT0), s(sT1)))
        a("    s_add_u32 %s, %s, 0x%x" % (s(sT0), s(sT0), S2ML))
        base(sB2, sWS, s(sT0))

        def kreads():
            for i in range(4):
                a("    ds_read_b128 %s, %s" % (v(vKa + 4 * i, 4), v(vAk + i)))

        def qcheck():
            tagcheck([vQ + i for i in range(4)], sTag8, vT)
            a("    v_and_b32 %s, 0xff, %s" % (v(vT), v(vT)))
            a("    v_cmp_ne_u32 vcc, 0, %s" % v(vT))
        poll(qload, qcheck, NVA + ntail, pre=kreads)
        stamp(4)
        for i in range(4):
            a("    v_and_b32 %s, %s, %s" % (v(vQ + i), s(sM8), v(vQ + i)))
        treduce4(vQ)
        a("    v_cvt_pk_bf16_f32 %s, %s, %s" % (v(vQ), v(vQ), v(vQ)))
        a("    ds_write_b16 %s, %s" % (v(vAqw), v(vQ)))
        a("    s_waitcnt lgkmcnt(0)")
        a("    s_barrier")
        for i in range(4):
            a("    ds_read_b128 %s, %s offset:%d" % (v(vQb + 4 * i, 4), v(vAq), 64 * i))
        for i in range(4):
            a("    s_waitcnt lgkmcnt(%d)" % (0 if prof else 3 - i))
            a("    v_mfma_f32_16x16x32_bf16 %s, %s, %s, %s" %
              (v(vD, 4), v(vKa + 4 * i, 4), v(vQb + 4 * i, 4), "0" if i == 0 else v(vD, 4)))
        a("    v_cvt_pk_bf16_f32 %s, %s, %s" % (v(vT), v(vD), v(vD + 1)))
        a("    v_cvt_pk_bf16_f32 %s, %s, %s" % (v(vT + 1), v(vD + 2), v(vD + 3)))
        for rnd in range(2):
            for i in range(2):
                a("    v_lshlrev_b32 %s, 16, %s" % (v(vS + 2 * i), v(vT + i)))
                a("    v_and_b32 %s, 0xffff0000, %s" % (v(vS + 2 * i + 1), v(vT + i)))
            if rnd == 0:
                for i in range(4):
                    a("    v_mul_f32 %s, 0x3db504f3, %s" % (v(vS + i), v(vS + i)))
                a("    v_cvt_pk_bf16_f32 %s, %s, %s" % (v(vT), v(vS), v(vS + 1)))
                a("    v_cvt_pk_bf16_f32 %s, %s, %s" % (v(vT + 1), v(vS + 2), v(vS + 3)))
        a("    v_max3_f32 %s, %s, %s, %s" % (v(vMx), v(vS), v(vS + 1), v(vS + 2)))
        a("    v_max_f32 %s, %s, %s" % (v(vMx), v(vMx), v(vS + 3)))
        for sw in ("16", "32"):
            a("    v_mov_b32 %s, %s" % (v(vT), v(vMx)))
            a("    v_permlane%s_swap_b32 %s, %s" % (sw, v(vMx), v(vT)))
            a("    v_max_f32 %s, %s, %s" % (v(vMx), v(vMx), v(vT)))
        setexec(0xF, 0)
        a("    ds_write_b32 %s, %s" % (v(vAmw), v(vMx)))
        setexec(0xFFFFFFFF, 0xFFFFFFFF)
        a("    s_waitcnt lgkmcnt(0)")
        a("    s_barrier")
        a("    ds_read_b128 %s, %s" % (v(vT, 4), v(vAmr)))
        a("    ds_read_b128 %s, %s offset:16" % (v(vT + 4, 4), v(vAmr)))
        a("    s_waitcnt lgkmcnt(0)")
        a("    v_max3_f32 %s, %s, %s, %s" % (v(vT), v(vT), v(vT + 1), v(vT + 2)))
        a("    v_max3_f32 %s, %s, %s, %s" % (v(vT + 4), v(vT + 4), v(vT + 5), v(vT + 6)))
        a("    v_max3_f32 %s, %s, %s, %s" % (v(vT), v(vT), v(vT + 3), v(vT + 7)))
        a("    v_max_f32 %s, %s, %s" % (v(vMl), v(vT), v(vT + 4)))
        for i in range(4):
            a("    v_sub_f32 %s, %s, %s" % (v(vS + i), v(vS + i), v(vMl)))
        for i in range(4):
            a("    v_mul_f32 %s, 0x3fb8aa3b, %s" % (v(vS + i), v(vS + i)))
        for i in range(4):
            a("    v_exp_f32 %s, %s" % (v(vS + i), v(vS + i)))
        a("    v_add_f32 %s, %s, %s" % (v(vT), v(vS), v(vS + 1)))
        a("    v_add_f32 %s, %s, %s" % (v(vT + 1), v(vS + 2), v(vS + 3)))
        a("    v_cvt_pk_bf16_f32 %s, %s, %s" % (v(vT + 2), v(vS), v(vS + 1)))
        a("    v_cvt_pk_bf16_f32 %s, %s, %s" % (v(vT + 3), v(vS + 2), v(vS + 3)))
        a("    v_add_f32 %s, %s, %s" % (v(vT), v(vT), v(vT + 1)))
        setexec(0x000F000F, 0x000F000F)
        a("    ds_write_b64 %s, %s" % (v(vApw), v(vT + 2, 2)))
        a("    ds_write_b32 %s, %s" % (v(vAlw), v(vT)))
        setexec(0xFFFFFFFF, 0xFFFFFFFF)
        a("    s_waitcnt lgkmcnt(0)")
        a("    s_barrier")
        for i in range(4):
            a("    ds_read_b128 %s, %s offset:%d" % (v(vPb + 4 * i, 4), v(vApr), 64 * i))
        uid[0] += 1
        u = uid[0]
        a("    s_cmp_lg_u32 %s, 0" % s(sW))
        a("    s_cbranch_scc1 L_NOML%d" % u)
        a("    ds_read_b64 %s, %s" % (v(vT, 2), v(vAlr)))
        a("    v_mov_b32 %s, %s" % (v(vMl + 2), s(sT32)))
        a("    v_mov_b32 %s, %s" % (v(vMl + 3), s(sT32)))
        a("    s_waitcnt lgkmcnt(0)")
        a("    v_add_f32 %s, %s, %s" % (v(vMl + 1), v(vT), v(vT + 1)))
        for sh in (1, 2, 4, 8):
            a("    v_add_f32_dpp %s, %s, %s row_ror:%d %s" % (v(vMl + 1), v(vMl + 1), v(vMl + 1), sh, DPP))
        a("    s_waitcnt vmcnt(%d)" % ntail)
        setexec(0x00020001, 0x00080004)
        a("    global_store_dwordx4 %s, %s, %s sc1" % (v(vAml), v(vMl, 4), s(sB2, 2)))
        setexec(0xFFFFFFFF, 0xFFFFFFFF)
        a("    s_branch L_MLD%d" % u)
        a("L_NOML%d:" % u)
        a("    s_waitcnt vmcnt(%d)" % ntail)
        a("L_MLD%d:" % u)
        a("    s_barrier")
        stamp(5)
        for t in range(4):
            for hh in range(2):
                a("    ds_read_b64_tr_b16 %s, %s offset:%d" % (v(vVa + 4 * t + 2 * hh, 2), v(vAv), 8192 * t + 4096 * hh))
        for t in range(4):
            a("    s_waitcnt lgkmcnt(%d)" % (0 if prof else 6 - 2 * t))
            a("    v_mfma_f32_16x16x32_bf16 %s, %s, %s, %s" %
              (v(vD, 4), v(vVa + 4 * t, 4), v(vPb + 4 * t, 4), "0" if t == 0 else v(vD, 4)))
        setexec(0x000F000F, 0x000F000F)
        for i in range(4):
            a("    v_and_or_b32 %s, %s, %s, %s" % (v(vD + i), v(vD + i), s(sM10), v(vTag10)))
        a("    global_store_dwordx4 %s, %s, %s sc1" % (v(vAo), v(vD, 4), s(sB0, 2)))
        setexec(0xFFFFFFFF, 0xFFFFFFFF)
        stamp(6)
        V.release(m0)

    attention(0)
    finish()

    a("L_ROLE_WO:")
    mrole = V.mark()
    a("    s_lshl_b32 %s, %s, 9" % (s(sT0), s(sH)))
    a("    s_lshr_b32 %s, %s, 3" % (s(sT1), s(sJ)))
    a("    s_lshl_b32 %s, %s, 8" % (s(sT1), s(sT1)))
    a("    s_add_u32 %s, %s, %s" % (s(sT0), s(sT0), s(sT1)))
    a("    s_lshl_b32 %s, %s, 5" % (s(sT1), s(sW)))
    a("    s_add_u32 %s, %s, %s" % (s(sT0), s(sT0), s(sT1)))
    a("    s_lshl_b32 %s, %s, 10" % (s(sT0), s(sT0)))
    a("    s_and_b32 %s, %s, 7" % (s(sT1), s(sJ)))
    a("    s_lshl_b32 %s, %s, 7" % (s(sT1), s(sT1)))
    a("    s_add_u32 %s, %s, %s" % (s(sT0), s(sT0), s(sT1)))
    base(sB4, sWO, s(sT0))
    a("    v_lshlrev_b32 %s, 4, %s" % (v(vT), v(vL7)))
    a("    v_lshl_or_b32 %s, %s, 12, %s" % (v(vT), v(vL3), v(vT)))
    for i in range(4):
        a("    global_load_dwordx4 %s, %s, %s offset:%d nt" % (v(vW + 4 * i, 4), v(vT), s(sB4, 2), 1024 * i))
    attention(4)
    vO = V(16, 4)
    vML = V(16, 4)
    vOo = V(4)
    vMLo = V()
    vA = V(16, 4)
    a("    s_lshr_b32 %s, %s, 3" % (s(sT0), s(sJ)))
    a("    s_lshl_b32 %s, %s, 1" % (s(sT0), s(sT0)))
    a("    s_lshr_b32 %s, %s, 2" % (s(sT1), s(sW)))
    a("    s_add_u32 %s, %s, %s" % (s(sT0), s(sT0), s(sT1)))
    a("    s_lshl_b32 %s, %s, 9" % (s(sT0), s(sT0)))
    a("    s_lshl_b32 %s, %s, 11" % (s(sT1), s(sH)))
    a("    s_add_u32 %s, %s, %s" % (s(sT1), s(sT1), s(sT0)))
    a("    s_add_u32 %s, %s, 0x%x" % (s(sT1), s(sT1), S2ML))
    base(sB0, sWS, s(sT1))
    a("    s_lshl_b32 %s, %s, 16" % (s(sT1), s(sH)))
    a("    s_add_u32 %s, %s, %s" % (s(sT1), s(sT1), s(sT0)))
    a("    s_and_b32 %s, %s, 3" % (s(sT0), s(sW)))
    a("    s_lshl_b32 %s, %s, 7" % (s(sT0), s(sT0)))
    a("    s_add_u32 %s, %s, %s" % (s(sT1), s(sT1), s(sT0)))
    a("    s_add_u32 %s, %s, 0x%x" % (s(sT1), s(sT1), S2O))
    base(sB1, sWS, s(sT1))
    a("    v_lshlrev_b32 %s, 4, %s" % (v(vMLo), v(vL7)))
    a("    v_lshlrev_b32 %s, 4, %s" % (v(vT), v(vL3)))
    a("    v_lshl_or_b32 %s, %s, 11, %s" % (v(vOo), v(vL7), v(vT)))
    for i in (1, 2, 3):
        a("    v_add_u32 %s, 0x%x, %s" % (v(vOo + i), 16384 * i, v(vOo)))

    def mlloads():
        for i in range(4):
            a("    global_load_dwordx3 %s, %s, %s offset:%d sc1" % (v(vML + 4 * i, 3), v(vMLo), s(sB0, 2), 128 * i))

    def oloads():
        for i in range(4):
            a("    global_load_dwordx4 %s, %s, %s sc1" % (v(vO + 4 * i, 4), v(vOo + i), s(sB1, 2)))
    mlloads()
    oloads()
    a("    s_lshl_b32 %s, %s, 12" % (s(sT0), s(sH)))
    a("    s_lshl_b32 %s, %s, 8" % (s(sT1), s(sJ)))
    a("    s_add_u32 %s, %s, %s" % (s(sT0), s(sT0), s(sT1)))
    a("    s_add_u32 %s, %s, 0x%x" % (s(sT0), s(sT0), S3))
    base(sB2, sWS, s(sT0))

    def mlcheck():
        tagcheck([vML + 4 * i + 2 for i in range(4)], sT32, vT)
        a("    v_cmp_ne_u32 vcc, 0, %s" % v(vT))
    poll(mlloads, mlcheck, 4)
    a("    v_max3_f32 %s, %s, %s, %s" % (v(vT), v(vML), v(vML + 4), v(vML + 8)))
    a("    v_max_f32 %s, %s, %s" % (v(vT), v(vT), v(vML + 12)))
    for pat in ("quad_perm:[1,0,3,2]", "quad_perm:[2,3,0,1]", "row_half_mirror"):
        a("    v_max_f32_dpp %s, %s, %s %s %s" % (v(vT), v(vT), v(vT), pat, DPP))
    for i in range(4):
        a("    v_sub_f32 %s, %s, %s" % (v(vML + 4 * i), v(vML + 4 * i), v(vT)))
    for i in range(4):
        a("    v_mul_f32 %s, 0x3fb8aa3b, %s" % (v(vML + 4 * i), v(vML + 4 * i)))
    for i in range(4):
        a("    v_exp_f32 %s, %s" % (v(vML + 4 * i), v(vML + 4 * i)))
    a("    v_mul_f32 %s, %s, %s" % (v(vT), v(vML), v(vML + 1)))
    for i in range(1, 4):
        a("    v_fmac_f32 %s, %s, %s" % (v(vT), v(vML + 4 * i), v(vML + 4 * i + 1)))
    for pat in ("quad_perm:[1,0,3,2]", "quad_perm:[2,3,0,1]", "row_half_mirror"):
        a("    v_add_f32_dpp %s, %s, %s %s %s" % (v(vT), v(vT), v(vT), pat, DPP))
    a("    v_rcp_f32 %s, %s" % (v(vT), v(vT)))
    for i in range(4):
        a("    v_mul_f32 %s, %s, %s" % (v(vML + 4 * i), v(vML + 4 * i), v(vT)))

    def ocheck():
        tagcheck([vO + i for i in range(16)], sTag10, vT)
        a("    v_and_b32 %s, 0x3ff, %s" % (v(vT), v(vT)))
        a("    v_cmp_ne_u32 vcc, 0, %s" % v(vT))
    poll(oloads, ocheck, 0)
    stamp(7)
    for i in range(16):
        a("    v_and_b32 %s, %s, %s" % (v(vO + i), s(sM10), v(vO + i)))
    for r in range(4):
        a("    v_mul_f32 %s, %s, %s" % (v(vT + r), v(vO + r), v(vML)))
    for i in range(1, 4):
        for r in range(4):
            a("    v_fmac_f32 %s, %s, %s" % (v(vT + r), v(vO + 4 * i + r), v(vML + 4 * i)))
    for pat in ("quad_perm:[1,0,3,2]", "quad_perm:[2,3,0,1]", "row_half_mirror"):
        for r in range(4):
            a("    v_add_f32_dpp %s, %s, %s %s %s" % (v(vT + r), v(vT + r), v(vT + r), pat, DPP))
    for r in range(4):
        a("    v_cvt_pk_bf16_f32 %s, %s, %s" % (v(vT + r), v(vT + r), v(vT + r)))
    for i in range(4):
        for r in range(4):
            a("    v_and_b32 %s, %s, %s" % (v(vA + 4 * i + r), v(vT + i), v(vM + r)))
        if i:
            a("    v_mfma_f32_16x16x32_bf16 %s, %s, %s, %s" %
              (v(vD, 4), v(vA + 4 * i - 4, 4), v(vW + 4 * i - 4, 4), "0" if i == 1 else v(vD, 4)))
    a("    v_mfma_f32_16x16x32_bf16 %s, %s, %s, %s" % (v(vD, 4), v(vA + 12, 4), v(vW + 12, 4), v(vD, 4)))
    red_publish(vTag10, sM10, 0, sB2, "L_FIN")
    stamp(8)
    a("    s_and_b32 %s, %s, 3" % (s(sT0), s(sJ)))
    a("    s_cmp_lg_u32 %s, 0" % s(sT0))
    a("    s_cbranch_scc1 L_FIN")
    V.release(mrole)
    vHs = V(4, 4)
    vY = V(28, 4)
    vXc, vHo, vYo, vCo = V(), V(), V(), V()
    a("    s_lshl_b32 %s, %s, 2" % (s(sT0), s(sH)))
    a("    s_lshr_b32 %s, %s, 2" % (s(sT1), s(sJ)))
    a("    s_add_u32 %s, %s, %s" % (s(sT0), s(sT0), s(sT1)))
    a("    s_lshl_b32 %s, %s, 5" % (s(sT1), s(sT0)))
    base(sB0, sX, s(sT1))
    base(sB3, sOUT, s(sT1))
    a("    s_lshl_b32 %s, %s, 6" % (s(sT1), s(sT0)))
    a("    s_add_u32 %s, %s, 0x%x" % (s(sT1), s(sT1), S3))
    base(sB1, sWS, s(sT1))
    a("    s_mul_i32 %s, %s, 7168" % (s(sT1), s(sT0)))
    a("    s_add_u32 %s, %s, 0x%x" % (s(sT1), s(sT1), S4 + 3072))
    base(sB2, sWS, s(sT1))
    a("    v_and_b32 %s, 3, v0" % v(vT))
    a("    v_lshl_add_u32 %s, %s, 2, %s" % (v(vCo), v(vT), v(vG)))
    a("    v_lshlrev_b32 %s, 1, %s" % (v(vCo), v(vCo)))
    a("    v_lshlrev_b32 %s, 4, %s" % (v(vT), v(vT)))
    a("    v_lshl_or_b32 %s, %s, 7, %s" % (v(vHo), v(vC4), v(vT)))
    a("    v_lshlrev_b32 %s, 4, v0" % v(vYo))
    a("    global_load_ushort %s, %s, %s" % (v(vXc), v(vCo), s(sB0, 2)))

    def hload():
        a("    global_load_dwordx4 %s, %s, %s sc1" % (v(vHs, 4), v(vHo), s(sB1, 2)))

    def hcheck():
        tagcheck([vHs + i for i in range(4)], sTag10, vT)
        a("    v_and_b32 %s, 0x3ff, %s" % (v(vT), v(vT)))
        a("    v_cmp_ne_u32 vcc, 0, %s" % v(vT))
    hload()
    poll(hload, hcheck, 0)

    def yloads():
        for n in range(7):
            a("    global_load_dwordx4 %s, %s, %s offset:%d sc1" % (v(vY + 4 * n, 4), v(vYo), s(sB2, 2), 1024 * n - 3072))
    yloads()
    for i in range(4):
        a("    v_and_b32 %s, %s, %s" % (v(vHs + i), s(sM10), v(vHs + i)))
    treduce4(vHs)
    for sh in (4, 8):
        a("    v_add_f32_dpp %s, %s, %s row_ror:%d %s" % (v(vHs), v(vHs), v(vHs), sh, DPP))
    bf16r(vHs, vHs)
    a("    v_lshlrev_b32 %s, 16, %s" % (v(vXc), v(vXc)))
    a("    v_add_f32 %s, %s, %s" % (v(vHs), v(vHs), v(vXc)))
    bf16r(vHs, vHs)

    def ycheck():
        tagcheck([vY + i for i in range(28)], sTag10, vT)
        a("    v_and_b32 %s, 0x3ff, %s" % (v(vT), v(vT)))
        a("    v_cmp_ne_u32 vcc, 0, %s" % v(vT))
    poll(yloads, ycheck, 0)
    stamp(9)
    for i in range(28):
        a("    v_and_b32 %s, %s, %s" % (v(vY + i), s(sM10), v(vY + i)))
    for (d, x) in ((0, 4), (8, 12), (16, 20), (0, 8), (16, 24), (0, 16)):
        a("    v_pk_add_f32 %s, %s, %s" % (v(vY + d, 2), v(vY + d, 2), v(vY + x, 2)))
        a("    v_pk_add_f32 %s, %s, %s" % (v(vY + d + 2, 2), v(vY + d + 2, 2), v(vY + x + 2, 2)))
    treduce4(vY)
    for sh in (4, 8):
        a("    v_add_f32_dpp %s, %s, %s row_ror:%d %s" % (v(vY), v(vY), v(vY), sh, DPP))
    bf16r(vY, vY)
    a("    v_add_f32 %s, %s, %s" % (v(vY), v(vY), v(vHs)))
    a("    v_cvt_pk_bf16_f32 %s, %s, %s" % (v(vY), v(vY), v(vY)))
    setexec(0x000F000F, 0x000F000F)
    a("    global_store_short %s, %s, %s" % (v(vCo), v(vY), s(sB3, 2)))
    a("    s_cmp_lg_u32 s2, 0")
    a("    s_cbranch_scc1 L_FIN")
    setexec(1, 0)
    a("    v_mov_b32 %s, 0" % v(vT))
    a("    v_mov_b32 %s, %s" % (v(vT + 1), s(sT32)))
    a("    global_store_dword %s, %s, %s sc1" % (v(vT), v(vT + 1), s(sWS, 2)))
    a("L_FIN:")
    finish()
    V.release(mrole)

    a("L_ROLE_FFN:")
    a("    s_and_b32 %s, %s, 3" % (s(sU), s(sJ)))
    a("    s_min_u32 %s, %s, 4" % (s(sT0), s(sH)))
    a("    s_mul_i32 %s, %s, 3" % (s(sT1), s(sH)))
    a("    s_add_u32 %s, %s, %s" % (s(sT0), s(sT0), s(sT1)))
    a("    s_lshl_b32 %s, %s, 2" % (s(sT0), s(sT0)))
    a("    s_add_u32 %s, %s, %s" % (s(sT0), s(sT0), s(sJ)))
    a("    s_sub_u32 %s, %s, 16" % (s(sFI), s(sT0)))
    vGo = V()
    a("    v_lshrrev_b32 %s, 1, v0" % v(vT))
    a("    v_mul_u32_u24 %s, 3584, %s" % (v(vT), v(vT)))
    a("    v_and_b32 %s, 1, v0" % v(vT + 1))
    a("    v_lshl_add_u32 %s, %s, 4, %s" % (v(vGo), v(vT + 1), v(vT)))

    def quarter(n):
        a("    s_add_u32 %s, %s, %d" % (s(sT0), s(sU), n))
        a("    s_and_b32 %s, %s, 1" % (s(sT1), s(sT0)))
        a("    s_bfe_u32 %s, %s, 0x10001" % (s(sT0), s(sT0)))
        a("    s_lshl_b32 %s, %s, 1" % (s(sT2), s(sW)))
        a("    s_add_u32 %s, %s, %s" % (s(sT2), s(sT2), s(sT1)))
        a("    s_lshl_b32 %s, %s, 4" % (s(sT3), s(sT0)))
        a("    s_add_u32 %s, %s, %s" % (s(sT3), s(sT3), s(sT2)))
        a("    s_lshl_b32 %s, %s, 10" % (s(sT3), s(sT3)))
        a("    s_add_u32 %s, %s, 0x%x" % (s(sT3), s(sT3), LG))
        a("    s_mov_b32 m0, %s" % s(sT3))
        a("    s_mul_i32 %s, %s, %d" % (s(sT2), s(sT2), 32 * 3584))
        a("    s_lshl_b32 %s, %s, 5" % (s(sT1), s(sFI)))
        a("    s_add_u32 %s, %s, %s" % (s(sT2), s(sT2), s(sT1)))
        a("    s_cmp_eq_u32 %s, 0" % s(sT0))
        a("    s_cselect_b64 %s, %s, %s" % (s(sB4, 2), s(sWG, 2), s(sWU, 2)))
        base(sB4, sB4, s(sT2))
        a("    global_load_lds_dwordx4 %s, %s nt" % (v(vGo), s(sB4, 2)))
    NQ0 = opt.get("nq0", 1)
    for n in range(NQ0):
        quarter(n)
    attention(NQ0)
    for n in range(NQ0, 4):
        quarter(n)
    a("    s_lshl_b32 %s, %s, 14" % (s(sT0), s(sFI)))
    a("    s_lshl_b32 %s, %s, 7" % (s(sT1), s(sW)))
    a("    s_add_u32 %s, %s, %s" % (s(sT0), s(sT0), s(sT1)))
    base(sB4, sWD, s(sT0))
    a("    s_lshl_b32 %s, %s, 11" % (s(sT1), s(sW)))
    a("    s_add_u32 %s, %s, 0x%x" % (s(sT2), s(sT1), LD))
    a("    s_mov_b32 m0, %s" % s(sT2))
    a("    v_lshlrev_b32 %s, 4, %s" % (v(vT), v(vL7)))
    a("    v_lshl_or_b32 %s, %s, 10, %s" % (v(vT), v(vL3), v(vT)))
    a("    v_add_u32 %s, 0x1c00, %s" % (v(vT + 1), v(vT)))
    a("    global_load_lds_dwordx4 %s, %s nt" % (v(vT), s(sB4, 2)))
    a("    global_load_lds_dwordx4 %s, %s offset:1024 nt" % (v(vT + 1), s(sB4, 2)))
    vXc = V()
    vHs = V(16, 4)
    vHo = V(4)
    vWg = V(16, 4)
    vWd = V(8, 4)
    vHb = V(8, 4)
    vDu = V(4, 4)
    vCs = V(4, 4)
    vMt = V(4)
    vB = V(8, 4)
    vAhw, vAhr, vAgw, vAgr, vAsw, vAsr, vAy = [V() for _ in range(7)]
    a("    s_lshl_b32 %s, %s, 7" % (s(sT0), s(sW)))
    base(sB0, sX, s(sT0))
    a("    v_lshl_add_u32 %s, %s, 2, %s" % (v(vT + 2), v(vJ), v(vG)))
    a("    v_lshlrev_b32 %s, 1, %s" % (v(vT + 2), v(vT + 2)))
    a("    global_load_ushort %s, %s, %s" % (v(vXc), v(vT + 2), s(sB0, 2)))
    a("    s_add_u32 %s, %s, 0x%x" % (s(sT2), s(sT0), LH))
    a("    v_add_u32 %s, %s, %s" % (v(vAhw), s(sT2), v(vT + 2)))
    a("    v_lshl_add_u32 %s, %s, 4, %s" % (v(vAhr), v(vG), s(sT2)))
    a("    s_add_u32 %s, %s, 0x%x" % (s(sT2), s(sT0), LGP))
    a("    v_lshl_add_u32 %s, %s, 4, %s" % (v(vAgw), v(vG), s(sT2)))
    a("    v_lshrrev_b32 %s, 3, %s" % (v(vT + 2), v(vJ)))
    a("    v_lshl_add_u32 %s, %s, 1, %s" % (v(vT + 2), v(vL7), v(vT + 2)))
    a("    v_lshlrev_b32 %s, 6, %s" % (v(vT + 2), v(vT + 2)))
    a("    v_lshl_add_u32 %s, %s, 4, %s" % (v(vT + 2), v(vG), v(vT + 2)))
    a("    v_add_u32 %s, 0x%x, %s" % (v(vAgr), LGP, v(vT + 2)))
    a("    s_lshl_b32 %s, %s, 3" % (s(sT2), s(sW)))
    a("    s_add_u32 %s, %s, 0x%x" % (s(sT2), s(sT2), LST))
    a("    v_mov_b32 %s, %s" % (v(vAsw), s(sT2)))
    a("    v_lshlrev_b32 %s, 3, %s" % (v(vT + 2), v(vL7)))
    a("    v_add_u32 %s, 0x%x, %s" % (v(vAsr), LST, v(vT + 2)))
    for t in range(4):
        a("    v_cmp_eq_u32 vcc, %d, %s" % (t, v(vJ)))
        a("    v_cndmask_b32 %s, 0, -1, vcc" % v(vMt + t))
    a("    s_lshl_b32 %s, %s, 8" % (s(sT0), s(sW)))
    a("    s_add_u32 %s, %s, 0x%x" % (s(sT0), s(sT0), S3))
    base(sB1, sWS, s(sT0))
    a("    v_lshlrev_b32 %s, 4, %s" % (v(vT + 2), v(vJ)))
    a("    v_lshl_or_b32 %s, %s, 11, %s" % (v(vHo), v(vG), v(vT + 2)))
    for i in (1, 2, 3):
        a("    v_add_u32 %s, 0x%x, %s" % (v(vHo + i), 8192 * i, v(vHo)))
    a("    s_mul_i32 %s, %s, %d" % (s(sT0), s(sW), 4 * 7168))
    a("    s_lshl_b32 %s, %s, 6" % (s(sT2), s(sFI)))
    a("    s_add_u32 %s, %s, %s" % (s(sT0), s(sT0), s(sT2)))
    a("    s_add_u32 %s, %s, 0x%x" % (s(sT0), s(sT0), S4))
    base(sB2, sWS, s(sT0))
    a("    v_mul_u32_u24 %s, 7168, %s" % (v(vT + 2), v(vJ)))
    a("    v_lshl_add_u32 %s, %s, 4, %s" % (v(vAy), v(vG), v(vT + 2)))
    a("    v_lshrrev_b32 %s, 2, %s" % (v(vT + 2), v(vJ)))
    a("    v_and_b32 %s, 3, v0" % v(vT + 3))
    a("    v_lshl_add_u32 %s, %s, 3, %s" % (v(vT + 4), v(vG), v(vT + 2)))
    a("    v_lshlrev_b32 %s, 5, %s" % (v(vT + 4), v(vT + 4)))
    a("    v_lshl_add_u32 %s, %s, 3, %s" % (v(vT + 4), v(vT + 3), v(vT + 4)))
    a("    s_add_u32 %s, %s, 0x%x" % (s(sT2), s(sT1), LG))
    a("    v_add_u32 %s, %s, %s" % (v(vT + 4), s(sT2), v(vT + 4)))
    a("    v_lshl_add_u32 %s, %s, 2, %s" % (v(vT + 5), v(vG), v(vT + 2)))
    a("    v_lshlrev_b32 %s, 7, %s" % (v(vT + 5), v(vT + 5)))
    a("    v_lshl_add_u32 %s, %s, 3, %s" % (v(vT + 5), v(vT + 3), v(vT + 5)))
    a("    s_add_u32 %s, %s, 0x%x" % (s(sT2), s(sT1), LD))
    a("    v_add_u32 %s, %s, %s" % (v(vT + 5), s(sT2), v(vT + 5)))
    for i in range(4):
        a("    v_mov_b32 %s, 0x3f803f80" % v(vHb + i))
    a("    s_waitcnt vmcnt(0)")
    stamp(7)

    def hloadsf():
        for i in range(4):
            a("    global_load_dwordx4 %s, %s, %s sc1" % (v(vHs + 4 * i, 4), v(vHo + i), s(sB1, 2)))
    hloadsf()
    for mat in range(2):
        for st in range(2):
            for hh in range(2):
                a("    ds_read_b64_tr_b16 %s, %s offset:%d" %
                  (v(vWg + 8 * mat + 4 * st + 2 * hh, 2), v(vT + 4), 16384 * mat + 1024 * st + 128 * hh))
    for t in range(4):
        a("    ds_read_b64_tr_b16 %s, %s offset:%d" % (v(vWd + 2 * t, 2), v(vT + 5), 32 * t))
    a("    v_lshlrev_b32 %s, 16, %s" % (v(vXc), v(vXc)))
    a("    s_waitcnt lgkmcnt(0)")
    def gate_up(b0, b1):
        a("    v_mfma_f32_16x16x32_bf16 %s, %s, %s, 0" % (v(vD, 4), v(vWg, 4), v(b0, 4)))
        a("    v_mfma_f32_16x16x32_bf16 %s, %s, %s, 0" % (v(vDu, 4), v(vWg + 8, 4), v(b0, 4)))
        a("    v_mfma_f32_16x16x32_bf16 %s, %s, %s, %s" % (v(vD, 4), v(vWg + 4, 4), v(b1, 4), v(vD, 4)))
        a("    v_mfma_f32_16x16x32_bf16 %s, %s, %s, %s" % (v(vDu, 4), v(vWg + 12, 4), v(b1, 4), v(vDu, 4)))
    gate_up(vHb, vHb)
    setexec(0x00010001, 0x00010001)
    a("    ds_write_b128 %s, %s offset:%d" % (v(vAgw), v(vD, 4), LCS - LGP))
    a("    ds_write_b128 %s, %s offset:%d" % (v(vAgw), v(vDu, 4), LCS - LGP + 64))
    setexec(0xFFFFFFFF, 0xFFFFFFFF)
    a("    s_waitcnt lgkmcnt(0)")
    a("    s_barrier")
    a("    ds_read_b128 %s, %s offset:%d" % (v(vCs, 4), v(vAgr), LCS - LGP))
    a("    s_waitcnt lgkmcnt(0)")
    for pat in ("quad_perm:[1,0,3,2]", "quad_perm:[2,3,0,1]", "row_half_mirror"):
        for r in range(4):
            a("    v_add_f32_dpp %s, %s, %s %s %s" % (v(vCs + r), v(vCs + r), v(vCs + r), pat, DPP))

    def hcheckf():
        tagcheck([vHs + i for i in range(16)], sTag10, vT)
        a("    v_and_b32 %s, 0x3ff, %s" % (v(vT), v(vT)))
        a("    v_cmp_ne_u32 vcc, 0, %s" % v(vT))
    poll(hloadsf, hcheckf, 0)
    stamp(8)
    for i in range(16):
        a("    v_and_b32 %s, %s, %s" % (v(vHs + i), s(sM10), v(vHs + i)))
    for (d, x) in ((0, 4), (8, 12), (0, 8)):
        a("    v_pk_add_f32 %s, %s, %s" % (v(vHs + d, 2), v(vHs + d, 2), v(vHs + x, 2)))
        a("    v_pk_add_f32 %s, %s, %s" % (v(vHs + d + 2, 2), v(vHs + d + 2, 2), v(vHs + x + 2, 2)))
    treduce4(vHs)
    bf16r(vHs, vHs)
    a("    v_add_f32 %s, %s, %s" % (v(vHs), v(vHs), v(vXc)))
    a("    v_cvt_pk_bf16_f32 %s, %s, %s" % (v(vHs), v(vHs), v(vHs)))
    a("    ds_write_b16 %s, %s" % (v(vAhw), v(vHs)))
    a("    v_and_b32 %s, 0xffff0000, %s" % (v(vT), v(vHs)))
    a("    v_mul_f32 %s, %s, %s" % (v(vT + 1), v(vT), v(vT)))
    a("    s_waitcnt lgkmcnt(0)")
    a("    ds_read_b128 %s, %s" % (v(vHb, 4), v(vAhr)))
    a("    ds_read_b128 %s, %s offset:64" % (v(vHb + 4, 4), v(vAhr)))
    for sh in (1, 2, 4, 8):
        for r in range(2):
            a("    v_add_f32_dpp %s, %s, %s row_ror:%d %s" % (v(vT + r), v(vT + r), v(vT + r), sh, DPP))
    for pat in ("row_bcast:15 row_mask:0xa", "row_bcast:31 row_mask:0xc"):
        for r in range(2):
            a("    v_add_f32_dpp %s, %s, %s %s bank_mask:0xf" % (v(vT + r), v(vT + r), v(vT + r), pat))
    a("    s_waitcnt lgkmcnt(0)")
    gate_up(vHb, vHb + 4)
    setexec(0, 0x80000000)
    a("    ds_write_b64 %s, %s" % (v(vAsw), v(vT, 2)))
    setexec(0x00010001, 0x00010001)
    a("    ds_write_b128 %s, %s" % (v(vAgw), v(vD, 4)))
    a("    ds_write_b128 %s, %s offset:64" % (v(vAgw), v(vDu, 4)))
    setexec(0xFFFFFFFF, 0xFFFFFFFF)
    a("    s_waitcnt lgkmcnt(0)")
    a("    s_barrier")
    a("    ds_read_b64 %s, %s" % (v(vT, 2), v(vAsr)))
    a("    ds_read_b128 %s, %s" % (v(vD, 4), v(vAgr)))
    a("    s_waitcnt lgkmcnt(0)")
    for pat in ("quad_perm:[1,0,3,2]", "quad_perm:[2,3,0,1]", "row_half_mirror"):
        for r in (vT, vT + 1, vD, vD + 1, vD + 2, vD + 3):
            a("    v_add_f32_dpp %s, %s, %s %s %s" % (v(r), v(r), v(r), pat, DPP))
    a("    v_mul_f32 %s, 0x3b000000, %s" % (v(vT), v(vT)))
    a("    v_mul_f32 %s, 0x3b000000, %s" % (v(vT + 1), v(vT + 1)))
    a("    v_fma_f32 %s, -%s, %s, %s" % (v(vT + 1), v(vT), v(vT), v(vT + 1)))
    a("    v_max_f32 %s, 0, %s" % (v(vT + 1), v(vT + 1)))
    a("    v_cvt_pk_bf16_f32 %s, %s, %s" % (v(vT), v(vT + 1), v(vT)))
    a("    v_lshlrev_b32 %s, 16, %s" % (v(vT + 1), v(vT)))
    a("    v_and_b32 %s, 0xffff0000, %s" % (v(vT), v(vT)))
    a("    v_add_f32 %s, 0x3727c5ac, %s" % (v(vT + 1), v(vT + 1)))
    bf16r(vT + 1, vT + 1)
    a("    v_sqrt_f32 %s, %s" % (v(vT + 1), v(vT + 1)))
    for r in range(4):
        a("    v_fma_f32 %s, -%s, %s, %s" % (v(vD + r), v(vT), v(vCs + r), v(vD + r)))
    bf16r(vT + 1, vT + 1)
    a("    v_rcp_f32 %s, %s" % (v(vT + 1), v(vT + 1)))
    for r in range(4):
        a("    v_mul_f32 %s, %s, %s" % (v(vD + r), v(vD + r), v(vT + 1)))
    a("    v_cvt_pk_bf16_f32 %s, %s, %s" % (v(vT + 2), v(vD), v(vD + 1)))
    a("    v_cvt_pk_bf16_f32 %s, %s, %s" % (v(vT + 3), v(vD + 2), v(vD + 3)))
    for i in range(2):
        a("    v_lshlrev_b32 %s, 16, %s" % (v(vD + 2 * i), v(vT + 2 + i)))
        a("    v_and_b32 %s, 0xffff0000, %s" % (v(vD + 2 * i + 1), v(vT + 2 + i)))
    for r in range(4):
        a("    v_mul_f32_dpp %s, %s, %s row_ror:8 %s" % (v(vT + 4 + r), v(vD + r), v(vD + r), DPP))
    a("    v_cvt_pk_bf16_f32 %s, %s, %s" % (v(vT + 2), v(vT + 4), v(vT + 5)))
    a("    v_cvt_pk_bf16_f32 %s, %s, %s" % (v(vT + 3), v(vT + 6), v(vT + 7)))
    for t in range(4):
        a("    v_and_b32 %s, %s, %s" % (v(vB + 2 * t), v(vT + 2), v(vMt + t)))
        a("    v_and_b32 %s, %s, %s" % (v(vB + 2 * t + 1), v(vT + 3), v(vMt + t)))
    for t in range(4):
        a("    v_mfma_f32_16x16x16_bf16 %s, %s, %s, %s" %
          (v(vDu, 4), v(vWd + 2 * t, 2), v(vB + 2 * t, 2), "0" if t == 0 else v(vDu, 4)))
    setexec(0x000F000F, 0x000F000F)
    for i in range(4):
        a("    v_and_or_b32 %s, %s, %s, %s" % (v(vDu + i), v(vDu + i), s(sM10), v(vTag10)))
    a("    global_store_dwordx4 %s, %s, %s sc1" % (v(vAy), v(vDu, 4), s(sB2, 2)))
    stamp(9)
    finish()

    if prof:
        a("L_PROF:")
        a("    s_memrealtime %s" % s(sPROF + 20, 2))
        a("    s_mov_b64 exec, 1")
        a("    s_lshl_b32 %s, s2, 3" % s(sT0))
        a("    s_add_u32 %s, %s, %s" % (s(sT0), s(sT0), s(sW)))
        a("    s_lshl_b32 %s, %s, 7" % (s(sT0), s(sT0)))
        a("    s_add_u32 %s, %s, 0x%x" % (s(sT0), s(sT0), PROFB))
        base(sB0, sWS, s(sT0))
        a("    v_mov_b32 v1, 0")
        a("    s_waitcnt lgkmcnt(0)")
        for i in range(11):
            a("    v_mov_b32 v2, %s" % s(sPROF + 2 * i))
            a("    global_store_dword v1, v2, %s offset:%d" % (s(sB0, 2), 4 * i))
        a("    s_endpgm")
    a("L_END:")
    a("    s_endpgm")
    a("L_CODE_END:")
    nv = (V.hi + 7) // 8 * 8
    a('.section .rodata,"a"')
    a(".p2align 6")
    a(".amdhsa_kernel %s_kernel" % NAME)
    a("  .amdhsa_next_free_vgpr %d" % nv)
    a("  .amdhsa_next_free_sgpr 96")
    a("  .amdhsa_accum_offset %d" % nv)
    a("  .amdhsa_group_segment_fixed_size 0")
    a("  .amdhsa_kernarg_size 96")
    a("  .amdhsa_user_sgpr_count 2")
    a("  .amdhsa_user_sgpr_kernarg_segment_ptr 1")
    a("  .amdhsa_system_sgpr_workgroup_id_x 1")
    a("  .amdhsa_float_denorm_mode_32 3")
    a(".end_amdhsa_kernel")
    return out + a.finalize()


if __name__ == "__main__":
    import argparse
    ap = argparse.ArgumentParser()
    ap.add_argument("-o", default=None)
    ap.add_argument("--prof", action="store_true")
    ap.add_argument("--opt", default="")
    args = ap.parse_args()
    opt = {}
    for kv in args.opt.split(","):
        if kv:
            k, x = kv.split("=")
            opt[k] = int(x)
    txt = gen(args.prof, opt)
    path = args.o or os.path.join(os.path.dirname(os.path.abspath(__file__)), "..", "cdna_kernels", NAME + ".s")
    open(path, "w").write(txt)
    print("wrote", path, len(txt.split("\n")), "lines")
```

```python
import sys
import os
sys.path.insert(0, os.path.dirname(os.path.abspath(__file__)))
from asmlib import Asm

NAME = "sequential_preLN__sliding_block_cached__glu_gated_bilinear__decode"

EPOCH = 0
S1 = 0x1000
S2ML = 0x11000
S3 = 0x15000
S4 = 0x1D000
S2O = 0x60000
PROFB = 0x100000

LK = 0
LV = 32768
LG = 65536
LD = 98304
LRED = 114688
LQ = 119040
LMX = 120128
LLS = 120256
LP = 120768
LH = 121856
LGP = 122880
LCS = 123904
LST = 124928
LDS_BYTES = 125056

DPP = "row_mask:0xf bank_mask:0xf"
SPIN_LIMIT = 1 << 18


class Regs:
    def __init__(self, start):
        self.n = start
        self.hi = start

    def __call__(self, cnt=1, align=None):
        if align is None:
            align = 2 if cnt > 1 else 1
        self.n = (self.n + align - 1) // align * align
        b = self.n
        self.n += cnt
        self.hi = max(self.hi, self.n)
        return b

    def mark(self):
        return self.n

    def release(self, m):
        self.n = m


def v(b, n=1):
    return "v%d" % b if n == 1 else "v[%d:%d]" % (b, b + n - 1)


def s(b, n=1):
    return "s%d" % b if n == 1 else "s[%d:%d]" % (b, b + n - 1)


def gen(prof=False, opt=None):
    opt = dict(opt or {})
    a = Asm()
    V = Regs(1)
    sX, sK, sVp, sWQ, sWO, sBX, sWG, sWU = 4, 6, 8, 10, 12, 14, 16, 18
    sWD, sOUT, sDBG, sWS = 20, 22, 24, 26
    sE, sW, sH, sJ = 28, 29, 30, 31
    sT0, sT1, sT2, sT3 = 32, 33, 34, 35
    sB0, sB1, sB2, sB3 = 36, 38, 40, 42
    sM8, sM10, sTag8, sTag10, sT32 = 44, 45, 46, 47, 48
    sSpin, sTmp, sDummy = 49, 50, 51
    sPC = 52
    sB4 = 54
    sU, sFI = 56, 57
    sMean, sVar = 58, 59
    sPROF = 60
    uid = [0]

    def stamp(i):
        if prof:
            a("    s_memrealtime %s" % s(sPROF + 2 * i, 2))

    def setexec(lo, hi):
        if lo == hi == 0xFFFFFFFF:
            a("    s_mov_b64 exec, -1")
        else:
            a("    s_mov_b32 exec_lo, 0x%x" % lo)
            a("    s_mov_b32 exec_hi, 0x%x" % hi)

    def base(dst, ptr, off_sreg):
        a("    s_add_u32 %s, %s, %s" % (s(dst), s(ptr), off_sreg))
        a("    s_addc_u32 %s, %s, 0" % (s(dst + 1), s(ptr + 1)))

    def finish():
        if prof:
            a("    s_branch L_PROF")
        else:
            a("    s_endpgm")

    def bf16r(dst, src):
        a("    v_cvt_pk_bf16_f32 %s, %s, %s" % (v(dst), v(src), v(src)))
        a("    v_and_b32 %s, 0xffff0000, %s" % (v(dst), v(dst)))

    def wavesum_to_sgpr(r, sd):
        for sh in (1, 2, 4, 8):
            a("    v_add_f32_dpp %s, %s, %s row_ror:%d %s" % (v(r), v(r), v(r), sh, DPP))
        a("    v_add_f32_dpp %s, %s, %s row_bcast:15 row_mask:0xa bank_mask:0xf" % (v(r), v(r), v(r)))
        a("    v_add_f32_dpp %s, %s, %s row_bcast:31 row_mask:0xc bank_mask:0xf" % (v(r), v(r), v(r)))
        a("    v_readlane_b32 %s, %s, 63" % (s(sd), v(r)))

    def tagcheck(regs, tagreg, tmp, first=True):
        for i, r in enumerate(regs):
            if first and i == 0:
                a("    v_xor_b32 %s, %s, %s" % (v(tmp), s(tagreg), v(r)))
            else:
                a("    v_bitop3_b32 %s, %s, %s, %s bitop3:0xf6" % (v(tmp), v(tmp), v(r), s(tagreg)))

    def poll(loads, check, firstwait, pre=None):
        uid[0] += 1
        u = uid[0]
        a("    s_waitcnt vmcnt(%d)" % firstwait)
        if pre:
            pre()
        check()
        a("    s_cbranch_vccz L_OK%d" % u)
        a("    s_mov_b32 %s, 0" % s(sSpin))
        a("L_RETRY%d:" % u)
        a("    s_mov_b64 exec, vcc")
        loads()
        a("    s_add_u32 %s, %s, 1" % (s(sSpin), s(sSpin)))
        a("    s_cmp_ge_u32 %s, 0x%x" % (s(sSpin), SPIN_LIMIT))
        a("    s_cbranch_scc1 L_GIVEUP%d" % u)
        a("    s_waitcnt vmcnt(0)")
        check()
        a("    s_cbranch_vccnz L_RETRY%d" % u)
        a("L_GIVEUP%d:" % u)
        a("    s_waitcnt vmcnt(0)")
        a("    s_mov_b64 exec, -1")
        a("L_OK%d:" % u)

    def treduce4(r):
        a("    v_permlane32_swap_b32 %s, %s" % (v(r), v(r + 2)))
        a("    v_permlane32_swap_b32 %s, %s" % (v(r + 1), v(r + 3)))
        a("    v_add_f32 %s, %s, %s" % (v(r), v(r), v(r + 2)))
        a("    v_add_f32 %s, %s, %s" % (v(r + 1), v(r + 1), v(r + 3)))
        a("    v_permlane16_swap_b32 %s, %s" % (v(r), v(r + 1)))
        a("    v_add_f32 %s, %s, %s" % (v(r), v(r), v(r + 1)))

    hdr = open(os.path.join(os.path.dirname(os.path.abspath(__file__)), "..", "cdna_kernels", NAME + ".s.ref")).read()
    head = [l for l in hdr.split("\n") if l.startswith("; Kernarg") or l.startswith(";   offset")]
    out = "\n".join(head) + "\n"
    out += "; One persistent launch: 256 workgroups (one per CU) x 8 waves.\n"
    out += "; @launch grid=(256,1,1) block=(512,1,1) lds=%d\n" % LDS_BYTES
    a('.amdgcn_target "amdgcn-amd-amdhsa--gfx950"')
    a(".text")
    a(".globl %s_kernel" % NAME)
    a(".p2align 8")
    a(".type %s_kernel,@function" % NAME)
    a("%s_kernel:" % NAME)

    vL = 0
    vM = V(4, 4)
    vTag8, vTag10 = V(), V()
    vL3, vL7, vG, vJ = V(), V(), V(), V()
    vRedW, vRedR, vC4 = V(), V(), V()
    vD = V(4, 4)
    vT = V(8, 4)
    vV0, vV1 = V(), V()
    vW = V(16, 4)
    mk = V.mark()

    a("    s_cmp_ge_u32 s2, 0x100")
    a("    s_cbranch_scc1 L_END")
    a("    s_load_dwordx16 s[4:19], s[0:1], 0x0")
    a("    s_load_dwordx8 s[20:27], s[0:1], 0x40")
    if prof == 2:
        for i in range(1, 11):
            a("    s_mov_b32 %s, 0" % s(sPROF + 2 * i))
    stamp(0)
    vXo, vXSo, vWQ0, vWQ1 = V(), V(), V(), V()
    vKo = V(4)
    vXf = V(4, 4)
    vXs = V()
    a("    v_lshrrev_b32 %s, 6, v0" % v(vT))
    a("    v_and_b32 v0, 63, v0")
    a("    s_and_b32 %s, s2, 7" % s(sH))
    a("    v_readfirstlane_b32 %s, %s" % (s(sW), v(vT)))
    a("    s_lshr_b32 %s, s2, 3" % s(sJ))
    a("    v_lshlrev_b32 %s, 4, v0" % v(vXo))
    a("    v_lshrrev_b32 %s, 3, v0" % v(vL3))
    a("    v_and_b32 %s, 7, v0" % v(vL7))
    a("    v_lshrrev_b32 %s, 4, v0" % v(vG))
    a("    v_and_b32 %s, 15, v0" % v(vJ))
    a("    v_lshlrev_b32 %s, 2, %s" % (v(vXSo), v(vL3)))
    a("    v_lshlrev_b32 %s, 4, %s" % (v(vT), v(vL7)))
    a("    v_lshl_or_b32 %s, %s, 14, %s" % (v(vWQ0), v(vL3), v(vT)))
    a("    v_add_u32 %s, 0x2000, %s" % (v(vWQ1), v(vWQ0)))
    a("    v_xor_b32 %s, %s, %s" % (v(vT), v(vJ), v(vG)))
    a("    v_lshlrev_b32 %s, 4, %s" % (v(vT), v(vT)))
    a("    v_lshl_or_b32 %s, %s, 8, %s" % (v(vKo), v(vG), v(vT)))
    for i in (1, 2, 3):
        a("    v_xor_b32 %s, 0x%x, %s" % (v(vKo + i), 64 * i, v(vKo)))
    a("    s_lshr_b32 %s, %s, 3" % (s(sT0), s(sJ)))
    a("    s_lshl_b32 %s, %s, 7" % (s(sT0), s(sT0)))
    a("    s_lshl_b32 %s, %s, 4" % (s(sT1), s(sW)))
    a("    s_add_u32 %s, %s, %s" % (s(sT0), s(sT0), s(sT1)))
    a("    s_lshl_b32 %s, %s, 7" % (s(sT2), s(sJ)))
    a("    s_add_u32 %s, %s, %s" % (s(sT2), s(sT2), s(sT1)))
    a("    s_add_u32 %s, %s, 0xf000" % (s(sT2), s(sT2)))
    a("    s_lshl_b32 %s, %s, 16" % (s(sT3), s(sH)))
    a("    s_add_u32 %s, %s, %s" % (s(sT2), s(sT2), s(sT3)))
    a("    s_lshl_b32 %s, %s, 8" % (s(sT2), s(sT2)))
    a("    s_lshl_b32 %s, %s, 13" % (s(sT1), s(sT0)))
    a("    s_lshl_b32 %s, %s, 10" % (s(sT3), s(sH)))
    a("    s_add_u32 %s, %s, %s" % (s(sT1), s(sT1), s(sT3)))
    a("    s_and_b32 %s, %s, 7" % (s(sT3), s(sJ)))
    a("    s_lshl_b32 %s, %s, 7" % (s(sT3), s(sT3)))
    a("    s_add_u32 %s, %s, %s" % (s(sT1), s(sT1), s(sT3)))
    a("    s_lshl_b32 %s, %s, 1" % (s(sT0), s(sT0)))
    a("    s_lshl_b32 %s, %s, 12" % (s(sTmp), s(sW)))
    a("    s_mov_b32 m0, %s" % s(sTmp))
    a("    s_waitcnt lgkmcnt(0)")
    a("    global_load_dwordx4 %s, %s, %s" % (v(vXf, 4), v(vXo), s(sX, 2)))
    base(sB0, sX, s(sT0))
    a("    global_load_dword %s, %s, %s" % (v(vXs), v(vXSo), s(sB0, 2)))
    base(sB1, sWQ, s(sT1))
    a("    global_load_dwordx4 %s, %s, %s nt" % (v(vW, 4), v(vWQ0), s(sB1, 2)))
    a("    global_load_dwordx4 %s, %s, %s nt" % (v(vW + 4, 4), v(vWQ1), s(sB1, 2)))
    base(sB2, sK, s(sT2))
    for i in range(4):
        a("    global_load_lds_dwordx4 %s, %s offset:%d nt" % (v(vKo + i), s(sB2, 2), 1024 * i))
    a("    s_load_dword %s, %s, 0x%x" % (s(sE), s(sWS, 2), EPOCH))
    a("    s_getpc_b64 %s" % s(sPC, 2))
    a("L_PC:")
    a("    s_lshl_b32 %s, %s, 3" % (s(sT0), s(sJ)))
    a("    s_add_u32 %s, %s, %s" % (s(sT0), s(sT0), s(sW)))
    a("    s_min_u32 %s, %s, (L_CODE_END-L_PC-4)/128" % (s(sT0), s(sT0)))
    a("    s_lshl_b32 %s, %s, 7" % (s(sT0), s(sT0)))
    a("    s_load_dword %s, %s, %s" % (s(sDummy), s(sPC, 2), s(sT0)))
    base(sB3, sVp, s(sT2))
    a("    v_lshlrev_b32 %s, 1, %s" % (v(vT), v(vG)))
    a("    v_xor_b32 %s, %s, %s" % (v(vT), v(vJ), v(vT)))
    a("    v_lshlrev_b32 %s, 4, %s" % (v(vT), v(vT)))
    a("    v_lshl_or_b32 %s, %s, 8, %s" % (v(vV0), v(vG), v(vT)))
    a("    v_xor_b32 %s, 0x80, %s" % (v(vV1), v(vV0)))
    a("    s_add_u32 %s, %s, 0x%x" % (s(sTmp), s(sTmp), LV))
    a("    s_mov_b32 m0, %s" % s(sTmp))
    NV0 = opt.get("nv0", 1)
    NV1 = opt.get("nv1", 3)

    def vload(i):
        a("    global_load_lds_dwordx4 %s, %s offset:%d nt" % (v(vV1 if i & 1 else vV0), s(sB3, 2), 1024 * i))
    for i in range(NV0):
        vload(i)
    a("    v_and_b32 %s, 1, v0" % v(vT))
    a("    v_lshlrev_b32 %s, 4, %s" % (v(vT), v(vT)))
    a("    v_lshlrev_b32 %s, %s, %s" % (v(vT + 1), v(vT), v(vT + 2)) if False else
      "    v_mov_b32 %s, 0xffff" % v(vT + 1))
    a("    v_lshlrev_b32 %s, %s, %s" % (v(vT + 1), v(vT), v(vT + 1)))
    a("    v_lshrrev_b32 %s, 1, %s" % (v(vT), v(vL7)))
    for r in range(4):
        a("    v_cmp_eq_u32 vcc, %d, %s" % (r, v(vT)))
        a("    v_cndmask_b32 %s, 0, %s, vcc" % (v(vM + r), v(vT + 1)))
    a("    v_lshrrev_b32 %s, 5, v0" % v(vT))
    a("    s_lshl_b32 %s, %s, 1" % (s(sT0), s(sW)))
    a("    v_add_u32 %s, %s, %s" % (v(vT), s(sT0), v(vT)))
    a("    v_mul_u32_u24 %s, 272, %s" % (v(vT), v(vT)))
    a("    v_and_b32 %s, 1, %s" % (v(vT + 1), v(vG)))
    a("    v_lshl_or_b32 %s, %s, 1, %s" % (v(vT + 1), v(vL7), v(vT + 1)))
    a("    v_lshl_add_u32 %s, %s, 4, %s" % (v(vT), v(vT + 1), v(vT)))
    a("    v_add_u32 %s, 0x%x, %s" % (v(vRedW), LRED, v(vT)))
    a("    v_lshrrev_b32 %s, 2, v0" % v(vC4))
    a("    v_lshlrev_b32 %s, 4, %s" % (v(vC4), v(vC4)))
    a("    v_and_b32 %s, 3, v0" % v(vT))
    a("    v_mul_u32_u24 %s, 1088, %s" % (v(vT), v(vT)))
    a("    v_add_u32 %s, %s, %s" % (v(vT), v(vC4), v(vT)))
    a("    v_add_u32 %s, 0x%x, %s" % (v(vRedR), LRED, v(vT)))
    a("    s_mov_b32 %s, 0xffffff00" % s(sM8))
    a("    s_mov_b32 %s, 0xfffffc00" % s(sM10))

    vXu = V(8, 4)
    a("    s_waitcnt vmcnt(%d)" % (6 + NV0))
    stamp(1)
    for i in range(4):
        a("    v_lshlrev_b32 %s, 16, %s" % (v(vXu + 2 * i), v(vXf + i)))
        a("    v_and_b32 %s, 0xffff0000, %s" % (v(vXu + 2 * i + 1), v(vXf + i)))
    for i in range(4):
        a("    v_add_f32 %s, %s, %s" % (v(vT + i), v(vXu + 2 * i), v(vXu + 2 * i + 1)))
    a("    v_add_f32 %s, %s, %s" % (v(vT), v(vT), v(vT + 1)))
    a("    v_add_f32 %s, %s, %s" % (v(vT + 2), v(vT + 2), v(vT + 3)))
    a("    v_add_f32 %s, %s, %s" % (v(vT), v(vT), v(vT + 2)))
    a("    v_mul_f32 %s, 0x3b000000, %s" % (v(vT), v(vT)))
    wavesum_to_sgpr(vT, sMean)
    for i in range(8):
        a("    v_subrev_f32 %s, %s, %s" % (v(vXu + i), s(sMean), v(vXu + i)))
    a("    v_mul_f32 %s, %s, %s" % (v(vT), v(vXu), v(vXu)))
    a("    v_mul_f32 %s, %s, %s" % (v(vT + 1), v(vXu + 1), v(vXu + 1)))
    for i in range(2, 8):
        a("    v_fmac_f32 %s, %s, %s" % (v(vT + (i & 1)), v(vXu + i), v(vXu + i)))
    a("    v_add_f32 %s, %s, %s" % (v(vT), v(vT), v(vT + 1)))
    a("    v_mul_f32 %s, 0x3b000000, %s" % (v(vT), v(vT)))
    wavesum_to_sgpr(vT, sVar)
    a("    v_mov_b32 %s, %s" % (v(vT + 1), s(sMean)))
    bf16r(vT + 1, vT + 1)
    a("    v_mov_b32 %s, %s" % (v(vT), s(sVar)))
    bf16r(vT, vT)
    a("    v_add_f32 %s, 0x3727c5ac, %s" % (v(vT), v(vT)))
    bf16r(vT, vT)
    a("    v_sqrt_f32 %s, %s" % (v(vT), v(vT)))
    bf16r(vT, vT)
    a("    v_rcp_f32 %s, %s" % (v(vT + 2), v(vT)))
    a("    v_lshlrev_b32 %s, 16, %s" % (v(vT + 3), v(vXs)))
    a("    v_and_b32 %s, 0xffff0000, %s" % (v(vT + 4), v(vXs)))
    a("    v_sub_f32 %s, %s, %s" % (v(vT + 3), v(vT + 3), v(vT + 1)))
    a("    v_sub_f32 %s, %s, %s" % (v(vT + 4), v(vT + 4), v(vT + 1)))
    bf16r(vT + 3, vT + 3)
    bf16r(vT + 4, vT + 4)
    vA = V(8, 4)
    for i in range(2):
        y, q = vT + 3 + i, vT + 5 + i
        a("    v_mul_f32 %s, %s, %s" % (v(q), v(y), v(vT + 2)))
        a("    v_fma_f32 %s, -%s, %s, %s" % (v(y), v(q), v(vT), v(y)))
        a("    v_fmac_f32 %s, %s, %s" % (v(q), v(y), v(vT + 2)))
        a("    v_cvt_pk_bf16_f32 %s, %s, %s" % (v(q), v(q), v(q)))
        for r in range(4):
            a("    v_and_b32 %s, %s, %s" % (v(vA + 4 * i + r), v(q), v(vM + r)))
    a("    s_waitcnt lgkmcnt(0)")
    a("    s_add_u32 %s, %s, 1" % (s(sT32), s(sE)))
    a("    s_and_b32 %s, %s, 0xff" % (s(sTag8), s(sT32)))
    a("    s_and_b32 %s, %s, 0x3ff" % (s(sTag10), s(sT32)))
    a("    v_mov_b32 %s, %s" % (v(vTag8), s(sTag8)))
    a("    v_mov_b32 %s, %s" % (v(vTag10), s(sTag10)))
    a("    s_waitcnt vmcnt(%d)" % (4 + NV0))
    stamp(2)
    a("    v_mfma_f32_16x16x32_bf16 %s, %s, %s, 0" % (v(vD, 4), v(vA, 4), v(vW, 4)))
    a("    v_mfma_f32_16x16x32_bf16 %s, %s, %s, %s" % (v(vD, 4), v(vA + 4, 4), v(vW + 4, 4), v(vD, 4)))

    def red_publish(tagv, mask, rnd, basepair, label):
        setexec(0x00FF00FF, 0xFF00FF00)
        a("    ds_write_b128 %s, %s" % (v(vRedW), v(vD, 4)))
        setexec(0xFFFFFFFF, 0xFFFFFFFF)
        a("    s_waitcnt lgkmcnt(0)")
        a("    s_barrier")
        a("    s_cmp_lg_u32 %s, 0" % s(sW))
        a("    s_cbranch_scc1 %s" % label)
        m = V.mark()
        r = V(16, 4)
        for i in range(4):
            a("    ds_read_b128 %s, %s offset:%d" % (v(r + 4 * i, 4), v(vRedR), 272 * i))
        a("    s_waitcnt lgkmcnt(2)")
        a("    v_pk_add_f32 %s, %s, %s" % (v(r, 2), v(r, 2), v(r + 4, 2)))
        a("    v_pk_add_f32 %s, %s, %s" % (v(r + 2, 2), v(r + 2, 2), v(r + 6, 2)))
        a("    s_waitcnt lgkmcnt(0)")
        a("    v_pk_add_f32 %s, %s, %s" % (v(r + 8, 2), v(r + 8, 2), v(r + 12, 2)))
        a("    v_pk_add_f32 %s, %s, %s" % (v(r + 10, 2), v(r + 10, 2), v(r + 14, 2)))
        a("    v_pk_add_f32 %s, %s, %s" % (v(r, 2), v(r, 2), v(r + 8, 2)))
        a("    v_pk_add_f32 %s, %s, %s" % (v(r + 2, 2), v(r + 2, 2), v(r + 10, 2)))
        for perm in ("[1,0,3,2]", "[2,3,0,1]"):
            for i in range(4):
                a("    v_add_f32_dpp %s, %s, %s quad_perm:%s %s" % (v(r + i), v(r + i), v(r + i), perm, DPP))
        for i in range(4):
            if rnd:
                a("    v_add_u32 %s, 0x%x, %s" % (v(r + i), rnd, v(r + i)))
        for i in range(4):
            a("    v_and_or_b32 %s, %s, %s, %s" % (v(r + i), v(r + i), s(mask), v(tagv)))
        setexec(0x11111111, 0x11111111)
        a("    global_store_dwordx4 %s, %s, %s sc1" % (v(vC4), v(r, 4), s(basepair, 2)))
        setexec(0xFFFFFFFF, 0xFFFFFFFF)
        V.release(m)

    a("    s_lshl_b32 %s, %s, 13" % (s(sT0), s(sH)))
    a("    s_add_u32 %s, %s, 0x%x" % (s(sT0), s(sT0), S1))
    a("    s_lshl_b32 %s, %s, 8" % (s(sT1), s(sJ)))
    a("    s_add_u32 %s, %s, %s" % (s(sT1), s(sT1), s(sT0)))
    base(sB0, sWS, s(sT1))
    a("    s_lshl_b32 %s, %s, 8" % (s(sT1), s(sW)))
    a("    s_add_u32 %s, %s, %s" % (s(sT1), s(sT1), s(sT0)))
    base(sB1, sWS, s(sT1))
    V.release(mk)
    red_publish(vTag8, sM8, 0x80, sB0, "L_QPUB")
    a("L_QPUB:")
    if opt.get("b1b", 1):
        a("    s_barrier")
    stamp(3)
    for i in range(NV0, NV1):
        vload(i)
    vQ = V(4, 4)
    vQo = V()
    a("    v_lshlrev_b32 %s, 4, %s" % (v(vQo), v(vJ)))
    a("    v_lshl_or_b32 %s, %s, 11, %s" % (v(vQo), v(vG), v(vQo)))

    def qload():
        a("    global_load_dwordx4 %s, %s, %s sc1" % (v(vQ, 4), v(vQo), s(sB1, 2)))
    qload()
    for i in range(NV1, 4):
        vload(i)
    NVA = 4 - NV1
    a("    s_cmp_lt_u32 %s, 16" % s(sJ))
    a("    s_cbranch_scc1 L_ROLE_WO")
    a("    s_cmp_lt_u32 %s, 4" % s(sH))
    a("    s_cbranch_scc1 L_ROLE_FFN")
    a("    s_cmp_lt_u32 %s, 28" % s(sJ))
    a("    s_cbranch_scc1 L_ROLE_FFN")

    def attention(ntail):
        m0 = V.mark()
        vKa = V(16, 4)
        vQb = V(16, 4)
        vPb = vQb
        vVa = vKa
        vS = V(4, 4)
        vMx, vMl = V(), V(4, 4)
        vAk = V(4)
        vAq, vAqw, vAmw, vAmr, vAlw, vApw, vApr, vAv, vAo, vAlr, vAml = [V() for _ in range(11)]
        a("    s_lshl_b32 %s, %s, 12" % (s(sT0), s(sW)))
        a("    v_xor_b32 %s, %s, %s" % (v(vT), v(vJ), v(vG)))
        a("    v_lshlrev_b32 %s, 4, %s" % (v(vT), v(vT)))
        a("    v_lshl_or_b32 %s, %s, 8, %s" % (v(vT), v(vJ), v(vT)))
        a("    v_add_u32 %s, %s, %s" % (v(vAk), s(sT0), v(vT)))
        for i in (1, 2, 3):
            a("    v_xor_b32 %s, 0x%x, %s" % (v(vAk + i), 64 * i, v(vAk)))
        a("    v_and_b32 %s, 3, v0" % v(vT))
        a("    v_mul_u32_u24 %s, 272, %s" % (v(vT + 1), v(vT)))
        a("    v_lshl_add_u32 %s, %s, 4, %s" % (v(vT + 2), v(vG), v(vT + 1)))
        a("    v_add_u32 %s, 0x%x, %s" % (v(vAq), LQ, v(vT + 2)))
        a("    v_add_u32 %s, 0x%x, %s" % (v(vApr), LP, v(vT + 2)))
        a("    s_lshr_b32 %s, %s, 1" % (s(sT0), s(sW)))
        a("    s_and_b32 %s, %s, 1" % (s(sT1), s(sW)))
        a("    s_lshl_b32 %s, %s, 6" % (s(sT2), s(sT0)))
        a("    s_lshl_b32 %s, %s, 3" % (s(sT3), s(sT1)))
        a("    s_add_u32 %s, %s, %s" % (s(sT2), s(sT2), s(sT3)))
        a("    v_add_u32 %s, %s, %s" % (v(vApw), s(sT2), v(vApr)))
        a("    s_mul_i32 %s, %s, 272" % (s(sT0), s(sT0)))
        a("    s_lshl_b32 %s, %s, 7" % (s(sT1), s(sT1)))
        a("    s_add_u32 %s, %s, %s" % (s(sT0), s(sT0), s(sT1)))
        a("    s_add_u32 %s, %s, 0x%x" % (s(sT0), s(sT0), LQ))
        a("    v_lshl_add_u32 %s, %s, 2, %s" % (v(vT + 3), v(vJ), v(vG)))
        a("    v_lshl_add_u32 %s, %s, 1, %s" % (v(vAqw), v(vT + 3), s(sT0)))
        a("    v_lshlrev_b32 %s, 5, %s" % (v(vT + 1), v(vT)))
        a("    v_add_u32 %s, 0x%x, %s" % (v(vAmr), LMX, v(vT + 1)))
        a("    s_lshl_b32 %s, %s, 2" % (s(sT0), s(sW)))
        a("    v_add_u32 %s, %s, %s" % (v(vAmw), s(sT0), v(vAmr)))
        a("    s_lshl_b32 %s, %s, 4" % (s(sT0), s(sW)))
        a("    s_add_u32 %s, %s, 0x%x" % (s(sT0), s(sT0), LLS))
        a("    v_lshlrev_b32 %s, 7, %s" % (v(vT + 1), v(vT)))
        a("    v_lshl_add_u32 %s, %s, 2, %s" % (v(vT + 1), v(vG), v(vT + 1)))
        a("    v_add_u32 %s, %s, %s" % (v(vAlw), s(sT0), v(vT + 1)))
        a("    v_lshlrev_b32 %s, 7, %s" % (v(vT + 1), v(vG)))
        a("    v_lshl_add_u32 %s, %s, 3, %s" % (v(vT + 1), v(vJ), v(vT + 1)))
        a("    v_add_u32 %s, 0x%x, %s" % (v(vAlr), LLS, v(vT + 1)))
        a("    v_lshlrev_b32 %s, 9, %s" % (v(vAml), v(vG)))
        a("    v_lshrrev_b32 %s, 2, %s" % (v(vT + 1), v(vJ)))
        a("    v_lshl_add_u32 %s, %s, 2, %s" % (v(vT + 1), v(vG), v(vT + 1)))
        a("    v_and_b32 %s, 7, %s" % (v(vT + 2), v(vT + 1)))
        a("    v_lshlrev_b32 %s, 1, %s" % (v(vT + 2), v(vT + 2)))
        a("    v_bfe_u32 %s, v0, 1, 1" % v(vT + 3))
        a("    s_lshl_b32 %s, %s, 1" % (s(sT0), s(sW)))
        a("    v_add_u32 %s, %s, %s" % (v(vT + 3), s(sT0), v(vT + 3)))
        a("    v_xor_b32 %s, %s, %s" % (v(vT + 2), v(vT + 2), v(vT + 3)))
        a("    v_lshlrev_b32 %s, 4, %s" % (v(vT + 2), v(vT + 2)))
        a("    v_lshl_or_b32 %s, %s, 8, %s" % (v(vT + 1), v(vT + 1), v(vT + 2)))
        a("    v_and_b32 %s, 1, v0" % v(vT + 2))
        a("    v_lshl_or_b32 %s, %s, 3, %s" % (v(vT + 1), v(vT + 2), v(vT + 1)))
        a("    v_add_u32 %s, 0x%x, %s" % (v(vAv), LV, v(vT + 1)))
        a("    v_lshlrev_b32 %s, 4, %s" % (v(vT + 1), v(vG)))
        a("    v_lshl_or_b32 %s, %s, 9, %s" % (v(vAo), v(vJ), v(vT + 1)))
        a("    s_lshl_b32 %s, %s, 5" % (s(sT0), s(sH)))
        a("    s_add_u32 %s, %s, %s" % (s(sT0), s(sT0), s(sJ)))
        a("    s_lshl_b32 %s, %s, 11" % (s(sT0), s(sT0)))
        a("    s_lshl_b32 %s, %s, 6" % (s(sT1), s(sW)))
        a("    s_add_u32 %s, %s, %s" % (s(sT0), s(sT0), s(sT1)))
        a("    s_add_u32 %s, %s, 0x%x" % (s(sT0), s(sT0), S2O))
        base(sB0, sWS, s(sT0))
        a("    s_lshl_b32 %s, %s, 11" % (s(sT0), s(sH)))
        a("    s_lshl_b32 %s, %s, 4" % (s(sT1), s(sJ)))
        a("    s_add_u32 %s, %s, %s" % (s(sT0), s(sT0), s(sT1)))
        a("    s_add_u32 %s, %s, 0x%x" % (s(sT0), s(sT0), S2ML))
        base(sB2, sWS, s(sT0))

        def kreads():
            for i in range(4):
                a("    ds_read_b128 %s, %s" % (v(vKa + 4 * i, 4), v(vAk + i)))

        def qcheck():
            tagcheck([vQ + i for i in range(4)], sTag8, vT)
            a("    v_and_b32 %s, 0xff, %s" % (v(vT), v(vT)))
            a("    v_cmp_ne_u32 vcc, 0, %s" % v(vT))
        poll(qload, qcheck, NVA + ntail, pre=kreads)
        stamp(4)
        for i in range(4):
            a("    v_and_b32 %s, %s, %s" % (v(vQ + i), s(sM8), v(vQ + i)))
        treduce4(vQ)
        a("    v_cvt_pk_bf16_f32 %s, %s, %s" % (v(vQ), v(vQ), v(vQ)))
        a("    ds_write_b16 %s, %s" % (v(vAqw), v(vQ)))
        a("    s_waitcnt lgkmcnt(0)")
        a("    s_barrier")
        for i in range(4):
            a("    ds_read_b128 %s, %s offset:%d" % (v(vQb + 4 * i, 4), v(vAq), 64 * i))
        for i in range(4):
            a("    s_waitcnt lgkmcnt(%d)" % (0 if prof else 3 - i))
            a("    v_mfma_f32_16x16x32_bf16 %s, %s, %s, %s" %
              (v(vD, 4), v(vKa + 4 * i, 4), v(vQb + 4 * i, 4), "0" if i == 0 else v(vD, 4)))
        a("    v_cvt_pk_bf16_f32 %s, %s, %s" % (v(vT), v(vD), v(vD + 1)))
        a("    v_cvt_pk_bf16_f32 %s, %s, %s" % (v(vT + 1), v(vD + 2), v(vD + 3)))
        for rnd in range(2):
            for i in range(2):
                a("    v_lshlrev_b32 %s, 16, %s" % (v(vS + 2 * i), v(vT + i)))
                a("    v_and_b32 %s, 0xffff0000, %s" % (v(vS + 2 * i + 1), v(vT + i)))
            if rnd == 0:
                for i in range(4):
                    a("    v_mul_f32 %s, 0x3db504f3, %s" % (v(vS + i), v(vS + i)))
                a("    v_cvt_pk_bf16_f32 %s, %s, %s" % (v(vT), v(vS), v(vS + 1)))
                a("    v_cvt_pk_bf16_f32 %s, %s, %s" % (v(vT + 1), v(vS + 2), v(vS + 3)))
        a("    v_max3_f32 %s, %s, %s, %s" % (v(vMx), v(vS), v(vS + 1), v(vS + 2)))
        a("    v_max_f32 %s, %s, %s" % (v(vMx), v(vMx), v(vS + 3)))
        for sw in ("16", "32"):
            a("    v_mov_b32 %s, %s" % (v(vT), v(vMx)))
            a("    v_permlane%s_swap_b32 %s, %s" % (sw, v(vMx), v(vT)))
            a("    v_max_f32 %s, %s, %s" % (v(vMx), v(vMx), v(vT)))
        setexec(0xF, 0)
        a("    ds_write_b32 %s, %s" % (v(vAmw), v(vMx)))
        setexec(0xFFFFFFFF, 0xFFFFFFFF)
        a("    s_waitcnt lgkmcnt(0)")
        a("    s_barrier")
        a("    ds_read_b128 %s, %s" % (v(vT, 4), v(vAmr)))
        a("    ds_read_b128 %s, %s offset:16" % (v(vT + 4, 4), v(vAmr)))
        a("    s_waitcnt lgkmcnt(0)")
        a("    v_max3_f32 %s, %s, %s, %s" % (v(vT), v(vT), v(vT + 1), v(vT + 2)))
        a("    v_max3_f32 %s, %s, %s, %s" % (v(vT + 4), v(vT + 4), v(vT + 5), v(vT + 6)))
        a("    v_max3_f32 %s, %s, %s, %s" % (v(vT), v(vT), v(vT + 3), v(vT + 7)))
        a("    v_max_f32 %s, %s, %s" % (v(vMl), v(vT), v(vT + 4)))
        for i in range(4):
            a("    v_sub_f32 %s, %s, %s" % (v(vS + i), v(vS + i), v(vMl)))
        for i in range(4):
            a("    v_mul_f32 %s, 0x3fb8aa3b, %s" % (v(vS + i), v(vS + i)))
        for i in range(4):
            a("    v_exp_f32 %s, %s" % (v(vS + i), v(vS + i)))
        a("    v_add_f32 %s, %s, %s" % (v(vT), v(vS), v(vS + 1)))
        a("    v_add_f32 %s, %s, %s" % (v(vT + 1), v(vS + 2), v(vS + 3)))
        a("    v_cvt_pk_bf16_f32 %s, %s, %s" % (v(vT + 2), v(vS), v(vS + 1)))
        a("    v_cvt_pk_bf16_f32 %s, %s, %s" % (v(vT + 3), v(vS + 2), v(vS + 3)))
        a("    v_add_f32 %s, %s, %s" % (v(vT), v(vT), v(vT + 1)))
        setexec(0x000F000F, 0x000F000F)
        a("    ds_write_b64 %s, %s" % (v(vApw), v(vT + 2, 2)))
        a("    ds_write_b32 %s, %s" % (v(vAlw), v(vT)))
        setexec(0xFFFFFFFF, 0xFFFFFFFF)
        a("    s_waitcnt lgkmcnt(0)")
        a("    s_barrier")
        for i in range(4):
            a("    ds_read_b128 %s, %s offset:%d" % (v(vPb + 4 * i, 4), v(vApr), 64 * i))
        uid[0] += 1
        u = uid[0]
        a("    s_cmp_lg_u32 %s, 0" % s(sW))
        a("    s_cbranch_scc1 L_NOML%d" % u)
        a("    ds_read_b64 %s, %s" % (v(vT, 2), v(vAlr)))
        a("    v_mov_b32 %s, %s" % (v(vMl + 2), s(sT32)))
        a("    v_mov_b32 %s, %s" % (v(vMl + 3), s(sT32)))
        a("    s_waitcnt lgkmcnt(0)")
        a("    v_add_f32 %s, %s, %s" % (v(vMl + 1), v(vT), v(vT + 1)))
        for sh in (1, 2, 4, 8):
            a("    v_add_f32_dpp %s, %s, %s row_ror:%d %s" % (v(vMl + 1), v(vMl + 1), v(vMl + 1), sh, DPP))
        a("    s_waitcnt vmcnt(%d)" % ntail)
        setexec(0x00020001, 0x00080004)
        a("    global_store_dwordx4 %s, %s, %s sc1" % (v(vAml), v(vMl, 4), s(sB2, 2)))
        setexec(0xFFFFFFFF, 0xFFFFFFFF)
        a("    s_branch L_MLD%d" % u)
        a("L_NOML%d:" % u)
        a("    s_waitcnt vmcnt(%d)" % ntail)
        a("L_MLD%d:" % u)
        a("    s_barrier")
        stamp(5)
        for t in range(4):
            for hh in range(2):
                a("    ds_read_b64_tr_b16 %s, %s offset:%d" % (v(vVa + 4 * t + 2 * hh, 2), v(vAv), 8192 * t + 4096 * hh))
        for t in range(4):
            a("    s_waitcnt lgkmcnt(%d)" % (0 if prof else 6 - 2 * t))
            a("    v_mfma_f32_16x16x32_bf16 %s, %s, %s, %s" %
              (v(vD, 4), v(vVa + 4 * t, 4), v(vPb + 4 * t, 4), "0" if t == 0 else v(vD, 4)))
        setexec(0x000F000F, 0x000F000F)
        for i in range(4):
            a("    v_and_or_b32 %s, %s, %s, %s" % (v(vD + i), v(vD + i), s(sM10), v(vTag10)))
        a("    global_store_dwordx4 %s, %s, %s sc1" % (v(vAo), v(vD, 4), s(sB0, 2)))
        setexec(0xFFFFFFFF, 0xFFFFFFFF)
        stamp(6)
        V.release(m0)

    attention(0)
    finish()

    a("L_ROLE_WO:")
    mrole = V.mark()
    a("    s_lshl_b32 %s, %s, 9" % (s(sT0), s(sH)))
    a("    s_lshr_b32 %s, %s, 3" % (s(sT1), s(sJ)))
    a("    s_lshl_b32 %s, %s, 8" % (s(sT1), s(sT1)))
    a("    s_add_u32 %s, %s, %s" % (s(sT0), s(sT0), s(sT1)))
    a("    s_lshl_b32 %s, %s, 5" % (s(sT1), s(sW)))
    a("    s_add_u32 %s, %s, %s" % (s(sT0), s(sT0), s(sT1)))
    a("    s_lshl_b32 %s, %s, 10" % (s(sT0), s(sT0)))
    a("    s_and_b32 %s, %s, 7" % (s(sT1), s(sJ)))
    a("    s_lshl_b32 %s, %s, 7" % (s(sT1), s(sT1)))
    a("    s_add_u32 %s, %s, %s" % (s(sT0), s(sT0), s(sT1)))
    base(sB4, sWO, s(sT0))
    a("    v_lshlrev_b32 %s, 4, %s" % (v(vT), v(vL7)))
    a("    v_lshl_or_b32 %s, %s, 12, %s" % (v(vT), v(vL3), v(vT)))
    for i in range(4):
        a("    global_load_dwordx4 %s, %s, %s offset:%d nt" % (v(vW + 4 * i, 4), v(vT), s(sB4, 2), 1024 * i))
    attention(4)
    vO = V(16, 4)
    vML = V(16, 4)
    vOo = V(4)
    vMLo = V()
    vA = V(16, 4)
    a("    s_lshr_b32 %s, %s, 3" % (s(sT0), s(sJ)))
    a("    s_lshl_b32 %s, %s, 1" % (s(sT0), s(sT0)))
    a("    s_lshr_b32 %s, %s, 2" % (s(sT1), s(sW)))
    a("    s_add_u32 %s, %s, %s" % (s(sT0), s(sT0), s(sT1)))
    a("    s_lshl_b32 %s, %s, 9" % (s(sT0), s(sT0)))
    a("    s_lshl_b32 %s, %s, 11" % (s(sT1), s(sH)))
    a("    s_add_u32 %s, %s, %s" % (s(sT1), s(sT1), s(sT0)))
    a("    s_add_u32 %s, %s, 0x%x" % (s(sT1), s(sT1), S2ML))
    base(sB0, sWS, s(sT1))
    a("    s_lshl_b32 %s, %s, 16" % (s(sT1), s(sH)))
    a("    s_add_u32 %s, %s, %s" % (s(sT1), s(sT1), s(sT0)))
    a("    s_and_b32 %s, %s, 3" % (s(sT0), s(sW)))
    a("    s_lshl_b32 %s, %s, 7" % (s(sT0), s(sT0)))
    a("    s_add_u32 %s, %s, %s" % (s(sT1), s(sT1), s(sT0)))
    a("    s_add_u32 %s, %s, 0x%x" % (s(sT1), s(sT1), S2O))
    base(sB1, sWS, s(sT1))
    a("    v_lshlrev_b32 %s, 4, %s" % (v(vMLo), v(vL7)))
    a("    v_lshlrev_b32 %s, 4, %s" % (v(vT), v(vL3)))
    a("    v_lshl_or_b32 %s, %s, 11, %s" % (v(vOo), v(vL7), v(vT)))
    for i in (1, 2, 3):
        a("    v_add_u32 %s, 0x%x, %s" % (v(vOo + i), 16384 * i, v(vOo)))

    def mlloads():
        for i in range(4):
            a("    global_load_dwordx3 %s, %s, %s offset:%d sc1" % (v(vML + 4 * i, 3), v(vMLo), s(sB0, 2), 128 * i))

    def oloads():
        for i in range(4):
            a("    global_load_dwordx4 %s, %s, %s sc1" % (v(vO + 4 * i, 4), v(vOo + i), s(sB1, 2)))
    mlloads()
    oloads()
    a("    s_lshl_b32 %s, %s, 12" % (s(sT0), s(sH)))
    a("    s_lshl_b32 %s, %s, 8" % (s(sT1), s(sJ)))
    a("    s_add_u32 %s, %s, %s" % (s(sT0), s(sT0), s(sT1)))
    a("    s_add_u32 %s, %s, 0x%x" % (s(sT0), s(sT0), S3))
    base(sB2, sWS, s(sT0))

    def mlcheck():
        tagcheck([vML + 4 * i + 2 for i in range(4)], sT32, vT)
        a("    v_cmp_ne_u32 vcc, 0, %s" % v(vT))
    poll(mlloads, mlcheck, 4)
    a("    v_max3_f32 %s, %s, %s, %s" % (v(vT), v(vML), v(vML + 4), v(vML + 8)))
    a("    v_max_f32 %s, %s, %s" % (v(vT), v(vT), v(vML + 12)))
    for pat in ("quad_perm:[1,0,3,2]", "quad_perm:[2,3,0,1]", "row_half_mirror"):
        a("    v_max_f32_dpp %s, %s, %s %s %s" % (v(vT), v(vT), v(vT), pat, DPP))
    for i in range(4):
        a("    v_sub_f32 %s, %s, %s" % (v(vML + 4 * i), v(vML + 4 * i), v(vT)))
    for i in range(4):
        a("    v_mul_f32 %s, 0x3fb8aa3b, %s" % (v(vML + 4 * i), v(vML + 4 * i)))
    for i in range(4):
        a("    v_exp_f32 %s, %s" % (v(vML + 4 * i), v(vML + 4 * i)))
    a("    v_mul_f32 %s, %s, %s" % (v(vT), v(vML), v(vML + 1)))
    for i in range(1, 4):
        a("    v_fmac_f32 %s, %s, %s" % (v(vT), v(vML + 4 * i), v(vML + 4 * i + 1)))
    for pat in ("quad_perm:[1,0,3,2]", "quad_perm:[2,3,0,1]", "row_half_mirror"):
        a("    v_add_f32_dpp %s, %s, %s %s %s" % (v(vT), v(vT), v(vT), pat, DPP))
    a("    v_rcp_f32 %s, %s" % (v(vT), v(vT)))
    for i in range(4):
        a("    v_mul_f32 %s, %s, %s" % (v(vML + 4 * i), v(vML + 4 * i), v(vT)))

    def ocheck():
        tagcheck([vO + i for i in range(16)], sTag10, vT)
        a("    v_and_b32 %s, 0x3ff, %s" % (v(vT), v(vT)))
        a("    v_cmp_ne_u32 vcc, 0, %s" % v(vT))
    poll(oloads, ocheck, 0)
    stamp(7)
    for i in range(16):
        a("    v_and_b32 %s, %s, %s" % (v(vO + i), s(sM10), v(vO + i)))
    for r in range(4):
        a("    v_mul_f32 %s, %s, %s" % (v(vT + r), v(vO + r), v(vML)))
    for i in range(1, 4):
        for r in range(4):
            a("    v_fmac_f32 %s, %s, %s" % (v(vT + r), v(vO + 4 * i + r), v(vML + 4 * i)))
    for pat in ("quad_perm:[1,0,3,2]", "quad_perm:[2,3,0,1]", "row_half_mirror"):
        for r in range(4):
            a("    v_add_f32_dpp %s, %s, %s %s %s" % (v(vT + r), v(vT + r), v(vT + r), pat, DPP))
    for r in range(4):
        a("    v_cvt_pk_bf16_f32 %s, %s, %s" % (v(vT + r), v(vT + r), v(vT + r)))
    for i in range(4):
        for r in range(4):
            a("    v_and_b32 %s, %s, %s" % (v(vA + 4 * i + r), v(vT + i), v(vM + r)))
        if i:
            a("    v_mfma_f32_16x16x32_bf16 %s, %s, %s, %s" %
              (v(vD, 4), v(vA + 4 * i - 4, 4), v(vW + 4 * i - 4, 4), "0" if i == 1 else v(vD, 4)))
    a("    v_mfma_f32_16x16x32_bf16 %s, %s, %s, %s" % (v(vD, 4), v(vA + 12, 4), v(vW + 12, 4), v(vD, 4)))
    red_publish(vTag10, sM10, 0, sB2, "L_FIN")
    stamp(8)
    a("    s_and_b32 %s, %s, 3" % (s(sT0), s(sJ)))
    a("    s_cmp_lg_u32 %s, 0" % s(sT0))
    a("    s_cbranch_scc1 L_FIN")
    V.release(mrole)
    vHs = V(4, 4)
    vY = V(28, 4)
    vXc, vHo, vYo, vCo = V(), V(), V(), V()
    a("    s_lshl_b32 %s, %s, 2" % (s(sT0), s(sH)))
    a("    s_lshr_b32 %s, %s, 2" % (s(sT1), s(sJ)))
    a("    s_add_u32 %s, %s, %s" % (s(sT0), s(sT0), s(sT1)))
    a("    s_lshl_b32 %s, %s, 5" % (s(sT1), s(sT0)))
    base(sB0, sX, s(sT1))
    base(sB3, sOUT, s(sT1))
    a("    s_lshl_b32 %s, %s, 6" % (s(sT1), s(sT0)))
    a("    s_add_u32 %s, %s, 0x%x" % (s(sT1), s(sT1), S3))
    base(sB1, sWS, s(sT1))
    a("    s_mul_i32 %s, %s, 7168" % (s(sT1), s(sT0)))
    a("    s_add_u32 %s, %s, 0x%x" % (s(sT1), s(sT1), S4 + 3072))
    base(sB2, sWS, s(sT1))
    a("    v_and_b32 %s, 3, v0" % v(vT))
    a("    v_lshl_add_u32 %s, %s, 2, %s" % (v(vCo), v(vT), v(vG)))
    a("    v_lshlrev_b32 %s, 1, %s" % (v(vCo), v(vCo)))
    a("    v_lshlrev_b32 %s, 4, %s" % (v(vT), v(vT)))
    a("    v_lshl_or_b32 %s, %s, 7, %s" % (v(vHo), v(vC4), v(vT)))
    a("    v_lshlrev_b32 %s, 4, v0" % v(vYo))
    a("    global_load_ushort %s, %s, %s" % (v(vXc), v(vCo), s(sB0, 2)))

    def hload():
        a("    global_load_dwordx4 %s, %s, %s sc1" % (v(vHs, 4), v(vHo), s(sB1, 2)))

    def hcheck():
        tagcheck([vHs + i for i in range(4)], sTag10, vT)
        a("    v_and_b32 %s, 0x3ff, %s" % (v(vT), v(vT)))
        a("    v_cmp_ne_u32 vcc, 0, %s" % v(vT))
    hload()
    poll(hload, hcheck, 0)

    def yloads():
        for n in range(7):
            a("    global_load_dwordx4 %s, %s, %s offset:%d sc1" % (v(vY + 4 * n, 4), v(vYo), s(sB2, 2), 1024 * n - 3072))
    yloads()
    for i in range(4):
        a("    v_and_b32 %s, %s, %s" % (v(vHs + i), s(sM10), v(vHs + i)))
    treduce4(vHs)
    for sh in (4, 8):
        a("    v_add_f32_dpp %s, %s, %s row_ror:%d %s" % (v(vHs), v(vHs), v(vHs), sh, DPP))
    bf16r(vHs, vHs)
    a("    v_lshlrev_b32 %s, 16, %s" % (v(vXc), v(vXc)))
    a("    v_add_f32 %s, %s, %s" % (v(vHs), v(vHs), v(vXc)))
    bf16r(vHs, vHs)

    def ycheck():
        tagcheck([vY + i for i in range(28)], sTag10, vT)
        a("    v_and_b32 %s, 0x3ff, %s" % (v(vT), v(vT)))
        a("    v_cmp_ne_u32 vcc, 0, %s" % v(vT))
    poll(yloads, ycheck, 0)
    stamp(9)
    for i in range(28):
        a("    v_and_b32 %s, %s, %s" % (v(vY + i), s(sM10), v(vY + i)))
    for (d, x) in ((0, 4), (8, 12), (16, 20), (0, 8), (16, 24), (0, 16)):
        a("    v_pk_add_f32 %s, %s, %s" % (v(vY + d, 2), v(vY + d, 2), v(vY + x, 2)))
        a("    v_pk_add_f32 %s, %s, %s" % (v(vY + d + 2, 2), v(vY + d + 2, 2), v(vY + x + 2, 2)))
    treduce4(vY)
    for sh in (4, 8):
        a("    v_add_f32_dpp %s, %s, %s row_ror:%d %s" % (v(vY), v(vY), v(vY), sh, DPP))
    bf16r(vY, vY)
    a("    v_add_f32 %s, %s, %s" % (v(vY), v(vY), v(vHs)))
    a("    v_cvt_pk_bf16_f32 %s, %s, %s" % (v(vY), v(vY), v(vY)))
    setexec(0x000F000F, 0x000F000F)
    a("    global_store_short %s, %s, %s" % (v(vCo), v(vY), s(sB3, 2)))
    a("    s_cmp_lg_u32 s2, 0")
    a("    s_cbranch_scc1 L_FIN")
    setexec(1, 0)
    a("    v_mov_b32 %s, 0" % v(vT))
    a("    v_mov_b32 %s, %s" % (v(vT + 1), s(sT32)))
    a("    global_store_dword %s, %s, %s sc1" % (v(vT), v(vT + 1), s(sWS, 2)))
    a("L_FIN:")
    finish()
    V.release(mrole)

    a("L_ROLE_FFN:")
    a("    s_and_b32 %s, %s, 3" % (s(sU), s(sJ)))
    a("    s_min_u32 %s, %s, 4" % (s(sT0), s(sH)))
    a("    s_mul_i32 %s, %s, 3" % (s(sT1), s(sH)))
    a("    s_add_u32 %s, %s, %s" % (s(sT0), s(sT0), s(sT1)))
    a("    s_lshl_b32 %s, %s, 2" % (s(sT0), s(sT0)))
    a("    s_add_u32 %s, %s, %s" % (s(sT0), s(sT0), s(sJ)))
    a("    s_sub_u32 %s, %s, 16" % (s(sFI), s(sT0)))
    vGo = V()
    a("    v_lshrrev_b32 %s, 1, v0" % v(vT))
    a("    v_mul_u32_u24 %s, 3584, %s" % (v(vT), v(vT)))
    a("    v_and_b32 %s, 1, v0" % v(vT + 1))
    a("    v_lshl_add_u32 %s, %s, 4, %s" % (v(vGo), v(vT + 1), v(vT)))

    def quarter(n):
        a("    s_add_u32 %s, %s, %d" % (s(sT0), s(sU), n))
        a("    s_and_b32 %s, %s, 1" % (s(sT1), s(sT0)))
        a("    s_bfe_u32 %s, %s, 0x10001" % (s(sT0), s(sT0)))
        a("    s_lshl_b32 %s, %s, 1" % (s(sT2), s(sW)))
        a("    s_add_u32 %s, %s, %s" % (s(sT2), s(sT2), s(sT1)))
        a("    s_lshl_b32 %s, %s, 4" % (s(sT3), s(sT0)))
        a("    s_add_u32 %s, %s, %s" % (s(sT3), s(sT3), s(sT2)))
        a("    s_lshl_b32 %s, %s, 10" % (s(sT3), s(sT3)))
        a("    s_add_u32 %s, %s, 0x%x" % (s(sT3), s(sT3), LG))
        a("    s_mov_b32 m0, %s" % s(sT3))
        a("    s_mul_i32 %s, %s, %d" % (s(sT2), s(sT2), 32 * 3584))
        a("    s_lshl_b32 %s, %s, 5" % (s(sT1), s(sFI)))
        a("    s_add_u32 %s, %s, %s" % (s(sT2), s(sT2), s(sT1)))
        a("    s_cmp_eq_u32 %s, 0" % s(sT0))
        a("    s_cselect_b64 %s, %s, %s" % (s(sB4, 2), s(sWG, 2), s(sWU, 2)))
        base(sB4, sB4, s(sT2))
        a("    global_load_lds_dwordx4 %s, %s nt" % (v(vGo), s(sB4, 2)))
    NQ0 = opt.get("nq0", 1)
    for n in range(NQ0):
        quarter(n)
    attention(NQ0)
    for n in range(NQ0, 4):
        quarter(n)
    a("    s_lshl_b32 %s, %s, 14" % (s(sT0), s(sFI)))
    a("    s_lshl_b32 %s, %s, 7" % (s(sT1), s(sW)))
    a("    s_add_u32 %s, %s, %s" % (s(sT0), s(sT0), s(sT1)))
    base(sB4, sWD, s(sT0))
    a("    s_lshl_b32 %s, %s, 11" % (s(sT1), s(sW)))
    a("    s_add_u32 %s, %s, 0x%x" % (s(sT2), s(sT1), LD))
    a("    s_mov_b32 m0, %s" % s(sT2))
    a("    v_lshlrev_b32 %s, 4, %s" % (v(vT), v(vL7)))
    a("    v_lshl_or_b32 %s, %s, 10, %s" % (v(vT), v(vL3), v(vT)))
    a("    v_add_u32 %s, 0x1c00, %s" % (v(vT + 1), v(vT)))
    a("    global_load_lds_dwordx4 %s, %s nt" % (v(vT), s(sB4, 2)))
    a("    global_load_lds_dwordx4 %s, %s offset:1024 nt" % (v(vT + 1), s(sB4, 2)))
    vXc = V()
    vHs = V(16, 4)
    vHo = V(4)
    vWg = V(16, 4)
    vWd = V(8, 4)
    vHb = V(8, 4)
    vDu = V(4, 4)
    vCs = V(4, 4)
    vMt = V(4)
    vB = V(8, 4)
    vAhw, vAhr, vAgw, vAgr, vAsw, vAsr, vAy = [V() for _ in range(7)]
    a("    s_lshl_b32 %s, %s, 7" % (s(sT0), s(sW)))
    base(sB0, sX, s(sT0))
    a("    v_lshl_add_u32 %s, %s, 2, %s" % (v(vT + 2), v(vJ), v(vG)))
    a("    v_lshlrev_b32 %s, 1, %s" % (v(vT + 2), v(vT + 2)))
    a("    global_load_ushort %s, %s, %s" % (v(vXc), v(vT + 2), s(sB0, 2)))
    a("    s_add_u32 %s, %s, 0x%x" % (s(sT2), s(sT0), LH))
    a("    v_add_u32 %s, %s, %s" % (v(vAhw), s(sT2), v(vT + 2)))
    a("    v_lshl_add_u32 %s, %s, 4, %s" % (v(vAhr), v(vG), s(sT2)))
    a("    s_add_u32 %s, %s, 0x%x" % (s(sT2), s(sT0), LGP))
    a("    v_lshl_add_u32 %s, %s, 4, %s" % (v(vAgw), v(vG), s(sT2)))
    a("    v_lshrrev_b32 %s, 3, %s" % (v(vT + 2), v(vJ)))
    a("    v_lshl_add_u32 %s, %s, 1, %s" % (v(vT + 2), v(vL7), v(vT + 2)))
    a("    v_lshlrev_b32 %s, 6, %s" % (v(vT + 2), v(vT + 2)))
    a("    v_lshl_add_u32 %s, %s, 4, %s" % (v(vT + 2), v(vG), v(vT + 2)))
    a("    v_add_u32 %s, 0x%x, %s" % (v(vAgr), LGP, v(vT + 2)))
    a("    s_lshl_b32 %s, %s, 3" % (s(sT2), s(sW)))
    a("    s_add_u32 %s, %s, 0x%x" % (s(sT2), s(sT2), LST))
    a("    v_mov_b32 %s, %s" % (v(vAsw), s(sT2)))
    a("    v_lshlrev_b32 %s, 3, %s" % (v(vT + 2), v(vL7)))
    a("    v_add_u32 %s, 0x%x, %s" % (v(vAsr), LST, v(vT + 2)))
    for t in range(4):
        a("    v_cmp_eq_u32 vcc, %d, %s" % (t, v(vJ)))
        a("    v_cndmask_b32 %s, 0, -1, vcc" % v(vMt + t))
    a("    s_lshl_b32 %s, %s, 8" % (s(sT0), s(sW)))
    a("    s_add_u32 %s, %s, 0x%x" % (s(sT0), s(sT0), S3))
    base(sB1, sWS, s(sT0))
    a("    v_lshlrev_b32 %s, 4, %s" % (v(vT + 2), v(vJ)))
    a("    v_lshl_or_b32 %s, %s, 11, %s" % (v(vHo), v(vG), v(vT + 2)))
    for i in (1, 2, 3):
        a("    v_add_u32 %s, 0x%x, %s" % (v(vHo + i), 8192 * i, v(vHo)))
    a("    s_mul_i32 %s, %s, %d" % (s(sT0), s(sW), 4 * 7168))
    a("    s_lshl_b32 %s, %s, 6" % (s(sT2), s(sFI)))
    a("    s_add_u32 %s, %s, %s" % (s(sT0), s(sT0), s(sT2)))
    a("    s_add_u32 %s, %s, 0x%x" % (s(sT0), s(sT0), S4))
    base(sB2, sWS, s(sT0))
    a("    v_mul_u32_u24 %s, 7168, %s" % (v(vT + 2), v(vJ)))
    a("    v_lshl_add_u32 %s, %s, 4, %s" % (v(vAy), v(vG), v(vT + 2)))
    a("    v_lshrrev_b32 %s, 2, %s" % (v(vT + 2), v(vJ)))
    a("    v_and_b32 %s, 3, v0" % v(vT + 3))
    a("    v_lshl_add_u32 %s, %s, 3, %s" % (v(vT + 4), v(vG), v(vT + 2)))
    a("    v_lshlrev_b32 %s, 5, %s" % (v(vT + 4), v(vT + 4)))
    a("    v_lshl_add_u32 %s, %s, 3, %s" % (v(vT + 4), v(vT + 3), v(vT + 4)))
    a("    s_add_u32 %s, %s, 0x%x" % (s(sT2), s(sT1), LG))
    a("    v_add_u32 %s, %s, %s" % (v(vT + 4), s(sT2), v(vT + 4)))
    a("    v_lshl_add_u32 %s, %s, 2, %s" % (v(vT + 5), v(vG), v(vT + 2)))
    a("    v_lshlrev_b32 %s, 7, %s" % (v(vT + 5), v(vT + 5)))
    a("    v_lshl_add_u32 %s, %s, 3, %s" % (v(vT + 5), v(vT + 3), v(vT + 5)))
    a("    s_add_u32 %s, %s, 0x%x" % (s(sT2), s(sT1), LD))
    a("    v_add_u32 %s, %s, %s" % (v(vT + 5), s(sT2), v(vT + 5)))
    for i in range(4):
        a("    v_mov_b32 %s, 0x3f803f80" % v(vHb + i))
    a("    s_waitcnt vmcnt(0)")
    stamp(7)

    def hloadsf():
        for i in range(4):
            a("    global_load_dwordx4 %s, %s, %s sc1" % (v(vHs + 4 * i, 4), v(vHo + i), s(sB1, 2)))
    hloadsf()
    for mat in range(2):
        for st in range(2):
            for hh in range(2):
                a("    ds_read_b64_tr_b16 %s, %s offset:%d" %
                  (v(vWg + 8 * mat + 4 * st + 2 * hh, 2), v(vT + 4), 16384 * mat + 1024 * st + 128 * hh))
    for t in range(4):
        a("    ds_read_b64_tr_b16 %s, %s offset:%d" % (v(vWd + 2 * t, 2), v(vT + 5), 32 * t))
    a("    v_lshlrev_b32 %s, 16, %s" % (v(vXc), v(vXc)))
    a("    s_waitcnt lgkmcnt(0)")
    def gate_up(b0, b1):
        a("    v_mfma_f32_16x16x32_bf16 %s, %s, %s, 0" % (v(vD, 4), v(vWg, 4), v(b0, 4)))
        a("    v_mfma_f32_16x16x32_bf16 %s, %s, %s, 0" % (v(vDu, 4), v(vWg + 8, 4), v(b0, 4)))
        a("    v_mfma_f32_16x16x32_bf16 %s, %s, %s, %s" % (v(vD, 4), v(vWg + 4, 4), v(b1, 4), v(vD, 4)))
        a("    v_mfma_f32_16x16x32_bf16 %s, %s, %s, %s" % (v(vDu, 4), v(vWg + 12, 4), v(b1, 4), v(vDu, 4)))
    gate_up(vHb, vHb)
    setexec(0x00010001, 0x00010001)
    a("    ds_write_b128 %s, %s offset:%d" % (v(vAgw), v(vD, 4), LCS - LGP))
    a("    ds_write_b128 %s, %s offset:%d" % (v(vAgw), v(vDu, 4), LCS - LGP + 64))
    setexec(0xFFFFFFFF, 0xFFFFFFFF)
    a("    s_waitcnt lgkmcnt(0)")
    a("    s_barrier")
    a("    ds_read_b128 %s, %s offset:%d" % (v(vCs, 4), v(vAgr), LCS - LGP))
    a("    s_waitcnt lgkmcnt(0)")
    for pat in ("quad_perm:[1,0,3,2]", "quad_perm:[2,3,0,1]", "row_half_mirror"):
        for r in range(4):
            a("    v_add_f32_dpp %s, %s, %s %s %s" % (v(vCs + r), v(vCs + r), v(vCs + r), pat, DPP))

    def hcheckf():
        tagcheck([vHs + i for i in range(16)], sTag10, vT)
        a("    v_and_b32 %s, 0x3ff, %s" % (v(vT), v(vT)))
        a("    v_cmp_ne_u32 vcc, 0, %s" % v(vT))
    poll(hloadsf, hcheckf, 0)
    stamp(8)
    for i in range(16):
        a("    v_and_b32 %s, %s, %s" % (v(vHs + i), s(sM10), v(vHs + i)))
    for (d, x) in ((0, 4), (8, 12), (0, 8)):
        a("    v_pk_add_f32 %s, %s, %s" % (v(vHs + d, 2), v(vHs + d, 2), v(vHs + x, 2)))
        a("    v_pk_add_f32 %s, %s, %s" % (v(vHs + d + 2, 2), v(vHs + d + 2, 2), v(vHs + x + 2, 2)))
    treduce4(vHs)
    bf16r(vHs, vHs)
    a("    v_add_f32 %s, %s, %s" % (v(vHs), v(vHs), v(vXc)))
    a("    v_cvt_pk_bf16_f32 %s, %s, %s" % (v(vHs), v(vHs), v(vHs)))
    a("    ds_write_b16 %s, %s" % (v(vAhw), v(vHs)))
    a("    v_and_b32 %s, 0xffff0000, %s" % (v(vT), v(vHs)))
    a("    v_mul_f32 %s, %s, %s" % (v(vT + 1), v(vT), v(vT)))
    a("    s_waitcnt lgkmcnt(0)")
    a("    ds_read_b128 %s, %s" % (v(vHb, 4), v(vAhr)))
    a("    ds_read_b128 %s, %s offset:64" % (v(vHb + 4, 4), v(vAhr)))
    for sh in (1, 2, 4, 8):
        for r in range(2):
            a("    v_add_f32_dpp %s, %s, %s row_ror:%d %s" % (v(vT + r), v(vT + r), v(vT + r), sh, DPP))
    for pat in ("row_bcast:15 row_mask:0xa", "row_bcast:31 row_mask:0xc"):
        for r in range(2):
            a("    v_add_f32_dpp %s, %s, %s %s bank_mask:0xf" % (v(vT + r), v(vT + r), v(vT + r), pat))
    a("    s_waitcnt lgkmcnt(0)")
    gate_up(vHb, vHb + 4)
    setexec(0, 0x80000000)
    a("    ds_write_b64 %s, %s" % (v(vAsw), v(vT, 2)))
    setexec(0x00010001, 0x00010001)
    a("    ds_write_b128 %s, %s" % (v(vAgw), v(vD, 4)))
    a("    ds_write_b128 %s, %s offset:64" % (v(vAgw), v(vDu, 4)))
    setexec(0xFFFFFFFF, 0xFFFFFFFF)
    a("    s_waitcnt lgkmcnt(0)")
    a("    s_barrier")
    a("    ds_read_b64 %s, %s" % (v(vT, 2), v(vAsr)))
    a("    ds_read_b128 %s, %s" % (v(vD, 4), v(vAgr)))
    a("    s_waitcnt lgkmcnt(0)")
    for pat in ("quad_perm:[1,0,3,2]", "quad_perm:[2,3,0,1]", "row_half_mirror"):
        for r in (vT, vT + 1, vD, vD + 1, vD + 2, vD + 3):
            a("    v_add_f32_dpp %s, %s, %s %s %s" % (v(r), v(r), v(r), pat, DPP))
    a("    v_mul_f32 %s, 0x3b000000, %s" % (v(vT), v(vT)))
    a("    v_mul_f32 %s, 0x3b000000, %s" % (v(vT + 1), v(vT + 1)))
    a("    v_fma_f32 %s, -%s, %s, %s" % (v(vT + 1), v(vT), v(vT), v(vT + 1)))
    a("    v_max_f32 %s, 0, %s" % (v(vT + 1), v(vT + 1)))
    a("    v_cvt_pk_bf16_f32 %s, %s, %s" % (v(vT), v(vT + 1), v(vT)))
    a("    v_lshlrev_b32 %s, 16, %s" % (v(vT + 1), v(vT)))
    a("    v_and_b32 %s, 0xffff0000, %s" % (v(vT), v(vT)))
    a("    v_add_f32 %s, 0x3727c5ac, %s" % (v(vT + 1), v(vT + 1)))
    bf16r(vT + 1, vT + 1)
    a("    v_sqrt_f32 %s, %s" % (v(vT + 1), v(vT + 1)))
    for r in range(4):
        a("    v_fma_f32 %s, -%s, %s, %s" % (v(vD + r), v(vT), v(vCs + r), v(vD + r)))
    bf16r(vT + 1, vT + 1)
    a("    v_rcp_f32 %s, %s" % (v(vT + 1), v(vT + 1)))
    for r in range(4):
        a("    v_mul_f32 %s, %s, %s" % (v(vD + r), v(vD + r), v(vT + 1)))
    a("    v_cvt_pk_bf16_f32 %s, %s, %s" % (v(vT + 2), v(vD), v(vD + 1)))
    a("    v_cvt_pk_bf16_f32 %s, %s, %s" % (v(vT + 3), v(vD + 2), v(vD + 3)))
    for i in range(2):
        a("    v_lshlrev_b32 %s, 16, %s" % (v(vD + 2 * i), v(vT + 2 + i)))
        a("    v_and_b32 %s, 0xffff0000, %s" % (v(vD + 2 * i + 1), v(vT + 2 + i)))
    for r in range(4):
        a("    v_mul_f32_dpp %s, %s, %s row_ror:8 %s" % (v(vT + 4 + r), v(vD + r), v(vD + r), DPP))
    a("    v_cvt_pk_bf16_f32 %s, %s, %s" % (v(vT + 2), v(vT + 4), v(vT + 5)))
    a("    v_cvt_pk_bf16_f32 %s, %s, %s" % (v(vT + 3), v(vT + 6), v(vT + 7)))
    for t in range(4):
        a("    v_and_b32 %s, %s, %s" % (v(vB + 2 * t), v(vT + 2), v(vMt + t)))
        a("    v_and_b32 %s, %s, %s" % (v(vB + 2 * t + 1), v(vT + 3), v(vMt + t)))
    for t in range(4):
        a("    v_mfma_f32_16x16x16_bf16 %s, %s, %s, %s" %
          (v(vDu, 4), v(vWd + 2 * t, 2), v(vB + 2 * t, 2), "0" if t == 0 else v(vDu, 4)))
    setexec(0x000F000F, 0x000F000F)
    for i in range(4):
        a("    v_and_or_b32 %s, %s, %s, %s" % (v(vDu + i), v(vDu + i), s(sM10), v(vTag10)))
    a("    global_store_dwordx4 %s, %s, %s sc1" % (v(vAy), v(vDu, 4), s(sB2, 2)))
    stamp(9)
    finish()

    if prof:
        a("L_PROF:")
        a("    s_memrealtime %s" % s(sPROF + 20, 2))
        a("    s_mov_b64 exec, 1")
        a("    s_lshl_b32 %s, s2, 3" % s(sT0))
        a("    s_add_u32 %s, %s, %s" % (s(sT0), s(sT0), s(sW)))
        a("    s_lshl_b32 %s, %s, 7" % (s(sT0), s(sT0)))
        a("    s_add_u32 %s, %s, 0x%x" % (s(sT0), s(sT0), PROFB))
        base(sB0, sWS, s(sT0))
        a("    v_mov_b32 v1, 0")
        a("    s_waitcnt lgkmcnt(0)")
        for i in range(11):
            a("    v_mov_b32 v2, %s" % s(sPROF + 2 * i))
            if prof == 2:
                a("    global_atomic_umax v1, v2, %s offset:%d sc1" % (s(sDBG, 2), 4 * i))
            else:
                a("    global_store_dword v1, v2, %s offset:%d" % (s(sB0, 2), 4 * i))
        if prof == 2:
            a("    s_not_b32 %s, %s" % (s(sT0), s(sPROF)))
            a("    v_mov_b32 v2, %s" % s(sT0))
            a("    global_atomic_umax v1, v2, %s offset:44 sc1" % s(sDBG, 2))
        a("    s_endpgm")
    a("L_END:")
    a("    s_endpgm")
    a("L_CODE_END:")
    nv = (V.hi + 7) // 8 * 8
    a('.section .rodata,"a"')
    a(".p2align 6")
    a(".amdhsa_kernel %s_kernel" % NAME)
    a("  .amdhsa_next_free_vgpr %d" % nv)
    a("  .amdhsa_next_free_sgpr 96")
    a("  .amdhsa_accum_offset %d" % nv)
    a("  .amdhsa_group_segment_fixed_size 0")
    a("  .amdhsa_kernarg_size 96")
    a("  .amdhsa_user_sgpr_count 2")
    a("  .amdhsa_user_sgpr_kernarg_segment_ptr 1")
    a("  .amdhsa_system_sgpr_workgroup_id_x 1")
    a("  .amdhsa_float_denorm_mode_32 3")
    a(".end_amdhsa_kernel")
    return out + a.finalize()


if __name__ == "__main__":
    import argparse
    ap = argparse.ArgumentParser()
    ap.add_argument("-o", default=None)
    ap.add_argument("--prof", type=int, default=0)
    ap.add_argument("--opt", default="")
    args = ap.parse_args()
    opt = {}
    for kv in args.opt.split(","):
        if kv:
            k, x = kv.split("=")
            opt[k] = int(x)
    txt = gen(args.prof, opt)
    path = args.o or os.path.join(os.path.dirname(os.path.abspath(__file__)), "..", "cdna_kernels", NAME + ".s")
    open(path, "w").write(txt)
    print("wrote", path, len(txt.split("\n")), "lines")
```

```python
import sys
import os
sys.path.insert(0, os.path.dirname(os.path.abspath(__file__)))
from asmlib import Asm

NAME = "sequential_preLN__sliding_block_cached__glu_gated_bilinear__decode"

EPOCH = 0
S1 = 0x1000
S2ML = 0x11000
S3 = 0x15000
S4 = 0x1D000
S2O = 0x60000
PROFB = 0x100000

LK = 0
LV = 32768
LG = 65536
LD = 98304
LRED = 114688
LQ = 119040
LMX = 120128
LLS = 120256
LP = 120768
LH = 121856
LGP = 122880
LCS = 123904
LST = 124928
LDS_BYTES = 125056

DPP = "row_mask:0xf bank_mask:0xf"
SPIN_LIMIT = 1 << 18


class Regs:
    def __init__(self, start):
        self.n = start
        self.hi = start

    def __call__(self, cnt=1, align=None):
        if align is None:
            align = 2 if cnt > 1 else 1
        self.n = (self.n + align - 1) // align * align
        b = self.n
        self.n += cnt
        self.hi = max(self.hi, self.n)
        return b

    def mark(self):
        return self.n

    def release(self, m):
        self.n = m


def v(b, n=1):
    return "v%d" % b if n == 1 else "v[%d:%d]" % (b, b + n - 1)


def s(b, n=1):
    return "s%d" % b if n == 1 else "s[%d:%d]" % (b, b + n - 1)


def gen(prof=False, opt=None):
    opt = dict(opt or {})
    a = Asm()
    V = Regs(1)
    sX, sK, sVp, sWQ, sWO, sBX, sWG, sWU = 4, 6, 8, 10, 12, 14, 16, 18
    sWD, sOUT, sDBG, sWS = 20, 22, 24, 26
    sE, sW, sH, sJ = 28, 29, 30, 31
    sT0, sT1, sT2, sT3 = 32, 33, 34, 35
    sB0, sB1, sB2, sB3 = 36, 38, 40, 42
    sM8, sM10, sTag8, sTag10, sT32 = 44, 45, 46, 47, 48
    sSpin, sTmp, sDummy = 49, 50, 51
    sPC = 52
    sB4 = 54
    sU, sFI = 56, 57
    sMean, sVar = 58, 59
    sBo, sBml = 60, 62
    sPROF = 64
    uid = [0]

    def stamp(i):
        if prof:
            a("    s_memrealtime %s" % s(sPROF + 2 * i, 2))

    def setexec(lo, hi):
        if lo == hi == 0xFFFFFFFF:
            a("    s_mov_b64 exec, -1")
        else:
            a("    s_mov_b32 exec_lo, 0x%x" % lo)
            a("    s_mov_b32 exec_hi, 0x%x" % hi)

    def base(dst, ptr, off_sreg):
        a("    s_add_u32 %s, %s, %s" % (s(dst), s(ptr), off_sreg))
        a("    s_addc_u32 %s, %s, 0" % (s(dst + 1), s(ptr + 1)))

    def finish():
        if prof:
            a("    s_branch L_PROF")
        else:
            a("    s_endpgm")

    def bf16r(dst, src):
        a("    v_cvt_pk_bf16_f32 %s, %s, %s" % (v(dst), v(src), v(src)))
        a("    v_and_b32 %s, 0xffff0000, %s" % (v(dst), v(dst)))

    def wavesum_to_sgpr(r, sd):
        for sh in (1, 2, 4, 8):
            a("    v_add_f32_dpp %s, %s, %s row_ror:%d %s" % (v(r), v(r), v(r), sh, DPP))
        a("    v_add_f32_dpp %s, %s, %s row_bcast:15 row_mask:0xa bank_mask:0xf" % (v(r), v(r), v(r)))
        a("    v_add_f32_dpp %s, %s, %s row_bcast:31 row_mask:0xc bank_mask:0xf" % (v(r), v(r), v(r)))
        a("    v_readlane_b32 %s, %s, 63" % (s(sd), v(r)))

    def tagcheck(regs, tagreg, tmp, first=True):
        for i, r in enumerate(regs):
            if first and i == 0:
                a("    v_xor_b32 %s, %s, %s" % (v(tmp), s(tagreg), v(r)))
            else:
                a("    v_bitop3_b32 %s, %s, %s, %s bitop3:0xf6" % (v(tmp), v(tmp), v(r), s(tagreg)))

    def poll(loads, check, firstwait, pre=None):
        uid[0] += 1
        u = uid[0]
        a("    s_waitcnt vmcnt(%d)" % firstwait)
        if pre:
            pre()
        check()
        a("    s_cbranch_vccz L_OK%d" % u)
        a("    s_mov_b32 %s, 0" % s(sSpin))
        a("L_RETRY%d:" % u)
        a("    s_mov_b64 exec, vcc")
        loads()
        a("    s_add_u32 %s, %s, 1" % (s(sSpin), s(sSpin)))
        a("    s_cmp_ge_u32 %s, 0x%x" % (s(sSpin), SPIN_LIMIT))
        a("    s_cbranch_scc1 L_GIVEUP%d" % u)
        a("    s_waitcnt vmcnt(0)")
        check()
        a("    s_cbranch_vccnz L_RETRY%d" % u)
        a("L_GIVEUP%d:" % u)
        a("    s_waitcnt vmcnt(0)")
        a("    s_mov_b64 exec, -1")
        a("L_OK%d:" % u)

    def treduce4(r):
        a("    v_permlane32_swap_b32 %s, %s" % (v(r), v(r + 2)))
        a("    v_permlane32_swap_b32 %s, %s" % (v(r + 1), v(r + 3)))
        a("    v_add_f32 %s, %s, %s" % (v(r), v(r), v(r + 2)))
        a("    v_add_f32 %s, %s, %s" % (v(r + 1), v(r + 1), v(r + 3)))
        a("    v_permlane16_swap_b32 %s, %s" % (v(r), v(r + 1)))
        a("    v_add_f32 %s, %s, %s" % (v(r), v(r), v(r + 1)))

    hdr = open(os.path.join(os.path.dirname(os.path.abspath(__file__)), "..", "cdna_kernels", NAME + ".s.ref")).read()
    head = [l for l in hdr.split("\n") if l.startswith("; Kernarg") or l.startswith(";   offset")]
    out = "\n".join(head) + "\n"
    out += "; One persistent launch: 256 workgroups (one per CU) x 8 waves.\n"
    out += "; @launch grid=(256,1,1) block=(512,1,1) lds=%d\n" % LDS_BYTES
    a('.amdgcn_target "amdgcn-amd-amdhsa--gfx950"')
    a(".text")
    a(".globl %s_kernel" % NAME)
    a(".p2align 8")
    a(".type %s_kernel,@function" % NAME)
    a("%s_kernel:" % NAME)

    vL = 0
    vM = V(4, 4)
    vTag8, vTag10 = V(), V()
    vL3, vL7, vG, vJ = V(), V(), V(), V()
    vRedW, vRedR, vC4 = V(), V(), V()
    vD = V(4, 4)
    vT = V(8, 4)
    vV0, vV1 = V(), V()
    vW = V(16, 4)
    vAk = V(4)
    vAq, vAqw, vAmw, vAmr, vAlw, vApw, vApr, vAv, vAo, vAlr, vAml, vQo = [V() for _ in range(12)]
    mk = V.mark()

    def attn_addresses():
        a("    s_lshl_b32 %s, %s, 12" % (s(sT0), s(sW)))
        a("    v_xor_b32 %s, %s, %s" % (v(vT), v(vJ), v(vG)))
        a("    v_lshlrev_b32 %s, 4, %s" % (v(vT), v(vT)))
        a("    v_lshl_or_b32 %s, %s, 8, %s" % (v(vT), v(vJ), v(vT)))
        a("    v_add_u32 %s, %s, %s" % (v(vAk), s(sT0), v(vT)))
        for i in (1, 2, 3):
            a("    v_xor_b32 %s, 0x%x, %s" % (v(vAk + i), 64 * i, v(vAk)))
        a("    v_and_b32 %s, 3, v0" % v(vT))
        a("    v_mul_u32_u24 %s, 272, %s" % (v(vT + 1), v(vT)))
        a("    v_lshl_add_u32 %s, %s, 4, %s" % (v(vT + 2), v(vG), v(vT + 1)))
        a("    v_add_u32 %s, 0x%x, %s" % (v(vAq), LQ, v(vT + 2)))
        a("    v_add_u32 %s, 0x%x, %s" % (v(vApr), LP, v(vT + 2)))
        a("    s_lshr_b32 %s, %s, 1" % (s(sT0), s(sW)))
        a("    s_and_b32 %s, %s, 1" % (s(sT1), s(sW)))
        a("    s_lshl_b32 %s, %s, 6" % (s(sT2), s(sT0)))
        a("    s_lshl_b32 %s, %s, 3" % (s(sT3), s(sT1)))
        a("    s_add_u32 %s, %s, %s" % (s(sT2), s(sT2), s(sT3)))
        a("    v_add_u32 %s, %s, %s" % (v(vApw), s(sT2), v(vApr)))
        a("    s_mul_i32 %s, %s, 272" % (s(sT0), s(sT0)))
        a("    s_lshl_b32 %s, %s, 7" % (s(sT1), s(sT1)))
        a("    s_add_u32 %s, %s, %s" % (s(sT0), s(sT0), s(sT1)))
        a("    s_add_u32 %s, %s, 0x%x" % (s(sT0), s(sT0), LQ))
        a("    v_lshl_add_u32 %s, %s, 2, %s" % (v(vT + 3), v(vJ), v(vG)))
        a("    v_lshl_add_u32 %s, %s, 1, %s" % (v(vAqw), v(vT + 3), s(sT0)))
        a("    v_lshlrev_b32 %s, 5, %s" % (v(vT + 1), v(vT)))
        a("    v_add_u32 %s, 0x%x, %s" % (v(vAmr), LMX, v(vT + 1)))
        a("    s_lshl_b32 %s, %s, 2" % (s(sT0), s(sW)))
        a("    v_add_u32 %s, %s, %s" % (v(vAmw), s(sT0), v(vAmr)))
        a("    s_lshl_b32 %s, %s, 4" % (s(sT0), s(sW)))
        a("    s_add_u32 %s, %s, 0x%x" % (s(sT0), s(sT0), LLS))
        a("    v_lshlrev_b32 %s, 7, %s" % (v(vT + 1), v(vT)))
        a("    v_lshl_add_u32 %s, %s, 2, %s" % (v(vT + 1), v(vG), v(vT + 1)))
        a("    v_add_u32 %s, %s, %s" % (v(vAlw), s(sT0), v(vT + 1)))
        a("    v_lshlrev_b32 %s, 7, %s" % (v(vT + 1), v(vG)))
        a("    v_lshl_add_u32 %s, %s, 3, %s" % (v(vT + 1), v(vJ), v(vT + 1)))
        a("    v_add_u32 %s, 0x%x, %s" % (v(vAlr), LLS, v(vT + 1)))
        a("    v_lshlrev_b32 %s, 9, %s" % (v(vAml), v(vG)))
        a("    v_lshrrev_b32 %s, 2, %s" % (v(vT + 1), v(vJ)))
        a("    v_lshl_add_u32 %s, %s, 2, %s" % (v(vT + 1), v(vG), v(vT + 1)))
        a("    v_and_b32 %s, 7, %s" % (v(vT + 2), v(vT + 1)))
        a("    v_lshlrev_b32 %s, 1, %s" % (v(vT + 2), v(vT + 2)))
        a("    v_bfe_u32 %s, v0, 1, 1" % v(vT + 3))
        a("    s_lshl_b32 %s, %s, 1" % (s(sT0), s(sW)))
        a("    v_add_u32 %s, %s, %s" % (v(vT + 3), s(sT0), v(vT + 3)))
        a("    v_xor_b32 %s, %s, %s" % (v(vT + 2), v(vT + 2), v(vT + 3)))
        a("    v_lshlrev_b32 %s, 4, %s" % (v(vT + 2), v(vT + 2)))
        a("    v_lshl_or_b32 %s, %s, 8, %s" % (v(vT + 1), v(vT + 1), v(vT + 2)))
        a("    v_and_b32 %s, 1, v0" % v(vT + 2))
        a("    v_lshl_or_b32 %s, %s, 3, %s" % (v(vT + 1), v(vT + 2), v(vT + 1)))
        a("    v_add_u32 %s, 0x%x, %s" % (v(vAv), LV, v(vT + 1)))
        a("    v_lshlrev_b32 %s, 4, %s" % (v(vT + 1), v(vG)))
        a("    v_lshl_or_b32 %s, %s, 9, %s" % (v(vAo), v(vJ), v(vT + 1)))
        a("    s_lshl_b32 %s, %s, 5" % (s(sT0), s(sH)))
        a("    s_add_u32 %s, %s, %s" % (s(sT0), s(sT0), s(sJ)))
        a("    s_lshl_b32 %s, %s, 11" % (s(sT0), s(sT0)))
        a("    s_lshl_b32 %s, %s, 6" % (s(sT1), s(sW)))
        a("    s_add_u32 %s, %s, %s" % (s(sT0), s(sT0), s(sT1)))
        a("    s_add_u32 %s, %s, 0x%x" % (s(sT0), s(sT0), S2O))
        base(sBo, sWS, s(sT0))
        a("    s_lshl_b32 %s, %s, 11" % (s(sT0), s(sH)))
        a("    s_lshl_b32 %s, %s, 4" % (s(sT1), s(sJ)))
        a("    s_add_u32 %s, %s, %s" % (s(sT0), s(sT0), s(sT1)))
        a("    s_add_u32 %s, %s, 0x%x" % (s(sT0), s(sT0), S2ML))
        base(sBml, sWS, s(sT0))

        a("    v_lshlrev_b32 %s, 4, %s" % (v(vQo), v(vJ)))
        a("    v_lshl_or_b32 %s, %s, 11, %s" % (v(vQo), v(vG), v(vQo)))

    a("    s_cmp_ge_u32 s2, 0x100")
    a("    s_cbranch_scc1 L_END")
    a("    s_load_dwordx16 s[4:19], s[0:1], 0x0")
    a("    s_load_dwordx8 s[20:27], s[0:1], 0x40")
    if prof == 2:
        for i in range(1, 12):
            a("    s_mov_b32 %s, 0" % s(sPROF + 2 * i))
    stamp(0)
    vXo, vXSo, vWQ0, vWQ1 = V(), V(), V(), V()
    vKo = V(4)
    vXf = V(4, 4)
    vXs = V()
    a("    v_lshrrev_b32 %s, 6, v0" % v(vT))
    a("    v_and_b32 v0, 63, v0")
    a("    s_and_b32 %s, s2, 7" % s(sH))
    a("    v_readfirstlane_b32 %s, %s" % (s(sW), v(vT)))
    a("    s_lshr_b32 %s, s2, 3" % s(sJ))
    a("    v_lshlrev_b32 %s, 4, v0" % v(vXo))
    a("    v_lshrrev_b32 %s, 3, v0" % v(vL3))
    a("    v_and_b32 %s, 7, v0" % v(vL7))
    a("    v_lshrrev_b32 %s, 4, v0" % v(vG))
    a("    v_and_b32 %s, 15, v0" % v(vJ))
    a("    v_lshlrev_b32 %s, 2, %s" % (v(vXSo), v(vL3)))
    a("    v_lshlrev_b32 %s, 4, %s" % (v(vT), v(vL7)))
    a("    v_lshl_or_b32 %s, %s, 14, %s" % (v(vWQ0), v(vL3), v(vT)))
    a("    v_add_u32 %s, 0x2000, %s" % (v(vWQ1), v(vWQ0)))
    a("    v_xor_b32 %s, %s, %s" % (v(vT), v(vJ), v(vG)))
    a("    v_lshlrev_b32 %s, 4, %s" % (v(vT), v(vT)))
    a("    v_lshl_or_b32 %s, %s, 8, %s" % (v(vKo), v(vG), v(vT)))
    for i in (1, 2, 3):
        a("    v_xor_b32 %s, 0x%x, %s" % (v(vKo + i), 64 * i, v(vKo)))
    a("    s_lshr_b32 %s, %s, 3" % (s(sT0), s(sJ)))
    a("    s_lshl_b32 %s, %s, 7" % (s(sT0), s(sT0)))
    a("    s_lshl_b32 %s, %s, 4" % (s(sT1), s(sW)))
    a("    s_add_u32 %s, %s, %s" % (s(sT0), s(sT0), s(sT1)))
    a("    s_lshl_b32 %s, %s, 7" % (s(sT2), s(sJ)))
    a("    s_add_u32 %s, %s, %s" % (s(sT2), s(sT2), s(sT1)))
    a("    s_add_u32 %s, %s, 0xf000" % (s(sT2), s(sT2)))
    a("    s_lshl_b32 %s, %s, 16" % (s(sT3), s(sH)))
    a("    s_add_u32 %s, %s, %s" % (s(sT2), s(sT2), s(sT3)))
    a("    s_lshl_b32 %s, %s, 8" % (s(sT2), s(sT2)))
    a("    s_lshl_b32 %s, %s, 13" % (s(sT1), s(sT0)))
    a("    s_lshl_b32 %s, %s, 10" % (s(sT3), s(sH)))
    a("    s_add_u32 %s, %s, %s" % (s(sT1), s(sT1), s(sT3)))
    a("    s_and_b32 %s, %s, 7" % (s(sT3), s(sJ)))
    a("    s_lshl_b32 %s, %s, 7" % (s(sT3), s(sT3)))
    a("    s_add_u32 %s, %s, %s" % (s(sT1), s(sT1), s(sT3)))
    a("    s_lshl_b32 %s, %s, 1" % (s(sT0), s(sT0)))
    a("    s_lshl_b32 %s, %s, 12" % (s(sTmp), s(sW)))
    a("    s_mov_b32 m0, %s" % s(sTmp))
    a("    s_waitcnt lgkmcnt(0)")
    a("    global_load_dwordx4 %s, %s, %s" % (v(vXf, 4), v(vXo), s(sX, 2)))
    base(sB0, sX, s(sT0))
    a("    global_load_dword %s, %s, %s" % (v(vXs), v(vXSo), s(sB0, 2)))
    base(sB1, sWQ, s(sT1))
    a("    global_load_dwordx4 %s, %s, %s nt" % (v(vW, 4), v(vWQ0), s(sB1, 2)))
    a("    global_load_dwordx4 %s, %s, %s nt" % (v(vW + 4, 4), v(vWQ1), s(sB1, 2)))
    base(sB2, sK, s(sT2))
    if opt.get("b0", 1):
        a("    s_barrier")
    NK0 = opt.get("nk0", 2)

    def kload(i):
        a("    global_load_lds_dwordx4 %s, %s offset:%d nt" % (v(vKo + i), s(sB2, 2), 1024 * i))
    for i in range(NK0):
        kload(i)
    a("    s_load_dword %s, %s, 0x%x" % (s(sE), s(sWS, 2), EPOCH))
    a("    s_getpc_b64 %s" % s(sPC, 2))
    a("L_PC:")
    a("    s_lshl_b32 %s, %s, 3" % (s(sT0), s(sJ)))
    a("    s_add_u32 %s, %s, %s" % (s(sT0), s(sT0), s(sW)))
    a("    s_min_u32 %s, %s, (L_CODE_END-L_PC-4)/128" % (s(sT0), s(sT0)))
    a("    s_lshl_b32 %s, %s, 7" % (s(sT0), s(sT0)))
    a("    s_load_dword %s, %s, %s" % (s(sDummy), s(sPC, 2), s(sT0)))
    base(sB3, sVp, s(sT2))
    a("    v_lshlrev_b32 %s, 1, %s" % (v(vT), v(vG)))
    a("    v_xor_b32 %s, %s, %s" % (v(vT), v(vJ), v(vT)))
    a("    v_lshlrev_b32 %s, 4, %s" % (v(vT), v(vT)))
    a("    v_lshl_or_b32 %s, %s, 8, %s" % (v(vV0), v(vG), v(vT)))
    a("    v_xor_b32 %s, 0x80, %s" % (v(vV1), v(vV0)))
    a("    s_add_u32 %s, %s, 0x%x" % (s(sTmp), s(sTmp), LV))
    NV0 = opt.get("nv0", 1)
    NV1 = opt.get("nv1", 3)

    def vload(i):
        a("    global_load_lds_dwordx4 %s, %s offset:%d nt" % (v(vV1 if i & 1 else vV0), s(sB3, 2), 1024 * i))
    a("    v_and_b32 %s, 1, v0" % v(vT))
    a("    v_lshlrev_b32 %s, 4, %s" % (v(vT), v(vT)))
    a("    v_lshlrev_b32 %s, %s, %s" % (v(vT + 1), v(vT), v(vT + 2)) if False else
      "    v_mov_b32 %s, 0xffff" % v(vT + 1))
    a("    v_lshlrev_b32 %s, %s, %s" % (v(vT + 1), v(vT), v(vT + 1)))
    a("    v_lshrrev_b32 %s, 1, %s" % (v(vT), v(vL7)))
    for r in range(4):
        a("    v_cmp_eq_u32 vcc, %d, %s" % (r, v(vT)))
        a("    v_cndmask_b32 %s, 0, %s, vcc" % (v(vM + r), v(vT + 1)))
    a("    v_lshrrev_b32 %s, 5, v0" % v(vT))
    a("    s_lshl_b32 %s, %s, 1" % (s(sT0), s(sW)))
    a("    v_add_u32 %s, %s, %s" % (v(vT), s(sT0), v(vT)))
    a("    v_mul_u32_u24 %s, 272, %s" % (v(vT), v(vT)))
    a("    v_and_b32 %s, 1, %s" % (v(vT + 1), v(vG)))
    a("    v_lshl_or_b32 %s, %s, 1, %s" % (v(vT + 1), v(vL7), v(vT + 1)))
    a("    v_lshl_add_u32 %s, %s, 4, %s" % (v(vT), v(vT + 1), v(vT)))
    a("    v_add_u32 %s, 0x%x, %s" % (v(vRedW), LRED, v(vT)))
    a("    v_lshrrev_b32 %s, 2, v0" % v(vC4))
    a("    v_lshlrev_b32 %s, 4, %s" % (v(vC4), v(vC4)))
    a("    v_and_b32 %s, 3, v0" % v(vT))
    a("    v_mul_u32_u24 %s, 1088, %s" % (v(vT), v(vT)))
    a("    v_add_u32 %s, %s, %s" % (v(vT), v(vC4), v(vT)))
    a("    v_add_u32 %s, 0x%x, %s" % (v(vRedR), LRED, v(vT)))
    a("    s_mov_b32 %s, 0xffffff00" % s(sM8))
    a("    s_mov_b32 %s, 0xfffffc00" % s(sM10))

    vXu = V(8, 4)
    a("    s_waitcnt vmcnt(%d)" % (2 + NK0))
    stamp(1)
    for i in range(4):
        a("    v_lshlrev_b32 %s, 16, %s" % (v(vXu + 2 * i), v(vXf + i)))
        a("    v_and_b32 %s, 0xffff0000, %s" % (v(vXu + 2 * i + 1), v(vXf + i)))
    for i in range(4):
        a("    v_add_f32 %s, %s, %s" % (v(vT + i), v(vXu + 2 * i), v(vXu + 2 * i + 1)))
    a("    v_add_f32 %s, %s, %s" % (v(vT), v(vT), v(vT + 1)))
    a("    v_add_f32 %s, %s, %s" % (v(vT + 2), v(vT + 2), v(vT + 3)))
    a("    v_add_f32 %s, %s, %s" % (v(vT), v(vT), v(vT + 2)))
    a("    v_mul_f32 %s, 0x3b000000, %s" % (v(vT), v(vT)))
    wavesum_to_sgpr(vT, sMean)
    for i in range(8):
        a("    v_subrev_f32 %s, %s, %s" % (v(vXu + i), s(sMean), v(vXu + i)))
    a("    v_mul_f32 %s, %s, %s" % (v(vT), v(vXu), v(vXu)))
    a("    v_mul_f32 %s, %s, %s" % (v(vT + 1), v(vXu + 1), v(vXu + 1)))
    for i in range(2, 8):
        a("    v_fmac_f32 %s, %s, %s" % (v(vT + (i & 1)), v(vXu + i), v(vXu + i)))
    a("    v_add_f32 %s, %s, %s" % (v(vT), v(vT), v(vT + 1)))
    a("    v_mul_f32 %s, 0x3b000000, %s" % (v(vT), v(vT)))
    wavesum_to_sgpr(vT, sVar)
    a("    v_mov_b32 %s, %s" % (v(vT + 1), s(sMean)))
    bf16r(vT + 1, vT + 1)
    a("    v_mov_b32 %s, %s" % (v(vT), s(sVar)))
    bf16r(vT, vT)
    a("    v_add_f32 %s, 0x3727c5ac, %s" % (v(vT), v(vT)))
    bf16r(vT, vT)
    a("    v_sqrt_f32 %s, %s" % (v(vT), v(vT)))
    bf16r(vT, vT)
    a("    v_rcp_f32 %s, %s" % (v(vT + 2), v(vT)))
    a("    v_lshlrev_b32 %s, 16, %s" % (v(vT + 3), v(vXs)))
    a("    v_and_b32 %s, 0xffff0000, %s" % (v(vT + 4), v(vXs)))
    a("    v_sub_f32 %s, %s, %s" % (v(vT + 3), v(vT + 3), v(vT + 1)))
    a("    v_sub_f32 %s, %s, %s" % (v(vT + 4), v(vT + 4), v(vT + 1)))
    bf16r(vT + 3, vT + 3)
    bf16r(vT + 4, vT + 4)
    vA = V(8, 4)
    for i in range(2):
        y, q = vT + 3 + i, vT + 5 + i
        a("    v_mul_f32 %s, %s, %s" % (v(q), v(y), v(vT + 2)))
        a("    v_fma_f32 %s, -%s, %s, %s" % (v(y), v(q), v(vT), v(y)))
        a("    v_fmac_f32 %s, %s, %s" % (v(q), v(y), v(vT + 2)))
        a("    v_cvt_pk_bf16_f32 %s, %s, %s" % (v(q), v(q), v(q)))
        for r in range(4):
            a("    v_and_b32 %s, %s, %s" % (v(vA + 4 * i + r), v(q), v(vM + r)))
    for i in range(NK0, 4):
        kload(i)
    a("    s_mov_b32 m0, %s" % s(sTmp))
    for i in range(NV0):
        vload(i)
    attn_addresses()
    a("    s_waitcnt lgkmcnt(0)")
    a("    s_add_u32 %s, %s, 1" % (s(sT32), s(sE)))
    a("    s_and_b32 %s, %s, 0xff" % (s(sTag8), s(sT32)))
    a("    s_and_b32 %s, %s, 0x3ff" % (s(sTag10), s(sT32)))
    a("    v_mov_b32 %s, %s" % (v(vTag8), s(sTag8)))
    a("    v_mov_b32 %s, %s" % (v(vTag10), s(sTag10)))
    a("    s_waitcnt vmcnt(%d)" % (4 + NV0))
    stamp(2)
    a("    v_mfma_f32_16x16x32_bf16 %s, %s, %s, 0" % (v(vD, 4), v(vA, 4), v(vW, 4)))
    a("    v_mfma_f32_16x16x32_bf16 %s, %s, %s, %s" % (v(vD, 4), v(vA + 4, 4), v(vW + 4, 4), v(vD, 4)))

    def red_publish(tagv, mask, rnd, basepair, label):
        setexec(0x00FF00FF, 0xFF00FF00)
        a("    ds_write_b128 %s, %s" % (v(vRedW), v(vD, 4)))
        setexec(0xFFFFFFFF, 0xFFFFFFFF)
        a("    s_waitcnt lgkmcnt(0)")
        a("    s_barrier")
        a("    s_cmp_lg_u32 %s, 0" % s(sW))
        a("    s_cbranch_scc1 %s" % label)
        m = V.mark()
        r = V(16, 4)
        for i in range(4):
            a("    ds_read_b128 %s, %s offset:%d" % (v(r + 4 * i, 4), v(vRedR), 272 * i))
        a("    s_waitcnt lgkmcnt(2)")
        a("    v_pk_add_f32 %s, %s, %s" % (v(r, 2), v(r, 2), v(r + 4, 2)))
        a("    v_pk_add_f32 %s, %s, %s" % (v(r + 2, 2), v(r + 2, 2), v(r + 6, 2)))
        a("    s_waitcnt lgkmcnt(0)")
        a("    v_pk_add_f32 %s, %s, %s" % (v(r + 8, 2), v(r + 8, 2), v(r + 12, 2)))
        a("    v_pk_add_f32 %s, %s, %s" % (v(r + 10, 2), v(r + 10, 2), v(r + 14, 2)))
        a("    v_pk_add_f32 %s, %s, %s" % (v(r, 2), v(r, 2), v(r + 8, 2)))
        a("    v_pk_add_f32 %s, %s, %s" % (v(r + 2, 2), v(r + 2, 2), v(r + 10, 2)))
        for perm in ("[1,0,3,2]", "[2,3,0,1]"):
            for i in range(4):
                a("    v_add_f32_dpp %s, %s, %s quad_perm:%s %s" % (v(r + i), v(r + i), v(r + i), perm, DPP))
        for i in range(4):
            if rnd:
                a("    v_add_u32 %s, 0x%x, %s" % (v(r + i), rnd, v(r + i)))
        for i in range(4):
            a("    v_and_or_b32 %s, %s, %s, %s" % (v(r + i), v(r + i), s(mask), v(tagv)))
        setexec(0x11111111, 0x11111111)
        a("    global_store_dwordx4 %s, %s, %s sc1" % (v(vC4), v(r, 4), s(basepair, 2)))
        setexec(0xFFFFFFFF, 0xFFFFFFFF)
        V.release(m)

    a("    s_lshl_b32 %s, %s, 13" % (s(sT0), s(sH)))
    a("    s_add_u32 %s, %s, 0x%x" % (s(sT0), s(sT0), S1))
    a("    s_lshl_b32 %s, %s, 8" % (s(sT1), s(sJ)))
    a("    s_add_u32 %s, %s, %s" % (s(sT1), s(sT1), s(sT0)))
    base(sB0, sWS, s(sT1))
    a("    s_lshl_b32 %s, %s, 8" % (s(sT1), s(sW)))
    a("    s_add_u32 %s, %s, %s" % (s(sT1), s(sT1), s(sT0)))
    base(sB1, sWS, s(sT1))
    V.release(mk)
    red_publish(vTag8, sM8, 0x80, sB0, "L_QPUB")
    a("L_QPUB:")
    if opt.get("b1b", 1):
        a("    s_barrier")
    stamp(3)
    for i in range(NV0, NV1):
        vload(i)
    vQ = V(4, 4)

    def qload():
        a("    global_load_dwordx4 %s, %s, %s sc1" % (v(vQ, 4), v(vQo), s(sB1, 2)))
    OB = opt.get("ob", 1)
    if OB:
        a("    s_barrier")
    qload()
    if OB and NV1 < 4:
        a("    s_barrier")
    for i in range(NV1, 4):
        vload(i)
    if OB:
        a("    s_barrier")
    NVA = 4 - NV1
    a("    s_cmp_lt_u32 %s, 16" % s(sJ))
    a("    s_cbranch_scc1 L_ROLE_WO")
    a("    s_cmp_lt_u32 %s, 4" % s(sH))
    a("    s_cbranch_scc1 L_ROLE_FFN")
    a("    s_cmp_lt_u32 %s, 28" % s(sJ))
    a("    s_cbranch_scc1 L_ROLE_FFN")

    def attention(ntail):
        m0 = V.mark()
        vKa = V(16, 4)
        vQb = V(16, 4)
        vPb = vQb
        vVa = vKa
        vS = V(4, 4)
        vMx, vMl = V(), V(4, 4)
        def kreads():
            for i in range(4):
                a("    ds_read_b128 %s, %s" % (v(vKa + 4 * i, 4), v(vAk + i)))

        def qcheck():
            tagcheck([vQ + i for i in range(4)], sTag8, vT)
            a("    v_and_b32 %s, 0xff, %s" % (v(vT), v(vT)))
            a("    v_cmp_ne_u32 vcc, 0, %s" % v(vT))
        poll(qload, qcheck, NVA + ntail, pre=kreads)
        stamp(4)
        for i in range(4):
            a("    v_and_b32 %s, %s, %s" % (v(vQ + i), s(sM8), v(vQ + i)))
        treduce4(vQ)
        a("    v_cvt_pk_bf16_f32 %s, %s, %s" % (v(vQ), v(vQ), v(vQ)))
        a("    ds_write_b16 %s, %s" % (v(vAqw), v(vQ)))
        a("    s_waitcnt lgkmcnt(0)")
        a("    s_barrier")
        for i in range(4):
            a("    ds_read_b128 %s, %s offset:%d" % (v(vQb + 4 * i, 4), v(vAq), 64 * i))
        for i in range(4):
            a("    s_waitcnt lgkmcnt(%d)" % (0 if prof else 3 - i))
            a("    v_mfma_f32_16x16x32_bf16 %s, %s, %s, %s" %
              (v(vD, 4), v(vKa + 4 * i, 4), v(vQb + 4 * i, 4), "0" if i == 0 else v(vD, 4)))
        a("    v_cvt_pk_bf16_f32 %s, %s, %s" % (v(vT), v(vD), v(vD + 1)))
        a("    v_cvt_pk_bf16_f32 %s, %s, %s" % (v(vT + 1), v(vD + 2), v(vD + 3)))
        for rnd in range(2):
            for i in range(2):
                a("    v_lshlrev_b32 %s, 16, %s" % (v(vS + 2 * i), v(vT + i)))
                a("    v_and_b32 %s, 0xffff0000, %s" % (v(vS + 2 * i + 1), v(vT + i)))
            if rnd == 0:
                for i in range(4):
                    a("    v_mul_f32 %s, 0x3db504f3, %s" % (v(vS + i), v(vS + i)))
                a("    v_cvt_pk_bf16_f32 %s, %s, %s" % (v(vT), v(vS), v(vS + 1)))
                a("    v_cvt_pk_bf16_f32 %s, %s, %s" % (v(vT + 1), v(vS + 2), v(vS + 3)))
        a("    v_max3_f32 %s, %s, %s, %s" % (v(vMx), v(vS), v(vS + 1), v(vS + 2)))
        a("    v_max_f32 %s, %s, %s" % (v(vMx), v(vMx), v(vS + 3)))
        for sw in ("16", "32"):
            a("    v_mov_b32 %s, %s" % (v(vT), v(vMx)))
            a("    v_permlane%s_swap_b32 %s, %s" % (sw, v(vMx), v(vT)))
            a("    v_max_f32 %s, %s, %s" % (v(vMx), v(vMx), v(vT)))
        setexec(0xF, 0)
        a("    ds_write_b32 %s, %s" % (v(vAmw), v(vMx)))
        setexec(0xFFFFFFFF, 0xFFFFFFFF)
        a("    s_waitcnt lgkmcnt(0)")
        a("    s_barrier")
        a("    ds_read_b128 %s, %s" % (v(vT, 4), v(vAmr)))
        a("    ds_read_b128 %s, %s offset:16" % (v(vT + 4, 4), v(vAmr)))
        a("    s_waitcnt lgkmcnt(0)")
        a("    v_max3_f32 %s, %s, %s, %s" % (v(vT), v(vT), v(vT + 1), v(vT + 2)))
        a("    v_max3_f32 %s, %s, %s, %s" % (v(vT + 4), v(vT + 4), v(vT + 5), v(vT + 6)))
        a("    v_max3_f32 %s, %s, %s, %s" % (v(vT), v(vT), v(vT + 3), v(vT + 7)))
        a("    v_max_f32 %s, %s, %s" % (v(vMl), v(vT), v(vT + 4)))
        for i in range(4):
            a("    v_sub_f32 %s, %s, %s" % (v(vS + i), v(vS + i), v(vMl)))
        for i in range(4):
            a("    v_mul_f32 %s, 0x3fb8aa3b, %s" % (v(vS + i), v(vS + i)))
        for i in range(4):
            a("    v_exp_f32 %s, %s" % (v(vS + i), v(vS + i)))
        a("    v_add_f32 %s, %s, %s" % (v(vT), v(vS), v(vS + 1)))
        a("    v_add_f32 %s, %s, %s" % (v(vT + 1), v(vS + 2), v(vS + 3)))
        a("    v_cvt_pk_bf16_f32 %s, %s, %s" % (v(vT + 2), v(vS), v(vS + 1)))
        a("    v_cvt_pk_bf16_f32 %s, %s, %s" % (v(vT + 3), v(vS + 2), v(vS + 3)))
        a("    v_add_f32 %s, %s, %s" % (v(vT), v(vT), v(vT + 1)))
        setexec(0x000F000F, 0x000F000F)
        a("    ds_write_b64 %s, %s" % (v(vApw), v(vT + 2, 2)))
        a("    ds_write_b32 %s, %s" % (v(vAlw), v(vT)))
        setexec(0xFFFFFFFF, 0xFFFFFFFF)
        a("    s_waitcnt lgkmcnt(0)")
        a("    s_barrier")
        for i in range(4):
            a("    ds_read_b128 %s, %s offset:%d" % (v(vPb + 4 * i, 4), v(vApr), 64 * i))
        uid[0] += 1
        u = uid[0]
        a("    s_cmp_lg_u32 %s, 0" % s(sW))
        a("    s_cbranch_scc1 L_NOML%d" % u)
        a("    ds_read_b64 %s, %s" % (v(vT, 2), v(vAlr)))
        a("    v_mov_b32 %s, %s" % (v(vMl + 2), s(sT32)))
        a("    v_mov_b32 %s, %s" % (v(vMl + 3), s(sT32)))
        a("    s_waitcnt lgkmcnt(0)")
        a("    v_add_f32 %s, %s, %s" % (v(vMl + 1), v(vT), v(vT + 1)))
        for sh in (1, 2, 4, 8):
            a("    v_add_f32_dpp %s, %s, %s row_ror:%d %s" % (v(vMl + 1), v(vMl + 1), v(vMl + 1), sh, DPP))
        a("L_NOML%d:" % u)
        a("    s_waitcnt vmcnt(%d)" % ntail)
        a("    s_barrier")
        stamp(5)
        for t in range(4):
            for hh in range(2):
                a("    ds_read_b64_tr_b16 %s, %s offset:%d" % (v(vVa + 4 * t + 2 * hh, 2), v(vAv), 8192 * t + 4096 * hh))
        for t in range(4):
            a("    s_waitcnt lgkmcnt(%d)" % (0 if prof else 6 - 2 * t))
            a("    v_mfma_f32_16x16x32_bf16 %s, %s, %s, %s" %
              (v(vD, 4), v(vVa + 4 * t, 4), v(vPb + 4 * t, 4), "0" if t == 0 else v(vD, 4)))
        setexec(0x000F000F, 0x000F000F)
        for i in range(4):
            a("    v_and_or_b32 %s, %s, %s, %s" % (v(vD + i), v(vD + i), s(sM10), v(vTag10)))
        a("    global_store_dwordx4 %s, %s, %s sc1" % (v(vAo), v(vD, 4), s(sBo, 2)))
        a("    s_cmp_lg_u32 %s, 0" % s(sW))
        a("    s_cbranch_scc1 L_MLD%d" % u)
        setexec(0x00020001, 0x00080004)
        a("    global_store_dwordx4 %s, %s, %s sc1" % (v(vAml), v(vMl, 4), s(sBml, 2)))
        a("L_MLD%d:" % u)
        setexec(0xFFFFFFFF, 0xFFFFFFFF)
        stamp(6)
        V.release(m0)

    attention(0)
    finish()

    a("L_ROLE_WO:")
    mrole = V.mark()
    a("    s_lshl_b32 %s, %s, 9" % (s(sT0), s(sH)))
    a("    s_lshr_b32 %s, %s, 3" % (s(sT1), s(sJ)))
    a("    s_lshl_b32 %s, %s, 8" % (s(sT1), s(sT1)))
    a("    s_add_u32 %s, %s, %s" % (s(sT0), s(sT0), s(sT1)))
    a("    s_lshl_b32 %s, %s, 5" % (s(sT1), s(sW)))
    a("    s_add_u32 %s, %s, %s" % (s(sT0), s(sT0), s(sT1)))
    a("    s_lshl_b32 %s, %s, 10" % (s(sT0), s(sT0)))
    a("    s_and_b32 %s, %s, 7" % (s(sT1), s(sJ)))
    a("    s_lshl_b32 %s, %s, 7" % (s(sT1), s(sT1)))
    a("    s_add_u32 %s, %s, %s" % (s(sT0), s(sT0), s(sT1)))
    base(sB4, sWO, s(sT0))
    a("    v_lshlrev_b32 %s, 4, %s" % (v(vT), v(vL7)))
    a("    v_lshl_or_b32 %s, %s, 12, %s" % (v(vT), v(vL3), v(vT)))
    for i in range(4):
        a("    global_load_dwordx4 %s, %s, %s offset:%d nt" % (v(vW + 4 * i, 4), v(vT), s(sB4, 2), 1024 * i))
    attention(4)
    vO = V(16, 4)
    vML = V(16, 4)
    vOo = V(4)
    vMLo = V()
    vA = V(16, 4)
    a("    s_lshr_b32 %s, %s, 3" % (s(sT0), s(sJ)))
    a("    s_lshl_b32 %s, %s, 1" % (s(sT0), s(sT0)))
    a("    s_lshr_b32 %s, %s, 2" % (s(sT1), s(sW)))
    a("    s_add_u32 %s, %s, %s" % (s(sT0), s(sT0), s(sT1)))
    a("    s_lshl_b32 %s, %s, 9" % (s(sT0), s(sT0)))
    a("    s_lshl_b32 %s, %s, 11" % (s(sT1), s(sH)))
    a("    s_add_u32 %s, %s, %s" % (s(sT1), s(sT1), s(sT0)))
    a("    s_add_u32 %s, %s, 0x%x" % (s(sT1), s(sT1), S2ML))
    base(sB0, sWS, s(sT1))
    a("    s_lshl_b32 %s, %s, 16" % (s(sT1), s(sH)))
    a("    s_add_u32 %s, %s, %s" % (s(sT1), s(sT1), s(sT0)))
    a("    s_and_b32 %s, %s, 3" % (s(sT0), s(sW)))
    a("    s_lshl_b32 %s, %s, 7" % (s(sT0), s(sT0)))
    a("    s_add_u32 %s, %s, %s" % (s(sT1), s(sT1), s(sT0)))
    a("    s_add_u32 %s, %s, 0x%x" % (s(sT1), s(sT1), S2O))
    base(sB1, sWS, s(sT1))
    a("    v_lshlrev_b32 %s, 4, %s" % (v(vMLo), v(vL7)))
    a("    v_lshlrev_b32 %s, 4, %s" % (v(vT), v(vL3)))
    a("    v_lshl_or_b32 %s, %s, 11, %s" % (v(vOo), v(vL7), v(vT)))
    for i in (1, 2, 3):
        a("    v_add_u32 %s, 0x%x, %s" % (v(vOo + i), 16384 * i, v(vOo)))

    def mlloads():
        for i in range(4):
            a("    global_load_dwordx3 %s, %s, %s offset:%d sc1" % (v(vML + 4 * i, 3), v(vMLo), s(sB0, 2), 128 * i))

    def oloads():
        for i in range(4):
            a("    global_load_dwordx4 %s, %s, %s sc1" % (v(vO + 4 * i, 4), v(vOo + i), s(sB1, 2)))
    a("    s_barrier")
    mlloads()
    a("    s_lshl_b32 %s, %s, 12" % (s(sT0), s(sH)))
    a("    s_lshl_b32 %s, %s, 8" % (s(sT1), s(sJ)))
    a("    s_add_u32 %s, %s, %s" % (s(sT0), s(sT0), s(sT1)))
    a("    s_add_u32 %s, %s, 0x%x" % (s(sT0), s(sT0), S3))
    base(sB2, sWS, s(sT0))

    def mlcheck():
        tagcheck([vML + 4 * i + 2 for i in range(4)], sT32, vT)
        a("    v_cmp_ne_u32 vcc, 0, %s" % v(vT))
    poll(mlloads, mlcheck, 0)
    oloads()
    stamp(11)
    a("    v_max3_f32 %s, %s, %s, %s" % (v(vT), v(vML), v(vML + 4), v(vML + 8)))
    a("    v_max_f32 %s, %s, %s" % (v(vT), v(vT), v(vML + 12)))
    for pat in ("quad_perm:[1,0,3,2]", "quad_perm:[2,3,0,1]", "row_half_mirror"):
        a("    v_max_f32_dpp %s, %s, %s %s %s" % (v(vT), v(vT), v(vT), pat, DPP))
    for i in range(4):
        a("    v_sub_f32 %s, %s, %s" % (v(vML + 4 * i), v(vML + 4 * i), v(vT)))
    for i in range(4):
        a("    v_mul_f32 %s, 0x3fb8aa3b, %s" % (v(vML + 4 * i), v(vML + 4 * i)))
    for i in range(4):
        a("    v_exp_f32 %s, %s" % (v(vML + 4 * i), v(vML + 4 * i)))
    a("    v_mul_f32 %s, %s, %s" % (v(vT), v(vML), v(vML + 1)))
    for i in range(1, 4):
        a("    v_fmac_f32 %s, %s, %s" % (v(vT), v(vML + 4 * i), v(vML + 4 * i + 1)))
    for pat in ("quad_perm:[1,0,3,2]", "quad_perm:[2,3,0,1]", "row_half_mirror"):
        a("    v_add_f32_dpp %s, %s, %s %s %s" % (v(vT), v(vT), v(vT), pat, DPP))
    a("    v_rcp_f32 %s, %s" % (v(vT), v(vT)))
    for i in range(4):
        a("    v_mul_f32 %s, %s, %s" % (v(vML + 4 * i), v(vML + 4 * i), v(vT)))

    def ocheck():
        tagcheck([vO + i for i in range(16)], sTag10, vT)
        a("    v_and_b32 %s, 0x3ff, %s" % (v(vT), v(vT)))
        a("    v_cmp_ne_u32 vcc, 0, %s" % v(vT))
    poll(oloads, ocheck, 0)
    stamp(7)
    for i in range(16):
        a("    v_and_b32 %s, %s, %s" % (v(vO + i), s(sM10), v(vO + i)))
    for r in range(4):
        a("    v_mul_f32 %s, %s, %s" % (v(vT + r), v(vO + r), v(vML)))
    for i in range(1, 4):
        for r in range(4):
            a("    v_fmac_f32 %s, %s, %s" % (v(vT + r), v(vO + 4 * i + r), v(vML + 4 * i)))
    for pat in ("quad_perm:[1,0,3,2]", "quad_perm:[2,3,0,1]", "row_half_mirror"):
        for r in range(4):
            a("    v_add_f32_dpp %s, %s, %s %s %s" % (v(vT + r), v(vT + r), v(vT + r), pat, DPP))
    for r in range(4):
        a("    v_cvt_pk_bf16_f32 %s, %s, %s" % (v(vT + r), v(vT + r), v(vT + r)))
    for i in range(4):
        for r in range(4):
            a("    v_and_b32 %s, %s, %s" % (v(vA + 4 * i + r), v(vT + i), v(vM + r)))
        if i:
            a("    v_mfma_f32_16x16x32_bf16 %s, %s, %s, %s" %
              (v(vD, 4), v(vA + 4 * i - 4, 4), v(vW + 4 * i - 4, 4), "0" if i == 1 else v(vD, 4)))
    a("    v_mfma_f32_16x16x32_bf16 %s, %s, %s, %s" % (v(vD, 4), v(vA + 12, 4), v(vW + 12, 4), v(vD, 4)))
    red_publish(vTag10, sM10, 0, sB2, "L_FIN")
    stamp(8)
    a("    s_and_b32 %s, %s, 3" % (s(sT0), s(sJ)))
    a("    s_cmp_lg_u32 %s, 0" % s(sT0))
    a("    s_cbranch_scc1 L_FIN")
    V.release(mrole)
    vHs = V(4, 4)
    vY = V(28, 4)
    vXc, vHo, vYo, vCo = V(), V(), V(), V()
    a("    s_lshl_b32 %s, %s, 2" % (s(sT0), s(sH)))
    a("    s_lshr_b32 %s, %s, 2" % (s(sT1), s(sJ)))
    a("    s_add_u32 %s, %s, %s" % (s(sT0), s(sT0), s(sT1)))
    a("    s_lshl_b32 %s, %s, 5" % (s(sT1), s(sT0)))
    base(sB0, sX, s(sT1))
    base(sB3, sOUT, s(sT1))
    a("    s_lshl_b32 %s, %s, 6" % (s(sT1), s(sT0)))
    a("    s_add_u32 %s, %s, 0x%x" % (s(sT1), s(sT1), S3))
    base(sB1, sWS, s(sT1))
    a("    s_mul_i32 %s, %s, 7168" % (s(sT1), s(sT0)))
    a("    s_add_u32 %s, %s, 0x%x" % (s(sT1), s(sT1), S4 + 3072))
    base(sB2, sWS, s(sT1))
    a("    v_and_b32 %s, 3, v0" % v(vT))
    a("    v_lshl_add_u32 %s, %s, 2, %s" % (v(vCo), v(vT), v(vG)))
    a("    v_lshlrev_b32 %s, 1, %s" % (v(vCo), v(vCo)))
    a("    v_lshlrev_b32 %s, 4, %s" % (v(vT), v(vT)))
    a("    v_lshl_or_b32 %s, %s, 7, %s" % (v(vHo), v(vC4), v(vT)))
    a("    v_lshlrev_b32 %s, 4, v0" % v(vYo))
    a("    global_load_ushort %s, %s, %s" % (v(vXc), v(vCo), s(sB0, 2)))

    def hload():
        a("    global_load_dwordx4 %s, %s, %s sc1" % (v(vHs, 4), v(vHo), s(sB1, 2)))

    def hcheck():
        tagcheck([vHs + i for i in range(4)], sTag10, vT)
        a("    v_and_b32 %s, 0x3ff, %s" % (v(vT), v(vT)))
        a("    v_cmp_ne_u32 vcc, 0, %s" % v(vT))
    hload()
    poll(hload, hcheck, 0)

    def yloads():
        for n in range(7):
            a("    global_load_dwordx4 %s, %s, %s offset:%d sc1" % (v(vY + 4 * n, 4), v(vYo), s(sB2, 2), 1024 * n - 3072))
    yloads()
    for i in range(4):
        a("    v_and_b32 %s, %s, %s" % (v(vHs + i), s(sM10), v(vHs + i)))
    treduce4(vHs)
    for sh in (4, 8):
        a("    v_add_f32_dpp %s, %s, %s row_ror:%d %s" % (v(vHs), v(vHs), v(vHs), sh, DPP))
    bf16r(vHs, vHs)
    a("    v_lshlrev_b32 %s, 16, %s" % (v(vXc), v(vXc)))
    a("    v_add_f32 %s, %s, %s" % (v(vHs), v(vHs), v(vXc)))
    bf16r(vHs, vHs)

    def ycheck():
        tagcheck([vY + i for i in range(28)], sTag10, vT)
        a("    v_and_b32 %s, 0x3ff, %s" % (v(vT), v(vT)))
        a("    v_cmp_ne_u32 vcc, 0, %s" % v(vT))
    poll(yloads, ycheck, 0)
    stamp(9)
    for i in range(28):
        a("    v_and_b32 %s, %s, %s" % (v(vY + i), s(sM10), v(vY + i)))
    for (d, x) in ((0, 4), (8, 12), (16, 20), (0, 8), (16, 24), (0, 16)):
        a("    v_pk_add_f32 %s, %s, %s" % (v(vY + d, 2), v(vY + d, 2), v(vY + x, 2)))
        a("    v_pk_add_f32 %s, %s, %s" % (v(vY + d + 2, 2), v(vY + d + 2, 2), v(vY + x + 2, 2)))
    treduce4(vY)
    for sh in (4, 8):
        a("    v_add_f32_dpp %s, %s, %s row_ror:%d %s" % (v(vY), v(vY), v(vY), sh, DPP))
    bf16r(vY, vY)
    a("    v_add_f32 %s, %s, %s" % (v(vY), v(vY), v(vHs)))
    a("    v_cvt_pk_bf16_f32 %s, %s, %s" % (v(vY), v(vY), v(vY)))
    setexec(0x000F000F, 0x000F000F)
    a("    global_store_short %s, %s, %s" % (v(vCo), v(vY), s(sB3, 2)))
    a("    s_cmp_lg_u32 s2, 0")
    a("    s_cbranch_scc1 L_FIN")
    setexec(1, 0)
    a("    v_mov_b32 %s, 0" % v(vT))
    a("    v_mov_b32 %s, %s" % (v(vT + 1), s(sT32)))
    a("    global_store_dword %s, %s, %s sc1" % (v(vT), v(vT + 1), s(sWS, 2)))
    a("L_FIN:")
    finish()
    V.release(mrole)

    a("L_ROLE_FFN:")
    a("    s_and_b32 %s, %s, 3" % (s(sU), s(sJ)))
    a("    s_min_u32 %s, %s, 4" % (s(sT0), s(sH)))
    a("    s_mul_i32 %s, %s, 3" % (s(sT1), s(sH)))
    a("    s_add_u32 %s, %s, %s" % (s(sT0), s(sT0), s(sT1)))
    a("    s_lshl_b32 %s, %s, 2" % (s(sT0), s(sT0)))
    a("    s_add_u32 %s, %s, %s" % (s(sT0), s(sT0), s(sJ)))
    a("    s_sub_u32 %s, %s, 16" % (s(sFI), s(sT0)))
    vGo = V()
    a("    v_lshrrev_b32 %s, 1, v0" % v(vT))
    a("    v_mul_u32_u24 %s, 3584, %s" % (v(vT), v(vT)))
    a("    v_and_b32 %s, 1, v0" % v(vT + 1))
    a("    v_lshl_add_u32 %s, %s, 4, %s" % (v(vGo), v(vT + 1), v(vT)))

    def quarter(n):
        a("    s_add_u32 %s, %s, %d" % (s(sT0), s(sU), n))
        a("    s_and_b32 %s, %s, 1" % (s(sT1), s(sT0)))
        a("    s_bfe_u32 %s, %s, 0x10001" % (s(sT0), s(sT0)))
        a("    s_lshl_b32 %s, %s, 1" % (s(sT2), s(sW)))
        a("    s_add_u32 %s, %s, %s" % (s(sT2), s(sT2), s(sT1)))
        a("    s_lshl_b32 %s, %s, 4" % (s(sT3), s(sT0)))
        a("    s_add_u32 %s, %s, %s" % (s(sT3), s(sT3), s(sT2)))
        a("    s_lshl_b32 %s, %s, 10" % (s(sT3), s(sT3)))
        a("    s_add_u32 %s, %s, 0x%x" % (s(sT3), s(sT3), LG))
        a("    s_mov_b32 m0, %s" % s(sT3))
        a("    s_mul_i32 %s, %s, %d" % (s(sT2), s(sT2), 32 * 3584))
        a("    s_lshl_b32 %s, %s, 5" % (s(sT1), s(sFI)))
        a("    s_add_u32 %s, %s, %s" % (s(sT2), s(sT2), s(sT1)))
        a("    s_cmp_eq_u32 %s, 0" % s(sT0))
        a("    s_cselect_b64 %s, %s, %s" % (s(sB4, 2), s(sWG, 2), s(sWU, 2)))
        base(sB4, sB4, s(sT2))
        a("    global_load_lds_dwordx4 %s, %s nt" % (v(vGo), s(sB4, 2)))
    NQ0 = opt.get("nq0", 1)
    for n in range(NQ0):
        quarter(n)
    attention(NQ0)
    a("    s_barrier")
    for n in range(NQ0, 4):
        quarter(n)
    a("    s_lshl_b32 %s, %s, 14" % (s(sT0), s(sFI)))
    a("    s_lshl_b32 %s, %s, 7" % (s(sT1), s(sW)))
    a("    s_add_u32 %s, %s, %s" % (s(sT0), s(sT0), s(sT1)))
    base(sB4, sWD, s(sT0))
    a("    s_lshl_b32 %s, %s, 11" % (s(sT1), s(sW)))
    a("    s_add_u32 %s, %s, 0x%x" % (s(sT2), s(sT1), LD))
    a("    s_mov_b32 m0, %s" % s(sT2))
    a("    v_lshlrev_b32 %s, 4, %s" % (v(vT), v(vL7)))
    a("    v_lshl_or_b32 %s, %s, 10, %s" % (v(vT), v(vL3), v(vT)))
    a("    v_add_u32 %s, 0x1c00, %s" % (v(vT + 1), v(vT)))
    a("    global_load_lds_dwordx4 %s, %s nt" % (v(vT), s(sB4, 2)))
    a("    global_load_lds_dwordx4 %s, %s offset:1024 nt" % (v(vT + 1), s(sB4, 2)))
    vXc = V()
    vHs = V(16, 4)
    vHo = V(4)
    vWg = V(16, 4)
    vWd = V(8, 4)
    vHb = V(8, 4)
    vDu = V(4, 4)
    vCs = V(4, 4)
    vMt = V(4)
    vB = V(8, 4)
    vAhw, vAhr, vAgw, vAgr, vAsw, vAsr, vAy = [V() for _ in range(7)]
    a("    s_lshl_b32 %s, %s, 7" % (s(sT0), s(sW)))
    base(sB0, sX, s(sT0))
    a("    v_lshl_add_u32 %s, %s, 2, %s" % (v(vT + 2), v(vJ), v(vG)))
    a("    v_lshlrev_b32 %s, 1, %s" % (v(vT + 2), v(vT + 2)))
    a("    global_load_ushort %s, %s, %s" % (v(vXc), v(vT + 2), s(sB0, 2)))
    a("    s_add_u32 %s, %s, 0x%x" % (s(sT2), s(sT0), LH))
    a("    v_add_u32 %s, %s, %s" % (v(vAhw), s(sT2), v(vT + 2)))
    a("    v_lshl_add_u32 %s, %s, 4, %s" % (v(vAhr), v(vG), s(sT2)))
    a("    s_add_u32 %s, %s, 0x%x" % (s(sT2), s(sT0), LGP))
    a("    v_lshl_add_u32 %s, %s, 4, %s" % (v(vAgw), v(vG), s(sT2)))
    a("    v_lshrrev_b32 %s, 3, %s" % (v(vT + 2), v(vJ)))
    a("    v_lshl_add_u32 %s, %s, 1, %s" % (v(vT + 2), v(vL7), v(vT + 2)))
    a("    v_lshlrev_b32 %s, 6, %s" % (v(vT + 2), v(vT + 2)))
    a("    v_lshl_add_u32 %s, %s, 4, %s" % (v(vT + 2), v(vG), v(vT + 2)))
    a("    v_add_u32 %s, 0x%x, %s" % (v(vAgr), LGP, v(vT + 2)))
    a("    s_lshl_b32 %s, %s, 3" % (s(sT2), s(sW)))
    a("    s_add_u32 %s, %s, 0x%x" % (s(sT2), s(sT2), LST))
    a("    v_mov_b32 %s, %s" % (v(vAsw), s(sT2)))
    a("    v_lshlrev_b32 %s, 3, %s" % (v(vT + 2), v(vL7)))
    a("    v_add_u32 %s, 0x%x, %s" % (v(vAsr), LST, v(vT + 2)))
    for t in range(4):
        a("    v_cmp_eq_u32 vcc, %d, %s" % (t, v(vJ)))
        a("    v_cndmask_b32 %s, 0, -1, vcc" % v(vMt + t))
    a("    s_lshl_b32 %s, %s, 8" % (s(sT0), s(sW)))
    a("    s_add_u32 %s, %s, 0x%x" % (s(sT0), s(sT0), S3))
    base(sB1, sWS, s(sT0))
    a("    v_lshlrev_b32 %s, 4, %s" % (v(vT + 2), v(vJ)))
    a("    v_lshl_or_b32 %s, %s, 11, %s" % (v(vHo), v(vG), v(vT + 2)))
    for i in (1, 2, 3):
        a("    v_add_u32 %s, 0x%x, %s" % (v(vHo + i), 8192 * i, v(vHo)))
    a("    s_mul_i32 %s, %s, %d" % (s(sT0), s(sW), 4 * 7168))
    a("    s_lshl_b32 %s, %s, 6" % (s(sT2), s(sFI)))
    a("    s_add_u32 %s, %s, %s" % (s(sT0), s(sT0), s(sT2)))
    a("    s_add_u32 %s, %s, 0x%x" % (s(sT0), s(sT0), S4))
    base(sB2, sWS, s(sT0))
    a("    v_mul_u32_u24 %s, 7168, %s" % (v(vT + 2), v(vJ)))
    a("    v_lshl_add_u32 %s, %s, 4, %s" % (v(vAy), v(vG), v(vT + 2)))
    a("    v_lshrrev_b32 %s, 2, %s" % (v(vT + 2), v(vJ)))
    a("    v_and_b32 %s, 3, v0" % v(vT + 3))
    a("    v_lshl_add_u32 %s, %s, 3, %s" % (v(vT + 4), v(vG), v(vT + 2)))
    a("    v_lshlrev_b32 %s, 5, %s" % (v(vT + 4), v(vT + 4)))
    a("    v_lshl_add_u32 %s, %s, 3, %s" % (v(vT + 4), v(vT + 3), v(vT + 4)))
    a("    s_add_u32 %s, %s, 0x%x" % (s(sT2), s(sT1), LG))
    a("    v_add_u32 %s, %s, %s" % (v(vT + 4), s(sT2), v(vT + 4)))
    a("    v_lshl_add_u32 %s, %s, 2, %s" % (v(vT + 5), v(vG), v(vT + 2)))
    a("    v_lshlrev_b32 %s, 7, %s" % (v(vT + 5), v(vT + 5)))
    a("    v_lshl_add_u32 %s, %s, 3, %s" % (v(vT + 5), v(vT + 3), v(vT + 5)))
    a("    s_add_u32 %s, %s, 0x%x" % (s(sT2), s(sT1), LD))
    a("    v_add_u32 %s, %s, %s" % (v(vT + 5), s(sT2), v(vT + 5)))
    for i in range(4):
        a("    v_mov_b32 %s, 0x3f803f80" % v(vHb + i))
    a("    s_waitcnt vmcnt(0)")
    stamp(7)

    def hloadsf():
        for i in range(4):
            a("    global_load_dwordx4 %s, %s, %s sc1" % (v(vHs + 4 * i, 4), v(vHo + i), s(sB1, 2)))
    hloadsf()
    for mat in range(2):
        for st in range(2):
            for hh in range(2):
                a("    ds_read_b64_tr_b16 %s, %s offset:%d" %
                  (v(vWg + 8 * mat + 4 * st + 2 * hh, 2), v(vT + 4), 16384 * mat + 1024 * st + 128 * hh))
    for t in range(4):
        a("    ds_read_b64_tr_b16 %s, %s offset:%d" % (v(vWd + 2 * t, 2), v(vT + 5), 32 * t))
    a("    v_lshlrev_b32 %s, 16, %s" % (v(vXc), v(vXc)))
    a("    s_waitcnt lgkmcnt(0)")
    def gate_up(b0, b1):
        a("    v_mfma_f32_16x16x32_bf16 %s, %s, %s, 0" % (v(vD, 4), v(vWg, 4), v(b0, 4)))
        a("    v_mfma_f32_16x16x32_bf16 %s, %s, %s, 0" % (v(vDu, 4), v(vWg + 8, 4), v(b0, 4)))
        a("    v_mfma_f32_16x16x32_bf16 %s, %s, %s, %s" % (v(vD, 4), v(vWg + 4, 4), v(b1, 4), v(vD, 4)))
        a("    v_mfma_f32_16x16x32_bf16 %s, %s, %s, %s" % (v(vDu, 4), v(vWg + 12, 4), v(b1, 4), v(vDu, 4)))
    gate_up(vHb, vHb)
    setexec(0x00010001, 0x00010001)
    a("    ds_write_b128 %s, %s offset:%d" % (v(vAgw), v(vD, 4), LCS - LGP))
    a("    ds_write_b128 %s, %s offset:%d" % (v(vAgw), v(vDu, 4), LCS - LGP + 64))
    setexec(0xFFFFFFFF, 0xFFFFFFFF)
    a("    s_waitcnt lgkmcnt(0)")
    a("    s_barrier")
    a("    ds_read_b128 %s, %s offset:%d" % (v(vCs, 4), v(vAgr), LCS - LGP))
    a("    s_waitcnt lgkmcnt(0)")
    for pat in ("quad_perm:[1,0,3,2]", "quad_perm:[2,3,0,1]", "row_half_mirror"):
        for r in range(4):
            a("    v_add_f32_dpp %s, %s, %s %s %s" % (v(vCs + r), v(vCs + r), v(vCs + r), pat, DPP))

    def hcheckf():
        tagcheck([vHs + i for i in range(16)], sTag10, vT)
        a("    v_and_b32 %s, 0x3ff, %s" % (v(vT), v(vT)))
        a("    v_cmp_ne_u32 vcc, 0, %s" % v(vT))
    poll(hloadsf, hcheckf, 0)
    stamp(8)
    for i in range(16):
        a("    v_and_b32 %s, %s, %s" % (v(vHs + i), s(sM10), v(vHs + i)))
    for (d, x) in ((0, 4), (8, 12), (0, 8)):
        a("    v_pk_add_f32 %s, %s, %s" % (v(vHs + d, 2), v(vHs + d, 2), v(vHs + x, 2)))
        a("    v_pk_add_f32 %s, %s, %s" % (v(vHs + d + 2, 2), v(vHs + d + 2, 2), v(vHs + x + 2, 2)))
    treduce4(vHs)
    bf16r(vHs, vHs)
    a("    v_add_f32 %s, %s, %s" % (v(vHs), v(vHs), v(vXc)))
    a("    v_cvt_pk_bf16_f32 %s, %s, %s" % (v(vHs), v(vHs), v(vHs)))
    a("    ds_write_b16 %s, %s" % (v(vAhw), v(vHs)))
    a("    v_and_b32 %s, 0xffff0000, %s" % (v(vT), v(vHs)))
    a("    v_mul_f32 %s, %s, %s" % (v(vT + 1), v(vT), v(vT)))
    a("    s_waitcnt lgkmcnt(0)")
    a("    ds_read_b128 %s, %s" % (v(vHb, 4), v(vAhr)))
    a("    ds_read_b128 %s, %s offset:64" % (v(vHb + 4, 4), v(vAhr)))
    for sh in (1, 2, 4, 8):
        for r in range(2):
            a("    v_add_f32_dpp %s, %s, %s row_ror:%d %s" % (v(vT + r), v(vT + r), v(vT + r), sh, DPP))
    for pat in ("row_bcast:15 row_mask:0xa", "row_bcast:31 row_mask:0xc"):
        for r in range(2):
            a("    v_add_f32_dpp %s, %s, %s %s bank_mask:0xf" % (v(vT + r), v(vT + r), v(vT + r), pat))
    a("    s_waitcnt lgkmcnt(0)")
    gate_up(vHb, vHb + 4)
    setexec(0, 0x80000000)
    a("    ds_write_b64 %s, %s" % (v(vAsw), v(vT, 2)))
    setexec(0x00010001, 0x00010001)
    a("    ds_write_b128 %s, %s" % (v(vAgw), v(vD, 4)))
    a("    ds_write_b128 %s, %s offset:64" % (v(vAgw), v(vDu, 4)))
    setexec(0xFFFFFFFF, 0xFFFFFFFF)
    a("    s_waitcnt lgkmcnt(0)")
    a("    s_barrier")
    a("    ds_read_b64 %s, %s" % (v(vT, 2), v(vAsr)))
    a("    ds_read_b128 %s, %s" % (v(vD, 4), v(vAgr)))
    a("    s_waitcnt lgkmcnt(0)")
    for pat in ("quad_perm:[1,0,3,2]", "quad_perm:[2,3,0,1]", "row_half_mirror"):
        for r in (vT, vT + 1, vD, vD + 1, vD + 2, vD + 3):
            a("    v_add_f32_dpp %s, %s, %s %s %s" % (v(r), v(r), v(r), pat, DPP))
    a("    v_mul_f32 %s, 0x3b000000, %s" % (v(vT), v(vT)))
    a("    v_mul_f32 %s, 0x3b000000, %s" % (v(vT + 1), v(vT + 1)))
    a("    v_fma_f32 %s, -%s, %s, %s" % (v(vT + 1), v(vT), v(vT), v(vT + 1)))
    a("    v_max_f32 %s, 0, %s" % (v(vT + 1), v(vT + 1)))
    a("    v_cvt_pk_bf16_f32 %s, %s, %s" % (v(vT), v(vT + 1), v(vT)))
    a("    v_lshlrev_b32 %s, 16, %s" % (v(vT + 1), v(vT)))
    a("    v_and_b32 %s, 0xffff0000, %s" % (v(vT), v(vT)))
    a("    v_add_f32 %s, 0x3727c5ac, %s" % (v(vT + 1), v(vT + 1)))
    bf16r(vT + 1, vT + 1)
    a("    v_sqrt_f32 %s, %s" % (v(vT + 1), v(vT + 1)))
    for r in range(4):
        a("    v_fma_f32 %s, -%s, %s, %s" % (v(vD + r), v(vT), v(vCs + r), v(vD + r)))
    bf16r(vT + 1, vT + 1)
    a("    v_rcp_f32 %s, %s" % (v(vT + 1), v(vT + 1)))
    for r in range(4):
        a("    v_mul_f32 %s, %s, %s" % (v(vD + r), v(vD + r), v(vT + 1)))
    a("    v_cvt_pk_bf16_f32 %s, %s, %s" % (v(vT + 2), v(vD), v(vD + 1)))
    a("    v_cvt_pk_bf16_f32 %s, %s, %s" % (v(vT + 3), v(vD + 2), v(vD + 3)))
    for i in range(2):
        a("    v_lshlrev_b32 %s, 16, %s" % (v(vD + 2 * i), v(vT + 2 + i)))
        a("    v_and_b32 %s, 0xffff0000, %s" % (v(vD + 2 * i + 1), v(vT + 2 + i)))
    for r in range(4):
        a("    v_mul_f32_dpp %s, %s, %s row_ror:8 %s" % (v(vT + 4 + r), v(vD + r), v(vD + r), DPP))
    a("    v_cvt_pk_bf16_f32 %s, %s, %s" % (v(vT + 2), v(vT + 4), v(vT + 5)))
    a("    v_cvt_pk_bf16_f32 %s, %s, %s" % (v(vT + 3), v(vT + 6), v(vT + 7)))
    for t in range(4):
        a("    v_and_b32 %s, %s, %s" % (v(vB + 2 * t), v(vT + 2), v(vMt + t)))
        a("    v_and_b32 %s, %s, %s" % (v(vB + 2 * t + 1), v(vT + 3), v(vMt + t)))
    for t in range(4):
        a("    v_mfma_f32_16x16x16_bf16 %s, %s, %s, %s" %
          (v(vDu, 4), v(vWd + 2 * t, 2), v(vB + 2 * t, 2), "0" if t == 0 else v(vDu, 4)))
    setexec(0x000F000F, 0x000F000F)
    for i in range(4):
        a("    v_and_or_b32 %s, %s, %s, %s" % (v(vDu + i), v(vDu + i), s(sM10), v(vTag10)))
    a("    global_store_dwordx4 %s, %s, %s sc1" % (v(vAy), v(vDu, 4), s(sB2, 2)))
    stamp(9)
    finish()

    if prof:
        a("L_PROF:")
        a("    s_memrealtime %s" % s(sPROF + 20, 2))
        a("    s_mov_b64 exec, 1")
        a("    s_lshl_b32 %s, s2, 3" % s(sT0))
        a("    s_add_u32 %s, %s, %s" % (s(sT0), s(sT0), s(sW)))
        a("    s_lshl_b32 %s, %s, 7" % (s(sT0), s(sT0)))
        a("    s_add_u32 %s, %s, 0x%x" % (s(sT0), s(sT0), PROFB))
        base(sB0, sWS, s(sT0))
        a("    v_mov_b32 v1, 0")
        a("    s_waitcnt lgkmcnt(0)")
        for i in range(12):
            a("    v_mov_b32 v2, %s" % s(sPROF + 2 * i))
            if prof == 2:
                a("    global_atomic_umax v1, v2, %s offset:%d sc1" % (s(sDBG, 2), 4 * i))
            else:
                a("    global_store_dword v1, v2, %s offset:%d" % (s(sB0, 2), 4 * i))
        if prof == 2:
            a("    s_not_b32 %s, %s" % (s(sT0), s(sPROF)))
            a("    v_mov_b32 v2, %s" % s(sT0))
            a("    global_atomic_umax v1, v2, %s offset:48 sc1" % s(sDBG, 2))
        a("    s_endpgm")
    a("L_END:")
    a("    s_endpgm")
    a("L_CODE_END:")
    nv = (V.hi + 7) // 8 * 8
    a('.section .rodata,"a"')
    a(".p2align 6")
    a(".amdhsa_kernel %s_kernel" % NAME)
    a("  .amdhsa_next_free_vgpr %d" % nv)
    a("  .amdhsa_next_free_sgpr 100")
    a("  .amdhsa_accum_offset %d" % nv)
    a("  .amdhsa_group_segment_fixed_size 0")
    a("  .amdhsa_kernarg_size 96")
    a("  .amdhsa_user_sgpr_count 2")
    a("  .amdhsa_user_sgpr_kernarg_segment_ptr 1")
    a("  .amdhsa_system_sgpr_workgroup_id_x 1")
    a("  .amdhsa_float_denorm_mode_32 3")
    a(".end_amdhsa_kernel")
    return out + a.finalize()


if __name__ == "__main__":
    import argparse
    ap = argparse.ArgumentParser()
    ap.add_argument("-o", default=None)
    ap.add_argument("--prof", type=int, default=0)
    ap.add_argument("--opt", default="")
    args = ap.parse_args()
    opt = {}
    for kv in args.opt.split(","):
        if kv:
            k, x = kv.split("=")
            opt[k] = int(x)
    txt = gen(args.prof, opt)
    path = args.o or os.path.join(os.path.dirname(os.path.abspath(__file__)), "..", "cdna_kernels", NAME + ".s")
    open(path, "w").write(txt)
    print("wrote", path, len(txt.split("\n")), "lines")
```

```python
import sys
import os
sys.path.insert(0, os.path.dirname(os.path.abspath(__file__)))
from asmlib import Asm

NAME = "sequential_preLN__sliding_block_cached__glu_gated_bilinear__decode"

EPOCH = 0
S1 = 0x1000
S2ML = 0x11000
S3 = 0x15000
S4 = 0x1D000
SBELL = 0x58000
S2O = 0x60000
PROFB = 0x100000

LK = 0
LV = 32768
LG = 65536
LD = 98304
LRED = 114688
LQ = 119040
LMX = 120128
LLS = 120256
LP = 120768
LH = 121856
LGP = 122880
LCS = 123904
LST = 124928
LWT = 124992
LEP = 125504
LDS_BYTES = 125568

DPP = "row_mask:0xf bank_mask:0xf"
SPIN_LIMIT = 1 << 18


class Regs:
    def __init__(self, start):
        self.n = start
        self.hi = start

    def __call__(self, cnt=1, align=None):
        if align is None:
            align = 2 if cnt > 1 else 1
        self.n = (self.n + align - 1) // align * align
        b = self.n
        self.n += cnt
        self.hi = max(self.hi, self.n)
        return b

    def mark(self):
        return self.n

    def release(self, m):
        self.n = m


def v(b, n=1):
    return "v%d" % b if n == 1 else "v[%d:%d]" % (b, b + n - 1)


def s(b, n=1):
    return "s%d" % b if n == 1 else "s[%d:%d]" % (b, b + n - 1)


def gen(prof=False, opt=None):
    opt = dict(opt or {})
    for k_, x_ in dict(bx=1, ford=2, f0=1, fbar=8, qpol=3, wo0=4, wo1=0, win=3, qpos=8, wop=1).items():
        opt.setdefault(k_, x_)
    a = Asm()
    V = Regs(1)
    sX, sK, sVp, sWQ, sWO, sBX, sWG, sWU = 4, 6, 8, 10, 12, 14, 16, 18
    sWD, sOUT, sDBG, sWS = 20, 22, 24, 26
    sE, sW, sH, sJ = 28, 29, 30, 31
    sT0, sT1, sT2, sT3 = 32, 33, 34, 35
    sB0, sB1, sB2, sB3 = 36, 38, 40, 42
    sM8, sM10, sTag8, sTag10, sT32 = 44, 45, 46, 47, 48
    sSpin, sTmp, sDummy = 49, 50, 51
    sPC = 52
    sB4 = 54
    sU, sFI = 56, 57
    sMean, sVar = 58, 59
    sBo, sBml = 60, 62
    sB5, sInb = 98, 100
    sPROF = 64
    uid = [0]
    vm = []

    def waitfor(name):
        n = len(vm) - 1 - vm.index(name)
        a("    s_waitcnt vmcnt(%d)" % n)

    STM = opt.get("stamps", 0xFFFF)

    def stamp(i):
        if opt.get("diagph") == i:
            a("    s_memrealtime s[90:91]")
        if prof and (STM >> i) & 1:
            a("    s_memrealtime %s" % s(sPROF + 2 * i, 2))

    def setexec(lo, hi):
        if lo == hi == 0xFFFFFFFF:
            a("    s_mov_b64 exec, -1")
        else:
            a("    s_mov_b32 exec_lo, 0x%x" % lo)
            a("    s_mov_b32 exec_hi, 0x%x" % hi)

    def base(dst, ptr, off_sreg):
        a("    s_add_u32 %s, %s, %s" % (s(dst), s(ptr), off_sreg))
        a("    s_addc_u32 %s, %s, 0" % (s(dst + 1), s(ptr + 1)))

    def finish():
        if prof:
            a("    s_branch L_PROF")
        else:
            a("    s_endpgm")

    def bf16r(dst, src):
        a("    v_cvt_pk_bf16_f32 %s, %s, %s" % (v(dst), v(src), v(src)))
        a("    v_and_b32 %s, 0xffff0000, %s" % (v(dst), v(dst)))

    def wavesum_to_sgpr(r, sd):
        for sh in (1, 2, 4, 8):
            a("    v_add_f32_dpp %s, %s, %s row_ror:%d %s" % (v(r), v(r), v(r), sh, DPP))
        a("    v_add_f32_dpp %s, %s, %s row_bcast:15 row_mask:0xa bank_mask:0xf" % (v(r), v(r), v(r)))
        a("    v_add_f32_dpp %s, %s, %s row_bcast:31 row_mask:0xc bank_mask:0xf" % (v(r), v(r), v(r)))
        a("    v_readlane_b32 %s, %s, 63" % (s(sd), v(r)))

    def tagcheck(regs, tagreg, tmp, first=True):
        for i, r in enumerate(regs):
            if first and i == 0:
                a("    v_xor_b32 %s, %s, %s" % (v(tmp), s(tagreg), v(r)))
            else:
                a("    v_bitop3_b32 %s, %s, %s, %s bitop3:0xf6" % (v(tmp), v(tmp), v(r), s(tagreg)))

    def poll(loads, check, firstwait, post=None, cnt=None, keepexec=False):
        uid[0] += 1
        u = uid[0]
        a("    s_mov_b32 %s, 0" % s(sSpin))
        a("    s_branch L_CHECK%d" % u)
        a("L_RETRY%d:" % u)
        a("    s_add_u32 %s, %s, 1" % (s(sSpin), s(sSpin)))
        a("    s_cmp_ge_u32 %s, 0x%x" % (s(sSpin), SPIN_LIMIT))
        a("    s_cbranch_scc1 L_OK%d" % u)
        a("    s_mov_b64 exec, vcc")
        loads()
        if firstwait:
            a("    s_waitcnt vmcnt(0)")
        a("L_CHECK%d:" % u)
        a("    s_waitcnt vmcnt(%d)" % firstwait)
        check()
        a("    s_cbranch_vccnz L_RETRY%d" % u)
        a("L_OK%d:" % u)
        a("    s_mov_b64 exec, -1")
        if prof and cnt is not None and (not opt.get("astamps") or cnt == 15):
            a("    s_mov_b32 %s, %s" % (s(sPROF + 2 * cnt), s(sSpin)))
        if post:
            post()

    def allred_hi(r, tmp, op):
        for sh in (4, 8):
            a("    v_%s_f32_dpp %s, %s, %s row_ror:%d %s" % (op, v(r), v(r), v(r), sh, DPP))
        for sw in ("16", "32"):
            a("    v_mov_b32 %s, %s" % (v(tmp), v(r)))
            a("    v_permlane%s_swap_b32 %s, %s" % (sw, v(r), v(tmp)))
            a("    v_%s_f32 %s, %s, %s" % (op, v(r), v(r), v(tmp)))

    def rowpack(r, dst, n):
        a("    v_mov_b32_dpp %s, %s quad_perm:[1,1,3,3] %s" % (v(r + 1), v(r), DPP))
        a("    v_cvt_pk_bf16_f32 %s, %s, %s" % (v(r + 1), v(r), v(r + 1)))
        for i in range(n):
            a("    v_mov_b32_dpp %s, %s row_newbcast:%d %s" % (v(dst + i), v(r + 1), 2 * i, DPP))

    def treduce4(r):
        a("    v_permlane32_swap_b32 %s, %s" % (v(r), v(r + 2)))
        a("    v_permlane32_swap_b32 %s, %s" % (v(r + 1), v(r + 3)))
        a("    v_add_f32 %s, %s, %s" % (v(r), v(r), v(r + 2)))
        a("    v_add_f32 %s, %s, %s" % (v(r + 1), v(r + 1), v(r + 3)))
        a("    v_permlane16_swap_b32 %s, %s" % (v(r), v(r + 1)))
        a("    v_add_f32 %s, %s, %s" % (v(r), v(r), v(r + 1)))

    hdr = open(os.path.join(os.path.dirname(os.path.abspath(__file__)), "..", "cdna_kernels", NAME + ".s.ref")).read()
    head = [l for l in hdr.split("\n") if l.startswith("; Kernarg") or l.startswith(";   offset")]
    out = "\n".join(head) + "\n"
    out += "; One persistent launch: 256 workgroups (one per CU) x 8 waves.\n"
    out += "; @launch grid=(256,1,1) block=(512,1,1) lds=%d\n" % LDS_BYTES
    a('.amdgcn_target "amdgcn-amd-amdhsa--gfx950"')
    a(".text")
    a(".globl %s_kernel" % NAME)
    a(".p2align 8")
    a(".type %s_kernel,@function" % NAME)
    a("%s_kernel:" % NAME)

    vL = 0
    vM = V(4, 4)
    vTag8, vTag10 = V(), V()
    vL3, vL7, vG, vJ = V(), V(), V(), V()
    vRedW, vRedR, vRedR8, vC4 = V(), V(), V(), V()
    vD = V(4, 4)
    vT = V(8, 4)
    vV0, vV1 = V(), V()
    vW = V(16, 4)
    vAk = V(4)
    vKo = V(4)
    vAq, vAqw, vAmw, vAmr, vAlw, vApw, vApr, vAv, vAo, vAlr, vQo = [V() for _ in range(11)]
    mk = V.mark()

    def attn_addresses():
        a("    s_lshl_b32 %s, %s, 12" % (s(sT0), s(sW)))
        a("    v_xor_b32 %s, %s, %s" % (v(vT), v(vJ), v(vG)))
        a("    v_lshlrev_b32 %s, 4, %s" % (v(vT), v(vT)))
        a("    v_lshl_or_b32 %s, %s, 8, %s" % (v(vT), v(vJ), v(vT)))
        a("    v_add_u32 %s, %s, %s" % (v(vAk), s(sT0), v(vT)))
        for i in (1, 2, 3):
            a("    v_xor_b32 %s, 0x%x, %s" % (v(vAk + i), 64 * i, v(vAk)))
        a("    v_and_b32 %s, 3, v0" % v(vT))
        a("    v_mul_u32_u24 %s, 272, %s" % (v(vT + 1), v(vT)))
        a("    v_lshl_add_u32 %s, %s, 4, %s" % (v(vT + 2), v(vG), v(vT + 1)))
        a("    v_add_u32 %s, 0x%x, %s" % (v(vAq), LQ, v(vT + 2)))
        a("    v_add_u32 %s, 0x%x, %s" % (v(vApr), LP, v(vT + 2)))
        a("    s_lshr_b32 %s, %s, 1" % (s(sT0), s(sW)))
        a("    s_and_b32 %s, %s, 1" % (s(sT1), s(sW)))
        a("    s_lshl_b32 %s, %s, 6" % (s(sT2), s(sT0)))
        a("    s_lshl_b32 %s, %s, 3" % (s(sT3), s(sT1)))
        a("    s_add_u32 %s, %s, %s" % (s(sT2), s(sT2), s(sT3)))
        a("    v_add_u32 %s, %s, %s" % (v(vApw), s(sT2), v(vApr)))
        a("    s_mul_i32 %s, %s, 272" % (s(sT0), s(sT0)))
        a("    s_lshl_b32 %s, %s, 7" % (s(sT1), s(sT1)))
        a("    s_add_u32 %s, %s, %s" % (s(sT0), s(sT0), s(sT1)))
        a("    s_add_u32 %s, %s, 0x%x" % (s(sT0), s(sT0), LQ))
        a("    v_lshl_add_u32 %s, %s, 2, %s" % (v(vT + 3), v(vJ), v(vG)))
        a("    v_lshl_add_u32 %s, %s, 1, %s" % (v(vAqw), v(vT + 3), s(sT0)))
        a("    v_lshlrev_b32 %s, 5, %s" % (v(vT + 1), v(vT)))
        a("    v_add_u32 %s, 0x%x, %s" % (v(vAmr), LMX, v(vT + 1)))
        a("    s_lshl_b32 %s, %s, 2" % (s(sT0), s(sW)))
        a("    v_add_u32 %s, %s, %s" % (v(vAmw), s(sT0), v(vAmr)))
        a("    s_lshl_b32 %s, %s, 4" % (s(sT0), s(sW)))
        a("    s_add_u32 %s, %s, 0x%x" % (s(sT0), s(sT0), LLS))
        a("    v_lshlrev_b32 %s, 7, %s" % (v(vT + 1), v(vT)))
        a("    v_lshl_add_u32 %s, %s, 2, %s" % (v(vT + 1), v(vG), v(vT + 1)))
        a("    v_add_u32 %s, %s, %s" % (v(vAlw), s(sT0), v(vT + 1)))
        a("    v_lshrrev_b32 %s, 2, v0" % v(vT + 1))
        a("    v_lshlrev_b32 %s, 3, %s" % (v(vT + 1), v(vT + 1)))
        a("    v_lshl_add_u32 %s, %s, 7, %s" % (v(vT + 1), v(vT), v(vT + 1)))
        a("    v_add_u32 %s, 0x%x, %s" % (v(vAlr), LLS, v(vT + 1)))
        a("    v_lshrrev_b32 %s, 2, %s" % (v(vT + 1), v(vJ)))
        a("    v_lshl_add_u32 %s, %s, 2, %s" % (v(vT + 1), v(vG), v(vT + 1)))
        a("    v_and_b32 %s, 7, %s" % (v(vT + 2), v(vT + 1)))
        a("    v_lshlrev_b32 %s, 1, %s" % (v(vT + 2), v(vT + 2)))
        a("    v_bfe_u32 %s, v0, 1, 1" % v(vT + 3))
        a("    s_lshl_b32 %s, %s, 1" % (s(sT0), s(sW)))
        a("    v_add_u32 %s, %s, %s" % (v(vT + 3), s(sT0), v(vT + 3)))
        a("    v_xor_b32 %s, %s, %s" % (v(vT + 2), v(vT + 2), v(vT + 3)))
        a("    v_lshlrev_b32 %s, 4, %s" % (v(vT + 2), v(vT + 2)))
        a("    v_lshl_or_b32 %s, %s, 8, %s" % (v(vT + 1), v(vT + 1), v(vT + 2)))
        a("    v_and_b32 %s, 1, v0" % v(vT + 2))
        a("    v_lshl_or_b32 %s, %s, 3, %s" % (v(vT + 1), v(vT + 2), v(vT + 1)))
        a("    v_add_u32 %s, 0x%x, %s" % (v(vAv), LV, v(vT + 1)))
        a("    s_lshl_b32 %s, %s, 5" % (s(sT0), s(sH)))
        a("    s_add_u32 %s, %s, %s" % (s(sT0), s(sT0), s(sJ)))
        a("    s_lshl_b32 %s, %s, 6" % (s(sT2), s(sT0)))
        a("    s_add_u32 %s, %s, 0x%x" % (s(sT2), s(sT2), S2ML))
        base(sBml, sWS, s(sT2))

    a("    s_cmp_ge_u32 s2, 0x100")
    a("    s_cbranch_scc1 L_END")
    a("    s_load_dwordx16 s[4:19], s[0:1], 0x0")
    a("    s_load_dwordx8 s[20:27], s[0:1], 0x40")
    if opt.get("diagspin"):
        a("    s_memrealtime s[96:97]")
    if prof == 2:
        for i in range(1, 12):
            a("    s_mov_b32 %s, 0" % s(sPROF + 2 * i))
    stamp(0)
    vXo = vAo
    vXSo, vWQ0, vWQ1 = V(), V(), V()
    vXf = V(4, 4)
    vXs = V()
    a("    v_lshrrev_b32 %s, 6, v0" % v(vT))
    a("    v_and_b32 v0, 63, v0")
    a("    s_and_b32 %s, s2, 7" % s(sH))
    a("    v_readfirstlane_b32 %s, %s" % (s(sW), v(vT)))
    a("    s_lshr_b32 %s, s2, 3" % s(sJ))
    a("    v_lshlrev_b32 %s, 4, v0" % v(vXo))
    a("    v_lshrrev_b32 %s, 3, v0" % v(vL3))
    a("    v_and_b32 %s, 7, v0" % v(vL7))
    a("    v_lshrrev_b32 %s, 4, v0" % v(vG))
    a("    v_and_b32 %s, 15, v0" % v(vJ))
    a("    v_lshlrev_b32 %s, 2, %s" % (v(vXSo), v(vL3)))
    a("    v_lshlrev_b32 %s, 4, %s" % (v(vT), v(vL7)))
    a("    v_lshl_or_b32 %s, %s, 14, %s" % (v(vWQ0), v(vL3), v(vT)))
    a("    v_add_u32 %s, 0x2000, %s" % (v(vWQ1), v(vWQ0)))
    a("    v_xor_b32 %s, %s, %s" % (v(vT), v(vJ), v(vG)))
    a("    v_lshlrev_b32 %s, 4, %s" % (v(vT), v(vT)))
    a("    v_lshl_or_b32 %s, %s, 8, %s" % (v(vKo), v(vG), v(vT)))
    for i in (1, 2, 3):
        a("    v_xor_b32 %s, 0x%x, %s" % (v(vKo + i), 64 * i, v(vKo)))
    a("    s_lshr_b32 %s, %s, 3" % (s(sT0), s(sJ)))
    a("    s_lshl_b32 %s, %s, 7" % (s(sT0), s(sT0)))
    a("    s_lshl_b32 %s, %s, 4" % (s(sT1), s(sW)))
    a("    s_add_u32 %s, %s, %s" % (s(sT0), s(sT0), s(sT1)))
    a("    s_lshl_b32 %s, %s, 7" % (s(sT2), s(sJ)))
    a("    s_add_u32 %s, %s, %s" % (s(sT2), s(sT2), s(sT1)))
    a("    s_add_u32 %s, %s, 0xf000" % (s(sT2), s(sT2)))
    a("    s_lshl_b32 %s, %s, 16" % (s(sT3), s(sH)))
    a("    s_add_u32 %s, %s, %s" % (s(sT2), s(sT2), s(sT3)))
    a("    s_lshl_b32 %s, %s, 8" % (s(sT2), s(sT2)))
    a("    s_lshl_b32 %s, %s, 13" % (s(sT1), s(sT0)))
    a("    s_lshl_b32 %s, %s, 10" % (s(sT3), s(sH)))
    a("    s_add_u32 %s, %s, %s" % (s(sT1), s(sT1), s(sT3)))
    a("    s_and_b32 %s, %s, 7" % (s(sT3), s(sJ)))
    a("    s_lshl_b32 %s, %s, 7" % (s(sT3), s(sT3)))
    a("    s_add_u32 %s, %s, %s" % (s(sT1), s(sT1), s(sT3)))
    a("    s_lshl_b32 %s, %s, 1" % (s(sT0), s(sT0)))
    a("    s_lshl_b32 %s, %s, 5" % (s(sT3), s(sH)))
    a("    s_add_u32 %s, %s, %s" % (s(sT3), s(sT3), s(sJ)))
    a("    s_lshl_b32 %s, %s, 3" % (s(sT3), s(sT3)))
    a("    s_add_u32 %s, %s, %s" % (s(sT3), s(sT3), s(sW)))
    a("    s_lshl_b32 %s, %s, 8" % (s(sT3), s(sT3)))
    a("    s_add_u32 %s, %s, 0x%x" % (s(sT3), s(sT3), S2O))
    if opt.get("oclr", 0):
        for i in range(4):
            a("    v_mov_b32 %s, -1" % v(vD + i))
    a("    s_lshl_b32 %s, %s, 12" % (s(sTmp), s(sW)))
    a("    s_mov_b32 m0, %s" % s(sTmp))
    a("    s_waitcnt lgkmcnt(0)")
    a("    global_load_dwordx4 %s, %s, %s" % (v(vXf, 4), v(vXo), s(sX, 2)))
    base(sB0, sX, s(sT0))
    a("    global_load_dword %s, %s, %s" % (v(vXs), v(vXSo), s(sB0, 2)))
    base(sB1, sWQ, s(sT1))
    if opt.get("bx", 0):
        a("    s_barrier")
    a("    global_load_dwordx4 %s, %s, %s nt" % (v(vW, 4), v(vWQ0), s(sB1, 2)))
    a("    global_load_dwordx4 %s, %s, %s nt" % (v(vW + 4, 4), v(vWQ1), s(sB1, 2)))
    vm.extend(["x", "xs", "wq0", "wq1"])
    base(sBo, sWS, s(sT3))
    OCLR = opt.get("oclr", 0)
    if OCLR:
        setexec(0xFFFF, 0)
        a("    global_store_dwordx4 %s, %s, %s sc1" % (v(vAo), v(vD, 4), s(sBo, 2)))
        setexec(0xFFFFFFFF, 0xFFFFFFFF)
        vm.append("clr")
    base(sB2, sK, s(sT2))
    if opt.get("b0", 1):
        a("    s_barrier")
    WIN = opt.get("win", 3)
    QPOS = opt.get("qpos", 7)
    stream = ["wq0", "wq1", "K0", "K1", "K2", "K3", "V0", "V1", "V2", "V3"]

    def sload(i):
        nm = stream[i]
        k = int(nm[1])
        if nm[0] == "K":
            a("    global_load_lds_dwordx4 %s, %s offset:%d nt" % (v(vKo + k), s(sB2, 2), 1024 * k))
        else:
            if k == 0:
                a("    s_mov_b32 m0, %s" % s(sTmp))
            a("    global_load_lds_dwordx4 %s, %s offset:%d nt" % (v(vV1 if k & 1 else vV0), s(sB3, 2), 1024 * k))
        vm.append(nm)
    assert WIN <= 6
    WIN0 = opt.get("win0", WIN)
    for i in range(2, WIN0):
        sload(i)
    base(sB3, sVp, s(sT2))
    E0 = opt.get("e0", 1)
    a("    s_lshl_b32 %s, %s, 3" % (s(sT0), s(sJ)))
    a("    s_add_u32 %s, %s, %s" % (s(sT0), s(sT0), s(sW)))
    if E0:
        a("    s_cmp_lg_u32 %s, 0" % s(sW))
        a("    s_cbranch_scc1 L_NOE")
    a("    s_load_dword %s, %s, 0x%x" % (s(sE), s(sWS, 2), EPOCH))
    a("L_NOE:")
    a("    s_getpc_b64 %s" % s(sPC, 2))
    a("L_PC:")
    if opt.get("pf", 1):
        a("    s_cmp_gt_u32 %s, (L_CODE_END-L_PC-4)/128" % s(sT0))
        a("    s_cbranch_scc1 L_NOPF")
        a("    s_lshl_b32 %s, %s, 7" % (s(sT1), s(sT0)))
        a("    s_load_dword %s, %s, %s" % (s(sDummy), s(sPC, 2), s(sT1)))
        a("L_NOPF:")
    if opt.get("touch", 1):
        a("    s_lshl_b32 %s, %s, 19" % (s(sT1), s(sH)))
        base(sB4, sWO, s(sT1))
        for k, p in enumerate((sB3, sWG, sWU, sWD, sOUT)):
            a("    s_cmp_eq_u32 %s, %d" % (s(sT0), 8 * (17 + k) + 7))
            a("    s_cselect_b64 %s, %s, %s" % (s(sB4, 2), s(p, 2), s(sB4, 2)))
        a("    s_sub_u32 %s, %s, %d" % (s(sT1), s(sT0), 8 * 16 + 7))
        a("    s_and_b32 %s, %s, 0xffffffc7" % (s(sT3), s(sT1)))
        a("    s_cmp_lg_u32 %s, 0" % s(sT3))
        a("    s_cbranch_scc1 L_NOTOUCH")
        a("    s_load_dword %s, %s, 0x0" % (s(sDummy), s(sB4, 2)))
        a("L_NOTOUCH:")
    a("    v_lshlrev_b32 %s, 1, %s" % (v(vT), v(vG)))
    a("    v_xor_b32 %s, %s, %s" % (v(vT), v(vJ), v(vT)))
    a("    v_lshlrev_b32 %s, 4, %s" % (v(vT), v(vT)))
    a("    v_lshl_or_b32 %s, %s, 8, %s" % (v(vV0), v(vG), v(vT)))
    a("    v_xor_b32 %s, 0x80, %s" % (v(vV1), v(vV0)))
    a("    s_add_u32 %s, %s, 0x%x" % (s(sTmp), s(sTmp), LV))
    a("    v_and_b32 %s, 1, v0" % v(vT))
    a("    v_lshlrev_b32 %s, 4, %s" % (v(vT), v(vT)))
    a("    v_lshlrev_b32 %s, %s, %s" % (v(vT + 1), v(vT), v(vT + 2)) if False else
      "    v_mov_b32 %s, 0xffff" % v(vT + 1))
    a("    v_lshlrev_b32 %s, %s, %s" % (v(vT + 1), v(vT), v(vT + 1)))
    a("    v_lshrrev_b32 %s, 1, %s" % (v(vT), v(vL7)))
    for r in range(4):
        a("    v_cmp_eq_u32 vcc, %d, %s" % (r, v(vT)))
        a("    v_cndmask_b32 %s, 0, %s, vcc" % (v(vM + r), v(vT + 1)))
    a("    v_lshrrev_b32 %s, 5, v0" % v(vT))
    a("    s_lshl_b32 %s, %s, 1" % (s(sT0), s(sW)))
    a("    v_add_u32 %s, %s, %s" % (v(vT), s(sT0), v(vT)))
    a("    v_mul_u32_u24 %s, 272, %s" % (v(vT), v(vT)))
    a("    v_and_b32 %s, 1, %s" % (v(vT + 1), v(vG)))
    a("    v_lshl_or_b32 %s, %s, 1, %s" % (v(vT + 1), v(vL7), v(vT + 1)))
    a("    v_lshl_add_u32 %s, %s, 4, %s" % (v(vT), v(vT + 1), v(vT)))
    a("    v_add_u32 %s, 0x%x, %s" % (v(vRedW), LRED, v(vT)))
    a("    v_and_b32 %s, 3, v0" % v(vT))
    a("    v_lshl_add_u32 %s, %s, 2, %s" % (v(vC4), v(vG), v(vT)))
    a("    v_lshlrev_b32 %s, 4, %s" % (v(vC4), v(vC4)))
    a("    v_bfe_u32 %s, v0, 2, 2" % v(vT))
    a("    v_mul_u32_u24 %s, 544, %s" % (v(vT), v(vT)))
    a("    v_add_u32 %s, %s, %s" % (v(vT + 1), v(vC4), v(vT)))
    a("    v_add_u32 %s, 0x%x, %s" % (v(vRedR8), LRED, v(vT + 1)))
    a("    v_add_u32 %s, %s, %s" % (v(vRedR), v(vRedR8), v(vT)))
    a("    s_mov_b32 %s, 0xffffff00" % s(sM8))
    a("    s_mov_b32 %s, 0xfffffc00" % s(sM10))

    vXu = V(8, 4)
    waitfor("xs")
    stamp(1)
    for i in range(4):
        a("    v_lshlrev_b32 %s, 16, %s" % (v(vXu + 2 * i), v(vXf + i)))
        a("    v_and_b32 %s, 0xffff0000, %s" % (v(vXu + 2 * i + 1), v(vXf + i)))
    for i in range(4):
        a("    v_add_f32 %s, %s, %s" % (v(vT + i), v(vXu + 2 * i), v(vXu + 2 * i + 1)))
    a("    v_add_f32 %s, %s, %s" % (v(vT), v(vT), v(vT + 1)))
    a("    v_add_f32 %s, %s, %s" % (v(vT + 2), v(vT + 2), v(vT + 3)))
    a("    v_add_f32 %s, %s, %s" % (v(vT), v(vT), v(vT + 2)))
    a("    v_mul_f32 %s, 0x3b000000, %s" % (v(vT), v(vT)))
    wavesum_to_sgpr(vT, sMean)
    for i in range(8):
        a("    v_subrev_f32 %s, %s, %s" % (v(vXu + i), s(sMean), v(vXu + i)))
    a("    v_mul_f32 %s, %s, %s" % (v(vT), v(vXu), v(vXu)))
    a("    v_mul_f32 %s, %s, %s" % (v(vT + 1), v(vXu + 1), v(vXu + 1)))
    for i in range(2, 8):
        a("    v_fmac_f32 %s, %s, %s" % (v(vT + (i & 1)), v(vXu + i), v(vXu + i)))
    a("    v_add_f32 %s, %s, %s" % (v(vT), v(vT), v(vT + 1)))
    a("    v_mul_f32 %s, 0x3b000000, %s" % (v(vT), v(vT)))
    wavesum_to_sgpr(vT, sVar)
    a("    v_mov_b32 %s, %s" % (v(vT + 1), s(sMean)))
    bf16r(vT + 1, vT + 1)
    a("    v_mov_b32 %s, %s" % (v(vT), s(sVar)))
    bf16r(vT, vT)
    a("    v_add_f32 %s, 0x3727c5ac, %s" % (v(vT), v(vT)))
    bf16r(vT, vT)
    a("    v_sqrt_f32 %s, %s" % (v(vT), v(vT)))
    bf16r(vT, vT)
    a("    v_rcp_f32 %s, %s" % (v(vT + 2), v(vT)))
    a("    v_lshlrev_b32 %s, 16, %s" % (v(vT + 3), v(vXs)))
    a("    v_and_b32 %s, 0xffff0000, %s" % (v(vT + 4), v(vXs)))
    a("    v_sub_f32 %s, %s, %s" % (v(vT + 3), v(vT + 3), v(vT + 1)))
    a("    v_sub_f32 %s, %s, %s" % (v(vT + 4), v(vT + 4), v(vT + 1)))
    bf16r(vT + 3, vT + 3)
    bf16r(vT + 4, vT + 4)
    vA = V(8, 4)
    for i in range(2):
        y, q = vT + 3 + i, vT + 5 + i
        a("    v_mul_f32 %s, %s, %s" % (v(q), v(y), v(vT + 2)))
        a("    v_fma_f32 %s, -%s, %s, %s" % (v(y), v(q), v(vT), v(y)))
        a("    v_fmac_f32 %s, %s, %s" % (v(q), v(y), v(vT + 2)))
        a("    v_cvt_pk_bf16_f32 %s, %s, %s" % (v(q), v(q), v(q)))
        for r in range(4):
            a("    v_and_b32 %s, %s, %s" % (v(vA + 4 * i + r), v(q), v(vM + r)))
    a("    v_lshlrev_b32 %s, 4, %s" % (v(vQo), v(vJ)))
    a("    v_lshl_or_b32 %s, %s, 11, %s" % (v(vQo), v(vG), v(vQo)))

    def tags():
        a("    s_add_u32 %s, %s, 1" % (s(sT32), s(sE)))
        a("    s_and_b32 %s, %s, 0xff" % (s(sTag8), s(sT32)))
        a("    s_and_b32 %s, %s, 0x3ff" % (s(sTag10), s(sT32)))
        a("    v_mov_b32 %s, %s" % (v(vTag8), s(sTag8)))
        a("    v_mov_b32 %s, %s" % (v(vTag10), s(sTag10)))
    if not E0:
        a("    s_waitcnt lgkmcnt(0)")
        tags()
    waitfor("wq0")
    for i in range(WIN0, WIN + 1):
        sload(i)
    waitfor("clr" if OCLR else "wq1")
    sload(WIN + 1)
    stamp(2)
    a("    v_mfma_f32_16x16x32_bf16 %s, %s, %s, 0" % (v(vD, 4), v(vA, 4), v(vW, 4)))
    a("    v_mfma_f32_16x16x32_bf16 %s, %s, %s, %s" % (v(vD, 4), v(vA + 4, 4), v(vW + 4, 4), v(vD, 4)))

    def red_publish(nrows, tagv, mask, rnd, basepair, label):
        a("    s_waitcnt lgkmcnt(0)")
        a("    s_barrier")
        a("    s_cmp_lg_u32 %s, 0" % s(sW))
        a("    s_cbranch_scc1 %s" % label)
        m = V.mark()
        r = V(16, 4)
        n = nrows // 4
        for i in range(n):
            a("    ds_read_b128 %s, %s offset:%d" % (v(r + 4 * i, 4), v(vRedR if n == 4 else vRedR8), 272 * i))
        a("    s_waitcnt lgkmcnt(%d)" % (0 if prof else n - 2))
        a("    v_pk_add_f32 %s, %s, %s" % (v(r, 2), v(r, 2), v(r + 4, 2)))
        a("    v_pk_add_f32 %s, %s, %s" % (v(r + 2, 2), v(r + 2, 2), v(r + 6, 2)))
        if n == 4:
            a("    s_waitcnt lgkmcnt(0)")
            a("    v_pk_add_f32 %s, %s, %s" % (v(r + 8, 2), v(r + 8, 2), v(r + 12, 2)))
            a("    v_pk_add_f32 %s, %s, %s" % (v(r + 10, 2), v(r + 10, 2), v(r + 14, 2)))
            a("    v_pk_add_f32 %s, %s, %s" % (v(r, 2), v(r, 2), v(r + 8, 2)))
            a("    v_pk_add_f32 %s, %s, %s" % (v(r + 2, 2), v(r + 2, 2), v(r + 10, 2)))
        for sh in (4, 8):
            for i in range(4):
                a("    v_add_f32_dpp %s, %s, %s row_ror:%d %s" % (v(r + i), v(r + i), v(r + i), sh, DPP))
        for i in range(4):
            if rnd:
                a("    v_add_u32 %s, 0x%x, %s" % (v(r + i), rnd, v(r + i)))
        setexec(0x000F000F, 0x000F000F)
        for i in range(4):
            a("    v_and_or_b32 %s, %s, %s, %s" % (v(r + i), v(r + i), s(mask), v(tagv)))
        a("    global_store_dwordx4 %s, %s, %s sc1" % (v(vC4), v(r, 4), s(basepair, 2)))
        setexec(0xFFFFFFFF, 0xFFFFFFFF)
        V.release(m)

    a("    s_lshl_b32 %s, %s, 13" % (s(sT0), s(sH)))
    a("    s_add_u32 %s, %s, 0x%x" % (s(sT0), s(sT0), S1))
    a("    s_lshl_b32 %s, %s, 8" % (s(sT1), s(sJ)))
    a("    s_add_u32 %s, %s, %s" % (s(sT1), s(sT1), s(sT0)))
    base(sB0, sWS, s(sT1))
    a("    s_lshl_b32 %s, %s, 8" % (s(sT1), s(sW)))
    a("    s_add_u32 %s, %s, %s" % (s(sT1), s(sT1), s(sT0)))
    base(sB1, sWS, s(sT1))
    V.release(mk)
    if E0:
        a("    s_cmp_lg_u32 %s, 0" % s(sW))
        a("    s_cbranch_scc1 L_NOE2")
        a("    s_waitcnt lgkmcnt(0)")
        tags()
        a("    v_mov_b32 %s, 0x%x" % (v(vT), LEP))
        a("    v_mov_b32 %s, %s" % (v(vT + 1), s(sE)))
        a("    ds_write_b32 %s, %s" % (v(vT), v(vT + 1)))
        a("L_NOE2:")
    setexec(0x00FF00FF, 0xFF00FF00)
    a("    ds_write_b128 %s, %s" % (v(vRedW), v(vD, 4)))
    setexec(0xFFFFFFFF, 0xFFFFFFFF)
    vQ = V(4, 4)
    red_publish(16, vTag8, sM8, 0x80, sB0, "L_QPUB")

    def qload():
        a("    global_load_dwordx4 %s, %s, %s sc1" % (v(vQ, 4), v(vQo), s(sB1, 2)))

    def paced(gete=False):
        stamp(3)
        assert QPOS >= max(5, WIN + 2)
        for i in range(WIN + 2, 10):
            waitfor(stream[i - WIN])
            sload(i)
            if i == QPOS:
                qload()
                vm.append("q")
            if i == WIN + 2:
                if gete:
                    a("    s_waitcnt lgkmcnt(0)")
                    a("    v_readfirstlane_b32 %s, %s" % (s(sE), v(vT + 7)))
                    a("    s_nop 0")
                    tags()
                attn_addresses()
        if QPOS >= 10:
            waitfor(stream[QPOS - WIN])
            qload()
            vm.append("q")
    keep = list(vm)
    vm.append("qstore")
    paced()
    a("    s_branch L_PACED")
    a("L_QPUB:")
    vm[:] = keep
    if E0:
        a("    v_mov_b32 %s, 0x%x" % (v(vT + 7), LEP))
        a("    ds_read_b32 %s, %s" % (v(vT + 7), v(vT + 7)))
    paced(E0)
    a("L_PACED:")
    NVA = len(vm) - 1 - vm.index("q")
    a("    s_cmp_lt_u32 %s, 16" % s(sJ))
    a("    s_cbranch_scc1 L_ROLE_WO")
    a("    s_cmp_lt_u32 %s, 4" % s(sH))
    a("    s_cbranch_scc1 L_ROLE_FFN")
    a("    s_cmp_lt_u32 %s, 28" % s(sJ))
    a("    s_cbranch_scc1 L_ROLE_FFN")

    def attention(t0=(), t1=(), tp=()):
        ntail = len(t0) + len(tp)
        m0 = V.mark()
        vKa = V(16, 4)
        vQb = V(16, 4)
        vPb = vQb
        vVa = vKa
        vS = V(4, 4)
        vMx, vMl = V(), V(4, 4)
        def kreads():
            for i in range(4):
                a("    ds_read_b128 %s, %s" % (v(vKa + 4 * i, 4), v(vAk + i)))

        def qcheck():
            tagcheck([vQ + i for i in range(4)], sTag8, vT)
            a("    v_and_b32 %s, 0xff, %s" % (v(vT), v(vT)))
            a("    v_cmp_ne_u32 vcc, 0, %s" % v(vT))
        if tp:
            waitfor("V1")
            for f in tp:
                f()
        poll(qload, qcheck, NVA + len(tp), post=kreads, cnt=15 if opt.get("astamps") else None)
        stamp(4)
        for i in range(4):
            a("    v_and_b32 %s, %s, %s" % (v(vQ + i), s(sM8), v(vQ + i)))
        treduce4(vQ)
        a("    v_cvt_pk_bf16_f32 %s, %s, %s" % (v(vQ), v(vQ), v(vQ)))
        a("    ds_write_b16 %s, %s" % (v(vAqw), v(vQ)))
        a("    s_waitcnt lgkmcnt(0)")
        a("    s_barrier")
        for i in range(4):
            a("    ds_read_b128 %s, %s offset:%d" % (v(vQb + 4 * i, 4), v(vAq), 64 * i))
        for f in t0:
            f()
        for i in range(4):
            a("    s_waitcnt lgkmcnt(%d)" % (0 if prof else 3 - i))
            a("    v_mfma_f32_16x16x32_bf16 %s, %s, %s, %s" %
              (v(vD, 4), v(vKa + 4 * i, 4), v(vQb + 4 * i, 4), "0" if i == 0 else v(vD, 4)))
        a("    v_cvt_pk_bf16_f32 %s, %s, %s" % (v(vT), v(vD), v(vD + 1)))
        a("    v_cvt_pk_bf16_f32 %s, %s, %s" % (v(vT + 1), v(vD + 2), v(vD + 3)))
        for rnd in range(2):
            for i in range(2):
                a("    v_lshlrev_b32 %s, 16, %s" % (v(vS + 2 * i), v(vT + i)))
                a("    v_and_b32 %s, 0xffff0000, %s" % (v(vS + 2 * i + 1), v(vT + i)))
            if rnd == 0:
                for i in range(4):
                    a("    v_mul_f32 %s, 0x3db504f3, %s" % (v(vS + i), v(vS + i)))
                a("    v_cvt_pk_bf16_f32 %s, %s, %s" % (v(vT), v(vS), v(vS + 1)))
                a("    v_cvt_pk_bf16_f32 %s, %s, %s" % (v(vT + 1), v(vS + 2), v(vS + 3)))
        a("    v_max3_f32 %s, %s, %s, %s" % (v(vMx), v(vS), v(vS + 1), v(vS + 2)))
        a("    v_max_f32 %s, %s, %s" % (v(vMx), v(vMx), v(vS + 3)))
        for sw in ("16", "32"):
            a("    v_mov_b32 %s, %s" % (v(vT), v(vMx)))
            a("    v_permlane%s_swap_b32 %s, %s" % (sw, v(vMx), v(vT)))
            a("    v_max_f32 %s, %s, %s" % (v(vMx), v(vMx), v(vT)))
        setexec(0xF, 0)
        a("    ds_write_b32 %s, %s" % (v(vAmw), v(vMx)))
        setexec(0xFFFFFFFF, 0xFFFFFFFF)
        a("    s_waitcnt lgkmcnt(0)")
        a("    s_barrier")
        a("    ds_read_b128 %s, %s" % (v(vT, 4), v(vAmr)))
        a("    ds_read_b128 %s, %s offset:16" % (v(vT + 4, 4), v(vAmr)))
        a("    s_waitcnt lgkmcnt(0)")
        a("    v_max3_f32 %s, %s, %s, %s" % (v(vT), v(vT), v(vT + 1), v(vT + 2)))
        a("    v_max3_f32 %s, %s, %s, %s" % (v(vT + 4), v(vT + 4), v(vT + 5), v(vT + 6)))
        a("    v_max3_f32 %s, %s, %s, %s" % (v(vT), v(vT), v(vT + 3), v(vT + 7)))
        a("    v_max_f32 %s, %s, %s" % (v(vMl), v(vT), v(vT + 4)))
        for i in range(4):
            a("    v_sub_f32 %s, %s, %s" % (v(vS + i), v(vS + i), v(vMl)))
        for i in range(4):
            a("    v_mul_f32 %s, 0x3fb8aa3b, %s" % (v(vS + i), v(vS + i)))
        for i in range(4):
            a("    v_exp_f32 %s, %s" % (v(vS + i), v(vS + i)))
        a("    v_add_f32 %s, %s, %s" % (v(vT), v(vS), v(vS + 1)))
        a("    v_add_f32 %s, %s, %s" % (v(vT + 1), v(vS + 2), v(vS + 3)))
        a("    v_cvt_pk_bf16_f32 %s, %s, %s" % (v(vT + 2), v(vS), v(vS + 1)))
        a("    v_cvt_pk_bf16_f32 %s, %s, %s" % (v(vT + 3), v(vS + 2), v(vS + 3)))
        a("    v_add_f32 %s, %s, %s" % (v(vT), v(vT), v(vT + 1)))
        setexec(0x000F000F, 0x000F000F)
        a("    ds_write_b64 %s, %s" % (v(vApw), v(vT + 2, 2)))
        a("    ds_write_b32 %s, %s" % (v(vAlw), v(vT)))
        setexec(0xFFFFFFFF, 0xFFFFFFFF)
        a("    s_waitcnt lgkmcnt(0)")
        a("    s_barrier")
        if opt.get("astamps"):
            stamp(13)
        for i in range(4):
            a("    ds_read_b128 %s, %s offset:%d" % (v(vPb + 4 * i, 4), v(vApr), 64 * i))
        uid[0] += 1
        u = uid[0]
        a("    s_cmp_lg_u32 %s, 0" % s(sW))
        a("    s_cbranch_scc1 L_NOML%d" % u)
        a("    ds_read_b64 %s, %s" % (v(vT, 2), v(vAlr)))
        a("    v_mov_b32 %s, %s" % (v(vMl + 2), s(sT32)))
        a("    v_mov_b32 %s, %s" % (v(vMl + 3), s(sT32)))
        a("    s_waitcnt lgkmcnt(0)")
        a("    v_add_f32 %s, %s, %s" % (v(vMl + 1), v(vT), v(vT + 1)))
        allred_hi(vMl + 1, vT, "add")
        setexec(0xF, 0)
        a("    global_store_dwordx4 %s, %s, %s sc1" % (v(vAo), v(vMl, 4), s(sBml, 2)))
        setexec(0xFFFFFFFF, 0xFFFFFFFF)
        a("    s_waitcnt vmcnt(%d)" % (1 + ntail))
        a("    s_branch L_MLD%d" % u)
        a("L_NOML%d:" % u)
        a("    s_waitcnt vmcnt(%d)" % ntail)
        a("L_MLD%d:" % u)
        if opt.get("astamps"):
            stamp(14)
        for f in t1:
            f()
        a("    s_barrier")
        stamp(5)
        for t in range(4):
            for hh in range(2):
                a("    ds_read_b64_tr_b16 %s, %s offset:%d" % (v(vVa + 4 * t + 2 * hh, 2), v(vAv), 8192 * t + 4096 * hh))
        for t in range(4):
            a("    s_waitcnt lgkmcnt(%d)" % (0 if prof else 6 - 2 * t))
            a("    v_mfma_f32_16x16x32_bf16 %s, %s, %s, %s" %
              (v(vD, 4), v(vPb + 4 * t, 4), v(vVa + 4 * t, 4), "0" if t == 0 else v(vD, 4)))
        setexec(0xFFFF, 0)
        if OCLR:
            a("    v_min_u32 %s, -2, %s" % (v(vD), v(vD)))
        else:
            for i in range(4):
                a("    v_and_or_b32 %s, %s, %s, %s" % (v(vD + i), v(vD + i), s(sM10), v(vTag10)))
        a("    global_store_dwordx4 %s, %s, %s sc1" % (v(vAo), v(vD, 4), s(sBo, 2)))
        setexec(0xFFFFFFFF, 0xFFFFFFFF)
        stamp(6)
        V.release(m0)

    attention()
    finish()

    a("L_ROLE_WO:")
    mrole = V.mark()
    sD0 = sU
    a("    s_lshr_b32 %s, %s, 3" % (s(sT1), s(sJ)))
    a("    s_lshl_b32 %s, %s, 3" % (s(sT1), s(sT1)))
    a("    s_add_u32 %s, %s, %s" % (s(sT1), s(sT1), s(sW)))
    a("    s_lshl_b32 %s, %s, 3" % (s(sD0), s(sT1)))
    a("    s_lshl_b32 %s, %s, 9" % (s(sT0), s(sH)))
    a("    s_add_u32 %s, %s, %s" % (s(sT0), s(sT0), s(sD0)))
    a("    s_lshl_b32 %s, %s, 10" % (s(sT0), s(sT0)))
    a("    s_and_b32 %s, %s, 7" % (s(sT1), s(sJ)))
    a("    s_lshl_b32 %s, %s, 7" % (s(sT1), s(sT1)))
    a("    s_add_u32 %s, %s, %s" % (s(sT0), s(sT0), s(sT1)))
    base(sB4, sWO, s(sT0))
    vWo = V(4)
    a("    v_lshlrev_b32 %s, 4, %s" % (v(vWo), v(vL7)))
    a("    v_lshl_or_b32 %s, %s, 10, %s" % (v(vWo), v(vL3), v(vWo)))
    for i in (1, 2, 3):
        a("    v_add_u32 %s, 0x%x, %s" % (v(vWo + i), i * (131072 - 1024), v(vWo)))
    a("    s_lshl_b32 %s, %s, 12" % (s(sFI), s(sW)))
    a("    s_add_u32 %s, %s, 0x%x" % (s(sFI), s(sFI), LG))

    def woload(i):
        def f():
            if i == 0:
                a("    s_mov_b32 m0, %s" % s(sFI))
            a("    global_load_lds_dwordx4 %s, %s offset:%d nt" % (v(vWo + i), s(sB4, 2), 1024 * i))
        return f
    WO0, WO1 = opt.get("wo0", 2), opt.get("wo1", 1)
    vOo = V(4)
    vAtr, vAw, vArw = [V() for _ in range(3)]
    vO = V(16, 4)
    vWt = V(16, 4)
    vML = V(8, 4)
    vDt = V(16, 4)

    def wo_addresses():
        a("    s_lshl_b32 %s, %s, 11" % (s(sT1), s(sH)))
        a("    s_add_u32 %s, %s, 0x%x" % (s(sT1), s(sT1), S2ML))
        base(sB0, sWS, s(sT1))
        a("    s_lshl_b32 %s, %s, 16" % (s(sT1), s(sH)))
        a("    s_lshl_b32 %s, %s, 4" % (s(sT0), s(sD0)))
        a("    s_add_u32 %s, %s, %s" % (s(sT1), s(sT1), s(sT0)))
        a("    s_add_u32 %s, %s, 0x%x" % (s(sT1), s(sT1), S2O))
        base(sB5, sWS, s(sT1))
        a("    v_lshlrev_b32 %s, 4, %s" % (v(vT), v(vL7)))
        a("    v_lshl_or_b32 %s, %s, 11, %s" % (v(vOo), v(vL3), v(vT)))
        for i in (1, 2, 3):
            a("    v_add_u32 %s, 0x%x, %s" % (v(vOo + i), 16384 * i, v(vOo)))
        a("    s_lshl_b32 %s, %s, 12" % (s(sT0), s(sH)))
        a("    s_lshl_b32 %s, %s, 8" % (s(sT1), s(sJ)))
        a("    s_add_u32 %s, %s, %s" % (s(sT0), s(sT0), s(sT1)))
        a("    s_add_u32 %s, %s, 0x%x" % (s(sT0), s(sT0), S3))
        base(sB2, sWS, s(sT0))
        a("    v_lshrrev_b32 %s, 2, %s" % (v(vT), v(vJ)))
        a("    v_lshl_add_u32 %s, %s, 3, %s" % (v(vT), v(vG), v(vT)))
        a("    v_lshlrev_b32 %s, 7, %s" % (v(vT), v(vT)))
        a("    v_and_b32 %s, 3, v0" % v(vT + 1))
        a("    v_lshl_add_u32 %s, %s, 3, %s" % (v(vT), v(vT + 1), v(vT)))
        a("    v_add_u32 %s, %s, %s" % (v(vAtr), s(sFI), v(vT)))
        a("    v_lshlrev_b32 %s, 4, %s" % (v(vT), v(vL3)))
        a("    v_add_u32 %s, 0x%x, %s" % (v(vAw), LWT, v(vT)))
        a("    s_mul_i32 %s, %s, 272" % (s(sT0), s(sW)))
        a("    s_add_u32 %s, %s, 0x%x" % (s(sT0), s(sT0), LRED))
        a("    v_lshl_add_u32 %s, %s, 4, %s" % (v(vArw), v(vG), s(sT0)))
        a("    s_lshl_b32 %s, %s, 7" % (s(sT0), s(sH)))
        a("    s_add_u32 %s, %s, 0x%x" % (s(sInb), s(sT0), SBELL))
    wo_addresses()
    WOP = opt.get("wop", 0)
    attention([woload(i) for i in range(WOP, WO0)], [woload(i) for i in range(WO0, WO0 + WO1)], [woload(i) for i in range(WOP)])
    if WO0 + WO1 < 4:
        a("    s_barrier")
        for i in range(WO0 + WO1, 4):
            woload(i)()

    def bell():
        for i in range(2):
            a("    global_load_dwordx3 %s, %s, %s offset:%d sc1" % (v(vML + 4 * i, 3), v(vAo), s(sB0, 2), 1024 * i))

    def bellcheck():
        tagcheck([vML + 2, vML + 6], sT32, vT)
        a("    v_cmp_ne_u32 vcc, 0, %s" % v(vT))

    def oloads():
        for i in range(4):
            a("    global_load_dwordx4 %s, %s, %s sc1" % (v(vO + 4 * i, 4), v(vOo + i), s(sB5, 2)))

    def wtr():
        for t in range(4):
            for hh in range(2):
                a("    ds_read_b64_tr_b16 %s, %s offset:%d" % (v(vW + 4 * t + 2 * hh, 2), v(vAtr), 512 * hh + 32 * t))
    a("    s_cmp_eq_u32 %s, 0" % s(sW))
    a("    s_cbranch_scc1 L_BELL1")
    S2M = opt.get("s2mode", 0)
    a("    s_waitcnt vmcnt(0)")
    stamp(12)
    if S2M == 1:
        oloads()
    wtr()
    if S2M == 0:
        a("    s_barrier")
        oloads()
    a("    s_branch L_BELL2")
    a("L_BELL1:")
    bell()
    poll(bell, bellcheck, 0, cnt=13)
    if S2M == 0:
        a("    s_barrier")
    oloads()
    wtr()
    stamp(11)
    a("    v_max_f32 %s, %s, %s" % (v(vT + 1), v(vML), v(vML + 4)))
    allred_hi(vT + 1, vT, "max")
    for i in range(2):
        a("    v_sub_f32 %s, %s, %s" % (v(vML + 4 * i), v(vML + 4 * i), v(vT + 1)))
    for i in range(2):
        a("    v_mul_f32 %s, 0x3fb8aa3b, %s" % (v(vML + 4 * i), v(vML + 4 * i)))
    for i in range(2):
        a("    v_exp_f32 %s, %s" % (v(vML + 4 * i), v(vML + 4 * i)))
    a("    v_lshlrev_b32 %s, 2, v0" % v(vT + 2))
    a("    v_mul_f32 %s, %s, %s" % (v(vT + 1), v(vML), v(vML + 1)))
    a("    v_fmac_f32 %s, %s, %s" % (v(vT + 1), v(vML + 4), v(vML + 5)))
    allred_hi(vT + 1, vT, "add")
    a("    v_rcp_f32 %s, %s" % (v(vT + 1), v(vT + 1)))
    a("    v_add_u32 %s, 0x%x, %s" % (v(vT + 2), LWT, v(vT + 2)))
    for i in range(2):
        a("    v_mul_f32 %s, %s, %s" % (v(vML + 4 * i), v(vML + 4 * i), v(vT + 1)))
    for i in range(2):
        a("    ds_write_b32 %s, %s offset:%d" % (v(vT + 2), v(vML + 4 * i), 256 * i))
    a("    s_waitcnt lgkmcnt(0)")
    a("L_BELL2:")
    WB = opt.get("wbar", 0)

    def wreads():
        a("    s_barrier")
        for i in range(4):
            a("    ds_read_b128 %s, %s offset:%d" % (v(vWt + 4 * i, 4), v(vAw), 128 * i))

    def ocheck():
        if OCLR:
            a("    v_max3_u32 %s, %s, %s, %s" % (v(vT), v(vO), v(vO + 4), v(vO + 8)))
            a("    v_max_u32 %s, %s, %s" % (v(vT), v(vT), v(vO + 12)))
            a("    v_cmp_eq_u32 vcc, -1, %s" % v(vT))
        else:
            tagcheck([vO + i for i in range(16)], sTag10, vT)
            a("    v_and_b32 %s, 0x3ff, %s" % (v(vT), v(vT)))
            a("    v_cmp_ne_u32 vcc, 0, %s" % v(vT))
    if WB == 0:
        wreads()
    poll(oloads, ocheck, 0, cnt=14)
    if WB == 1:
        wreads()
    stamp(7)
    if opt.get("s3bell", 1):
        a("    s_or_b32 %s, %s, %s" % (s(sT0), s(sJ), s(sW)))
        a("    s_cmp_lg_u32 %s, 0" % s(sT0))
        a("    s_cbranch_scc1 L_NOHINT")
        setexec(1, 0)
        a("    v_mov_b32 %s, %s" % (v(vT + 4), s(sInb)))
        a("    v_mov_b32 %s, %s" % (v(vT + 5), s(sT32)))
        a("    global_store_dword %s, %s, %s sc1" % (v(vT + 4), v(vT + 5), s(sWS, 2)))
        setexec(0xFFFFFFFF, 0xFFFFFFFF)
        a("L_NOHINT:")
    if not OCLR:
        for i in range(16):
            a("    v_and_b32 %s, %s, %s" % (v(vO + i), s(sM10), v(vO + i)))
    a("    s_waitcnt lgkmcnt(0)")
    for r in (0, 2):
        a("    v_pk_mul_f32 %s, %s, %s" % (v(vT + r, 2), v(vO + r, 2), v(vWt + r, 2)))
    for i in range(1, 4):
        for r in (0, 2):
            a("    v_pk_fma_f32 %s, %s, %s, %s" % (v(vT + r, 2), v(vO + 4 * i + r, 2), v(vWt + 4 * i + r, 2), v(vT + r, 2)))
    treduce4(vT)
    a("    v_add_f32_dpp %s, %s, %s row_ror:8 %s" % (v(vT), v(vT), v(vT), DPP))
    rowpack(vT, vT + 4, 4)
    for t in range(4):
        a("    v_mfma_f32_16x16x32_bf16 %s, %s, %s, 0" % (v(vDt + 4 * t, 4), v(vW + 4 * t, 4), v(vT + 4, 4)))
    setexec(0x00010001, 0x00010001)
    for t in range(4):
        a("    ds_write_b128 %s, %s offset:%d" % (v(vArw), v(vDt + 4 * t, 4), 64 * t))
    setexec(0xFFFFFFFF, 0xFFFFFFFF)
    red_publish(8, vTag10, sM10, 0, sB2, "L_FIN")
    stamp(8)
    a("L_FIN:")
    finish()
    V.release(mrole)

    a("L_ROLE_FFN:")
    a("    s_and_b32 %s, %s, 3" % (s(sU), s(sJ)))
    a("    s_min_u32 %s, %s, 4" % (s(sT0), s(sH)))
    a("    s_mul_i32 %s, %s, 3" % (s(sT1), s(sH)))
    a("    s_add_u32 %s, %s, %s" % (s(sT0), s(sT0), s(sT1)))
    a("    s_lshl_b32 %s, %s, 2" % (s(sT0), s(sT0)))
    a("    s_add_u32 %s, %s, %s" % (s(sT0), s(sT0), s(sJ)))
    a("    s_sub_u32 %s, %s, 16" % (s(sFI), s(sT0)))
    vGo = V()
    a("    v_lshrrev_b32 %s, 1, v0" % v(vT))
    a("    v_mul_u32_u24 %s, 3584, %s" % (v(vT), v(vT)))
    a("    v_and_b32 %s, 1, v0" % v(vT + 1))
    a("    v_lshl_add_u32 %s, %s, 4, %s" % (v(vGo), v(vT + 1), v(vT)))

    def quarter(n):
        a("    s_add_u32 %s, %s, %d" % (s(sT0), s(sU), 0 if opt.get("fdiag") == 4 else n))
        a("    s_and_b32 %s, %s, 1" % (s(sT1), s(sT0)))
        a("    s_bfe_u32 %s, %s, 0x10001" % (s(sT0), s(sT0)))
        a("    s_lshl_b32 %s, %s, 1" % (s(sT2), s(sW)))
        a("    s_add_u32 %s, %s, %s" % (s(sT2), s(sT2), s(sT1)))
        a("    s_lshl_b32 %s, %s, 4" % (s(sT3), s(sT0)))
        a("    s_add_u32 %s, %s, %s" % (s(sT3), s(sT3), s(sT2)))
        a("    s_lshl_b32 %s, %s, 10" % (s(sT3), s(sT3)))
        a("    s_add_u32 %s, %s, 0x%x" % (s(sT3), s(sT3), LG))
        a("    s_mov_b32 m0, %s" % s(sT3))
        a("    s_mul_i32 %s, %s, %d" % (s(sT2), s(sT2), 32 * 3584))
        a("    s_lshl_b32 %s, %s, 5" % (s(sT1), s(sFI)))
        a("    s_add_u32 %s, %s, %s" % (s(sT2), s(sT2), s(sT1)))
        a("    s_cmp_eq_u32 %s, 0" % s(sT0))
        a("    s_cselect_b64 %s, %s, %s" % (s(sB4, 2), s(sWG, 2), s(sWU, 2)))
        base(sB4, sB4, s(sT2))
        a("    global_load_lds_dwordx4 %s, %s%s" % (v(vGo), s(sB4, 2), {0: " nt", 1: "" if n == 0 else " nt", 2: "", 3: " nt" if n == 0 else "", 4: " nt" if n == 0 else " sc1"}[opt.get("qpol", 0)]))
    vDo = V(2)
    a("    s_lshl_b32 %s, %s, 14" % (s(sT0), s(sFI)))
    a("    s_lshl_b32 %s, %s, 7" % (s(sT1), s(sW)))
    a("    s_add_u32 %s, %s, %s" % (s(sT0), s(sT0), s(sT1)))
    base(sB5, sWD, s(sT0))
    a("    s_lshl_b32 %s, %s, 11" % (s(sT1), s(sW)))
    a("    s_add_u32 %s, %s, 0x%x" % (s(sInb), s(sT1), LD))
    a("    v_lshlrev_b32 %s, 4, %s" % (v(vDo), v(vL7)))
    a("    v_lshl_or_b32 %s, %s, 10, %s" % (v(vDo), v(vL3), v(vDo)))
    a("    v_add_u32 %s, 0x1c00, %s" % (v(vDo + 1), v(vDo)))

    def dload(i):
        def f():
            a("    s_mov_b32 m0, %s" % s(sInb))
            a("    global_load_lds_dwordx4 %s, %s offset:%d nt" % (v(vDo + i), s(sB5, 2), 1024 * i))
        return f
    order = {0: [dload(0), dload(1), lambda: quarter(0), lambda: quarter(1), lambda: quarter(2), lambda: quarter(3)],
             1: [lambda: quarter(0), dload(0), dload(1), lambda: quarter(1), lambda: quarter(2), lambda: quarter(3)],
             2: [lambda: quarter(0), lambda: quarter(1), lambda: quarter(2), lambda: quarter(3), dload(0), dload(1)]}[opt.get("ford", 0)]
    if opt.get("fdiag") == 1:
        order = order[:3]
    if opt.get("fdiag") == 2:
        order = order[:4]
    if opt.get("fdiag") == 3:
        order = order[:2]
    F0, F1 = opt.get("f0", 2), opt.get("f1", 0)
    attention(order[:F0], order[F0:F0 + F1])
    if opt.get("fack", 0):
        a("    s_waitcnt vmcnt(0)")
    a("    s_barrier")
    for k, f in enumerate(order):
        if k >= F0 + F1:
            f()
            if (opt.get("fbar", 0) >> k) & 1:
                a("    s_barrier")
    a("    s_lshl_b32 %s, %s, 11" % (s(sT1), s(sW)))
    stamp(11)
    vXc = V()
    vHs = V(16, 4)
    vHo = V(4)
    vWg = V(16, 4)
    vWd = V(8, 4)
    vHb = V(8, 4)
    vDu = V(4, 4)
    vCs = V(4, 4)
    vMt = V(4)
    vB = V(8, 4)
    vAgw, vAgr, vAsw, vAsr, vAy, vHr = [V() for _ in range(6)]
    a("    s_lshl_b32 %s, %s, 7" % (s(sT0), s(sW)))
    base(sB0, sX, s(sT0))
    a("    v_lshl_add_u32 %s, %s, 2, %s" % (v(vT + 2), v(vJ), v(vG)))
    a("    v_lshlrev_b32 %s, 1, %s" % (v(vT + 2), v(vT + 2)))
    a("    global_load_ushort %s, %s, %s" % (v(vXc), v(vT + 2), s(sB0, 2)))
    a("    global_load_ushort %s, %s, %s" % (v(vHr), v(vT + 2), s(sOUT, 2)))
    a("    s_add_u32 %s, %s, 0x%x" % (s(sT2), s(sT0), LGP))
    a("    v_lshl_add_u32 %s, %s, 4, %s" % (v(vAgw), v(vG), s(sT2)))
    a("    v_lshrrev_b32 %s, 3, %s" % (v(vT + 2), v(vJ)))
    a("    v_lshl_add_u32 %s, %s, 1, %s" % (v(vT + 2), v(vL7), v(vT + 2)))
    a("    v_lshlrev_b32 %s, 6, %s" % (v(vT + 2), v(vT + 2)))
    a("    v_lshl_add_u32 %s, %s, 4, %s" % (v(vT + 2), v(vG), v(vT + 2)))
    a("    v_add_u32 %s, 0x%x, %s" % (v(vAgr), LGP, v(vT + 2)))
    a("    s_lshl_b32 %s, %s, 3" % (s(sT2), s(sW)))
    a("    s_add_u32 %s, %s, 0x%x" % (s(sT2), s(sT2), LST))
    a("    v_mov_b32 %s, %s" % (v(vAsw), s(sT2)))
    a("    v_lshlrev_b32 %s, 3, %s" % (v(vT + 2), v(vL7)))
    a("    v_add_u32 %s, 0x%x, %s" % (v(vAsr), LST, v(vT + 2)))
    for t in range(4):
        a("    v_cmp_eq_u32 vcc, %d, %s" % (t, v(vJ)))
        a("    v_cndmask_b32 %s, 0, -1, vcc" % v(vMt + t))
    a("    s_lshl_b32 %s, %s, 8" % (s(sT0), s(sW)))
    a("    s_add_u32 %s, %s, 0x%x" % (s(sT0), s(sT0), S3))
    base(sB1, sWS, s(sT0))
    a("    v_lshlrev_b32 %s, 4, %s" % (v(vT + 2), v(vJ)))
    a("    v_lshl_or_b32 %s, %s, 11, %s" % (v(vHo), v(vG), v(vT + 2)))
    for i in (1, 2, 3):
        a("    v_add_u32 %s, 0x%x, %s" % (v(vHo + i), 8192 * i, v(vHo)))
    a("    s_mul_i32 %s, %s, %d" % (s(sT0), s(sW), 4 * 7168))
    a("    s_lshl_b32 %s, %s, 6" % (s(sT2), s(sFI)))
    a("    s_add_u32 %s, %s, %s" % (s(sT0), s(sT0), s(sT2)))
    a("    s_add_u32 %s, %s, 0x%x" % (s(sT0), s(sT0), S4))
    base(sB2, sWS, s(sT0))
    a("    v_lshrrev_b32 %s, 2, %s" % (v(vT + 2), v(vJ)))
    a("    v_mul_u32_u24 %s, 7168, %s" % (v(vT + 2), v(vT + 2)))
    a("    v_and_b32 %s, 3, v0" % v(vT + 3))
    a("    v_lshl_add_u32 %s, %s, 4, %s" % (v(vAy), v(vT + 3), v(vT + 2)))
    a("    v_lshrrev_b32 %s, 2, %s" % (v(vT + 2), v(vJ)))
    a("    v_and_b32 %s, 3, v0" % v(vT + 3))
    a("    v_lshl_add_u32 %s, %s, 2, %s" % (v(vT + 4), v(vT + 2), v(vG)))
    a("    v_lshlrev_b32 %s, 5, %s" % (v(vT + 4), v(vT + 4)))
    a("    v_lshl_add_u32 %s, %s, 3, %s" % (v(vT + 4), v(vT + 3), v(vT + 4)))
    a("    s_add_u32 %s, %s, 0x%x" % (s(sT2), s(sT1), LG))
    a("    v_add_u32 %s, %s, %s" % (v(vT + 4), s(sT2), v(vT + 4)))
    a("    v_lshl_add_u32 %s, %s, 2, %s" % (v(vT + 5), v(vG), v(vT + 2)))
    a("    v_lshlrev_b32 %s, 7, %s" % (v(vT + 5), v(vT + 5)))
    a("    v_lshl_add_u32 %s, %s, 3, %s" % (v(vT + 5), v(vT + 3), v(vT + 5)))
    a("    s_add_u32 %s, %s, 0x%x" % (s(sT2), s(sT1), LD))
    a("    v_add_u32 %s, %s, %s" % (v(vT + 5), s(sT2), v(vT + 5)))
    for i in range(4):
        a("    v_mov_b32 %s, 0x3f803f80" % v(vHb + i))

    def hloadsf():
        for i in range(4):
            a("    global_load_dwordx4 %s, %s, %s sc1" % (v(vHs + 4 * i, 4), v(vHo + i), s(sB1, 2)))
    S3B = opt.get("s3bell", 1)
    if S3B:
        a("    s_cmp_lg_u32 %s, 0" % s(sW))
        a("    s_cbranch_scc1 L_HINT")
        a("    v_lshlrev_b32 %s, 7, %s" % (v(vT + 1), v(vL7)))
        a("    v_add_u32 %s, 0x%x, %s" % (v(vT + 1), SBELL, v(vT + 1)))

        def hint():
            a("    global_load_dword %s, %s, %s sc1" % (v(vT + 2), v(vT + 1), s(sWS, 2)))

        def hintcheck():
            a("    v_cmp_ne_u32 vcc, %s, %s" % (s(sT32), v(vT + 2)))
        setexec(0xFF, 0)
        hint()
        poll(hint, hintcheck, 0, cnt=12)
        a("L_HINT:")
        a("    s_barrier")
    hloadsf()
    a("    s_waitcnt vmcnt(4)")
    stamp(7)
    for mat in range(2):
        for st in range(2):
            for hh in range(2):
                a("    ds_read_b64_tr_b16 %s, %s offset:%d" %
                  (v(vWg + 8 * mat + 4 * st + 2 * hh, 2), v(vT + 4), 16384 * mat + 1024 * st + 512 * hh))
    for t in range(4):
        a("    ds_read_b64_tr_b16 %s, %s offset:%d" % (v(vWd + 2 * t, 2), v(vT + 5), 32 * t))
    a("    v_lshlrev_b32 %s, 16, %s" % (v(vXc), v(vXc)))
    a("    s_waitcnt lgkmcnt(0)")

    def gate_up(b0, b1):
        a("    v_mfma_f32_16x16x32_bf16 %s, %s, %s, 0" % (v(vD, 4), v(vWg, 4), v(b0, 4)))
        a("    v_mfma_f32_16x16x32_bf16 %s, %s, %s, 0" % (v(vDu, 4), v(vWg + 8, 4), v(b0, 4)))
        a("    v_mfma_f32_16x16x32_bf16 %s, %s, %s, %s" % (v(vD, 4), v(vWg + 4, 4), v(b1, 4), v(vD, 4)))
        a("    v_mfma_f32_16x16x32_bf16 %s, %s, %s, %s" % (v(vDu, 4), v(vWg + 12, 4), v(b1, 4), v(vDu, 4)))
    gate_up(vHb, vHb)
    setexec(0x00010001, 0x00010001)
    a("    ds_write_b128 %s, %s offset:%d" % (v(vAgw), v(vD, 4), LCS - LGP))
    a("    ds_write_b128 %s, %s offset:%d" % (v(vAgw), v(vDu, 4), LCS - LGP + 64))
    setexec(0xFFFFFFFF, 0xFFFFFFFF)
    a("    s_waitcnt lgkmcnt(0)")
    a("    s_barrier")
    a("    ds_read_b128 %s, %s offset:%d" % (v(vCs, 4), v(vAgr), LCS - LGP))
    a("    s_waitcnt lgkmcnt(0)")
    for pat in ("quad_perm:[1,0,3,2]", "quad_perm:[2,3,0,1]", "row_half_mirror"):
        for r in range(4):
            a("    v_add_f32_dpp %s, %s, %s %s %s" % (v(vCs + r), v(vCs + r), v(vCs + r), pat, DPP))

    def hcheckf():
        tagcheck([vHs + i for i in range(16)], sTag10, vT)
        a("    v_and_b32 %s, 0x3ff, %s" % (v(vT), v(vT)))
        a("    v_cmp_ne_u32 vcc, 0, %s" % v(vT))
    poll(hloadsf, hcheckf, 0, cnt=13)
    stamp(8)
    for i in range(16):
        a("    v_and_b32 %s, %s, %s" % (v(vHs + i), s(sM10), v(vHs + i)))
    for (d, x) in ((0, 4), (8, 12), (0, 8)):
        a("    v_pk_add_f32 %s, %s, %s" % (v(vHs + d, 2), v(vHs + d, 2), v(vHs + x, 2)))
        a("    v_pk_add_f32 %s, %s, %s" % (v(vHs + d + 2, 2), v(vHs + d + 2, 2), v(vHs + x + 2, 2)))
    treduce4(vHs)
    bf16r(vHs, vHs)
    a("    v_add_f32 %s, %s, %s" % (v(vHs), v(vHs), v(vXc)))
    rowpack(vHs, vHb, 8)
    bf16r(vHr, vHs)
    gate_up(vHb, vHb + 4)
    a("    v_mul_f32 %s, %s, %s" % (v(vT + 1), v(vHr), v(vHr)))
    a("    v_add_f32_dpp %s, %s, %s row_ror:1 %s" % (v(vT), v(vHr), v(vHr), DPP))
    a("    v_add_f32_dpp %s, %s, %s row_ror:1 %s" % (v(vT + 1), v(vT + 1), v(vT + 1), DPP))
    for sh in (2, 4, 8):
        for r in range(2):
            a("    v_add_f32_dpp %s, %s, %s row_ror:%d %s" % (v(vT + r), v(vT + r), v(vT + r), sh, DPP))
    for pat in ("row_bcast:15 row_mask:0xa", "row_bcast:31 row_mask:0xc"):
        for r in range(2):
            a("    v_add_f32_dpp %s, %s, %s %s bank_mask:0xf" % (v(vT + r), v(vT + r), v(vT + r), pat))
    setexec(0, 0x80000000)
    a("    ds_write_b64 %s, %s" % (v(vAsw), v(vT, 2)))
    setexec(0x00010001, 0x00010001)
    a("    ds_write_b128 %s, %s" % (v(vAgw), v(vD, 4)))
    a("    ds_write_b128 %s, %s offset:64" % (v(vAgw), v(vDu, 4)))
    setexec(0xFFFFFFFF, 0xFFFFFFFF)
    a("    s_waitcnt lgkmcnt(0)")
    a("    s_barrier")
    a("    ds_read_b64 %s, %s" % (v(vT, 2), v(vAsr)))
    a("    ds_read_b128 %s, %s" % (v(vD, 4), v(vAgr)))
    a("    s_waitcnt lgkmcnt(0)")
    for pat in ("quad_perm:[1,0,3,2]", "quad_perm:[2,3,0,1]", "row_half_mirror"):
        for r in (vT, vT + 1, vD, vD + 1, vD + 2, vD + 3):
            a("    v_add_f32_dpp %s, %s, %s %s %s" % (v(r), v(r), v(r), pat, DPP))
    a("    v_mul_f32 %s, 0x3b000000, %s" % (v(vT), v(vT)))
    bf16r(vT + 2, vT)
    for r in (0, 2):
        a("    v_pk_fma_f32 %s, %s, %s, %s op_sel_hi:[0,1,1] neg_lo:[1,0,0] neg_hi:[1,0,0]" %
          (v(vD + r, 2), v(vT + 2, 2), v(vCs + r, 2), v(vD + r, 2)))
    a("    v_mul_f32 %s, 0x3b000000, %s" % (v(vT + 1), v(vT + 1)))
    a("    v_fma_f32 %s, -%s, %s, %s" % (v(vT + 1), v(vT), v(vT), v(vT + 1)))
    for r in range(4):
        a("    v_mul_f32_dpp %s, %s, %s row_ror:8 %s" % (v(vT + 4 + r), v(vD + r), v(vD + r), DPP))
    a("    v_cvt_pk_bf16_f32 %s, %s, %s" % (v(vT + 2), v(vT + 4), v(vT + 5)))
    a("    v_cvt_pk_bf16_f32 %s, %s, %s" % (v(vT + 3), v(vT + 6), v(vT + 7)))
    for t in range(4):
        a("    v_and_b32 %s, %s, %s" % (v(vB + 2 * t), v(vT + 2), v(vMt + t)))
        a("    v_and_b32 %s, %s, %s" % (v(vB + 2 * t + 1), v(vT + 3), v(vMt + t)))
        if t:
            a("    v_mfma_f32_16x16x16_bf16 %s, %s, %s, %s" %
              (v(vDu, 4), v(vB + 2 * t - 2, 2), v(vWd + 2 * t - 2, 2), "0" if t == 1 else v(vDu, 4)))
    a("    v_max_f32 %s, 0, %s" % (v(vT + 1), v(vT + 1)))
    a("    v_mfma_f32_16x16x16_bf16 %s, %s, %s, %s" % (v(vDu, 4), v(vB + 6, 2), v(vWd + 6, 2), v(vDu, 4)))
    bf16r(vT + 1, vT + 1)
    a("    v_add_f32 %s, 0x3727c5ac, %s" % (v(vT + 1), v(vT + 1)))
    bf16r(vT + 1, vT + 1)
    a("    v_sqrt_f32 %s, %s" % (v(vT + 1), v(vT + 1)))
    bf16r(vT + 1, vT + 1)
    a("    v_mul_f32 %s, %s, %s" % (v(vT + 1), v(vT + 1), v(vT + 1)))
    a("    v_rcp_f32 %s, %s" % (v(vT), v(vT + 1)))
    setexec(0xFFFF, 0)
    for r in (0, 2):
        a("    v_pk_mul_f32 %s, %s, %s op_sel_hi:[1,0]" % (v(vDu + r, 2), v(vDu + r, 2), v(vT, 2)))
    for i in range(4):
        a("    v_and_or_b32 %s, %s, %s, %s" % (v(vDu + i), v(vDu + i), s(sM10), v(vTag10)))
    a("    global_store_dwordx4 %s, %s, %s sc1" % (v(vAy), v(vDu, 4), s(sB2, 2)))
    stamp(9)
    a("    s_lshr_b32 %s, %s, 2" % (s(sT0), s(sFI)))
    a("    s_cmp_lg_u32 %s, %s" % (s(sT0), s(sW)))
    a("    s_cbranch_scc1 L_FIN2")
    setexec(0xFFFFFFFF, 0xFFFFFFFF)
    vY = V(28, 4)
    vCo = V()
    a("    v_and_b32 %s, 3, v0" % v(vT))
    a("    v_lshlrev_b32 %s, 2, %s" % (v(vT + 1), v(vG)))
    a("    v_lshl_add_u32 %s, %s, 4, %s" % (v(vT + 1), v(vT), v(vT + 1)))
    a("    v_add_u32 %s, %s, %s" % (v(vT + 1), s(sU), v(vT + 1)))
    a("    v_lshlrev_b32 %s, 2, %s" % (v(vT + 1), v(vT + 1)))
    a("    ds_bpermute_b32 %s, %s, %s" % (v(vHr), v(vT + 1), v(vHr)))
    a("    v_lshl_add_u32 %s, %s, 4, %s" % (v(vCo), v(vG), v(vT)))
    a("    v_lshlrev_b32 %s, 1, %s" % (v(vCo), v(vCo)))
    a("    s_lshl_b32 %s, %s, 7" % (s(sT0), s(sW)))
    a("    s_lshl_b32 %s, %s, 3" % (s(sT1), s(sU)))
    a("    s_add_u32 %s, %s, %s" % (s(sT0), s(sT0), s(sT1)))
    base(sB3, sOUT, s(sT0))
    a("    s_mul_i32 %s, %s, 7168" % (s(sT1), s(sFI)))
    a("    s_add_u32 %s, %s, 0x%x" % (s(sT1), s(sT1), S4 + 3072))
    base(sB2, sWS, s(sT1))

    def yloads():
        for n in range(7):
            a("    global_load_dwordx4 %s, %s, %s offset:%d sc1" % (v(vY + 4 * n, 4), v(vAo), s(sB2, 2), 1024 * n - 3072))

    def ycheck():
        tagcheck([vY + i for i in range(28)], sTag10, vT)
        a("    v_and_b32 %s, 0x3ff, %s" % (v(vT), v(vT)))
        a("    v_cmp_ne_u32 vcc, 0, %s" % v(vT))
    if opt.get("ackwait", 1):
        a("    s_waitcnt vmcnt(0)")
    yloads()
    poll(yloads, ycheck, 0, cnt=None if opt.get("astamps") else 15)
    if not opt.get("astamps"):
        stamp(14)
    for i in range(28):
        a("    v_and_b32 %s, %s, %s" % (v(vY + i), s(sM10), v(vY + i)))
    for (d, x) in ((0, 4), (8, 12), (16, 20), (0, 8), (16, 24), (0, 16)):
        a("    v_pk_add_f32 %s, %s, %s" % (v(vY + d, 2), v(vY + d, 2), v(vY + x, 2)))
        a("    v_pk_add_f32 %s, %s, %s" % (v(vY + d + 2, 2), v(vY + d + 2, 2), v(vY + x + 2, 2)))
    treduce4(vY)
    for sh in (4, 8):
        a("    v_add_f32_dpp %s, %s, %s row_ror:%d %s" % (v(vY), v(vY), v(vY), sh, DPP))
    bf16r(vY, vY)
    a("    s_waitcnt lgkmcnt(0)")
    a("    v_add_f32 %s, %s, %s" % (v(vY), v(vY), v(vHr)))
    a("    v_cvt_pk_bf16_f32 %s, %s, %s" % (v(vY), v(vY), v(vY)))
    setexec(0x000F000F, 0x000F000F)
    a("    global_store_short %s, %s, %s" % (v(vCo), v(vY), s(sB3, 2)))
    a("    s_cmp_lg_u32 %s, 0" % s(sFI))
    a("    s_cbranch_scc1 L_FIN2")
    setexec(1, 0)
    a("    v_mov_b32 %s, 0" % v(vT))
    a("    v_mov_b32 %s, %s" % (v(vT + 1), s(sT32)))
    a("    global_store_dword %s, %s, %s sc1" % (v(vT), v(vT + 1), s(sWS, 2)))
    if opt.get("diagspin"):
        a("    s_waitcnt lgkmcnt(0)")
        if "diagph" in opt:
            a("    s_sub_u32 s90, s90, s96")
            a("    s_lshl_b32 s90, s90, 2")
            a("    s_add_u32 s96, s96, s90")
        a("    s_add_u32 s96, s96, %d" % opt["diagspin"])
        a("L_DIAG:")
        a("    s_memrealtime s[92:93]")
        a("    s_waitcnt lgkmcnt(0)")
        a("    s_sub_u32 s92, s92, s96")
        a("    s_cmp_lt_i32 s92, 0")
        a("    s_cbranch_scc1 L_DIAG")
    a("L_FIN2:")
    finish()

    if prof:
        a("L_PROF:")
        a("    s_memrealtime %s" % s(sPROF + 20, 2))
        a("    s_mov_b64 exec, 1")
        a("    s_lshl_b32 %s, s2, 3" % s(sT0))
        a("    s_add_u32 %s, %s, %s" % (s(sT0), s(sT0), s(sW)))
        a("    s_lshl_b32 %s, %s, 7" % (s(sT0), s(sT0)))
        a("    s_add_u32 %s, %s, 0x%x" % (s(sT0), s(sT0), PROFB))
        base(sB0, sWS, s(sT0))
        a("    v_mov_b32 v1, 0")
        a("    s_waitcnt lgkmcnt(0)")
        for i in range(16):
            a("    v_mov_b32 v2, %s" % s(sPROF + 2 * i))
            if prof == 2:
                a("    global_atomic_umax v1, v2, %s offset:%d sc1" % (s(sDBG, 2), 4 * i))
            else:
                a("    global_store_dword v1, v2, %s offset:%d" % (s(sB0, 2), 4 * i))
        if prof == 2:
            a("    s_not_b32 %s, %s" % (s(sT0), s(sPROF)))
            a("    v_mov_b32 v2, %s" % s(sT0))
            a("    global_atomic_umax v1, v2, %s offset:48 sc1" % s(sDBG, 2))
        a("    s_endpgm")
    a("L_END:")
    a("    s_endpgm")
    a("L_CODE_END:")
    nv = (V.hi + 7) // 8 * 8
    a('.section .rodata,"a"')
    a(".p2align 6")
    a(".amdhsa_kernel %s_kernel" % NAME)
    a("  .amdhsa_next_free_vgpr %d" % nv)
    a("  .amdhsa_next_free_sgpr 102")
    a("  .amdhsa_accum_offset %d" % nv)
    a("  .amdhsa_group_segment_fixed_size 0")
    a("  .amdhsa_kernarg_size 96")
    a("  .amdhsa_user_sgpr_count 2")
    a("  .amdhsa_user_sgpr_kernarg_segment_ptr 1")
    a("  .amdhsa_system_sgpr_workgroup_id_x 1")
    a("  .amdhsa_float_denorm_mode_32 3")
    a(".end_amdhsa_kernel")
    return out + a.finalize()


if __name__ == "__main__":
    import argparse
    ap = argparse.ArgumentParser()
    ap.add_argument("-o", default=None)
    ap.add_argument("--prof", type=int, default=0)
    ap.add_argument("--opt", default="")
    args = ap.parse_args()
    opt = {}
    for kv in args.opt.split(","):
        if kv:
            k, x = kv.split("=")
            opt[k] = int(x)
    txt = gen(args.prof, opt)
    path = args.o or os.path.join(os.path.dirname(os.path.abspath(__file__)), "..", "cdna_kernels", NAME + ".s")
    open(path, "w").write(txt)
    print("wrote", path, len(txt.split("\n")), "lines")
```

```python
import sys
import os
sys.path.insert(0, os.path.dirname(os.path.abspath(__file__)))
from asmlib import Asm

NAME = "sequential_preLN__sliding_block_cached__glu_gated_bilinear__decode"

EPOCH = 0
S1 = 0x1000
S2ML = 0x11000
S3 = 0x15000
S4 = 0xE0000
SBELL = 0x54000
SRDY = 0x58000
SQF = 0x5C000
S2O = 0x60000
PROFB = 0x200000

LK = 0
LV = 32768
LG = 65536
LD = 98304
LRED = 114688
LQ = 119040
LMX = 120128
LLS = 120256
LP = 120768
LH = 121856
LGP = 122880
LCS = 123904
LST = 124928
LWT = 124992
LEP = 125504
LDS_BYTES = 125568

DPP = "row_mask:0xf bank_mask:0xf"
SPIN_LIMIT = 1 << 18


class Regs:
    def __init__(self, start):
        self.n = start
        self.hi = start

    def __call__(self, cnt=1, align=None):
        if align is None:
            align = 2 if cnt > 1 else 1
        self.n = (self.n + align - 1) // align * align
        b = self.n
        self.n += cnt
        self.hi = max(self.hi, self.n)
        return b

    def mark(self):
        return self.n

    def release(self, m):
        self.n = m


def v(b, n=1):
    return "v%d" % b if n == 1 else "v[%d:%d]" % (b, b + n - 1)


def s(b, n=1):
    return "s%d" % b if n == 1 else "s[%d:%d]" % (b, b + n - 1)


def gen(prof=False, opt=None):
    opt = dict(opt or {})
    for k_, x_ in dict(bx=1, qpol=3, win=3, mb=0, sw=6, sf=1, ft=7, t0p=2, fack=0, ost=1, amx=0, pl=0, sb2=1, sb3=1).items():
        opt.setdefault(k_, x_)
    a = Asm()
    V = Regs(1)
    sX, sK, sVp, sWQ, sWO, sBX, sWG, sWU = 4, 6, 8, 10, 12, 14, 16, 18
    sWD, sOUT, sDBG, sWS = 20, 22, 24, 26
    sE, sW, sH, sJ = 28, 29, 30, 31
    sT0, sT1, sT2, sT3 = 32, 33, 34, 35
    sB0, sB1, sB2, sB3 = 36, 38, 40, 42
    sM8, sM10, sTag8, sTag10, sT32 = 44, 45, 46, 47, 48
    sSpin, sTmp, sDummy = 49, 50, 51
    sPC = 52
    sB4 = 54
    sU, sFI = 56, 57
    sMean, sVar = 58, 59
    sBo, sBml = 60, 62
    sBfl = 94
    sB5, sInb = 98, 100
    sFl = 4
    sRep = 92
    sScale = 14
    sPROF = 64
    uid = [0]
    R2, R3 = opt.get("r2", 4), opt.get("r3", 16)
    vm = []

    def waitfor(name):
        n = len(vm) - 1 - vm.index(name)
        a("    s_waitcnt vmcnt(%d)" % n)

    STM = opt.get("stamps", 0xFFFF)

    def stamp(i):
        if opt.get("diagph") == i:
            a("    s_memrealtime s[90:91]")
        if prof and (STM >> i) & 1:
            a("    s_memrealtime %s" % s(sPROF + 2 * i, 2))

    def setexec(lo, hi):
        if lo == hi == 0xFFFFFFFF:
            a("    s_mov_b64 exec, -1")
        else:
            a("    s_mov_b32 exec_lo, 0x%x" % lo)
            a("    s_mov_b32 exec_hi, 0x%x" % hi)

    def base(dst, ptr, off_sreg):
        a("    s_add_u32 %s, %s, %s" % (s(dst), s(ptr), off_sreg))
        a("    s_addc_u32 %s, %s, 0" % (s(dst + 1), s(ptr + 1)))

    def finish():
        if prof:
            a("    s_branch L_PROF")
        else:
            a("    s_endpgm")

    def bf16r(dst, src):
        a("    v_cvt_pk_bf16_f32 %s, %s, %s" % (v(dst), v(src), v(src)))
        a("    v_and_b32 %s, 0xffff0000, %s" % (v(dst), v(dst)))

    def wavesum_to_sgpr(r, sd):
        for sh in (1, 2, 4, 8):
            a("    v_add_f32_dpp %s, %s, %s row_ror:%d %s" % (v(r), v(r), v(r), sh, DPP))
        a("    v_add_f32_dpp %s, %s, %s row_bcast:15 row_mask:0xa bank_mask:0xf" % (v(r), v(r), v(r)))
        a("    v_add_f32_dpp %s, %s, %s row_bcast:31 row_mask:0xc bank_mask:0xf" % (v(r), v(r), v(r)))
        a("    v_readlane_b32 %s, %s, 63" % (s(sd), v(r)))

    def tagcheck(regs, tagreg, tmp, first=True):
        for i, r in enumerate(regs):
            if first and i == 0:
                a("    v_xor_b32 %s, %s, %s" % (v(tmp), s(tagreg), v(r)))
            else:
                a("    v_bitop3_b32 %s, %s, %s, %s bitop3:0xf6" % (v(tmp), v(tmp), v(r), s(tagreg)))

    def poll(loads, check, firstwait, post=None, cnt=None, keepexec=False):
        uid[0] += 1
        u = uid[0]
        a("    s_mov_b32 %s, 0" % s(sSpin))
        a("    s_branch L_CHECK%d" % u)
        a("L_RETRY%d:" % u)
        a("    s_add_u32 %s, %s, 1" % (s(sSpin), s(sSpin)))
        a("    s_cmp_ge_u32 %s, 0x%x" % (s(sSpin), SPIN_LIMIT))
        a("    s_cbranch_scc1 L_OK%d" % u)
        a("    s_mov_b64 exec, vcc")
        loads()
        if firstwait:
            a("    s_waitcnt vmcnt(0)")
        a("L_CHECK%d:" % u)
        a("    s_waitcnt vmcnt(%d)" % firstwait)
        check()
        a("    s_cbranch_vccnz L_RETRY%d" % u)
        a("L_OK%d:" % u)
        a("    s_mov_b64 exec, -1")
        if prof and cnt is not None and (not opt.get("astamps") or cnt == 15):
            a("    s_mov_b32 %s, %s" % (s(sPROF + 2 * cnt), s(sSpin)))
        if post:
            post()

    def spoll(pair, off, rep):
        uid[0] += 1
        u = uid[0]
        a("    s_mov_b32 %s, 0" % s(sSpin))
        depth = opt.get("spd", 1)
        if depth > 1:
            for k in range(4):
                a("    s_not_b64 %s, %s" % (s(sFl + 2 * k, 2), s(rep, 2)))
            a("L_SP%d:" % u)
            a("    s_add_u32 %s, %s, 1" % (s(sSpin), s(sSpin)))
            a("    s_cmp_ge_u32 %s, 0x%x" % (s(sSpin), SPIN_LIMIT))
            a("    s_cbranch_scc1 L_SPD%d" % u)
            a("    s_load_dwordx8 %s, %s, %s glc" % (s(sFl, 8), s(pair, 2), off))
            a("    s_waitcnt lgkmcnt(%d)" % (2 * depth - 2))
            for k in range(4):
                a("    s_cmp_eq_u64 %s, %s" % (s(sFl + 2 * k, 2), s(rep, 2)))
                a("    s_cbranch_scc0 L_SP%d" % u)
            a("L_SPD%d:" % u)
            return
        a("L_SP%d:" % u)
        a("    s_load_dwordx8 %s, %s, %s glc" % (s(sFl, 8), s(pair, 2), off))
        a("    s_add_u32 %s, %s, 1" % (s(sSpin), s(sSpin)))
        a("    s_cmp_ge_u32 %s, 0x%x" % (s(sSpin), SPIN_LIMIT))
        a("    s_waitcnt lgkmcnt(0)")
        a("    s_cbranch_scc1 L_SPD%d" % u)
        for k in range(4):
            a("    s_xor_b64 %s, %s, %s" % (s(sFl + 2 * k, 2), s(sFl + 2 * k, 2), s(rep, 2)))
        a("    s_or_b64 %s, %s, %s" % (s(sFl, 2), s(sFl, 2), s(sFl + 2, 2)))
        a("    s_or_b64 %s, %s, %s" % (s(sFl + 4, 2), s(sFl + 4, 2), s(sFl + 6, 2)))
        a("    s_or_b64 %s, %s, %s" % (s(sFl, 2), s(sFl, 2), s(sFl + 4, 2)))
        a("    s_cbranch_scc1 L_SP%d" % u)
        a("L_SPD%d:" % u)

    def gather(loads, regs, tag, lowmask, acc, cnt=None, before=None):
        uid[0] += 1
        u = uid[0]
        n = len(regs)

        def strip(i, first):
            r = regs[i]
            for k in range(4):
                a("    v_xor_b32 %s, %s, %s" % (v(r + k), s(tag), v(r + k)))
            if first:
                a("    v_or3_b32 %s, %s, %s, %s" % (v(vG0), v(r), v(r + 1), v(r + 2)))
                a("    v_or_b32 %s, %s, %s" % (v(vG0), v(vG0), v(r + 3)))
            else:
                a("    v_or3_b32 %s, %s, %s, %s" % (v(vG0), v(vG0), v(r), v(r + 1)))
                a("    v_or3_b32 %s, %s, %s, %s" % (v(vG0), v(vG0), v(r + 2), v(r + 3)))

        def verdict():
            a("    v_and_b32 %s, 0x%x, %s" % (v(vG0), lowmask, v(vG0)))
            a("    v_cmp_ne_u32 vcc, 0, %s" % v(vG0))
        a("    s_mov_b32 %s, 0" % s(sSpin))
        a("    s_branch L_FIRST%d" % u)
        a("L_RETRY%d:" % u)
        a("    s_add_u32 %s, %s, 1" % (s(sSpin), s(sSpin)))
        a("    s_cmp_ge_u32 %s, 0x%x" % (s(sSpin), SPIN_LIMIT))
        a("    s_cbranch_scc1 L_REDO%d" % u)
        a("    s_mov_b64 exec, vcc")
        loads()
        a("    s_waitcnt vmcnt(0)")
        for i in range(n):
            strip(i, i == 0)
        verdict()
        a("    s_cbranch_vccnz L_RETRY%d" % u)
        a("L_REDO%d:" % u)
        a("    s_mov_b64 exec, -1")
        for i in range(n):
            acc(i)
        a("    s_branch L_OK%d" % u)
        a("L_FIRST%d:" % u)
        if before:
            before()
        for i in range(n):
            a("    s_waitcnt vmcnt(%d)" % (n - 1 - i))
            strip(i, i == 0)
            if i == n - 1:
                verdict()
            acc(i)
        a("    s_cbranch_vccnz L_RETRY%d" % u)
        a("L_OK%d:" % u)
        if prof and cnt is not None and not opt.get("astamps"):
            a("    s_mov_b32 %s, %s" % (s(sPROF + 2 * cnt), s(sSpin)))

    def allred_hi(r, tmp, op):
        for sh in (4, 8):
            a("    v_%s_f32_dpp %s, %s, %s row_ror:%d %s" % (op, v(r), v(r), v(r), sh, DPP))
        for sw in ("16", "32"):
            a("    v_mov_b32 %s, %s" % (v(tmp), v(r)))
            a("    v_permlane%s_swap_b32 %s, %s" % (sw, v(r), v(tmp)))
            a("    v_%s_f32 %s, %s, %s" % (op, v(r), v(r), v(tmp)))

    def rowpack(r, dst, n):
        a("    v_mov_b32_dpp %s, %s quad_perm:[1,1,3,3] %s" % (v(r + 1), v(r), DPP))
        a("    v_cvt_pk_bf16_f32 %s, %s, %s" % (v(r + 1), v(r), v(r + 1)))
        for i in range(n):
            a("    v_mov_b32_dpp %s, %s row_newbcast:%d %s" % (v(dst + i), v(r + 1), 2 * i, DPP))

    def treduce4(r):
        a("    v_permlane32_swap_b32 %s, %s" % (v(r), v(r + 2)))
        a("    v_permlane32_swap_b32 %s, %s" % (v(r + 1), v(r + 3)))
        a("    v_add_f32 %s, %s, %s" % (v(r), v(r), v(r + 2)))
        a("    v_add_f32 %s, %s, %s" % (v(r + 1), v(r + 1), v(r + 3)))
        a("    v_permlane16_swap_b32 %s, %s" % (v(r), v(r + 1)))
        a("    v_add_f32 %s, %s, %s" % (v(r), v(r), v(r + 1)))

    hdr = open(os.path.join(os.path.dirname(os.path.abspath(__file__)), "..", "cdna_kernels", NAME + ".s.ref")).read()
    head = [l for l in hdr.split("\n") if l.startswith("; Kernarg") or l.startswith(";   offset")]
    out = "\n".join(head) + "\n"
    out += "; One persistent launch: 256 workgroups (one per CU) x 8 waves.\n"
    out += "; @launch grid=(256,1,1) block=(512,1,1) lds=%d\n" % LDS_BYTES
    a('.amdgcn_target "amdgcn-amd-amdhsa--gfx950"')
    a(".text")
    a(".globl %s_kernel" % NAME)
    a(".p2align 8")
    a(".type %s_kernel,@function" % NAME)
    a("%s_kernel:" % NAME)

    vL = 0
    vM = V(4, 4)
    vTag8, vTag10, vG0 = V(), V(), V()
    vL3, vL7, vG, vJ = V(), V(), V(), V()
    vRedW, vRedR, vRedR8, vC4 = V(), V(), V(), V()
    vD = V(4, 4)
    vT = V(8, 4)
    vV0 = V(4)
    vV1 = vV0 + 1
    vW = V(16, 4)
    vAk = V(4)
    vKo = V(4)
    vAq, vAqw, vAmw, vAmr, vAlw, vApw, vApr, vAv, vAo, vAlr, vQo = [V() for _ in range(11)]
    mk = V.mark()

    def attn_addresses():
        a("    s_lshl_b32 %s, %s, 12" % (s(sT0), s(sW)))
        a("    v_xor_b32 %s, %s, %s" % (v(vT), v(vJ), v(vG)))
        a("    v_lshlrev_b32 %s, 4, %s" % (v(vT), v(vT)))
        a("    v_lshl_or_b32 %s, %s, 8, %s" % (v(vT), v(vJ), v(vT)))
        a("    v_add_u32 %s, %s, %s" % (v(vAk), s(sT0), v(vT)))
        for i in (1, 2, 3):
            a("    v_xor_b32 %s, 0x%x, %s" % (v(vAk + i), 64 * i, v(vAk)))
        a("    v_and_b32 %s, 3, v0" % v(vT))
        a("    v_mul_u32_u24 %s, 272, %s" % (v(vT + 1), v(vT)))
        a("    v_lshl_add_u32 %s, %s, 4, %s" % (v(vT + 2), v(vG), v(vT + 1)))
        a("    v_add_u32 %s, 0x%x, %s" % (v(vAq), LQ, v(vT + 2)))
        a("    v_add_u32 %s, 0x%x, %s" % (v(vApr), LP, v(vT + 2)))
        a("    s_lshr_b32 %s, %s, 1" % (s(sT0), s(sW)))
        a("    s_and_b32 %s, %s, 1" % (s(sT1), s(sW)))
        a("    s_lshl_b32 %s, %s, 6" % (s(sT2), s(sT0)))
        a("    s_lshl_b32 %s, %s, 3" % (s(sT3), s(sT1)))
        a("    s_add_u32 %s, %s, %s" % (s(sT2), s(sT2), s(sT3)))
        a("    v_add_u32 %s, %s, %s" % (v(vApw), s(sT2), v(vApr)))
        a("    s_mul_i32 %s, %s, 272" % (s(sT0), s(sT0)))
        a("    s_lshl_b32 %s, %s, 7" % (s(sT1), s(sT1)))
        a("    s_add_u32 %s, %s, %s" % (s(sT0), s(sT0), s(sT1)))
        a("    s_add_u32 %s, %s, 0x%x" % (s(sT0), s(sT0), LQ))
        a("    v_lshl_add_u32 %s, %s, 2, %s" % (v(vT + 3), v(vJ), v(vG)))
        a("    v_lshl_add_u32 %s, %s, 1, %s" % (v(vAqw), v(vT + 3), s(sT0)))
        a("    v_lshlrev_b32 %s, 5, %s" % (v(vT + 1), v(vT)))
        a("    v_add_u32 %s, 0x%x, %s" % (v(vAmr), LMX, v(vT + 1)))
        a("    s_lshl_b32 %s, %s, 2" % (s(sT0), s(sW)))
        a("    v_add_u32 %s, %s, %s" % (v(vAmw), s(sT0), v(vAmr)))
        a("    s_lshl_b32 %s, %s, 4" % (s(sT0), s(sW)))
        a("    s_add_u32 %s, %s, 0x%x" % (s(sT0), s(sT0), LLS))
        a("    v_lshlrev_b32 %s, 7, %s" % (v(vT + 1), v(vT)))
        a("    v_lshl_add_u32 %s, %s, 2, %s" % (v(vT + 1), v(vG), v(vT + 1)))
        a("    v_add_u32 %s, %s, %s" % (v(vAlw), s(sT0), v(vT + 1)))
        a("    v_lshrrev_b32 %s, 2, v0" % v(vT + 1))
        a("    v_lshlrev_b32 %s, 3, %s" % (v(vT + 1), v(vT + 1)))
        a("    v_lshl_add_u32 %s, %s, 7, %s" % (v(vT + 1), v(vT), v(vT + 1)))
        a("    v_add_u32 %s, 0x%x, %s" % (v(vAlr), LLS, v(vT + 1)))
        a("    v_lshrrev_b32 %s, 2, %s" % (v(vT + 1), v(vJ)))
        a("    v_lshl_add_u32 %s, %s, 2, %s" % (v(vT + 1), v(vG), v(vT + 1)))
        a("    v_and_b32 %s, 7, %s" % (v(vT + 2), v(vT + 1)))
        a("    v_lshlrev_b32 %s, 1, %s" % (v(vT + 2), v(vT + 2)))
        a("    v_bfe_u32 %s, v0, 1, 1" % v(vT + 3))
        a("    s_lshl_b32 %s, %s, 1" % (s(sT0), s(sW)))
        a("    v_add_u32 %s, %s, %s" % (v(vT + 3), s(sT0), v(vT + 3)))
        a("    v_xor_b32 %s, %s, %s" % (v(vT + 2), v(vT + 2), v(vT + 3)))
        a("    v_lshlrev_b32 %s, 4, %s" % (v(vT + 2), v(vT + 2)))
        a("    v_lshl_or_b32 %s, %s, 8, %s" % (v(vT + 1), v(vT + 1), v(vT + 2)))
        a("    v_and_b32 %s, 1, v0" % v(vT + 2))
        a("    v_lshl_or_b32 %s, %s, 3, %s" % (v(vT + 1), v(vT + 2), v(vT + 1)))
        a("    v_add_u32 %s, 0x%x, %s" % (v(vAv), LV, v(vT + 1)))
        a("    s_lshl_b32 %s, %s, 5" % (s(sT0), s(sH)))
        a("    s_add_u32 %s, %s, %s" % (s(sT0), s(sT0), s(sJ)))
        a("    s_lshl_b32 %s, %s, 6" % (s(sT2), s(sT0)))
        a("    s_add_u32 %s, %s, 0x%x" % (s(sT2), s(sT2), S2ML))
        base(sBml, sWS, s(sT2))
        if opt.get("sb2", 0):
            a("    s_lshl_b32 %s, %s, 11" % (s(sT0), s(sH)))
            a("    s_add_u32 %s, %s, %s" % (s(sT0), s(sT0), s(sJ)))
            a("    s_add_u32 %s, %s, 0x%x" % (s(sT0), s(sT0), SRDY))
            base(sBfl, sWS, s(sT0))

    a("    s_cmp_ge_u32 s2, 0x100")
    a("    s_cbranch_scc1 L_END")
    a("    s_load_dwordx16 s[4:19], s[0:1], 0x0")
    a("    s_load_dwordx8 s[20:27], s[0:1], 0x40")
    if opt.get("diagspin"):
        a("    s_memrealtime s[96:97]")
    if prof == 2:
        for i in range(1, 12):
            a("    s_mov_b32 %s, 0" % s(sPROF + 2 * i))
    stamp(0)
    vXo = vAo
    vXSo, vWQ0, vWQ1 = V(), V(), V()
    vXf = V(4, 4)
    vXs = V()
    KVM = 0
    OCLR = 0
    sIdx = sDummy + 0
    a("    v_lshrrev_b32 %s, 6, v0" % v(vT))
    a("    v_and_b32 v0, 63, v0")
    a("    s_lshr_b32 %s, s2, 3" % s(sJ))
    a("    v_readfirstlane_b32 %s, %s" % (s(sW), v(vT)))
    a("    s_and_b32 %s, s2, 7" % s(sH))
    a("    v_lshlrev_b32 %s, 4, v0" % v(vXo))
    a("    v_lshrrev_b32 %s, 3, v0" % v(vL3))
    a("    v_and_b32 %s, 0x70, %s" % (v(vT), v(vXo)))
    a("    v_lshlrev_b32 %s, 2, %s" % (v(vXSo), v(vL3)))
    a("    v_lshl_or_b32 %s, %s, 14, %s" % (v(vWQ0), v(vL3), v(vT)))
    a("    s_and_b32 %s, %s, 24" % (s(sT0), s(sJ)))
    a("    s_add_u32 %s, %s, %s" % (s(sT0), s(sT0), s(sW)))
    a("    s_and_b32 %s, %s, 7" % (s(sT3), s(sJ)))
    a("    s_lshl3_add_u32 %s, %s, %s" % (s(sT3), s(sH), s(sT3)))
    a("    s_lshl_b32 %s, %s, 10" % (s(sT1), s(sT0)))
    a("    s_add_u32 %s, %s, %s" % (s(sT1), s(sT1), s(sT3)))
    a("    s_lshl_b32 %s, %s, 7" % (s(sT1), s(sT1)))
    a("    s_lshl_b32 %s, %s, 5" % (s(sT0), s(sT0)))
    a("    v_add_u32 %s, 0x2000, %s" % (v(vWQ1), v(vWQ0)))

    def later():
        a("    v_lshrrev_b32 %s, 4, v0" % v(vG))
        a("    v_and_b32 %s, 15, v0" % v(vJ))
        a("    s_lshl3_add_u32 %s, %s, %s" % (s(sT3), s(sJ), s(sW)))
        a("    s_lshl_b32 %s, %s, 12" % (s(sT2), s(sH)))
        a("    v_xor_b32 %s, %s, %s" % (v(vT), v(vJ), v(vG)))
        a("    s_add_u32 %s, %s, %s" % (s(sT2), s(sT2), s(sT3)))
        a("    v_lshlrev_b32 %s, 4, %s" % (v(vT), v(vT)))
        a("    s_add_u32 %s, %s, 0xf00" % (s(sT2), s(sT2)))
        a("    v_lshl_or_b32 %s, %s, 8, %s" % (v(vKo), v(vG), v(vT)))
        a("    s_lshl_b32 %s, %s, 12" % (s(sT2), s(sT2)))
        a("    s_lshl_b32 %s, %s, 12" % (s(sTmp), s(sW)))
        a("    s_mov_b32 m0, %s" % s(sTmp))
    PL = opt.get("pl", 1)
    if not PL:
        later()
    a("    s_waitcnt lgkmcnt(0)")
    a("    global_load_dwordx4 %s, %s, %s" % (v(vXf, 4), v(vXo), s(sX, 2)))
    base(sB0, sX, s(sT0))
    a("    global_load_dword %s, %s, %s" % (v(vXs), v(vXSo), s(sB0, 2)))
    base(sB1, sWQ, s(sT1))
    if opt.get("bx", 0):
        a("    s_barrier")
    a("    global_load_dwordx4 %s, %s, %s nt" % (v(vW, 4), v(vWQ0), s(sB1, 2)))
    a("    global_load_dwordx4 %s, %s, %s nt" % (v(vW + 4, 4), v(vWQ1), s(sB1, 2)))
    vm.extend(["x", "xs", "wq0", "wq1"])
    if PL:
        later()
    base(sB2, sK, s(sT2))
    if opt.get("b0", 1):
        a("    s_barrier")
    WIN = opt.get("win", 3)
    QPOS = opt.get("qpos", 7)
    stream = ["wq0", "wq1", "K0", "K1", "K2", "K3", "V0", "V1", "V2", "V3"]

    def sload(i):
        nm = stream[i]
        k = int(nm[1])
        if KVM == 2:
            if nm[0] == "K":
                a("    s_add_u32 m0, %s, %s" % (s(92), s(sRot + k)))
                a("    global_load_lds_dwordx4 %s, %s nt" % (v(vKo + k), s(sB2, 2)))
            else:
                a("    s_add_u32 m0, %s, %s" % (s(sTmp), s(sRot + k)))
                a("    global_load_lds_dwordx4 %s, %s nt" % (v(vV0 + k), s(sB3, 2)))
        elif nm[0] == "K":
            a("    global_load_lds_dwordx4 %s, %s offset:%d nt" % (v(vKo + k), s(sB2, 2), 1024 * k))
        else:
            if k == 0:
                a("    s_mov_b32 m0, %s" % s(sTmp))
            a("    global_load_lds_dwordx4 %s, %s offset:%d nt" % (v(vV0 + k) if KVM else v(vV1 if k & 1 else vV0), s(sB3, 2), 1024 * k))
        vm.append(nm)
    assert WIN == 3
    WIN0 = opt.get("win0", WIN)
    for i in range(2, WIN0):
        sload(i)
    base(sB3, sVp, s(sT2))
    for i in (1, 2, 3):
        a("    v_xor_b32 %s, 0x%x, %s" % (v(vKo + i), 64 * i, v(vKo)))
    a("    v_and_b32 %s, 7, v0" % v(vL7))
    a("    s_lshl_b32 %s, %s, 8" % (s(sT1), s(sH)))
    a("    s_add_u32 %s, %s, %s" % (s(sT1), s(sT1), s(sT3)))
    a("    s_lshl_b32 %s, %s, 8" % (s(sT1), s(sT1)))
    a("    s_add_u32 %s, %s, 0x%x" % (s(sT1), s(sT1), S2O))
    base(sBo, sWS, s(sT1))
    E0 = opt.get("e0", 1)
    a("    s_lshl_b32 %s, %s, 3" % (s(sT0), s(sJ)))
    a("    s_add_u32 %s, %s, %s" % (s(sT0), s(sT0), s(sW)))
    if E0:
        a("    s_cmp_lg_u32 %s, 0" % s(sW))
        a("    s_cbranch_scc1 L_NOE")
    a("    s_load_dword %s, %s, 0x%x" % (s(sE), s(sWS, 2), EPOCH))
    a("L_NOE:")
    a("    s_getpc_b64 %s" % s(sPC, 2))
    a("L_PC:")
    if opt.get("pf", 1):
        a("    s_cmp_gt_u32 %s, (L_CODE_END-L_PC-4)/128" % s(sT0))
        a("    s_cbranch_scc1 L_NOPF")
        a("    s_lshl_b32 %s, %s, 7" % (s(sT1), s(sT0)))
        a("    s_load_dword %s, %s, %s" % (s(sDummy), s(sPC, 2), s(sT1)))
        a("L_NOPF:")
    if opt.get("touch", 1):
        a("    s_lshl_b32 %s, %s, 19" % (s(sT1), s(sH)))
        base(sB4, sWO, s(sT1))
        for k, p in enumerate((sB3, sWG, sWU, sWD, sOUT)):
            a("    s_cmp_eq_u32 %s, %d" % (s(sT0), 8 * (17 + k) + 7))
            a("    s_cselect_b64 %s, %s, %s" % (s(sB4, 2), s(p, 2), s(sB4, 2)))
        a("    s_sub_u32 %s, %s, %d" % (s(sT1), s(sT0), 8 * 16 + 7))
        a("    s_and_b32 %s, %s, 0xffffffc7" % (s(sT3), s(sT1)))
        a("    s_cmp_lg_u32 %s, 0" % s(sT3))
        a("    s_cbranch_scc1 L_NOTOUCH")
        a("    s_load_dword %s, %s, 0x0" % (s(sDummy), s(sB4, 2)))
        a("L_NOTOUCH:")
    a("    v_lshlrev_b32 %s, 1, %s" % (v(vT), v(vG)))
    a("    v_xor_b32 %s, %s, %s" % (v(vT), v(vJ), v(vT)))
    a("    v_lshlrev_b32 %s, 4, %s" % (v(vT), v(vT)))
    a("    v_lshl_or_b32 %s, %s, 8, %s" % (v(vV0), v(vG), v(vT)))
    a("    v_xor_b32 %s, 0x80, %s" % (v(vV1), v(vV0)))
    if KVM == 2:
        for i in (3, 2, 1, 0):
            a("    s_lshr_b32 %s, %s, 3" % (s(sT0), s(sRot + i)))
            a("    s_and_b32 %s, %s, 0x80" % (s(sT0), s(sT0)))
            a("    s_or_b32 %s, %s, %s" % (s(sT0), s(sT0), s(sRot + i)))
            a("    v_xor_b32 %s, %s, %s" % (v(vV0 + i), s(sT0), v(vV0)))
    if KVM == 1:
        a("    v_add_u32 %s, 0x%x, %s" % (v(vV0 + 3), 7168 * 3, v(vV1)))
        a("    v_add_u32 %s, 0x%x, %s" % (v(vV0 + 2), 7168 * 2, v(vV0)))
        a("    v_add_u32 %s, 0x%x, %s" % (v(vV1), 7168, v(vV1)))
    a("    s_add_u32 %s, %s, 0x%x" % (s(sTmp), s(sTmp), LV))
    a("    v_and_b32 %s, 1, v0" % v(vT))
    a("    v_lshlrev_b32 %s, 4, %s" % (v(vT), v(vT)))
    a("    v_lshlrev_b32 %s, %s, %s" % (v(vT + 1), v(vT), v(vT + 2)) if False else
      "    v_mov_b32 %s, 0xffff" % v(vT + 1))
    a("    v_lshlrev_b32 %s, %s, %s" % (v(vT + 1), v(vT), v(vT + 1)))
    a("    v_lshrrev_b32 %s, 1, %s" % (v(vT), v(vL7)))
    for r in range(4):
        a("    v_cmp_eq_u32 vcc, %d, %s" % (r, v(vT)))
        a("    v_cndmask_b32 %s, 0, %s, vcc" % (v(vM + r), v(vT + 1)))
    a("    v_lshrrev_b32 %s, 5, v0" % v(vT))
    a("    s_lshl_b32 %s, %s, 1" % (s(sT0), s(sW)))
    a("    v_add_u32 %s, %s, %s" % (v(vT), s(sT0), v(vT)))
    a("    v_mul_u32_u24 %s, 272, %s" % (v(vT), v(vT)))
    a("    v_and_b32 %s, 1, %s" % (v(vT + 1), v(vG)))
    a("    v_lshl_or_b32 %s, %s, 1, %s" % (v(vT + 1), v(vL7), v(vT + 1)))
    a("    v_lshl_add_u32 %s, %s, 4, %s" % (v(vT), v(vT + 1), v(vT)))
    a("    v_add_u32 %s, 0x%x, %s" % (v(vRedW), LRED, v(vT)))
    a("    v_and_b32 %s, 3, v0" % v(vT))
    a("    v_lshl_add_u32 %s, %s, 2, %s" % (v(vC4), v(vG), v(vT)))
    a("    v_lshlrev_b32 %s, 4, %s" % (v(vC4), v(vC4)))
    a("    v_bfe_u32 %s, v0, 2, 2" % v(vT))
    a("    v_mul_u32_u24 %s, 544, %s" % (v(vT), v(vT)))
    a("    v_add_u32 %s, %s, %s" % (v(vT + 1), v(vC4), v(vT)))
    a("    v_add_u32 %s, 0x%x, %s" % (v(vRedR8), LRED, v(vT + 1)))
    a("    v_add_u32 %s, %s, %s" % (v(vRedR), v(vRedR8), v(vT)))
    a("    s_mov_b32 %s, 0x3db504f3" % s(sScale))
    a("    s_mov_b32 %s, 0x3fb8aa3b" % s(sScale + 1))
    a("    s_mov_b32 %s, 0xffffff00" % s(sM8))
    a("    s_mov_b32 %s, 0xfffffc00" % s(sM10))

    vXu = V(8, 4)
    waitfor("xs")
    stamp(1)
    for i in range(4):
        a("    v_lshlrev_b32 %s, 16, %s" % (v(vXu + 2 * i), v(vXf + i)))
        a("    v_and_b32 %s, 0xffff0000, %s" % (v(vXu + 2 * i + 1), v(vXf + i)))
    for i in range(4):
        a("    v_add_f32 %s, %s, %s" % (v(vT + i), v(vXu + 2 * i), v(vXu + 2 * i + 1)))
    a("    v_add_f32 %s, %s, %s" % (v(vT), v(vT), v(vT + 1)))
    a("    v_add_f32 %s, %s, %s" % (v(vT + 2), v(vT + 2), v(vT + 3)))
    a("    v_add_f32 %s, %s, %s" % (v(vT), v(vT), v(vT + 2)))
    a("    v_mul_f32 %s, 0x3b000000, %s" % (v(vT), v(vT)))
    wavesum_to_sgpr(vT, sMean)
    for i in range(8):
        a("    v_subrev_f32 %s, %s, %s" % (v(vXu + i), s(sMean), v(vXu + i)))
    a("    v_mul_f32 %s, %s, %s" % (v(vT), v(vXu), v(vXu)))
    a("    v_mul_f32 %s, %s, %s" % (v(vT + 1), v(vXu + 1), v(vXu + 1)))
    for i in range(2, 8):
        a("    v_fmac_f32 %s, %s, %s" % (v(vT + (i & 1)), v(vXu + i), v(vXu + i)))
    a("    v_add_f32 %s, %s, %s" % (v(vT), v(vT), v(vT + 1)))
    a("    v_mul_f32 %s, 0x3b000000, %s" % (v(vT), v(vT)))
    wavesum_to_sgpr(vT, sVar)
    a("    v_mov_b32 %s, %s" % (v(vT + 1), s(sMean)))
    bf16r(vT + 1, vT + 1)
    a("    v_mov_b32 %s, %s" % (v(vT), s(sVar)))
    bf16r(vT, vT)
    a("    v_add_f32 %s, 0x3727c5ac, %s" % (v(vT), v(vT)))
    bf16r(vT, vT)
    a("    v_sqrt_f32 %s, %s" % (v(vT), v(vT)))
    bf16r(vT, vT)
    a("    v_rcp_f32 %s, %s" % (v(vT + 2), v(vT)))
    a("    v_lshlrev_b32 %s, 16, %s" % (v(vT + 3), v(vXs)))
    a("    v_and_b32 %s, 0xffff0000, %s" % (v(vT + 4), v(vXs)))
    a("    v_sub_f32 %s, %s, %s" % (v(vT + 3), v(vT + 3), v(vT + 1)))
    a("    v_sub_f32 %s, %s, %s" % (v(vT + 4), v(vT + 4), v(vT + 1)))
    bf16r(vT + 3, vT + 3)
    bf16r(vT + 4, vT + 4)
    vA = V(8, 4)
    for i in range(2):
        y, q = vT + 3 + i, vT + 5 + i
        a("    v_mul_f32 %s, %s, %s" % (v(q), v(y), v(vT + 2)))
        a("    v_fma_f32 %s, -%s, %s, %s" % (v(y), v(q), v(vT), v(y)))
        a("    v_fmac_f32 %s, %s, %s" % (v(q), v(y), v(vT + 2)))
        a("    v_cvt_pk_bf16_f32 %s, %s, %s" % (v(q), v(q), v(q)))
        for r in range(4):
            a("    v_and_b32 %s, %s, %s" % (v(vA + 4 * i + r), v(q), v(vM + r)))
    a("    v_lshlrev_b32 %s, 4, %s" % (v(vQo), v(vJ)))
    a("    v_lshl_or_b32 %s, %s, 11, %s" % (v(vQo), v(vG), v(vQo)))

    def tags():
        a("    s_add_u32 %s, %s, 1" % (s(sT32), s(sE)))
        a("    s_and_b32 %s, %s, 0xff" % (s(sTag8), s(sT32)))
        a("    s_and_b32 %s, %s, 0x3ff" % (s(sTag10), s(sT32)))
        a("    v_mov_b32 %s, %s" % (v(vTag8), s(sTag8)))
        a("    v_mov_b32 %s, %s" % (v(vTag10), s(sTag10)))
    if not E0:
        a("    s_waitcnt lgkmcnt(0)")
        tags()
    waitfor("wq0")
    for i in range(WIN0, WIN + 1):
        sload(i)
    waitfor("clr" if OCLR else "wq1")
    sload(WIN + 1)
    stamp(2)
    a("    v_mfma_f32_16x16x32_bf16 %s, %s, %s, 0" % (v(vD, 4), v(vA, 4), v(vW, 4)))
    a("    v_mfma_f32_16x16x32_bf16 %s, %s, %s, %s" % (v(vD, 4), v(vA + 4, 4), v(vW + 4, 4), v(vD, 4)))

    def red_publish(nrows, tagv, mask, rnd, basepair, label):
        a("    s_waitcnt lgkmcnt(0)")
        a("    s_barrier")
        a("    s_cmp_lg_u32 %s, 0" % s(sW))
        a("    s_cbranch_scc1 %s" % label)
        m = V.mark()
        r = V(16, 4)
        n = nrows // 4
        for i in range(n):
            a("    ds_read_b128 %s, %s offset:%d" % (v(r + 4 * i, 4), v(vRedR if n == 4 else vRedR8), 272 * i))
        a("    s_waitcnt lgkmcnt(%d)" % (0 if prof else n - 2))
        a("    v_pk_add_f32 %s, %s, %s" % (v(r, 2), v(r, 2), v(r + 4, 2)))
        a("    v_pk_add_f32 %s, %s, %s" % (v(r + 2, 2), v(r + 2, 2), v(r + 6, 2)))
        if n == 4:
            a("    s_waitcnt lgkmcnt(0)")
            a("    v_pk_add_f32 %s, %s, %s" % (v(r + 8, 2), v(r + 8, 2), v(r + 12, 2)))
            a("    v_pk_add_f32 %s, %s, %s" % (v(r + 10, 2), v(r + 10, 2), v(r + 14, 2)))
            a("    v_pk_add_f32 %s, %s, %s" % (v(r, 2), v(r, 2), v(r + 8, 2)))
            a("    v_pk_add_f32 %s, %s, %s" % (v(r + 2, 2), v(r + 2, 2), v(r + 10, 2)))
        for sh in (4, 8):
            for i in range(4):
                a("    v_add_f32_dpp %s, %s, %s row_ror:%d %s" % (v(r + i), v(r + i), v(r + i), sh, DPP))
        for i in range(4):
            if rnd:
                a("    v_add_u32 %s, 0x%x, %s" % (v(r + i), rnd, v(r + i)))
        setexec(0x000F000F, 0x000F000F)
        for i in range(4):
            a("    v_and_or_b32 %s, %s, %s, %s" % (v(r + i), v(r + i), s(mask), v(tagv)))
        a("    global_store_dwordx4 %s, %s, %s sc1" % (v(vC4), v(r, 4), s(basepair, 2)))
        setexec(0xFFFFFFFF, 0xFFFFFFFF)
        V.release(m)

    a("    s_lshl_b32 %s, %s, 13" % (s(sT0), s(sH)))
    a("    s_add_u32 %s, %s, 0x%x" % (s(sT0), s(sT0), S1))
    a("    s_lshl_b32 %s, %s, 8" % (s(sT1), s(sJ)))
    a("    s_add_u32 %s, %s, %s" % (s(sT1), s(sT1), s(sT0)))
    base(sB0, sWS, s(sT1))
    a("    s_lshl_b32 %s, %s, 8" % (s(sT1), s(sW)))
    a("    s_add_u32 %s, %s, %s" % (s(sT1), s(sT1), s(sT0)))
    base(sB1, sWS, s(sT1))
    V.release(mk)
    if E0:
        a("    s_cmp_lg_u32 %s, 0" % s(sW))
        a("    s_cbranch_scc1 L_NOE2")
        a("    s_waitcnt lgkmcnt(0)")
        tags()
        a("    v_mov_b32 %s, 0x%x" % (v(vT), LEP))
        a("    v_mov_b32 %s, %s" % (v(vT + 1), s(sE)))
        a("    ds_write_b32 %s, %s" % (v(vT), v(vT + 1)))
        a("    v_lshlrev_b32 %s, 2, v0" % v(vT + 2))
        a("    v_mov_b32 %s, 0xff800000" % v(vT + 3))
        a("    v_and_b32 %s, 0x7c, %s" % (v(vT + 2), v(vT + 2)))
        a("    v_add_u32 %s, 0x%x, %s" % (v(vT + 2), LMX, v(vT + 2)))
        a("    ds_write_b32 %s, %s" % (v(vT + 2), v(vT + 3)))
        a("L_NOE2:")
    setexec(0x00FF00FF, 0xFF00FF00)
    a("    ds_write_b128 %s, %s" % (v(vRedW), v(vD, 4)))
    setexec(0xFFFFFFFF, 0xFFFFFFFF)
    vQ = V(4, 4)
    vQ2 = V(4, 4)
    QP1 = opt.get("qp1", 0)
    red_publish(16, vTag8, sM8, 0x80, sB0, "L_QPUB")

    def qload():
        a("    global_load_dwordx4 %s, %s, %s sc1" % (v(vQ, 4), v(vQo), s(sB1, 2)))

    extra = {}
    CW = opt.get("cw", 0)

    def run_sched(text):
        for tok in text.split():
            if tok[0] == "|":
                waitfor(tok[1:])
            elif tok == "q":
                qload()
                vm.append("q")
            elif tok in stream:
                sload(stream.index(tok))
            else:
                extra[tok]()
                if len(tok) > 1:
                    vm.append(tok)

    def paced(gete=False):
        stamp(3)
        assert WIN == 3
        run_sched(["|K0 K3", "|K0 K3 V0", "K3 |K0 V0"][CW])
        if gete:
            a("    s_waitcnt lgkmcnt(0)")
            a("    v_readfirstlane_b32 %s, %s" % (s(sE), v(vT + 7)))
            a("    s_nop 0")
            tags()
        attn_addresses()
        run_sched(["|K1 V0", "|K1 V1", "|K1 V1"][CW])
    keep = list(vm)
    vm.append("qstore")
    DQ = opt.get("dq", 0)
    sQF = 88
    if DQ:
        a("    s_and_b32 %s, %s, 7" % (s(sT0), s(sJ)))
        a("    s_lshl3_add_u32 %s, %s, %s" % (s(sT0), s(sH), s(sT0)))
        a("    s_lshl_b32 %s, %s, 5" % (s(sT0), s(sT0)))
        a("    s_lshr_b32 %s, %s, 3" % (s(sT1), s(sJ)))
        a("    s_add_u32 %s, %s, %s" % (s(sT0), s(sT0), s(sT1)))
        a("    s_lshl_b32 %s, %s, 2" % (s(sT0), s(sT0)))
        a("    s_add_u32 %s, %s, 0x%x" % (s(sT0), s(sT0), SQF))
        setexec(1, 0)
        a("    v_mov_b32 %s, %s" % (v(vT), s(sT0)))
        a("    v_mov_b32 %s, %s" % (v(vT + 1), s(sT32)))
        a("    global_store_dword %s, %s, %s sc1" % (v(vT), v(vT + 1), s(sWS, 2)))
        setexec(0xFFFFFFFF, 0xFFFFFFFF)
        vm.append("qflag")
    paced()
    a("    s_branch L_PACED")
    a("L_QPUB:")
    vm[:] = keep
    if E0:
        a("    v_mov_b32 %s, 0x%x" % (v(vT + 7), LEP))
        a("    ds_read_b32 %s, %s" % (v(vT + 7), v(vT + 7)))
    paced(E0)
    a("L_PACED:")
    if DQ:
        a("    s_lshl3_add_u32 %s, %s, %s" % (s(sT0), s(sH), s(sW)))
        a("    s_lshl_b32 %s, %s, 7" % (s(sT0), s(sT0)))
        a("    s_add_u32 %s, %s, 0x%x" % (s(sT0), s(sT0), SQF))
        a("    s_load_dwordx4 %s, %s, %s glc" % (s(sQF, 4), s(sWS, 2), s(sT0)))
        a("    s_mov_b32 %s, %s" % (s(sRep), s(sT32)))
        a("    s_mov_b32 %s, %s" % (s(sRep + 1), s(sT32)))
    common = list(vm)
    SCHED = {
        "s": ["|K2 V1 |K3 V2 q |V0 V3"],
        "w": ["|K2 V1 |K3 V2 q |V0 V3 A |V1 T0 B",
              "|K2 V1 |K3 V2 q |V0 V3 A T0 |V1 T1 B",
              "|K2 V1 |K3 V2 q V3 A |V0 T0 |V1 T1 B",
              "|K2 V1 |K3 V2 q V3 A |V0 T0 |V1 T1 T2 B",
              "|K2 V1 |K3 V2 q |V0 V3 A B",
              "|K2 V1 V2 |K3 V3 q A |V0 T0 |V1 T1 B |V2 T2",
              "|K2 V1 |K3 V2 q |V0 V3 A T0 |V1 T1",
              "|K2 V1 |K3 V2 q |V0 V3 A |V1 T0"],
        "f": ["|K2 V1 |K3 V2 q |V0 V3 A",
              "|K2 V1 |K3 V2 q |V0 V3 A |V1 D0 D1",
              "|K2 V1 |K3 V2 q |V0 V3 A D0 |V1 D1",
              "|K2 V1 |K3 V2 q |V0 V3 A |V1 D0",
              "|K2 V1 |K3 V2 q |V0 V3 A |V1 Qa"],
    }
    QV = opt.get("qv", 0)
    if QV:
        old_, new_ = "|K2 V1 |K3 V2 q |V0 V3", ["", "|K2 V1 |K3 q V2 |V0 V3", "|K2 V1 |K3 V2 |V0 q V3", "|K2 V1 |K3 V2 |V0 V3 q",
                                                 "|K2 V1 |K3 q V2 V3", "|K3 q V1 V2 V3", "|K2 V1 |K3 q V2 V3 |V0"][QV]
        SCHED = {k_: [x_.replace(old_, new_) for x_ in v_] for k_, v_ in SCHED.items()}
    if CW:
        SCHED = {
            "s": ["|K2 V2 |K3 V3 q"],
            "w": ["|K2 V2 |K3 V3 q A |V0 T0 |V1 T1 B |V2 T2",
                  "|K2 V2 |K3 V3 q A |V0 T0 |V1 T1 B |V2 T2 |V3 T3",
                  "|K2 V2 |K3 V3 q A |V1 T0 B |V2 T1",
                  "|K2 V2 |K3 V3 A |V0 q T0 |V1 T1 B |V2 T2"],
            "f": ["|K2 V2 |K3 V3 q A", "|K2 V2 |K3 V3 q A |V0 D0 |V1 D1", "|K2 V2 |K3 V3 A |V0 q D0 |V1 D1"],
        }
        if opt.get("ss"):
            SCHED["s"] = ["|K2 V2 |K3 V3 |V0 q"]
    a("    s_cmp_lt_u32 %s, 16" % s(sJ))
    a("    s_cbranch_scc1 L_ROLE_WO")
    a("    s_cmp_lt_u32 %s, 4" % s(sH))
    a("    s_cbranch_scc1 L_ROLE_FFN")
    a("    s_cmp_lt_u32 %s, 28" % s(sJ))
    a("    s_cbranch_scc1 L_ROLE_FFN")

    def attention(sched, t0=(), t1=(), w0extra=None):
        m0 = V.mark()
        vKa = V(16, 4)
        vQb = V(16, 4)
        vPb = vQb
        vVa = vKa
        vS = V(4, 4)
        vMx, vMl = V(), V(4, 4)
        def kreads():
            for i in range(4):
                a("    ds_read_b128 %s, %s" % (v(vKa + 4 * i, 4), v(vAk + i)))

        vm[:] = common
        if DQ:
            uid[0] += 1
            ud = uid[0]
            head = "|K2 V1 "
            assert sched.startswith(head + "|K3 V2 q |V0 V3")
            run_sched(head)
            if DQ == 2:
                a("    s_getreg_b32 %s, hwreg(HW_REG_IB_STS, 8, 4)" % s(sT0))
                a("    s_cmp_lg_u32 %s, 0" % s(sT0))
                a("    s_cbranch_scc1 L_QLATE%d" % ud)
            a("    s_waitcnt lgkmcnt(0)")
            a("    s_xor_b64 %s, %s, %s" % (s(sQF, 2), s(sQF, 2), s(sRep, 2)))
            a("    s_xor_b64 %s, %s, %s" % (s(sQF + 2, 2), s(sQF + 2, 2), s(sRep, 2)))
            a("    s_or_b64 %s, %s, %s" % (s(sQF, 2), s(sQF, 2), s(sQF + 2, 2)))
            a("    s_cbranch_scc1 L_QLATE%d" % ud)
            mid = list(vm)
            rest_ = sched[len(head + "|K3 V2 q |V0 V3"):]
            run_sched("q |K3 V2 |V0 V3 " + " ".join(t for t in rest_.split() if t[0] != "|"))
            kreads()
            waitfor("q")
            early = [t for t in vm if t != "q"]
            a("    s_branch L_QJOIN%d" % ud)
            a("L_QLATE%d:" % ud)
            vm[:] = mid
            run_sched(sched[len(head):])
            kreads()
            waitfor("q")
            assert early == [t for t in vm if t != "q"]
            a("L_QJOIN%d:" % ud)
            NVA = 63
        else:
            run_sched(sched)
            kreads()
            NVA = len(vm) - 1 - vm.index("q")
        ntail = len(vm) - 1 - vm.index("V3") + len(t0)
        tp = ()
        def qcheck():
            for k in range(4):
                a("    v_xor_b32 %s, %s, %s" % (v(vQ + k), s(sTag8), v(vQ + k)))
            a("    v_or3_b32 %s, %s, %s, %s" % (v(vT), v(vQ), v(vQ + 1), v(vQ + 2)))
            a("    v_or_b32 %s, %s, %s" % (v(vT), v(vT), v(vQ + 3)))
            a("    v_and_b32 %s, 0xff, %s" % (v(vT), v(vT)))
            a("    v_cmp_ne_u32 vcc, 0, %s" % v(vT))
        RDY = opt.get("rdy", 0)

        def rdyhint():
            uid[0] += 1
            a("    s_cmp_lg_u32 %s, 7" % s(sW))
            a("    s_cbranch_scc1 L_NORDY%d" % uid[0])
            setexec(1, 0)
            a("    v_mov_b32 %s, 0x%x" % (v(vG0), SRDY - S2ML))
            a("    v_mov_b32 %s, %s" % (v(vMx), s(sT32)))
            a("    global_store_dword %s, %s, %s sc1" % (v(vG0), v(vMx), s(sBml, 2)))
            setexec(0xFFFFFFFF, 0xFFFFFFFF)
            a("L_NORDY%d:" % uid[0])
        MB = opt.get("mb", 1)
        AMX = opt.get("amx", 1)
        if QP1:
            uid[0] += 1
            uq = uid[0]
            a("    s_waitcnt vmcnt(%d)" % (len(vm) - 1 - vm.index("q1") + len(tp)))
            qcheck()
            a("    s_cbranch_vccz L_QOK%d" % uq)
            a("    s_waitcnt vmcnt(%d)" % (NVA + len(tp)))
            for i in range(0, 4, 2):
                a("    v_mov_b64 %s, %s" % (v(vQ + i, 2), v(vQ2 + i, 2)))
            poll(qload, qcheck, NVA + len(tp), cnt=15 if opt.get("astamps") else None)
            a("L_QOK%d:" % uq)
        else:
            poll(qload, qcheck, NVA + len(tp), cnt=15 if opt.get("astamps") else None)
        stamp(4)
        treduce4(vQ)
        a("    v_cvt_pk_bf16_f32 %s, %s, %s" % (v(vQ), v(vQ), v(vQ)))
        a("    ds_write_b16 %s, %s" % (v(vAqw), v(vQ)))
        a("    s_waitcnt lgkmcnt(0)")
        a("    s_barrier")
        for i in range(4):
            a("    ds_read_b128 %s, %s offset:%d" % (v(vQb + 4 * i, 4), v(vAq), 64 * i))
        T0P = opt.get("t0p", 1)
        if T0P == 0:
            for f in t0:
                f()
        for i in range(4):
            a("    s_waitcnt lgkmcnt(%d)" % (0 if prof else 3 - i))
            a("    v_mfma_f32_16x16x32_bf16 %s, %s, %s, %s" %
              (v(vD, 4), v(vKa + 4 * i, 4), v(vQb + 4 * i, 4), "0" if i == 0 else v(vD, 4)))
        if T0P == 1:
            for f in t0:
                f()
        a("    v_cvt_pk_bf16_f32 %s, %s, %s" % (v(vT), v(vD), v(vD + 1)))
        a("    v_cvt_pk_bf16_f32 %s, %s, %s" % (v(vT + 1), v(vD + 2), v(vD + 3)))
        for rnd in range(2):
            for i in range(2):
                a("    v_lshlrev_b32 %s, 16, %s" % (v(vS + 2 * i), v(vT + i)))
                a("    v_and_b32 %s, 0xffff0000, %s" % (v(vS + 2 * i + 1), v(vT + i)))
            if rnd == 0:
                for i in (0, 2):
                    a("    v_pk_mul_f32 %s, %s, %s op_sel_hi:[1,0]" % (v(vS + i, 2), v(vS + i, 2), s(sScale, 2)))
                a("    v_cvt_pk_bf16_f32 %s, %s, %s" % (v(vT), v(vS), v(vS + 1)))
                a("    v_cvt_pk_bf16_f32 %s, %s, %s" % (v(vT + 1), v(vS + 2), v(vS + 3)))
        a("    v_max3_f32 %s, %s, %s, %s" % (v(vMx), v(vS), v(vS + 1), v(vS + 2)))
        a("    v_max_f32 %s, %s, %s" % (v(vMx), v(vMx), v(vS + 3)))
        if AMX:
            setexec(0x000F000F, 0x000F000F)
            a("    ds_max_f32 %s, %s" % (v(vAmr), v(vMx)))
        else:
            for sw in ("16", "32"):
                a("    v_mov_b32 %s, %s" % (v(vT), v(vMx)))
                a("    v_permlane%s_swap_b32 %s, %s" % (sw, v(vMx), v(vT)))
                a("    v_max_f32 %s, %s, %s" % (v(vMx), v(vMx), v(vT)))
            setexec(0xF, 0)
            a("    ds_write_b32 %s, %s" % (v(vAmw), v(vMx)))
        setexec(0xFFFFFFFF, 0xFFFFFFFF)
        if T0P == 2:
            for f in t0:
                f()
        VB3 = opt.get("vb3", 0)

        def vreads(t):
            for hh in range(2):
                a("    ds_read_b64_tr_b16 %s, %s offset:%d" % (v(vVa + 4 * t + 2 * hh, 2), v(vAv), 8192 * t + 4096 * hh))
        if VB3:
            assert AMX and MB
            a("    s_waitcnt vmcnt(%d) lgkmcnt(0)" % ntail)
            for f in t1:
                f()
        else:
            a("    s_waitcnt lgkmcnt(0)")
        if RDY == 1:
            rdyhint()
        a("    s_barrier")
        if AMX:
            a("    ds_read_b32 %s, %s" % (v(vMl), v(vAmr)))
            if RDY == 2:
                rdyhint()
            if VB3:
                for t in range(4):
                    vreads(t)
            a("    s_waitcnt lgkmcnt(%d)" % (8 if VB3 and not prof else 0))
        else:
            a("    ds_read_b128 %s, %s" % (v(vT, 4), v(vAmr)))
            a("    ds_read_b128 %s, %s offset:16" % (v(vT + 4, 4), v(vAmr)))
            a("    s_waitcnt lgkmcnt(0)")
            a("    v_max3_f32 %s, %s, %s, %s" % (v(vT), v(vT), v(vT + 1), v(vT + 2)))
            a("    v_max3_f32 %s, %s, %s, %s" % (v(vT + 4), v(vT + 4), v(vT + 5), v(vT + 6)))
            a("    v_max3_f32 %s, %s, %s, %s" % (v(vT), v(vT), v(vT + 3), v(vT + 7)))
            a("    v_max_f32 %s, %s, %s" % (v(vMl), v(vT), v(vT + 4)))
        for i in (0, 2):
            a("    v_pk_add_f32 %s, %s, %s op_sel_hi:[1,0] neg_lo:[0,1] neg_hi:[0,1]" % (v(vS + i, 2), v(vS + i, 2), v(vMl, 2)))
        for i in (0, 2):
            a("    v_pk_mul_f32 %s, %s, %s op_sel:[0,1] op_sel_hi:[1,1]" % (v(vS + i, 2), v(vS + i, 2), s(sScale, 2)))
        for i in range(4):
            a("    v_exp_f32 %s, %s" % (v(vS + i), v(vS + i)))
        a("    v_cvt_pk_bf16_f32 %s, %s, %s" % (v(vT + 2), v(vS), v(vS + 1)))
        a("    v_cvt_pk_bf16_f32 %s, %s, %s" % (v(vT + 3), v(vS + 2), v(vS + 3)))
        setexec(0x000F000F, 0x000F000F)
        a("    ds_write_b64 %s, %s" % (v(vApw), v(vT + 2, 2)))
        a("    v_pk_add_f32 %s, %s, %s" % (v(vT, 2), v(vS, 2), v(vS + 2, 2)))
        a("    v_add_f32 %s, %s, %s" % (v(vT), v(vT), v(vT + 1)))
        a("    ds_write_b32 %s, %s" % (v(vAlw), v(vT)))
        setexec(0xFFFFFFFF, 0xFFFFFFFF)
        if MB and not VB3:
            a("    s_waitcnt vmcnt(%d) lgkmcnt(0)" % ntail)
            for f in t1:
                f()
        else:
            a("    s_waitcnt lgkmcnt(0)")
        a("    s_barrier")
        if opt.get("astamps"):
            stamp(13)
        if RDY == 3:
            rdyhint()
        uid[0] += 1
        u = uid[0]

        def preads():
            for i in range(4):
                a("    ds_read_b128 %s, %s offset:%d" % (v(vPb + 4 * i, 4), v(vApr), 64 * i))

        def mlpub():
            a("    v_add_f32 %s, %s, %s" % (v(vMl + 1), v(vT), v(vT + 1)))
            allred_hi(vMl + 1, vT, "add")
            setexec(0xF, 0)
            a("    global_store_dwordx4 %s, %s, %s sc1" % (v(vAo), v(vMl, 4), s(sBml, 2)))
            setexec(0xFFFFFFFF, 0xFFFFFFFF)

        SB2 = opt.get("sb2", 0)

        def sflag():
            setexec((1 << R2) - 1, 0)
            a("    v_lshlrev_b32 %s, 7, v0" % v(vT))
            a("    global_store_byte %s, %s, %s sc1" % (v(vT), v(vTag8), s(sBfl, 2)))
            setexec(0xFFFFFFFF, 0xFFFFFFFF)

        def pv(first):
            for t in range(4):
                a("    s_waitcnt lgkmcnt(%d)" % (0 if prof else first[t]))
                a("    v_mfma_f32_16x16x32_bf16 %s, %s, %s, %s" %
                  (v(vD, 4), v(vPb + 4 * t, 4), v(vVa + 4 * t, 4), "0" if t == 0 else v(vD, 4)))
        if MB:
            a("    ds_read_b64 %s, %s" % (v(vT, 2), v(vAlr)))
            for t in range(4):
                a("    ds_read_b128 %s, %s offset:%d" % (v(vPb + 4 * t, 4), v(vApr), 64 * t))
                if not VB3:
                    vreads(t)
            a("    v_mov_b32 %s, %s" % (v(vMl + 2), s(sT32)))
            a("    v_mov_b32 %s, %s" % (v(vMl + 3), s(sT32)))
            a("    s_cmp_lg_u32 %s, 0" % s(sW))
            a("    s_cbranch_scc1 L_NOML%d" % u)
            a("    s_waitcnt lgkmcnt(%d)" % (0 if prof else (4 if VB3 else 12)))
            mlpub()
            a("L_NOML%d:" % u)
            pv([3, 2, 1, 0] if VB3 else [9, 6, 3, 0])
        else:
            preads()
            a("    s_cmp_lg_u32 %s, 0" % s(sW))
            a("    s_cbranch_scc1 L_NOML%d" % u)
            a("    ds_read_b64 %s, %s" % (v(vT, 2), v(vAlr)))
            a("    v_mov_b32 %s, %s" % (v(vMl + 2), s(sT32)))
            a("    v_mov_b32 %s, %s" % (v(vMl + 3), s(sT32)))
            a("    s_waitcnt lgkmcnt(0)")
            mlpub()
            nx = w0extra() if w0extra else 0
            if SB2 == 1:
                sflag()
                nx += 1
            a("    s_waitcnt vmcnt(%d)" % (1 + nx + ntail))
            if SB2 == 2:
                sflag()
            a("    s_branch L_MLD%d" % u)
            a("L_NOML%d:" % u)
            a("    s_waitcnt vmcnt(%d)" % ntail)
            a("L_MLD%d:" % u)
            if opt.get("astamps"):
                stamp(14)
            for f in t1:
                f()
            a("    s_barrier")
            stamp(5)
            for t in range(4):
                vreads(t)
            pv([6, 4, 2, 0])
        setexec(0xFFFF, 0)
        if OCLR:
            a("    v_min_u32 %s, -2, %s" % (v(vD), v(vD)))
        else:
            for i in range(4):
                a("    v_and_or_b32 %s, %s, %s, %s" % (v(vD + i), v(vD + i), s(sM10), v(vTag10)))
        a("    global_store_dwordx4 %s, %s, %s sc1" % (v(vAo), v(vD, 4), s(sBo, 2)))
        setexec(0xFFFFFFFF, 0xFFFFFFFF)
        stamp(6)
        if opt.get("ackstamp") and not w0extra:
            a("    s_waitcnt vmcnt(0)")
            stamp(1)
        V.release(m0)

    attention(SCHED["s"][0])
    finish()

    a("L_ROLE_WO:")
    mrole = V.mark()
    sD0 = sU
    vWo = V(4)

    def wo_setup():
        a("    s_lshr_b32 %s, %s, 3" % (s(sT1), s(sJ)))
        a("    s_lshl_b32 %s, %s, 3" % (s(sT1), s(sT1)))
        a("    s_add_u32 %s, %s, %s" % (s(sT1), s(sT1), s(sW)))
        a("    s_lshl_b32 %s, %s, 3" % (s(sD0), s(sT1)))
        a("    s_lshl_b32 %s, %s, 9" % (s(sT0), s(sH)))
        a("    s_add_u32 %s, %s, %s" % (s(sT0), s(sT0), s(sD0)))
        a("    s_lshl_b32 %s, %s, 10" % (s(sT0), s(sT0)))
        a("    s_and_b32 %s, %s, 7" % (s(sT1), s(sJ)))
        a("    s_lshl_b32 %s, %s, 7" % (s(sT1), s(sT1)))
        a("    s_add_u32 %s, %s, %s" % (s(sT0), s(sT0), s(sT1)))
        base(sB4, sWO, s(sT0))
        a("    v_lshlrev_b32 %s, 4, %s" % (v(vWo), v(vL7)))
        a("    v_lshl_or_b32 %s, %s, 10, %s" % (v(vWo), v(vL3), v(vWo)))
        for i in (1, 2, 3):
            a("    v_add_u32 %s, 0x%x, %s" % (v(vWo + i), i * (131072 - 1024), v(vWo)))
        a("    s_lshl_b32 %s, %s, 12" % (s(sFI), s(sW)))
        a("    s_add_u32 %s, %s, 0x%x" % (s(sFI), s(sFI), LG))

    def woload(i):
        def f():
            if i == 0:
                a("    s_mov_b32 m0, %s" % s(sFI))
            a("    global_load_lds_dwordx4 %s, %s offset:%d nt" % (v(vWo + i), s(sB4, 2), 1024 * i))
        return f
    vOo = V(4)
    vAtr, vAw, vArw = [V() for _ in range(3)]
    vO = V(16, 4)
    vWt = V(16, 4)
    vML = V(8, 4)
    vDt = V(16, 4)

    def wo_addresses():
        a("    s_lshl_b32 %s, %s, 11" % (s(sT1), s(sH)))
        a("    s_add_u32 %s, %s, 0x%x" % (s(sT1), s(sT1), S2ML))
        base(sB0, sWS, s(sT1))
        a("    s_lshl_b32 %s, %s, 16" % (s(sT1), s(sH)))
        a("    s_lshl_b32 %s, %s, 4" % (s(sT0), s(sD0)))
        a("    s_add_u32 %s, %s, %s" % (s(sT1), s(sT1), s(sT0)))
        a("    s_add_u32 %s, %s, 0x%x" % (s(sT1), s(sT1), S2O))
        base(sB5, sWS, s(sT1))
        a("    v_lshlrev_b32 %s, 4, %s" % (v(vT), v(vL7)))
        a("    v_lshl_or_b32 %s, %s, 11, %s" % (v(vOo), v(vL3), v(vT)))
        for i in (1, 2, 3):
            a("    v_add_u32 %s, 0x%x, %s" % (v(vOo + i), 16384 * i, v(vOo)))
        a("    s_lshl_b32 %s, %s, 12" % (s(sT0), s(sH)))
        a("    s_lshl_b32 %s, %s, 8" % (s(sT1), s(sJ)))
        a("    s_add_u32 %s, %s, %s" % (s(sT0), s(sT0), s(sT1)))
        a("    s_add_u32 %s, %s, 0x%x" % (s(sT0), s(sT0), S3))
        base(sB2, sWS, s(sT0))
        a("    v_lshrrev_b32 %s, 2, %s" % (v(vT), v(vJ)))
        a("    v_lshl_add_u32 %s, %s, 3, %s" % (v(vT), v(vG), v(vT)))
        a("    v_lshlrev_b32 %s, 7, %s" % (v(vT), v(vT)))
        a("    v_and_b32 %s, 3, v0" % v(vT + 1))
        a("    v_lshl_add_u32 %s, %s, 3, %s" % (v(vT), v(vT + 1), v(vT)))
        a("    v_add_u32 %s, %s, %s" % (v(vAtr), s(sFI), v(vT)))
        a("    v_lshlrev_b32 %s, 4, %s" % (v(vT), v(vL3)))
        a("    v_add_u32 %s, 0x%x, %s" % (v(vAw), LWT, v(vT)))
        a("    s_mul_i32 %s, %s, 272" % (s(sT0), s(sW)))
        a("    s_add_u32 %s, %s, 0x%x" % (s(sT0), s(sT0), LRED))
        a("    v_lshl_add_u32 %s, %s, 4, %s" % (v(vArw), v(vG), s(sT0)))
        a("    s_lshl_b32 %s, %s, %d" % (s(sT0), s(sH), 2 if opt.get("sb3", 0) else 7))
        a("    s_add_u32 %s, %s, 0x%x" % (s(sInb), s(sT0), SBELL))
    def bell():
        for i in range(2):
            a("    global_load_dwordx3 %s, %s, %s offset:%d sc1" % (v(vML + 4 * i, 3), v(vAo), s(sB0, 2), 1024 * i))

    def bellcheck():
        tagcheck([vML + 2, vML + 6], sT32, vT)
        a("    v_cmp_ne_u32 vcc, 0, %s" % v(vT))

    EB = opt.get("eb", 0)

    def earlybell():
        bell()
        return 2
    extra.update(A=wo_setup, B=wo_addresses, T0=woload(0), T1=woload(1), T2=woload(2), T3=woload(3))
    sw = SCHED["w"][opt.get("sw", 0)]
    rest = [i for i in range(4) if "T%d" % i not in sw.split()]
    WO2 = min(opt.get("wo2", 0), len(rest))
    late = rest[len(rest) - WO2:]
    rest = rest[:len(rest) - WO2]
    WO1 = min(opt.get("wo1", 0), len(rest))
    attention(sw, [woload(i) for i in rest[:len(rest) - WO1]], [woload(i) for i in rest[len(rest) - WO1:]],
              earlybell if EB else None)
    for i in late:
        woload(i)()
    if "B" not in sw.split():
        wo_addresses()

    def oloads():
        for i in range(4):
            a("    global_load_dwordx4 %s, %s, %s sc1" % (v(vO + 4 * i, 4), v(vOo + i), s(sB5, 2)))

    def wtr():
        for t in range(4):
            for hh in range(2):
                a("    ds_read_b64_tr_b16 %s, %s offset:%d" % (v(vW + 4 * t + 2 * hh, 2), v(vAtr), 512 * hh + 32 * t))
    a("    s_cmp_eq_u32 %s, 0" % s(sW))
    a("    s_cbranch_scc1 L_BELL1")
    S2M = opt.get("s2mode", 0)
    if opt.get("sb2", 0):
        a("    s_barrier")
        oloads()
        a("    s_waitcnt vmcnt(4)")
        wtr()
    else:
        a("    s_waitcnt vmcnt(%d)" % (1 if EB else 0))
        stamp(12)
        wtr()
        a("    s_barrier")
        oloads()
    a("    s_branch L_BELL2")
    a("L_BELL1:")
    if opt.get("rdy", 0):
        a("    v_and_b32 %s, 31, v0" % v(vT + 1))
        a("    v_lshlrev_b32 %s, 6, %s" % (v(vT + 1), v(vT + 1)))
        a("    v_add_u32 %s, 0x%x, %s" % (v(vT + 1), SRDY - S2ML, v(vT + 1)))

        def rdy():
            a("    global_load_dword %s, %s, %s sc1" % (v(vT + 2), v(vT + 1), s(sB0, 2)))

        def rdycheck():
            a("    v_cmp_ne_u32 vcc, %s, %s" % (s(sT32), v(vT + 2)))
        setexec(0xFFFFFFFF, 0)
        rdy()
        poll(rdy, rdycheck, 0, cnt=13)
        a("    s_barrier")
        bell()
        oloads()
        stamp(11)
        wtr()
        poll(bell, bellcheck, 4)
    elif opt.get("sb2", 0):
        a("    s_mul_i32 %s, %s, 0x01010101" % (s(sRep), s(sTag8)))
        a("    s_mov_b32 %s, %s" % (s(sRep + 1), s(sRep)))
        a("    s_and_b32 %s, %s, %d" % (s(sT0), s(sJ), R2 - 1))
        a("    s_lshl4_add_u32 %s, %s, %s" % (s(sT0), s(sH), s(sT0)))
        a("    s_lshl_b32 %s, %s, 7" % (s(sT0), s(sT0)))
        a("    s_add_u32 %s, %s, 0x%x" % (s(sT0), s(sT0), SRDY))
        stamp(12)
        spoll(sWS, s(sT0), sRep)
        if prof:
            a("    s_mov_b32 %s, %s" % (s(sPROF + 26), s(sSpin)))
        a("    s_barrier")
        bell()
        oloads()
        stamp(11)
        poll(bell, bellcheck, 4, post=wtr)
    elif EB:
        assert WO1 == 0 and not opt.get("mb")
        poll(bell, bellcheck, 1, cnt=13)
        a("    s_barrier")
        oloads()
        wtr()
        stamp(11)
    else:
        bell()
        poll(bell, bellcheck, 0, cnt=13)
        a("    s_barrier")
        oloads()
        wtr()
        stamp(11)
    a("    v_max_f32 %s, %s, %s" % (v(vT + 1), v(vML), v(vML + 4)))
    allred_hi(vT + 1, vT, "max")
    for i in range(2):
        a("    v_sub_f32 %s, %s, %s" % (v(vML + 4 * i), v(vML + 4 * i), v(vT + 1)))
    for i in range(2):
        a("    v_mul_f32 %s, 0x3fb8aa3b, %s" % (v(vML + 4 * i), v(vML + 4 * i)))
    for i in range(2):
        a("    v_exp_f32 %s, %s" % (v(vML + 4 * i), v(vML + 4 * i)))
    a("    v_lshlrev_b32 %s, 2, v0" % v(vT + 2))
    a("    v_mul_f32 %s, %s, %s" % (v(vT + 1), v(vML), v(vML + 1)))
    a("    v_fmac_f32 %s, %s, %s" % (v(vT + 1), v(vML + 4), v(vML + 5)))
    allred_hi(vT + 1, vT, "add")
    a("    v_rcp_f32 %s, %s" % (v(vT + 1), v(vT + 1)))
    a("    v_add_u32 %s, 0x%x, %s" % (v(vT + 2), LWT, v(vT + 2)))
    for i in range(2):
        a("    v_mul_f32 %s, %s, %s" % (v(vML + 4 * i), v(vML + 4 * i), v(vT + 1)))
    for i in range(2):
        a("    ds_write_b32 %s, %s offset:%d" % (v(vT + 2), v(vML + 4 * i), 256 * i))
    a("    s_waitcnt lgkmcnt(0)")
    a("L_BELL2:")
    WB = opt.get("wbar", 0)

    def wreads():
        a("    s_barrier")
        for i in range(4):
            a("    ds_read_b128 %s, %s offset:%d" % (v(vWt + 4 * i, 4), v(vAw), 128 * i))

    wreads()

    def oacc(i):
        for r in (0, 2):
            if i == 0:
                a("    v_pk_mul_f32 %s, %s, %s" % (v(vT + r, 2), v(vO + r, 2), v(vWt + r, 2)))
            else:
                a("    v_pk_fma_f32 %s, %s, %s, %s" % (v(vT + r, 2), v(vO + 4 * i + r, 2), v(vWt + 4 * i + r, 2), v(vT + r, 2)))

    def s3hint():
        a("    s_or_b32 %s, %s, %s" % (s(sT0), s(sJ), s(sW)))
        a("    s_cmp_lg_u32 %s, 0" % s(sT0))
        a("    s_cbranch_scc1 L_NOHINT")
        if opt.get("sb3", 0):
            if R3 < 64:
                setexec((1 << R3) - 1, 0)
            a("    v_lshl_add_u32 %s, v0, 7, %s" % (v(vT + 4), s(sInb)))
        else:
            setexec(1, 0)
            a("    v_mov_b32 %s, %s" % (v(vT + 4), s(sInb)))
        a("    v_mov_b32 %s, %s" % (v(vT + 5), s(sT32)))
        a("    global_store_dword %s, %s, %s sc1" % (v(vT + 4), v(vT + 5), s(sWS, 2)))
        if R3 == 128:
            a("    v_add_u32 %s, 0x2000, %s" % (v(vT + 4), v(vT + 4)))
            setexec(0xFFFFFFFF, 0xFFFF)
            a("    global_store_dword %s, %s, %s sc1" % (v(vT + 4), v(vT + 5), s(sWS, 2)))
        setexec(0xFFFFFFFF, 0xFFFFFFFF)
        a("L_NOHINT:")
    HP = opt.get("hp", 0)

    def obefore():
        if HP == 1:
            a("    s_waitcnt vmcnt(3)")
            s3hint()
        a("    s_waitcnt lgkmcnt(0)")
    gather(oloads, [vO + 4 * i for i in range(4)], sTag10, 0x3ff, oacc, cnt=14, before=obefore)
    stamp(7)
    if HP == 0:
        s3hint()
    treduce4(vT)
    a("    v_add_f32_dpp %s, %s, %s row_ror:8 %s" % (v(vT), v(vT), v(vT), DPP))
    rowpack(vT, vT + 4, 4)
    for t in range(4):
        a("    v_mfma_f32_16x16x32_bf16 %s, %s, %s, 0" % (v(vDt + 4 * t, 4), v(vW + 4 * t, 4), v(vT + 4, 4)))
    setexec(0x00010001, 0x00010001)
    for t in range(4):
        a("    ds_write_b128 %s, %s offset:%d" % (v(vArw), v(vDt + 4 * t, 4), 64 * t))
    setexec(0xFFFFFFFF, 0xFFFFFFFF)
    red_publish(8, vTag10, sM10, 0, sB2, "L_FIN")
    stamp(8)
    a("L_FIN:")
    finish()
    V.release(mrole)

    a("L_ROLE_FFN:")
    vGo = V()
    vDo = V(2)

    def quarter_prep(n, pair, m0reg):
        a("    s_add_u32 %s, %s, %d" % (s(sT0), s(sU), 0 if opt.get("fdiag") == 4 else n))
        a("    s_and_b32 %s, %s, 1" % (s(sT1), s(sT0)))
        a("    s_bfe_u32 %s, %s, 0x10001" % (s(sT0), s(sT0)))
        a("    s_lshl_b32 %s, %s, 1" % (s(sT2), s(sW)))
        a("    s_add_u32 %s, %s, %s" % (s(sT2), s(sT2), s(sT1)))
        a("    s_lshl_b32 %s, %s, 4" % (s(sT3), s(sT0)))
        a("    s_add_u32 %s, %s, %s" % (s(sT3), s(sT3), s(sT2)))
        a("    s_lshl_b32 %s, %s, 10" % (s(sT3), s(sT3)))
        a("    s_add_u32 %s, %s, 0x%x" % (s(m0reg), s(sT3), LG))
        a("    s_mul_i32 %s, %s, %d" % (s(sT2), s(sT2), 32 * 3584))
        a("    s_lshl_b32 %s, %s, 5" % (s(sT1), s(sFI)))
        a("    s_add_u32 %s, %s, %s" % (s(sT2), s(sT2), s(sT1)))
        a("    s_cmp_eq_u32 %s, 0" % s(sT0))
        a("    s_cselect_b64 %s, %s, %s" % (s(pair, 2), s(sWG, 2), s(sWU, 2)))
        base(pair, pair, s(sT2))
    QB = [(sK, sPC), (sVp, sPC + 1), (sWQ, sMean), (sWO, sVar)]

    def quarter(n):
        a("    s_mov_b32 m0, %s" % s(QB[n][1]))
        a("    global_load_lds_dwordx4 %s, %s%s" % (v(vGo), s(QB[n][0], 2),
          {0: " nt", 1: "" if n == 0 else " nt", 2: "", 3: " nt" if n == 0 else "", 4: " nt" if n == 0 else " sc1"}[opt.get("qpol", 0)]))

    def ffn_setup():
        a("    s_and_b32 %s, %s, 3" % (s(sU), s(sJ)))
        a("    s_min_u32 %s, %s, 4" % (s(sT0), s(sH)))
        a("    s_mul_i32 %s, %s, 3" % (s(sT1), s(sH)))
        a("    s_add_u32 %s, %s, %s" % (s(sT0), s(sT0), s(sT1)))
        a("    s_lshl_b32 %s, %s, 2" % (s(sT0), s(sT0)))
        a("    s_add_u32 %s, %s, %s" % (s(sT0), s(sT0), s(sJ)))
        a("    s_sub_u32 %s, %s, 16" % (s(sFI), s(sT0)))
        a("    v_lshrrev_b32 %s, 1, v0" % v(vT))
        a("    v_mul_u32_u24 %s, 3584, %s" % (v(vT), v(vT)))
        a("    v_and_b32 %s, 1, v0" % v(vT + 1))
        a("    v_lshl_add_u32 %s, %s, 4, %s" % (v(vGo), v(vT + 1), v(vT)))
        for n in range(4):
            quarter_prep(n, *QB[n])
        a("    s_lshl_b32 %s, %s, 14" % (s(sT0), s(sFI)))
        a("    s_lshl_b32 %s, %s, 7" % (s(sT1), s(sW)))
        a("    s_add_u32 %s, %s, %s" % (s(sT0), s(sT0), s(sT1)))
        base(sB5, sWD, s(sT0))
        a("    s_lshl_b32 %s, %s, 11" % (s(sT1), s(sW)))
        a("    s_add_u32 %s, %s, 0x%x" % (s(sInb), s(sT1), LD))
        a("    v_lshlrev_b32 %s, 4, %s" % (v(vDo), v(vL7)))
        a("    v_lshl_or_b32 %s, %s, 10, %s" % (v(vDo), v(vL3), v(vDo)))
        a("    v_add_u32 %s, 0x1c00, %s" % (v(vDo + 1), v(vDo)))

    def dload(i):
        def f():
            a("    s_mov_b32 m0, %s" % s(sInb))
            a("    global_load_lds_dwordx4 %s, %s offset:%d nt" % (v(vDo + i), s(sB5, 2), 1024 * i))
        return f
    def qhalf(lo, hi):
        def f():
            setexec(lo, hi)
            quarter(0)
            setexec(0xFFFFFFFF, 0xFFFFFFFF)
        return f
    L = dict(D0=dload(0), D1=dload(1), Q0=lambda: quarter(0), Q1=lambda: quarter(1), Q2=lambda: quarter(2), Q3=lambda: quarter(3))
    L2 = dict(Qa=qhalf(0xFFFFFFFF, 0), Qb=qhalf(0, 0xFFFFFFFF), Qc=qhalf(0xFFFF, 0), Qd=qhalf(0xFFFF0000, 0xFFFFFFFF))
    extra.update(A=ffn_setup, **L)
    extra.update(L2)
    sf = SCHED["f"][opt.get("sf", 0)]
    FT = [("Q0", "Q1 Q2 Q3 b D0 D1"), ("Q0", "Q1 Q2 Q3"), ("", "Q0 b Q1 Q2 Q3"), ("D0 D1", "Q0 b Q1 Q2 Q3"),
          ("", "Q0 D1 b Q1 Q2 Q3"), ("", "Q0 D0 D1 b Q1 Q2 Q3"), ("D1", "Q0 b Q1 Q2 Q3"),
          ("Qa", "Qb b Q1 Q2 Q3"), ("Qc", "Qd b Q1 Q2 Q3"), ("Qa", "Qb D0 D1 b Q1 Q2 Q3"), ("Qa", "Qb b Q1 Q2 Q3 b D0 D1"),
          ("Qb", "D0 D1 b Q1 Q2 Q3"), ("Qb", "Q1 Q2 Q3 b D0 D1")][opt.get("ft", 0)]
    allf = (sf + " " + FT[0] + " " + FT[1]).replace("Qb", "Q0").replace("Qd", "Q0").split()
    assert sorted(t for t in allf if t in L) == sorted(L), allf
    L.update(L2)
    attention(sf, [L[t] for t in FT[0].split()])
    if opt.get("fack", 0):
        a("    s_waitcnt vmcnt(0)")
    a("    s_barrier")
    for t in FT[1].split():
        if t == "b":
            a("    s_barrier")
        else:
            L[t]()
    a("    s_lshl_b32 %s, %s, 11" % (s(sT1), s(sW)))
    stamp(11)
    vXc = V()
    vHs = V(16, 4)
    vHo = V(4)
    vWg = V(16, 4)
    vWd = V(8, 4)
    vHb = V(8, 4)
    vDu = V(4, 4)
    vCs = V(4, 4)
    vMt = V(4)
    vB = V(8, 4)
    vAgw, vAgr, vAsw, vAsr, vAy, vHr = [V() for _ in range(6)]
    a("    s_lshl_b32 %s, %s, 7" % (s(sT0), s(sW)))
    base(sB0, sX, s(sT0))
    a("    v_lshl_add_u32 %s, %s, 2, %s" % (v(vT + 2), v(vJ), v(vG)))
    a("    v_lshlrev_b32 %s, 1, %s" % (v(vT + 2), v(vT + 2)))
    a("    global_load_ushort %s, %s, %s" % (v(vXc), v(vT + 2), s(sB0, 2)))
    a("    global_load_ushort %s, %s, %s" % (v(vHr), v(vT + 2), s(sOUT, 2)))
    a("    s_add_u32 %s, %s, 0x%x" % (s(sT2), s(sT0), LGP))
    a("    v_lshl_add_u32 %s, %s, 4, %s" % (v(vAgw), v(vG), s(sT2)))
    a("    v_lshrrev_b32 %s, 3, %s" % (v(vT + 2), v(vJ)))
    a("    v_lshl_add_u32 %s, %s, 1, %s" % (v(vT + 2), v(vL7), v(vT + 2)))
    a("    v_lshlrev_b32 %s, 6, %s" % (v(vT + 2), v(vT + 2)))
    a("    v_lshl_add_u32 %s, %s, 4, %s" % (v(vT + 2), v(vG), v(vT + 2)))
    a("    v_add_u32 %s, 0x%x, %s" % (v(vAgr), LGP, v(vT + 2)))
    a("    s_lshl_b32 %s, %s, 3" % (s(sT2), s(sW)))
    a("    s_add_u32 %s, %s, 0x%x" % (s(sT2), s(sT2), LST))
    a("    v_mov_b32 %s, %s" % (v(vAsw), s(sT2)))
    a("    v_lshlrev_b32 %s, 3, %s" % (v(vT + 2), v(vL7)))
    a("    v_add_u32 %s, 0x%x, %s" % (v(vAsr), LST, v(vT + 2)))
    for t in range(4):
        a("    v_cmp_eq_u32 vcc, %d, %s" % (t, v(vJ)))
        a("    v_cndmask_b32 %s, 0, -1, vcc" % v(vMt + t))
    a("    s_lshl_b32 %s, %s, 8" % (s(sT0), s(sW)))
    a("    s_add_u32 %s, %s, 0x%x" % (s(sT0), s(sT0), S3))
    base(sB1, sWS, s(sT0))
    a("    v_lshlrev_b32 %s, 4, %s" % (v(vT + 2), v(vJ)))
    a("    v_lshl_or_b32 %s, %s, 11, %s" % (v(vHo), v(vG), v(vT + 2)))
    for i in (1, 2, 3):
        a("    v_add_u32 %s, 0x%x, %s" % (v(vHo + i), 8192 * i, v(vHo)))
    a("    s_mul_i32 %s, %s, %d" % (s(sT0), s(sW), 4 * 7168))
    a("    s_lshl_b32 %s, %s, 6" % (s(sT2), s(sFI)))
    a("    s_add_u32 %s, %s, %s" % (s(sT0), s(sT0), s(sT2)))
    a("    s_add_u32 %s, %s, 0x%x" % (s(sT0), s(sT0), S4))
    base(sB2, sWS, s(sT0))
    a("    v_lshrrev_b32 %s, 2, %s" % (v(vT + 2), v(vJ)))
    a("    v_mul_u32_u24 %s, 7168, %s" % (v(vT + 2), v(vT + 2)))
    a("    v_and_b32 %s, 3, v0" % v(vT + 3))
    a("    v_lshl_add_u32 %s, %s, 4, %s" % (v(vAy), v(vT + 3), v(vT + 2)))
    a("    v_lshrrev_b32 %s, 2, %s" % (v(vT + 2), v(vJ)))
    a("    v_and_b32 %s, 3, v0" % v(vT + 3))
    a("    v_lshl_add_u32 %s, %s, 2, %s" % (v(vT + 4), v(vT + 2), v(vG)))
    a("    v_lshlrev_b32 %s, 5, %s" % (v(vT + 4), v(vT + 4)))
    a("    v_lshl_add_u32 %s, %s, 3, %s" % (v(vT + 4), v(vT + 3), v(vT + 4)))
    a("    s_add_u32 %s, %s, 0x%x" % (s(sT2), s(sT1), LG))
    a("    v_add_u32 %s, %s, %s" % (v(vT + 4), s(sT2), v(vT + 4)))
    a("    v_lshl_add_u32 %s, %s, 2, %s" % (v(vT + 5), v(vG), v(vT + 2)))
    a("    v_lshlrev_b32 %s, 7, %s" % (v(vT + 5), v(vT + 5)))
    a("    v_lshl_add_u32 %s, %s, 3, %s" % (v(vT + 5), v(vT + 3), v(vT + 5)))
    a("    s_add_u32 %s, %s, 0x%x" % (s(sT2), s(sT1), LD))
    a("    v_add_u32 %s, %s, %s" % (v(vT + 5), s(sT2), v(vT + 5)))
    for i in range(4):
        a("    v_mov_b32 %s, 0x3f803f80" % v(vHb + i))

    def hloadsf():
        for i in range(4):
            a("    global_load_dwordx4 %s, %s, %s sc1" % (v(vHs + 4 * i, 4), v(vHo + i), s(sB1, 2)))
    S3B = opt.get("s3bell", 1)
    if opt.get("sb3", 0):
        a("    s_cmp_lg_u32 %s, 0" % s(sW))
        a("    s_cbranch_scc1 L_HINT")
        a("    s_mov_b32 %s, %s" % (s(sRep), s(sT32)))
        a("    s_mov_b32 %s, %s" % (s(sRep + 1), s(sT32)))
        a("    s_and_b32 %s, %s, %d" % (s(sT0), s(sFI), R3 - 1))
        a("    s_lshl_b32 %s, %s, 7" % (s(sT0), s(sT0)))
        a("    s_add_u32 %s, %s, 0x%x" % (s(sT0), s(sT0), SBELL))
        spoll(sWS, s(sT0), sRep)
        a("L_HINT:")
        a("    s_barrier")
    elif S3B:
        a("    s_cmp_lg_u32 %s, 0" % s(sW))
        a("    s_cbranch_scc1 L_HINT")
        a("    v_lshlrev_b32 %s, 7, %s" % (v(vT + 1), v(vL7)))
        a("    v_add_u32 %s, 0x%x, %s" % (v(vT + 1), SBELL, v(vT + 1)))

        def hint():
            a("    global_load_dword %s, %s, %s sc1" % (v(vT + 2), v(vT + 1), s(sWS, 2)))

        def hintcheck():
            a("    v_cmp_ne_u32 vcc, %s, %s" % (s(sT32), v(vT + 2)))
        setexec(0xFF, 0)
        hint()
        poll(hint, hintcheck, 0, cnt=12)
        a("L_HINT:")
        a("    s_barrier")
    hloadsf()
    a("    s_waitcnt vmcnt(4)")
    stamp(7)
    for mat in range(2):
        for st in range(2):
            for hh in range(2):
                a("    ds_read_b64_tr_b16 %s, %s offset:%d" %
                  (v(vWg + 8 * mat + 4 * st + 2 * hh, 2), v(vT + 4), 16384 * mat + 1024 * st + 512 * hh))
    for t in range(4):
        a("    ds_read_b64_tr_b16 %s, %s offset:%d" % (v(vWd + 2 * t, 2), v(vT + 5), 32 * t))
    a("    v_lshlrev_b32 %s, 16, %s" % (v(vXc), v(vXc)))
    a("    s_waitcnt lgkmcnt(0)")

    def gate_up(b0, b1):
        a("    v_mfma_f32_16x16x32_bf16 %s, %s, %s, 0" % (v(vD, 4), v(vWg, 4), v(b0, 4)))
        a("    v_mfma_f32_16x16x32_bf16 %s, %s, %s, 0" % (v(vDu, 4), v(vWg + 8, 4), v(b0, 4)))
        a("    v_mfma_f32_16x16x32_bf16 %s, %s, %s, %s" % (v(vD, 4), v(vWg + 4, 4), v(b1, 4), v(vD, 4)))
        a("    v_mfma_f32_16x16x32_bf16 %s, %s, %s, %s" % (v(vDu, 4), v(vWg + 12, 4), v(b1, 4), v(vDu, 4)))
    gate_up(vHb, vHb)
    setexec(0x00010001, 0x00010001)
    a("    ds_write_b128 %s, %s offset:%d" % (v(vAgw), v(vD, 4), LCS - LGP))
    a("    ds_write_b128 %s, %s offset:%d" % (v(vAgw), v(vDu, 4), LCS - LGP + 64))
    setexec(0xFFFFFFFF, 0xFFFFFFFF)
    a("    s_waitcnt lgkmcnt(0)")
    a("    s_barrier")
    a("    ds_read_b128 %s, %s offset:%d" % (v(vCs, 4), v(vAgr), LCS - LGP))
    a("    s_waitcnt lgkmcnt(0)")
    for pat in ("quad_perm:[1,0,3,2]", "quad_perm:[2,3,0,1]", "row_half_mirror"):
        for r in range(4):
            a("    v_add_f32_dpp %s, %s, %s %s %s" % (v(vCs + r), v(vCs + r), v(vCs + r), pat, DPP))

    vHa = V(4, 4)

    def sumacc(dst, src):
        def f(i):
            for r in (0, 2):
                if i == 1:
                    a("    v_pk_add_f32 %s, %s, %s" % (v(dst + r, 2), v(src + r, 2), v(src + 4 + r, 2)))
                elif i > 1:
                    a("    v_pk_add_f32 %s, %s, %s" % (v(dst + r, 2), v(dst + r, 2), v(src + 4 * i + r, 2)))
        return f
    gather(hloadsf, [vHs + 4 * i for i in range(4)], sTag10, 0x3ff, sumacc(vHa, vHs), cnt=13)
    stamp(8)
    vHs = vHa
    treduce4(vHs)
    bf16r(vHs, vHs)
    a("    v_add_f32 %s, %s, %s" % (v(vHs), v(vHs), v(vXc)))
    rowpack(vHs, vHb, 8)
    bf16r(vHr, vHs)
    gate_up(vHb, vHb + 4)
    a("    v_mul_f32 %s, %s, %s" % (v(vT + 1), v(vHr), v(vHr)))
    a("    v_add_f32_dpp %s, %s, %s row_ror:1 %s" % (v(vT), v(vHr), v(vHr), DPP))
    a("    v_add_f32_dpp %s, %s, %s row_ror:1 %s" % (v(vT + 1), v(vT + 1), v(vT + 1), DPP))
    for sh in (2, 4, 8):
        for r in range(2):
            a("    v_add_f32_dpp %s, %s, %s row_ror:%d %s" % (v(vT + r), v(vT + r), v(vT + r), sh, DPP))
    for pat in ("row_bcast:15 row_mask:0xa", "row_bcast:31 row_mask:0xc"):
        for r in range(2):
            a("    v_add_f32_dpp %s, %s, %s %s bank_mask:0xf" % (v(vT + r), v(vT + r), v(vT + r), pat))
    setexec(0, 0x80000000)
    a("    ds_write_b64 %s, %s" % (v(vAsw), v(vT, 2)))
    setexec(0x00010001, 0x00010001)
    a("    ds_write_b128 %s, %s" % (v(vAgw), v(vD, 4)))
    a("    ds_write_b128 %s, %s offset:64" % (v(vAgw), v(vDu, 4)))
    setexec(0xFFFFFFFF, 0xFFFFFFFF)
    a("    s_waitcnt lgkmcnt(0)")
    a("    s_barrier")
    a("    ds_read_b64 %s, %s" % (v(vT, 2), v(vAsr)))
    a("    ds_read_b128 %s, %s" % (v(vD, 4), v(vAgr)))
    a("    s_waitcnt lgkmcnt(0)")
    for pat in ("quad_perm:[1,0,3,2]", "quad_perm:[2,3,0,1]", "row_half_mirror"):
        for r in (vT, vT + 1, vD, vD + 1, vD + 2, vD + 3):
            a("    v_add_f32_dpp %s, %s, %s %s %s" % (v(r), v(r), v(r), pat, DPP))
    a("    v_mul_f32 %s, 0x3b000000, %s" % (v(vT), v(vT)))
    bf16r(vT + 2, vT)
    for r in (0, 2):
        a("    v_pk_fma_f32 %s, %s, %s, %s op_sel_hi:[0,1,1] neg_lo:[1,0,0] neg_hi:[1,0,0]" %
          (v(vD + r, 2), v(vT + 2, 2), v(vCs + r, 2), v(vD + r, 2)))
    a("    v_mul_f32 %s, 0x3b000000, %s" % (v(vT + 1), v(vT + 1)))
    a("    v_fma_f32 %s, -%s, %s, %s" % (v(vT + 1), v(vT), v(vT), v(vT + 1)))
    for r in range(4):
        a("    v_mul_f32_dpp %s, %s, %s row_ror:8 %s" % (v(vT + 4 + r), v(vD + r), v(vD + r), DPP))
    a("    v_cvt_pk_bf16_f32 %s, %s, %s" % (v(vT + 2), v(vT + 4), v(vT + 5)))
    a("    v_cvt_pk_bf16_f32 %s, %s, %s" % (v(vT + 3), v(vT + 6), v(vT + 7)))
    for t in range(4):
        a("    v_and_b32 %s, %s, %s" % (v(vB + 2 * t), v(vT + 2), v(vMt + t)))
        a("    v_and_b32 %s, %s, %s" % (v(vB + 2 * t + 1), v(vT + 3), v(vMt + t)))
        if t:
            a("    v_mfma_f32_16x16x16_bf16 %s, %s, %s, %s" %
              (v(vDu, 4), v(vB + 2 * t - 2, 2), v(vWd + 2 * t - 2, 2), "0" if t == 1 else v(vDu, 4)))
    a("    v_max_f32 %s, 0, %s" % (v(vT + 1), v(vT + 1)))
    a("    v_mfma_f32_16x16x16_bf16 %s, %s, %s, %s" % (v(vDu, 4), v(vB + 6, 2), v(vWd + 6, 2), v(vDu, 4)))
    bf16r(vT + 1, vT + 1)
    a("    v_add_f32 %s, 0x3727c5ac, %s" % (v(vT + 1), v(vT + 1)))
    bf16r(vT + 1, vT + 1)
    a("    v_sqrt_f32 %s, %s" % (v(vT + 1), v(vT + 1)))
    bf16r(vT + 1, vT + 1)
    a("    v_mul_f32 %s, %s, %s" % (v(vT + 1), v(vT + 1), v(vT + 1)))
    a("    v_rcp_f32 %s, %s" % (v(vT), v(vT + 1)))
    setexec(0xFFFF, 0)
    for r in (0, 2):
        a("    v_pk_mul_f32 %s, %s, %s op_sel_hi:[1,0]" % (v(vDu + r, 2), v(vDu + r, 2), v(vT, 2)))
    for i in range(4):
        a("    v_and_or_b32 %s, %s, %s, %s" % (v(vDu + i), v(vDu + i), s(sM10), v(vTag10)))
    a("    global_store_dwordx4 %s, %s, %s sc1" % (v(vAy), v(vDu, 4), s(sB2, 2)))
    stamp(9)
    a("    s_lshr_b32 %s, %s, 2" % (s(sT0), s(sFI)))
    a("    s_cmp_lg_u32 %s, %s" % (s(sT0), s(sW)))
    a("    s_cbranch_scc1 L_FIN2")
    setexec(0xFFFFFFFF, 0xFFFFFFFF)
    vY = V(28, 4)
    vCo = V()
    a("    v_and_b32 %s, 3, v0" % v(vT))
    a("    v_lshlrev_b32 %s, 2, %s" % (v(vT + 1), v(vG)))
    a("    v_lshl_add_u32 %s, %s, 4, %s" % (v(vT + 1), v(vT), v(vT + 1)))
    a("    v_add_u32 %s, %s, %s" % (v(vT + 1), s(sU), v(vT + 1)))
    a("    v_lshlrev_b32 %s, 2, %s" % (v(vT + 1), v(vT + 1)))
    a("    ds_bpermute_b32 %s, %s, %s" % (v(vHr), v(vT + 1), v(vHr)))
    a("    v_lshl_add_u32 %s, %s, 4, %s" % (v(vCo), v(vG), v(vT)))
    a("    v_lshlrev_b32 %s, 1, %s" % (v(vCo), v(vCo)))
    a("    s_lshl_b32 %s, %s, 7" % (s(sT0), s(sW)))
    a("    s_lshl_b32 %s, %s, 3" % (s(sT1), s(sU)))
    a("    s_add_u32 %s, %s, %s" % (s(sT0), s(sT0), s(sT1)))
    base(sB3, sOUT, s(sT0))
    a("    s_mul_i32 %s, %s, 7168" % (s(sT1), s(sFI)))
    a("    s_add_u32 %s, %s, 0x%x" % (s(sT1), s(sT1), S4 + 3072))
    base(sB2, sWS, s(sT1))

    def yloads():
        for n in range(7):
            a("    global_load_dwordx4 %s, %s, %s offset:%d sc1" % (v(vY + 4 * n, 4), v(vAo), s(sB2, 2), 1024 * n - 3072))

    if opt.get("ackwait", 1):
        a("    s_waitcnt vmcnt(0)")
    yloads()
    gather(yloads, [vY + 4 * i for i in range(7)], sTag10, 0x3ff, sumacc(vHa, vY), cnt=15)
    if not opt.get("astamps"):
        stamp(14)
    vY = vHa
    treduce4(vY)
    for sh in (4, 8):
        a("    v_add_f32_dpp %s, %s, %s row_ror:%d %s" % (v(vY), v(vY), v(vY), sh, DPP))
    bf16r(vY, vY)
    a("    s_waitcnt lgkmcnt(0)")
    a("    v_add_f32 %s, %s, %s" % (v(vY), v(vY), v(vHr)))
    a("    v_cvt_pk_bf16_f32 %s, %s, %s" % (v(vY), v(vY), v(vY)))
    setexec(0x000F000F, 0x000F000F)
    a("    global_store_short %s, %s, %s%s" % (v(vCo), v(vY), s(sB3, 2), ["", " sc1", " nt", " sc0 sc1"][opt.get("ost", 0)]))
    a("    s_cmp_lg_u32 %s, 0" % s(sFI))
    a("    s_cbranch_scc1 L_FIN2")
    setexec(1, 0)
    a("    v_mov_b32 %s, 0" % v(vT))
    a("    v_mov_b32 %s, %s" % (v(vT + 1), s(sT32)))
    a("    global_store_dword %s, %s, %s sc1" % (v(vT), v(vT + 1), s(sWS, 2)))
    if opt.get("diagspin"):
        a("    s_waitcnt lgkmcnt(0)")
        if "diagph" in opt:
            a("    s_sub_u32 s90, s90, s96")
            a("    s_lshl_b32 s90, s90, 2")
            a("    s_add_u32 s96, s96, s90")
        a("    s_add_u32 s96, s96, %d" % opt["diagspin"])
        a("L_DIAG:")
        a("    s_memrealtime s[92:93]")
        a("    s_waitcnt lgkmcnt(0)")
        a("    s_sub_u32 s92, s92, s96")
        a("    s_cmp_lt_i32 s92, 0")
        a("    s_cbranch_scc1 L_DIAG")
    a("L_FIN2:")
    finish()

    if prof:
        a("L_PROF:")
        a("    s_memrealtime %s" % s(sPROF + 20, 2))
        a("    s_mov_b64 exec, 1")
        a("    s_lshl_b32 %s, s2, 3" % s(sT0))
        a("    s_add_u32 %s, %s, %s" % (s(sT0), s(sT0), s(sW)))
        a("    s_lshl_b32 %s, %s, 7" % (s(sT0), s(sT0)))
        a("    s_add_u32 %s, %s, 0x%x" % (s(sT0), s(sT0), PROFB))
        base(sB0, sWS, s(sT0))
        a("    v_mov_b32 v1, 0")
        a("    s_waitcnt lgkmcnt(0)")
        for i in range(16):
            a("    v_mov_b32 v2, %s" % s(sPROF + 2 * i))
            if prof == 2:
                a("    global_atomic_umax v1, v2, %s offset:%d sc1" % (s(sDBG, 2), 4 * i))
            else:
                a("    global_store_dword v1, v2, %s offset:%d" % (s(sB0, 2), 4 * i))
        if prof == 2:
            a("    s_not_b32 %s, %s" % (s(sT0), s(sPROF)))
            a("    v_mov_b32 v2, %s" % s(sT0))
            a("    global_atomic_umax v1, v2, %s offset:48 sc1" % s(sDBG, 2))
        a("    s_endpgm")
    a("L_END:")
    a("    s_endpgm")
    a("L_CODE_END:")
    nv = (V.hi + 7) // 8 * 8
    a('.section .rodata,"a"')
    a(".p2align 6")
    a(".amdhsa_kernel %s_kernel" % NAME)
    a("  .amdhsa_next_free_vgpr %d" % nv)
    a("  .amdhsa_next_free_sgpr 102")
    a("  .amdhsa_accum_offset %d" % nv)
    a("  .amdhsa_group_segment_fixed_size 0")
    a("  .amdhsa_kernarg_size 96")
    a("  .amdhsa_user_sgpr_count 2")
    a("  .amdhsa_user_sgpr_kernarg_segment_ptr 1")
    a("  .amdhsa_system_sgpr_workgroup_id_x 1")
    a("  .amdhsa_float_denorm_mode_32 3")
    a(".end_amdhsa_kernel")
    return out + a.finalize()


if __name__ == "__main__":
    import argparse
    ap = argparse.ArgumentParser()
    ap.add_argument("-o", default=None)
    ap.add_argument("--prof", type=int, default=0)
    ap.add_argument("--opt", default="")
    args = ap.parse_args()
    opt = {}
    for kv in args.opt.split(","):
        if kv:
            k, x = kv.split("=")
            opt[k] = int(x)
    txt = gen(args.prof, opt)
    path = args.o or os.path.join(os.path.dirname(os.path.abspath(__file__)), "..", "cdna_kernels", NAME + ".s")
    open(path, "w").write(txt)
    print("wrote", path, len(txt.split("\n")), "lines")
```

```python
import sys
import os
sys.path.insert(0, os.path.dirname(os.path.abspath(__file__)))
from asmlib import Asm

NAME = "sequential_preLN__sliding_block_cached__glu_gated_bilinear__decode"

EPOCH = 0
S1 = 0x1000
S2ML = 0x11000
S3 = 0x15000
S4 = 0xE0000
SBELL = 0x140000
SRDY = 0x120000
SQF = 0x5C000
S2O = 0x60000
PROFB = 0x200000

LK = 0
LV = 32768
LG = 65536
LD = 98304
LRED = 114688
LQ = 119040
LMX = 120128
LLS = 120256
LP = 120768
LH = 121856
LGP = 122880
LCS = 123904
LST = 124928
LWT = 124992
LEP = 125504
LRM = 125512
LDS_BYTES = 125568

DPP = "row_mask:0xf bank_mask:0xf"
SPIN_LIMIT = 1 << 18


class Regs:
    def __init__(self, start):
        self.n = start
        self.hi = start

    def __call__(self, cnt=1, align=None):
        if align is None:
            align = 2 if cnt > 1 else 1
        self.n = (self.n + align - 1) // align * align
        b = self.n
        self.n += cnt
        self.hi = max(self.hi, self.n)
        return b

    def mark(self):
        return self.n

    def release(self, m):
        self.n = m


def v(b, n=1):
    return "v%d" % b if n == 1 else "v[%d:%d]" % (b, b + n - 1)


def s(b, n=1):
    return "s%d" % b if n == 1 else "s[%d:%d]" % (b, b + n - 1)


def gen(prof=False, opt=None):
    opt = dict(opt or {})
    for k_, x_ in dict(bx=0, qpol=3, win=3, mb=0, sw=6, sf=1, ft=7, t0p=2, fack=0, ost=1, amx=0, pl=0, sb2=2, sb3=1, rs2=10).items():
        opt.setdefault(k_, x_)
    a = Asm()
    V = Regs(1)
    sX, sK, sVp, sWQ, sWO, sBX, sWG, sWU = 4, 6, 8, 10, 12, 14, 16, 18
    sWD, sOUT, sDBG, sWS = 20, 22, 24, 26
    sE, sW, sH, sJ = 28, 29, 30, 31
    sT0, sT1, sT2, sT3 = 32, 33, 34, 35
    sB0, sB1, sB2, sB3 = 36, 38, 40, 42
    sM8, sM10, sTag8, sTag10, sT32 = 44, 45, 46, 47, 48
    sSpin, sTmp, sDummy = 49, 50, 51
    sPC = 52
    sB4 = 54
    sU, sFI = 56, 57
    sMean, sVar = 58, 59
    sBo, sBml = 60, 62
    sBfl = 94
    sB5, sInb = 98, 100
    sFl = 4
    sRep = 92
    sScale = 14
    sPROF = 64
    uid = [0]
    R2, R3 = opt.get("r2", 4), opt.get("r3", 16)
    RS2, RS3 = opt.get("rs2", 8), opt.get("rs3", 7)
    P2, P3 = opt.get("p2", 2), opt.get("p3", 1)
    vm = []

    def waitfor(name):
        n = len(vm) - 1 - vm.index(name)
        a("    s_waitcnt vmcnt(%d)" % n)

    STM = opt.get("stamps", 0xFFFF)

    def stamp(i):
        if opt.get("diagph") == i:
            a("    s_memrealtime s[90:91]")
        if prof and (STM >> i) & 1:
            a("    s_memrealtime %s" % s(sPROF + 2 * i, 2))

    def setexec(lo, hi):
        if lo == hi == 0xFFFFFFFF:
            a("    s_mov_b64 exec, -1")
        else:
            a("    s_mov_b32 exec_lo, 0x%x" % lo)
            a("    s_mov_b32 exec_hi, 0x%x" % hi)

    def base(dst, ptr, off_sreg):
        a("    s_add_u32 %s, %s, %s" % (s(dst), s(ptr), off_sreg))
        a("    s_addc_u32 %s, %s, 0" % (s(dst + 1), s(ptr + 1)))

    def finish():
        if prof:
            a("    s_branch L_PROF")
        else:
            a("    s_endpgm")

    def bf16r(dst, src):
        a("    v_cvt_pk_bf16_f32 %s, %s, %s" % (v(dst), v(src), v(src)))
        a("    v_and_b32 %s, 0xffff0000, %s" % (v(dst), v(dst)))

    def wavesum_to_sgpr(r, sd):
        for sh in (1, 2, 4, 8):
            a("    v_add_f32_dpp %s, %s, %s row_ror:%d %s" % (v(r), v(r), v(r), sh, DPP))
        a("    v_add_f32_dpp %s, %s, %s row_bcast:15 row_mask:0xa bank_mask:0xf" % (v(r), v(r), v(r)))
        a("    v_add_f32_dpp %s, %s, %s row_bcast:31 row_mask:0xc bank_mask:0xf" % (v(r), v(r), v(r)))
        a("    v_readlane_b32 %s, %s, 63" % (s(sd), v(r)))

    def tagcheck(regs, tagreg, tmp, first=True):
        for i, r in enumerate(regs):
            if first and i == 0:
                a("    v_xor_b32 %s, %s, %s" % (v(tmp), s(tagreg), v(r)))
            else:
                a("    v_bitop3_b32 %s, %s, %s, %s bitop3:0xf6" % (v(tmp), v(tmp), v(r), s(tagreg)))

    def poll(loads, check, firstwait, post=None, cnt=None, keepexec=False):
        uid[0] += 1
        u = uid[0]
        a("    s_mov_b32 %s, 0" % s(sSpin))
        a("    s_branch L_CHECK%d" % u)
        a("L_RETRY%d:" % u)
        a("    s_add_u32 %s, %s, 1" % (s(sSpin), s(sSpin)))
        a("    s_cmp_ge_u32 %s, 0x%x" % (s(sSpin), SPIN_LIMIT))
        a("    s_cbranch_scc1 L_OK%d" % u)
        a("    s_mov_b64 exec, vcc")
        loads()
        if firstwait:
            a("    s_waitcnt vmcnt(0)")
        a("L_CHECK%d:" % u)
        a("    s_waitcnt vmcnt(%d)" % firstwait)
        check()
        a("    s_cbranch_vccnz L_RETRY%d" % u)
        a("L_OK%d:" % u)
        a("    s_mov_b64 exec, -1")
        if prof and cnt is not None and (not opt.get("astamps") or cnt == 15):
            a("    s_mov_b32 %s, %s" % (s(sPROF + 2 * cnt), s(sSpin)))
        if post:
            post()

    def spoll(pair, off, rep, parts=1, rep3=False):
        uid[0] += 1
        u = uid[0]
        a("    s_mov_b32 %s, 0" % s(sSpin))
        depth = opt.get("spd", 1)
        if depth > 1:
            for k in range(4):
                a("    s_not_b64 %s, %s" % (s(sFl + 2 * k, 2), s(rep, 2)))
            a("L_SP%d:" % u)
            a("    s_add_u32 %s, %s, 1" % (s(sSpin), s(sSpin)))
            a("    s_cmp_ge_u32 %s, 0x%x" % (s(sSpin), SPIN_LIMIT))
            a("    s_cbranch_scc1 L_SPD%d" % u)
            a("    s_load_dwordx8 %s, %s, %s glc" % (s(sFl, 8), s(pair, 2), off))
            a("    s_waitcnt lgkmcnt(%d)" % (2 * depth - 2))
            for k in range(4):
                a("    s_cmp_eq_u64 %s, %s" % (s(sFl + 2 * k, 2), s(rep, 2)))
                a("    s_cbranch_scc0 L_SP%d" % u)
            a("L_SPD%d:" % u)
            return
        if parts > 1:
            base(sB0 if rep3 else sB1, pair, off)
        a("L_SP%d:" % u)
        if parts == 1:
            a("    s_load_dwordx8 %s, %s, %s glc" % (s(sFl, 8), s(pair, 2), off))
        else:
            n = 8 // parts
            for k in range(parts):
                a("    s_load_dword%s %s, %s, 0x%x glc" % ("" if n == 1 else "x%d" % n, s(sFl + n * k, n), s(sB0 if rep3 else sB1, 2), 128 * k))
        a("    s_add_u32 %s, %s, 1" % (s(sSpin), s(sSpin)))
        a("    s_cmp_ge_u32 %s, 0x%x" % (s(sSpin), SPIN_LIMIT))
        a("    s_waitcnt lgkmcnt(0)")
        a("    s_cbranch_scc1 L_SPD%d" % u)
        for k in range(4):
            a("    s_xor_b64 %s, %s, %s" % (s(sFl + 2 * k, 2), s(sFl + 2 * k, 2), s(rep, 2)))
        a("    s_or_b64 %s, %s, %s" % (s(sFl, 2), s(sFl, 2), s(sFl + 2, 2)))
        a("    s_or_b64 %s, %s, %s" % (s(sFl + 4, 2), s(sFl + 4, 2), s(sFl + 6, 2)))
        a("    s_or_b64 %s, %s, %s" % (s(sFl, 2), s(sFl, 2), s(sFl + 4, 2)))
        a("    s_cbranch_scc1 L_SP%d" % u)
        a("L_SPD%d:" % u)

    def gather(loads, regs, tag, lowmask, acc, cnt=None, before=None, ordered=True):
        uid[0] += 1
        u = uid[0]
        n = len(regs)

        def strip(i, first):
            r = regs[i]
            for k in range(4):
                a("    v_xor_b32 %s, %s, %s" % (v(r + k), s(tag), v(r + k)))
            if first:
                a("    v_or3_b32 %s, %s, %s, %s" % (v(vG0), v(r), v(r + 1), v(r + 2)))
                a("    v_or_b32 %s, %s, %s" % (v(vG0), v(vG0), v(r + 3)))
            else:
                a("    v_or3_b32 %s, %s, %s, %s" % (v(vG0), v(vG0), v(r), v(r + 1)))
                a("    v_or3_b32 %s, %s, %s, %s" % (v(vG0), v(vG0), v(r + 2), v(r + 3)))

        def verdict():
            a("    v_and_b32 %s, 0x%x, %s" % (v(vG0), lowmask, v(vG0)))
            a("    v_cmp_ne_u32 vcc, 0, %s" % v(vG0))
        a("    s_mov_b32 %s, 0" % s(sSpin))
        a("    s_branch L_FIRST%d" % u)
        a("L_RETRY%d:" % u)
        a("    s_add_u32 %s, %s, 1" % (s(sSpin), s(sSpin)))
        a("    s_cmp_ge_u32 %s, 0x%x" % (s(sSpin), SPIN_LIMIT))
        a("    s_cbranch_scc1 L_REDO%d" % u)
        a("    s_mov_b64 exec, vcc")
        loads()
        a("    s_waitcnt vmcnt(0)")
        for i in range(n):
            strip(i, i == 0)
        verdict()
        a("    s_cbranch_vccnz L_RETRY%d" % u)
        a("L_REDO%d:" % u)
        a("    s_mov_b64 exec, -1")
        for i in range(n):
            acc(i)
        a("    s_branch L_OK%d" % u)
        a("L_FIRST%d:" % u)
        if before:
            before()
        for i in range(n):
            if ordered or i == 0:
                a("    s_waitcnt vmcnt(%d)" % (n - 1 - i if ordered else 0))
            strip(i, i == 0)
            if i == n - 1:
                verdict()
            acc(i)
        a("    s_cbranch_vccnz L_RETRY%d" % u)
        a("L_OK%d:" % u)
        if prof and cnt is not None and not opt.get("astamps"):
            a("    s_mov_b32 %s, %s" % (s(sPROF + 2 * cnt), s(sSpin)))

    def allred_hi(r, tmp, op):
        for sh in (4, 8):
            a("    v_%s_f32_dpp %s, %s, %s row_ror:%d %s" % (op, v(r), v(r), v(r), sh, DPP))
        for sw in ("16", "32"):
            a("    v_mov_b32 %s, %s" % (v(tmp), v(r)))
            a("    v_permlane%s_swap_b32 %s, %s" % (sw, v(r), v(tmp)))
            a("    v_%s_f32 %s, %s, %s" % (op, v(r), v(r), v(tmp)))

    def rowpack(r, dst, n):
        a("    v_mov_b32_dpp %s, %s quad_perm:[1,1,3,3] %s" % (v(r + 1), v(r), DPP))
        a("    v_cvt_pk_bf16_f32 %s, %s, %s" % (v(r + 1), v(r), v(r + 1)))
        for i in range(n):
            a("    v_mov_b32_dpp %s, %s row_newbcast:%d %s" % (v(dst + i), v(r + 1), 2 * i, DPP))

    def treduce4(r):
        a("    v_permlane32_swap_b32 %s, %s" % (v(r), v(r + 2)))
        a("    v_permlane32_swap_b32 %s, %s" % (v(r + 1), v(r + 3)))
        a("    v_add_f32 %s, %s, %s" % (v(r), v(r), v(r + 2)))
        a("    v_add_f32 %s, %s, %s" % (v(r + 1), v(r + 1), v(r + 3)))
        a("    v_permlane16_swap_b32 %s, %s" % (v(r), v(r + 1)))
        a("    v_add_f32 %s, %s, %s" % (v(r), v(r), v(r + 1)))

    hdr = open(os.path.join(os.path.dirname(os.path.abspath(__file__)), "..", "cdna_kernels", NAME + ".s.ref")).read()
    head = [l for l in hdr.split("\n") if l.startswith("; Kernarg") or l.startswith(";   offset")]
    out = "\n".join(head) + "\n"
    out += "; One persistent launch: 256 workgroups (one per CU) x 8 waves.\n"
    out += "; @launch grid=(256,1,1) block=(512,1,1) lds=%d\n" % LDS_BYTES
    a('.amdgcn_target "amdgcn-amd-amdhsa--gfx950"')
    a(".text")
    a(".globl %s_kernel" % NAME)
    a(".p2align 8")
    a(".type %s_kernel,@function" % NAME)
    a("%s_kernel:" % NAME)

    vL = 0
    vM = V(4, 4)
    vTag8, vTag10, vG0 = V(), V(), V()
    vL3, vL7, vG, vJ = V(), V(), V(), V()
    vRedW, vRedR, vRedR8, vC4 = V(), V(), V(), V()
    vD = V(4, 4)
    vT = V(8, 4)
    vV0 = V(4)
    vV1 = vV0 + 1
    vW = V(16, 4)
    vAk = V(4)
    vKo = V(4)
    vAq, vAqw, vAmw, vAmr, vAlw, vApw, vApr, vAv, vAo, vAlr, vQo = [V() for _ in range(11)]
    mk = V.mark()

    def attn_addresses():
        a("    s_lshl_b32 %s, %s, 12" % (s(sT0), s(sW)))
        a("    v_xor_b32 %s, %s, %s" % (v(vT), v(vJ), v(vG)))
        a("    v_lshlrev_b32 %s, 4, %s" % (v(vT), v(vT)))
        a("    v_lshl_or_b32 %s, %s, 8, %s" % (v(vT), v(vJ), v(vT)))
        a("    v_add_u32 %s, %s, %s" % (v(vAk), s(sT0), v(vT)))
        for i in (1, 2, 3):
            a("    v_xor_b32 %s, 0x%x, %s" % (v(vAk + i), 64 * i, v(vAk)))
        a("    v_and_b32 %s, 3, v0" % v(vT))
        a("    v_mul_u32_u24 %s, 272, %s" % (v(vT + 1), v(vT)))
        a("    v_lshl_add_u32 %s, %s, 4, %s" % (v(vT + 2), v(vG), v(vT + 1)))
        a("    v_add_u32 %s, 0x%x, %s" % (v(vAq), LQ, v(vT + 2)))
        a("    v_add_u32 %s, 0x%x, %s" % (v(vApr), LP, v(vT + 2)))
        a("    s_lshr_b32 %s, %s, 1" % (s(sT0), s(sW)))
        a("    s_and_b32 %s, %s, 1" % (s(sT1), s(sW)))
        a("    s_lshl_b32 %s, %s, 6" % (s(sT2), s(sT0)))
        a("    s_lshl_b32 %s, %s, 3" % (s(sT3), s(sT1)))
        a("    s_add_u32 %s, %s, %s" % (s(sT2), s(sT2), s(sT3)))
        a("    v_add_u32 %s, %s, %s" % (v(vApw), s(sT2), v(vApr)))
        a("    s_mul_i32 %s, %s, 272" % (s(sT0), s(sT0)))
        a("    s_lshl_b32 %s, %s, 7" % (s(sT1), s(sT1)))
        a("    s_add_u32 %s, %s, %s" % (s(sT0), s(sT0), s(sT1)))
        a("    s_add_u32 %s, %s, 0x%x" % (s(sT0), s(sT0), LQ))
        a("    v_lshl_add_u32 %s, %s, 2, %s" % (v(vT + 3), v(vJ), v(vG)))
        a("    v_lshl_add_u32 %s, %s, 1, %s" % (v(vAqw), v(vT + 3), s(sT0)))
        a("    v_lshlrev_b32 %s, 5, %s" % (v(vT + 1), v(vT)))
        a("    v_add_u32 %s, 0x%x, %s" % (v(vAmr), LMX, v(vT + 1)))
        a("    s_lshl_b32 %s, %s, 2" % (s(sT0), s(sW)))
        a("    v_add_u32 %s, %s, %s" % (v(vAmw), s(sT0), v(vAmr)))
        a("    s_lshl_b32 %s, %s, 4" % (s(sT0), s(sW)))
        a("    s_add_u32 %s, %s, 0x%x" % (s(sT0), s(sT0), LLS))
        a("    v_lshlrev_b32 %s, 7, %s" % (v(vT + 1), v(vT)))
        a("    v_lshl_add_u32 %s, %s, 2, %s" % (v(vT + 1), v(vG), v(vT + 1)))
        a("    v_add_u32 %s, %s, %s" % (v(vAlw), s(sT0), v(vT + 1)))
        a("    v_lshrrev_b32 %s, 2, v0" % v(vT + 1))
        a("    v_lshlrev_b32 %s, 3, %s" % (v(vT + 1), v(vT + 1)))
        a("    v_lshl_add_u32 %s, %s, 7, %s" % (v(vT + 1), v(vT), v(vT + 1)))
        a("    v_add_u32 %s, 0x%x, %s" % (v(vAlr), LLS, v(vT + 1)))
        a("    v_lshrrev_b32 %s, 2, %s" % (v(vT + 1), v(vJ)))
        a("    v_lshl_add_u32 %s, %s, 2, %s" % (v(vT + 1), v(vG), v(vT + 1)))
        a("    v_and_b32 %s, 7, %s" % (v(vT + 2), v(vT + 1)))
        a("    v_lshlrev_b32 %s, 1, %s" % (v(vT + 2), v(vT + 2)))
        a("    v_bfe_u32 %s, v0, 1, 1" % v(vT + 3))
        a("    s_lshl_b32 %s, %s, 1" % (s(sT0), s(sW)))
        a("    v_add_u32 %s, %s, %s" % (v(vT + 3), s(sT0), v(vT + 3)))
        a("    v_xor_b32 %s, %s, %s" % (v(vT + 2), v(vT + 2), v(vT + 3)))
        a("    v_lshlrev_b32 %s, 4, %s" % (v(vT + 2), v(vT + 2)))
        a("    v_lshl_or_b32 %s, %s, 8, %s" % (v(vT + 1), v(vT + 1), v(vT + 2)))
        a("    v_and_b32 %s, 1, v0" % v(vT + 2))
        a("    v_lshl_or_b32 %s, %s, 3, %s" % (v(vT + 1), v(vT + 2), v(vT + 1)))
        a("    v_add_u32 %s, 0x%x, %s" % (v(vAv), LV, v(vT + 1)))
        a("    s_lshl_b32 %s, %s, 5" % (s(sT0), s(sH)))
        a("    s_add_u32 %s, %s, %s" % (s(sT0), s(sT0), s(sJ)))
        a("    s_lshl_b32 %s, %s, 6" % (s(sT2), s(sT0)))
        a("    s_add_u32 %s, %s, 0x%x" % (s(sT2), s(sT2), S2ML))
        base(sBml, sWS, s(sT2))
        if opt.get("sb2", 0):
            per = 32 // P2
            a("    s_lshl_b32 %s, %s, %d" % (s(sT0), s(sH), RS2 + 4))
            a("    s_and_b32 %s, %s, %d" % (s(sT1), s(sJ), per - 1))
            a("    s_add_u32 %s, %s, %s" % (s(sT0), s(sT0), s(sT1)))
            a("    s_lshr_b32 %s, %s, %d" % (s(sT1), s(sJ), per.bit_length() - 1))
            a("    s_lshl_b32 %s, %s, 7" % (s(sT1), s(sT1)))
            a("    s_add_u32 %s, %s, %s" % (s(sT0), s(sT0), s(sT1)))
            a("    s_add_u32 %s, %s, 0x%x" % (s(sT0), s(sT0), SRDY))
            base(sBfl, sWS, s(sT0))

    a("    s_cmp_ge_u32 s2, 0x100")
    a("    s_cbranch_scc1 L_END")
    a("    s_load_dwordx16 s[4:19], s[0:1], 0x0")
    a("    s_load_dwordx8 s[20:27], s[0:1], 0x40")
    if opt.get("diagspin"):
        a("    s_memrealtime s[96:97]")
    if prof == 2:
        for i in range(1, 12):
            a("    s_mov_b32 %s, 0" % s(sPROF + 2 * i))
    stamp(0)
    vXo = vAo
    vXSo, vWQ0, vWQ1 = V(), V(), V()
    vXf = V(4, 4)
    vXs = V()
    KVM = 0
    OCLR = 0
    sIdx = sDummy + 0
    a("    v_lshrrev_b32 %s, 6, v0" % v(vT))
    a("    v_and_b32 v0, 63, v0")
    a("    s_lshr_b32 %s, s2, 3" % s(sJ))
    a("    v_readfirstlane_b32 %s, %s" % (s(sW), v(vT)))
    a("    s_and_b32 %s, s2, 7" % s(sH))
    a("    v_lshlrev_b32 %s, 4, v0" % v(vXo))
    a("    v_lshrrev_b32 %s, 3, v0" % v(vL3))
    a("    v_and_b32 %s, 0x70, %s" % (v(vT), v(vXo)))
    a("    v_lshlrev_b32 %s, 2, %s" % (v(vXSo), v(vL3)))
    a("    v_lshl_or_b32 %s, %s, 14, %s" % (v(vWQ0), v(vL3), v(vT)))
    a("    s_and_b32 %s, %s, 24" % (s(sT0), s(sJ)))
    a("    s_add_u32 %s, %s, %s" % (s(sT0), s(sT0), s(sW)))
    a("    s_and_b32 %s, %s, 7" % (s(sT3), s(sJ)))
    a("    s_lshl3_add_u32 %s, %s, %s" % (s(sT3), s(sH), s(sT3)))
    a("    s_lshl_b32 %s, %s, 10" % (s(sT1), s(sT0)))
    a("    s_add_u32 %s, %s, %s" % (s(sT1), s(sT1), s(sT3)))
    a("    s_lshl_b32 %s, %s, 7" % (s(sT1), s(sT1)))
    a("    s_lshl_b32 %s, %s, 5" % (s(sT0), s(sT0)))
    a("    v_add_u32 %s, 0x2000, %s" % (v(vWQ1), v(vWQ0)))

    def later():
        a("    v_lshrrev_b32 %s, 4, v0" % v(vG))
        a("    v_and_b32 %s, 15, v0" % v(vJ))
        a("    s_lshl3_add_u32 %s, %s, %s" % (s(sT3), s(sJ), s(sW)))
        a("    s_lshl_b32 %s, %s, 12" % (s(sT2), s(sH)))
        a("    v_xor_b32 %s, %s, %s" % (v(vT), v(vJ), v(vG)))
        a("    s_add_u32 %s, %s, %s" % (s(sT2), s(sT2), s(sT3)))
        a("    v_lshlrev_b32 %s, 4, %s" % (v(vT), v(vT)))
        a("    s_add_u32 %s, %s, 0xf00" % (s(sT2), s(sT2)))
        a("    v_lshl_or_b32 %s, %s, 8, %s" % (v(vKo), v(vG), v(vT)))
        a("    s_lshl_b32 %s, %s, 12" % (s(sT2), s(sT2)))
        a("    s_lshl_b32 %s, %s, 12" % (s(sTmp), s(sW)))
        a("    s_mov_b32 m0, %s" % s(sTmp))
    PL = opt.get("pl", 1)
    if not PL:
        later()
    a("    s_waitcnt lgkmcnt(0)")
    T2 = opt.get("touch2", 0)
    if T2:
        assert not PL
        a("    s_cmp_eq_u32 %s, 1" % s(sW))
        a("    s_cselect_b64 %s, %s, %s" % (s(sB4, 2), s(sWQ, 2), s(sK, 2)))
        a("    s_cselect_b32 %s, %s, %s" % (s(sDummy), s(sT1), s(sT2)))
        a("    s_cmp_gt_u32 %s, 1" % s(sW) if T2 == 1 else "    s_cmp_gt_u32 %s, 1" % s(sT3))
        a("    s_cbranch_scc1 L_NOT2")
        a("    s_load_dword %s, %s, %s" % (s(sDummy), s(sB4, 2), s(sDummy)))
        a("L_NOT2:")
    LN0 = opt.get("ln0", 0)
    if LN0:
        a("    s_cmp_lg_u32 %s, 0" % s(sW))
        a("    s_cbranch_scc1 L_NOX")
        a("    global_load_dwordx4 %s, %s, %s" % (v(vXf, 4), v(vXo), s(sX, 2)))
        a("L_NOX:")
        a("    s_add_u32 %s, %s, 0x%x" % (s(sB0), s(sT0), LH))
    else:
        a("    global_load_dwordx4 %s, %s, %s" % (v(vXf, 4), v(vXo), s(sX, 2)))
        base(sB0, sX, s(sT0))
        a("    global_load_dword %s, %s, %s" % (v(vXs), v(vXSo), s(sB0, 2)))
    base(sB1, sWQ, s(sT1))
    if opt.get("bx", 0):
        a("    s_barrier")
    a("    global_load_dwordx4 %s, %s, %s nt" % (v(vW, 4), v(vWQ0), s(sB1, 2)))
    a("    global_load_dwordx4 %s, %s, %s nt" % (v(vW + 4, 4), v(vWQ1), s(sB1, 2)))
    vm.extend(["x", "xs", "wq0", "wq1"])
    if PL:
        later()
    base(sB2, sK, s(sT2))
    if opt.get("b0", 1):
        a("    s_barrier")
    WIN = opt.get("win", 3)
    QPOS = opt.get("qpos", 7)
    stream = ["wq0", "wq1", "K0", "K1", "K2", "K3", "V0", "V1", "V2", "V3"]

    def sload(i):
        nm = stream[i]
        k = int(nm[1])
        if KVM == 2:
            if nm[0] == "K":
                a("    s_add_u32 m0, %s, %s" % (s(92), s(sRot + k)))
                a("    global_load_lds_dwordx4 %s, %s nt" % (v(vKo + k), s(sB2, 2)))
            else:
                a("    s_add_u32 m0, %s, %s" % (s(sTmp), s(sRot + k)))
                a("    global_load_lds_dwordx4 %s, %s nt" % (v(vV0 + k), s(sB3, 2)))
        elif nm[0] == "K":
            a("    global_load_lds_dwordx4 %s, %s offset:%d nt" % (v(vKo + k), s(sB2, 2), 1024 * k))
        else:
            if k == 0:
                a("    s_mov_b32 m0, %s" % s(sTmp))
            a("    global_load_lds_dwordx4 %s, %s offset:%d nt" % (v(vV0 + k) if KVM else v(vV1 if k & 1 else vV0), s(sB3, 2), 1024 * k))
        vm.append(nm)
    assert WIN == 3
    WIN0 = opt.get("win0", WIN)
    for i in range(2, WIN0):
        sload(i)
    base(sB3, sVp, s(sT2))
    for i in (1, 2, 3):
        a("    v_xor_b32 %s, 0x%x, %s" % (v(vKo + i), 64 * i, v(vKo)))
    a("    v_and_b32 %s, 7, v0" % v(vL7))
    a("    s_lshl_b32 %s, %s, 8" % (s(sT1), s(sH)))
    a("    s_add_u32 %s, %s, %s" % (s(sT1), s(sT1), s(sT3)))
    a("    s_lshl_b32 %s, %s, 8" % (s(sT1), s(sT1)))
    a("    s_add_u32 %s, %s, 0x%x" % (s(sT1), s(sT1), S2O))
    base(sBo, sWS, s(sT1))
    E0 = opt.get("e0", 1)
    a("    s_lshl_b32 %s, %s, 3" % (s(sT0), s(sJ)))
    a("    s_add_u32 %s, %s, %s" % (s(sT0), s(sT0), s(sW)))
    if E0:
        a("    s_cmp_lg_u32 %s, %d" % (s(sW), 1 if LN0 else 0))
        a("    s_cbranch_scc1 L_NOE")
    a("    s_load_dword %s, %s, 0x%x" % (s(sE), s(sWS, 2), EPOCH))
    a("L_NOE:")
    a("    s_getpc_b64 %s" % s(sPC, 2))
    a("L_PC:")
    if opt.get("pf", 1):
        if LN0:
            a("    s_cmp_eq_u32 %s, 0" % s(sW))
            a("    s_cbranch_scc1 L_NOPF")
            a("    s_sub_u32 %s, %s, %s" % (s(sT1), s(sT0), s(sJ)))
            a("    s_sub_u32 %s, %s, 1" % (s(sT1), s(sT1)))
        else:
            a("    s_mov_b32 %s, %s" % (s(sT1), s(sT0)))
        a("    s_cmp_gt_u32 %s, (L_CODE_END-L_PC-4)/128" % s(sT1))
        a("    s_cbranch_scc1 L_NOPF")
        a("    s_lshl_b32 %s, %s, 7" % (s(sT1), s(sT1)))
        a("    s_load_dword %s, %s, %s" % (s(sDummy), s(sPC, 2), s(sT1)))
        a("L_NOPF:")
    if opt.get("touch", 1):
        a("    s_lshl_b32 %s, %s, 19" % (s(sT1), s(sH)))
        base(sB4, sWO, s(sT1))
        for k, p in enumerate((sB3, sWG, sWU, sWD, sOUT)):
            a("    s_cmp_eq_u32 %s, %d" % (s(sT0), 8 * (17 + k) + 7))
            a("    s_cselect_b64 %s, %s, %s" % (s(sB4, 2), s(p, 2), s(sB4, 2)))
        a("    s_sub_u32 %s, %s, %d" % (s(sT1), s(sT0), 8 * 16 + 7))
        a("    s_and_b32 %s, %s, 0xffffffc7" % (s(sT3), s(sT1)))
        a("    s_cmp_lg_u32 %s, 0" % s(sT3))
        a("    s_cbranch_scc1 L_NOTOUCH")
        a("    s_load_dword %s, %s, 0x0" % (s(sDummy), s(sB4, 2)))
        a("L_NOTOUCH:")
    a("    v_lshlrev_b32 %s, 1, %s" % (v(vT), v(vG)))
    a("    v_xor_b32 %s, %s, %s" % (v(vT), v(vJ), v(vT)))
    a("    v_lshlrev_b32 %s, 4, %s" % (v(vT), v(vT)))
    a("    v_lshl_or_b32 %s, %s, 8, %s" % (v(vV0), v(vG), v(vT)))
    a("    v_xor_b32 %s, 0x80, %s" % (v(vV1), v(vV0)))
    if KVM == 2:
        for i in (3, 2, 1, 0):
            a("    s_lshr_b32 %s, %s, 3" % (s(sT0), s(sRot + i)))
            a("    s_and_b32 %s, %s, 0x80" % (s(sT0), s(sT0)))
            a("    s_or_b32 %s, %s, %s" % (s(sT0), s(sT0), s(sRot + i)))
            a("    v_xor_b32 %s, %s, %s" % (v(vV0 + i), s(sT0), v(vV0)))
    if KVM == 1:
        a("    v_add_u32 %s, 0x%x, %s" % (v(vV0 + 3), 7168 * 3, v(vV1)))
        a("    v_add_u32 %s, 0x%x, %s" % (v(vV0 + 2), 7168 * 2, v(vV0)))
        a("    v_add_u32 %s, 0x%x, %s" % (v(vV1), 7168, v(vV1)))
    a("    s_add_u32 %s, %s, 0x%x" % (s(sTmp), s(sTmp), LV))
    a("    v_and_b32 %s, 1, v0" % v(vT))
    a("    v_lshlrev_b32 %s, 4, %s" % (v(vT), v(vT)))
    a("    v_lshlrev_b32 %s, %s, %s" % (v(vT + 1), v(vT), v(vT + 2)) if False else
      "    v_mov_b32 %s, 0xffff" % v(vT + 1))
    a("    v_lshlrev_b32 %s, %s, %s" % (v(vT + 1), v(vT), v(vT + 1)))
    a("    v_lshrrev_b32 %s, 1, %s" % (v(vT), v(vL7)))
    for r in range(4):
        a("    v_cmp_eq_u32 vcc, %d, %s" % (r, v(vT)))
        a("    v_cndmask_b32 %s, 0, %s, vcc" % (v(vM + r), v(vT + 1)))
    a("    v_lshrrev_b32 %s, 5, v0" % v(vT))
    a("    s_lshl_b32 %s, %s, 1" % (s(sT0), s(sW)))
    a("    v_add_u32 %s, %s, %s" % (v(vT), s(sT0), v(vT)))
    a("    v_mul_u32_u24 %s, 272, %s" % (v(vT), v(vT)))
    a("    v_and_b32 %s, 1, %s" % (v(vT + 1), v(vG)))
    a("    v_lshl_or_b32 %s, %s, 1, %s" % (v(vT + 1), v(vL7), v(vT + 1)))
    a("    v_lshl_add_u32 %s, %s, 4, %s" % (v(vT), v(vT + 1), v(vT)))
    a("    v_add_u32 %s, 0x%x, %s" % (v(vRedW), LRED, v(vT)))
    a("    v_and_b32 %s, 3, v0" % v(vT))
    a("    v_lshl_add_u32 %s, %s, 2, %s" % (v(vC4), v(vG), v(vT)))
    a("    v_lshlrev_b32 %s, 4, %s" % (v(vC4), v(vC4)))
    a("    v_bfe_u32 %s, v0, 2, 2" % v(vT))
    a("    v_mul_u32_u24 %s, 544, %s" % (v(vT), v(vT)))
    a("    v_add_u32 %s, %s, %s" % (v(vT + 1), v(vC4), v(vT)))
    a("    v_add_u32 %s, 0x%x, %s" % (v(vRedR8), LRED, v(vT + 1)))
    a("    v_add_u32 %s, %s, %s" % (v(vRedR), v(vRedR8), v(vT)))
    a("    s_mov_b32 %s, 0x3db504f3" % s(sScale))
    a("    s_mov_b32 %s, 0x3fb8aa3b" % s(sScale + 1))
    a("    s_mov_b32 %s, 0xffffff00" % s(sM8))
    a("    s_mov_b32 %s, 0xfffffc00" % s(sM10))

    vXu = V(8, 4)
    vXk = V(8, 4)
    if LN0:
        a("    v_add_u32 %s, %s, %s" % (v(vXSo), s(sB0), v(vXSo)))
        a("    s_cmp_lg_u32 %s, 0" % s(sW))
        a("    s_cbranch_scc1 L_NOLN")
    waitfor("xs")
    stamp(1)
    for i in range(4):
        a("    v_lshlrev_b32 %s, 16, %s" % (v(vXu + 2 * i), v(vXf + i)))
        a("    v_and_b32 %s, 0xffff0000, %s" % (v(vXu + 2 * i + 1), v(vXf + i)))
    for i in range(4):
        a("    v_add_f32 %s, %s, %s" % (v(vT + i), v(vXu + 2 * i), v(vXu + 2 * i + 1)))
    a("    v_add_f32 %s, %s, %s" % (v(vT), v(vT), v(vT + 1)))
    a("    v_add_f32 %s, %s, %s" % (v(vT + 2), v(vT + 2), v(vT + 3)))
    a("    v_add_f32 %s, %s, %s" % (v(vT), v(vT), v(vT + 2)))
    a("    v_mul_f32 %s, 0x3b000000, %s" % (v(vT), v(vT)))
    wavesum_to_sgpr(vT, sMean)
    for i in range(8):
        a("    v_subrev_f32 %s, %s, %s" % (v(vXk + i), s(sMean), v(vXu + i)))
    a("    v_mul_f32 %s, %s, %s" % (v(vT), v(vXk), v(vXk)))
    a("    v_mul_f32 %s, %s, %s" % (v(vT + 1), v(vXk + 1), v(vXk + 1)))
    for i in range(2, 8):
        a("    v_fmac_f32 %s, %s, %s" % (v(vT + (i & 1)), v(vXk + i), v(vXk + i)))
    a("    v_add_f32 %s, %s, %s" % (v(vT), v(vT), v(vT + 1)))
    a("    v_mul_f32 %s, 0x3b000000, %s" % (v(vT), v(vT)))
    wavesum_to_sgpr(vT, sVar)
    a("    v_mov_b32 %s, %s" % (v(vT + 1), s(sMean)))
    bf16r(vT + 1, vT + 1)
    a("    v_mov_b32 %s, %s" % (v(vT), s(sVar)))
    bf16r(vT, vT)
    a("    v_add_f32 %s, 0x3727c5ac, %s" % (v(vT), v(vT)))
    bf16r(vT, vT)
    a("    v_sqrt_f32 %s, %s" % (v(vT), v(vT)))
    bf16r(vT, vT)
    a("    v_rcp_f32 %s, %s" % (v(vT + 2), v(vT)))
    vA = V(8, 4)
    if LN0:
        for i in range(0, 8, 2):
            a("    v_pk_add_f32 %s, %s, %s op_sel:[0,1] op_sel_hi:[1,1] neg_lo:[0,1] neg_hi:[0,1]" % (v(vXu + i, 2), v(vXu + i, 2), v(vT, 2)))
        for i in range(4):
            a("    v_cvt_pk_bf16_f32 %s, %s, %s" % (v(vXf + i), v(vXu + 2 * i), v(vXu + 2 * i + 1)))
        for i in range(4):
            a("    v_lshlrev_b32 %s, 16, %s" % (v(vXu + 2 * i), v(vXf + i)))
            a("    v_and_b32 %s, 0xffff0000, %s" % (v(vXu + 2 * i + 1), v(vXf + i)))
        for i in range(0, 8, 2):
            a("    v_pk_mul_f32 %s, %s, %s op_sel_hi:[1,0]" % (v(vXk + i, 2), v(vXu + i, 2), v(vT + 2, 2)))
        for i in range(0, 8, 2):
            a("    v_pk_fma_f32 %s, %s, %s, %s op_sel_hi:[1,0,1] neg_lo:[1,0,0] neg_hi:[1,0,0]" %
              (v(vXu + i, 2), v(vXk + i, 2), v(vT, 2), v(vXu + i, 2)))
        for i in range(0, 8, 2):
            a("    v_pk_fma_f32 %s, %s, %s, %s op_sel_hi:[1,0,1]" % (v(vXk + i, 2), v(vXu + i, 2), v(vT + 2, 2), v(vXk + i, 2)))
        for i in range(4):
            a("    v_cvt_pk_bf16_f32 %s, %s, %s" % (v(vXf + i), v(vXk + 2 * i), v(vXk + 2 * i + 1)))
        a("    v_add_u32 %s, 0x%x, %s" % (v(vT), LH, v(vXo)))
        a("    ds_write_b128 %s, %s" % (v(vT), v(vXf, 4)))
        a("    s_waitcnt lgkmcnt(0)")
        a("    s_load_dword %s, %s, 0x%x" % (s(sE), s(sWS, 2), EPOCH))
        a("L_NOLN:")
        a("    s_barrier")
        a("    ds_read_b32 %s, %s" % (v(vXs), v(vXSo)))
        a("    s_mov_b32 %s, 0x01000100" % s(sT0))
        a("    s_mov_b32 %s, 0x03020302" % s(sT1))

        def xoperand():
            a("    s_waitcnt lgkmcnt(0)")
            for i in range(2):
                a("    v_perm_b32 %s, %s, %s, %s" % (v(vT + 5 + i), v(vXs), v(vXs), s(sT0 + i)))
            for i in range(2):
                for r in range(4):
                    a("    v_and_b32 %s, %s, %s" % (v(vA + 4 * i + r), v(vT + 5 + i), v(vM + r)))
        if LN0 == 1:
            xoperand()
    else:
        a("    v_lshlrev_b32 %s, 16, %s" % (v(vT + 3), v(vXs)))
        a("    v_and_b32 %s, 0xffff0000, %s" % (v(vT + 4), v(vXs)))
        a("    v_sub_f32 %s, %s, %s" % (v(vT + 3), v(vT + 3), v(vT + 1)))
        a("    v_sub_f32 %s, %s, %s" % (v(vT + 4), v(vT + 4), v(vT + 1)))
        bf16r(vT + 3, vT + 3)
        bf16r(vT + 4, vT + 4)
        for i in range(2):
            y, q = vT + 3 + i, vT + 5 + i
            a("    v_mul_f32 %s, %s, %s" % (v(q), v(y), v(vT + 2)))
            a("    v_fma_f32 %s, -%s, %s, %s" % (v(y), v(q), v(vT), v(y)))
            a("    v_fmac_f32 %s, %s, %s" % (v(q), v(y), v(vT + 2)))
            a("    v_cvt_pk_bf16_f32 %s, %s, %s" % (v(q), v(q), v(q)))
            for r in range(4):
                a("    v_and_b32 %s, %s, %s" % (v(vA + 4 * i + r), v(q), v(vM + r)))
    a("    v_lshlrev_b32 %s, 4, %s" % (v(vQo), v(vJ)))
    a("    v_lshl_or_b32 %s, %s, 11, %s" % (v(vQo), v(vG), v(vQo)))

    def tags():
        a("    s_add_u32 %s, %s, 1" % (s(sT32), s(sE)))
        a("    s_and_b32 %s, %s, 0xff" % (s(sTag8), s(sT32)))
        a("    s_and_b32 %s, %s, 0x3ff" % (s(sTag10), s(sT32)))
        a("    v_mov_b32 %s, %s" % (v(vTag8), s(sTag8)))
        a("    v_mov_b32 %s, %s" % (v(vTag10), s(sTag10)))
    if not E0:
        a("    s_waitcnt lgkmcnt(0)")
        tags()
    waitfor("wq0")
    for i in range(WIN0, WIN + 1):
        sload(i)
    if LN0 == 2:
        xoperand()
    waitfor("clr" if OCLR else "wq1")
    sload(WIN + 1)
    if LN0 == 3:
        xoperand()
    stamp(2)
    a("    v_mfma_f32_16x16x32_bf16 %s, %s, %s, 0" % (v(vD, 4), v(vA, 4), v(vW, 4)))
    a("    v_mfma_f32_16x16x32_bf16 %s, %s, %s, %s" % (v(vD, 4), v(vA + 4, 4), v(vW + 4, 4), v(vD, 4)))

    def red_publish(nrows, tagv, mask, rnd, basepair, label, mid=None):
        a("    s_waitcnt lgkmcnt(0)")
        a("    s_barrier")
        a("    s_cmp_lg_u32 %s, 0" % s(sW))
        a("    s_cbranch_scc1 %s" % label)
        m = V.mark()
        r = V(16, 4)
        n = nrows // 4
        for i in range(n):
            a("    ds_read_b128 %s, %s offset:%d" % (v(r + 4 * i, 4), v(vRedR if n == 4 else vRedR8), 272 * i))
        if mid:
            mid()
        a("    s_waitcnt lgkmcnt(%d)" % (0 if prof else n - 2))
        a("    v_pk_add_f32 %s, %s, %s" % (v(r, 2), v(r, 2), v(r + 4, 2)))
        a("    v_pk_add_f32 %s, %s, %s" % (v(r + 2, 2), v(r + 2, 2), v(r + 6, 2)))
        if n == 4:
            a("    s_waitcnt lgkmcnt(0)")
            a("    v_pk_add_f32 %s, %s, %s" % (v(r + 8, 2), v(r + 8, 2), v(r + 12, 2)))
            a("    v_pk_add_f32 %s, %s, %s" % (v(r + 10, 2), v(r + 10, 2), v(r + 14, 2)))
            a("    v_pk_add_f32 %s, %s, %s" % (v(r, 2), v(r, 2), v(r + 8, 2)))
            a("    v_pk_add_f32 %s, %s, %s" % (v(r + 2, 2), v(r + 2, 2), v(r + 10, 2)))
        for sh in (4, 8):
            for i in range(4):
                a("    v_add_f32_dpp %s, %s, %s row_ror:%d %s" % (v(r + i), v(r + i), v(r + i), sh, DPP))
        for i in range(4):
            if rnd:
                a("    v_add_u32 %s, 0x%x, %s" % (v(r + i), rnd, v(r + i)))
        setexec(0x000F000F, 0x000F000F)
        for i in range(4):
            a("    v_and_or_b32 %s, %s, %s, %s" % (v(r + i), v(r + i), s(mask), v(tagv)))
        a("    global_store_dwordx4 %s, %s, %s sc1" % (v(vC4), v(r, 4), s(basepair, 2)))
        setexec(0xFFFFFFFF, 0xFFFFFFFF)
        V.release(m)

    a("    s_lshl_b32 %s, %s, 13" % (s(sT0), s(sH)))
    a("    s_add_u32 %s, %s, 0x%x" % (s(sT0), s(sT0), S1))
    a("    s_lshl_b32 %s, %s, 8" % (s(sT1), s(sJ)))
    a("    s_add_u32 %s, %s, %s" % (s(sT1), s(sT1), s(sT0)))
    base(sB0, sWS, s(sT1))
    a("    s_lshl_b32 %s, %s, 8" % (s(sT1), s(sW)))
    a("    s_add_u32 %s, %s, %s" % (s(sT1), s(sT1), s(sT0)))
    base(sB1, sWS, s(sT1))
    V.release(mk)
    if E0:
        a("    s_cmp_lg_u32 %s, 0" % s(sW))
        a("    s_cbranch_scc1 L_NOE2")
        a("    s_waitcnt lgkmcnt(0)")
        tags()
        a("    v_mov_b32 %s, 0x%x" % (v(vT), LEP))
        a("    v_mov_b32 %s, %s" % (v(vT + 1), s(sE)))
        a("    ds_write_b32 %s, %s" % (v(vT), v(vT + 1)))
        if opt.get("pg", 0):
            a("    v_mov_b32 %s, 0" % v(vT + 4))
            a("    ds_write_b32 %s, %s offset:%d" % (v(vT), v(vT + 4), LRM - LEP))
        a("    v_lshlrev_b32 %s, 2, v0" % v(vT + 2))
        a("    v_mov_b32 %s, 0xff800000" % v(vT + 3))
        a("    v_and_b32 %s, 0x7c, %s" % (v(vT + 2), v(vT + 2)))
        a("    v_add_u32 %s, 0x%x, %s" % (v(vT + 2), LMX, v(vT + 2)))
        a("    ds_write_b32 %s, %s" % (v(vT + 2), v(vT + 3)))
        a("L_NOE2:")
    setexec(0x00FF00FF, 0xFF00FF00)
    a("    ds_write_b128 %s, %s" % (v(vRedW), v(vD, 4)))
    setexec(0xFFFFFFFF, 0xFFFFFFFF)
    vQ = V(4, 4)
    vQ2 = V(4, 4)
    QP1 = opt.get("qp1", 0)
    red_publish(16, vTag8, sM8, 0x80, sB0, "L_QPUB")

    def qload():
        a("    global_load_dwordx4 %s, %s, %s sc1" % (v(vQ, 4), v(vQo), s(sB1, 2)))

    extra = {}
    CW = opt.get("cw", 0)

    def run_sched(text):
        for tok in text.split():
            if tok[0] == "|":
                waitfor(tok[1:])
            elif tok == "q":
                qload()
                vm.append("q")
            elif tok in stream:
                sload(stream.index(tok))
            else:
                extra[tok]()
                if len(tok) > 1:
                    vm.append(tok)

    def paced(gete=False):
        stamp(3)
        assert WIN == 3
        run_sched(["|K0 K3", "|K0 K3 V0", "K3 |K0 V0"][CW])
        if gete:
            a("    s_waitcnt lgkmcnt(0)")
            a("    v_readfirstlane_b32 %s, %s" % (s(sE), v(vT + 7)))
            a("    s_nop 0")
            tags()
        attn_addresses()
        run_sched(["|K1 V0", "|K1 V1", "|K1 V1"][CW])
    keep = list(vm)
    vm.append("qstore")
    DQ = opt.get("dq", 0)
    sQF = 88
    if DQ:
        a("    s_and_b32 %s, %s, 7" % (s(sT0), s(sJ)))
        a("    s_lshl3_add_u32 %s, %s, %s" % (s(sT0), s(sH), s(sT0)))
        a("    s_lshl_b32 %s, %s, 5" % (s(sT0), s(sT0)))
        a("    s_lshr_b32 %s, %s, 3" % (s(sT1), s(sJ)))
        a("    s_add_u32 %s, %s, %s" % (s(sT0), s(sT0), s(sT1)))
        a("    s_lshl_b32 %s, %s, 2" % (s(sT0), s(sT0)))
        a("    s_add_u32 %s, %s, 0x%x" % (s(sT0), s(sT0), SQF))
        setexec(1, 0)
        a("    v_mov_b32 %s, %s" % (v(vT), s(sT0)))
        a("    v_mov_b32 %s, %s" % (v(vT + 1), s(sT32)))
        a("    global_store_dword %s, %s, %s sc1" % (v(vT), v(vT + 1), s(sWS, 2)))
        setexec(0xFFFFFFFF, 0xFFFFFFFF)
        vm.append("qflag")
    paced()
    a("    s_branch L_PACED")
    a("L_QPUB:")
    vm[:] = keep
    if E0:
        a("    v_mov_b32 %s, 0x%x" % (v(vT + 7), LEP))
        a("    ds_read_b32 %s, %s" % (v(vT + 7), v(vT + 7)))
    paced(E0)
    a("L_PACED:")
    if DQ:
        a("    s_lshl3_add_u32 %s, %s, %s" % (s(sT0), s(sH), s(sW)))
        a("    s_lshl_b32 %s, %s, 7" % (s(sT0), s(sT0)))
        a("    s_add_u32 %s, %s, 0x%x" % (s(sT0), s(sT0), SQF))
        a("    s_load_dwordx4 %s, %s, %s glc" % (s(sQF, 4), s(sWS, 2), s(sT0)))
        a("    s_mov_b32 %s, %s" % (s(sRep), s(sT32)))
        a("    s_mov_b32 %s, %s" % (s(sRep + 1), s(sT32)))
    common = list(vm)
    SCHED = {
        "s": ["|K2 V1 |K3 V2 q |V0 V3"],
        "w": ["|K2 V1 |K3 V2 q |V0 V3 A |V1 T0 B",
              "|K2 V1 |K3 V2 q |V0 V3 A T0 |V1 T1 B",
              "|K2 V1 |K3 V2 q V3 A |V0 T0 |V1 T1 B",
              "|K2 V1 |K3 V2 q V3 A |V0 T0 |V1 T1 T2 B",
              "|K2 V1 |K3 V2 q |V0 V3 A B",
              "|K2 V1 V2 |K3 V3 q A |V0 T0 |V1 T1 B |V2 T2",
              "|K2 V1 |K3 V2 q |V0 V3 A T0 |V1 T1",
              "|K2 V1 |K3 V2 q |V0 V3 A |V1 T0"],
        "f": ["|K2 V1 |K3 V2 q |V0 V3 A",
              "|K2 V1 |K3 V2 q |V0 V3 A |V1 D0 D1",
              "|K2 V1 |K3 V2 q |V0 V3 A D0 |V1 D1",
              "|K2 V1 |K3 V2 q |V0 V3 A |V1 D0",
              "|K2 V1 |K3 V2 q |V0 V3 A |V1 Qa"],
    }
    QV = opt.get("qv", 0)
    if QV:
        old_, new_ = "|K2 V1 |K3 V2 q |V0 V3", ["", "|K2 V1 |K3 q V2 |V0 V3", "|K2 V1 |K3 V2 |V0 q V3", "|K2 V1 |K3 V2 |V0 V3 q",
                                                 "|K2 V1 |K3 q V2 V3", "|K3 q V1 V2 V3", "|K2 V1 |K3 q V2 V3 |V0"][QV]
        SCHED = {k_: [x_.replace(old_, new_) for x_ in v_] for k_, v_ in SCHED.items()}
    if CW:
        SCHED = {
            "s": ["|K2 V2 |K3 V3 q"],
            "w": ["|K2 V2 |K3 V3 q A |V0 T0 |V1 T1 B |V2 T2",
                  "|K2 V2 |K3 V3 q A |V0 T0 |V1 T1 B |V2 T2 |V3 T3",
                  "|K2 V2 |K3 V3 q A |V1 T0 B |V2 T1",
                  "|K2 V2 |K3 V3 A |V0 q T0 |V1 T1 B |V2 T2"],
            "f": ["|K2 V2 |K3 V3 q A", "|K2 V2 |K3 V3 q A |V0 D0 |V1 D1", "|K2 V2 |K3 V3 A |V0 q D0 |V1 D1"],
        }
        if opt.get("ss"):
            SCHED["s"] = ["|K2 V2 |K3 V3 |V0 q"]
    a("    s_cmp_lt_u32 %s, 16" % s(sJ))
    a("    s_cbranch_scc1 L_ROLE_WO")
    a("    s_cmp_lt_u32 %s, 4" % s(sH))
    a("    s_cbranch_scc1 L_ROLE_FFN")
    a("    s_cmp_lt_u32 %s, 28" % s(sJ))
    a("    s_cbranch_scc1 L_ROLE_FFN")

    def attention(sched, t0=(), t1=(), w0extra=None):
        m0 = V.mark()
        vKa = V(16, 4)
        vQb = V(16, 4)
        vPb = vQb
        vVa = vKa
        vS = V(4, 4)
        vMx, vMl = V(), V(4, 4)
        def kreads():
            for i in range(4):
                a("    ds_read_b128 %s, %s" % (v(vKa + 4 * i, 4), v(vAk + i)))

        vm[:] = common
        if DQ:
            uid[0] += 1
            ud = uid[0]
            head = "|K2 V1 "
            assert sched.startswith(head + "|K3 V2 q |V0 V3")
            run_sched(head)
            if DQ == 2:
                a("    s_getreg_b32 %s, hwreg(HW_REG_IB_STS, 8, 4)" % s(sT0))
                a("    s_cmp_lg_u32 %s, 0" % s(sT0))
                a("    s_cbranch_scc1 L_QLATE%d" % ud)
            a("    s_waitcnt lgkmcnt(0)")
            a("    s_xor_b64 %s, %s, %s" % (s(sQF, 2), s(sQF, 2), s(sRep, 2)))
            a("    s_xor_b64 %s, %s, %s" % (s(sQF + 2, 2), s(sQF + 2, 2), s(sRep, 2)))
            a("    s_or_b64 %s, %s, %s" % (s(sQF, 2), s(sQF, 2), s(sQF + 2, 2)))
            a("    s_cbranch_scc1 L_QLATE%d" % ud)
            mid = list(vm)
            rest_ = sched[len(head + "|K3 V2 q |V0 V3"):]
            run_sched("q |K3 V2 |V0 V3 " + " ".join(t for t in rest_.split() if t[0] != "|"))
            kreads()
            waitfor("q")
            early = [t for t in vm if t != "q"]
            a("    s_branch L_QJOIN%d" % ud)
            a("L_QLATE%d:" % ud)
            vm[:] = mid
            run_sched(sched[len(head):])
            kreads()
            waitfor("q")
            assert early == [t for t in vm if t != "q"]
            a("L_QJOIN%d:" % ud)
            NVA = 63
        else:
            run_sched(sched)
            kreads()
            NVA = len(vm) - 1 - vm.index("q")
        ntail = len(vm) - 1 - vm.index("V3") + len(t0)
        tp = ()
        def qcheck():
            for k in range(4):
                a("    v_xor_b32 %s, %s, %s" % (v(vQ + k), s(sTag8), v(vQ + k)))
            a("    v_or3_b32 %s, %s, %s, %s" % (v(vT), v(vQ), v(vQ + 1), v(vQ + 2)))
            a("    v_or_b32 %s, %s, %s" % (v(vT), v(vT), v(vQ + 3)))
            a("    v_and_b32 %s, 0xff, %s" % (v(vT), v(vT)))
            a("    v_cmp_ne_u32 vcc, 0, %s" % v(vT))
        RDY = opt.get("rdy", 0)

        def rdyhint():
            uid[0] += 1
            a("    s_cmp_lg_u32 %s, 7" % s(sW))
            a("    s_cbranch_scc1 L_NORDY%d" % uid[0])
            setexec(1, 0)
            a("    v_mov_b32 %s, 0x%x" % (v(vG0), SRDY - S2ML))
            a("    v_mov_b32 %s, %s" % (v(vMx), s(sT32)))
            a("    global_store_dword %s, %s, %s sc1" % (v(vG0), v(vMx), s(sBml, 2)))
            setexec(0xFFFFFFFF, 0xFFFFFFFF)
            a("L_NORDY%d:" % uid[0])
        MB = opt.get("mb", 1)
        AMX = opt.get("amx", 1)
        if QP1:
            uid[0] += 1
            uq = uid[0]
            a("    s_waitcnt vmcnt(%d)" % (len(vm) - 1 - vm.index("q1") + len(tp)))
            qcheck()
            a("    s_cbranch_vccz L_QOK%d" % uq)
            a("    s_waitcnt vmcnt(%d)" % (NVA + len(tp)))
            for i in range(0, 4, 2):
                a("    v_mov_b64 %s, %s" % (v(vQ + i, 2), v(vQ2 + i, 2)))
            poll(qload, qcheck, NVA + len(tp), cnt=15 if opt.get("astamps") else None)
            a("L_QOK%d:" % uq)
        else:
            poll(qload, qcheck, NVA + len(tp), cnt=15 if opt.get("astamps") else None)
        stamp(4)
        treduce4(vQ)
        a("    v_cvt_pk_bf16_f32 %s, %s, %s" % (v(vQ), v(vQ), v(vQ)))
        a("    ds_write_b16 %s, %s" % (v(vAqw), v(vQ)))
        a("    s_waitcnt lgkmcnt(0)")
        a("    s_barrier")
        for i in range(4):
            a("    ds_read_b128 %s, %s offset:%d" % (v(vQb + 4 * i, 4), v(vAq), 64 * i))
        T0P = opt.get("t0p", 1)
        if T0P == 0:
            for f in t0:
                f()
        for i in range(4):
            a("    s_waitcnt lgkmcnt(%d)" % (0 if prof else 3 - i))
            a("    v_mfma_f32_16x16x32_bf16 %s, %s, %s, %s" %
              (v(vD, 4), v(vKa + 4 * i, 4), v(vQb + 4 * i, 4), "0" if i == 0 else v(vD, 4)))
        if T0P == 1:
            for f in t0:
                f()
        a("    v_cvt_pk_bf16_f32 %s, %s, %s" % (v(vT), v(vD), v(vD + 1)))
        a("    v_cvt_pk_bf16_f32 %s, %s, %s" % (v(vT + 1), v(vD + 2), v(vD + 3)))
        for rnd in range(2):
            for i in range(2):
                a("    v_lshlrev_b32 %s, 16, %s" % (v(vS + 2 * i), v(vT + i)))
                a("    v_and_b32 %s, 0xffff0000, %s" % (v(vS + 2 * i + 1), v(vT + i)))
            if rnd == 0:
                for i in (0, 2):
                    a("    v_pk_mul_f32 %s, %s, %s op_sel_hi:[1,0]" % (v(vS + i, 2), v(vS + i, 2), s(sScale, 2)))
                a("    v_cvt_pk_bf16_f32 %s, %s, %s" % (v(vT), v(vS), v(vS + 1)))
                a("    v_cvt_pk_bf16_f32 %s, %s, %s" % (v(vT + 1), v(vS + 2), v(vS + 3)))
        a("    v_max3_f32 %s, %s, %s, %s" % (v(vMx), v(vS), v(vS + 1), v(vS + 2)))
        a("    v_max_f32 %s, %s, %s" % (v(vMx), v(vMx), v(vS + 3)))
        if AMX:
            setexec(0x000F000F, 0x000F000F)
            a("    ds_max_f32 %s, %s" % (v(vAmr), v(vMx)))
        else:
            for sw in ("16", "32"):
                a("    v_mov_b32 %s, %s" % (v(vT), v(vMx)))
                a("    v_permlane%s_swap_b32 %s, %s" % (sw, v(vMx), v(vT)))
                a("    v_max_f32 %s, %s, %s" % (v(vMx), v(vMx), v(vT)))
            setexec(0xF, 0)
            a("    ds_write_b32 %s, %s" % (v(vAmw), v(vMx)))
        setexec(0xFFFFFFFF, 0xFFFFFFFF)
        if T0P == 2:
            for f in t0:
                f()
        VB3 = opt.get("vb3", 0)

        def vreads(t):
            for hh in range(2):
                a("    ds_read_b64_tr_b16 %s, %s offset:%d" % (v(vVa + 4 * t + 2 * hh, 2), v(vAv), 8192 * t + 4096 * hh))
        if VB3:
            assert AMX and MB
            a("    s_waitcnt vmcnt(%d) lgkmcnt(0)" % ntail)
            for f in t1:
                f()
        else:
            a("    s_waitcnt lgkmcnt(0)")
        if RDY == 1:
            rdyhint()
        a("    s_barrier")
        if AMX:
            a("    ds_read_b32 %s, %s" % (v(vMl), v(vAmr)))
            if RDY == 2:
                rdyhint()
            if VB3:
                for t in range(4):
                    vreads(t)
            a("    s_waitcnt lgkmcnt(%d)" % (8 if VB3 and not prof else 0))
        else:
            a("    ds_read_b128 %s, %s" % (v(vT, 4), v(vAmr)))
            a("    ds_read_b128 %s, %s offset:16" % (v(vT + 4, 4), v(vAmr)))
            a("    s_waitcnt lgkmcnt(0)")
            a("    v_max3_f32 %s, %s, %s, %s" % (v(vT), v(vT), v(vT + 1), v(vT + 2)))
            a("    v_max3_f32 %s, %s, %s, %s" % (v(vT + 4), v(vT + 4), v(vT + 5), v(vT + 6)))
            a("    v_max3_f32 %s, %s, %s, %s" % (v(vT), v(vT), v(vT + 3), v(vT + 7)))
            a("    v_max_f32 %s, %s, %s" % (v(vMl), v(vT), v(vT + 4)))
        for i in (0, 2):
            a("    v_pk_add_f32 %s, %s, %s op_sel_hi:[1,0] neg_lo:[0,1] neg_hi:[0,1]" % (v(vS + i, 2), v(vS + i, 2), v(vMl, 2)))
        for i in (0, 2):
            a("    v_pk_mul_f32 %s, %s, %s op_sel:[0,1] op_sel_hi:[1,1]" % (v(vS + i, 2), v(vS + i, 2), s(sScale, 2)))
        for i in range(4):
            a("    v_exp_f32 %s, %s" % (v(vS + i), v(vS + i)))
        a("    v_cvt_pk_bf16_f32 %s, %s, %s" % (v(vT + 2), v(vS), v(vS + 1)))
        a("    v_cvt_pk_bf16_f32 %s, %s, %s" % (v(vT + 3), v(vS + 2), v(vS + 3)))
        setexec(0x000F000F, 0x000F000F)
        a("    ds_write_b64 %s, %s" % (v(vApw), v(vT + 2, 2)))
        a("    v_pk_add_f32 %s, %s, %s" % (v(vT, 2), v(vS, 2), v(vS + 2, 2)))
        a("    v_add_f32 %s, %s, %s" % (v(vT), v(vT), v(vT + 1)))
        a("    ds_write_b32 %s, %s" % (v(vAlw), v(vT)))
        setexec(0xFFFFFFFF, 0xFFFFFFFF)
        if MB and not VB3:
            a("    s_waitcnt vmcnt(%d) lgkmcnt(0)" % ntail)
            for f in t1:
                f()
        else:
            a("    s_waitcnt lgkmcnt(0)")
        a("    s_barrier")
        if opt.get("astamps"):
            stamp(13)
        if RDY == 3:
            rdyhint()
        uid[0] += 1
        u = uid[0]

        def preads():
            for i in range(4):
                a("    ds_read_b128 %s, %s offset:%d" % (v(vPb + 4 * i, 4), v(vApr), 64 * i))

        def mlpub():
            a("    v_add_f32 %s, %s, %s" % (v(vMl + 1), v(vT), v(vT + 1)))
            allred_hi(vMl + 1, vT, "add")
            setexec(0xF, 0)
            a("    global_store_dwordx4 %s, %s, %s sc1" % (v(vAo), v(vMl, 4), s(sBml, 2)))
            setexec(0xFFFFFFFF, 0xFFFFFFFF)

        SB2 = opt.get("sb2", 0)

        def sflag():
            setexec((1 << R2) - 1, 0)
            a("    v_lshlrev_b32 %s, %d, v0" % (v(vT), RS2))
            a("    global_store_byte %s, %s, %s sc1" % (v(vT), v(vTag8), s(sBfl, 2)))
            setexec(0xFFFFFFFF, 0xFFFFFFFF)

        def pv(first):
            for t in range(4):
                a("    s_waitcnt lgkmcnt(%d)" % (0 if prof else first[t]))
                a("    v_mfma_f32_16x16x32_bf16 %s, %s, %s, %s" %
                  (v(vD, 4), v(vPb + 4 * t, 4), v(vVa + 4 * t, 4), "0" if t == 0 else v(vD, 4)))
        if MB:
            a("    ds_read_b64 %s, %s" % (v(vT, 2), v(vAlr)))
            for t in range(4):
                a("    ds_read_b128 %s, %s offset:%d" % (v(vPb + 4 * t, 4), v(vApr), 64 * t))
                if not VB3:
                    vreads(t)
            a("    v_mov_b32 %s, %s" % (v(vMl + 2), s(sT32)))
            a("    v_mov_b32 %s, %s" % (v(vMl + 3), s(sT32)))
            a("    s_cmp_lg_u32 %s, 0" % s(sW))
            a("    s_cbranch_scc1 L_NOML%d" % u)
            a("    s_waitcnt lgkmcnt(%d)" % (0 if prof else (4 if VB3 else 12)))
            mlpub()
            a("L_NOML%d:" % u)
            pv([3, 2, 1, 0] if VB3 else [9, 6, 3, 0])
        else:
            preads()
            a("    s_cmp_lg_u32 %s, 0" % s(sW))
            a("    s_cbranch_scc1 L_NOML%d" % u)
            a("    ds_read_b64 %s, %s" % (v(vT, 2), v(vAlr)))
            a("    v_mov_b32 %s, %s" % (v(vMl + 2), s(sT32)))
            a("    v_mov_b32 %s, %s" % (v(vMl + 3), s(sT32)))
            a("    s_waitcnt lgkmcnt(0)")
            mlpub()
            nx = w0extra() if w0extra else 0
            if SB2 == 1:
                sflag()
                nx += 1
            a("    s_waitcnt vmcnt(%d)" % (1 + nx + ntail))
            if SB2 == 2:
                sflag()
            a("    s_branch L_MLD%d" % u)
            a("L_NOML%d:" % u)
            a("    s_waitcnt vmcnt(%d)" % ntail)
            a("L_MLD%d:" % u)
            if opt.get("astamps"):
                stamp(14)
            for f in t1:
                f()
            a("    s_barrier")
            stamp(5)
            for t in range(4):
                vreads(t)
            pv([6, 4, 2, 0])
        setexec(0xFFFF, 0)
        if OCLR:
            a("    v_min_u32 %s, -2, %s" % (v(vD), v(vD)))
        else:
            for i in range(4):
                a("    v_and_or_b32 %s, %s, %s, %s" % (v(vD + i), v(vD + i), s(sM10), v(vTag10)))
        a("    global_store_dwordx4 %s, %s, %s sc1" % (v(vAo), v(vD, 4), s(sBo, 2)))
        setexec(0xFFFFFFFF, 0xFFFFFFFF)
        stamp(6)
        if opt.get("ackstamp") and not w0extra:
            a("    s_waitcnt vmcnt(0)")
            stamp(1)
        V.release(m0)

    attention(SCHED["s"][0])
    finish()

    a("L_ROLE_WO:")
    mrole = V.mark()
    sD0 = sU
    vWo = V(4)

    def wo_setup():
        a("    s_lshr_b32 %s, %s, 3" % (s(sT1), s(sJ)))
        a("    s_lshl_b32 %s, %s, 3" % (s(sT1), s(sT1)))
        a("    s_add_u32 %s, %s, %s" % (s(sT1), s(sT1), s(sW)))
        a("    s_lshl_b32 %s, %s, 3" % (s(sD0), s(sT1)))
        a("    s_lshl_b32 %s, %s, 9" % (s(sT0), s(sH)))
        a("    s_add_u32 %s, %s, %s" % (s(sT0), s(sT0), s(sD0)))
        a("    s_lshl_b32 %s, %s, 10" % (s(sT0), s(sT0)))
        a("    s_and_b32 %s, %s, 7" % (s(sT1), s(sJ)))
        a("    s_lshl_b32 %s, %s, 7" % (s(sT1), s(sT1)))
        a("    s_add_u32 %s, %s, %s" % (s(sT0), s(sT0), s(sT1)))
        base(sB4, sWO, s(sT0))
        a("    v_lshlrev_b32 %s, 4, %s" % (v(vWo), v(vL7)))
        a("    v_lshl_or_b32 %s, %s, 10, %s" % (v(vWo), v(vL3), v(vWo)))
        for i in (1, 2, 3):
            a("    v_add_u32 %s, 0x%x, %s" % (v(vWo + i), i * (131072 - 1024), v(vWo)))
        a("    s_lshl_b32 %s, %s, 12" % (s(sFI), s(sW)))
        a("    s_add_u32 %s, %s, 0x%x" % (s(sFI), s(sFI), LG))

    def woload(i):
        def f():
            if i == 0:
                a("    s_mov_b32 m0, %s" % s(sFI))
            a("    global_load_lds_dwordx4 %s, %s offset:%d nt" % (v(vWo + i), s(sB4, 2), 1024 * i))
        return f
    vOo = V(4)
    vAtr, vAw, vArw = [V() for _ in range(3)]
    vO = V(16, 4)
    vWt = V(16, 4)
    vML = V(8, 4)
    vDt = V(16, 4)

    def wo_addresses():
        a("    s_lshl_b32 %s, %s, 11" % (s(sT1), s(sH)))
        a("    s_add_u32 %s, %s, 0x%x" % (s(sT1), s(sT1), S2ML))
        base(sB0, sWS, s(sT1))
        a("    s_lshl_b32 %s, %s, 16" % (s(sT1), s(sH)))
        a("    s_lshl_b32 %s, %s, 4" % (s(sT0), s(sD0)))
        a("    s_add_u32 %s, %s, %s" % (s(sT1), s(sT1), s(sT0)))
        a("    s_add_u32 %s, %s, 0x%x" % (s(sT1), s(sT1), S2O))
        base(sB5, sWS, s(sT1))
        a("    v_lshlrev_b32 %s, 4, %s" % (v(vT), v(vL7)))
        a("    v_lshl_or_b32 %s, %s, 11, %s" % (v(vOo), v(vL3), v(vT)))
        for i in (1, 2, 3):
            a("    v_add_u32 %s, 0x%x, %s" % (v(vOo + i), 16384 * i, v(vOo)))
        a("    s_lshl_b32 %s, %s, 12" % (s(sT0), s(sH)))
        a("    s_lshl_b32 %s, %s, 8" % (s(sT1), s(sJ)))
        a("    s_add_u32 %s, %s, %s" % (s(sT0), s(sT0), s(sT1)))
        a("    s_add_u32 %s, %s, 0x%x" % (s(sT0), s(sT0), S3))
        base(sB2, sWS, s(sT0))
        a("    v_lshrrev_b32 %s, 2, %s" % (v(vT), v(vJ)))
        a("    v_lshl_add_u32 %s, %s, 3, %s" % (v(vT), v(vG), v(vT)))
        a("    v_lshlrev_b32 %s, 7, %s" % (v(vT), v(vT)))
        a("    v_and_b32 %s, 3, v0" % v(vT + 1))
        a("    v_lshl_add_u32 %s, %s, 3, %s" % (v(vT), v(vT + 1), v(vT)))
        a("    v_add_u32 %s, %s, %s" % (v(vAtr), s(sFI), v(vT)))
        a("    v_lshlrev_b32 %s, 4, %s" % (v(vT), v(vL3)))
        a("    v_add_u32 %s, 0x%x, %s" % (v(vAw), LWT, v(vT)))
        a("    s_mul_i32 %s, %s, 272" % (s(sT0), s(sW)))
        a("    s_add_u32 %s, %s, 0x%x" % (s(sT0), s(sT0), LRED))
        a("    v_lshl_add_u32 %s, %s, 4, %s" % (v(vArw), v(vG), s(sT0)))
        per = 8 // P3
        a("    s_and_b32 %s, %s, %d" % (s(sT0), s(sH), per - 1))
        a("    s_lshl_b32 %s, %s, 2" % (s(sT0), s(sT0)))
        a("    s_lshr_b32 %s, %s, %d" % (s(sT1), s(sH), per.bit_length() - 1))
        a("    s_lshl_b32 %s, %s, 7" % (s(sT1), s(sT1)))
        a("    s_add_u32 %s, %s, %s" % (s(sT0), s(sT0), s(sT1)))
        a("    s_add_u32 %s, %s, 0x%x" % (s(sInb), s(sT0), SBELL))
        if opt.get("hn", 1) == 4:
            a("    s_lshr_b32 %s, %s, 2" % (s(sT0), s(sJ)))
            a("    s_add_u32 %s, %s, %s" % (s(sInb), s(sInb), s(sT0)))
    def bell():
        for i in range(2):
            a("    global_load_dwordx3 %s, %s, %s offset:%d sc1" % (v(vML + 4 * i, 3), v(vAo), s(sB0, 2), 1024 * i))

    def bellcheck():
        tagcheck([vML + 2, vML + 6], sT32, vT)
        a("    v_cmp_ne_u32 vcc, 0, %s" % v(vT))

    EB = opt.get("eb", 0)

    def earlybell():
        bell()
        return 2
    extra.update(A=wo_setup, B=wo_addresses, T0=woload(0), T1=woload(1), T2=woload(2), T3=woload(3))
    sw = SCHED["w"][opt.get("sw", 0)]
    rest = [i for i in range(4) if "T%d" % i not in sw.split()]
    WO2 = min(opt.get("wo2", 0), len(rest))
    late = rest[len(rest) - WO2:]
    rest = rest[:len(rest) - WO2]
    WO1 = min(opt.get("wo1", 0), len(rest))
    attention(sw, [woload(i) for i in rest[:len(rest) - WO1]], [woload(i) for i in rest[len(rest) - WO1:]],
              earlybell if EB else None)
    for i in late:
        woload(i)()
    if "B" not in sw.split():
        wo_addresses()

    def oloads():
        for i in range(4):
            a("    global_load_dwordx4 %s, %s, %s sc1" % (v(vO + 4 * i, 4), v(vOo + i), s(sB5, 2)))

    def wtr():
        for t in range(4):
            for hh in range(2):
                a("    ds_read_b64_tr_b16 %s, %s offset:%d" % (v(vW + 4 * t + 2 * hh, 2), v(vAtr), 512 * hh + 32 * t))
    a("    s_cmp_eq_u32 %s, 0" % s(sW))
    a("    s_cbranch_scc1 L_BELL1")
    S2M = opt.get("s2mode", 0)
    if opt.get("sb2", 0):
        a("    s_barrier")
        oloads()
        a("    s_waitcnt vmcnt(4)")
        wtr()
    else:
        a("    s_waitcnt vmcnt(%d)" % (1 if EB else 0))
        stamp(12)
        wtr()
        a("    s_barrier")
        oloads()
    a("    s_branch L_BELL2")
    a("L_BELL1:")
    if opt.get("rdy", 0):
        a("    v_and_b32 %s, 31, v0" % v(vT + 1))
        a("    v_lshlrev_b32 %s, 6, %s" % (v(vT + 1), v(vT + 1)))
        a("    v_add_u32 %s, 0x%x, %s" % (v(vT + 1), SRDY - S2ML, v(vT + 1)))

        def rdy():
            a("    global_load_dword %s, %s, %s sc1" % (v(vT + 2), v(vT + 1), s(sB0, 2)))

        def rdycheck():
            a("    v_cmp_ne_u32 vcc, %s, %s" % (s(sT32), v(vT + 2)))
        setexec(0xFFFFFFFF, 0)
        rdy()
        poll(rdy, rdycheck, 0, cnt=13)
        a("    s_barrier")
        bell()
        oloads()
        stamp(11)
        wtr()
        poll(bell, bellcheck, 4)
    elif opt.get("sb2", 0):
        a("    s_mul_i32 %s, %s, 0x01010101" % (s(sRep), s(sTag8)))
        a("    s_mov_b32 %s, %s" % (s(sRep + 1), s(sRep)))
        a("    s_and_b32 %s, %s, %d" % (s(sT0), s(sJ), R2 - 1))
        a("    s_lshl4_add_u32 %s, %s, %s" % (s(sT0), s(sH), s(sT0)))
        a("    s_lshl_b32 %s, %s, %d" % (s(sT0), s(sT0), RS2))
        a("    s_add_u32 %s, %s, 0x%x" % (s(sT0), s(sT0), SRDY))
        stamp(12)
        spoll(sWS, s(sT0), sRep, P2)
        if prof:
            a("    s_mov_b32 %s, %s" % (s(sPROF + 26), s(sSpin)))
        a("    s_barrier")
        bell()
        oloads()
        stamp(11)
        poll(bell, bellcheck, 4, post=wtr)
    elif EB:
        assert WO1 == 0 and not opt.get("mb")
        poll(bell, bellcheck, 1, cnt=13)
        a("    s_barrier")
        oloads()
        wtr()
        stamp(11)
    else:
        bell()
        poll(bell, bellcheck, 0, cnt=13)
        a("    s_barrier")
        oloads()
        wtr()
        stamp(11)
    a("    v_max_f32 %s, %s, %s" % (v(vT + 1), v(vML), v(vML + 4)))
    allred_hi(vT + 1, vT, "max")
    for i in range(2):
        a("    v_sub_f32 %s, %s, %s" % (v(vML + 4 * i), v(vML + 4 * i), v(vT + 1)))
    for i in range(2):
        a("    v_mul_f32 %s, 0x3fb8aa3b, %s" % (v(vML + 4 * i), v(vML + 4 * i)))
    for i in range(2):
        a("    v_exp_f32 %s, %s" % (v(vML + 4 * i), v(vML + 4 * i)))
    a("    v_lshlrev_b32 %s, 2, v0" % v(vT + 2))
    a("    v_mul_f32 %s, %s, %s" % (v(vT + 1), v(vML), v(vML + 1)))
    a("    v_fmac_f32 %s, %s, %s" % (v(vT + 1), v(vML + 4), v(vML + 5)))
    allred_hi(vT + 1, vT, "add")
    a("    v_rcp_f32 %s, %s" % (v(vT + 1), v(vT + 1)))
    a("    v_add_u32 %s, 0x%x, %s" % (v(vT + 2), LWT, v(vT + 2)))
    for i in range(2):
        a("    v_mul_f32 %s, %s, %s" % (v(vML + 4 * i), v(vML + 4 * i), v(vT + 1)))
    for i in range(2):
        a("    ds_write_b32 %s, %s offset:%d" % (v(vT + 2), v(vML + 4 * i), 256 * i))
    a("    s_waitcnt lgkmcnt(0)")
    a("L_BELL2:")
    WB = opt.get("wbar", 0)

    def wreads():
        a("    s_barrier")
        for i in range(4):
            a("    ds_read_b128 %s, %s offset:%d" % (v(vWt + 4 * i, 4), v(vAw), 128 * i))

    wreads()

    def oacc(i):
        for r in (0, 2):
            if i == 0:
                a("    v_pk_mul_f32 %s, %s, %s" % (v(vT + r, 2), v(vO + r, 2), v(vWt + r, 2)))
            else:
                a("    v_pk_fma_f32 %s, %s, %s, %s" % (v(vT + r, 2), v(vO + 4 * i + r, 2), v(vWt + 4 * i + r, 2), v(vT + r, 2)))

    HN = opt.get("hn", 1)

    def s3hint():
        if HN == 1:
            a("    s_or_b32 %s, %s, %s" % (s(sT0), s(sJ), s(sW)))
        else:
            a("    s_and_b32 %s, %s, 3" % (s(sT0), s(sJ)))
            a("    s_or_b32 %s, %s, %s" % (s(sT0), s(sT0), s(sW)))
        a("    s_cbranch_scc1 L_NOHINT")
        setexec((1 << R3) - 1, 0)
        a("    v_lshl_add_u32 %s, v0, %d, %s" % (v(vG0), RS3, s(sInb)))
        if HN == 1:
            a("    v_mov_b32 %s, %s" % (v(vQo), s(sT32)))
            a("    global_store_dword %s, %s, %s sc1" % (v(vG0), v(vQo), s(sWS, 2)))
        else:
            a("    global_store_byte %s, %s, %s sc1" % (v(vG0), v(vTag8), s(sWS, 2)))
        setexec(0xFFFFFFFF, 0xFFFFFFFF)
        a("L_NOHINT:")
    HP = opt.get("hp", 0)

    def obefore():
        if HP == 1:
            a("    s_waitcnt vmcnt(3)")
            s3hint()
        a("    s_waitcnt lgkmcnt(0)")
    gather(oloads, [vO + 4 * i for i in range(4)], sTag10, 0x3ff, oacc, cnt=14, before=obefore)
    stamp(7)
    if HP == 0:
        s3hint()
    treduce4(vT)
    a("    v_add_f32_dpp %s, %s, %s row_ror:8 %s" % (v(vT), v(vT), v(vT), DPP))
    rowpack(vT, vT + 4, 4)
    for t in range(4):
        a("    v_mfma_f32_16x16x32_bf16 %s, %s, %s, 0" % (v(vDt + 4 * t, 4), v(vW + 4 * t, 4), v(vT + 4, 4)))
    if HP == 2:
        s3hint()
    setexec(0x00010001, 0x00010001)
    for t in range(4):
        a("    ds_write_b128 %s, %s offset:%d" % (v(vArw), v(vDt + 4 * t, 4), 64 * t))
    setexec(0xFFFFFFFF, 0xFFFFFFFF)
    red_publish(8, vTag10, sM10, 0, sB2, "L_FIN", mid=s3hint if HP == 3 else None)
    if HP == 4:
        s3hint()
    stamp(8)
    a("L_FIN:")
    finish()
    V.release(mrole)

    a("L_ROLE_FFN:")
    vGo = V()
    vDo = V(2)

    def quarter_prep(n, pair, m0reg):
        a("    s_add_u32 %s, %s, %d" % (s(sT0), s(sU), 0 if opt.get("fdiag") == 4 else n))
        a("    s_and_b32 %s, %s, 1" % (s(sT1), s(sT0)))
        a("    s_bfe_u32 %s, %s, 0x10001" % (s(sT0), s(sT0)))
        a("    s_lshl_b32 %s, %s, 1" % (s(sT2), s(sW)))
        a("    s_add_u32 %s, %s, %s" % (s(sT2), s(sT2), s(sT1)))
        a("    s_lshl_b32 %s, %s, 4" % (s(sT3), s(sT0)))
        a("    s_add_u32 %s, %s, %s" % (s(sT3), s(sT3), s(sT2)))
        a("    s_lshl_b32 %s, %s, 10" % (s(sT3), s(sT3)))
        a("    s_add_u32 %s, %s, 0x%x" % (s(m0reg), s(sT3), LG))
        a("    s_mul_i32 %s, %s, %d" % (s(sT2), s(sT2), 32 * 3584))
        a("    s_lshl_b32 %s, %s, 5" % (s(sT1), s(sFI)))
        a("    s_add_u32 %s, %s, %s" % (s(sT2), s(sT2), s(sT1)))
        a("    s_cmp_eq_u32 %s, 0" % s(sT0))
        a("    s_cselect_b64 %s, %s, %s" % (s(pair, 2), s(sWG, 2), s(sWU, 2)))
        base(pair, pair, s(sT2))
    QB = [(sK, sPC), (sVp, sPC + 1), (sWQ, sMean), (sWO, sVar)]

    def quarter(n):
        a("    s_mov_b32 m0, %s" % s(QB[n][1]))
        a("    global_load_lds_dwordx4 %s, %s%s" % (v(vGo), s(QB[n][0], 2),
          {0: " nt", 1: "" if n == 0 else " nt", 2: "", 3: " nt" if n == 0 else "", 4: " nt" if n == 0 else " sc1"}[opt.get("qpol", 0)]))

    def ffn_setup():
        a("    s_and_b32 %s, %s, 3" % (s(sU), s(sJ)))
        a("    s_min_u32 %s, %s, 4" % (s(sT0), s(sH)))
        a("    s_mul_i32 %s, %s, 3" % (s(sT1), s(sH)))
        a("    s_add_u32 %s, %s, %s" % (s(sT0), s(sT0), s(sT1)))
        a("    s_lshl_b32 %s, %s, 2" % (s(sT0), s(sT0)))
        a("    s_add_u32 %s, %s, %s" % (s(sT0), s(sT0), s(sJ)))
        a("    s_sub_u32 %s, %s, 16" % (s(sFI), s(sT0)))
        a("    v_lshrrev_b32 %s, 1, v0" % v(vT))
        a("    v_mul_u32_u24 %s, 3584, %s" % (v(vT), v(vT)))
        a("    v_and_b32 %s, 1, v0" % v(vT + 1))
        a("    v_lshl_add_u32 %s, %s, 4, %s" % (v(vGo), v(vT + 1), v(vT)))
        for n in range(4):
            quarter_prep(n, *QB[n])
        a("    s_lshl_b32 %s, %s, 14" % (s(sT0), s(sFI)))
        a("    s_lshl_b32 %s, %s, 7" % (s(sT1), s(sW)))
        a("    s_add_u32 %s, %s, %s" % (s(sT0), s(sT0), s(sT1)))
        base(sB5, sWD, s(sT0))
        a("    s_lshl_b32 %s, %s, 11" % (s(sT1), s(sW)))
        a("    s_add_u32 %s, %s, 0x%x" % (s(sInb), s(sT1), LD))
        a("    v_lshlrev_b32 %s, 4, %s" % (v(vDo), v(vL7)))
        a("    v_lshl_or_b32 %s, %s, 10, %s" % (v(vDo), v(vL3), v(vDo)))
        a("    v_add_u32 %s, 0x1c00, %s" % (v(vDo + 1), v(vDo)))

    def dload(i):
        def f():
            a("    s_mov_b32 m0, %s" % s(sInb))
            a("    global_load_lds_dwordx4 %s, %s offset:%d nt" % (v(vDo + i), s(sB5, 2), 1024 * i))
        return f
    def qhalf(lo, hi):
        def f():
            setexec(lo, hi)
            quarter(0)
            setexec(0xFFFFFFFF, 0xFFFFFFFF)
        return f
    L = dict(D0=dload(0), D1=dload(1), Q0=lambda: quarter(0), Q1=lambda: quarter(1), Q2=lambda: quarter(2), Q3=lambda: quarter(3))
    L2 = dict(Qa=qhalf(0xFFFFFFFF, 0), Qb=qhalf(0, 0xFFFFFFFF), Qc=qhalf(0xFFFF, 0), Qd=qhalf(0xFFFF0000, 0xFFFFFFFF))
    extra.update(A=ffn_setup, **L)
    extra.update(L2)
    sf = SCHED["f"][opt.get("sf", 0)]
    FT = [("Q0", "Q1 Q2 Q3 b D0 D1"), ("Q0", "Q1 Q2 Q3"), ("", "Q0 b Q1 Q2 Q3"), ("D0 D1", "Q0 b Q1 Q2 Q3"),
          ("", "Q0 D1 b Q1 Q2 Q3"), ("", "Q0 D0 D1 b Q1 Q2 Q3"), ("D1", "Q0 b Q1 Q2 Q3"),
          ("Qa", "Qb b Q1 Q2 Q3"), ("Qc", "Qd b Q1 Q2 Q3"), ("Qa", "Qb D0 D1 b Q1 Q2 Q3"), ("Qa", "Qb b Q1 Q2 Q3 b D0 D1"),
          ("Qb", "D0 D1 b Q1 Q2 Q3"), ("Qb", "Q1 Q2 Q3 b D0 D1")][opt.get("ft", 0)]
    allf = (sf + " " + FT[0] + " " + FT[1]).replace("Qb", "Q0").replace("Qd", "Q0").split()
    assert sorted(t for t in allf if t in L) == sorted(L), allf
    L.update(L2)
    attention(sf, [L[t] for t in FT[0].split()])
    if opt.get("fack", 0):
        a("    s_waitcnt vmcnt(0)")
    a("    s_barrier")
    for t in FT[1].split():
        if t == "b":
            a("    s_barrier")
        else:
            L[t]()
    a("    s_lshl_b32 %s, %s, 11" % (s(sT1), s(sW)))
    stamp(11)
    vXc = V()
    vHs = V(16, 4)
    vHo = V(4)
    vWg = V(16, 4)
    vWd = V(8, 4)
    P4 = opt.get("p4", 0)
    vWd2 = V(8, 4)
    vDv = V(4, 4)
    vAy2 = V()
    vHb = V(8, 4)
    vDu = V(4, 4)
    vCs = V(4, 4)
    vMt = V(4)
    vB = V(8, 4)
    vAgw, vAgr, vAsw, vAsr, vAy, vHr = [V() for _ in range(6)]
    a("    s_lshl_b32 %s, %s, 7" % (s(sT0), s(sW)))
    base(sB0, sX, s(sT0))
    a("    v_lshl_add_u32 %s, %s, 2, %s" % (v(vT + 2), v(vJ), v(vG)))
    a("    v_lshlrev_b32 %s, 1, %s" % (v(vT + 2), v(vT + 2)))
    a("    global_load_ushort %s, %s, %s" % (v(vXc), v(vT + 2), s(sB0, 2)))
    a("    global_load_ushort %s, %s, %s" % (v(vHr), v(vT + 2), s(sOUT, 2)))
    a("    s_add_u32 %s, %s, 0x%x" % (s(sT2), s(sT0), LGP))
    a("    v_lshl_add_u32 %s, %s, 4, %s" % (v(vAgw), v(vG), s(sT2)))
    a("    v_lshrrev_b32 %s, 3, %s" % (v(vT + 2), v(vJ)))
    a("    v_lshl_add_u32 %s, %s, 1, %s" % (v(vT + 2), v(vL7), v(vT + 2)))
    a("    v_lshlrev_b32 %s, 6, %s" % (v(vT + 2), v(vT + 2)))
    a("    v_lshl_add_u32 %s, %s, 4, %s" % (v(vT + 2), v(vG), v(vT + 2)))
    a("    v_add_u32 %s, 0x%x, %s" % (v(vAgr), LGP, v(vT + 2)))
    a("    s_lshl_b32 %s, %s, 3" % (s(sT2), s(sW)))
    a("    s_add_u32 %s, %s, 0x%x" % (s(sT2), s(sT2), LST))
    a("    v_mov_b32 %s, %s" % (v(vAsw), s(sT2)))
    a("    v_lshlrev_b32 %s, 3, %s" % (v(vT + 2), v(vL7)))
    a("    v_add_u32 %s, 0x%x, %s" % (v(vAsr), LST, v(vT + 2)))
    for t in range(4):
        a("    v_cmp_eq_u32 vcc, %d, %s" % (t, v(vJ)))
        a("    v_cndmask_b32 %s, 0, -1, vcc" % v(vMt + t))
    a("    s_lshl_b32 %s, %s, 8" % (s(sT0), s(sW)))
    a("    s_add_u32 %s, %s, 0x%x" % (s(sT0), s(sT0), S3))
    base(sB1, sWS, s(sT0))
    a("    v_lshlrev_b32 %s, 4, %s" % (v(vT + 2), v(vJ)))
    a("    v_lshl_or_b32 %s, %s, 11, %s" % (v(vHo), v(vG), v(vT + 2)))
    for i in (1, 2, 3):
        a("    v_add_u32 %s, 0x%x, %s" % (v(vHo + i), 8192 * i, v(vHo)))
    a("    s_mul_i32 %s, %s, %d" % (s(sT0), s(sW), 4 * 7168))
    a("    s_lshl_b32 %s, %s, 6" % (s(sT2), s(sFI)))
    a("    s_add_u32 %s, %s, %s" % (s(sT0), s(sT0), s(sT2)))
    a("    s_add_u32 %s, %s, 0x%x" % (s(sT0), s(sT0), S4))
    base(sB2, sWS, s(sT0))
    a("    v_lshrrev_b32 %s, 2, %s" % (v(vT + 2), v(vJ)))
    a("    v_mul_u32_u24 %s, 7168, %s" % (v(vT + 2), v(vT + 2)))
    a("    v_and_b32 %s, 3, v0" % v(vT + 3))
    a("    v_lshl_add_u32 %s, %s, 4, %s" % (v(vAy), v(vT + 3), v(vT + 2)))
    a("    v_lshrrev_b32 %s, 2, %s" % (v(vT + 2), v(vJ)))
    a("    v_and_b32 %s, 3, v0" % v(vT + 3))
    a("    v_lshl_add_u32 %s, %s, 2, %s" % (v(vT + 4), v(vT + 2), v(vG)))
    a("    v_lshlrev_b32 %s, 5, %s" % (v(vT + 4), v(vT + 4)))
    a("    v_lshl_add_u32 %s, %s, 3, %s" % (v(vT + 4), v(vT + 3), v(vT + 4)))
    a("    s_add_u32 %s, %s, 0x%x" % (s(sT2), s(sT1), LG))
    a("    v_add_u32 %s, %s, %s" % (v(vT + 4), s(sT2), v(vT + 4)))
    a("    v_lshl_add_u32 %s, %s, 2, %s" % (v(vT + 5), v(vG), v(vT + 2)))
    a("    v_lshlrev_b32 %s, 7, %s" % (v(vT + 5), v(vT + 5)))
    a("    v_lshl_add_u32 %s, %s, 3, %s" % (v(vT + 5), v(vT + 3), v(vT + 5)))
    a("    s_add_u32 %s, %s, 0x%x" % (s(sT2), s(sT1), LD))
    a("    v_add_u32 %s, %s, %s" % (v(vT + 5), s(sT2), v(vT + 5)))
    for i in range(4):
        a("    v_mov_b32 %s, 0x3f803f80" % v(vHb + i))

    def hloadsf():
        for i in range(4):
            a("    global_load_dwordx4 %s, %s, %s sc1" % (v(vHs + 4 * i, 4), v(vHo + i), s(sB1, 2)))
    S3B = opt.get("s3bell", 1)
    PG = opt.get("pg", 0)
    if PG:
        sDone, sNew = sU + 0, sMean
        sDone = sVar
        a("    s_mov_b32 %s, %s" % (s(sRep), s(sT32)))
        a("    s_mov_b32 %s, %s" % (s(sRep + 1), s(sRep)))
        a("    s_and_b32 %s, %s, %d" % (s(sT0), s(sFI), R3 - 1))
        a("    s_lshl_b32 %s, %s, %d" % (s(sT0), s(sT0), RS3))
        a("    s_add_u32 %s, %s, 0x%x" % (s(sT0), s(sT0), SBELL))
        a("    v_mov_b32 %s, 0x%x" % (v(vT + 1), LRM))
        a("    s_mov_b32 %s, 0" % s(sDone))
        a("    s_mov_b32 %s, 0" % s(sSpin))
        sPrev = sPC
        a("    s_mov_b32 %s, 0" % s(sPrev))
        a("L_PG:")
        a("    s_add_u32 %s, %s, 1" % (s(sSpin), s(sSpin)))
        a("    v_xor_b32 %s, 4, %s" % (v(vT + 1), v(vT + 1)))
        a("    s_cmp_lg_u32 %s, 0" % s(sW))
        a("    s_cbranch_scc1 L_PGR")
        a("    s_load_dwordx8 %s, %s, %s glc" % (s(sFl, 8), s(sWS, 2), s(sT0)))
        a("    s_mov_b32 %s, 0" % s(sNew))
        a("    s_waitcnt lgkmcnt(0)")
        for k in range(4):
            a("    s_cmp_eq_u64 %s, %s" % (s(sFl + 2 * k, 2), s(sRep, 2)))
            a("    s_cselect_b32 %s, %d, 0" % (s(sT1), 1 << k))
            a("    s_or_b32 %s, %s, %s" % (s(sNew), s(sNew), s(sT1)))
        a("    s_cmp_ge_u32 %s, 0x%x" % (s(sSpin), SPIN_LIMIT))
        a("    s_cselect_b32 %s, 15, %s" % (s(sNew), s(sNew)))
        if PG >= 2:
            a("    s_cmp_eq_u32 %s, 15" % s(sNew))
            a("    s_cselect_b32 %s, 15, %s" % (s(sT1), s(sPrev)))
            a("    s_mov_b32 %s, %s" % (s(sPrev), s(sNew)))
            a("    s_mov_b32 %s, %s" % (s(sNew), s(sT1)))
        a("    v_mov_b32 %s, %s" % (v(vT + 2), s(sNew)))
        a("    ds_write_b32 %s, %s" % (v(vT + 1), v(vT + 2)))
        a("    s_waitcnt lgkmcnt(0)")
        a("    s_barrier")
        a("    s_branch L_PGI")
        a("L_PGR:")
        a("    s_barrier")
        a("    ds_read_b32 %s, %s" % (v(vT + 2), v(vT + 1)))
        a("    s_waitcnt lgkmcnt(0)")
        a("    v_readfirstlane_b32 %s, %s" % (s(sNew), v(vT + 2)))
        a("L_PGI:")
        a("    s_andn2_b32 %s, %s, %s" % (s(sNew), s(sNew), s(sDone)))
        a("    s_cbranch_scc0 L_PG")
        a("    s_or_b32 %s, %s, %s" % (s(sDone), s(sDone), s(sNew)))
        for i in range(4):
            a("    s_bitcmp1_b32 %s, %d" % (s(sNew), i))
            a("    s_cbranch_scc0 L_PGS%d" % i)
            a("    global_load_dwordx4 %s, %s, %s sc1" % (v(vHs + 4 * i, 4), v(vHo + i), s(sB1, 2)))
            a("L_PGS%d:" % i)
        a("    s_cmp_lg_u32 %s, 15" % s(sDone))
        a("    s_cbranch_scc1 L_PG")
    elif opt.get("sb3", 0):
        a("    s_cmp_lg_u32 %s, 0" % s(sW))
        a("    s_cbranch_scc1 L_HINT")
        if opt.get("hn", 1) == 1:
            a("    s_mov_b32 %s, %s" % (s(sRep), s(sT32)))
        else:
            a("    s_mul_i32 %s, %s, 0x01010101" % (s(sRep), s(sTag8)))
        a("    s_mov_b32 %s, %s" % (s(sRep + 1), s(sRep)))
        a("    s_and_b32 %s, %s, %d" % (s(sT0), s(sFI), R3 - 1))
        a("    s_lshl_b32 %s, %s, %d" % (s(sT0), s(sT0), RS3))
        a("    s_add_u32 %s, %s, 0x%x" % (s(sT0), s(sT0), SBELL))
        spoll(sWS, s(sT0), sRep, P3, True)
        a("L_HINT:")
        a("    s_barrier")
    elif S3B:
        a("    s_cmp_lg_u32 %s, 0" % s(sW))
        a("    s_cbranch_scc1 L_HINT")
        a("    v_lshlrev_b32 %s, 7, %s" % (v(vT + 1), v(vL7)))
        a("    v_add_u32 %s, 0x%x, %s" % (v(vT + 1), SBELL, v(vT + 1)))

        def hint():
            a("    global_load_dword %s, %s, %s sc1" % (v(vT + 2), v(vT + 1), s(sWS, 2)))

        def hintcheck():
            a("    v_cmp_ne_u32 vcc, %s, %s" % (s(sT32), v(vT + 2)))
        setexec(0xFF, 0)
        hint()
        poll(hint, hintcheck, 0, cnt=12)
        a("L_HINT:")
        a("    s_barrier")
    if not PG:
        hloadsf()
    a("    s_waitcnt vmcnt(4)")
    stamp(7)
    for mat in range(2):
        for st in range(2):
            for hh in range(2):
                a("    ds_read_b64_tr_b16 %s, %s offset:%d" %
                  (v(vWg + 8 * mat + 4 * st + 2 * hh, 2), v(vT + 4), 16384 * mat + 1024 * st + 512 * hh))
    for t in range(4):
        a("    ds_read_b64_tr_b16 %s, %s offset:%d" % (v(vWd + 2 * t, 2), v(vT + 5), 32 * t))
    a("    v_lshlrev_b32 %s, 16, %s" % (v(vXc), v(vXc)))
    a("    s_waitcnt lgkmcnt(0)")

    def gate_up(b0, b1):
        a("    v_mfma_f32_16x16x32_bf16 %s, %s, %s, 0" % (v(vD, 4), v(vWg, 4), v(b0, 4)))
        a("    v_mfma_f32_16x16x32_bf16 %s, %s, %s, 0" % (v(vDu, 4), v(vWg + 8, 4), v(b0, 4)))
        a("    v_mfma_f32_16x16x32_bf16 %s, %s, %s, %s" % (v(vD, 4), v(vWg + 4, 4), v(b1, 4), v(vD, 4)))
        a("    v_mfma_f32_16x16x32_bf16 %s, %s, %s, %s" % (v(vDu, 4), v(vWg + 12, 4), v(b1, 4), v(vDu, 4)))
    gate_up(vHb, vHb)
    setexec(0x00010001, 0x00010001)
    a("    ds_write_b128 %s, %s offset:%d" % (v(vAgw), v(vD, 4), LCS - LGP))
    a("    ds_write_b128 %s, %s offset:%d" % (v(vAgw), v(vDu, 4), LCS - LGP + 64))
    setexec(0xFFFFFFFF, 0xFFFFFFFF)
    a("    s_waitcnt lgkmcnt(0)")
    a("    s_barrier")
    a("    ds_read_b128 %s, %s offset:%d" % (v(vCs, 4), v(vAgr), LCS - LGP))
    if P4:
        for t in range(4):
            a("    ds_read_b64_tr_b16 %s, %s offset:%d" % (v(vWd2 + 2 * t, 2), v(vT + 5), 8192 + 32 * t))
        a("    v_add_u32 %s, 0x%x, %s" % (v(vAy2), 16 * 7168, v(vAy)))
    a("    s_waitcnt lgkmcnt(0)")
    for pat in ("quad_perm:[1,0,3,2]", "quad_perm:[2,3,0,1]", "row_half_mirror"):
        for r in range(4):
            a("    v_add_f32_dpp %s, %s, %s %s %s" % (v(vCs + r), v(vCs + r), v(vCs + r), pat, DPP))

    vHa = V(4, 4)

    def sumacc(dst, src):
        def f(i):
            for r in (0, 2):
                if i == 1:
                    a("    v_pk_add_f32 %s, %s, %s" % (v(dst + r, 2), v(src + r, 2), v(src + 4 + r, 2)))
                elif i > 1:
                    a("    v_pk_add_f32 %s, %s, %s" % (v(dst + r, 2), v(dst + r, 2), v(src + 4 * i + r, 2)))
        return f
    gather(hloadsf, [vHs + 4 * i for i in range(4)], sTag10, 0x3ff, sumacc(vHa, vHs), cnt=13, ordered=not PG)
    stamp(8)
    vHs = vHa
    treduce4(vHs)
    bf16r(vHs, vHs)
    a("    v_add_f32 %s, %s, %s" % (v(vHs), v(vHs), v(vXc)))
    rowpack(vHs, vHb, 8)
    bf16r(vHr, vHs)
    gate_up(vHb, vHb + 4)
    a("    v_mul_f32 %s, %s, %s" % (v(vT + 1), v(vHr), v(vHr)))
    a("    v_add_f32_dpp %s, %s, %s row_ror:1 %s" % (v(vT), v(vHr), v(vHr), DPP))
    a("    v_add_f32_dpp %s, %s, %s row_ror:1 %s" % (v(vT + 1), v(vT + 1), v(vT + 1), DPP))
    for sh in (2, 4, 8):
        for r in range(2):
            a("    v_add_f32_dpp %s, %s, %s row_ror:%d %s" % (v(vT + r), v(vT + r), v(vT + r), sh, DPP))
    for pat in ("row_bcast:15 row_mask:0xa", "row_bcast:31 row_mask:0xc"):
        for r in range(2):
            a("    v_add_f32_dpp %s, %s, %s %s bank_mask:0xf" % (v(vT + r), v(vT + r), v(vT + r), pat))
    setexec(0, 0x80000000)
    a("    ds_write_b64 %s, %s" % (v(vAsw), v(vT, 2)))
    setexec(0x00010001, 0x00010001)
    a("    ds_write_b128 %s, %s" % (v(vAgw), v(vD, 4)))
    a("    ds_write_b128 %s, %s offset:64" % (v(vAgw), v(vDu, 4)))
    setexec(0xFFFFFFFF, 0xFFFFFFFF)
    a("    s_waitcnt lgkmcnt(0)")
    a("    s_barrier")
    if P4:
        a("    s_cmp_ge_u32 %s, 4" % s(sW))
        a("    s_cbranch_scc1 L_REST")
    a("    ds_read_b64 %s, %s" % (v(vT, 2), v(vAsr)))
    a("    ds_read_b128 %s, %s" % (v(vD, 4), v(vAgr)))
    a("    s_waitcnt lgkmcnt(0)")
    for pat in ("quad_perm:[1,0,3,2]", "quad_perm:[2,3,0,1]", "row_half_mirror"):
        for r in (vT, vT + 1, vD, vD + 1, vD + 2, vD + 3):
            a("    v_add_f32_dpp %s, %s, %s %s %s" % (v(r), v(r), v(r), pat, DPP))
    a("    v_mul_f32 %s, 0x3b000000, %s" % (v(vT), v(vT)))
    bf16r(vT + 2, vT)
    for r in (0, 2):
        a("    v_pk_fma_f32 %s, %s, %s, %s op_sel_hi:[0,1,1] neg_lo:[1,0,0] neg_hi:[1,0,0]" %
          (v(vD + r, 2), v(vT + 2, 2), v(vCs + r, 2), v(vD + r, 2)))
    a("    v_mul_f32 %s, 0x3b000000, %s" % (v(vT + 1), v(vT + 1)))
    a("    v_fma_f32 %s, -%s, %s, %s" % (v(vT + 1), v(vT), v(vT), v(vT + 1)))
    for r in range(4):
        a("    v_mul_f32_dpp %s, %s, %s row_ror:8 %s" % (v(vT + 4 + r), v(vD + r), v(vD + r), DPP))
    a("    v_cvt_pk_bf16_f32 %s, %s, %s" % (v(vT + 2), v(vT + 4), v(vT + 5)))
    a("    v_cvt_pk_bf16_f32 %s, %s, %s" % (v(vT + 3), v(vT + 6), v(vT + 7)))
    for t in range(4):
        a("    v_and_b32 %s, %s, %s" % (v(vB + 2 * t), v(vT + 2), v(vMt + t)))
        a("    v_and_b32 %s, %s, %s" % (v(vB + 2 * t + 1), v(vT + 3), v(vMt + t)))
        if t:
            a("    v_mfma_f32_16x16x16_bf16 %s, %s, %s, %s" %
              (v(vDu, 4), v(vB + 2 * t - 2, 2), v(vWd + 2 * t - 2, 2), "0" if t == 1 else v(vDu, 4)))
            if P4:
                a("    v_mfma_f32_16x16x16_bf16 %s, %s, %s, %s" %
                  (v(vDv, 4), v(vB + 2 * t - 2, 2), v(vWd2 + 2 * t - 2, 2), "0" if t == 1 else v(vDv, 4)))
    a("    v_max_f32 %s, 0, %s" % (v(vT + 1), v(vT + 1)))
    a("    v_mfma_f32_16x16x16_bf16 %s, %s, %s, %s" % (v(vDu, 4), v(vB + 6, 2), v(vWd + 6, 2), v(vDu, 4)))
    if P4:
        a("    v_mfma_f32_16x16x16_bf16 %s, %s, %s, %s" % (v(vDv, 4), v(vB + 6, 2), v(vWd2 + 6, 2), v(vDv, 4)))
    bf16r(vT + 1, vT + 1)
    a("    v_add_f32 %s, 0x3727c5ac, %s" % (v(vT + 1), v(vT + 1)))
    bf16r(vT + 1, vT + 1)
    a("    v_sqrt_f32 %s, %s" % (v(vT + 1), v(vT + 1)))
    bf16r(vT + 1, vT + 1)
    a("    v_mul_f32 %s, %s, %s" % (v(vT + 1), v(vT + 1), v(vT + 1)))
    a("    v_rcp_f32 %s, %s" % (v(vT), v(vT + 1)))
    setexec(0xFFFF, 0)
    for r in (0, 2):
        a("    v_pk_mul_f32 %s, %s, %s op_sel_hi:[1,0]" % (v(vDu + r, 2), v(vDu + r, 2), v(vT, 2)))
    for i in range(4):
        a("    v_and_or_b32 %s, %s, %s, %s" % (v(vDu + i), v(vDu + i), s(sM10), v(vTag10)))
    a("    global_store_dwordx4 %s, %s, %s sc1" % (v(vAy), v(vDu, 4), s(sB2, 2)))
    if P4:
        for r in (0, 2):
            a("    v_pk_mul_f32 %s, %s, %s op_sel_hi:[1,0]" % (v(vDv + r, 2), v(vDv + r, 2), v(vT, 2)))
        for i in range(4):
            a("    v_and_or_b32 %s, %s, %s, %s" % (v(vDv + i), v(vDv + i), s(sM10), v(vTag10)))
        a("    global_store_dwordx4 %s, %s, %s sc1" % (v(vAy2), v(vDv, 4), s(sB2, 2)))
    stamp(9)
    if P4:
        a("L_REST:")
        a("    s_cmp_ge_u32 %s, 32" % s(sFI))
        a("    s_cbranch_scc1 L_FIN2")
    a("    s_lshr_b32 %s, %s, 2" % (s(sT0), s(sFI)))
    a("    s_cmp_lg_u32 %s, %s" % (s(sT0), s(sW)))
    a("    s_cbranch_scc1 %s" % ("L_ACK" if P4 else "L_FIN2"))
    setexec(0xFFFFFFFF, 0xFFFFFFFF)
    vY = V(28, 4)
    vCo = V()
    a("    v_and_b32 %s, 3, v0" % v(vT))
    a("    v_lshlrev_b32 %s, 2, %s" % (v(vT + 1), v(vG)))
    a("    v_lshl_add_u32 %s, %s, 4, %s" % (v(vT + 1), v(vT), v(vT + 1)))
    a("    v_add_u32 %s, %s, %s" % (v(vT + 1), s(sU), v(vT + 1)))
    a("    v_lshlrev_b32 %s, 2, %s" % (v(vT + 1), v(vT + 1)))
    a("    ds_bpermute_b32 %s, %s, %s" % (v(vHr), v(vT + 1), v(vHr)))
    a("    v_lshl_add_u32 %s, %s, 4, %s" % (v(vCo), v(vG), v(vT)))
    a("    v_lshlrev_b32 %s, 1, %s" % (v(vCo), v(vCo)))
    a("    s_lshl_b32 %s, %s, 7" % (s(sT0), s(sW)))
    a("    s_lshl_b32 %s, %s, 3" % (s(sT1), s(sU)))
    a("    s_add_u32 %s, %s, %s" % (s(sT0), s(sT0), s(sT1)))
    base(sB3, sOUT, s(sT0))
    if opt.get("odiag"):
        a("    s_lshl_b32 %s, %s, 12" % (s(sT0), s(sFI)))
        a("    s_add_u32 %s, %s, 0x180000" % (s(sT0), s(sT0)))
        base(sB3, sWS, s(sT0))
        if opt["odiag"] == 2:
            a("    v_lshlrev_b32 %s, 4, %s" % (v(vCo), v(vCo)))
    a("    s_mul_i32 %s, %s, 7168" % (s(sT1), s(sFI)))
    a("    s_add_u32 %s, %s, 0x%x" % (s(sT1), s(sT1), S4 + 3072))
    base(sB2, sWS, s(sT1))

    def yloads():
        for n in range(7):
            a("    global_load_dwordx4 %s, %s, %s offset:%d sc1" % (v(vY + 4 * n, 4), v(vAo), s(sB2, 2), 1024 * n - 3072))

    if opt.get("ackwait", 1):
        a("    s_waitcnt vmcnt(0)")
    if P4:
        a("    s_barrier")
    yloads()
    gather(yloads, [vY + 4 * i for i in range(7)], sTag10, 0x3ff, sumacc(vHa, vY), cnt=15)
    if not opt.get("astamps"):
        stamp(14)
    vY = vHa
    treduce4(vY)
    for sh in (4, 8):
        a("    v_add_f32_dpp %s, %s, %s row_ror:%d %s" % (v(vY), v(vY), v(vY), sh, DPP))
    bf16r(vY, vY)
    a("    s_waitcnt lgkmcnt(0)")
    a("    v_add_f32 %s, %s, %s" % (v(vY), v(vY), v(vHr)))
    a("    v_cvt_pk_bf16_f32 %s, %s, %s" % (v(vY), v(vY), v(vY)))
    setexec(0x000F000F, 0x000F000F)
    a("    global_store_short %s, %s, %s%s" % (v(vCo), v(vY), s(sB3, 2), ["", " sc1", " nt", " sc0 sc1"][opt.get("ost", 0)]))
    a("    s_cmp_lg_u32 %s, 0" % s(sFI))
    a("    s_cbranch_scc1 L_FIN2")
    setexec(1, 0)
    a("    v_mov_b32 %s, 0" % v(vT))
    a("    v_mov_b32 %s, %s" % (v(vT + 1), s(sT32)))
    a("    global_store_dword %s, %s, %s sc1" % (v(vT), v(vT + 1), s(sWS, 2)))
    if opt.get("diagspin"):
        a("    s_waitcnt lgkmcnt(0)")
        if "diagph" in opt:
            a("    s_sub_u32 s90, s90, s96")
            a("    s_lshl_b32 s90, s90, 2")
            a("    s_add_u32 s96, s96, s90")
        a("    s_add_u32 s96, s96, %d" % opt["diagspin"])
        a("L_DIAG:")
        a("    s_memrealtime s[92:93]")
        a("    s_waitcnt lgkmcnt(0)")
        a("    s_sub_u32 s92, s92, s96")
        a("    s_cmp_lt_i32 s92, 0")
        a("    s_cbranch_scc1 L_DIAG")
    a("L_FIN2:")
    finish()
    if P4:
        a("L_ACK:")
        a("    s_waitcnt vmcnt(0)")
        a("    s_barrier")
        finish()

    if prof:
        a("L_PROF:")
        a("    s_memrealtime %s" % s(sPROF + 20, 2))
        a("    s_mov_b64 exec, 1")
        a("    s_lshl_b32 %s, s2, 3" % s(sT0))
        a("    s_add_u32 %s, %s, %s" % (s(sT0), s(sT0), s(sW)))
        a("    s_lshl_b32 %s, %s, 7" % (s(sT0), s(sT0)))
        a("    s_add_u32 %s, %s, 0x%x" % (s(sT0), s(sT0), PROFB))
        base(sB0, sWS, s(sT0))
        a("    v_mov_b32 v1, 0")
        a("    s_waitcnt lgkmcnt(0)")
        for i in range(16):
            a("    v_mov_b32 v2, %s" % s(sPROF + 2 * i))
            if prof == 2:
                a("    global_atomic_umax v1, v2, %s offset:%d sc1" % (s(sDBG, 2), 4 * i))
            else:
                a("    global_store_dword v1, v2, %s offset:%d" % (s(sB0, 2), 4 * i))
        if prof == 2:
            a("    s_not_b32 %s, %s" % (s(sT0), s(sPROF)))
            a("    v_mov_b32 v2, %s" % s(sT0))
            a("    global_atomic_umax v1, v2, %s offset:48 sc1" % s(sDBG, 2))
        a("    s_endpgm")
    a("L_END:")
    a("    s_endpgm")
    a("L_CODE_END:")
    nv = (V.hi + 7) // 8 * 8
    a('.section .rodata,"a"')
    a(".p2align 6")
    a(".amdhsa_kernel %s_kernel" % NAME)
    a("  .amdhsa_next_free_vgpr %d" % nv)
    a("  .amdhsa_next_free_sgpr 102")
    a("  .amdhsa_accum_offset %d" % nv)
    a("  .amdhsa_group_segment_fixed_size 0")
    a("  .amdhsa_kernarg_size 96")
    a("  .amdhsa_user_sgpr_count 2")
    a("  .amdhsa_user_sgpr_kernarg_segment_ptr 1")
    a("  .amdhsa_system_sgpr_workgroup_id_x 1")
    a("  .amdhsa_float_denorm_mode_32 3")
    a(".end_amdhsa_kernel")
    return out + a.finalize()


if __name__ == "__main__":
    import argparse
    ap = argparse.ArgumentParser()
    ap.add_argument("-o", default=None)
    ap.add_argument("--prof", type=int, default=0)
    ap.add_argument("--opt", default="")
    args = ap.parse_args()
    opt = {}
    for kv in args.opt.split(","):
        if kv:
            k, x = kv.split("=")
            opt[k] = int(x)
    txt = gen(args.prof, opt)
    path = args.o or os.path.join(os.path.dirname(os.path.abspath(__file__)), "..", "cdna_kernels", NAME + ".s")
    open(path, "w").write(txt)
    print("wrote", path, len(txt.split("\n")), "lines")
```

```python
import sys
import os
sys.path.insert(0, os.path.dirname(os.path.abspath(__file__)))
from asmlib import Asm

NAME = "sequential_preLN__sliding_block_cached__glu_gated_bilinear__decode"

EPOCH = 0
S1 = 0x20000
S2ML = 0x11000
S3 = 0x40000
S4 = 0xF8000
SBELL = 0x160000
SRDY = 0x138000
SQF = 0x5C000
S2O = 0x60000
PROFB = 0x200000

LK = 0
LV = 32768
LG = 65536
LD = 98304
LRED = 114688
LQ = 119040
LMX = 120128
LLS = 120256
LP = 120768
LH = 121856
LGP = 122880
LCS = 123904
LST = 124928
LWT = 124992
LEP = 125504
LRM = 125512
LDS_BYTES = 125568

DPP = "row_mask:0xf bank_mask:0xf"
SPIN_LIMIT = 1 << 18


class Regs:
    def __init__(self, start):
        self.n = start
        self.hi = start

    def __call__(self, cnt=1, align=None):
        if align is None:
            align = 2 if cnt > 1 else 1
        self.n = (self.n + align - 1) // align * align
        b = self.n
        self.n += cnt
        self.hi = max(self.hi, self.n)
        return b

    def mark(self):
        return self.n

    def release(self, m):
        self.n = m


def v(b, n=1):
    return "v%d" % b if n == 1 else "v[%d:%d]" % (b, b + n - 1)


def s(b, n=1):
    return "s%d" % b if n == 1 else "s[%d:%d]" % (b, b + n - 1)


def gen(prof=False, opt=None):
    opt = dict(opt or {})
    for k_, x_ in dict(bx=0, qpol=4, win=3, mb=0, sw=6, sf=1, ft=7, t0p=2, fack=0, ost=1, amx=0, pl=0, sb2=2, sb3=1, rs2=10).items():
        opt.setdefault(k_, x_)
    a = Asm()
    V = Regs(1)
    sX, sK, sVp, sWQ, sWO, sBX, sWG, sWU = 4, 6, 8, 10, 12, 14, 16, 18
    sWD, sOUT, sDBG, sWS = 20, 22, 24, 26
    sE, sW, sH, sJ = 28, 29, 30, 31
    sT0, sT1, sT2, sT3 = 32, 33, 34, 35
    sB0, sB1, sB2, sB3 = 36, 38, 40, 42
    sM8, sM10, sTag8, sTag10, sT32 = 44, 45, 46, 47, 48
    sSpin, sTmp, sDummy = 49, 50, 51
    sPC = 52
    sB4 = 54
    sU, sFI = 56, 57
    sMean, sVar = 58, 59
    sBo, sBml = 60, 62
    sBfl = 94
    sB5, sInb = 98, 100
    sFl = 4
    sRep = 92
    sScale = 14
    sPROF = 64
    uid = [0]
    ST1, ST2, ST3 = opt.get("st1", 2048), opt.get("st2", 2048), opt.get("st3", 2048)
    XS = ["", " nt", " sc0"][opt.get("xsk", 0)] if opt.get("xs", 0) & 1 else " sc1"
    R2, R3 = opt.get("r2", 4), opt.get("r3", 16)
    RS2, RS3 = opt.get("rs2", 8), opt.get("rs3", 7)
    P2, P3 = opt.get("p2", 2), opt.get("p3", 1)
    vm = []

    def waitfor(name):
        n = len(vm) - 1 - vm.index(name)
        a("    s_waitcnt vmcnt(%d)" % n)

    STM = opt.get("stamps", 0xFFFF)

    def stamp(i):
        if opt.get("diagph") == i:
            a("    s_memrealtime s[90:91]")
        if prof and (STM >> i) & 1:
            a("    s_memrealtime %s" % s(sPROF + 2 * i, 2))

    def setexec(lo, hi):
        if lo == hi == 0xFFFFFFFF:
            a("    s_mov_b64 exec, -1")
        else:
            a("    s_mov_b32 exec_lo, 0x%x" % lo)
            a("    s_mov_b32 exec_hi, 0x%x" % hi)

    def base(dst, ptr, off_sreg):
        a("    s_add_u32 %s, %s, %s" % (s(dst), s(ptr), off_sreg))
        a("    s_addc_u32 %s, %s, 0" % (s(dst + 1), s(ptr + 1)))

    def finish():
        if prof:
            a("    s_branch L_PROF")
        else:
            a("    s_endpgm")

    def bf16r(dst, src):
        a("    v_cvt_pk_bf16_f32 %s, %s, %s" % (v(dst), v(src), v(src)))
        a("    v_and_b32 %s, 0xffff0000, %s" % (v(dst), v(dst)))

    def wavesum_to_sgpr(r, sd):
        for sh in (1, 2, 4, 8):
            a("    v_add_f32_dpp %s, %s, %s row_ror:%d %s" % (v(r), v(r), v(r), sh, DPP))
        a("    v_add_f32_dpp %s, %s, %s row_bcast:15 row_mask:0xa bank_mask:0xf" % (v(r), v(r), v(r)))
        a("    v_add_f32_dpp %s, %s, %s row_bcast:31 row_mask:0xc bank_mask:0xf" % (v(r), v(r), v(r)))
        a("    v_readlane_b32 %s, %s, 63" % (s(sd), v(r)))

    def tagcheck(regs, tagreg, tmp, first=True):
        for i, r in enumerate(regs):
            if first and i == 0:
                a("    v_xor_b32 %s, %s, %s" % (v(tmp), s(tagreg), v(r)))
            else:
                a("    v_bitop3_b32 %s, %s, %s, %s bitop3:0xf6" % (v(tmp), v(tmp), v(r), s(tagreg)))

    def poll(loads, check, firstwait, post=None, cnt=None, keepexec=False):
        uid[0] += 1
        u = uid[0]
        a("    s_mov_b32 %s, 0" % s(sSpin))
        a("    s_branch L_CHECK%d" % u)
        a("L_RETRY%d:" % u)
        a("    s_add_u32 %s, %s, 1" % (s(sSpin), s(sSpin)))
        a("    s_cmp_ge_u32 %s, 0x%x" % (s(sSpin), SPIN_LIMIT))
        a("    s_cbranch_scc1 L_OK%d" % u)
        a("    s_mov_b64 exec, vcc")
        loads()
        if firstwait:
            a("    s_waitcnt vmcnt(0)")
        a("L_CHECK%d:" % u)
        a("    s_waitcnt vmcnt(%d)" % firstwait)
        check()
        a("    s_cbranch_vccnz L_RETRY%d" % u)
        a("L_OK%d:" % u)
        a("    s_mov_b64 exec, -1")
        if prof and cnt is not None and (not opt.get("astamps") or cnt == 15):
            a("    s_mov_b32 %s, %s" % (s(sPROF + 2 * cnt), s(sSpin)))
        if post:
            post()

    def spoll(pair, off, rep, parts=1, rep3=False):
        uid[0] += 1
        u = uid[0]
        a("    s_mov_b32 %s, 0" % s(sSpin))
        depth = opt.get("spd", 1)
        if depth > 1:
            for k in range(4):
                a("    s_not_b64 %s, %s" % (s(sFl + 2 * k, 2), s(rep, 2)))
            a("L_SP%d:" % u)
            a("    s_add_u32 %s, %s, 1" % (s(sSpin), s(sSpin)))
            a("    s_cmp_ge_u32 %s, 0x%x" % (s(sSpin), SPIN_LIMIT))
            a("    s_cbranch_scc1 L_SPD%d" % u)
            a("    s_load_dwordx8 %s, %s, %s glc" % (s(sFl, 8), s(pair, 2), off))
            a("    s_waitcnt lgkmcnt(%d)" % (2 * depth - 2))
            for k in range(4):
                a("    s_cmp_eq_u64 %s, %s" % (s(sFl + 2 * k, 2), s(rep, 2)))
                a("    s_cbranch_scc0 L_SP%d" % u)
            a("L_SPD%d:" % u)
            return
        if parts > 1:
            base(sB0 if rep3 else sB1, pair, off)
        a("L_SP%d:" % u)
        if parts == 1:
            a("    s_load_dwordx8 %s, %s, %s glc" % (s(sFl, 8), s(pair, 2), off))
        else:
            n = 8 // parts
            for k in range(parts):
                a("    s_load_dword%s %s, %s, 0x%x glc" % ("" if n == 1 else "x%d" % n, s(sFl + n * k, n), s(sB0 if rep3 else sB1, 2), 128 * k))
        a("    s_add_u32 %s, %s, 1" % (s(sSpin), s(sSpin)))
        a("    s_cmp_ge_u32 %s, 0x%x" % (s(sSpin), SPIN_LIMIT))
        a("    s_waitcnt lgkmcnt(0)")
        a("    s_cbranch_scc1 L_SPD%d" % u)
        for k in range(4):
            a("    s_xor_b64 %s, %s, %s" % (s(sFl + 2 * k, 2), s(sFl + 2 * k, 2), s(rep, 2)))
        a("    s_or_b64 %s, %s, %s" % (s(sFl, 2), s(sFl, 2), s(sFl + 2, 2)))
        a("    s_or_b64 %s, %s, %s" % (s(sFl + 4, 2), s(sFl + 4, 2), s(sFl + 6, 2)))
        a("    s_or_b64 %s, %s, %s" % (s(sFl, 2), s(sFl, 2), s(sFl + 4, 2)))
        a("    s_cbranch_scc1 L_SP%d" % u)
        a("L_SPD%d:" % u)

    def spoll2(offA, dist, rep, parts, bp, between=None):
        assert not prof
        uid[0] += 1
        u = uid[0]
        sets = (sFl, 64)
        n = 8 // parts
        SENT = 0x5a5aa5a5
        base(bp, sWS, offA)

        def issue(k):
            a("    s_mov_b32 %s, 0x%x" % (s(sets[k] + 7), SENT))
            for q in range(parts):
                a("    s_load_dword%s %s, %s, 0x%x glc" % ("x%d" % n, s(sets[k] + n * q, n), s(bp, 2), 128 * q + dist * k))
        issue(0)
        if between:
            between()
        issue(1)
        a("    s_mov_b32 %s, 0" % s(sSpin))
        for k in (0, 1):
            a("L_S2%d_%d:" % (u, k))
            if k == 0:
                a("    s_add_u32 %s, %s, 1" % (s(sSpin), s(sSpin)))
                a("    s_cmp_ge_u32 %s, 0x%x" % (s(sSpin), SPIN_LIMIT * 8))
                a("    s_cbranch_scc1 L_S2D%d" % u)
            a("    s_cmp_eq_u32 %s, 0x%x" % (s(sets[k] + 7), SENT))
            a("    s_cbranch_scc1 L_S2%d_%d" % (u, 1 - k))
            for q in range(4):
                a("    s_cmp_eq_u64 %s, %s" % (s(sets[k] + 2 * q, 2), s(rep, 2)))
                a("    s_cbranch_scc0 L_S2R%d_%d" % (u, k))
            a("    s_branch L_S2D%d" % u)
            a("L_S2R%d_%d:" % (u, k))
            issue(k)
            if k == 1:
                a("    s_branch L_S2%d_0" % u)
        a("L_S2D%d:" % u)

    def gather(loads, regs, tag, lowmask, acc, cnt=None, before=None, ordered=True):
        uid[0] += 1
        u = uid[0]
        n = len(regs)

        def strip(i, first):
            r = regs[i]
            for k in range(4):
                a("    v_xor_b32 %s, %s, %s" % (v(r + k), s(tag), v(r + k)))
            if first:
                a("    v_or3_b32 %s, %s, %s, %s" % (v(vG0), v(r), v(r + 1), v(r + 2)))
                a("    v_or_b32 %s, %s, %s" % (v(vG0), v(vG0), v(r + 3)))
            else:
                a("    v_or3_b32 %s, %s, %s, %s" % (v(vG0), v(vG0), v(r), v(r + 1)))
                a("    v_or3_b32 %s, %s, %s, %s" % (v(vG0), v(vG0), v(r + 2), v(r + 3)))

        def verdict():
            a("    v_and_b32 %s, 0x%x, %s" % (v(vG0), lowmask, v(vG0)))
            a("    v_cmp_ne_u32 vcc, 0, %s" % v(vG0))
        a("    s_mov_b32 %s, 0" % s(sSpin))
        a("    s_branch L_FIRST%d" % u)
        a("L_RETRY%d:" % u)
        a("    s_add_u32 %s, %s, 1" % (s(sSpin), s(sSpin)))
        a("    s_cmp_ge_u32 %s, 0x%x" % (s(sSpin), SPIN_LIMIT))
        a("    s_cbranch_scc1 L_REDO%d" % u)
        a("    s_mov_b64 exec, vcc")
        loads()
        a("    s_waitcnt vmcnt(0)")
        for i in range(n):
            strip(i, i == 0)
        verdict()
        a("    s_cbranch_vccnz L_RETRY%d" % u)
        a("L_REDO%d:" % u)
        a("    s_mov_b64 exec, -1")
        for i in range(n):
            acc(i)
        a("    s_branch L_OK%d" % u)
        a("L_FIRST%d:" % u)
        if before:
            before()
        for i in range(n):
            if ordered or i == 0:
                a("    s_waitcnt vmcnt(%d)" % (n - 1 - i if ordered else 0))
            strip(i, i == 0)
            if i == n - 1:
                verdict()
            acc(i)
        a("    s_cbranch_vccnz L_RETRY%d" % u)
        a("L_OK%d:" % u)
        if prof and cnt is not None and not opt.get("astamps"):
            a("    s_mov_b32 %s, %s" % (s(sPROF + 2 * cnt), s(sSpin)))

    def allred_hi(r, tmp, op):
        for sh in (4, 8):
            a("    v_%s_f32_dpp %s, %s, %s row_ror:%d %s" % (op, v(r), v(r), v(r), sh, DPP))
        for sw in ("16", "32"):
            a("    v_mov_b32 %s, %s" % (v(tmp), v(r)))
            a("    v_permlane%s_swap_b32 %s, %s" % (sw, v(r), v(tmp)))
            a("    v_%s_f32 %s, %s, %s" % (op, v(r), v(r), v(tmp)))

    def rowpack(r, dst, n):
        a("    v_mov_b32_dpp %s, %s quad_perm:[1,1,3,3] %s" % (v(r + 1), v(r), DPP))
        a("    v_cvt_pk_bf16_f32 %s, %s, %s" % (v(r + 1), v(r), v(r + 1)))
        for i in range(n):
            a("    v_mov_b32_dpp %s, %s row_newbcast:%d %s" % (v(dst + i), v(r + 1), 2 * i, DPP))

    def treduce4(r):
        a("    v_permlane32_swap_b32 %s, %s" % (v(r), v(r + 2)))
        a("    v_permlane32_swap_b32 %s, %s" % (v(r + 1), v(r + 3)))
        a("    v_add_f32 %s, %s, %s" % (v(r), v(r), v(r + 2)))
        a("    v_add_f32 %s, %s, %s" % (v(r + 1), v(r + 1), v(r + 3)))
        a("    v_permlane16_swap_b32 %s, %s" % (v(r), v(r + 1)))
        a("    v_add_f32 %s, %s, %s" % (v(r), v(r), v(r + 1)))

    hdr = open(os.path.join(os.path.dirname(os.path.abspath(__file__)), "..", "cdna_kernels", NAME + ".s.ref")).read()
    head = [l for l in hdr.split("\n") if l.startswith("; Kernarg") or l.startswith(";   offset")]
    out = "\n".join(head) + "\n"
    out += "; One persistent launch: 256 workgroups (one per CU) x 8 waves.\n"
    out += "; @launch grid=(256,1,1) block=(512,1,1) lds=%d\n" % LDS_BYTES
    a('.amdgcn_target "amdgcn-amd-amdhsa--gfx950"')
    a(".text")
    a(".globl %s_kernel" % NAME)
    a(".p2align 8")
    a(".type %s_kernel,@function" % NAME)
    a("%s_kernel:" % NAME)

    vL = 0
    vM = V(4, 4)
    vSink = V() if opt.get("vt", 0) else None
    vTag8, vTag10, vG0 = V(), V(), V()
    vL3, vL7, vG, vJ = V(), V(), V(), V()
    vRedW, vRedR, vRedR8, vC4 = V(), V(), V(), V()
    vD = V(4, 4)
    vT = V(8, 4)
    vV0 = V(4)
    vV1 = vV0 + 1
    vW = V(16, 4)
    vAk = V(4)
    vKo = V(4)
    vAq, vAqw, vAmw, vAmr, vAlw, vApw, vApr, vAv, vAo, vAlr, vQo = [V() for _ in range(11)]
    mk = V.mark()

    def attn_addresses():
        a("    s_lshl_b32 %s, %s, 12" % (s(sT0), s(sW)))
        a("    v_xor_b32 %s, %s, %s" % (v(vT), v(vJ), v(vG)))
        a("    v_lshlrev_b32 %s, 4, %s" % (v(vT), v(vT)))
        a("    v_lshl_or_b32 %s, %s, 8, %s" % (v(vT), v(vJ), v(vT)))
        a("    v_add_u32 %s, %s, %s" % (v(vAk), s(sT0), v(vT)))
        for i in (1, 2, 3):
            a("    v_xor_b32 %s, 0x%x, %s" % (v(vAk + i), 64 * i, v(vAk)))
        a("    v_and_b32 %s, 3, v0" % v(vT))
        a("    v_mul_u32_u24 %s, 272, %s" % (v(vT + 1), v(vT)))
        a("    v_lshl_add_u32 %s, %s, 4, %s" % (v(vT + 2), v(vG), v(vT + 1)))
        a("    v_add_u32 %s, 0x%x, %s" % (v(vAq), LQ, v(vT + 2)))
        a("    v_add_u32 %s, 0x%x, %s" % (v(vApr), LP, v(vT + 2)))
        a("    s_lshr_b32 %s, %s, 1" % (s(sT0), s(sW)))
        a("    s_and_b32 %s, %s, 1" % (s(sT1), s(sW)))
        a("    s_lshl_b32 %s, %s, 6" % (s(sT2), s(sT0)))
        a("    s_lshl_b32 %s, %s, 3" % (s(sT3), s(sT1)))
        a("    s_add_u32 %s, %s, %s" % (s(sT2), s(sT2), s(sT3)))
        a("    v_add_u32 %s, %s, %s" % (v(vApw), s(sT2), v(vApr)))
        a("    s_mul_i32 %s, %s, 272" % (s(sT0), s(sT0)))
        a("    s_lshl_b32 %s, %s, 7" % (s(sT1), s(sT1)))
        a("    s_add_u32 %s, %s, %s" % (s(sT0), s(sT0), s(sT1)))
        a("    s_add_u32 %s, %s, 0x%x" % (s(sT0), s(sT0), LQ))
        a("    v_lshl_add_u32 %s, %s, 2, %s" % (v(vT + 3), v(vJ), v(vG)))
        a("    v_lshl_add_u32 %s, %s, 1, %s" % (v(vAqw), v(vT + 3), s(sT0)))
        a("    v_lshlrev_b32 %s, 5, %s" % (v(vT + 1), v(vT)))
        a("    v_add_u32 %s, 0x%x, %s" % (v(vAmr), LMX, v(vT + 1)))
        a("    s_lshl_b32 %s, %s, 2" % (s(sT0), s(sW)))
        a("    v_add_u32 %s, %s, %s" % (v(vAmw), s(sT0), v(vAmr)))
        a("    s_lshl_b32 %s, %s, 4" % (s(sT0), s(sW)))
        a("    s_add_u32 %s, %s, 0x%x" % (s(sT0), s(sT0), LLS))
        a("    v_lshlrev_b32 %s, 7, %s" % (v(vT + 1), v(vT)))
        a("    v_lshl_add_u32 %s, %s, 2, %s" % (v(vT + 1), v(vG), v(vT + 1)))
        a("    v_add_u32 %s, %s, %s" % (v(vAlw), s(sT0), v(vT + 1)))
        a("    v_lshrrev_b32 %s, 2, v0" % v(vT + 1))
        a("    v_lshlrev_b32 %s, 3, %s" % (v(vT + 1), v(vT + 1)))
        a("    v_lshl_add_u32 %s, %s, 7, %s" % (v(vT + 1), v(vT), v(vT + 1)))
        a("    v_add_u32 %s, 0x%x, %s" % (v(vAlr), LLS, v(vT + 1)))
        a("    v_lshrrev_b32 %s, 2, %s" % (v(vT + 1), v(vJ)))
        a("    v_lshl_add_u32 %s, %s, 2, %s" % (v(vT + 1), v(vG), v(vT + 1)))
        a("    v_and_b32 %s, 7, %s" % (v(vT + 2), v(vT + 1)))
        a("    v_lshlrev_b32 %s, 1, %s" % (v(vT + 2), v(vT + 2)))
        a("    v_bfe_u32 %s, v0, 1, 1" % v(vT + 3))
        a("    s_lshl_b32 %s, %s, 1" % (s(sT0), s(sW)))
        a("    v_add_u32 %s, %s, %s" % (v(vT + 3), s(sT0), v(vT + 3)))
        a("    v_xor_b32 %s, %s, %s" % (v(vT + 2), v(vT + 2), v(vT + 3)))
        a("    v_lshlrev_b32 %s, 4, %s" % (v(vT + 2), v(vT + 2)))
        a("    v_lshl_or_b32 %s, %s, 8, %s" % (v(vT + 1), v(vT + 1), v(vT + 2)))
        a("    v_and_b32 %s, 1, v0" % v(vT + 2))
        a("    v_lshl_or_b32 %s, %s, 3, %s" % (v(vT + 1), v(vT + 2), v(vT + 1)))
        a("    v_add_u32 %s, 0x%x, %s" % (v(vAv), LV, v(vT + 1)))
        a("    s_lshl_b32 %s, %s, 5" % (s(sT0), s(sH)))
        a("    s_add_u32 %s, %s, %s" % (s(sT0), s(sT0), s(sJ)))
        a("    s_lshl_b32 %s, %s, 6" % (s(sT2), s(sT0)))
        a("    s_add_u32 %s, %s, 0x%x" % (s(sT2), s(sT2), S2ML))
        base(sBml, sWS, s(sT2))
        if opt.get("sb2", 0):
            per = 32 // P2
            a("    s_lshl_b32 %s, %s, %d" % (s(sT0), s(sH), RS2 + 4))
            a("    s_and_b32 %s, %s, %d" % (s(sT1), s(sJ), per - 1))
            a("    s_add_u32 %s, %s, %s" % (s(sT0), s(sT0), s(sT1)))
            a("    s_lshr_b32 %s, %s, %d" % (s(sT1), s(sJ), per.bit_length() - 1))
            a("    s_lshl_b32 %s, %s, 7" % (s(sT1), s(sT1)))
            a("    s_add_u32 %s, %s, %s" % (s(sT0), s(sT0), s(sT1)))
            a("    s_add_u32 %s, %s, 0x%x" % (s(sT0), s(sT0), SRDY))
            base(sBfl, sWS, s(sT0))

    a("    s_cmp_ge_u32 s2, 0x100")
    a("    s_cbranch_scc1 L_END")
    a("    s_load_dwordx16 s[4:19], s[0:1], 0x0")
    a("    s_load_dwordx8 s[20:27], s[0:1], 0x40")
    if opt.get("diagspin"):
        a("    s_memrealtime s[96:97]")
    if prof == 2:
        for i in range(1, 12):
            a("    s_mov_b32 %s, 0" % s(sPROF + 2 * i))
    stamp(0)
    vXo = vAo
    vXSo, vWQ0, vWQ1 = V(), V(), V()
    vXf = V(4, 4)
    vXs = V()
    KVM = 0
    OCLR = 0
    sIdx = sDummy + 0
    a("    v_lshrrev_b32 %s, 6, v0" % v(vT))
    a("    v_and_b32 v0, 63, v0")
    a("    s_lshr_b32 %s, s2, 3" % s(sJ))
    a("    v_readfirstlane_b32 %s, %s" % (s(sW), v(vT)))
    a("    s_and_b32 %s, s2, 7" % s(sH))
    a("    v_lshlrev_b32 %s, 4, v0" % v(vXo))
    a("    v_lshrrev_b32 %s, 3, v0" % v(vL3))
    a("    v_and_b32 %s, 0x70, %s" % (v(vT), v(vXo)))
    a("    v_lshlrev_b32 %s, 2, %s" % (v(vXSo), v(vL3)))
    a("    v_lshl_or_b32 %s, %s, 14, %s" % (v(vWQ0), v(vL3), v(vT)))
    a("    s_and_b32 %s, %s, 24" % (s(sT0), s(sJ)))
    a("    s_add_u32 %s, %s, %s" % (s(sT0), s(sT0), s(sW)))
    a("    s_and_b32 %s, %s, 7" % (s(sT3), s(sJ)))
    a("    s_lshl3_add_u32 %s, %s, %s" % (s(sT3), s(sH), s(sT3)))
    a("    s_lshl_b32 %s, %s, 10" % (s(sT1), s(sT0)))
    a("    s_add_u32 %s, %s, %s" % (s(sT1), s(sT1), s(sT3)))
    a("    s_lshl_b32 %s, %s, 7" % (s(sT1), s(sT1)))
    a("    s_lshl_b32 %s, %s, 5" % (s(sT0), s(sT0)))
    a("    v_add_u32 %s, 0x2000, %s" % (v(vWQ1), v(vWQ0)))

    def later():
        a("    v_lshrrev_b32 %s, 4, v0" % v(vG))
        a("    v_and_b32 %s, 15, v0" % v(vJ))
        a("    s_lshl3_add_u32 %s, %s, %s" % (s(sT3), s(sJ), s(sW)))
        a("    s_lshl_b32 %s, %s, 12" % (s(sT2), s(sH)))
        a("    v_xor_b32 %s, %s, %s" % (v(vT), v(vJ), v(vG)))
        a("    s_add_u32 %s, %s, %s" % (s(sT2), s(sT2), s(sT3)))
        a("    v_lshlrev_b32 %s, 4, %s" % (v(vT), v(vT)))
        a("    s_add_u32 %s, %s, 0xf00" % (s(sT2), s(sT2)))
        a("    v_lshl_or_b32 %s, %s, 8, %s" % (v(vKo), v(vG), v(vT)))
        a("    s_lshl_b32 %s, %s, 12" % (s(sT2), s(sT2)))
        a("    s_lshl_b32 %s, %s, 12" % (s(sTmp), s(sW)))
        a("    s_mov_b32 m0, %s" % s(sTmp))
    PL = opt.get("pl", 1)
    if not PL:
        later()
    a("    s_waitcnt lgkmcnt(0)")
    T2 = opt.get("touch2", 0)
    if T2:
        assert not PL
        a("    s_cmp_eq_u32 %s, 1" % s(sW))
        a("    s_cselect_b64 %s, %s, %s" % (s(sB4, 2), s(sWQ, 2), s(sK, 2)))
        a("    s_cselect_b32 %s, %s, %s" % (s(sDummy), s(sT1), s(sT2)))
        a("    s_cmp_gt_u32 %s, 1" % s(sW) if T2 == 1 else "    s_cmp_gt_u32 %s, 1" % s(sT3))
        a("    s_cbranch_scc1 L_NOT2")
        a("    s_load_dword %s, %s, %s" % (s(sDummy), s(sB4, 2), s(sDummy)))
        a("L_NOT2:")
    LN0 = opt.get("ln0", 0)
    if LN0:
        a("    s_cmp_lg_u32 %s, 0" % s(sW))
        a("    s_cbranch_scc1 L_NOX")
        a("    global_load_dwordx4 %s, %s, %s" % (v(vXf, 4), v(vXo), s(sX, 2)))
        a("L_NOX:")
        a("    s_add_u32 %s, %s, 0x%x" % (s(sB0), s(sT0), LH))
    else:
        a("    global_load_dwordx4 %s, %s, %s" % (v(vXf, 4), v(vXo), s(sX, 2)))
        base(sB0, sX, s(sT0))
        a("    global_load_dword %s, %s, %s" % (v(vXs), v(vXSo), s(sB0, 2)))
    base(sB1, sWQ, s(sT1))
    if opt.get("bx", 0):
        a("    s_barrier")
    a("    global_load_dwordx4 %s, %s, %s nt" % (v(vW, 4), v(vWQ0), s(sB1, 2)))
    a("    global_load_dwordx4 %s, %s, %s nt" % (v(vW + 4, 4), v(vWQ1), s(sB1, 2)))
    vm.extend(["x", "xs", "wq0", "wq1"])
    if PL:
        later()
    base(sB2, sK, s(sT2))
    VT = opt.get("vt", 0)

    def vtouch():
        a("    s_cmp_lg_u32 %s, 7" % s(sW))
        a("    s_cbranch_scc1 L_NOVT")
        base(sB3, sVp, s(sT2))
        a("    s_lshl_b32 %s, %s, 19" % (s(sT1), s(sH)))
        base(sB4, sWO, s(sT1))
        a("    v_mov_b32 %s, %s" % (v(vD), s(sB3)))
        a("    v_mov_b32 %s, %s" % (v(vD + 1), s(sB3 + 1)))
        for k, p in enumerate((sWS, sB4, sWG, sWU, sWD)):
            a("    v_writelane_b32 %s, %s, %d" % (v(vD), s(p), k + 1))
            a("    v_writelane_b32 %s, %s, %d" % (v(vD + 1), s(p + 1), k + 1))
        a("    s_lshl_b32 %s, s2, 7" % s(sT1))
        a("    s_add_u32 %s, %s, 0x20000" % (s(sT1), s(sT1)))
        setexec(0x3E, 0)
        a("    v_add_co_u32 %s, vcc, %s, %s" % (v(vD), s(sT1), v(vD)))
        a("    v_addc_co_u32 %s, vcc, 0, %s, vcc" % (v(vD + 1), v(vD + 1)))
        setexec(0x3F, 0)
        a("    global_load_dword %s, %s, off nt" % (v(vSink), v(vD, 2)))
        setexec(0xFFFFFFFF, 0xFFFFFFFF)
        a("L_NOVT:")
    if VT == 1:
        vtouch()
    if opt.get("b0", 1):
        a("    s_barrier")
    WIN = opt.get("win", 3)
    QPOS = opt.get("qpos", 7)
    stream = ["wq0", "wq1", "K0", "K1", "K2", "K3", "V0", "V1", "V2", "V3"]

    def sload(i):
        nm = stream[i]
        k = int(nm[1])
        if KVM == 2:
            if nm[0] == "K":
                a("    s_add_u32 m0, %s, %s" % (s(92), s(sRot + k)))
                a("    global_load_lds_dwordx4 %s, %s nt" % (v(vKo + k), s(sB2, 2)))
            else:
                a("    s_add_u32 m0, %s, %s" % (s(sTmp), s(sRot + k)))
                a("    global_load_lds_dwordx4 %s, %s nt" % (v(vV0 + k), s(sB3, 2)))
        elif nm[0] == "K":
            a("    global_load_lds_dwordx4 %s, %s offset:%d nt" % (v(vKo + k), s(sB2, 2), 1024 * k))
        else:
            if k == 0:
                a("    s_mov_b32 m0, %s" % s(sTmp))
            a("    global_load_lds_dwordx4 %s, %s offset:%d nt" % (v(vV0 + k) if KVM else v(vV1 if k & 1 else vV0), s(sB3, 2), 1024 * k))
        vm.append(nm)
    assert WIN == 3
    WIN0 = opt.get("win0", WIN)
    for i in range(2, WIN0):
        if i > 2:
            a("    v_xor_b32 %s, 0x%x, %s" % (v(vKo + i - 2), 64 * (i - 2), v(vKo)))
        sload(i)
    if VT == 2:
        vtouch()
    base(sB3, sVp, s(sT2))
    for i in (1, 2, 3):
        a("    v_xor_b32 %s, 0x%x, %s" % (v(vKo + i), 64 * i, v(vKo)))
    a("    v_and_b32 %s, 7, v0" % v(vL7))
    a("    s_lshl_b32 %s, %s, 5" % (s(sT1), s(sH)))
    a("    s_add_u32 %s, %s, %s" % (s(sT1), s(sT1), s(sJ)))
    a("    s_mul_i32 %s, %s, %d" % (s(sT1), s(sT1), ST2))
    a("    s_lshl_b32 %s, %s, 8" % (s(sT0), s(sW)))
    a("    s_add_u32 %s, %s, %s" % (s(sT1), s(sT1), s(sT0)))
    a("    s_add_u32 %s, %s, 0x%x" % (s(sT1), s(sT1), S2O))
    base(sBo, sWS, s(sT1))
    E0 = opt.get("e0", 1)
    a("    s_lshl_b32 %s, %s, 3" % (s(sT0), s(sJ)))
    a("    s_add_u32 %s, %s, %s" % (s(sT0), s(sT0), s(sW)))
    if E0:
        a("    s_cmp_lg_u32 %s, %d" % (s(sW), 1 if LN0 else 0))
        a("    s_cbranch_scc1 L_NOE")
        if opt.get("prio", 0) == 1:
            a("    s_setprio 3")
    a("    s_load_dword %s, %s, 0x%x" % (s(sE), s(sWS, 2), EPOCH))
    a("L_NOE:")
    if opt.get("prio", 0) == 2:
        a("    s_cmp_lt_u32 %s, 4" % s(sW))
        a("    s_cbranch_scc1 L_NOPR")
        a("    s_setprio 1")
        a("L_NOPR:")
    a("    s_getpc_b64 %s" % s(sPC, 2))
    a("L_PC:")
    if opt.get("pf", 1):
        if LN0:
            a("    s_cmp_eq_u32 %s, 0" % s(sW))
            a("    s_cbranch_scc1 L_NOPF")
            a("    s_sub_u32 %s, %s, %s" % (s(sT1), s(sT0), s(sJ)))
            a("    s_sub_u32 %s, %s, 1" % (s(sT1), s(sT1)))
        else:
            a("    s_mov_b32 %s, %s" % (s(sT1), s(sT0)))
        a("    s_cmp_gt_u32 %s, (L_CODE_END-L_PC-4)/128" % s(sT1))
        a("    s_cbranch_scc1 L_NOPF")
        a("    s_lshl_b32 %s, %s, 7" % (s(sT1), s(sT1)))
        a("    s_load_dword %s, %s, %s" % (s(sDummy), s(sPC, 2), s(sT1)))
        a("L_NOPF:")
    if opt.get("touch", 1):
        a("    s_lshl_b32 %s, %s, 19" % (s(sT1), s(sH)))
        base(sB4, sWO, s(sT1))
        for k, p in enumerate((sB3, sWG, sWU, sWD, sOUT)):
            a("    s_cmp_eq_u32 %s, %d" % (s(sT0), 8 * (17 + k) + 7))
            a("    s_cselect_b64 %s, %s, %s" % (s(sB4, 2), s(p, 2), s(sB4, 2)))
        a("    s_sub_u32 %s, %s, %d" % (s(sT1), s(sT0), 8 * 16 + 7))
        a("    s_and_b32 %s, %s, 0xffffffc7" % (s(sT3), s(sT1)))
        a("    s_cmp_lg_u32 %s, 0" % s(sT3))
        a("    s_cbranch_scc1 L_NOTOUCH")
        a("    s_load_dword %s, %s, 0x0" % (s(sDummy), s(sB4, 2)))
        a("L_NOTOUCH:")
    a("    v_lshlrev_b32 %s, 1, %s" % (v(vT), v(vG)))
    a("    v_xor_b32 %s, %s, %s" % (v(vT), v(vJ), v(vT)))
    a("    v_lshlrev_b32 %s, 4, %s" % (v(vT), v(vT)))
    a("    v_lshl_or_b32 %s, %s, 8, %s" % (v(vV0), v(vG), v(vT)))
    a("    v_xor_b32 %s, 0x80, %s" % (v(vV1), v(vV0)))
    if KVM == 2:
        for i in (3, 2, 1, 0):
            a("    s_lshr_b32 %s, %s, 3" % (s(sT0), s(sRot + i)))
            a("    s_and_b32 %s, %s, 0x80" % (s(sT0), s(sT0)))
            a("    s_or_b32 %s, %s, %s" % (s(sT0), s(sT0), s(sRot + i)))
            a("    v_xor_b32 %s, %s, %s" % (v(vV0 + i), s(sT0), v(vV0)))
    if KVM == 1:
        a("    v_add_u32 %s, 0x%x, %s" % (v(vV0 + 3), 7168 * 3, v(vV1)))
        a("    v_add_u32 %s, 0x%x, %s" % (v(vV0 + 2), 7168 * 2, v(vV0)))
        a("    v_add_u32 %s, 0x%x, %s" % (v(vV1), 7168, v(vV1)))
    a("    s_add_u32 %s, %s, 0x%x" % (s(sTmp), s(sTmp), LV))
    a("    v_and_b32 %s, 1, v0" % v(vT))
    a("    v_lshlrev_b32 %s, 4, %s" % (v(vT), v(vT)))
    a("    v_lshlrev_b32 %s, %s, %s" % (v(vT + 1), v(vT), v(vT + 2)) if False else
      "    v_mov_b32 %s, 0xffff" % v(vT + 1))
    a("    v_lshlrev_b32 %s, %s, %s" % (v(vT + 1), v(vT), v(vT + 1)))
    a("    v_lshrrev_b32 %s, 1, %s" % (v(vT), v(vL7)))
    for r in range(4):
        a("    v_cmp_eq_u32 vcc, %d, %s" % (r, v(vT)))
        a("    v_cndmask_b32 %s, 0, %s, vcc" % (v(vM + r), v(vT + 1)))
    a("    v_lshrrev_b32 %s, 5, v0" % v(vT))
    a("    s_lshl_b32 %s, %s, 1" % (s(sT0), s(sW)))
    a("    v_add_u32 %s, %s, %s" % (v(vT), s(sT0), v(vT)))
    a("    v_mul_u32_u24 %s, 272, %s" % (v(vT), v(vT)))
    a("    v_and_b32 %s, 1, %s" % (v(vT + 1), v(vG)))
    a("    v_lshl_or_b32 %s, %s, 1, %s" % (v(vT + 1), v(vL7), v(vT + 1)))
    a("    v_lshl_add_u32 %s, %s, 4, %s" % (v(vT), v(vT + 1), v(vT)))
    a("    v_add_u32 %s, 0x%x, %s" % (v(vRedW), LRED, v(vT)))
    a("    v_and_b32 %s, 3, v0" % v(vT))
    a("    v_lshl_add_u32 %s, %s, 2, %s" % (v(vC4), v(vG), v(vT)))
    a("    v_lshlrev_b32 %s, 4, %s" % (v(vC4), v(vC4)))
    a("    v_bfe_u32 %s, v0, 2, 2" % v(vT))
    a("    v_mul_u32_u24 %s, 544, %s" % (v(vT), v(vT)))
    a("    v_add_u32 %s, %s, %s" % (v(vT + 1), v(vC4), v(vT)))
    a("    v_add_u32 %s, 0x%x, %s" % (v(vRedR8), LRED, v(vT + 1)))
    a("    v_add_u32 %s, %s, %s" % (v(vRedR), v(vRedR8), v(vT)))
    a("    s_mov_b32 %s, 0x3db504f3" % s(sScale))
    a("    s_mov_b32 %s, 0x3fb8aa3b" % s(sScale + 1))
    a("    s_mov_b32 %s, 0xffffff00" % s(sM8))
    a("    s_mov_b32 %s, 0xfffffc00" % s(sM10))

    vXu = V(8, 4)
    vXk = V(8, 4)
    if LN0:
        a("    v_add_u32 %s, %s, %s" % (v(vXSo), s(sB0), v(vXSo)))
        a("    s_cmp_lg_u32 %s, 0" % s(sW))
        a("    s_cbranch_scc1 L_NOLN")
    waitfor("xs")
    stamp(1)
    for i in range(4):
        a("    v_lshlrev_b32 %s, 16, %s" % (v(vXu + 2 * i), v(vXf + i)))
        a("    v_and_b32 %s, 0xffff0000, %s" % (v(vXu + 2 * i + 1), v(vXf + i)))
    for i in range(4):
        a("    v_add_f32 %s, %s, %s" % (v(vT + i), v(vXu + 2 * i), v(vXu + 2 * i + 1)))
    a("    v_add_f32 %s, %s, %s" % (v(vT), v(vT), v(vT + 1)))
    a("    v_add_f32 %s, %s, %s" % (v(vT + 2), v(vT + 2), v(vT + 3)))
    a("    v_add_f32 %s, %s, %s" % (v(vT), v(vT), v(vT + 2)))
    a("    v_mul_f32 %s, 0x3b000000, %s" % (v(vT), v(vT)))
    wavesum_to_sgpr(vT, sMean)
    for i in range(8):
        a("    v_subrev_f32 %s, %s, %s" % (v(vXk + i), s(sMean), v(vXu + i)))
    a("    v_mul_f32 %s, %s, %s" % (v(vT), v(vXk), v(vXk)))
    a("    v_mul_f32 %s, %s, %s" % (v(vT + 1), v(vXk + 1), v(vXk + 1)))
    for i in range(2, 8):
        a("    v_fmac_f32 %s, %s, %s" % (v(vT + (i & 1)), v(vXk + i), v(vXk + i)))
    a("    v_add_f32 %s, %s, %s" % (v(vT), v(vT), v(vT + 1)))
    a("    v_mul_f32 %s, 0x3b000000, %s" % (v(vT), v(vT)))
    wavesum_to_sgpr(vT, sVar)
    a("    v_mov_b32 %s, %s" % (v(vT + 1), s(sMean)))
    bf16r(vT + 1, vT + 1)
    a("    v_mov_b32 %s, %s" % (v(vT), s(sVar)))
    bf16r(vT, vT)
    a("    v_add_f32 %s, 0x3727c5ac, %s" % (v(vT), v(vT)))
    bf16r(vT, vT)
    a("    v_sqrt_f32 %s, %s" % (v(vT), v(vT)))
    bf16r(vT, vT)
    a("    v_rcp_f32 %s, %s" % (v(vT + 2), v(vT)))
    vA = V(8, 4)
    if LN0:
        for i in range(0, 8, 2):
            a("    v_pk_add_f32 %s, %s, %s op_sel:[0,1] op_sel_hi:[1,1] neg_lo:[0,1] neg_hi:[0,1]" % (v(vXu + i, 2), v(vXu + i, 2), v(vT, 2)))
        for i in range(4):
            a("    v_cvt_pk_bf16_f32 %s, %s, %s" % (v(vXf + i), v(vXu + 2 * i), v(vXu + 2 * i + 1)))
        for i in range(4):
            a("    v_lshlrev_b32 %s, 16, %s" % (v(vXu + 2 * i), v(vXf + i)))
            a("    v_and_b32 %s, 0xffff0000, %s" % (v(vXu + 2 * i + 1), v(vXf + i)))
        for i in range(0, 8, 2):
            a("    v_pk_mul_f32 %s, %s, %s op_sel_hi:[1,0]" % (v(vXk + i, 2), v(vXu + i, 2), v(vT + 2, 2)))
        for i in range(0, 8, 2):
            a("    v_pk_fma_f32 %s, %s, %s, %s op_sel_hi:[1,0,1] neg_lo:[1,0,0] neg_hi:[1,0,0]" %
              (v(vXu + i, 2), v(vXk + i, 2), v(vT, 2), v(vXu + i, 2)))
        for i in range(0, 8, 2):
            a("    v_pk_fma_f32 %s, %s, %s, %s op_sel_hi:[1,0,1]" % (v(vXk + i, 2), v(vXu + i, 2), v(vT + 2, 2), v(vXk + i, 2)))
        for i in range(4):
            a("    v_cvt_pk_bf16_f32 %s, %s, %s" % (v(vXf + i), v(vXk + 2 * i), v(vXk + 2 * i + 1)))
        a("    v_add_u32 %s, 0x%x, %s" % (v(vT), LH, v(vXo)))
        a("    ds_write_b128 %s, %s" % (v(vT), v(vXf, 4)))
        a("    s_waitcnt lgkmcnt(0)")
        a("    s_load_dword %s, %s, 0x%x" % (s(sE), s(sWS, 2), EPOCH))
        a("L_NOLN:")
        a("    s_barrier")
        a("    ds_read_b32 %s, %s" % (v(vXs), v(vXSo)))
        a("    s_mov_b32 %s, 0x01000100" % s(sT0))
        a("    s_mov_b32 %s, 0x03020302" % s(sT1))

        def xoperand():
            a("    s_waitcnt lgkmcnt(0)")
            for i in range(2):
                a("    v_perm_b32 %s, %s, %s, %s" % (v(vT + 5 + i), v(vXs), v(vXs), s(sT0 + i)))
            for i in range(2):
                for r in range(4):
                    a("    v_and_b32 %s, %s, %s" % (v(vA + 4 * i + r), v(vT + 5 + i), v(vM + r)))
        if LN0 == 1:
            xoperand()
    else:
        a("    v_lshlrev_b32 %s, 16, %s" % (v(vT + 3), v(vXs)))
        a("    v_and_b32 %s, 0xffff0000, %s" % (v(vT + 4), v(vXs)))
        a("    v_sub_f32 %s, %s, %s" % (v(vT + 3), v(vT + 3), v(vT + 1)))
        a("    v_sub_f32 %s, %s, %s" % (v(vT + 4), v(vT + 4), v(vT + 1)))
        bf16r(vT + 3, vT + 3)
        bf16r(vT + 4, vT + 4)
        for i in range(2):
            y, q = vT + 3 + i, vT + 5 + i
            a("    v_mul_f32 %s, %s, %s" % (v(q), v(y), v(vT + 2)))
            a("    v_fma_f32 %s, -%s, %s, %s" % (v(y), v(q), v(vT), v(y)))
            a("    v_fmac_f32 %s, %s, %s" % (v(q), v(y), v(vT + 2)))
            a("    v_cvt_pk_bf16_f32 %s, %s, %s" % (v(q), v(q), v(q)))
            for r in range(4):
                a("    v_and_b32 %s, %s, %s" % (v(vA + 4 * i + r), v(q), v(vM + r)))
    a("    v_lshlrev_b32 %s, 4, %s" % (v(vQo), v(vJ)))
    a("    v_mul_u32_u24 %s, %d, %s" % (v(vT + 7), ST1, v(vG)))
    a("    v_add_u32 %s, %s, %s" % (v(vQo), v(vT + 7), v(vQo)))

    def tags():
        a("    s_add_u32 %s, %s, 1" % (s(sT32), s(sE)))
        a("    s_and_b32 %s, %s, 0xff" % (s(sTag8), s(sT32)))
        a("    s_and_b32 %s, %s, 0x3ff" % (s(sTag10), s(sT32)))
        a("    v_mov_b32 %s, %s" % (v(vTag8), s(sTag8)))
        a("    v_mov_b32 %s, %s" % (v(vTag10), s(sTag10)))
    if not E0:
        a("    s_waitcnt lgkmcnt(0)")
        tags()
    waitfor("wq0")
    for i in range(WIN0, WIN + 1):
        sload(i)
    if LN0 == 2:
        xoperand()
    waitfor("clr" if OCLR else "wq1")
    sload(WIN + 1)
    if LN0 == 3:
        xoperand()
    stamp(2)
    a("    v_mfma_f32_16x16x32_bf16 %s, %s, %s, 0" % (v(vD, 4), v(vA, 4), v(vW, 4)))
    a("    v_mfma_f32_16x16x32_bf16 %s, %s, %s, %s" % (v(vD, 4), v(vA + 4, 4), v(vW + 4, 4), v(vD, 4)))

    def red_publish(nrows, tagv, mask, rnd, basepair, label, mid=None):
        a("    s_waitcnt lgkmcnt(0)")
        a("    s_barrier")
        a("    s_cmp_lg_u32 %s, 0" % s(sW))
        a("    s_cbranch_scc1 %s" % label)
        m = V.mark()
        r = V(16, 4)
        n = nrows // 4
        for i in range(n):
            a("    ds_read_b128 %s, %s offset:%d" % (v(r + 4 * i, 4), v(vRedR if n == 4 else vRedR8), 272 * i))
        if mid:
            mid()
        a("    s_waitcnt lgkmcnt(%d)" % (0 if prof else n - 2))
        a("    v_pk_add_f32 %s, %s, %s" % (v(r, 2), v(r, 2), v(r + 4, 2)))
        a("    v_pk_add_f32 %s, %s, %s" % (v(r + 2, 2), v(r + 2, 2), v(r + 6, 2)))
        if n == 4:
            a("    s_waitcnt lgkmcnt(0)")
            a("    v_pk_add_f32 %s, %s, %s" % (v(r + 8, 2), v(r + 8, 2), v(r + 12, 2)))
            a("    v_pk_add_f32 %s, %s, %s" % (v(r + 10, 2), v(r + 10, 2), v(r + 14, 2)))
            a("    v_pk_add_f32 %s, %s, %s" % (v(r, 2), v(r, 2), v(r + 8, 2)))
            a("    v_pk_add_f32 %s, %s, %s" % (v(r + 2, 2), v(r + 2, 2), v(r + 10, 2)))
        for sh in (4, 8):
            for i in range(4):
                a("    v_add_f32_dpp %s, %s, %s row_ror:%d %s" % (v(r + i), v(r + i), v(r + i), sh, DPP))
        for i in range(4):
            if rnd:
                a("    v_add_u32 %s, 0x%x, %s" % (v(r + i), rnd, v(r + i)))
        setexec(0x000F000F, 0x000F000F)
        for i in range(4):
            a("    v_and_or_b32 %s, %s, %s, %s" % (v(r + i), v(r + i), s(mask), v(tagv)))
        a("    global_store_dwordx4 %s, %s, %s%s" % (v(vC4), v(r, 4), s(basepair, 2), "" if (nrows == 16 and opt.get("xs", 0) & 4) else " sc1"))
        setexec(0xFFFFFFFF, 0xFFFFFFFF)
        V.release(m)

    a("    s_mul_i32 %s, %s, %d" % (s(sT0), s(sH), 4 * ST1))
    a("    s_add_u32 %s, %s, 0x%x" % (s(sT0), s(sT0), S1))
    a("    s_lshr_b32 %s, %s, 3" % (s(sT1), s(sJ)))
    a("    s_mul_i32 %s, %s, %d" % (s(sT1), s(sT1), ST1 - 2048))
    a("    s_add_u32 %s, %s, %s" % (s(sT2), s(sT1), s(sT0)))
    a("    s_lshl_b32 %s, %s, 8" % (s(sT1), s(sJ)))
    a("    s_add_u32 %s, %s, %s" % (s(sT1), s(sT1), s(sT2)))
    base(sB0, sWS, s(sT1))
    a("    s_lshl_b32 %s, %s, 8" % (s(sT1), s(sW)))
    a("    s_add_u32 %s, %s, %s" % (s(sT1), s(sT1), s(sT0)))
    base(sB1, sWS, s(sT1))
    V.release(mk)
    if E0:
        a("    s_cmp_lg_u32 %s, 0" % s(sW))
        a("    s_cbranch_scc1 L_NOE2")
        a("    s_waitcnt lgkmcnt(0)")
        tags()
        a("    v_mov_b32 %s, 0x%x" % (v(vT), LEP))
        a("    v_mov_b32 %s, %s" % (v(vT + 1), s(sE)))
        a("    ds_write_b32 %s, %s" % (v(vT), v(vT + 1)))
        if opt.get("pg", 0):
            a("    v_mov_b32 %s, 0" % v(vT + 4))
            a("    ds_write_b32 %s, %s offset:%d" % (v(vT), v(vT + 4), LRM - LEP))
        a("    v_lshlrev_b32 %s, 2, v0" % v(vT + 2))
        a("    v_mov_b32 %s, 0xff800000" % v(vT + 3))
        a("    v_and_b32 %s, 0x7c, %s" % (v(vT + 2), v(vT + 2)))
        a("    v_add_u32 %s, 0x%x, %s" % (v(vT + 2), LMX, v(vT + 2)))
        a("    ds_write_b32 %s, %s" % (v(vT + 2), v(vT + 3)))
        a("L_NOE2:")
    setexec(0x00FF00FF, 0xFF00FF00)
    a("    ds_write_b128 %s, %s" % (v(vRedW), v(vD, 4)))
    setexec(0xFFFFFFFF, 0xFFFFFFFF)
    vQ = V(4, 4)
    vQ2 = V(4, 4)
    QP1 = opt.get("qp1", 0)
    K3F = opt.get("k3f", 0)

    def k3first():
        waitfor("K0")
        sload(5)
    keep0 = list(vm)
    red_publish(16, vTag8, sM8, 0x80, sB0, "L_QPUB", mid=k3first if K3F else None)

    def qload():
        a("    global_load_dwordx4 %s, %s, %s sc1" % (v(vQ, 4), v(vQo), s(sB1, 2)))

    extra = {}
    CW = opt.get("cw", 0)
    C3 = opt.get("c3", 0)

    def run_sched(text):
        for tok in text.split():
            if tok[0] == "|":
                waitfor(tok[1:])
            elif tok == "q":
                qload()
                vm.append("q")
            elif tok in stream:
                sload(stream.index(tok))
            else:
                extra[tok]()
                if len(tok) > 1:
                    vm.append(tok)

    def paced(gete=False):
        stamp(3)
        assert WIN == 3
        if "K3" not in vm:
            run_sched(["|K0 K3", "|K0 K3 V0", "K3 |K0 V0", "|K1 K3", "|K0 K3"][CW])
        if gete:
            a("    s_waitcnt lgkmcnt(0)")
            a("    v_readfirstlane_b32 %s, %s" % (s(sE), v(vT + 7)))
            a("    s_nop 0")
            tags()
        attn_addresses()
        run_sched(["|K1 V0", "|K1 V1", "|K1 V1", "|K2 V0", "|K2 V0"][CW])
        if C3:
            run_sched("|K2 V1")
    keep = keep0
    vm.append("qstore")
    DQ = opt.get("dq", 0)
    sQF = 88
    if DQ:
        a("    s_and_b32 %s, %s, 7" % (s(sT0), s(sJ)))
        a("    s_lshl3_add_u32 %s, %s, %s" % (s(sT0), s(sH), s(sT0)))
        a("    s_lshl_b32 %s, %s, 5" % (s(sT0), s(sT0)))
        a("    s_lshr_b32 %s, %s, 3" % (s(sT1), s(sJ)))
        a("    s_add_u32 %s, %s, %s" % (s(sT0), s(sT0), s(sT1)))
        a("    s_lshl_b32 %s, %s, 2" % (s(sT0), s(sT0)))
        a("    s_add_u32 %s, %s, 0x%x" % (s(sT0), s(sT0), SQF))
        setexec(1, 0)
        a("    v_mov_b32 %s, %s" % (v(vT), s(sT0)))
        a("    v_mov_b32 %s, %s" % (v(vT + 1), s(sT32)))
        a("    global_store_dword %s, %s, %s sc1" % (v(vT), v(vT + 1), s(sWS, 2)))
        setexec(0xFFFFFFFF, 0xFFFFFFFF)
        vm.append("qflag")
    paced()
    a("    s_branch L_PACED")
    a("L_QPUB:")
    vm[:] = keep
    if E0:
        a("    v_mov_b32 %s, 0x%x" % (v(vT + 7), LEP))
        a("    ds_read_b32 %s, %s" % (v(vT + 7), v(vT + 7)))
    paced(E0)
    a("L_PACED:")
    if DQ:
        a("    s_lshl3_add_u32 %s, %s, %s" % (s(sT0), s(sH), s(sW)))
        a("    s_lshl_b32 %s, %s, 7" % (s(sT0), s(sT0)))
        a("    s_add_u32 %s, %s, 0x%x" % (s(sT0), s(sT0), SQF))
        a("    s_load_dwordx4 %s, %s, %s glc" % (s(sQF, 4), s(sWS, 2), s(sT0)))
        a("    s_mov_b32 %s, %s" % (s(sRep), s(sT32)))
        a("    s_mov_b32 %s, %s" % (s(sRep + 1), s(sT32)))
    common = list(vm)
    SCHED = {
        "s": ["|K2 V1 |K3 V2 q |V0 V3"],
        "w": ["|K2 V1 |K3 V2 q |V0 V3 A |V1 T0 B",
              "|K2 V1 |K3 V2 q |V0 V3 A T0 |V1 T1 B",
              "|K2 V1 |K3 V2 q V3 A |V0 T0 |V1 T1 B",
              "|K2 V1 |K3 V2 q V3 A |V0 T0 |V1 T1 T2 B",
              "|K2 V1 |K3 V2 q |V0 V3 A B",
              "|K2 V1 V2 |K3 V3 q A |V0 T0 |V1 T1 B |V2 T2",
              "|K2 V1 |K3 V2 q |V0 V3 A T0 |V1 T1",
              "|K2 V1 |K3 V2 q |V0 V3 A |V1 T0"],
        "f": ["|K2 V1 |K3 V2 q |V0 V3 A",
              "|K2 V1 |K3 V2 q |V0 V3 A |V1 D0 D1",
              "|K2 V1 |K3 V2 q |V0 V3 A D0 |V1 D1",
              "|K2 V1 |K3 V2 q |V0 V3 A |V1 D0",
              "|K2 V1 |K3 V2 q |V0 V3 A |V1 Qa"],
    }
    if C3:
        SCHED = {k_: [x_.replace("|K2 V1 ", "", 1) for x_ in v_] for k_, v_ in SCHED.items()}
    if opt.get("pt", 0):
        def pretouch():
            setexec(0xFFFF, 0)
            a("    global_load_dwordx4 %s, %s, %s%s" % (v(vQ2, 4), v(vAo), s(sBo, 2), ["", "", " nt"][opt["pt"]]))
            setexec(0xFFFFFFFF, 0xFFFFFFFF)
        extra["PT"] = pretouch
        SCHED = {k_: [x_.replace("|V0 V3", "|V0 V3 PT") for x_ in v_] for k_, v_ in SCHED.items()}
    QV = opt.get("qv", 0)
    if QV:
        old_, new_ = "|K2 V1 |K3 V2 q |V0 V3", ["", "|K2 V1 |K3 q V2 |V0 V3", "|K2 V1 |K3 V2 |V0 q V3", "|K2 V1 |K3 V2 |V0 V3 q",
                                                 "|K2 V1 |K3 q V2 V3", "|K3 q V1 V2 V3", "|K2 V1 |K3 q V2 V3 |V0"][QV]
        SCHED = {k_: [x_.replace(old_, new_) for x_ in v_] for k_, v_ in SCHED.items()}
    if CW >= 3:
        hd = ["|K3 q V1 V2 |V0 V3", "|K3 V1 q V2 |V0 V3", "|K3 V1 q |V0 V2 V3", "|K3 V1 V2 q |V0 V3"][opt.get("cv", 0)]
        SCHED = {k_: [x_.replace("|K2 V1 |K3 V2 q |V0 V3", hd) for x_ in v_] for k_, v_ in SCHED.items()}
    elif CW:
        SCHED = {
            "s": ["|K2 V2 |K3 V3 q"],
            "w": ["|K2 V2 |K3 V3 q A |V0 T0 |V1 T1 B |V2 T2",
                  "|K2 V2 |K3 V3 q A |V0 T0 |V1 T1 B |V2 T2 |V3 T3",
                  "|K2 V2 |K3 V3 q A |V1 T0 B |V2 T1",
                  "|K2 V2 |K3 V3 A |V0 q T0 |V1 T1 B |V2 T2"],
            "f": ["|K2 V2 |K3 V3 q A", "|K2 V2 |K3 V3 q A |V0 D0 |V1 D1", "|K2 V2 |K3 V3 A |V0 q D0 |V1 D1"],
        }
        if opt.get("ss"):
            SCHED["s"] = ["|K2 V2 |K3 V3 |V0 q"]
    a("    s_cmp_lt_u32 %s, 16" % s(sJ))
    a("    s_cbranch_scc1 L_ROLE_WO")
    a("    s_cmp_lt_u32 %s, 4" % s(sH))
    a("    s_cbranch_scc1 L_ROLE_FFN")
    a("    s_cmp_lt_u32 %s, 28" % s(sJ))
    a("    s_cbranch_scc1 L_ROLE_FFN")

    def attention(sched, t0=(), t1=(), w0extra=None):
        m0 = V.mark()
        vKa = V(16, 4)
        vQb = V(16, 4)
        vPb = vQb
        vVa = vKa
        vS = V(4, 4)
        vMx, vMl = V(), V(4, 4)
        def kreads():
            for i in range(4):
                a("    ds_read_b128 %s, %s" % (v(vKa + 4 * i, 4), v(vAk + i)))

        vm[:] = common
        if DQ:
            uid[0] += 1
            ud = uid[0]
            head = "|K2 V1 "
            assert sched.startswith(head + "|K3 V2 q |V0 V3")
            run_sched(head)
            if DQ == 2:
                a("    s_getreg_b32 %s, hwreg(HW_REG_IB_STS, 8, 4)" % s(sT0))
                a("    s_cmp_lg_u32 %s, 0" % s(sT0))
                a("    s_cbranch_scc1 L_QLATE%d" % ud)
            a("    s_waitcnt lgkmcnt(0)")
            a("    s_xor_b64 %s, %s, %s" % (s(sQF, 2), s(sQF, 2), s(sRep, 2)))
            a("    s_xor_b64 %s, %s, %s" % (s(sQF + 2, 2), s(sQF + 2, 2), s(sRep, 2)))
            a("    s_or_b64 %s, %s, %s" % (s(sQF, 2), s(sQF, 2), s(sQF + 2, 2)))
            a("    s_cbranch_scc1 L_QLATE%d" % ud)
            mid = list(vm)
            rest_ = sched[len(head + "|K3 V2 q |V0 V3"):]
            run_sched("q |K3 V2 |V0 V3 " + " ".join(t for t in rest_.split() if t[0] != "|"))
            kreads()
            waitfor("q")
            early = [t for t in vm if t != "q"]
            a("    s_branch L_QJOIN%d" % ud)
            a("L_QLATE%d:" % ud)
            vm[:] = mid
            run_sched(sched[len(head):])
            kreads()
            waitfor("q")
            assert early == [t for t in vm if t != "q"]
            a("L_QJOIN%d:" % ud)
            NVA = 63
        else:
            run_sched(sched)
            kreads()
            NVA = len(vm) - 1 - vm.index("q")
        ntail = len(vm) - 1 - vm.index("V3") + len(t0)
        tp = ()
        def qcheck():
            for k in range(4):
                a("    v_xor_b32 %s, %s, %s" % (v(vQ + k), s(sTag8), v(vQ + k)))
            a("    v_or3_b32 %s, %s, %s, %s" % (v(vT), v(vQ), v(vQ + 1), v(vQ + 2)))
            a("    v_or_b32 %s, %s, %s" % (v(vT), v(vT), v(vQ + 3)))
            a("    v_and_b32 %s, 0xff, %s" % (v(vT), v(vT)))
            a("    v_cmp_ne_u32 vcc, 0, %s" % v(vT))
        RDY = opt.get("rdy", 0)

        def rdyhint():
            uid[0] += 1
            a("    s_cmp_lg_u32 %s, 7" % s(sW))
            a("    s_cbranch_scc1 L_NORDY%d" % uid[0])
            setexec(1, 0)
            a("    v_mov_b32 %s, 0x%x" % (v(vG0), SRDY - S2ML))
            a("    v_mov_b32 %s, %s" % (v(vMx), s(sT32)))
            a("    global_store_dword %s, %s, %s sc1" % (v(vG0), v(vMx), s(sBml, 2)))
            setexec(0xFFFFFFFF, 0xFFFFFFFF)
            a("L_NORDY%d:" % uid[0])
        MB = opt.get("mb", 1)
        AMX = opt.get("amx", 1)
        if QP1:
            uid[0] += 1
            uq = uid[0]
            a("    s_waitcnt vmcnt(%d)" % (len(vm) - 1 - vm.index("q1") + len(tp)))
            qcheck()
            a("    s_cbranch_vccz L_QOK%d" % uq)
            a("    s_waitcnt vmcnt(%d)" % (NVA + len(tp)))
            for i in range(0, 4, 2):
                a("    v_mov_b64 %s, %s" % (v(vQ + i, 2), v(vQ2 + i, 2)))
            poll(qload, qcheck, NVA + len(tp), cnt=15 if opt.get("astamps") else None)
            a("L_QOK%d:" % uq)
        else:
            poll(qload, qcheck, NVA + len(tp), cnt=15 if opt.get("astamps") else None)
        stamp(4)
        treduce4(vQ)
        a("    v_cvt_pk_bf16_f32 %s, %s, %s" % (v(vQ), v(vQ), v(vQ)))
        a("    ds_write_b16 %s, %s" % (v(vAqw), v(vQ)))
        a("    s_waitcnt lgkmcnt(0)")
        a("    s_barrier")
        for i in range(4):
            a("    ds_read_b128 %s, %s offset:%d" % (v(vQb + 4 * i, 4), v(vAq), 64 * i))
        T0P = opt.get("t0p", 1)
        if T0P == 0:
            for f in t0:
                f()
        for i in range(4):
            a("    s_waitcnt lgkmcnt(%d)" % (0 if prof else 3 - i))
            a("    v_mfma_f32_16x16x32_bf16 %s, %s, %s, %s" %
              (v(vD, 4), v(vKa + 4 * i, 4), v(vQb + 4 * i, 4), "0" if i == 0 else v(vD, 4)))
        if T0P == 1:
            for f in t0:
                f()
        a("    v_cvt_pk_bf16_f32 %s, %s, %s" % (v(vT), v(vD), v(vD + 1)))
        a("    v_cvt_pk_bf16_f32 %s, %s, %s" % (v(vT + 1), v(vD + 2), v(vD + 3)))
        for rnd in range(2):
            for i in range(2):
                a("    v_lshlrev_b32 %s, 16, %s" % (v(vS + 2 * i), v(vT + i)))
                a("    v_and_b32 %s, 0xffff0000, %s" % (v(vS + 2 * i + 1), v(vT + i)))
            if rnd == 0:
                for i in (0, 2):
                    a("    v_pk_mul_f32 %s, %s, %s op_sel_hi:[1,0]" % (v(vS + i, 2), v(vS + i, 2), s(sScale, 2)))
                a("    v_cvt_pk_bf16_f32 %s, %s, %s" % (v(vT), v(vS), v(vS + 1)))
                a("    v_cvt_pk_bf16_f32 %s, %s, %s" % (v(vT + 1), v(vS + 2), v(vS + 3)))
        a("    v_max3_f32 %s, %s, %s, %s" % (v(vMx), v(vS), v(vS + 1), v(vS + 2)))
        a("    v_max_f32 %s, %s, %s" % (v(vMx), v(vMx), v(vS + 3)))
        if AMX:
            setexec(0x000F000F, 0x000F000F)
            a("    ds_max_f32 %s, %s" % (v(vAmr), v(vMx)))
        else:
            for sw in ("16", "32"):
                a("    v_mov_b32 %s, %s" % (v(vT), v(vMx)))
                a("    v_permlane%s_swap_b32 %s, %s" % (sw, v(vMx), v(vT)))
                a("    v_max_f32 %s, %s, %s" % (v(vMx), v(vMx), v(vT)))
            setexec(0xF, 0)
            a("    ds_write_b32 %s, %s" % (v(vAmw), v(vMx)))
        setexec(0xFFFFFFFF, 0xFFFFFFFF)
        if T0P == 2:
            for f in t0:
                f()
        VB3 = opt.get("vb3", 0)

        def vreads(t):
            for hh in range(2):
                a("    ds_read_b64_tr_b16 %s, %s offset:%d" % (v(vVa + 4 * t + 2 * hh, 2), v(vAv), 8192 * t + 4096 * hh))
        if VB3:
            assert AMX and MB
            a("    s_waitcnt vmcnt(%d) lgkmcnt(0)" % ntail)
            for f in t1:
                f()
        else:
            a("    s_waitcnt lgkmcnt(0)")
        if RDY == 1:
            rdyhint()
        a("    s_barrier")
        if AMX:
            a("    ds_read_b32 %s, %s" % (v(vMl), v(vAmr)))
            if RDY == 2:
                rdyhint()
            if VB3:
                for t in range(4):
                    vreads(t)
            a("    s_waitcnt lgkmcnt(%d)" % (8 if VB3 and not prof else 0))
        else:
            a("    ds_read_b128 %s, %s" % (v(vT, 4), v(vAmr)))
            a("    ds_read_b128 %s, %s offset:16" % (v(vT + 4, 4), v(vAmr)))
            a("    s_waitcnt lgkmcnt(0)")
            a("    v_max3_f32 %s, %s, %s, %s" % (v(vT), v(vT), v(vT + 1), v(vT + 2)))
            a("    v_max3_f32 %s, %s, %s, %s" % (v(vT + 4), v(vT + 4), v(vT + 5), v(vT + 6)))
            a("    v_max3_f32 %s, %s, %s, %s" % (v(vT), v(vT), v(vT + 3), v(vT + 7)))
            a("    v_max_f32 %s, %s, %s" % (v(vMl), v(vT), v(vT + 4)))
        for i in (0, 2):
            a("    v_pk_add_f32 %s, %s, %s op_sel_hi:[1,0] neg_lo:[0,1] neg_hi:[0,1]" % (v(vS + i, 2), v(vS + i, 2), v(vMl, 2)))
        for i in (0, 2):
            a("    v_pk_mul_f32 %s, %s, %s op_sel:[0,1] op_sel_hi:[1,1]" % (v(vS + i, 2), v(vS + i, 2), s(sScale, 2)))
        for i in range(4):
            a("    v_exp_f32 %s, %s" % (v(vS + i), v(vS + i)))
        a("    v_cvt_pk_bf16_f32 %s, %s, %s" % (v(vT + 2), v(vS), v(vS + 1)))
        a("    v_cvt_pk_bf16_f32 %s, %s, %s" % (v(vT + 3), v(vS + 2), v(vS + 3)))
        setexec(0x000F000F, 0x000F000F)
        a("    ds_write_b64 %s, %s" % (v(vApw), v(vT + 2, 2)))
        a("    v_pk_add_f32 %s, %s, %s" % (v(vT, 2), v(vS, 2), v(vS + 2, 2)))
        a("    v_add_f32 %s, %s, %s" % (v(vT), v(vT), v(vT + 1)))
        a("    ds_write_b32 %s, %s" % (v(vAlw), v(vT)))
        setexec(0xFFFFFFFF, 0xFFFFFFFF)
        if MB and not VB3:
            a("    s_waitcnt vmcnt(%d) lgkmcnt(0)" % ntail)
            for f in t1:
                f()
        else:
            a("    s_waitcnt lgkmcnt(0)")
        a("    s_barrier")
        if opt.get("astamps"):
            stamp(13)
        if RDY == 3:
            rdyhint()
        uid[0] += 1
        u = uid[0]

        def preads():
            for i in range(4):
                a("    ds_read_b128 %s, %s offset:%d" % (v(vPb + 4 * i, 4), v(vApr), 64 * i))

        def mlpub():
            a("    v_add_f32 %s, %s, %s" % (v(vMl + 1), v(vT), v(vT + 1)))
            allred_hi(vMl + 1, vT, "add")
            setexec(0xF, 0)
            a("    global_store_dwordx4 %s, %s, %s%s" % (v(vAo), v(vMl, 4), s(sBml, 2), XS))
            setexec(0xFFFFFFFF, 0xFFFFFFFF)

        SB2 = opt.get("sb2", 0)

        def sflag(t=vT):
            setexec((1 << R2) - 1, 0)
            a("    v_lshlrev_b32 %s, %d, v0" % (v(t), RS2))
            a("    global_store_byte %s, %s, %s%s" % (v(t), v(vTag8), s(sBfl, 2), "" if opt.get("xs", 0) & 2 else " sc1"))
            setexec(0xFFFFFFFF, 0xFFFFFFFF)

        def pv(first):
            for t in range(4):
                a("    s_waitcnt lgkmcnt(%d)" % (0 if prof else first[t]))
                a("    v_mfma_f32_16x16x32_bf16 %s, %s, %s, %s" %
                  (v(vD, 4), v(vPb + 4 * t, 4), v(vVa + 4 * t, 4), "0" if t == 0 else v(vD, 4)))
        if MB:
            a("    ds_read_b64 %s, %s" % (v(vT, 2), v(vAlr)))
            for t in range(4):
                a("    ds_read_b128 %s, %s offset:%d" % (v(vPb + 4 * t, 4), v(vApr), 64 * t))
                if not VB3:
                    vreads(t)
            a("    v_mov_b32 %s, %s" % (v(vMl + 2), s(sT32)))
            a("    v_mov_b32 %s, %s" % (v(vMl + 3), s(sT32)))
            a("    s_cmp_lg_u32 %s, 0" % s(sW))
            a("    s_cbranch_scc1 L_NOML%d" % u)
            a("    s_waitcnt lgkmcnt(%d)" % (0 if prof else (4 if VB3 else 12)))
            mlpub()
            a("L_NOML%d:" % u)
            pv([3, 2, 1, 0] if VB3 else [9, 6, 3, 0])
        else:
            preads()
            a("    s_cmp_lg_u32 %s, 0" % s(sW))
            a("    s_cbranch_scc1 L_NOML%d" % u)
            a("    ds_read_b64 %s, %s" % (v(vT, 2), v(vAlr)))
            if SB2 == 3:
                sflag(vT + 2)
            if SB2 == 4:
                a("    s_waitcnt vmcnt(%d)" % ntail)
                sflag(vT + 2)
            a("    v_mov_b32 %s, %s" % (v(vMl + 2), s(sT32)))
            a("    v_mov_b32 %s, %s" % (v(vMl + 3), s(sT32)))
            a("    s_waitcnt lgkmcnt(0)")
            mlpub()
            nx = w0extra() if w0extra else 0
            if SB2 in (3, 4):
                nx += 1
            if SB2 == 1:
                sflag()
                nx += 1
            a("    s_waitcnt vmcnt(%d)" % (1 + nx + ntail))
            if SB2 == 2:
                sflag()
            a("    s_branch L_MLD%d" % u)
            a("L_NOML%d:" % u)
            a("    s_waitcnt vmcnt(%d)" % ntail)
            a("L_MLD%d:" % u)
            if opt.get("astamps"):
                stamp(14)
            for f in t1:
                f()
            a("    s_barrier")
            stamp(5)
            for t in range(4):
                vreads(t)
            pv([6, 4, 2, 0])
        setexec(0xFFFF, 0)
        if OCLR:
            a("    v_min_u32 %s, -2, %s" % (v(vD), v(vD)))
        else:
            for i in range(4):
                a("    v_and_or_b32 %s, %s, %s, %s" % (v(vD + i), v(vD + i), s(sM10), v(vTag10)))
        a("    global_store_dwordx4 %s, %s, %s%s" % (v(vAo), v(vD, 4), s(sBo, 2), XS))
        setexec(0xFFFFFFFF, 0xFFFFFFFF)
        stamp(6)
        if opt.get("ackstamp") and not w0extra:
            a("    s_waitcnt vmcnt(0)")
            stamp(1)
        V.release(m0)

    attention(SCHED["s"][0])
    finish()

    a("L_ROLE_WO:")
    mrole = V.mark()
    sD0 = sU
    vWo = V(4)

    def wo_setup():
        a("    s_lshr_b32 %s, %s, 3" % (s(sT1), s(sJ)))
        a("    s_lshl_b32 %s, %s, 3" % (s(sT1), s(sT1)))
        a("    s_add_u32 %s, %s, %s" % (s(sT1), s(sT1), s(sW)))
        a("    s_lshl_b32 %s, %s, 3" % (s(sD0), s(sT1)))
        a("    s_lshl_b32 %s, %s, 9" % (s(sT0), s(sH)))
        a("    s_add_u32 %s, %s, %s" % (s(sT0), s(sT0), s(sD0)))
        a("    s_lshl_b32 %s, %s, 10" % (s(sT0), s(sT0)))
        a("    s_and_b32 %s, %s, 7" % (s(sT1), s(sJ)))
        a("    s_lshl_b32 %s, %s, 7" % (s(sT1), s(sT1)))
        a("    s_add_u32 %s, %s, %s" % (s(sT0), s(sT0), s(sT1)))
        base(sB4, sWO, s(sT0))
        a("    v_lshlrev_b32 %s, 4, %s" % (v(vWo), v(vL7)))
        a("    v_lshl_or_b32 %s, %s, 10, %s" % (v(vWo), v(vL3), v(vWo)))
        for i in (1, 2, 3):
            a("    v_add_u32 %s, 0x%x, %s" % (v(vWo + i), i * (131072 - 1024), v(vWo)))
        a("    s_lshl_b32 %s, %s, 12" % (s(sFI), s(sW)))
        a("    s_add_u32 %s, %s, 0x%x" % (s(sFI), s(sFI), LG))

    def woload(i):
        def f():
            if i == 0:
                a("    s_mov_b32 m0, %s" % s(sFI))
            a("    global_load_lds_dwordx4 %s, %s offset:%d nt" % (v(vWo + i), s(sB4, 2), 1024 * i))
        return f
    vOo = V(4)
    vAtr, vAw, vArw = [V() for _ in range(3)]
    vO = V(16, 4)
    vWt = V(16, 4)
    vML = V(8, 4)
    vDt = V(16, 4)

    def wo_addresses():
        a("    s_lshl_b32 %s, %s, 11" % (s(sT1), s(sH)))
        a("    s_add_u32 %s, %s, 0x%x" % (s(sT1), s(sT1), S2ML))
        base(sB0, sWS, s(sT1))
        a("    s_mul_i32 %s, %s, %d" % (s(sT1), s(sH), 32 * ST2))
        a("    s_lshl_b32 %s, %s, 4" % (s(sT0), s(sD0)))
        a("    s_add_u32 %s, %s, %s" % (s(sT1), s(sT1), s(sT0)))
        a("    s_add_u32 %s, %s, 0x%x" % (s(sT1), s(sT1), S2O))
        base(sB5, sWS, s(sT1))
        a("    v_lshlrev_b32 %s, 4, %s" % (v(vT), v(vL7)))
        a("    v_mul_u32_u24 %s, %d, %s" % (v(vOo), ST2, v(vL3)))
        a("    v_add_u32 %s, %s, %s" % (v(vOo), v(vOo), v(vT)))
        for i in (1, 2, 3):
            a("    v_add_u32 %s, 0x%x, %s" % (v(vOo + i), 8 * ST2 * i, v(vOo)))
        a("    s_lshr_b32 %s, %s, 3" % (s(sT1), s(sJ)))
        a("    s_lshl1_add_u32 %s, %s, %s" % (s(sT0), s(sH), s(sT1)))
        a("    s_mul_i32 %s, %s, %d" % (s(sT0), s(sT0), ST3))
        a("    s_and_b32 %s, %s, 7" % (s(sT1), s(sJ)))
        a("    s_lshl_b32 %s, %s, 8" % (s(sT1), s(sT1)))
        a("    s_add_u32 %s, %s, %s" % (s(sT0), s(sT0), s(sT1)))
        a("    s_add_u32 %s, %s, 0x%x" % (s(sT0), s(sT0), S3))
        base(sB2, sWS, s(sT0))
        a("    v_lshrrev_b32 %s, 2, %s" % (v(vT), v(vJ)))
        a("    v_lshl_add_u32 %s, %s, 3, %s" % (v(vT), v(vG), v(vT)))
        a("    v_lshlrev_b32 %s, 7, %s" % (v(vT), v(vT)))
        a("    v_and_b32 %s, 3, v0" % v(vT + 1))
        a("    v_lshl_add_u32 %s, %s, 3, %s" % (v(vT), v(vT + 1), v(vT)))
        a("    v_add_u32 %s, %s, %s" % (v(vAtr), s(sFI), v(vT)))
        a("    v_lshlrev_b32 %s, 4, %s" % (v(vT), v(vL3)))
        a("    v_add_u32 %s, 0x%x, %s" % (v(vAw), LWT, v(vT)))
        a("    s_mul_i32 %s, %s, 272" % (s(sT0), s(sW)))
        a("    s_add_u32 %s, %s, 0x%x" % (s(sT0), s(sT0), LRED))
        a("    v_lshl_add_u32 %s, %s, 4, %s" % (v(vArw), v(vG), s(sT0)))
        per = 8 // P3
        a("    s_and_b32 %s, %s, %d" % (s(sT0), s(sH), per - 1))
        a("    s_lshl_b32 %s, %s, 2" % (s(sT0), s(sT0)))
        a("    s_lshr_b32 %s, %s, %d" % (s(sT1), s(sH), per.bit_length() - 1))
        a("    s_lshl_b32 %s, %s, 7" % (s(sT1), s(sT1)))
        a("    s_add_u32 %s, %s, %s" % (s(sT0), s(sT0), s(sT1)))
        a("    s_add_u32 %s, %s, 0x%x" % (s(sInb), s(sT0), SBELL))
        if opt.get("hn", 1) == 4:
            a("    s_lshr_b32 %s, %s, 2" % (s(sT0), s(sJ)))
            a("    s_add_u32 %s, %s, %s" % (s(sInb), s(sInb), s(sT0)))
    def bell():
        for i in range(2):
            a("    global_load_dwordx3 %s, %s, %s offset:%d%s" % (v(vML + 4 * i, 3), v(vAo), s(sB0, 2), 1024 * i, " nt" if opt.get("xl", 0) else " sc1"))

    def bellcheck():
        tagcheck([vML + 2, vML + 6], sT32, vT)
        a("    v_cmp_ne_u32 vcc, 0, %s" % v(vT))

    EB = opt.get("eb", 0)

    def earlybell():
        bell()
        return 2
    extra.update(A=wo_setup, B=wo_addresses, T0=woload(0), T1=woload(1), T2=woload(2), T3=woload(3))
    sw = SCHED["w"][opt.get("sw", 0)]
    rest = [i for i in range(4) if "T%d" % i not in sw.split()]
    WO2 = min(opt.get("wo2", 0), len(rest))
    late = rest[len(rest) - WO2:]
    rest = rest[:len(rest) - WO2]
    WO1 = min(opt.get("wo1", 0), len(rest))
    attention(sw, [woload(i) for i in rest[:len(rest) - WO1]], [woload(i) for i in rest[len(rest) - WO1:]],
              earlybell if EB else None)
    for i in late:
        woload(i)()
    if "B" not in sw.split():
        wo_addresses()

    def oloads():
        for i in range(4):
            a("    global_load_dwordx4 %s, %s, %s%s" % (v(vO + 4 * i, 4), v(vOo + i), s(sB5, 2), [" sc1", " nt", "", " sc0"][opt.get("xl", 0)]))

    def wtr():
        for t in range(4):
            for hh in range(2):
                a("    ds_read_b64_tr_b16 %s, %s offset:%d" % (v(vW + 4 * t + 2 * hh, 2), v(vAtr), 512 * hh + 32 * t))
    a("    s_cmp_eq_u32 %s, 0" % s(sW))
    a("    s_cbranch_scc1 L_BELL1")
    S2M = opt.get("s2mode", 0)
    if opt.get("sb2", 0):
        a("    s_barrier")
        oloads()
        a("    s_waitcnt vmcnt(4)")
        wtr()
    else:
        a("    s_waitcnt vmcnt(%d)" % (1 if EB else 0))
        stamp(12)
        wtr()
        a("    s_barrier")
        oloads()
    a("    s_branch L_BELL2")
    a("L_BELL1:")
    if opt.get("rdy", 0):
        a("    v_and_b32 %s, 31, v0" % v(vT + 1))
        a("    v_lshlrev_b32 %s, 6, %s" % (v(vT + 1), v(vT + 1)))
        a("    v_add_u32 %s, 0x%x, %s" % (v(vT + 1), SRDY - S2ML, v(vT + 1)))

        def rdy():
            a("    global_load_dword %s, %s, %s sc1" % (v(vT + 2), v(vT + 1), s(sB0, 2)))

        def rdycheck():
            a("    v_cmp_ne_u32 vcc, %s, %s" % (s(sT32), v(vT + 2)))
        setexec(0xFFFFFFFF, 0)
        rdy()
        poll(rdy, rdycheck, 0, cnt=13)
        a("    s_barrier")
        bell()
        oloads()
        stamp(11)
        wtr()
        poll(bell, bellcheck, 4)
    elif opt.get("sb2", 0):
        a("    s_mul_i32 %s, %s, 0x01010101" % (s(sRep), s(sTag8)))
        a("    s_mov_b32 %s, %s" % (s(sRep + 1), s(sRep)))
        a("    s_and_b32 %s, %s, %d" % (s(sT0), s(sJ), (R2 // 2 if opt.get("dp2", 0) else R2) - 1))
        a("    s_lshl4_add_u32 %s, %s, %s" % (s(sT0), s(sH), s(sT0)))
        a("    s_lshl_b32 %s, %s, %d" % (s(sT0), s(sT0), RS2))
        a("    s_add_u32 %s, %s, 0x%x" % (s(sT0), s(sT0), SRDY))
        stamp(12)
        if opt.get("dp2", 0):
            spoll2(s(sT0), (R2 // 2) << RS2, sRep, P2, sB1)
        else:
            spoll(sWS, s(sT0), sRep, P2)
        if prof:
            a("    s_mov_b32 %s, %s" % (s(sPROF + 26), s(sSpin)))
        a("    s_barrier")
        bell()
        oloads()
        stamp(11)
        poll(bell, bellcheck, 4, post=wtr)
    elif EB:
        assert WO1 == 0 and not opt.get("mb")
        poll(bell, bellcheck, 1, cnt=13)
        a("    s_barrier")
        oloads()
        wtr()
        stamp(11)
    else:
        bell()
        poll(bell, bellcheck, 0, cnt=13)
        a("    s_barrier")
        oloads()
        wtr()
        stamp(11)
    a("    v_max_f32 %s, %s, %s" % (v(vT + 1), v(vML), v(vML + 4)))
    allred_hi(vT + 1, vT, "max")
    for i in range(2):
        a("    v_sub_f32 %s, %s, %s" % (v(vML + 4 * i), v(vML + 4 * i), v(vT + 1)))
    for i in range(2):
        a("    v_mul_f32 %s, 0x3fb8aa3b, %s" % (v(vML + 4 * i), v(vML + 4 * i)))
    for i in range(2):
        a("    v_exp_f32 %s, %s" % (v(vML + 4 * i), v(vML + 4 * i)))
    a("    v_lshlrev_b32 %s, 2, v0" % v(vT + 2))
    a("    v_mul_f32 %s, %s, %s" % (v(vT + 1), v(vML), v(vML + 1)))
    a("    v_fmac_f32 %s, %s, %s" % (v(vT + 1), v(vML + 4), v(vML + 5)))
    allred_hi(vT + 1, vT, "add")
    a("    v_rcp_f32 %s, %s" % (v(vT + 1), v(vT + 1)))
    a("    v_add_u32 %s, 0x%x, %s" % (v(vT + 2), LWT, v(vT + 2)))
    for i in range(2):
        a("    v_mul_f32 %s, %s, %s" % (v(vML + 4 * i), v(vML + 4 * i), v(vT + 1)))
    for i in range(2):
        a("    ds_write_b32 %s, %s offset:%d" % (v(vT + 2), v(vML + 4 * i), 256 * i))
    a("    s_waitcnt lgkmcnt(0)")
    a("L_BELL2:")
    WB = opt.get("wbar", 0)

    def wreads():
        a("    s_barrier")
        for i in range(4):
            a("    ds_read_b128 %s, %s offset:%d" % (v(vWt + 4 * i, 4), v(vAw), 128 * i))

    wreads()

    def oacc(i):
        for r in (0, 2):
            if i == 0:
                a("    v_pk_mul_f32 %s, %s, %s" % (v(vT + r, 2), v(vO + r, 2), v(vWt + r, 2)))
            else:
                a("    v_pk_fma_f32 %s, %s, %s, %s" % (v(vT + r, 2), v(vO + 4 * i + r, 2), v(vWt + 4 * i + r, 2), v(vT + r, 2)))

    HN = opt.get("hn", 1)

    def s3hint():
        if HN == 1:
            a("    s_or_b32 %s, %s, %s" % (s(sT0), s(sJ), s(sW)))
        else:
            a("    s_and_b32 %s, %s, 3" % (s(sT0), s(sJ)))
            a("    s_or_b32 %s, %s, %s" % (s(sT0), s(sT0), s(sW)))
        a("    s_cbranch_scc1 L_NOHINT")
        setexec((1 << R3) - 1, 0)
        a("    v_lshl_add_u32 %s, v0, %d, %s" % (v(vG0), RS3, s(sInb)))
        if HN == 1:
            a("    v_mov_b32 %s, %s" % (v(vQo), s(sT32)))
            a("    global_store_dword %s, %s, %s sc1" % (v(vG0), v(vQo), s(sWS, 2)))
        else:
            a("    global_store_byte %s, %s, %s sc1" % (v(vG0), v(vTag8), s(sWS, 2)))
        setexec(0xFFFFFFFF, 0xFFFFFFFF)
        a("L_NOHINT:")
    HP = opt.get("hp", 0)

    def obefore():
        if HP == 1:
            a("    s_waitcnt vmcnt(3)")
            s3hint()
        a("    s_waitcnt lgkmcnt(0)")
    gather(oloads, [vO + 4 * i for i in range(4)], sTag10, 0x3ff, oacc, cnt=14, before=obefore)
    stamp(7)
    if HP == 0:
        s3hint()
    treduce4(vT)
    a("    v_add_f32_dpp %s, %s, %s row_ror:8 %s" % (v(vT), v(vT), v(vT), DPP))
    rowpack(vT, vT + 4, 4)
    for t in range(4):
        a("    v_mfma_f32_16x16x32_bf16 %s, %s, %s, 0" % (v(vDt + 4 * t, 4), v(vW + 4 * t, 4), v(vT + 4, 4)))
    if HP == 2:
        s3hint()
    setexec(0x00010001, 0x00010001)
    for t in range(4):
        a("    ds_write_b128 %s, %s offset:%d" % (v(vArw), v(vDt + 4 * t, 4), 64 * t))
    setexec(0xFFFFFFFF, 0xFFFFFFFF)
    red_publish(8, vTag10, sM10, 0, sB2, "L_FIN", mid=s3hint if HP == 3 else None)
    if HP == 4:
        s3hint()
    stamp(8)
    a("L_FIN:")
    if opt.get("wb", 0):
        a("    s_lshl3_add_u32 %s, %s, %s" % (s(sT0), s(sJ), s(sW)))
        a("    s_cmp_lg_u32 %s, 1" % s(sT0))
        a("    s_cbranch_scc1 L_FIN3")
        a("    buffer_wbl2 sc1")
        a("    s_waitcnt vmcnt(0)")
        a("L_FIN3:")
    finish()
    V.release(mrole)

    a("L_ROLE_FFN:")
    vGo = V()
    vDo = V(2)

    def quarter_prep(n, pair, m0reg):
        a("    s_add_u32 %s, %s, %d" % (s(sT0), s(sU), 0 if opt.get("fdiag") == 4 else n))
        a("    s_and_b32 %s, %s, 1" % (s(sT1), s(sT0)))
        a("    s_bfe_u32 %s, %s, 0x10001" % (s(sT0), s(sT0)))
        a("    s_lshl_b32 %s, %s, 1" % (s(sT2), s(sW)))
        a("    s_add_u32 %s, %s, %s" % (s(sT2), s(sT2), s(sT1)))
        a("    s_lshl_b32 %s, %s, 4" % (s(sT3), s(sT0)))
        a("    s_add_u32 %s, %s, %s" % (s(sT3), s(sT3), s(sT2)))
        a("    s_lshl_b32 %s, %s, 10" % (s(sT3), s(sT3)))
        a("    s_add_u32 %s, %s, 0x%x" % (s(m0reg), s(sT3), LG))
        a("    s_mul_i32 %s, %s, %d" % (s(sT2), s(sT2), 32 * 3584))
        a("    s_lshl_b32 %s, %s, 5" % (s(sT1), s(sFI)))
        a("    s_add_u32 %s, %s, %s" % (s(sT2), s(sT2), s(sT1)))
        a("    s_cmp_eq_u32 %s, 0" % s(sT0))
        a("    s_cselect_b64 %s, %s, %s" % (s(pair, 2), s(sWG, 2), s(sWU, 2)))
        base(pair, pair, s(sT2))
    QB = [(sK, sPC), (sVp, sPC + 1), (sWQ, sMean), (sWO, sVar)]

    def quarter(n):
        a("    s_mov_b32 m0, %s" % s(QB[n][1]))
        a("    global_load_lds_dwordx4 %s, %s%s" % (v(vGo), s(QB[n][0], 2),
          {0: " nt", 1: "" if n == 0 else " nt", 2: "", 3: " nt" if n == 0 else "", 4: " nt" if n == 0 else " sc1"}[opt.get("qpol", 0)]))

    def ffn_setup():
        a("    s_and_b32 %s, %s, 3" % (s(sU), s(sJ)))
        a("    s_min_u32 %s, %s, 4" % (s(sT0), s(sH)))
        a("    s_mul_i32 %s, %s, 3" % (s(sT1), s(sH)))
        a("    s_add_u32 %s, %s, %s" % (s(sT0), s(sT0), s(sT1)))
        a("    s_lshl_b32 %s, %s, 2" % (s(sT0), s(sT0)))
        a("    s_add_u32 %s, %s, %s" % (s(sT0), s(sT0), s(sJ)))
        a("    s_sub_u32 %s, %s, 16" % (s(sFI), s(sT0)))
        a("    v_lshrrev_b32 %s, 1, v0" % v(vT))
        a("    v_mul_u32_u24 %s, 3584, %s" % (v(vT), v(vT)))
        a("    v_and_b32 %s, 1, v0" % v(vT + 1))
        a("    v_lshl_add_u32 %s, %s, 4, %s" % (v(vGo), v(vT + 1), v(vT)))
        for n in range(4):
            quarter_prep(n, *QB[n])
        a("    s_lshl_b32 %s, %s, 14" % (s(sT0), s(sFI)))
        a("    s_lshl_b32 %s, %s, 7" % (s(sT1), s(sW)))
        a("    s_add_u32 %s, %s, %s" % (s(sT0), s(sT0), s(sT1)))
        base(sB5, sWD, s(sT0))
        a("    s_lshl_b32 %s, %s, 11" % (s(sT1), s(sW)))
        a("    s_add_u32 %s, %s, 0x%x" % (s(sInb), s(sT1), LD))
        a("    v_lshlrev_b32 %s, 4, %s" % (v(vDo), v(vL7)))
        a("    v_lshl_or_b32 %s, %s, 10, %s" % (v(vDo), v(vL3), v(vDo)))
        a("    v_add_u32 %s, 0x1c00, %s" % (v(vDo + 1), v(vDo)))

    def dload(i):
        def f():
            a("    s_mov_b32 m0, %s" % s(sInb))
            a("    global_load_lds_dwordx4 %s, %s offset:%d nt" % (v(vDo + i), s(sB5, 2), 1024 * i))
        return f
    def qhalf(lo, hi):
        def f():
            setexec(lo, hi)
            quarter(0)
            setexec(0xFFFFFFFF, 0xFFFFFFFF)
        return f
    L = dict(D0=dload(0), D1=dload(1), Q0=lambda: quarter(0), Q1=lambda: quarter(1), Q2=lambda: quarter(2), Q3=lambda: quarter(3))
    L2 = dict(Qa=qhalf(0xFFFFFFFF, 0), Qb=qhalf(0, 0xFFFFFFFF), Qc=qhalf(0xFFFF, 0), Qd=qhalf(0xFFFF0000, 0xFFFFFFFF))
    extra.update(A=ffn_setup, **L)
    extra.update(L2)
    sf = SCHED["f"][opt.get("sf", 0)]
    FT = [("Q0", "Q1 Q2 Q3 b D0 D1"), ("Q0", "Q1 Q2 Q3"), ("", "Q0 b Q1 Q2 Q3"), ("D0 D1", "Q0 b Q1 Q2 Q3"),
          ("", "Q0 D1 b Q1 Q2 Q3"), ("", "Q0 D0 D1 b Q1 Q2 Q3"), ("D1", "Q0 b Q1 Q2 Q3"),
          ("Qa", "Qb b Q1 Q2 Q3"), ("Qc", "Qd b Q1 Q2 Q3"), ("Qa", "Qb D0 D1 b Q1 Q2 Q3"), ("Qa", "Qb b Q1 Q2 Q3 b D0 D1"),
          ("Qb", "D0 D1 b Q1 Q2 Q3"), ("Qb", "Q1 Q2 Q3 b D0 D1"),
          ("Qa", "D0 D1 b Q1 Q2 Q3", "Qb"), ("Qa", "Q1 Q2 Q3 b D0 D1", "Qb"), ("Qa", "D1 b Q1 Q2 Q3", "Qb"), ("Qa", "Q1 Q2 Q3", "Qb"),
          ("", "Qb b Q1 Q2 Q3", "Qa"), ("Qc", "Q1 Q2 Q3", "Qd")][opt.get("ft", 0)]
    FT = FT + ("",) * (3 - len(FT))
    allf = (sf + " " + FT[0] + " " + FT[1] + " " + FT[2]).replace("Qb", "Q0").replace("Qd", "Q0").split()
    assert sorted(t for t in allf if t in L) == sorted(L), allf
    L.update(L2)
    attention(sf, [L[t] for t in FT[0].split()], [L[t] for t in FT[2].split()])
    if opt.get("fack", 0):
        a("    s_waitcnt vmcnt(0)")
    a("    s_barrier")
    for t in FT[1].split():
        if t == "b":
            a("    s_barrier")
        else:
            L[t]()
    a("    s_lshl_b32 %s, %s, 11" % (s(sT1), s(sW)))
    stamp(11)
    vXc = V()
    vHs = V(16, 4)
    vHo = V(4)
    vWg = V(16, 4)
    vWd = V(8, 4)
    P4 = opt.get("p4", 0)
    vWd2 = V(8, 4)
    vDv = V(4, 4)
    vAy2 = V()
    vHb = V(8, 4)
    vDu = V(4, 4)
    vCs = V(4, 4)
    vMt = V(4)
    vB = V(8, 4)
    vAgw, vAgr, vAsw, vAsr, vAy, vHr = [V() for _ in range(6)]
    a("    s_lshl_b32 %s, %s, 7" % (s(sT0), s(sW)))
    base(sB0, sX, s(sT0))
    a("    v_lshl_add_u32 %s, %s, 2, %s" % (v(vT + 2), v(vJ), v(vG)))
    a("    v_lshlrev_b32 %s, 1, %s" % (v(vT + 2), v(vT + 2)))
    a("    global_load_ushort %s, %s, %s" % (v(vXc), v(vT + 2), s(sB0, 2)))
    a("    global_load_ushort %s, %s, %s" % (v(vHr), v(vT + 2), s(sOUT, 2)))
    a("    s_add_u32 %s, %s, 0x%x" % (s(sT2), s(sT0), LGP))
    a("    v_lshl_add_u32 %s, %s, 4, %s" % (v(vAgw), v(vG), s(sT2)))
    a("    v_lshrrev_b32 %s, 3, %s" % (v(vT + 2), v(vJ)))
    a("    v_lshl_add_u32 %s, %s, 1, %s" % (v(vT + 2), v(vL7), v(vT + 2)))
    a("    v_lshlrev_b32 %s, 6, %s" % (v(vT + 2), v(vT + 2)))
    a("    v_lshl_add_u32 %s, %s, 4, %s" % (v(vT + 2), v(vG), v(vT + 2)))
    a("    v_add_u32 %s, 0x%x, %s" % (v(vAgr), LGP, v(vT + 2)))
    a("    s_lshl_b32 %s, %s, 3" % (s(sT2), s(sW)))
    a("    s_add_u32 %s, %s, 0x%x" % (s(sT2), s(sT2), LST))
    a("    v_mov_b32 %s, %s" % (v(vAsw), s(sT2)))
    a("    v_lshlrev_b32 %s, 3, %s" % (v(vT + 2), v(vL7)))
    a("    v_add_u32 %s, 0x%x, %s" % (v(vAsr), LST, v(vT + 2)))
    for t in range(4):
        a("    v_cmp_eq_u32 vcc, %d, %s" % (t, v(vJ)))
        a("    v_cndmask_b32 %s, 0, -1, vcc" % v(vMt + t))
    a("    s_lshl_b32 %s, %s, 8" % (s(sT0), s(sW)))
    a("    s_add_u32 %s, %s, 0x%x" % (s(sT0), s(sT0), S3))
    base(sB1, sWS, s(sT0))
    a("    v_lshlrev_b32 %s, 4, %s" % (v(vT + 2), v(vJ)))
    a("    v_mul_u32_u24 %s, %d, %s" % (v(vHo), ST3, v(vG)))
    a("    v_add_u32 %s, %s, %s" % (v(vHo), v(vHo), v(vT + 2)))
    for i in (1, 2, 3):
        a("    v_add_u32 %s, 0x%x, %s" % (v(vHo + i), 4 * ST3 * i, v(vHo)))
    a("    s_mul_i32 %s, %s, %d" % (s(sT0), s(sW), 4 * 7168))
    a("    s_lshl_b32 %s, %s, 6" % (s(sT2), s(sFI)))
    a("    s_add_u32 %s, %s, %s" % (s(sT0), s(sT0), s(sT2)))
    a("    s_add_u32 %s, %s, 0x%x" % (s(sT0), s(sT0), S4))
    base(sB2, sWS, s(sT0))
    a("    v_lshrrev_b32 %s, 2, %s" % (v(vT + 2), v(vJ)))
    a("    v_mul_u32_u24 %s, 7168, %s" % (v(vT + 2), v(vT + 2)))
    a("    v_and_b32 %s, 3, v0" % v(vT + 3))
    a("    v_lshl_add_u32 %s, %s, 4, %s" % (v(vAy), v(vT + 3), v(vT + 2)))
    a("    v_lshrrev_b32 %s, 2, %s" % (v(vT + 2), v(vJ)))
    a("    v_and_b32 %s, 3, v0" % v(vT + 3))
    a("    v_lshl_add_u32 %s, %s, 2, %s" % (v(vT + 4), v(vT + 2), v(vG)))
    a("    v_lshlrev_b32 %s, 5, %s" % (v(vT + 4), v(vT + 4)))
    a("    v_lshl_add_u32 %s, %s, 3, %s" % (v(vT + 4), v(vT + 3), v(vT + 4)))
    a("    s_add_u32 %s, %s, 0x%x" % (s(sT2), s(sT1), LG))
    a("    v_add_u32 %s, %s, %s" % (v(vT + 4), s(sT2), v(vT + 4)))
    a("    v_lshl_add_u32 %s, %s, 2, %s" % (v(vT + 5), v(vG), v(vT + 2)))
    a("    v_lshlrev_b32 %s, 7, %s" % (v(vT + 5), v(vT + 5)))
    a("    v_lshl_add_u32 %s, %s, 3, %s" % (v(vT + 5), v(vT + 3), v(vT + 5)))
    a("    s_add_u32 %s, %s, 0x%x" % (s(sT2), s(sT1), LD))
    a("    v_add_u32 %s, %s, %s" % (v(vT + 5), s(sT2), v(vT + 5)))
    for i in range(4):
        a("    v_mov_b32 %s, 0x3f803f80" % v(vHb + i))

    def hloadsf():
        for i in range(4):
            a("    global_load_dwordx4 %s, %s, %s sc1" % (v(vHs + 4 * i, 4), v(vHo + i), s(sB1, 2)))
    S3B = opt.get("s3bell", 1)
    PG = opt.get("pg", 0)
    if PG:
        sDone, sNew = sU + 0, sMean
        sDone = sVar
        a("    s_mov_b32 %s, %s" % (s(sRep), s(sT32)))
        a("    s_mov_b32 %s, %s" % (s(sRep + 1), s(sRep)))
        a("    s_and_b32 %s, %s, %d" % (s(sT0), s(sFI), R3 - 1))
        a("    s_lshl_b32 %s, %s, %d" % (s(sT0), s(sT0), RS3))
        a("    s_add_u32 %s, %s, 0x%x" % (s(sT0), s(sT0), SBELL))
        a("    v_mov_b32 %s, 0x%x" % (v(vT + 1), LRM))
        a("    s_mov_b32 %s, 0" % s(sDone))
        a("    s_mov_b32 %s, 0" % s(sSpin))
        sPrev = sPC
        a("    s_mov_b32 %s, 0" % s(sPrev))
        a("L_PG:")
        a("    s_add_u32 %s, %s, 1" % (s(sSpin), s(sSpin)))
        a("    v_xor_b32 %s, 4, %s" % (v(vT + 1), v(vT + 1)))
        a("    s_cmp_lg_u32 %s, 0" % s(sW))
        a("    s_cbranch_scc1 L_PGR")
        a("    s_load_dwordx8 %s, %s, %s glc" % (s(sFl, 8), s(sWS, 2), s(sT0)))
        a("    s_mov_b32 %s, 0" % s(sNew))
        a("    s_waitcnt lgkmcnt(0)")
        for k in range(4):
            a("    s_cmp_eq_u64 %s, %s" % (s(sFl + 2 * k, 2), s(sRep, 2)))
            a("    s_cselect_b32 %s, %d, 0" % (s(sT1), 1 << k))
            a("    s_or_b32 %s, %s, %s" % (s(sNew), s(sNew), s(sT1)))
        a("    s_cmp_ge_u32 %s, 0x%x" % (s(sSpin), SPIN_LIMIT))
        a("    s_cselect_b32 %s, 15, %s" % (s(sNew), s(sNew)))
        if PG >= 2:
            a("    s_cmp_eq_u32 %s, 15" % s(sNew))
            a("    s_cselect_b32 %s, 15, %s" % (s(sT1), s(sPrev)))
            a("    s_mov_b32 %s, %s" % (s(sPrev), s(sNew)))
            a("    s_mov_b32 %s, %s" % (s(sNew), s(sT1)))
        a("    v_mov_b32 %s, %s" % (v(vT + 2), s(sNew)))
        a("    ds_write_b32 %s, %s" % (v(vT + 1), v(vT + 2)))
        a("    s_waitcnt lgkmcnt(0)")
        a("    s_barrier")
        a("    s_branch L_PGI")
        a("L_PGR:")
        a("    s_barrier")
        a("    ds_read_b32 %s, %s" % (v(vT + 2), v(vT + 1)))
        a("    s_waitcnt lgkmcnt(0)")
        a("    v_readfirstlane_b32 %s, %s" % (s(sNew), v(vT + 2)))
        a("L_PGI:")
        a("    s_andn2_b32 %s, %s, %s" % (s(sNew), s(sNew), s(sDone)))
        a("    s_cbranch_scc0 L_PG")
        a("    s_or_b32 %s, %s, %s" % (s(sDone), s(sDone), s(sNew)))
        for i in range(4):
            a("    s_bitcmp1_b32 %s, %d" % (s(sNew), i))
            a("    s_cbranch_scc0 L_PGS%d" % i)
            a("    global_load_dwordx4 %s, %s, %s sc1" % (v(vHs + 4 * i, 4), v(vHo + i), s(sB1, 2)))
            a("L_PGS%d:" % i)
        a("    s_cmp_lg_u32 %s, 15" % s(sDone))
        a("    s_cbranch_scc1 L_PG")
    elif opt.get("sb3", 0):
        a("    s_cmp_lg_u32 %s, 0" % s(sW))
        a("    s_cbranch_scc1 L_HINT")
        if opt.get("hn", 1) == 1:
            a("    s_mov_b32 %s, %s" % (s(sRep), s(sT32)))
        else:
            a("    s_mul_i32 %s, %s, 0x01010101" % (s(sRep), s(sTag8)))
        a("    s_mov_b32 %s, %s" % (s(sRep + 1), s(sRep)))
        a("    s_and_b32 %s, %s, %d" % (s(sT0), s(sFI), (R3 // 2 if opt.get("dp3", 0) else R3) - 1))
        a("    s_lshl_b32 %s, %s, %d" % (s(sT0), s(sT0), RS3))
        a("    s_add_u32 %s, %s, 0x%x" % (s(sT0), s(sT0), SBELL))
        if opt.get("dp3", 0):
            spoll2(s(sT0), (R3 // 2) << RS3, sRep, P3, sB0)
        else:
            spoll(sWS, s(sT0), sRep, P3, True)
        a("L_HINT:")
        a("    s_barrier")
    elif S3B:
        a("    s_cmp_lg_u32 %s, 0" % s(sW))
        a("    s_cbranch_scc1 L_HINT")
        a("    v_lshlrev_b32 %s, 7, %s" % (v(vT + 1), v(vL7)))
        a("    v_add_u32 %s, 0x%x, %s" % (v(vT + 1), SBELL, v(vT + 1)))

        def hint():
            a("    global_load_dword %s, %s, %s sc1" % (v(vT + 2), v(vT + 1), s(sWS, 2)))

        def hintcheck():
            a("    v_cmp_ne_u32 vcc, %s, %s" % (s(sT32), v(vT + 2)))
        setexec(0xFF, 0)
        hint()
        poll(hint, hintcheck, 0, cnt=12)
        a("L_HINT:")
        a("    s_barrier")
    if not PG:
        hloadsf()
    a("    s_waitcnt vmcnt(4)")
    stamp(7)
    for mat in range(2):
        for st in range(2):
            for hh in range(2):
                a("    ds_read_b64_tr_b16 %s, %s offset:%d" %
                  (v(vWg + 8 * mat + 4 * st + 2 * hh, 2), v(vT + 4), 16384 * mat + 1024 * st + 512 * hh))
    for t in range(4):
        a("    ds_read_b64_tr_b16 %s, %s offset:%d" % (v(vWd + 2 * t, 2), v(vT + 5), 32 * t))
    a("    v_lshlrev_b32 %s, 16, %s" % (v(vXc), v(vXc)))
    a("    s_waitcnt lgkmcnt(0)")

    def gate_up(b0, b1):
        a("    v_mfma_f32_16x16x32_bf16 %s, %s, %s, 0" % (v(vD, 4), v(vWg, 4), v(b0, 4)))
        a("    v_mfma_f32_16x16x32_bf16 %s, %s, %s, 0" % (v(vDu, 4), v(vWg + 8, 4), v(b0, 4)))
        a("    v_mfma_f32_16x16x32_bf16 %s, %s, %s, %s" % (v(vD, 4), v(vWg + 4, 4), v(b1, 4), v(vD, 4)))
        a("    v_mfma_f32_16x16x32_bf16 %s, %s, %s, %s" % (v(vDu, 4), v(vWg + 12, 4), v(b1, 4), v(vDu, 4)))
    gate_up(vHb, vHb)
    setexec(0x00010001, 0x00010001)
    a("    ds_write_b128 %s, %s offset:%d" % (v(vAgw), v(vD, 4), LCS - LGP))
    a("    ds_write_b128 %s, %s offset:%d" % (v(vAgw), v(vDu, 4), LCS - LGP + 64))
    setexec(0xFFFFFFFF, 0xFFFFFFFF)
    a("    s_waitcnt lgkmcnt(0)")
    a("    s_barrier")
    a("    ds_read_b128 %s, %s offset:%d" % (v(vCs, 4), v(vAgr), LCS - LGP))
    if P4:
        for t in range(4):
            a("    ds_read_b64_tr_b16 %s, %s offset:%d" % (v(vWd2 + 2 * t, 2), v(vT + 5), 8192 + 32 * t))
        a("    v_add_u32 %s, 0x%x, %s" % (v(vAy2), 16 * 7168, v(vAy)))
    a("    s_waitcnt lgkmcnt(0)")
    for pat in ("quad_perm:[1,0,3,2]", "quad_perm:[2,3,0,1]", "row_half_mirror"):
        for r in range(4):
            a("    v_add_f32_dpp %s, %s, %s %s %s" % (v(vCs + r), v(vCs + r), v(vCs + r), pat, DPP))

    vHa = V(4, 4)

    def sumacc(dst, src):
        def f(i):
            for r in (0, 2):
                if i == 1:
                    a("    v_pk_add_f32 %s, %s, %s" % (v(dst + r, 2), v(src + r, 2), v(src + 4 + r, 2)))
                elif i > 1:
                    a("    v_pk_add_f32 %s, %s, %s" % (v(dst + r, 2), v(dst + r, 2), v(src + 4 * i + r, 2)))
        return f
    gather(hloadsf, [vHs + 4 * i for i in range(4)], sTag10, 0x3ff, sumacc(vHa, vHs), cnt=13, ordered=not PG)
    stamp(8)
    vHs = vHa
    treduce4(vHs)
    bf16r(vHs, vHs)
    a("    v_add_f32 %s, %s, %s" % (v(vHs), v(vHs), v(vXc)))
    rowpack(vHs, vHb, 8)
    bf16r(vHr, vHs)
    gate_up(vHb, vHb + 4)
    a("    v_mul_f32 %s, %s, %s" % (v(vT + 1), v(vHr), v(vHr)))
    a("    v_add_f32_dpp %s, %s, %s row_ror:1 %s" % (v(vT), v(vHr), v(vHr), DPP))
    a("    v_add_f32_dpp %s, %s, %s row_ror:1 %s" % (v(vT + 1), v(vT + 1), v(vT + 1), DPP))
    for sh in (2, 4, 8):
        for r in range(2):
            a("    v_add_f32_dpp %s, %s, %s row_ror:%d %s" % (v(vT + r), v(vT + r), v(vT + r), sh, DPP))
    for pat in ("row_bcast:15 row_mask:0xa", "row_bcast:31 row_mask:0xc"):
        for r in range(2):
            a("    v_add_f32_dpp %s, %s, %s %s bank_mask:0xf" % (v(vT + r), v(vT + r), v(vT + r), pat))
    setexec(0, 0x80000000)
    a("    ds_write_b64 %s, %s" % (v(vAsw), v(vT, 2)))
    setexec(0x00010001, 0x00010001)
    a("    ds_write_b128 %s, %s" % (v(vAgw), v(vD, 4)))
    a("    ds_write_b128 %s, %s offset:64" % (v(vAgw), v(vDu, 4)))
    setexec(0xFFFFFFFF, 0xFFFFFFFF)
    a("    s_waitcnt lgkmcnt(0)")
    a("    s_barrier")
    if P4:
        a("    s_cmp_ge_u32 %s, 4" % s(sW))
        a("    s_cbranch_scc1 L_REST")
    a("    ds_read_b64 %s, %s" % (v(vT, 2), v(vAsr)))
    a("    ds_read_b128 %s, %s" % (v(vD, 4), v(vAgr)))
    a("    s_waitcnt lgkmcnt(0)")
    for pat in ("quad_perm:[1,0,3,2]", "quad_perm:[2,3,0,1]", "row_half_mirror"):
        for r in (vT, vT + 1, vD, vD + 1, vD + 2, vD + 3):
            a("    v_add_f32_dpp %s, %s, %s %s %s" % (v(r), v(r), v(r), pat, DPP))
    a("    v_mul_f32 %s, 0x3b000000, %s" % (v(vT), v(vT)))
    bf16r(vT + 2, vT)
    for r in (0, 2):
        a("    v_pk_fma_f32 %s, %s, %s, %s op_sel_hi:[0,1,1] neg_lo:[1,0,0] neg_hi:[1,0,0]" %
          (v(vD + r, 2), v(vT + 2, 2), v(vCs + r, 2), v(vD + r, 2)))
    a("    v_mul_f32 %s, 0x3b000000, %s" % (v(vT + 1), v(vT + 1)))
    a("    v_fma_f32 %s, -%s, %s, %s" % (v(vT + 1), v(vT), v(vT), v(vT + 1)))
    for r in range(4):
        a("    v_mul_f32_dpp %s, %s, %s row_ror:8 %s" % (v(vT + 4 + r), v(vD + r), v(vD + r), DPP))
    a("    v_cvt_pk_bf16_f32 %s, %s, %s" % (v(vT + 2), v(vT + 4), v(vT + 5)))
    a("    v_cvt_pk_bf16_f32 %s, %s, %s" % (v(vT + 3), v(vT + 6), v(vT + 7)))
    for t in range(4):
        a("    v_and_b32 %s, %s, %s" % (v(vB + 2 * t), v(vT + 2), v(vMt + t)))
        a("    v_and_b32 %s, %s, %s" % (v(vB + 2 * t + 1), v(vT + 3), v(vMt + t)))
        if t:
            a("    v_mfma_f32_16x16x16_bf16 %s, %s, %s, %s" %
              (v(vDu, 4), v(vB + 2 * t - 2, 2), v(vWd + 2 * t - 2, 2), "0" if t == 1 else v(vDu, 4)))
            if P4:
                a("    v_mfma_f32_16x16x16_bf16 %s, %s, %s, %s" %
                  (v(vDv, 4), v(vB + 2 * t - 2, 2), v(vWd2 + 2 * t - 2, 2), "0" if t == 1 else v(vDv, 4)))
    a("    v_max_f32 %s, 0, %s" % (v(vT + 1), v(vT + 1)))
    a("    v_mfma_f32_16x16x16_bf16 %s, %s, %s, %s" % (v(vDu, 4), v(vB + 6, 2), v(vWd + 6, 2), v(vDu, 4)))
    if P4:
        a("    v_mfma_f32_16x16x16_bf16 %s, %s, %s, %s" % (v(vDv, 4), v(vB + 6, 2), v(vWd2 + 6, 2), v(vDv, 4)))
    bf16r(vT + 1, vT + 1)
    a("    v_add_f32 %s, 0x3727c5ac, %s" % (v(vT + 1), v(vT + 1)))
    bf16r(vT + 1, vT + 1)
    a("    v_sqrt_f32 %s, %s" % (v(vT + 1), v(vT + 1)))
    bf16r(vT + 1, vT + 1)
    a("    v_mul_f32 %s, %s, %s" % (v(vT + 1), v(vT + 1), v(vT + 1)))
    a("    v_rcp_f32 %s, %s" % (v(vT), v(vT + 1)))
    setexec(0xFFFF, 0)
    for r in (0, 2):
        a("    v_pk_mul_f32 %s, %s, %s op_sel_hi:[1,0]" % (v(vDu + r, 2), v(vDu + r, 2), v(vT, 2)))
    for i in range(4):
        a("    v_and_or_b32 %s, %s, %s, %s" % (v(vDu + i), v(vDu + i), s(sM10), v(vTag10)))
    a("    global_store_dwordx4 %s, %s, %s sc1" % (v(vAy), v(vDu, 4), s(sB2, 2)))
    if P4:
        for r in (0, 2):
            a("    v_pk_mul_f32 %s, %s, %s op_sel_hi:[1,0]" % (v(vDv + r, 2), v(vDv + r, 2), v(vT, 2)))
        for i in range(4):
            a("    v_and_or_b32 %s, %s, %s, %s" % (v(vDv + i), v(vDv + i), s(sM10), v(vTag10)))
        a("    global_store_dwordx4 %s, %s, %s sc1" % (v(vAy2), v(vDv, 4), s(sB2, 2)))
    stamp(9)
    if P4:
        a("L_REST:")
        a("    s_cmp_ge_u32 %s, 32" % s(sFI))
        a("    s_cbranch_scc1 L_FIN2")
    a("    s_lshr_b32 %s, %s, 2" % (s(sT0), s(sFI)))
    a("    s_cmp_lg_u32 %s, %s" % (s(sT0), s(sW)))
    a("    s_cbranch_scc1 %s" % ("L_ACK" if P4 else "L_FIN2"))
    setexec(0xFFFFFFFF, 0xFFFFFFFF)
    vY = V(28, 4)
    vCo = V()
    a("    v_and_b32 %s, 3, v0" % v(vT))
    a("    v_lshlrev_b32 %s, 2, %s" % (v(vT + 1), v(vG)))
    a("    v_lshl_add_u32 %s, %s, 4, %s" % (v(vT + 1), v(vT), v(vT + 1)))
    a("    v_add_u32 %s, %s, %s" % (v(vT + 1), s(sU), v(vT + 1)))
    a("    v_lshlrev_b32 %s, 2, %s" % (v(vT + 1), v(vT + 1)))
    a("    ds_bpermute_b32 %s, %s, %s" % (v(vHr), v(vT + 1), v(vHr)))
    a("    v_lshl_add_u32 %s, %s, 4, %s" % (v(vCo), v(vG), v(vT)))
    a("    v_lshlrev_b32 %s, 1, %s" % (v(vCo), v(vCo)))
    a("    s_lshl_b32 %s, %s, 7" % (s(sT0), s(sW)))
    a("    s_lshl_b32 %s, %s, 3" % (s(sT1), s(sU)))
    a("    s_add_u32 %s, %s, %s" % (s(sT0), s(sT0), s(sT1)))
    base(sB3, sOUT, s(sT0))
    if opt.get("odiag"):
        a("    s_lshl_b32 %s, %s, 12" % (s(sT0), s(sFI)))
        a("    s_add_u32 %s, %s, 0x180000" % (s(sT0), s(sT0)))
        base(sB3, sWS, s(sT0))
        if opt["odiag"] == 2:
            a("    v_lshlrev_b32 %s, 4, %s" % (v(vCo), v(vCo)))
    a("    s_mul_i32 %s, %s, 7168" % (s(sT1), s(sFI)))
    a("    s_add_u32 %s, %s, 0x%x" % (s(sT1), s(sT1), S4 + 3072))
    base(sB2, sWS, s(sT1))

    def yloads():
        for n in range(7):
            a("    global_load_dwordx4 %s, %s, %s offset:%d sc1" % (v(vY + 4 * n, 4), v(vAo), s(sB2, 2), 1024 * n - 3072))

    if opt.get("ackwait", 1):
        a("    s_waitcnt vmcnt(0)")
    if P4:
        a("    s_barrier")
    yloads()
    gather(yloads, [vY + 4 * i for i in range(7)], sTag10, 0x3ff, sumacc(vHa, vY), cnt=15)
    if not opt.get("astamps"):
        stamp(14)
    vY = vHa
    treduce4(vY)
    for sh in (4, 8):
        a("    v_add_f32_dpp %s, %s, %s row_ror:%d %s" % (v(vY), v(vY), v(vY), sh, DPP))
    bf16r(vY, vY)
    a("    s_waitcnt lgkmcnt(0)")
    a("    v_add_f32 %s, %s, %s" % (v(vY), v(vY), v(vHr)))
    a("    v_cvt_pk_bf16_f32 %s, %s, %s" % (v(vY), v(vY), v(vY)))
    setexec(0x000F000F, 0x000F000F)
    a("    global_store_short %s, %s, %s%s" % (v(vCo), v(vY), s(sB3, 2), ["", " sc1", " nt", " sc0 sc1"][opt.get("ost", 0)]))
    a("    s_cmp_lg_u32 %s, 0" % s(sFI))
    a("    s_cbranch_scc1 L_FIN2")
    setexec(1, 0)
    a("    v_mov_b32 %s, 0" % v(vT))
    a("    v_mov_b32 %s, %s" % (v(vT + 1), s(sT32)))
    a("    global_store_dword %s, %s, %s sc1" % (v(vT), v(vT + 1), s(sWS, 2)))
    if opt.get("diagspin"):
        a("    s_waitcnt lgkmcnt(0)")
        if "diagph" in opt:
            a("    s_sub_u32 s90, s90, s96")
            a("    s_lshl_b32 s90, s90, 2")
            a("    s_add_u32 s96, s96, s90")
        a("    s_add_u32 s96, s96, %d" % opt["diagspin"])
        a("L_DIAG:")
        a("    s_memrealtime s[92:93]")
        a("    s_waitcnt lgkmcnt(0)")
        a("    s_sub_u32 s92, s92, s96")
        a("    s_cmp_lt_i32 s92, 0")
        a("    s_cbranch_scc1 L_DIAG")
    a("L_FIN2:")
    finish()
    if P4:
        a("L_ACK:")
        a("    s_waitcnt vmcnt(0)")
        a("    s_barrier")
        finish()

    if prof:
        a("L_PROF:")
        a("    s_memrealtime %s" % s(sPROF + 20, 2))
        a("    s_mov_b64 exec, 1")
        a("    s_lshl_b32 %s, s2, 3" % s(sT0))
        a("    s_add_u32 %s, %s, %s" % (s(sT0), s(sT0), s(sW)))
        a("    s_lshl_b32 %s, %s, 7" % (s(sT0), s(sT0)))
        a("    s_add_u32 %s, %s, 0x%x" % (s(sT0), s(sT0), PROFB))
        base(sB0, sWS, s(sT0))
        a("    v_mov_b32 v1, 0")
        a("    s_waitcnt lgkmcnt(0)")
        for i in range(16):
            a("    v_mov_b32 v2, %s" % s(sPROF + 2 * i))
            if prof == 2:
                a("    global_atomic_umax v1, v2, %s offset:%d sc1" % (s(sDBG, 2), 4 * i))
            else:
                a("    global_store_dword v1, v2, %s offset:%d" % (s(sB0, 2), 4 * i))
        if prof == 2:
            a("    s_not_b32 %s, %s" % (s(sT0), s(sPROF)))
            a("    v_mov_b32 v2, %s" % s(sT0))
            a("    global_atomic_umax v1, v2, %s offset:48 sc1" % s(sDBG, 2))
        a("    s_endpgm")
    a("L_END:")
    a("    s_endpgm")
    a("L_CODE_END:")
    nv = (V.hi + 7) // 8 * 8
    a('.section .rodata,"a"')
    a(".p2align 6")
    a(".amdhsa_kernel %s_kernel" % NAME)
    a("  .amdhsa_next_free_vgpr %d" % nv)
    a("  .amdhsa_next_free_sgpr 102")
    a("  .amdhsa_accum_offset %d" % nv)
    a("  .amdhsa_group_segment_fixed_size 0")
    a("  .amdhsa_kernarg_size 96")
    a("  .amdhsa_user_sgpr_count 2")
    a("  .amdhsa_user_sgpr_kernarg_segment_ptr 1")
    a("  .amdhsa_system_sgpr_workgroup_id_x 1")
    a("  .amdhsa_float_denorm_mode_32 3")
    a(".end_amdhsa_kernel")
    return out + a.finalize()


if __name__ == "__main__":
    import argparse
    ap = argparse.ArgumentParser()
    ap.add_argument("-o", default=None)
    ap.add_argument("--prof", type=int, default=0)
    ap.add_argument("--opt", default="")
    args = ap.parse_args()
    opt = {}
    for kv in args.opt.split(","):
        if kv:
            k, x = kv.split("=")
            opt[k] = int(x)
    txt = gen(args.prof, opt)
    path = args.o or os.path.join(os.path.dirname(os.path.abspath(__file__)), "..", "cdna_kernels", NAME + ".s")
    open(path, "w").write(txt)
    print("wrote", path, len(txt.split("\n")), "lines")
```

```python
import sys
import os
sys.path.insert(0, os.path.dirname(os.path.abspath(__file__)))
from asmlib import Asm

NAME = "sequential_preLN__sliding_block_cached__glu_gated_bilinear__decode"

EPOCH = 0
S1 = 0x20000
S2ML = 0x11000
S3 = 0x40000
S4 = 0xF8000
SBELL = 0x160000
SRDY = 0x138000
SQF = 0x5C000
S2O = 0x60000
PROFB = 0x200000

LK = 0
LV = 32768
LG = 65536
LD = 98304
LRED = 114688
LQ = 119040
LMX = 120128
LLS = 120256
LP = 120768
LH = 121856
LGP = 122880
LCS = 123904
LST = 124928
LWT = 124992
LEP = 125504
LRM = 125512
LDS_BYTES = 125568

DPP = "row_mask:0xf bank_mask:0xf"
SPIN_LIMIT = 1 << 18


class Regs:
    def __init__(self, start):
        self.n = start
        self.hi = start

    def __call__(self, cnt=1, align=None):
        if align is None:
            align = 2 if cnt > 1 else 1
        self.n = (self.n + align - 1) // align * align
        b = self.n
        self.n += cnt
        self.hi = max(self.hi, self.n)
        return b

    def mark(self):
        return self.n

    def release(self, m):
        self.n = m


def v(b, n=1):
    return "v%d" % b if n == 1 else "v[%d:%d]" % (b, b + n - 1)


def s(b, n=1):
    return "s%d" % b if n == 1 else "s[%d:%d]" % (b, b + n - 1)


def gen(prof=False, opt=None):
    opt = dict(opt or {})
    for k_, x_ in dict(bx=0, qpol=4, win=3, mb=0, sw=6, sf=1, ft=7, t0p=2, fack=0, ost=1, amx=0, pl=0, sb2=2, sb3=1, rs2=10, dh=4, cf=1, hp=2).items():
        opt.setdefault(k_, x_)
    a = Asm()
    V = Regs(1)
    sX, sK, sVp, sWQ, sWO, sBX, sWG, sWU = 4, 6, 8, 10, 12, 14, 16, 18
    sWD, sOUT, sDBG, sWS = 20, 22, 24, 26
    sE, sW, sH, sJ = 28, 29, 30, 31
    sT0, sT1, sT2, sT3 = 32, 33, 34, 35
    sB0, sB1, sB2, sB3 = 36, 38, 40, 42
    sM8, sM10, sTag8, sTag10, sT32 = 44, 45, 46, 47, 48
    sSpin, sTmp, sDummy = 49, 50, 51
    sPC = 52
    sB4 = 54
    sU, sFI = 56, 57
    sMean, sVar = 58, 59
    sBo, sBml = 60, 62
    sBfl = 94
    sB5, sInb = 98, 100
    sFl = 4
    sRep = 92
    sScale = 14
    sPROF = 64
    uid = [0]
    ST1, ST2, ST3 = opt.get("st1", 2048), opt.get("st2", 2048), opt.get("st3", 2048)
    XS = ["", " nt", " sc0"][opt.get("xsk", 0)] if opt.get("xs", 0) & 1 else " sc1"
    R2, R3 = opt.get("r2", 4), opt.get("r3", 16)
    RS2, RS3 = opt.get("rs2", 8), opt.get("rs3", 7)
    P2, P3 = opt.get("p2", 2), opt.get("p3", 1)
    vm = []

    def waitfor(name):
        n = len(vm) - 1 - vm.index(name)
        a("    s_waitcnt vmcnt(%d)" % n)

    STM = opt.get("stamps", 0xFFFF)

    def stamp(i):
        if opt.get("diagph") == i:
            a("    s_memrealtime s[90:91]")
        if prof and (STM >> i) & 1:
            a("    s_memrealtime %s" % s(sPROF + 2 * i, 2))

    def setexec(lo, hi):
        if lo == hi == 0xFFFFFFFF:
            a("    s_mov_b64 exec, -1")
        else:
            a("    s_mov_b32 exec_lo, 0x%x" % lo)
            a("    s_mov_b32 exec_hi, 0x%x" % hi)

    def base(dst, ptr, off_sreg):
        a("    s_add_u32 %s, %s, %s" % (s(dst), s(ptr), off_sreg))
        a("    s_addc_u32 %s, %s, 0" % (s(dst + 1), s(ptr + 1)))

    def finish():
        if prof:
            a("    s_branch L_PROF")
        else:
            a("    s_endpgm")

    def bf16r(dst, src):
        a("    v_cvt_pk_bf16_f32 %s, %s, %s" % (v(dst), v(src), v(src)))
        a("    v_and_b32 %s, 0xffff0000, %s" % (v(dst), v(dst)))

    def wavesum_to_sgpr(r, sd):
        for sh in (1, 2, 4, 8):
            a("    v_add_f32_dpp %s, %s, %s row_ror:%d %s" % (v(r), v(r), v(r), sh, DPP))
        a("    v_add_f32_dpp %s, %s, %s row_bcast:15 row_mask:0xa bank_mask:0xf" % (v(r), v(r), v(r)))
        a("    v_add_f32_dpp %s, %s, %s row_bcast:31 row_mask:0xc bank_mask:0xf" % (v(r), v(r), v(r)))
        a("    v_readlane_b32 %s, %s, 63" % (s(sd), v(r)))

    def tagcheck(regs, tagreg, tmp, first=True):
        for i, r in enumerate(regs):
            if first and i == 0:
                a("    v_xor_b32 %s, %s, %s" % (v(tmp), s(tagreg), v(r)))
            else:
                a("    v_bitop3_b32 %s, %s, %s, %s bitop3:0xf6" % (v(tmp), v(tmp), v(r), s(tagreg)))

    def poll(loads, check, firstwait, post=None, cnt=None, keepexec=False):
        uid[0] += 1
        u = uid[0]
        a("    s_mov_b32 %s, 0" % s(sSpin))
        a("    s_branch L_CHECK%d" % u)
        a("L_RETRY%d:" % u)
        a("    s_add_u32 %s, %s, 1" % (s(sSpin), s(sSpin)))
        a("    s_cmp_ge_u32 %s, 0x%x" % (s(sSpin), SPIN_LIMIT))
        a("    s_cbranch_scc1 L_OK%d" % u)
        a("    s_mov_b64 exec, vcc")
        loads()
        if firstwait:
            a("    s_waitcnt vmcnt(0)")
        a("L_CHECK%d:" % u)
        a("    s_waitcnt vmcnt(%d)" % firstwait)
        check()
        a("    s_cbranch_vccnz L_RETRY%d" % u)
        a("L_OK%d:" % u)
        a("    s_mov_b64 exec, -1")
        if prof and cnt is not None and (not opt.get("astamps") or cnt == 15):
            a("    s_mov_b32 %s, %s" % (s(sPROF + 2 * cnt), s(sSpin)))
        if post:
            post()

    def spoll(pair, off, rep, parts=1, rep3=False):
        uid[0] += 1
        u = uid[0]
        a("    s_mov_b32 %s, 0" % s(sSpin))
        depth = opt.get("spd", 1)
        if depth > 1:
            for k in range(4):
                a("    s_not_b64 %s, %s" % (s(sFl + 2 * k, 2), s(rep, 2)))
            a("L_SP%d:" % u)
            a("    s_add_u32 %s, %s, 1" % (s(sSpin), s(sSpin)))
            a("    s_cmp_ge_u32 %s, 0x%x" % (s(sSpin), SPIN_LIMIT))
            a("    s_cbranch_scc1 L_SPD%d" % u)
            a("    s_load_dwordx8 %s, %s, %s glc" % (s(sFl, 8), s(pair, 2), off))
            a("    s_waitcnt lgkmcnt(%d)" % (2 * depth - 2))
            for k in range(4):
                a("    s_cmp_eq_u64 %s, %s" % (s(sFl + 2 * k, 2), s(rep, 2)))
                a("    s_cbranch_scc0 L_SP%d" % u)
            a("L_SPD%d:" % u)
            return
        if parts > 1:
            base(sB0 if rep3 else sB1, pair, off)
        a("L_SP%d:" % u)
        if parts == 1:
            a("    s_load_dwordx8 %s, %s, %s glc" % (s(sFl, 8), s(pair, 2), off))
        else:
            n = 8 // parts
            for k in range(parts):
                a("    s_load_dword%s %s, %s, 0x%x glc" % ("" if n == 1 else "x%d" % n, s(sFl + n * k, n), s(sB0 if rep3 else sB1, 2), 128 * k))
        a("    s_add_u32 %s, %s, 1" % (s(sSpin), s(sSpin)))
        a("    s_cmp_ge_u32 %s, 0x%x" % (s(sSpin), SPIN_LIMIT))
        a("    s_waitcnt lgkmcnt(0)")
        a("    s_cbranch_scc1 L_SPD%d" % u)
        for k in range(4):
            a("    s_xor_b64 %s, %s, %s" % (s(sFl + 2 * k, 2), s(sFl + 2 * k, 2), s(rep, 2)))
        a("    s_or_b64 %s, %s, %s" % (s(sFl, 2), s(sFl, 2), s(sFl + 2, 2)))
        a("    s_or_b64 %s, %s, %s" % (s(sFl + 4, 2), s(sFl + 4, 2), s(sFl + 6, 2)))
        a("    s_or_b64 %s, %s, %s" % (s(sFl, 2), s(sFl, 2), s(sFl + 4, 2)))
        a("    s_cbranch_scc1 L_SP%d" % u)
        a("L_SPD%d:" % u)

    def spoll2(offA, dist, rep, parts, bp, between=None, phase=0):
        assert not prof
        uid[0] += 1
        u = uid[0]
        sets = (sFl, 64)
        n = 8 // parts
        SENT = 0x5a5aa5a5
        if phase != 2:
            base(bp, sWS, offA)

        def issue(k):
            a("    s_mov_b32 %s, 0x%x" % (s(sets[k] + 7), SENT))
            for q in range(parts):
                a("    s_load_dword%s %s, %s, 0x%x glc" % ("x%d" % n, s(sets[k] + n * q, n), s(bp, 2), 128 * q + dist * k))
        if phase != 2:
            issue(0)
        if phase == 1:
            return
        issue(1)
        a("    s_mov_b32 %s, 0" % s(sSpin))
        for k in (0, 1):
            a("L_S2%d_%d:" % (u, k))
            if k == 0:
                a("    s_add_u32 %s, %s, 1" % (s(sSpin), s(sSpin)))
                a("    s_cmp_ge_u32 %s, 0x%x" % (s(sSpin), SPIN_LIMIT * 8))
                a("    s_cbranch_scc1 L_S2D%d" % u)
            a("    s_cmp_eq_u32 %s, 0x%x" % (s(sets[k] + 7), SENT))
            a("    s_cbranch_scc1 L_S2%d_%d" % (u, 1 - k))
            for q in range(4):
                a("    s_cmp_eq_u64 %s, %s" % (s(sets[k] + 2 * q, 2), s(rep, 2)))
                a("    s_cbranch_scc0 L_S2R%d_%d" % (u, k))
            a("    s_branch L_S2D%d" % u)
            a("L_S2R%d_%d:" % (u, k))
            issue(k)
            if k == 1:
                a("    s_branch L_S2%d_0" % u)
        a("L_S2D%d:" % u)

    def gather(loads, regs, tag, lowmask, acc, cnt=None, before=None, ordered=True, younger=0):
        uid[0] += 1
        u = uid[0]
        n = len(regs)

        def strip(i, first):
            r = regs[i]
            for k in range(4):
                a("    v_xor_b32 %s, %s, %s" % (v(r + k), s(tag), v(r + k)))
            if first:
                a("    v_or3_b32 %s, %s, %s, %s" % (v(vG0), v(r), v(r + 1), v(r + 2)))
                a("    v_or_b32 %s, %s, %s" % (v(vG0), v(vG0), v(r + 3)))
            else:
                a("    v_or3_b32 %s, %s, %s, %s" % (v(vG0), v(vG0), v(r), v(r + 1)))
                a("    v_or3_b32 %s, %s, %s, %s" % (v(vG0), v(vG0), v(r + 2), v(r + 3)))

        def verdict():
            a("    v_and_b32 %s, 0x%x, %s" % (v(vG0), lowmask, v(vG0)))
            a("    v_cmp_ne_u32 vcc, 0, %s" % v(vG0))
        a("    s_mov_b32 %s, 0" % s(sSpin))
        a("    s_branch L_FIRST%d" % u)
        a("L_RETRY%d:" % u)
        a("    s_add_u32 %s, %s, 1" % (s(sSpin), s(sSpin)))
        a("    s_cmp_ge_u32 %s, 0x%x" % (s(sSpin), SPIN_LIMIT))
        a("    s_cbranch_scc1 L_REDO%d" % u)
        a("    s_mov_b64 exec, vcc")
        loads()
        a("    s_waitcnt vmcnt(0)")
        for i in range(n):
            strip(i, i == 0)
        verdict()
        a("    s_cbranch_vccnz L_RETRY%d" % u)
        a("L_REDO%d:" % u)
        a("    s_mov_b64 exec, -1")
        for i in range(n):
            acc(i)
        a("    s_branch L_OK%d" % u)
        a("L_FIRST%d:" % u)
        if before:
            before()
        for i in range(n):
            if ordered or i == 0:
                a("    s_waitcnt vmcnt(%d)" % (n - 1 - i + younger if ordered else 0))
            strip(i, i == 0)
            if i == n - 1:
                verdict()
            acc(i)
        a("    s_cbranch_vccnz L_RETRY%d" % u)
        a("L_OK%d:" % u)
        if prof and cnt is not None and not opt.get("astamps"):
            a("    s_mov_b32 %s, %s" % (s(sPROF + 2 * cnt), s(sSpin)))

    def allred_hi(r, tmp, op):
        for sh in (4, 8):
            a("    v_%s_f32_dpp %s, %s, %s row_ror:%d %s" % (op, v(r), v(r), v(r), sh, DPP))
        for sw in ("16", "32"):
            a("    v_mov_b32 %s, %s" % (v(tmp), v(r)))
            a("    v_permlane%s_swap_b32 %s, %s" % (sw, v(r), v(tmp)))
            a("    v_%s_f32 %s, %s, %s" % (op, v(r), v(r), v(tmp)))

    def rowpack(r, dst, n):
        a("    v_mov_b32_dpp %s, %s quad_perm:[1,1,3,3] %s" % (v(r + 1), v(r), DPP))
        a("    v_cvt_pk_bf16_f32 %s, %s, %s" % (v(r + 1), v(r), v(r + 1)))
        for i in range(n):
            a("    v_mov_b32_dpp %s, %s row_newbcast:%d %s" % (v(dst + i), v(r + 1), 2 * i, DPP))

    def treduce4(r):
        a("    v_permlane32_swap_b32 %s, %s" % (v(r), v(r + 2)))
        a("    v_permlane32_swap_b32 %s, %s" % (v(r + 1), v(r + 3)))
        a("    v_add_f32 %s, %s, %s" % (v(r), v(r), v(r + 2)))
        a("    v_add_f32 %s, %s, %s" % (v(r + 1), v(r + 1), v(r + 3)))
        a("    v_permlane16_swap_b32 %s, %s" % (v(r), v(r + 1)))
        a("    v_add_f32 %s, %s, %s" % (v(r), v(r), v(r + 1)))

    hdr = open(os.path.join(os.path.dirname(os.path.abspath(__file__)), "..", "cdna_kernels", NAME + ".s.ref")).read()
    head = [l for l in hdr.split("\n") if l.startswith("; Kernarg") or l.startswith(";   offset")]
    out = "\n".join(head) + "\n"
    doc = """
One persistent launch: 256 workgroups (one per CU, all co-resident) x 8 waves.  wg = 8 j + h.
  every wg : LN(x), a 128-row x 64-column piece of q = LN(x) wq, then flash-decoding of KV head h
             over keys 128 j .. 128 j + 127 of the window (true max per chunk, combined later)
  j < 16   : combines the 32 chunks of head group h for 64 of its dims and multiplies by a 256 x 64 piece of wo
  112 wgs  : h = x + attn, LN(h) folded around the products, 16 columns of gate / up, 16 rows of w_down;
             32 of their waves add the 112 partial results and write the output
Hand-offs go through d_ws with write-through stores.  Every word handed over carries a tag taken from an
epoch word (read at entry, advanced at the end), so a launch never takes an earlier launch's words for its own;
a consumer reloads until every tag matches.  Small hint words only tell a consumer when a first look is worth it.
All waits are bounded.
"""
    out += "".join("; " + l + "\n" for l in doc.strip().split("\n"))
    out += "; @launch grid=(256,1,1) block=(512,1,1) lds=%d\n" % LDS_BYTES
    a('.amdgcn_target "amdgcn-amd-amdhsa--gfx950"')
    a(".text")
    a(".globl %s_kernel" % NAME)
    a(".p2align 8")
    a(".type %s_kernel,@function" % NAME)
    a("%s_kernel:" % NAME)

    vL = 0
    vM = V(4, 4)
    vSink = V() if opt.get("vt", 0) else None
    vTag8, vTag10, vG0 = V(), V(), V()
    vL3, vL7, vG, vJ = V(), V(), V(), V()
    vRedW, vRedR, vRedR8, vC4 = V(), V(), V(), V()
    vD = V(4, 4)
    vT = V(8, 4)
    vV0 = V(4)
    vV1 = vV0 + 1
    vW = V(16, 4)
    vAk = V(4)
    vKo = V(4)
    vAq, vAqw, vAmw, vAmr, vAlw, vApw, vApr, vAv, vAo, vAlr, vQo = [V() for _ in range(11)]
    mk = V.mark()

    def attn_addresses():
        a("    s_lshl_b32 %s, %s, 12" % (s(sT0), s(sW)))
        a("    v_xor_b32 %s, %s, %s" % (v(vT), v(vJ), v(vG)))
        a("    v_lshlrev_b32 %s, 4, %s" % (v(vT), v(vT)))
        a("    v_lshl_or_b32 %s, %s, 8, %s" % (v(vT), v(vJ), v(vT)))
        a("    v_add_u32 %s, %s, %s" % (v(vAk), s(sT0), v(vT)))
        for i in (1, 2, 3):
            a("    v_xor_b32 %s, 0x%x, %s" % (v(vAk + i), 64 * i, v(vAk)))
        a("    v_and_b32 %s, 3, v0" % v(vT))
        a("    v_mul_u32_u24 %s, 272, %s" % (v(vT + 1), v(vT)))
        a("    v_lshl_add_u32 %s, %s, 4, %s" % (v(vT + 2), v(vG), v(vT + 1)))
        a("    v_add_u32 %s, 0x%x, %s" % (v(vAq), LQ, v(vT + 2)))
        a("    v_add_u32 %s, 0x%x, %s" % (v(vApr), LP, v(vT + 2)))
        a("    s_lshr_b32 %s, %s, 1" % (s(sT0), s(sW)))
        a("    s_and_b32 %s, %s, 1" % (s(sT1), s(sW)))
        a("    s_lshl_b32 %s, %s, 6" % (s(sT2), s(sT0)))
        a("    s_lshl_b32 %s, %s, 3" % (s(sT3), s(sT1)))
        a("    s_add_u32 %s, %s, %s" % (s(sT2), s(sT2), s(sT3)))
        a("    v_add_u32 %s, %s, %s" % (v(vApw), s(sT2), v(vApr)))
        a("    s_mul_i32 %s, %s, 272" % (s(sT0), s(sT0)))
        a("    s_lshl_b32 %s, %s, 7" % (s(sT1), s(sT1)))
        a("    s_add_u32 %s, %s, %s" % (s(sT0), s(sT0), s(sT1)))
        a("    s_add_u32 %s, %s, 0x%x" % (s(sT0), s(sT0), LQ))
        a("    v_lshl_add_u32 %s, %s, 2, %s" % (v(vT + 3), v(vJ), v(vG)))
        a("    v_lshl_add_u32 %s, %s, 1, %s" % (v(vAqw), v(vT + 3), s(sT0)))
        a("    v_lshlrev_b32 %s, 5, %s" % (v(vT + 1), v(vT)))
        a("    v_add_u32 %s, 0x%x, %s" % (v(vAmr), LMX, v(vT + 1)))
        a("    s_lshl_b32 %s, %s, 2" % (s(sT0), s(sW)))
        a("    v_add_u32 %s, %s, %s" % (v(vAmw), s(sT0), v(vAmr)))
        a("    s_lshl_b32 %s, %s, 4" % (s(sT0), s(sW)))
        a("    s_add_u32 %s, %s, 0x%x" % (s(sT0), s(sT0), LLS))
        a("    v_lshlrev_b32 %s, 7, %s" % (v(vT + 1), v(vT)))
        a("    v_lshl_add_u32 %s, %s, 2, %s" % (v(vT + 1), v(vG), v(vT + 1)))
        a("    v_add_u32 %s, %s, %s" % (v(vAlw), s(sT0), v(vT + 1)))
        a("    v_lshrrev_b32 %s, 2, v0" % v(vT + 1))
        a("    v_lshlrev_b32 %s, 3, %s" % (v(vT + 1), v(vT + 1)))
        a("    v_lshl_add_u32 %s, %s, 7, %s" % (v(vT + 1), v(vT), v(vT + 1)))
        a("    v_add_u32 %s, 0x%x, %s" % (v(vAlr), LLS, v(vT + 1)))
        a("    v_lshrrev_b32 %s, 2, %s" % (v(vT + 1), v(vJ)))
        a("    v_lshl_add_u32 %s, %s, 2, %s" % (v(vT + 1), v(vG), v(vT + 1)))
        a("    v_and_b32 %s, 7, %s" % (v(vT + 2), v(vT + 1)))
        a("    v_lshlrev_b32 %s, 1, %s" % (v(vT + 2), v(vT + 2)))
        a("    v_bfe_u32 %s, v0, 1, 1" % v(vT + 3))
        a("    s_lshl_b32 %s, %s, 1" % (s(sT0), s(sW)))
        a("    v_add_u32 %s, %s, %s" % (v(vT + 3), s(sT0), v(vT + 3)))
        a("    v_xor_b32 %s, %s, %s" % (v(vT + 2), v(vT + 2), v(vT + 3)))
        a("    v_lshlrev_b32 %s, 4, %s" % (v(vT + 2), v(vT + 2)))
        a("    v_lshl_or_b32 %s, %s, 8, %s" % (v(vT + 1), v(vT + 1), v(vT + 2)))
        a("    v_and_b32 %s, 1, v0" % v(vT + 2))
        a("    v_lshl_or_b32 %s, %s, 3, %s" % (v(vT + 1), v(vT + 2), v(vT + 1)))
        a("    v_add_u32 %s, 0x%x, %s" % (v(vAv), LV, v(vT + 1)))
        a("    s_lshl_b32 %s, %s, 5" % (s(sT0), s(sH)))
        a("    s_add_u32 %s, %s, %s" % (s(sT0), s(sT0), s(sJ)))
        a("    s_lshl_b32 %s, %s, 6" % (s(sT2), s(sT0)))
        a("    s_add_u32 %s, %s, 0x%x" % (s(sT2), s(sT2), S2ML))
        base(sBml, sWS, s(sT2))
        if opt.get("sb2", 0):
            per = 32 // P2
            a("    s_lshl_b32 %s, %s, %d" % (s(sT0), s(sH), RS2 + 4))
            a("    s_and_b32 %s, %s, %d" % (s(sT1), s(sJ), per - 1))
            a("    s_add_u32 %s, %s, %s" % (s(sT0), s(sT0), s(sT1)))
            a("    s_lshr_b32 %s, %s, %d" % (s(sT1), s(sJ), per.bit_length() - 1))
            a("    s_lshl_b32 %s, %s, 7" % (s(sT1), s(sT1)))
            a("    s_add_u32 %s, %s, %s" % (s(sT0), s(sT0), s(sT1)))
            a("    s_add_u32 %s, %s, 0x%x" % (s(sT0), s(sT0), SRDY))
            base(sBfl, sWS, s(sT0))

    a("    s_cmp_ge_u32 s2, 0x100")
    a("    s_cbranch_scc1 L_END")
    a("    s_load_dwordx16 s[4:19], s[0:1], 0x0")
    a("    s_load_dwordx8 s[20:27], s[0:1], 0x40")
    if opt.get("diagspin"):
        a("    s_memrealtime s[96:97]")
    if prof == 2:
        for i in range(1, 12):
            a("    s_mov_b32 %s, 0" % s(sPROF + 2 * i))
    stamp(0)
    vXo = vAo
    vXSo, vWQ0, vWQ1 = V(), V(), V()
    vXf = V(4, 4)
    vXs = V()
    KVM = 0
    OCLR = 0
    sIdx = sDummy + 0
    a("    v_lshrrev_b32 %s, 6, v0" % v(vT))
    a("    v_and_b32 v0, 63, v0")
    a("    s_lshr_b32 %s, s2, 3" % s(sJ))
    a("    v_readfirstlane_b32 %s, %s" % (s(sW), v(vT)))
    a("    s_and_b32 %s, s2, 7" % s(sH))
    a("    v_lshlrev_b32 %s, 4, v0" % v(vXo))
    a("    v_lshrrev_b32 %s, 3, v0" % v(vL3))
    a("    v_and_b32 %s, 0x70, %s" % (v(vT), v(vXo)))
    a("    v_lshlrev_b32 %s, 2, %s" % (v(vXSo), v(vL3)))
    a("    v_lshl_or_b32 %s, %s, 14, %s" % (v(vWQ0), v(vL3), v(vT)))
    a("    s_and_b32 %s, %s, 24" % (s(sT0), s(sJ)))
    a("    s_add_u32 %s, %s, %s" % (s(sT0), s(sT0), s(sW)))
    a("    s_and_b32 %s, %s, 7" % (s(sT3), s(sJ)))
    a("    s_lshl3_add_u32 %s, %s, %s" % (s(sT3), s(sH), s(sT3)))
    a("    s_lshl_b32 %s, %s, 10" % (s(sT1), s(sT0)))
    a("    s_add_u32 %s, %s, %s" % (s(sT1), s(sT1), s(sT3)))
    a("    s_lshl_b32 %s, %s, 7" % (s(sT1), s(sT1)))
    a("    s_lshl_b32 %s, %s, 5" % (s(sT0), s(sT0)))
    a("    v_add_u32 %s, 0x2000, %s" % (v(vWQ1), v(vWQ0)))

    def later():
        a("    v_lshrrev_b32 %s, 4, v0" % v(vG))
        a("    v_and_b32 %s, 15, v0" % v(vJ))
        a("    s_lshl3_add_u32 %s, %s, %s" % (s(sT3), s(sJ), s(sW)))
        a("    s_lshl_b32 %s, %s, 12" % (s(sT2), s(sH)))
        a("    v_xor_b32 %s, %s, %s" % (v(vT), v(vJ), v(vG)))
        a("    s_add_u32 %s, %s, %s" % (s(sT2), s(sT2), s(sT3)))
        a("    v_lshlrev_b32 %s, 4, %s" % (v(vT), v(vT)))
        a("    s_add_u32 %s, %s, 0xf00" % (s(sT2), s(sT2)))
        a("    v_lshl_or_b32 %s, %s, 8, %s" % (v(vKo), v(vG), v(vT)))
        a("    s_lshl_b32 %s, %s, 12" % (s(sT2), s(sT2)))
        a("    s_lshl_b32 %s, %s, 12" % (s(sTmp), s(sW)))
        a("    s_mov_b32 m0, %s" % s(sTmp))
    PL = opt.get("pl", 1)
    if not PL:
        later()
    a.c("x, this wave's 16 rows of wq, first K piece (LDS-DMA, bank-swizzled through the source address)")
    a("    s_waitcnt lgkmcnt(0)")
    T2 = opt.get("touch2", 0)
    if T2:
        assert not PL
        a("    s_cmp_eq_u32 %s, 1" % s(sW))
        a("    s_cselect_b64 %s, %s, %s" % (s(sB4, 2), s(sWQ, 2), s(sK, 2)))
        a("    s_cselect_b32 %s, %s, %s" % (s(sDummy), s(sT1), s(sT2)))
        a("    s_cmp_gt_u32 %s, 1" % s(sW) if T2 == 1 else "    s_cmp_gt_u32 %s, 1" % s(sT3))
        a("    s_cbranch_scc1 L_NOT2")
        a("    s_load_dword %s, %s, %s" % (s(sDummy), s(sB4, 2), s(sDummy)))
        a("L_NOT2:")
    LN0 = opt.get("ln0", 0)
    if LN0:
        a("    s_cmp_lg_u32 %s, 0" % s(sW))
        a("    s_cbranch_scc1 L_NOX")
        a("    global_load_dwordx4 %s, %s, %s" % (v(vXf, 4), v(vXo), s(sX, 2)))
        a("L_NOX:")
        a("    s_add_u32 %s, %s, 0x%x" % (s(sB0), s(sT0), LH))
    else:
        a("    global_load_dwordx4 %s, %s, %s" % (v(vXf, 4), v(vXo), s(sX, 2)))
        base(sB0, sX, s(sT0))
        a("    global_load_dword %s, %s, %s" % (v(vXs), v(vXSo), s(sB0, 2)))
    base(sB1, sWQ, s(sT1))
    if opt.get("bx", 0):
        a("    s_barrier")
    a("    global_load_dwordx4 %s, %s, %s nt" % (v(vW, 4), v(vWQ0), s(sB1, 2)))
    a("    global_load_dwordx4 %s, %s, %s nt" % (v(vW + 4, 4), v(vWQ1), s(sB1, 2)))
    vm.extend(["x", "xs", "wq0", "wq1"])
    if PL:
        later()
    base(sB2, sK, s(sT2))
    VT = opt.get("vt", 0)

    def vtouch():
        a("    s_cmp_lg_u32 %s, 7" % s(sW))
        a("    s_cbranch_scc1 L_NOVT")
        base(sB3, sVp, s(sT2))
        a("    s_lshl_b32 %s, %s, 19" % (s(sT1), s(sH)))
        base(sB4, sWO, s(sT1))
        a("    v_mov_b32 %s, %s" % (v(vD), s(sB3)))
        a("    v_mov_b32 %s, %s" % (v(vD + 1), s(sB3 + 1)))
        for k, p in enumerate((sWS, sB4, sWG, sWU, sWD)):
            a("    v_writelane_b32 %s, %s, %d" % (v(vD), s(p), k + 1))
            a("    v_writelane_b32 %s, %s, %d" % (v(vD + 1), s(p + 1), k + 1))
        a("    s_lshl_b32 %s, s2, 7" % s(sT1))
        a("    s_add_u32 %s, %s, 0x20000" % (s(sT1), s(sT1)))
        setexec(0x3E, 0)
        a("    v_add_co_u32 %s, vcc, %s, %s" % (v(vD), s(sT1), v(vD)))
        a("    v_addc_co_u32 %s, vcc, 0, %s, vcc" % (v(vD + 1), v(vD + 1)))
        setexec(0x3F, 0)
        a("    global_load_dword %s, %s, off nt" % (v(vSink), v(vD, 2)))
        setexec(0xFFFFFFFF, 0xFFFFFFFF)
        a("L_NOVT:")
    if VT == 1:
        vtouch()
    if opt.get("b0", 1):
        a("    s_barrier")
    WIN = opt.get("win", 3)
    QPOS = opt.get("qpos", 7)
    stream = ["wq0", "wq1", "K0", "K1", "K2", "K3", "V0", "V1", "V2", "V3"]

    def sload(i):
        nm = stream[i]
        k = int(nm[1])
        if KVM == 2:
            if nm[0] == "K":
                a("    s_add_u32 m0, %s, %s" % (s(92), s(sRot + k)))
                a("    global_load_lds_dwordx4 %s, %s nt" % (v(vKo + k), s(sB2, 2)))
            else:
                a("    s_add_u32 m0, %s, %s" % (s(sTmp), s(sRot + k)))
                a("    global_load_lds_dwordx4 %s, %s nt" % (v(vV0 + k), s(sB3, 2)))
        elif nm[0] == "K":
            a("    global_load_lds_dwordx4 %s, %s offset:%d nt" % (v(vKo + k), s(sB2, 2), 1024 * k))
        else:
            if k == 0:
                a("    s_mov_b32 m0, %s" % s(sTmp))
            a("    global_load_lds_dwordx4 %s, %s offset:%d nt" % (v(vV0 + k) if KVM else v(vV1 if k & 1 else vV0), s(sB3, 2), 1024 * k))
        vm.append(nm)
    assert WIN == 3
    WIN0 = opt.get("win0", WIN)
    for i in range(2, WIN0):
        if i > 2:
            a("    v_xor_b32 %s, 0x%x, %s" % (v(vKo + i - 2), 64 * (i - 2), v(vKo)))
        sload(i)
    if VT == 2:
        vtouch()
    base(sB3, sVp, s(sT2))
    for i in (1, 2, 3):
        a("    v_xor_b32 %s, 0x%x, %s" % (v(vKo + i), 64 * i, v(vKo)))
    a("    v_and_b32 %s, 7, v0" % v(vL7))
    a("    s_lshl_b32 %s, %s, 5" % (s(sT1), s(sH)))
    a("    s_add_u32 %s, %s, %s" % (s(sT1), s(sT1), s(sJ)))
    a("    s_mul_i32 %s, %s, %d" % (s(sT1), s(sT1), ST2))
    a("    s_lshl_b32 %s, %s, 8" % (s(sT0), s(sW)))
    a("    s_add_u32 %s, %s, %s" % (s(sT1), s(sT1), s(sT0)))
    a("    s_add_u32 %s, %s, 0x%x" % (s(sT1), s(sT1), S2O))
    base(sBo, sWS, s(sT1))
    E0 = opt.get("e0", 1)
    a("    s_lshl_b32 %s, %s, 3" % (s(sT0), s(sJ)))
    a("    s_add_u32 %s, %s, %s" % (s(sT0), s(sT0), s(sW)))
    if E0:
        a("    s_cmp_lg_u32 %s, %d" % (s(sW), 1 if LN0 else 0))
        a("    s_cbranch_scc1 L_NOE")
        if opt.get("prio", 0) == 1:
            a("    s_setprio 3")
    a("    s_load_dword %s, %s, 0x%x" % (s(sE), s(sWS, 2), EPOCH))
    a("L_NOE:")
    if opt.get("prio", 0) == 2:
        a("    s_cmp_lt_u32 %s, 4" % s(sW))
        a("    s_cbranch_scc1 L_NOPR")
        a("    s_setprio 1")
        a("L_NOPR:")
    a("    s_getpc_b64 %s" % s(sPC, 2))
    a("L_PC:")
    if opt.get("pf", 1):
        if LN0:
            a("    s_cmp_eq_u32 %s, 0" % s(sW))
            a("    s_cbranch_scc1 L_NOPF")
            a("    s_sub_u32 %s, %s, %s" % (s(sT1), s(sT0), s(sJ)))
            a("    s_sub_u32 %s, %s, 1" % (s(sT1), s(sT1)))
        else:
            a("    s_mov_b32 %s, %s" % (s(sT1), s(sT0)))
        a("    s_cmp_gt_u32 %s, (L_CODE_END-L_PC-4)/128" % s(sT1))
        a("    s_cbranch_scc1 L_NOPF")
        a("    s_lshl_b32 %s, %s, 7" % (s(sT1), s(sT1)))
        a("    s_load_dword %s, %s, %s" % (s(sDummy), s(sPC, 2), s(sT1)))
        a("L_NOPF:")
    if opt.get("touch", 1):
        a("    s_xor_b32 %s, %s, %d" % (s(sT1), s(sH), opt.get("dh", 0)))
        a("    s_lshl_b32 %s, %s, 19" % (s(sT1), s(sT1)))
        base(sB4, sWO, s(sT1))
        for k, p in enumerate((sB3, sWG, sWU, sWD, sOUT)):
            a("    s_cmp_eq_u32 %s, %d" % (s(sT0), 8 * (17 + k) + 7))
            a("    s_cselect_b64 %s, %s, %s" % (s(sB4, 2), s(p, 2), s(sB4, 2)))
        a("    s_sub_u32 %s, %s, %d" % (s(sT1), s(sT0), 8 * 16 + 7))
        a("    s_and_b32 %s, %s, 0xffffffc7" % (s(sT3), s(sT1)))
        a("    s_cmp_lg_u32 %s, 0" % s(sT3))
        a("    s_cbranch_scc1 L_NOTOUCH")
        a("    s_load_dword %s, %s, 0x0" % (s(sDummy), s(sB4, 2)))
        a("L_NOTOUCH:")
    a("    v_lshlrev_b32 %s, 1, %s" % (v(vT), v(vG)))
    a("    v_xor_b32 %s, %s, %s" % (v(vT), v(vJ), v(vT)))
    a("    v_lshlrev_b32 %s, 4, %s" % (v(vT), v(vT)))
    a("    v_lshl_or_b32 %s, %s, 8, %s" % (v(vV0), v(vG), v(vT)))
    a("    v_xor_b32 %s, 0x80, %s" % (v(vV1), v(vV0)))
    if KVM == 2:
        for i in (3, 2, 1, 0):
            a("    s_lshr_b32 %s, %s, 3" % (s(sT0), s(sRot + i)))
            a("    s_and_b32 %s, %s, 0x80" % (s(sT0), s(sT0)))
            a("    s_or_b32 %s, %s, %s" % (s(sT0), s(sT0), s(sRot + i)))
            a("    v_xor_b32 %s, %s, %s" % (v(vV0 + i), s(sT0), v(vV0)))
    if KVM == 1:
        a("    v_add_u32 %s, 0x%x, %s" % (v(vV0 + 3), 7168 * 3, v(vV1)))
        a("    v_add_u32 %s, 0x%x, %s" % (v(vV0 + 2), 7168 * 2, v(vV0)))
        a("    v_add_u32 %s, 0x%x, %s" % (v(vV1), 7168, v(vV1)))
    a("    s_add_u32 %s, %s, 0x%x" % (s(sTmp), s(sTmp), LV))
    a("    v_and_b32 %s, 1, v0" % v(vT))
    a("    v_lshlrev_b32 %s, 4, %s" % (v(vT), v(vT)))
    a("    v_lshlrev_b32 %s, %s, %s" % (v(vT + 1), v(vT), v(vT + 2)) if False else
      "    v_mov_b32 %s, 0xffff" % v(vT + 1))
    a("    v_lshlrev_b32 %s, %s, %s" % (v(vT + 1), v(vT), v(vT + 1)))
    a("    v_lshrrev_b32 %s, 1, %s" % (v(vT), v(vL7)))
    for r in range(4):
        a("    v_cmp_eq_u32 vcc, %d, %s" % (r, v(vT)))
        a("    v_cndmask_b32 %s, 0, %s, vcc" % (v(vM + r), v(vT + 1)))
    a("    v_lshrrev_b32 %s, 5, v0" % v(vT))
    a("    s_lshl_b32 %s, %s, 1" % (s(sT0), s(sW)))
    a("    v_add_u32 %s, %s, %s" % (v(vT), s(sT0), v(vT)))
    a("    v_mul_u32_u24 %s, 272, %s" % (v(vT), v(vT)))
    a("    v_and_b32 %s, 1, %s" % (v(vT + 1), v(vG)))
    a("    v_lshl_or_b32 %s, %s, 1, %s" % (v(vT + 1), v(vL7), v(vT + 1)))
    a("    v_lshl_add_u32 %s, %s, 4, %s" % (v(vT), v(vT + 1), v(vT)))
    a("    v_add_u32 %s, 0x%x, %s" % (v(vRedW), LRED, v(vT)))
    a("    v_and_b32 %s, 3, v0" % v(vT))
    a("    v_lshl_add_u32 %s, %s, 2, %s" % (v(vC4), v(vG), v(vT)))
    a("    v_lshlrev_b32 %s, 4, %s" % (v(vC4), v(vC4)))
    a("    v_bfe_u32 %s, v0, 2, 2" % v(vT))
    a("    v_mul_u32_u24 %s, 544, %s" % (v(vT), v(vT)))
    a("    v_add_u32 %s, %s, %s" % (v(vT + 1), v(vC4), v(vT)))
    a("    v_add_u32 %s, 0x%x, %s" % (v(vRedR8), LRED, v(vT + 1)))
    a("    v_add_u32 %s, %s, %s" % (v(vRedR), v(vRedR8), v(vT)))
    a("    s_mov_b32 %s, 0x3db504f3" % s(sScale))
    a("    s_mov_b32 %s, 0x3fb8aa3b" % s(sScale + 1))
    a("    s_mov_b32 %s, 0xffffff00" % s(sM8))
    a("    s_mov_b32 %s, 0xfffffc00" % s(sM10))

    a.c("LayerNorm of x, rounded to bf16 where the reference rounds")
    vXu = V(8, 4)
    vXk = V(8, 4)
    if LN0:
        a("    v_add_u32 %s, %s, %s" % (v(vXSo), s(sB0), v(vXSo)))
        a("    s_cmp_lg_u32 %s, 0" % s(sW))
        a("    s_cbranch_scc1 L_NOLN")
    waitfor("xs")
    stamp(1)
    for i in range(4):
        a("    v_lshlrev_b32 %s, 16, %s" % (v(vXu + 2 * i), v(vXf + i)))
        a("    v_and_b32 %s, 0xffff0000, %s" % (v(vXu + 2 * i + 1), v(vXf + i)))
    for i in range(4):
        a("    v_add_f32 %s, %s, %s" % (v(vT + i), v(vXu + 2 * i), v(vXu + 2 * i + 1)))
    a("    v_add_f32 %s, %s, %s" % (v(vT), v(vT), v(vT + 1)))
    a("    v_add_f32 %s, %s, %s" % (v(vT + 2), v(vT + 2), v(vT + 3)))
    a("    v_add_f32 %s, %s, %s" % (v(vT), v(vT), v(vT + 2)))
    a("    v_mul_f32 %s, 0x3b000000, %s" % (v(vT), v(vT)))
    wavesum_to_sgpr(vT, sMean)
    for i in range(8):
        a("    v_subrev_f32 %s, %s, %s" % (v(vXk + i), s(sMean), v(vXu + i)))
    a("    v_mul_f32 %s, %s, %s" % (v(vT), v(vXk), v(vXk)))
    a("    v_mul_f32 %s, %s, %s" % (v(vT + 1), v(vXk + 1), v(vXk + 1)))
    for i in range(2, 8):
        a("    v_fmac_f32 %s, %s, %s" % (v(vT + (i & 1)), v(vXk + i), v(vXk + i)))
    a("    v_add_f32 %s, %s, %s" % (v(vT), v(vT), v(vT + 1)))
    a("    v_mul_f32 %s, 0x3b000000, %s" % (v(vT), v(vT)))
    wavesum_to_sgpr(vT, sVar)
    a("    v_mov_b32 %s, %s" % (v(vT + 1), s(sMean)))
    bf16r(vT + 1, vT + 1)
    a("    v_mov_b32 %s, %s" % (v(vT), s(sVar)))
    bf16r(vT, vT)
    a("    v_add_f32 %s, 0x3727c5ac, %s" % (v(vT), v(vT)))
    bf16r(vT, vT)
    a("    v_sqrt_f32 %s, %s" % (v(vT), v(vT)))
    bf16r(vT, vT)
    a("    v_rcp_f32 %s, %s" % (v(vT + 2), v(vT)))
    vA = V(8, 4)
    if LN0:
        for i in range(0, 8, 2):
            a("    v_pk_add_f32 %s, %s, %s op_sel:[0,1] op_sel_hi:[1,1] neg_lo:[0,1] neg_hi:[0,1]" % (v(vXu + i, 2), v(vXu + i, 2), v(vT, 2)))
        for i in range(4):
            a("    v_cvt_pk_bf16_f32 %s, %s, %s" % (v(vXf + i), v(vXu + 2 * i), v(vXu + 2 * i + 1)))
        for i in range(4):
            a("    v_lshlrev_b32 %s, 16, %s" % (v(vXu + 2 * i), v(vXf + i)))
            a("    v_and_b32 %s, 0xffff0000, %s" % (v(vXu + 2 * i + 1), v(vXf + i)))
        for i in range(0, 8, 2):
            a("    v_pk_mul_f32 %s, %s, %s op_sel_hi:[1,0]" % (v(vXk + i, 2), v(vXu + i, 2), v(vT + 2, 2)))
        for i in range(0, 8, 2):
            a("    v_pk_fma_f32 %s, %s, %s, %s op_sel_hi:[1,0,1] neg_lo:[1,0,0] neg_hi:[1,0,0]" %
              (v(vXu + i, 2), v(vXk + i, 2), v(vT, 2), v(vXu + i, 2)))
        for i in range(0, 8, 2):
            a("    v_pk_fma_f32 %s, %s, %s, %s op_sel_hi:[1,0,1]" % (v(vXk + i, 2), v(vXu + i, 2), v(vT + 2, 2), v(vXk + i, 2)))
        for i in range(4):
            a("    v_cvt_pk_bf16_f32 %s, %s, %s" % (v(vXf + i), v(vXk + 2 * i), v(vXk + 2 * i + 1)))
        a("    v_add_u32 %s, 0x%x, %s" % (v(vT), LH, v(vXo)))
        a("    ds_write_b128 %s, %s" % (v(vT), v(vXf, 4)))
        a("    s_waitcnt lgkmcnt(0)")
        a("    s_load_dword %s, %s, 0x%x" % (s(sE), s(sWS, 2), EPOCH))
        a("L_NOLN:")
        a("    s_barrier")
        a("    ds_read_b32 %s, %s" % (v(vXs), v(vXSo)))
        a("    s_mov_b32 %s, 0x01000100" % s(sT0))
        a("    s_mov_b32 %s, 0x03020302" % s(sT1))

        def xoperand():
            a("    s_waitcnt lgkmcnt(0)")
            for i in range(2):
                a("    v_perm_b32 %s, %s, %s, %s" % (v(vT + 5 + i), v(vXs), v(vXs), s(sT0 + i)))
            for i in range(2):
                for r in range(4):
                    a("    v_and_b32 %s, %s, %s" % (v(vA + 4 * i + r), v(vT + 5 + i), v(vM + r)))
        if LN0 == 1:
            xoperand()
    else:
        a("    v_lshlrev_b32 %s, 16, %s" % (v(vT + 3), v(vXs)))
        a("    v_and_b32 %s, 0xffff0000, %s" % (v(vT + 4), v(vXs)))
        a("    v_sub_f32 %s, %s, %s" % (v(vT + 3), v(vT + 3), v(vT + 1)))
        a("    v_sub_f32 %s, %s, %s" % (v(vT + 4), v(vT + 4), v(vT + 1)))
        bf16r(vT + 3, vT + 3)
        bf16r(vT + 4, vT + 4)
        for i in range(2):
            y, q = vT + 3 + i, vT + 5 + i
            a("    v_mul_f32 %s, %s, %s" % (v(q), v(y), v(vT + 2)))
            a("    v_fma_f32 %s, -%s, %s, %s" % (v(y), v(q), v(vT), v(y)))
            a("    v_fmac_f32 %s, %s, %s" % (v(q), v(y), v(vT + 2)))
            a("    v_cvt_pk_bf16_f32 %s, %s, %s" % (v(q), v(q), v(q)))
            for r in range(4):
                a("    v_and_b32 %s, %s, %s" % (v(vA + 4 * i + r), v(q), v(vM + r)))
    a("    v_lshlrev_b32 %s, 4, %s" % (v(vQo), v(vJ)))
    a("    v_mul_u32_u24 %s, %d, %s" % (v(vT + 7), ST1, v(vG)))
    a("    v_add_u32 %s, %s, %s" % (v(vQo), v(vT + 7), v(vQo)))

    def tags():
        a("    s_add_u32 %s, %s, 1" % (s(sT32), s(sE)))
        a("    s_and_b32 %s, %s, 0xff" % (s(sTag8), s(sT32)))
        a("    s_and_b32 %s, %s, 0x3ff" % (s(sTag10), s(sT32)))
        a("    v_mov_b32 %s, %s" % (v(vTag8), s(sTag8)))
        a("    v_mov_b32 %s, %s" % (v(vTag10), s(sTag10)))
    if not E0:
        a("    s_waitcnt lgkmcnt(0)")
        tags()
    a.c("q partial: one-hot A operand turns the row-major weight registers into a GEMV")
    waitfor("wq0")
    for i in range(WIN0, WIN + 1):
        sload(i)
    if LN0 == 2:
        xoperand()
    waitfor("clr" if OCLR else "wq1")
    sload(WIN + 1)
    if LN0 == 3:
        xoperand()
    stamp(2)
    a("    v_mfma_f32_16x16x32_bf16 %s, %s, %s, 0" % (v(vD, 4), v(vA, 4), v(vW, 4)))
    a("    v_mfma_f32_16x16x32_bf16 %s, %s, %s, %s" % (v(vD, 4), v(vA + 4, 4), v(vW + 4, 4), v(vD, 4)))

    def red_publish(nrows, tagv, mask, rnd, basepair, label, mid=None):
        a("    s_waitcnt lgkmcnt(0)")
        a("    s_barrier")
        a("    s_cmp_lg_u32 %s, 0" % s(sW))
        a("    s_cbranch_scc1 %s" % label)
        m = V.mark()
        r = V(16, 4)
        n = nrows // 4
        for i in range(n):
            a("    ds_read_b128 %s, %s offset:%d" % (v(r + 4 * i, 4), v(vRedR if n == 4 else vRedR8), 272 * i))
        if mid:
            mid()
        a("    s_waitcnt lgkmcnt(%d)" % (0 if prof else n - 2))
        a("    v_pk_add_f32 %s, %s, %s" % (v(r, 2), v(r, 2), v(r + 4, 2)))
        a("    v_pk_add_f32 %s, %s, %s" % (v(r + 2, 2), v(r + 2, 2), v(r + 6, 2)))
        if n == 4:
            a("    s_waitcnt lgkmcnt(0)")
            a("    v_pk_add_f32 %s, %s, %s" % (v(r + 8, 2), v(r + 8, 2), v(r + 12, 2)))
            a("    v_pk_add_f32 %s, %s, %s" % (v(r + 10, 2), v(r + 10, 2), v(r + 14, 2)))
            a("    v_pk_add_f32 %s, %s, %s" % (v(r, 2), v(r, 2), v(r + 8, 2)))
            a("    v_pk_add_f32 %s, %s, %s" % (v(r + 2, 2), v(r + 2, 2), v(r + 10, 2)))
        for sh in (4, 8):
            for i in range(4):
                a("    v_add_f32_dpp %s, %s, %s row_ror:%d %s" % (v(r + i), v(r + i), v(r + i), sh, DPP))
        for i in range(4):
            if rnd:
                a("    v_add_u32 %s, 0x%x, %s" % (v(r + i), rnd, v(r + i)))
        setexec(0x000F000F, 0x000F000F)
        for i in range(4):
            a("    v_and_or_b32 %s, %s, %s, %s" % (v(r + i), v(r + i), s(mask), v(tagv)))
        a("    global_store_dwordx4 %s, %s, %s%s" % (v(vC4), v(r, 4), s(basepair, 2), "" if (nrows == 16 and opt.get("xs", 0) & 4) else " sc1"))
        setexec(0xFFFFFFFF, 0xFFFFFFFF)
        V.release(m)

    a("    s_mul_i32 %s, %s, %d" % (s(sT0), s(sH), 4 * ST1))
    a("    s_add_u32 %s, %s, 0x%x" % (s(sT0), s(sT0), S1))
    a("    s_lshr_b32 %s, %s, 3" % (s(sT1), s(sJ)))
    a("    s_mul_i32 %s, %s, %d" % (s(sT1), s(sT1), ST1 - 2048))
    a("    s_add_u32 %s, %s, %s" % (s(sT2), s(sT1), s(sT0)))
    a("    s_lshl_b32 %s, %s, 8" % (s(sT1), s(sJ)))
    a("    s_add_u32 %s, %s, %s" % (s(sT1), s(sT1), s(sT2)))
    base(sB0, sWS, s(sT1))
    a("    s_lshl_b32 %s, %s, 8" % (s(sT1), s(sW)))
    a("    s_add_u32 %s, %s, %s" % (s(sT1), s(sT1), s(sT0)))
    base(sB1, sWS, s(sT1))
    V.release(mk)
    if E0:
        a("    s_cmp_lg_u32 %s, 0" % s(sW))
        a("    s_cbranch_scc1 L_NOE2")
        a("    s_waitcnt lgkmcnt(0)")
        tags()
        a("    v_mov_b32 %s, 0x%x" % (v(vT), LEP))
        a("    v_mov_b32 %s, %s" % (v(vT + 1), s(sE)))
        a("    ds_write_b32 %s, %s" % (v(vT), v(vT + 1)))
        if opt.get("pg", 0):
            a("    v_mov_b32 %s, 0" % v(vT + 4))
            a("    ds_write_b32 %s, %s offset:%d" % (v(vT), v(vT + 4), LRM - LEP))
        a("    v_lshlrev_b32 %s, 2, v0" % v(vT + 2))
        a("    v_mov_b32 %s, 0xff800000" % v(vT + 3))
        a("    v_and_b32 %s, 0x7c, %s" % (v(vT + 2), v(vT + 2)))
        a("    v_add_u32 %s, 0x%x, %s" % (v(vT + 2), LMX, v(vT + 2)))
        a("    ds_write_b32 %s, %s" % (v(vT + 2), v(vT + 3)))
        a("L_NOE2:")
    setexec(0x00FF00FF, 0xFF00FF00)
    a("    ds_write_b128 %s, %s" % (v(vRedW), v(vD, 4)))
    setexec(0xFFFFFFFF, 0xFFFFFFFF)
    vQ = V(4, 4)
    vQ2 = V(4, 4)
    QP1 = opt.get("qp1", 0)
    K3F = opt.get("k3f", 0)

    def k3first():
        waitfor("K0")
        sload(5)
    a.c("cross-wave sum, wave 0 publishes 64 tagged q partials; K / V keep streaming, three pieces in flight per wave")
    keep0 = list(vm)
    red_publish(16, vTag8, sM8, 0x80, sB0, "L_QPUB", mid=k3first if K3F else None)

    def qload():
        a("    global_load_dwordx4 %s, %s, %s sc1" % (v(vQ, 4), v(vQo), s(sB1, 2)))

    extra = {}
    CW = opt.get("cw", 0)
    C3 = opt.get("c3", 0)

    def run_sched(text):
        for tok in text.split():
            if tok[0] == "|":
                waitfor(tok[1:])
            elif tok == "q":
                qload()
                vm.append("q")
            elif tok in stream:
                sload(stream.index(tok))
            else:
                extra[tok]()
                if len(tok) > 1:
                    vm.append(tok)

    def paced(gete=False):
        stamp(3)
        assert WIN == 3
        if "K3" not in vm:
            run_sched(["|K0 K3", "|K0 K3 V0", "K3 |K0 V0", "|K1 K3", "|K0 K3"][CW])
        if gete:
            a("    s_waitcnt lgkmcnt(0)")
            a("    v_readfirstlane_b32 %s, %s" % (s(sE), v(vT + 7)))
            a("    s_nop 0")
            tags()
        attn_addresses()
        run_sched(["|K1 V0", "|K1 V1", "|K1 V1", "|K2 V0", "|K2 V0"][CW])
        if C3:
            run_sched("|K2 V1")
    keep = keep0
    vm.append("qstore")
    DQ = opt.get("dq", 0)
    sQF = 88
    if DQ:
        a("    s_and_b32 %s, %s, 7" % (s(sT0), s(sJ)))
        a("    s_lshl3_add_u32 %s, %s, %s" % (s(sT0), s(sH), s(sT0)))
        a("    s_lshl_b32 %s, %s, 5" % (s(sT0), s(sT0)))
        a("    s_lshr_b32 %s, %s, 3" % (s(sT1), s(sJ)))
        a("    s_add_u32 %s, %s, %s" % (s(sT0), s(sT0), s(sT1)))
        a("    s_lshl_b32 %s, %s, 2" % (s(sT0), s(sT0)))
        a("    s_add_u32 %s, %s, 0x%x" % (s(sT0), s(sT0), SQF))
        setexec(1, 0)
        a("    v_mov_b32 %s, %s" % (v(vT), s(sT0)))
        a("    v_mov_b32 %s, %s" % (v(vT + 1), s(sT32)))
        a("    global_store_dword %s, %s, %s sc1" % (v(vT), v(vT + 1), s(sWS, 2)))
        setexec(0xFFFFFFFF, 0xFFFFFFFF)
        vm.append("qflag")
    paced()
    a("    s_branch L_PACED")
    a("L_QPUB:")
    vm[:] = keep
    if E0:
        a("    v_mov_b32 %s, 0x%x" % (v(vT + 7), LEP))
        a("    ds_read_b32 %s, %s" % (v(vT + 7), v(vT + 7)))
    paced(E0)
    a("L_PACED:")
    if DQ:
        a("    s_lshl3_add_u32 %s, %s, %s" % (s(sT0), s(sH), s(sW)))
        a("    s_lshl_b32 %s, %s, 7" % (s(sT0), s(sT0)))
        a("    s_add_u32 %s, %s, 0x%x" % (s(sT0), s(sT0), SQF))
        a("    s_load_dwordx4 %s, %s, %s glc" % (s(sQF, 4), s(sWS, 2), s(sT0)))
        a("    s_mov_b32 %s, %s" % (s(sRep), s(sT32)))
        a("    s_mov_b32 %s, %s" % (s(sRep + 1), s(sT32)))
    common = list(vm)
    SCHED = {
        "s": ["|K2 V1 |K3 V2 q |V0 V3"],
        "w": ["|K2 V1 |K3 V2 q |V0 V3 A |V1 T0 B",
              "|K2 V1 |K3 V2 q |V0 V3 A T0 |V1 T1 B",
              "|K2 V1 |K3 V2 q V3 A |V0 T0 |V1 T1 B",
              "|K2 V1 |K3 V2 q V3 A |V0 T0 |V1 T1 T2 B",
              "|K2 V1 |K3 V2 q |V0 V3 A B",
              "|K2 V1 V2 |K3 V3 q A |V0 T0 |V1 T1 B |V2 T2",
              "|K2 V1 |K3 V2 q |V0 V3 A T0 |V1 T1",
              "|K2 V1 |K3 V2 q |V0 V3 A |V1 T0"],
        "f": ["|K2 V1 |K3 V2 q |V0 V3 A",
              "|K2 V1 |K3 V2 q |V0 V3 A |V1 D0 D1",
              "|K2 V1 |K3 V2 q |V0 V3 A D0 |V1 D1",
              "|K2 V1 |K3 V2 q |V0 V3 A |V1 D0",
              "|K2 V1 |K3 V2 q |V0 V3 A |V1 Qa"],
    }
    if C3:
        SCHED = {k_: [x_.replace("|K2 V1 ", "", 1) for x_ in v_] for k_, v_ in SCHED.items()}
    if opt.get("pt", 0):
        def pretouch():
            setexec(0xFFFF, 0)
            a("    global_load_dwordx4 %s, %s, %s%s" % (v(vQ2, 4), v(vAo), s(sBo, 2), ["", "", " nt"][opt["pt"]]))
            setexec(0xFFFFFFFF, 0xFFFFFFFF)
        extra["PT"] = pretouch
        SCHED = {k_: [x_.replace("|V0 V3", "|V0 V3 PT") for x_ in v_] for k_, v_ in SCHED.items()}
    QV = opt.get("qv", 0)
    if QV:
        old_, new_ = "|K2 V1 |K3 V2 q |V0 V3", ["", "|K2 V1 |K3 q V2 |V0 V3", "|K2 V1 |K3 V2 |V0 q V3", "|K2 V1 |K3 V2 |V0 V3 q",
                                                 "|K2 V1 |K3 q V2 V3", "|K3 q V1 V2 V3", "|K2 V1 |K3 q V2 V3 |V0"][QV]
        SCHED = {k_: [x_.replace(old_, new_) for x_ in v_] for k_, v_ in SCHED.items()}
    if CW >= 3:
        hd = ["|K3 q V1 V2 |V0 V3", "|K3 V1 q V2 |V0 V3", "|K3 V1 q |V0 V2 V3", "|K3 V1 V2 q |V0 V3"][opt.get("cv", 0)]
        SCHED = {k_: [x_.replace("|K2 V1 |K3 V2 q |V0 V3", hd) for x_ in v_] for k_, v_ in SCHED.items()}
    elif CW:
        SCHED = {
            "s": ["|K2 V2 |K3 V3 q"],
            "w": ["|K2 V2 |K3 V3 q A |V0 T0 |V1 T1 B |V2 T2",
                  "|K2 V2 |K3 V3 q A |V0 T0 |V1 T1 B |V2 T2 |V3 T3",
                  "|K2 V2 |K3 V3 q A |V1 T0 B |V2 T1",
                  "|K2 V2 |K3 V3 A |V0 q T0 |V1 T1 B |V2 T2"],
            "f": ["|K2 V2 |K3 V3 q A", "|K2 V2 |K3 V3 q A |V0 D0 |V1 D1", "|K2 V2 |K3 V3 A |V0 q D0 |V1 D1"],
        }
        if opt.get("ss"):
            SCHED["s"] = ["|K2 V2 |K3 V3 |V0 q"]
    a("    s_cmp_lt_u32 %s, 16" % s(sJ))
    a("    s_cbranch_scc1 L_ROLE_WO")
    a("    s_cmp_lt_u32 %s, 4" % s(sH))
    a("    s_cbranch_scc1 L_ROLE_FFN")
    a("    s_cmp_lt_u32 %s, 28" % s(sJ))
    a("    s_cbranch_scc1 L_ROLE_FFN")

    def attention(sched, t0=(), t1=(), w0extra=None):
        m0 = V.mark()
        vKa = V(16, 4)
        vQb = V(16, 4)
        vPb = vQb
        vVa = vKa
        vS = V(4, 4)
        vMx, vMl = V(), V(4, 4)
        def kreads():
            for i in range(4):
                a("    ds_read_b128 %s, %s" % (v(vKa + 4 * i, 4), v(vAk + i)))

        vm[:] = common
        if DQ:
            uid[0] += 1
            ud = uid[0]
            head = "|K2 V1 "
            assert sched.startswith(head + "|K3 V2 q |V0 V3")
            run_sched(head)
            if DQ == 2:
                a("    s_getreg_b32 %s, hwreg(HW_REG_IB_STS, 8, 4)" % s(sT0))
                a("    s_cmp_lg_u32 %s, 0" % s(sT0))
                a("    s_cbranch_scc1 L_QLATE%d" % ud)
            a("    s_waitcnt lgkmcnt(0)")
            a("    s_xor_b64 %s, %s, %s" % (s(sQF, 2), s(sQF, 2), s(sRep, 2)))
            a("    s_xor_b64 %s, %s, %s" % (s(sQF + 2, 2), s(sQF + 2, 2), s(sRep, 2)))
            a("    s_or_b64 %s, %s, %s" % (s(sQF, 2), s(sQF, 2), s(sQF + 2, 2)))
            a("    s_cbranch_scc1 L_QLATE%d" % ud)
            mid = list(vm)
            rest_ = sched[len(head + "|K3 V2 q |V0 V3"):]
            run_sched("q |K3 V2 |V0 V3 " + " ".join(t for t in rest_.split() if t[0] != "|"))
            kreads()
            waitfor("q")
            early = [t for t in vm if t != "q"]
            a("    s_branch L_QJOIN%d" % ud)
            a("L_QLATE%d:" % ud)
            vm[:] = mid
            run_sched(sched[len(head):])
            kreads()
            waitfor("q")
            assert early == [t for t in vm if t != "q"]
            a("L_QJOIN%d:" % ud)
            NVA = 63
        else:
            run_sched(sched)
            kreads()
            NVA = len(vm) - 1 - vm.index("q")
        ntail = len(vm) - 1 - vm.index("V3") + len(t0)
        tp = ()
        def qcheck():
            for k in range(4):
                a("    v_xor_b32 %s, %s, %s" % (v(vQ + k), s(sTag8), v(vQ + k)))
            a("    v_or3_b32 %s, %s, %s, %s" % (v(vT), v(vQ), v(vQ + 1), v(vQ + 2)))
            a("    v_or_b32 %s, %s, %s" % (v(vT), v(vT), v(vQ + 3)))
            a("    v_and_b32 %s, 0xff, %s" % (v(vT), v(vT)))
            a("    v_cmp_ne_u32 vcc, 0, %s" % v(vT))
        RDY = opt.get("rdy", 0)

        def rdyhint():
            uid[0] += 1
            a("    s_cmp_lg_u32 %s, 7" % s(sW))
            a("    s_cbranch_scc1 L_NORDY%d" % uid[0])
            setexec(1, 0)
            a("    v_mov_b32 %s, 0x%x" % (v(vG0), SRDY - S2ML))
            a("    v_mov_b32 %s, %s" % (v(vMx), s(sT32)))
            a("    global_store_dword %s, %s, %s sc1" % (v(vG0), v(vMx), s(sBml, 2)))
            setexec(0xFFFFFFFF, 0xFFFFFFFF)
            a("L_NORDY%d:" % uid[0])
        a.c("q: sum of the four row partials -> bf16 -> LDS; scores, chunk max, exp, P V")
        MB = opt.get("mb", 1)
        AMX = opt.get("amx", 1)
        if QP1:
            uid[0] += 1
            uq = uid[0]
            a("    s_waitcnt vmcnt(%d)" % (len(vm) - 1 - vm.index("q1") + len(tp)))
            qcheck()
            a("    s_cbranch_vccz L_QOK%d" % uq)
            a("    s_waitcnt vmcnt(%d)" % (NVA + len(tp)))
            for i in range(0, 4, 2):
                a("    v_mov_b64 %s, %s" % (v(vQ + i, 2), v(vQ2 + i, 2)))
            poll(qload, qcheck, NVA + len(tp), cnt=15 if opt.get("astamps") else None)
            a("L_QOK%d:" % uq)
        else:
            poll(qload, qcheck, NVA + len(tp), cnt=15 if opt.get("astamps") else None)
        stamp(4)
        treduce4(vQ)
        a("    v_cvt_pk_bf16_f32 %s, %s, %s" % (v(vQ), v(vQ), v(vQ)))
        a("    ds_write_b16 %s, %s" % (v(vAqw), v(vQ)))
        a("    s_waitcnt lgkmcnt(0)")
        a("    s_barrier")
        for i in range(4):
            a("    ds_read_b128 %s, %s offset:%d" % (v(vQb + 4 * i, 4), v(vAq), 64 * i))
        T0P = opt.get("t0p", 1)
        if T0P == 0:
            for f in t0:
                f()
        for i in range(4):
            a("    s_waitcnt lgkmcnt(%d)" % (0 if prof else 3 - i))
            a("    v_mfma_f32_16x16x32_bf16 %s, %s, %s, %s" %
              (v(vD, 4), v(vKa + 4 * i, 4), v(vQb + 4 * i, 4), "0" if i == 0 else v(vD, 4)))
        if T0P == 1:
            for f in t0:
                f()
        a("    v_cvt_pk_bf16_f32 %s, %s, %s" % (v(vT), v(vD), v(vD + 1)))
        a("    v_cvt_pk_bf16_f32 %s, %s, %s" % (v(vT + 1), v(vD + 2), v(vD + 3)))
        for rnd in range(2):
            for i in range(2):
                a("    v_lshlrev_b32 %s, 16, %s" % (v(vS + 2 * i), v(vT + i)))
                a("    v_and_b32 %s, 0xffff0000, %s" % (v(vS + 2 * i + 1), v(vT + i)))
            if rnd == 0:
                for i in (0, 2):
                    a("    v_pk_mul_f32 %s, %s, %s op_sel_hi:[1,0]" % (v(vS + i, 2), v(vS + i, 2), s(sScale, 2)))
                a("    v_cvt_pk_bf16_f32 %s, %s, %s" % (v(vT), v(vS), v(vS + 1)))
                a("    v_cvt_pk_bf16_f32 %s, %s, %s" % (v(vT + 1), v(vS + 2), v(vS + 3)))
        a("    v_max3_f32 %s, %s, %s, %s" % (v(vMx), v(vS), v(vS + 1), v(vS + 2)))
        a("    v_max_f32 %s, %s, %s" % (v(vMx), v(vMx), v(vS + 3)))
        if AMX:
            setexec(0x000F000F, 0x000F000F)
            a("    ds_max_f32 %s, %s" % (v(vAmr), v(vMx)))
        else:
            for sw in ("16", "32"):
                a("    v_mov_b32 %s, %s" % (v(vT), v(vMx)))
                a("    v_permlane%s_swap_b32 %s, %s" % (sw, v(vMx), v(vT)))
                a("    v_max_f32 %s, %s, %s" % (v(vMx), v(vMx), v(vT)))
            setexec(0xF, 0)
            a("    ds_write_b32 %s, %s" % (v(vAmw), v(vMx)))
        setexec(0xFFFFFFFF, 0xFFFFFFFF)
        if T0P == 2:
            for f in t0:
                f()
        VB3 = opt.get("vb3", 0)

        def vreads(t):
            for hh in range(2):
                a("    ds_read_b64_tr_b16 %s, %s offset:%d" % (v(vVa + 4 * t + 2 * hh, 2), v(vAv), 8192 * t + 4096 * hh))
        if VB3:
            assert MB
            a("    s_waitcnt vmcnt(%d) lgkmcnt(0)" % ntail)
            for f in t1:
                f()
        else:
            a("    s_waitcnt lgkmcnt(0)")
        if RDY == 1:
            rdyhint()
        a("    s_barrier")
        if AMX:
            a("    ds_read_b32 %s, %s" % (v(vMl), v(vAmr)))
            if RDY == 2:
                rdyhint()
            if VB3:
                for t in range(4):
                    vreads(t)
            a("    s_waitcnt lgkmcnt(%d)" % (8 if VB3 and not prof else 0))
        else:
            a("    ds_read_b128 %s, %s" % (v(vT, 4), v(vAmr)))
            a("    ds_read_b128 %s, %s offset:16" % (v(vT + 4, 4), v(vAmr)))
            if VB3:
                for t in range(4):
                    vreads(t)
            a("    s_waitcnt lgkmcnt(%d)" % (8 if VB3 and not prof else 0))
            a("    v_max3_f32 %s, %s, %s, %s" % (v(vT), v(vT), v(vT + 1), v(vT + 2)))
            a("    v_max3_f32 %s, %s, %s, %s" % (v(vT + 4), v(vT + 4), v(vT + 5), v(vT + 6)))
            a("    v_max3_f32 %s, %s, %s, %s" % (v(vT), v(vT), v(vT + 3), v(vT + 7)))
            a("    v_max_f32 %s, %s, %s" % (v(vMl), v(vT), v(vT + 4)))
        for i in (0, 2):
            a("    v_pk_add_f32 %s, %s, %s op_sel_hi:[1,0] neg_lo:[0,1] neg_hi:[0,1]" % (v(vS + i, 2), v(vS + i, 2), v(vMl, 2)))
        for i in (0, 2):
            a("    v_pk_mul_f32 %s, %s, %s op_sel:[0,1] op_sel_hi:[1,1]" % (v(vS + i, 2), v(vS + i, 2), s(sScale, 2)))
        for i in range(4):
            a("    v_exp_f32 %s, %s" % (v(vS + i), v(vS + i)))
        a("    v_cvt_pk_bf16_f32 %s, %s, %s" % (v(vT + 2), v(vS), v(vS + 1)))
        a("    v_cvt_pk_bf16_f32 %s, %s, %s" % (v(vT + 3), v(vS + 2), v(vS + 3)))
        setexec(0x000F000F, 0x000F000F)
        a("    ds_write_b64 %s, %s" % (v(vApw), v(vT + 2, 2)))
        a("    v_pk_add_f32 %s, %s, %s" % (v(vT, 2), v(vS, 2), v(vS + 2, 2)))
        a("    v_add_f32 %s, %s, %s" % (v(vT), v(vT), v(vT + 1)))
        a("    ds_write_b32 %s, %s" % (v(vAlw), v(vT)))
        setexec(0xFFFFFFFF, 0xFFFFFFFF)
        if MB and not VB3:
            a("    s_waitcnt vmcnt(%d) lgkmcnt(0)" % ntail)
            for f in t1:
                f()
        else:
            a("    s_waitcnt lgkmcnt(0)")
        a("    s_barrier")
        if opt.get("astamps"):
            stamp(13)
        if RDY == 3:
            rdyhint()
        uid[0] += 1
        u = uid[0]

        def preads():
            for i in range(4):
                a("    ds_read_b128 %s, %s offset:%d" % (v(vPb + 4 * i, 4), v(vApr), 64 * i))

        def mlpub():
            a("    v_add_f32 %s, %s, %s" % (v(vMl + 1), v(vT), v(vT + 1)))
            allred_hi(vMl + 1, vT, "add")
            setexec(0xF, 0)
            a("    global_store_dwordx4 %s, %s, %s%s" % (v(vAo), v(vMl, 4), s(sBml, 2), XS))
            setexec(0xFFFFFFFF, 0xFFFFFFFF)

        SB2 = opt.get("sb2", 0)

        def sflag(t=vT):
            setexec((1 << R2) - 1, 0)
            a("    v_lshlrev_b32 %s, %d, v0" % (v(t), RS2))
            a("    global_store_byte %s, %s, %s%s" % (v(t), v(vTag8), s(sBfl, 2), "" if opt.get("xs", 0) & 2 else " sc1"))
            setexec(0xFFFFFFFF, 0xFFFFFFFF)

        def pv(first):
            for t in range(4):
                a("    s_waitcnt lgkmcnt(%d)" % (0 if prof else first[t]))
                a("    v_mfma_f32_16x16x32_bf16 %s, %s, %s, %s" %
                  (v(vD, 4), v(vPb + 4 * t, 4), v(vVa + 4 * t, 4), "0" if t == 0 else v(vD, 4)))
        if MB:
            a("    ds_read_b64 %s, %s" % (v(vT, 2), v(vAlr)))
            for t in range(4):
                a("    ds_read_b128 %s, %s offset:%d" % (v(vPb + 4 * t, 4), v(vApr), 64 * t))
                if not VB3:
                    vreads(t)
            a("    v_mov_b32 %s, %s" % (v(vMl + 2), s(sT32)))
            a("    v_mov_b32 %s, %s" % (v(vMl + 3), s(sT32)))
            a("    s_cmp_lg_u32 %s, 0" % s(sW))
            a("    s_cbranch_scc1 L_NOML%d" % u)
            if SB2 in (1, 3):
                sflag(vT + 2)
            a("    s_waitcnt lgkmcnt(%d)" % (0 if prof else (4 if VB3 else 12)))
            mlpub()
            if SB2 in (2, 4):
                sflag(vT + 2)
            a("L_NOML%d:" % u)
            pv([3, 2, 1, 0] if VB3 else [9, 6, 3, 0])
        else:
            preads()
            a("    s_cmp_lg_u32 %s, 0" % s(sW))
            a("    s_cbranch_scc1 L_NOML%d" % u)
            a("    ds_read_b64 %s, %s" % (v(vT, 2), v(vAlr)))
            if SB2 == 3:
                sflag(vT + 2)
            if SB2 == 4:
                a("    s_waitcnt vmcnt(%d)" % ntail)
                sflag(vT + 2)
            a("    v_mov_b32 %s, %s" % (v(vMl + 2), s(sT32)))
            a("    v_mov_b32 %s, %s" % (v(vMl + 3), s(sT32)))
            a("    s_waitcnt lgkmcnt(0)")
            mlpub()
            nx = w0extra() if w0extra else 0
            if SB2 in (3, 4):
                nx += 1
            if SB2 == 1:
                sflag()
                nx += 1
            a("    s_waitcnt vmcnt(%d)" % (1 + nx + ntail))
            if SB2 == 2:
                sflag()
            a("    s_branch L_MLD%d" % u)
            a("L_NOML%d:" % u)
            a("    s_waitcnt vmcnt(%d)" % ntail)
            a("L_MLD%d:" % u)
            if opt.get("astamps"):
                stamp(14)
            for f in t1:
                f()
            a("    s_barrier")
            stamp(5)
            for t in range(4):
                vreads(t)
            pv([6, 4, 2, 0])
        setexec(0xFFFF, 0)
        if OCLR:
            a("    v_min_u32 %s, -2, %s" % (v(vD), v(vD)))
        else:
            for i in range(4):
                a("    v_and_or_b32 %s, %s, %s, %s" % (v(vD + i), v(vD + i), s(sM10), v(vTag10)))
        a("    global_store_dwordx4 %s, %s, %s%s" % (v(vAo), v(vD, 4), s(sBo, 2), XS))
        setexec(0xFFFFFFFF, 0xFFFFFFFF)
        stamp(6)
        if opt.get("ackstamp") and not w0extra:
            a("    s_waitcnt vmcnt(0)")
            stamp(1)
        V.release(m0)

    attention(SCHED["s"][0])
    finish()

    a("L_ROLE_WO:")
    mrole = V.mark()
    sD0 = sU
    vWo = V(4)

    def wo_setup():
        if opt.get("dh", 0):
            a("    s_%s_b32 %s, %s, %d" % ("xor", s(sH), s(sH), opt["dh"]))
        a("    s_lshr_b32 %s, %s, 3" % (s(sT1), s(sJ)))
        a("    s_lshl_b32 %s, %s, 3" % (s(sT1), s(sT1)))
        a("    s_add_u32 %s, %s, %s" % (s(sT1), s(sT1), s(sW)))
        a("    s_lshl_b32 %s, %s, 3" % (s(sD0), s(sT1)))
        a("    s_lshl_b32 %s, %s, 9" % (s(sT0), s(sH)))
        a("    s_add_u32 %s, %s, %s" % (s(sT0), s(sT0), s(sD0)))
        a("    s_lshl_b32 %s, %s, 10" % (s(sT0), s(sT0)))
        a("    s_and_b32 %s, %s, 7" % (s(sT1), s(sJ)))
        a("    s_lshl_b32 %s, %s, 7" % (s(sT1), s(sT1)))
        a("    s_add_u32 %s, %s, %s" % (s(sT0), s(sT0), s(sT1)))
        base(sB4, sWO, s(sT0))
        a("    v_lshlrev_b32 %s, 4, %s" % (v(vWo), v(vL7)))
        a("    v_lshl_or_b32 %s, %s, 10, %s" % (v(vWo), v(vL3), v(vWo)))
        for i in (1, 2, 3):
            a("    v_add_u32 %s, 0x%x, %s" % (v(vWo + i), i * (131072 - 1024), v(vWo)))
        a("    s_lshl_b32 %s, %s, 12" % (s(sFI), s(sW)))
        a("    s_add_u32 %s, %s, 0x%x" % (s(sFI), s(sFI), LG))

    def woload(i):
        def f():
            if i == 0:
                a("    s_mov_b32 m0, %s" % s(sFI))
            a("    global_load_lds_dwordx4 %s, %s offset:%d nt" % (v(vWo + i), s(sB4, 2), 1024 * i))
        return f
    vOo = V(4)
    vAtr, vAw, vArw = [V() for _ in range(3)]
    vO = V(16, 4)
    vWt = V(16, 4)
    vML = V(8, 4)
    vDt = V(16, 4)

    def wo_addresses():
        a("    s_lshl_b32 %s, %s, 11" % (s(sT1), s(sH)))
        a("    s_add_u32 %s, %s, 0x%x" % (s(sT1), s(sT1), S2ML))
        base(sB0, sWS, s(sT1))
        a("    s_mul_i32 %s, %s, %d" % (s(sT1), s(sH), 32 * ST2))
        a("    s_lshl_b32 %s, %s, 4" % (s(sT0), s(sD0)))
        a("    s_add_u32 %s, %s, %s" % (s(sT1), s(sT1), s(sT0)))
        a("    s_add_u32 %s, %s, 0x%x" % (s(sT1), s(sT1), S2O))
        base(sB5, sWS, s(sT1))
        a("    v_lshlrev_b32 %s, 4, %s" % (v(vT), v(vL7)))
        a("    v_mul_u32_u24 %s, %d, %s" % (v(vOo), ST2, v(vL3)))
        a("    v_add_u32 %s, %s, %s" % (v(vOo), v(vOo), v(vT)))
        for i in (1, 2, 3):
            a("    v_add_u32 %s, 0x%x, %s" % (v(vOo + i), 8 * ST2 * i, v(vOo)))
        a("    s_lshr_b32 %s, %s, 3" % (s(sT1), s(sJ)))
        a("    s_lshl1_add_u32 %s, %s, %s" % (s(sT0), s(sH), s(sT1)))
        a("    s_mul_i32 %s, %s, %d" % (s(sT0), s(sT0), ST3))
        a("    s_and_b32 %s, %s, 7" % (s(sT1), s(sJ)))
        a("    s_lshl_b32 %s, %s, 8" % (s(sT1), s(sT1)))
        a("    s_add_u32 %s, %s, %s" % (s(sT0), s(sT0), s(sT1)))
        a("    s_add_u32 %s, %s, 0x%x" % (s(sT0), s(sT0), S3))
        base(sB2, sWS, s(sT0))
        a("    v_lshrrev_b32 %s, 2, %s" % (v(vT), v(vJ)))
        a("    v_lshl_add_u32 %s, %s, 3, %s" % (v(vT), v(vG), v(vT)))
        a("    v_lshlrev_b32 %s, 7, %s" % (v(vT), v(vT)))
        a("    v_and_b32 %s, 3, v0" % v(vT + 1))
        a("    v_lshl_add_u32 %s, %s, 3, %s" % (v(vT), v(vT + 1), v(vT)))
        a("    v_add_u32 %s, %s, %s" % (v(vAtr), s(sFI), v(vT)))
        a("    v_lshlrev_b32 %s, 4, %s" % (v(vT), v(vL3)))
        a("    v_add_u32 %s, 0x%x, %s" % (v(vAw), LWT, v(vT)))
        a("    s_mul_i32 %s, %s, 272" % (s(sT0), s(sW)))
        a("    s_add_u32 %s, %s, 0x%x" % (s(sT0), s(sT0), LRED))
        a("    v_lshl_add_u32 %s, %s, 4, %s" % (v(vArw), v(vG), s(sT0)))
        per = 8 // P3
        a("    s_and_b32 %s, %s, %d" % (s(sT0), s(sH), per - 1))
        a("    s_lshl_b32 %s, %s, 2" % (s(sT0), s(sT0)))
        a("    s_lshr_b32 %s, %s, %d" % (s(sT1), s(sH), per.bit_length() - 1))
        a("    s_lshl_b32 %s, %s, 7" % (s(sT1), s(sT1)))
        a("    s_add_u32 %s, %s, %s" % (s(sT0), s(sT0), s(sT1)))
        a("    s_add_u32 %s, %s, 0x%x" % (s(sInb), s(sT0), SBELL))
        if opt.get("hn", 1) == 4:
            a("    s_lshr_b32 %s, %s, 2" % (s(sT0), s(sJ)))
            a("    s_add_u32 %s, %s, %s" % (s(sInb), s(sInb), s(sT0)))
    def bell():
        for i in range(2):
            a("    global_load_dwordx3 %s, %s, %s offset:%d%s" % (v(vML + 4 * i, 3), v(vAo), s(sB0, 2), 1024 * i, " nt" if opt.get("xl", 0) else " sc1"))

    def bellcheck():
        tagcheck([vML + 2, vML + 6], sT32, vT)
        a("    v_cmp_ne_u32 vcc, 0, %s" % v(vT))

    EB = opt.get("eb", 0)

    def earlybell():
        bell()
        return 2
    extra.update(A=wo_setup, B=wo_addresses, T0=woload(0), T1=woload(1), T2=woload(2), T3=woload(3))
    sw = SCHED["w"][opt.get("sw", 0)]
    rest = [i for i in range(4) if "T%d" % i not in sw.split()]
    WO2 = min(opt.get("wo2", 0), len(rest))
    late = rest[len(rest) - WO2:]
    rest = rest[:len(rest) - WO2]
    WO1 = min(opt.get("wo1", 0), len(rest))
    attention(sw, [woload(i) for i in rest[:len(rest) - WO1]], [woload(i) for i in rest[len(rest) - WO1:]],
              earlybell if EB else None)
    for i in late:
        woload(i)()
    def bellprep():
        a("    s_mul_i32 %s, %s, 0x01010101" % (s(sRep), s(sTag8)))
        a("    s_mov_b32 %s, %s" % (s(sRep + 1), s(sRep)))
        a("    s_and_b32 %s, %s, %d" % (s(sT0), s(sJ), (R2 // 2 if opt.get("dp2", 0) else R2) - 1))
        a("    s_lshl4_add_u32 %s, %s, %s" % (s(sT0), s(sH), s(sT0)))
        a("    s_lshl_b32 %s, %s, %d" % (s(sT0), s(sT0), RS2))
        a("    s_add_u32 %s, %s, 0x%x" % (s(sT0), s(sT0), SRDY))
    if opt.get("dp2", 0) == 2:
        a("    s_cmp_lg_u32 %s, 0" % s(sW))
        a("    s_cbranch_scc1 L_BP")
        bellprep()
        spoll2(s(sT0), (R2 // 2) << RS2, sRep, P2, sB1, phase=1)
        a("L_BP:")
    if "B" not in sw.split():
        wo_addresses()

    def oloads():
        for i in range(4):
            a("    global_load_dwordx4 %s, %s, %s%s" % (v(vO + 4 * i, 4), v(vOo + i), s(sB5, 2), [" sc1", " nt", "", " sc0"][opt.get("xl", 0)]))

    def wtr():
        for t in range(4):
            for hh in range(2):
                a("    ds_read_b64_tr_b16 %s, %s offset:%d" % (v(vW + 4 * t + 2 * hh, 2), v(vAtr), 512 * hh + 32 * t))
    a.c("combine the 32 chunks: wave 0 waits for the hints, turns (m, l) into weights; all waves gather o")
    a("    s_cmp_eq_u32 %s, 0" % s(sW))
    a("    s_cbranch_scc1 L_BELL1")
    S2M = opt.get("s2mode", 0)
    if opt.get("sb2", 0):
        a("    s_barrier")
        oloads()
        a("    s_waitcnt vmcnt(4)")
        wtr()
    else:
        a("    s_waitcnt vmcnt(%d)" % (1 if EB else 0))
        stamp(12)
        wtr()
        a("    s_barrier")
        oloads()
    a("    s_branch L_BELL2")
    a("L_BELL1:")
    if opt.get("rdy", 0):
        a("    v_and_b32 %s, 31, v0" % v(vT + 1))
        a("    v_lshlrev_b32 %s, 6, %s" % (v(vT + 1), v(vT + 1)))
        a("    v_add_u32 %s, 0x%x, %s" % (v(vT + 1), SRDY - S2ML, v(vT + 1)))

        def rdy():
            a("    global_load_dword %s, %s, %s sc1" % (v(vT + 2), v(vT + 1), s(sB0, 2)))

        def rdycheck():
            a("    v_cmp_ne_u32 vcc, %s, %s" % (s(sT32), v(vT + 2)))
        setexec(0xFFFFFFFF, 0)
        rdy()
        poll(rdy, rdycheck, 0, cnt=13)
        a("    s_barrier")
        bell()
        oloads()
        stamp(11)
        wtr()
        poll(bell, bellcheck, 4)
    elif opt.get("sb2", 0):
        if opt.get("dp2", 0) != 2:
            bellprep()
        stamp(12)
        if opt.get("dp2", 0):
            spoll2(s(sT0), (R2 // 2) << RS2, sRep, P2, sB1, phase=2 if opt["dp2"] == 2 else 0)
        else:
            spoll(sWS, s(sT0), sRep, P2)
        if prof:
            a("    s_mov_b32 %s, %s" % (s(sPROF + 26), s(sSpin)))
        a("    s_barrier")
        bell()
        oloads()
        stamp(11)
        poll(bell, bellcheck, 4, post=wtr)
    elif EB:
        assert WO1 == 0 and not opt.get("mb")
        poll(bell, bellcheck, 1, cnt=13)
        a("    s_barrier")
        oloads()
        wtr()
        stamp(11)
    else:
        bell()
        poll(bell, bellcheck, 0, cnt=13)
        a("    s_barrier")
        oloads()
        wtr()
        stamp(11)
    a("    v_max_f32 %s, %s, %s" % (v(vT + 1), v(vML), v(vML + 4)))
    allred_hi(vT + 1, vT, "max")
    for i in range(2):
        a("    v_sub_f32 %s, %s, %s" % (v(vML + 4 * i), v(vML + 4 * i), v(vT + 1)))
    for i in range(2):
        a("    v_mul_f32 %s, 0x3fb8aa3b, %s" % (v(vML + 4 * i), v(vML + 4 * i)))
    for i in range(2):
        a("    v_exp_f32 %s, %s" % (v(vML + 4 * i), v(vML + 4 * i)))
    a("    v_lshlrev_b32 %s, 2, v0" % v(vT + 2))
    a("    v_mul_f32 %s, %s, %s" % (v(vT + 1), v(vML), v(vML + 1)))
    a("    v_fmac_f32 %s, %s, %s" % (v(vT + 1), v(vML + 4), v(vML + 5)))
    allred_hi(vT + 1, vT, "add")
    a("    v_rcp_f32 %s, %s" % (v(vT + 1), v(vT + 1)))
    a("    v_add_u32 %s, 0x%x, %s" % (v(vT + 2), LWT, v(vT + 2)))
    for i in range(2):
        a("    v_mul_f32 %s, %s, %s" % (v(vML + 4 * i), v(vML + 4 * i), v(vT + 1)))
    for i in range(2):
        a("    ds_write_b32 %s, %s offset:%d" % (v(vT + 2), v(vML + 4 * i), 256 * i))
    a("    s_waitcnt lgkmcnt(0)")
    a("L_BELL2:")
    WB = opt.get("wbar", 0)

    def wreads():
        a("    s_barrier")
        for i in range(4):
            a("    ds_read_b128 %s, %s offset:%d" % (v(vWt + 4 * i, 4), v(vAw), 128 * i))

    wreads()

    def oacc(i):
        for r in (0, 2):
            if i == 0:
                a("    v_pk_mul_f32 %s, %s, %s" % (v(vT + r, 2), v(vO + r, 2), v(vWt + r, 2)))
            else:
                a("    v_pk_fma_f32 %s, %s, %s, %s" % (v(vT + r, 2), v(vO + 4 * i + r, 2), v(vWt + 4 * i + r, 2), v(vT + r, 2)))

    HN = opt.get("hn", 1)

    def s3hint():
        if HN == 1:
            a("    s_or_b32 %s, %s, %s" % (s(sT0), s(sJ), s(sW)))
        else:
            a("    s_and_b32 %s, %s, 3" % (s(sT0), s(sJ)))
            a("    s_or_b32 %s, %s, %s" % (s(sT0), s(sT0), s(sW)))
        a("    s_cbranch_scc1 L_NOHINT")
        setexec((1 << R3) - 1, 0)
        a("    v_lshl_add_u32 %s, v0, %d, %s" % (v(vG0), RS3, s(sInb)))
        if HN == 1:
            a("    v_mov_b32 %s, %s" % (v(vQo), s(sT32)))
            a("    global_store_dword %s, %s, %s sc1" % (v(vG0), v(vQo), s(sWS, 2)))
        else:
            a("    global_store_byte %s, %s, %s sc1" % (v(vG0), v(vTag8), s(sWS, 2)))
        setexec(0xFFFFFFFF, 0xFFFFFFFF)
        a("L_NOHINT:")
    HP = opt.get("hp", 0)

    def obefore():
        if HP == 1:
            a("    s_waitcnt vmcnt(3)")
            s3hint()
        a("    s_waitcnt lgkmcnt(0)")
    gather(oloads, [vO + 4 * i for i in range(4)], sTag10, 0x3ff, oacc, cnt=14, before=obefore)
    stamp(7)
    if HP == 0:
        s3hint()
    a.c("o (bf16) times the wo piece, cross-wave sum, publish")
    treduce4(vT)
    a("    v_add_f32_dpp %s, %s, %s row_ror:8 %s" % (v(vT), v(vT), v(vT), DPP))
    rowpack(vT, vT + 4, 4)
    for t in range(4):
        a("    v_mfma_f32_16x16x32_bf16 %s, %s, %s, 0" % (v(vDt + 4 * t, 4), v(vW + 4 * t, 4), v(vT + 4, 4)))
    if HP == 2:
        s3hint()
    setexec(0x00010001, 0x00010001)
    for t in range(4):
        a("    ds_write_b128 %s, %s offset:%d" % (v(vArw), v(vDt + 4 * t, 4), 64 * t))
    setexec(0xFFFFFFFF, 0xFFFFFFFF)
    red_publish(8, vTag10, sM10, 0, sB2, "L_FIN", mid=s3hint if HP == 3 else None)
    if HP == 4:
        s3hint()
    stamp(8)
    a("L_FIN:")
    if opt.get("wb", 0):
        a("    s_lshl3_add_u32 %s, %s, %s" % (s(sT0), s(sJ), s(sW)))
        a("    s_cmp_lg_u32 %s, 1" % s(sT0))
        a("    s_cbranch_scc1 L_FIN3")
        a("    buffer_wbl2 sc1")
        a("    s_waitcnt vmcnt(0)")
        a("L_FIN3:")
    finish()
    V.release(mrole)

    a("L_ROLE_FFN:")
    vGo = V()
    vDo = V(2)

    def quarter_prep(n, pair, m0reg):
        a("    s_add_u32 %s, %s, %d" % (s(sT0), s(sU), 0 if opt.get("fdiag") == 4 else n))
        a("    s_and_b32 %s, %s, 1" % (s(sT1), s(sT0)))
        a("    s_bfe_u32 %s, %s, 0x10001" % (s(sT0), s(sT0)))
        a("    s_lshl_b32 %s, %s, 1" % (s(sT2), s(sW)))
        a("    s_add_u32 %s, %s, %s" % (s(sT2), s(sT2), s(sT1)))
        a("    s_lshl_b32 %s, %s, 4" % (s(sT3), s(sT0)))
        a("    s_add_u32 %s, %s, %s" % (s(sT3), s(sT3), s(sT2)))
        a("    s_lshl_b32 %s, %s, 10" % (s(sT3), s(sT3)))
        a("    s_add_u32 %s, %s, 0x%x" % (s(m0reg), s(sT3), LG))
        a("    s_mul_i32 %s, %s, %d" % (s(sT2), s(sT2), 32 * 3584))
        a("    s_lshl_b32 %s, %s, 5" % (s(sT1), s(sFI)))
        a("    s_add_u32 %s, %s, %s" % (s(sT2), s(sT2), s(sT1)))
        a("    s_cmp_eq_u32 %s, 0" % s(sT0))
        a("    s_cselect_b64 %s, %s, %s" % (s(pair, 2), s(sWG, 2), s(sWU, 2)))
        base(pair, pair, s(sT2))
    QB = [(sK, sPC), (sVp, sPC + 1), (sWQ, sMean), (sWO, sVar)]

    def quarter(n):
        a("    s_mov_b32 m0, %s" % s(QB[n][1]))
        a("    global_load_lds_dwordx4 %s, %s%s" % (v(vGo), s(QB[n][0], 2),
          {0: " nt", 1: "" if n == 0 else " nt", 2: "", 3: " nt" if n == 0 else "", 4: " nt" if n == 0 else " sc1"}[opt.get("qpol", 0)]))

    def ffn_setup():
        a("    s_and_b32 %s, %s, 3" % (s(sU), s(sJ)))
        a("    s_min_u32 %s, %s, 4" % (s(sT0), s(sH)))
        a("    s_mul_i32 %s, %s, 3" % (s(sT1), s(sH)))
        a("    s_add_u32 %s, %s, %s" % (s(sT0), s(sT0), s(sT1)))
        a("    s_lshl_b32 %s, %s, 2" % (s(sT0), s(sT0)))
        a("    s_add_u32 %s, %s, %s" % (s(sT0), s(sT0), s(sJ)))
        a("    s_sub_u32 %s, %s, 16" % (s(sFI), s(sT0)))
        a("    v_lshrrev_b32 %s, 1, v0" % v(vT))
        a("    v_mul_u32_u24 %s, 3584, %s" % (v(vT), v(vT)))
        a("    v_and_b32 %s, 1, v0" % v(vT + 1))
        a("    v_lshl_add_u32 %s, %s, 4, %s" % (v(vGo), v(vT + 1), v(vT)))
        for n in range(4):
            quarter_prep(n, *QB[n])
        a("    s_lshl_b32 %s, %s, 14" % (s(sT0), s(sFI)))
        a("    s_lshl_b32 %s, %s, 7" % (s(sT1), s(sW)))
        a("    s_add_u32 %s, %s, %s" % (s(sT0), s(sT0), s(sT1)))
        base(sB5, sWD, s(sT0))
        a("    s_lshl_b32 %s, %s, 11" % (s(sT1), s(sW)))
        a("    s_add_u32 %s, %s, 0x%x" % (s(sInb), s(sT1), LD))
        a("    v_lshlrev_b32 %s, 4, %s" % (v(vDo), v(vL7)))
        a("    v_lshl_or_b32 %s, %s, 10, %s" % (v(vDo), v(vL3), v(vDo)))
        a("    v_add_u32 %s, 0x1c00, %s" % (v(vDo + 1), v(vDo)))

    def dload(i):
        def f():
            a("    s_mov_b32 m0, %s" % s(sInb))
            a("    global_load_lds_dwordx4 %s, %s offset:%d nt" % (v(vDo + i), s(sB5, 2), 1024 * i))
        return f
    def qhalf(lo, hi):
        def f():
            setexec(lo, hi)
            quarter(0)
            setexec(0xFFFFFFFF, 0xFFFFFFFF)
        return f
    L = dict(D0=dload(0), D1=dload(1), Q0=lambda: quarter(0), Q1=lambda: quarter(1), Q2=lambda: quarter(2), Q3=lambda: quarter(3))
    L2 = dict(Qa=qhalf(0xFFFFFFFF, 0), Qb=qhalf(0, 0xFFFFFFFF), Qc=qhalf(0xFFFF, 0), Qd=qhalf(0xFFFF0000, 0xFFFFFFFF))
    extra.update(A=ffn_setup, **L)
    extra.update(L2)
    sf = SCHED["f"][opt.get("sf", 0)]
    FT = [("Q0", "Q1 Q2 Q3 b D0 D1"), ("Q0", "Q1 Q2 Q3"), ("", "Q0 b Q1 Q2 Q3"), ("D0 D1", "Q0 b Q1 Q2 Q3"),
          ("", "Q0 D1 b Q1 Q2 Q3"), ("", "Q0 D0 D1 b Q1 Q2 Q3"), ("D1", "Q0 b Q1 Q2 Q3"),
          ("Qa", "Qb b Q1 Q2 Q3"), ("Qc", "Qd b Q1 Q2 Q3"), ("Qa", "Qb D0 D1 b Q1 Q2 Q3"), ("Qa", "Qb b Q1 Q2 Q3 b D0 D1"),
          ("Qb", "D0 D1 b Q1 Q2 Q3"), ("Qb", "Q1 Q2 Q3 b D0 D1"),
          ("Qa", "D0 D1 b Q1 Q2 Q3", "Qb"), ("Qa", "Q1 Q2 Q3 b D0 D1", "Qb"), ("Qa", "D1 b Q1 Q2 Q3", "Qb"), ("Qa", "Q1 Q2 Q3", "Qb"),
          ("", "Qb b Q1 Q2 Q3", "Qa"), ("Qc", "Q1 Q2 Q3", "Qd"),
          ("Qb", "Q1 Q2 Q3"), ("", "Q1 Q2 Q3", "Qb"), ("Q0", "Q1 Q2 Q3"), ("Qa", "Q1 Q2 Q3", "Qb"), ("Qa", "Qb b Q1 Q2 Q3"),
          ("Qa", "Qb Q1 Q2 Q3"), ("Qa", "Qb b Q1 b Q2 b Q3"), ("Qa", "Qb Q1 b Q2 Q3")][opt.get("ft", 0)]
    FT = FT + ("",) * (3 - len(FT))
    DL = opt.get("dl", 0)
    allf = (sf + " " + FT[0] + " " + FT[1] + " " + FT[2] + " " + " ".join(["D0", "D1"][2 - DL:])).replace("Qb", "Q0").replace("Qd", "Q0").split()
    assert sorted(t for t in allf if t in L) == sorted(L), allf
    L.update(L2)
    attention(sf, [L[t] for t in FT[0].split()], [L[t] for t in FT[2].split()])
    if opt.get("fack", 0):
        a("    s_waitcnt vmcnt(0)")
    if not opt.get("nfb", 0):
        a("    s_barrier")
    for t in FT[1].split():
        if t == "b":
            a("    s_barrier")
        else:
            L[t]()

    def hintprep():
        if opt.get("hn", 1) == 1:
            a("    s_mov_b32 %s, %s" % (s(sRep), s(sT32)))
        else:
            a("    s_mul_i32 %s, %s, 0x01010101" % (s(sRep), s(sTag8)))
        a("    s_mov_b32 %s, %s" % (s(sRep + 1), s(sRep)))
        a("    s_and_b32 %s, %s, %d" % (s(sT0), s(sFI), (R3 // 2 if opt.get("dp3", 0) else R3) - 1))
        a("    s_lshl_b32 %s, %s, %d" % (s(sT0), s(sT0), RS3))
        a("    s_add_u32 %s, %s, 0x%x" % (s(sT0), s(sT0), SBELL))
    a("    s_lshl_b32 %s, %s, 11" % (s(sT1), s(sW)))
    stamp(11)
    vXc = V()
    vHs = V(16, 4)
    vHo = V(4)
    vWg = V(16, 4)
    vWd = V(8, 4)
    P4 = opt.get("p4", 0)
    vWd2 = V(8, 4)
    vDv = V(4, 4)
    vAy2 = V()
    vHb = V(8, 4)
    vDu = V(4, 4)
    vCs = V(4, 4)
    vMt = V(4)
    vB = V(8, 4)
    vAgw, vAgr, vAsw, vAsr, vAy, vHr = [V() for _ in range(6)]
    a("    s_lshl_b32 %s, %s, 7" % (s(sT0), s(sW)))
    base(sB0, sX, s(sT0))
    a("    v_lshl_add_u32 %s, %s, 2, %s" % (v(vT + 2), v(vJ), v(vG)))
    a("    v_lshlrev_b32 %s, 1, %s" % (v(vT + 2), v(vT + 2)))
    a("    global_load_ushort %s, %s, %s" % (v(vXc), v(vT + 2), s(sB0, 2)))
    a("    global_load_ushort %s, %s, %s" % (v(vHr), v(vT + 2), s(sOUT, 2)))
    if opt.get("dp3", 0) == 2:
        a("    s_cmp_lg_u32 %s, 0" % s(sW))
        a("    s_cbranch_scc1 L_HP")
        hintprep()
        spoll2(s(sT0), (R3 // 2) << RS3, sRep, P3, sB4, phase=1)
        a("    s_lshl_b32 %s, %s, 7" % (s(sT0), s(sW)))
        a("L_HP:")
    a("    s_add_u32 %s, %s, 0x%x" % (s(sT2), s(sT0), LGP))
    a("    v_lshl_add_u32 %s, %s, 4, %s" % (v(vAgw), v(vG), s(sT2)))
    a("    v_lshrrev_b32 %s, 3, %s" % (v(vT + 2), v(vJ)))
    a("    v_lshl_add_u32 %s, %s, 1, %s" % (v(vT + 2), v(vL7), v(vT + 2)))
    a("    v_lshlrev_b32 %s, 6, %s" % (v(vT + 2), v(vT + 2)))
    a("    v_lshl_add_u32 %s, %s, 4, %s" % (v(vT + 2), v(vG), v(vT + 2)))
    a("    v_add_u32 %s, 0x%x, %s" % (v(vAgr), LGP, v(vT + 2)))
    a("    s_lshl_b32 %s, %s, 3" % (s(sT2), s(sW)))
    a("    s_add_u32 %s, %s, 0x%x" % (s(sT2), s(sT2), LST))
    a("    v_mov_b32 %s, %s" % (v(vAsw), s(sT2)))
    a("    v_lshlrev_b32 %s, 3, %s" % (v(vT + 2), v(vL7)))
    a("    v_add_u32 %s, 0x%x, %s" % (v(vAsr), LST, v(vT + 2)))
    for t in range(4):
        a("    v_cmp_eq_u32 vcc, %d, %s" % (t, v(vJ)))
        a("    v_cndmask_b32 %s, 0, -1, vcc" % v(vMt + t))
    a("    s_lshl_b32 %s, %s, 8" % (s(sT0), s(sW)))
    a("    s_add_u32 %s, %s, 0x%x" % (s(sT0), s(sT0), S3))
    base(sB1, sWS, s(sT0))
    a("    v_lshlrev_b32 %s, 4, %s" % (v(vT + 2), v(vJ)))
    a("    v_mul_u32_u24 %s, %d, %s" % (v(vHo), ST3, v(vG)))
    a("    v_add_u32 %s, %s, %s" % (v(vHo), v(vHo), v(vT + 2)))
    for i in (1, 2, 3):
        a("    v_add_u32 %s, 0x%x, %s" % (v(vHo + i), 4 * ST3 * i, v(vHo)))
    a("    s_mul_i32 %s, %s, %d" % (s(sT0), s(sW), 4 * 7168))
    a("    s_lshl_b32 %s, %s, 6" % (s(sT2), s(sFI)))
    a("    s_add_u32 %s, %s, %s" % (s(sT0), s(sT0), s(sT2)))
    a("    s_add_u32 %s, %s, 0x%x" % (s(sT0), s(sT0), S4))
    base(sB2, sWS, s(sT0))
    a("    v_lshrrev_b32 %s, 2, %s" % (v(vT + 2), v(vJ)))
    a("    v_mul_u32_u24 %s, 7168, %s" % (v(vT + 2), v(vT + 2)))
    a("    v_and_b32 %s, 3, v0" % v(vT + 3))
    a("    v_lshl_add_u32 %s, %s, 4, %s" % (v(vAy), v(vT + 3), v(vT + 2)))
    a("    v_lshrrev_b32 %s, 2, %s" % (v(vT + 2), v(vJ)))
    a("    v_and_b32 %s, 3, v0" % v(vT + 3))
    a("    v_lshl_add_u32 %s, %s, 2, %s" % (v(vT + 4), v(vT + 2), v(vG)))
    a("    v_lshlrev_b32 %s, 5, %s" % (v(vT + 4), v(vT + 4)))
    a("    v_lshl_add_u32 %s, %s, 3, %s" % (v(vT + 4), v(vT + 3), v(vT + 4)))
    a("    s_add_u32 %s, %s, 0x%x" % (s(sT2), s(sT1), LG))
    a("    v_add_u32 %s, %s, %s" % (v(vT + 4), s(sT2), v(vT + 4)))
    a("    v_lshl_add_u32 %s, %s, 2, %s" % (v(vT + 5), v(vG), v(vT + 2)))
    a("    v_lshlrev_b32 %s, 7, %s" % (v(vT + 5), v(vT + 5)))
    a("    v_lshl_add_u32 %s, %s, 3, %s" % (v(vT + 5), v(vT + 3), v(vT + 5)))
    a("    s_add_u32 %s, %s, 0x%x" % (s(sT2), s(sT1), LD))
    a("    v_add_u32 %s, %s, %s" % (v(vT + 5), s(sT2), v(vT + 5)))
    for i in range(4):
        a("    v_mov_b32 %s, 0x3f803f80" % v(vHb + i))

    def hloadsf():
        for i in range(4):
            a("    global_load_dwordx4 %s, %s, %s sc1" % (v(vHs + 4 * i, 4), v(vHo + i), s(sB1, 2)))
    a.c("gather the 16 wo partials; meanwhile transpose the weights and take their column sums")
    S3B = opt.get("s3bell", 1)
    PG = opt.get("pg", 0)
    if PG:
        sDone, sNew = sU + 0, sMean
        sDone = sVar
        a("    s_mov_b32 %s, %s" % (s(sRep), s(sT32)))
        a("    s_mov_b32 %s, %s" % (s(sRep + 1), s(sRep)))
        a("    s_and_b32 %s, %s, %d" % (s(sT0), s(sFI), R3 - 1))
        a("    s_lshl_b32 %s, %s, %d" % (s(sT0), s(sT0), RS3))
        a("    s_add_u32 %s, %s, 0x%x" % (s(sT0), s(sT0), SBELL))
        a("    v_mov_b32 %s, 0x%x" % (v(vT + 1), LRM))
        a("    s_mov_b32 %s, 0" % s(sDone))
        a("    s_mov_b32 %s, 0" % s(sSpin))
        sPrev = sPC
        a("    s_mov_b32 %s, 0" % s(sPrev))
        a("L_PG:")
        a("    s_add_u32 %s, %s, 1" % (s(sSpin), s(sSpin)))
        a("    v_xor_b32 %s, 4, %s" % (v(vT + 1), v(vT + 1)))
        a("    s_cmp_lg_u32 %s, 0" % s(sW))
        a("    s_cbranch_scc1 L_PGR")
        a("    s_load_dwordx8 %s, %s, %s glc" % (s(sFl, 8), s(sWS, 2), s(sT0)))
        a("    s_mov_b32 %s, 0" % s(sNew))
        a("    s_waitcnt lgkmcnt(0)")
        for k in range(4):
            a("    s_cmp_eq_u64 %s, %s" % (s(sFl + 2 * k, 2), s(sRep, 2)))
            a("    s_cselect_b32 %s, %d, 0" % (s(sT1), 1 << k))
            a("    s_or_b32 %s, %s, %s" % (s(sNew), s(sNew), s(sT1)))
        a("    s_cmp_ge_u32 %s, 0x%x" % (s(sSpin), SPIN_LIMIT))
        a("    s_cselect_b32 %s, 15, %s" % (s(sNew), s(sNew)))
        if PG >= 2:
            a("    s_cmp_eq_u32 %s, 15" % s(sNew))
            a("    s_cselect_b32 %s, 15, %s" % (s(sT1), s(sPrev)))
            a("    s_mov_b32 %s, %s" % (s(sPrev), s(sNew)))
            a("    s_mov_b32 %s, %s" % (s(sNew), s(sT1)))
        a("    v_mov_b32 %s, %s" % (v(vT + 2), s(sNew)))
        a("    ds_write_b32 %s, %s" % (v(vT + 1), v(vT + 2)))
        a("    s_waitcnt lgkmcnt(0)")
        a("    s_barrier")
        a("    s_branch L_PGI")
        a("L_PGR:")
        a("    s_barrier")
        a("    ds_read_b32 %s, %s" % (v(vT + 2), v(vT + 1)))
        a("    s_waitcnt lgkmcnt(0)")
        a("    v_readfirstlane_b32 %s, %s" % (s(sNew), v(vT + 2)))
        a("L_PGI:")
        a("    s_andn2_b32 %s, %s, %s" % (s(sNew), s(sNew), s(sDone)))
        a("    s_cbranch_scc0 L_PG")
        a("    s_or_b32 %s, %s, %s" % (s(sDone), s(sDone), s(sNew)))
        for i in range(4):
            a("    s_bitcmp1_b32 %s, %d" % (s(sNew), i))
            a("    s_cbranch_scc0 L_PGS%d" % i)
            a("    global_load_dwordx4 %s, %s, %s sc1" % (v(vHs + 4 * i, 4), v(vHo + i), s(sB1, 2)))
            a("L_PGS%d:" % i)
        a("    s_cmp_lg_u32 %s, 15" % s(sDone))
        a("    s_cbranch_scc1 L_PG")
    elif opt.get("sb3", 0):
        a("    s_cmp_lg_u32 %s, 0" % s(sW))
        a("    s_cbranch_scc1 L_HINT")
        if opt.get("dp3", 0) != 2:
            hintprep()
        if opt.get("dp3", 0):
            spoll2(s(sT0), (R3 // 2) << RS3, sRep, P3, sB4 if opt["dp3"] == 2 else sB0, phase=2 if opt["dp3"] == 2 else 0)
        else:
            spoll(sWS, s(sT0), sRep, P3, True)
        a("L_HINT:")
        a("    s_barrier")
    elif S3B:
        a("    s_cmp_lg_u32 %s, 0" % s(sW))
        a("    s_cbranch_scc1 L_HINT")
        a("    v_lshlrev_b32 %s, 7, %s" % (v(vT + 1), v(vL7)))
        a("    v_add_u32 %s, 0x%x, %s" % (v(vT + 1), SBELL, v(vT + 1)))

        def hint():
            a("    global_load_dword %s, %s, %s sc1" % (v(vT + 2), v(vT + 1), s(sWS, 2)))

        def hintcheck():
            a("    v_cmp_ne_u32 vcc, %s, %s" % (s(sT32), v(vT + 2)))
        setexec(0xFF, 0)
        hint()
        poll(hint, hintcheck, 0, cnt=12)
        a("L_HINT:")
        a("    s_barrier")
    if not PG:
        hloadsf()
    for t in ["D0", "D1"][2 - DL:]:
        L[t]()
    a("    s_waitcnt vmcnt(%d)" % (4 + DL))
    stamp(7)
    for mat in range(2):
        for st in range(2):
            for hh in range(2):
                a("    ds_read_b64_tr_b16 %s, %s offset:%d" %
                  (v(vWg + 8 * mat + 4 * st + 2 * hh, 2), v(vT + 4), 16384 * mat + 1024 * st + 512 * hh))
    vAd = V()

    def dreads():
        for t in range(4):
            a("    ds_read_b64_tr_b16 %s, %s offset:%d" % (v(vWd + 2 * t, 2), v(vAd), 32 * t))
    a("    v_mov_b32 %s, %s" % (v(vAd), v(vT + 5)))
    if not DL:
        dreads()
    a("    v_lshlrev_b32 %s, 16, %s" % (v(vXc), v(vXc)))
    a("    s_waitcnt lgkmcnt(0)")

    def gate_up(b0, b1):
        a("    v_mfma_f32_16x16x32_bf16 %s, %s, %s, 0" % (v(vD, 4), v(vWg, 4), v(b0, 4)))
        a("    v_mfma_f32_16x16x32_bf16 %s, %s, %s, 0" % (v(vDu, 4), v(vWg + 8, 4), v(b0, 4)))
        a("    v_mfma_f32_16x16x32_bf16 %s, %s, %s, %s" % (v(vD, 4), v(vWg + 4, 4), v(b1, 4), v(vD, 4)))
        a("    v_mfma_f32_16x16x32_bf16 %s, %s, %s, %s" % (v(vDu, 4), v(vWg + 12, 4), v(b1, 4), v(vDu, 4)))
    gate_up(vHb, vHb)
    setexec(0x00010001, 0x00010001)
    a("    ds_write_b128 %s, %s offset:%d" % (v(vAgw), v(vD, 4), LCS - LGP))
    a("    ds_write_b128 %s, %s offset:%d" % (v(vAgw), v(vDu, 4), LCS - LGP + 64))
    setexec(0xFFFFFFFF, 0xFFFFFFFF)
    CF = opt.get("cf", 0)
    if not CF:
        a("    s_waitcnt lgkmcnt(0)")
        a("    s_barrier")
        a("    ds_read_b128 %s, %s offset:%d" % (v(vCs, 4), v(vAgr), LCS - LGP))
        a("    s_waitcnt lgkmcnt(0)")
        for pat in ("quad_perm:[1,0,3,2]", "quad_perm:[2,3,0,1]", "row_half_mirror"):
            for r in range(4):
                a("    v_add_f32_dpp %s, %s, %s %s %s" % (v(vCs + r), v(vCs + r), v(vCs + r), pat, DPP))

    vHa = V(4, 4)

    def sumacc(dst, src):
        def f(i):
            for r in (0, 2):
                if i == 1:
                    a("    v_pk_add_f32 %s, %s, %s" % (v(dst + r, 2), v(src + r, 2), v(src + 4 + r, 2)))
                elif i > 1:
                    a("    v_pk_add_f32 %s, %s, %s" % (v(dst + r, 2), v(dst + r, 2), v(src + 4 * i + r, 2)))
        return f
    gather(hloadsf, [vHs + 4 * i for i in range(4)], sTag10, 0x3ff, sumacc(vHa, vHs), cnt=13, ordered=not PG, younger=DL)
    stamp(8)
    vHs = vHa
    a.c("h, gate / up products on h itself, statistics of h")
    treduce4(vHs)
    bf16r(vHs, vHs)
    a("    v_add_f32 %s, %s, %s" % (v(vHs), v(vHs), v(vXc)))
    rowpack(vHs, vHb, 8)
    bf16r(vHr, vHs)
    gate_up(vHb, vHb + 4)
    a("    v_mul_f32 %s, %s, %s" % (v(vT + 1), v(vHr), v(vHr)))
    a("    v_add_f32_dpp %s, %s, %s row_ror:1 %s" % (v(vT), v(vHr), v(vHr), DPP))
    a("    v_add_f32_dpp %s, %s, %s row_ror:1 %s" % (v(vT + 1), v(vT + 1), v(vT + 1), DPP))
    for sh in (2, 4, 8):
        for r in range(2):
            a("    v_add_f32_dpp %s, %s, %s row_ror:%d %s" % (v(vT + r), v(vT + r), v(vT + r), sh, DPP))
    for pat in ("row_bcast:15 row_mask:0xa", "row_bcast:31 row_mask:0xc"):
        for r in range(2):
            a("    v_add_f32_dpp %s, %s, %s %s bank_mask:0xf" % (v(vT + r), v(vT + r), v(vT + r), pat))
    setexec(0, 0x80000000)
    a("    ds_write_b64 %s, %s" % (v(vAsw), v(vT, 2)))
    setexec(0x00010001, 0x00010001)
    a("    ds_write_b128 %s, %s" % (v(vAgw), v(vD, 4)))
    a("    ds_write_b128 %s, %s offset:64" % (v(vAgw), v(vDu, 4)))
    setexec(0xFFFFFFFF, 0xFFFFFFFF)
    a("    s_waitcnt lgkmcnt(0)")
    a("    s_barrier")
    if DL:
        assert not P4
    if P4:
        a("    s_cmp_ge_u32 %s, 4" % s(sW))
        a("    s_cbranch_scc1 L_REST")
    a("    ds_read_b64 %s, %s" % (v(vT, 2), v(vAsr)))
    a("    ds_read_b128 %s, %s" % (v(vD, 4), v(vAgr)))
    if CF:
        a("    ds_read_b128 %s, %s offset:%d" % (v(vCs, 4), v(vAgr), LCS - LGP))
    pats = ("quad_perm:[1,0,3,2]", "quad_perm:[2,3,0,1]", "row_half_mirror")

    def meanfix():
        a.c("g u with the mean removed, down projection, 1 / sigma^2, publish")
        a("    v_mul_f32 %s, 0x3b000000, %s" % (v(vT), v(vT)))
        bf16r(vT + 2, vT)
        for r in (0, 2):
            a("    v_pk_fma_f32 %s, %s, %s, %s op_sel_hi:[0,1,1] neg_lo:[1,0,0] neg_hi:[1,0,0]" %
              (v(vD + r, 2), v(vT + 2, 2), v(vCs + r, 2), v(vD + r, 2)))
    if CF:
        a("    s_waitcnt lgkmcnt(%d)" % (0 if prof else 2))
        for pat in pats:
            for r in (vT, vT + 1):
                a("    v_add_f32_dpp %s, %s, %s %s %s" % (v(r), v(r), v(r), pat, DPP))
        a("    s_waitcnt lgkmcnt(0)")
        meanfix()
        for pat in pats:
            for r in range(4):
                a("    v_add_f32_dpp %s, %s, %s %s %s" % (v(vD + r), v(vD + r), v(vD + r), pat, DPP))
    else:
        a("    s_waitcnt lgkmcnt(0)")
        for pat in pats:
            for r in (vT, vT + 1, vD, vD + 1, vD + 2, vD + 3):
                a("    v_add_f32_dpp %s, %s, %s %s %s" % (v(r), v(r), v(r), pat, DPP))
        meanfix()
    a("    v_mul_f32 %s, 0x3b000000, %s" % (v(vT + 1), v(vT + 1)))
    a("    v_fma_f32 %s, -%s, %s, %s" % (v(vT + 1), v(vT), v(vT), v(vT + 1)))
    for r in range(4):
        a("    v_mul_f32_dpp %s, %s, %s row_ror:8 %s" % (v(vT + 4 + r), v(vD + r), v(vD + r), DPP))
    a("    v_cvt_pk_bf16_f32 %s, %s, %s" % (v(vT + 2), v(vT + 4), v(vT + 5)))
    a("    v_cvt_pk_bf16_f32 %s, %s, %s" % (v(vT + 3), v(vT + 6), v(vT + 7)))
    if DL:
        a("    s_waitcnt lgkmcnt(0)")
    for t in range(4):
        a("    v_and_b32 %s, %s, %s" % (v(vB + 2 * t), v(vT + 2), v(vMt + t)))
        a("    v_and_b32 %s, %s, %s" % (v(vB + 2 * t + 1), v(vT + 3), v(vMt + t)))
        if t:
            a("    v_mfma_f32_16x16x16_bf16 %s, %s, %s, %s" %
              (v(vDu, 4), v(vB + 2 * t - 2, 2), v(vWd + 2 * t - 2, 2), "0" if t == 1 else v(vDu, 4)))
            if P4:
                a("    v_mfma_f32_16x16x16_bf16 %s, %s, %s, %s" %
                  (v(vDv, 4), v(vB + 2 * t - 2, 2), v(vWd2 + 2 * t - 2, 2), "0" if t == 1 else v(vDv, 4)))
    a("    v_max_f32 %s, 0, %s" % (v(vT + 1), v(vT + 1)))
    a("    v_mfma_f32_16x16x16_bf16 %s, %s, %s, %s" % (v(vDu, 4), v(vB + 6, 2), v(vWd + 6, 2), v(vDu, 4)))
    if P4:
        a("    v_mfma_f32_16x16x16_bf16 %s, %s, %s, %s" % (v(vDv, 4), v(vB + 6, 2), v(vWd2 + 6, 2), v(vDv, 4)))
    bf16r(vT + 1, vT + 1)
    a("    v_add_f32 %s, 0x3727c5ac, %s" % (v(vT + 1), v(vT + 1)))
    bf16r(vT + 1, vT + 1)
    a("    v_sqrt_f32 %s, %s" % (v(vT + 1), v(vT + 1)))
    bf16r(vT + 1, vT + 1)
    a("    v_mul_f32 %s, %s, %s" % (v(vT + 1), v(vT + 1), v(vT + 1)))
    a("    v_rcp_f32 %s, %s" % (v(vT), v(vT + 1)))
    setexec(0xFFFF, 0)
    for r in (0, 2):
        a("    v_pk_mul_f32 %s, %s, %s op_sel_hi:[1,0]" % (v(vDu + r, 2), v(vDu + r, 2), v(vT, 2)))
    for i in range(4):
        a("    v_and_or_b32 %s, %s, %s, %s" % (v(vDu + i), v(vDu + i), s(sM10), v(vTag10)))
    a("    global_store_dwordx4 %s, %s, %s sc1" % (v(vAy), v(vDu, 4), s(sB2, 2)))
    if P4:
        for r in (0, 2):
            a("    v_pk_mul_f32 %s, %s, %s op_sel_hi:[1,0]" % (v(vDv + r, 2), v(vDv + r, 2), v(vT, 2)))
        for i in range(4):
            a("    v_and_or_b32 %s, %s, %s, %s" % (v(vDv + i), v(vDv + i), s(sM10), v(vTag10)))
        a("    global_store_dwordx4 %s, %s, %s sc1" % (v(vAy2), v(vDv, 4), s(sB2, 2)))
    stamp(9)
    if P4:
        a("L_REST:")
        a("    s_cmp_ge_u32 %s, 32" % s(sFI))
        a("    s_cbranch_scc1 L_FIN2")
    a.c("final sum over the 112 partials for 16 columns")
    a("    s_lshr_b32 %s, %s, 2" % (s(sT0), s(sFI)))
    a("    s_cmp_lg_u32 %s, %s" % (s(sT0), s(sW)))
    a("    s_cbranch_scc1 %s" % ("L_ACK" if P4 else "L_FIN2"))
    setexec(0xFFFFFFFF, 0xFFFFFFFF)
    if opt.get("yd", 0) >= 1:
        a("    s_waitcnt vmcnt(0)")
    vY = V(28, 4)
    vCo = V()
    a("    v_and_b32 %s, 3, v0" % v(vT))
    a("    v_lshlrev_b32 %s, 2, %s" % (v(vT + 1), v(vG)))
    a("    v_lshl_add_u32 %s, %s, 4, %s" % (v(vT + 1), v(vT), v(vT + 1)))
    a("    v_add_u32 %s, %s, %s" % (v(vT + 1), s(sU), v(vT + 1)))
    a("    v_lshlrev_b32 %s, 2, %s" % (v(vT + 1), v(vT + 1)))
    a("    ds_bpermute_b32 %s, %s, %s" % (v(vHr), v(vT + 1), v(vHr)))
    a("    v_lshl_add_u32 %s, %s, 4, %s" % (v(vCo), v(vG), v(vT)))
    a("    v_lshlrev_b32 %s, 1, %s" % (v(vCo), v(vCo)))
    a("    s_lshl_b32 %s, %s, 7" % (s(sT0), s(sW)))
    a("    s_lshl_b32 %s, %s, 3" % (s(sT1), s(sU)))
    a("    s_add_u32 %s, %s, %s" % (s(sT0), s(sT0), s(sT1)))
    base(sB3, sOUT, s(sT0))
    if opt.get("odiag"):
        a("    s_lshl_b32 %s, %s, 12" % (s(sT0), s(sFI)))
        a("    s_add_u32 %s, %s, 0x180000" % (s(sT0), s(sT0)))
        base(sB3, sWS, s(sT0))
        if opt["odiag"] == 2:
            a("    v_lshlrev_b32 %s, 4, %s" % (v(vCo), v(vCo)))
    a("    s_mul_i32 %s, %s, 7168" % (s(sT1), s(sFI)))
    a("    s_add_u32 %s, %s, 0x%x" % (s(sT1), s(sT1), S4 + 3072))
    base(sB2, sWS, s(sT1))

    def yloads():
        for n in range(7):
            a("    global_load_dwordx4 %s, %s, %s offset:%d%s" % (v(vY + 4 * n, 4), v(vAo), s(sB2, 2), 1024 * n - 3072,
                                                                 [" sc1", " sc1 nt", " sc0 sc1 nt", " sc0 sc1"][opt.get("yl", 0)]))

    if opt.get("ackwait", 1):
        a("    s_waitcnt vmcnt(0)")
    if opt.get("yd", 0) >= 2:
        a("    global_load_ushort %s, %s, %s sc1" % (v(vY), v(vCo), s(sB3, 2)))
        a("    s_waitcnt vmcnt(0)")
    if P4:
        a("    s_barrier")
    yloads()
    gather(yloads, [vY + 4 * i for i in range(7)], sTag10, 0x3ff, sumacc(vHa, vY), cnt=15)
    if not opt.get("astamps"):
        stamp(14)
    vY = vHa
    treduce4(vY)
    for sh in (4, 8):
        a("    v_add_f32_dpp %s, %s, %s row_ror:%d %s" % (v(vY), v(vY), v(vY), sh, DPP))
    bf16r(vY, vY)
    a("    s_waitcnt lgkmcnt(0)")
    a("    v_add_f32 %s, %s, %s" % (v(vY), v(vY), v(vHr)))
    a("    v_cvt_pk_bf16_f32 %s, %s, %s" % (v(vY), v(vY), v(vY)))
    setexec(0x000F000F, 0x000F000F)
    a("    global_store_short %s, %s, %s%s" % (v(vCo), v(vY), s(sB3, 2), ["", " sc1", " nt", " sc0 sc1"][opt.get("ost", 0)]))
    a("    s_cmp_lg_u32 %s, 0" % s(sFI))
    a("    s_cbranch_scc1 L_FIN2")
    setexec(1, 0)
    a("    v_mov_b32 %s, 0" % v(vT))
    a("    v_mov_b32 %s, %s" % (v(vT + 1), s(sT32)))
    a("    global_store_dword %s, %s, %s sc1" % (v(vT), v(vT + 1), s(sWS, 2)))
    if opt.get("diagspin"):
        a("    s_waitcnt lgkmcnt(0)")
        if "diagph" in opt:
            a("    s_sub_u32 s90, s90, s96")
            a("    s_lshl_b32 s90, s90, 2")
            a("    s_add_u32 s96, s96, s90")
        a("    s_add_u32 s96, s96, %d" % opt["diagspin"])
        a("L_DIAG:")
        a("    s_memrealtime s[92:93]")
        a("    s_waitcnt lgkmcnt(0)")
        a("    s_sub_u32 s92, s92, s96")
        a("    s_cmp_lt_i32 s92, 0")
        a("    s_cbranch_scc1 L_DIAG")
    a("L_FIN2:")
    finish()
    if P4:
        a("L_ACK:")
        a("    s_waitcnt vmcnt(0)")
        a("    s_barrier")
        finish()

    if prof:
        a("L_PROF:")
        a("    s_memrealtime %s" % s(sPROF + 20, 2))
        a("    s_mov_b64 exec, 1")
        a("    s_lshl_b32 %s, s2, 3" % s(sT0))
        a("    s_add_u32 %s, %s, %s" % (s(sT0), s(sT0), s(sW)))
        a("    s_lshl_b32 %s, %s, 7" % (s(sT0), s(sT0)))
        a("    s_add_u32 %s, %s, 0x%x" % (s(sT0), s(sT0), PROFB))
        base(sB0, sWS, s(sT0))
        a("    v_mov_b32 v1, 0")
        a("    s_waitcnt lgkmcnt(0)")
        for i in range(16):
            a("    v_mov_b32 v2, %s" % s(sPROF + 2 * i))
            if prof == 2:
                a("    global_atomic_umax v1, v2, %s offset:%d sc1" % (s(sDBG, 2), 4 * i))
            else:
                a("    global_store_dword v1, v2, %s offset:%d" % (s(sB0, 2), 4 * i))
        if prof == 2:
            a("    s_not_b32 %s, %s" % (s(sT0), s(sPROF)))
            a("    v_mov_b32 v2, %s" % s(sT0))
            a("    global_atomic_umax v1, v2, %s offset:48 sc1" % s(sDBG, 2))
        a("    s_endpgm")
    a("L_END:")
    a("    s_endpgm")
    a("L_CODE_END:")
    nv = (V.hi + 7) // 8 * 8
    a('.section .rodata,"a"')
    a(".p2align 6")
    a(".amdhsa_kernel %s_kernel" % NAME)
    a("  .amdhsa_next_free_vgpr %d" % nv)
    a("  .amdhsa_next_free_sgpr 102")
    a("  .amdhsa_accum_offset %d" % nv)
    a("  .amdhsa_group_segment_fixed_size 0")
    a("  .amdhsa_kernarg_size 96")
    a("  .amdhsa_user_sgpr_count 2")
    a("  .amdhsa_user_sgpr_kernarg_segment_ptr 1")
    a("  .amdhsa_system_sgpr_workgroup_id_x 1")
    a("  .amdhsa_float_denorm_mode_32 3")
    a(".end_amdhsa_kernel")
    return out + a.finalize()


if __name__ == "__main__":
    import argparse
    ap = argparse.ArgumentParser()
    ap.add_argument("-o", default=None)
    ap.add_argument("--prof", type=int, default=0)
    ap.add_argument("--opt", default="")
    args = ap.parse_args()
    opt = {}
    for kv in args.opt.split(","):
        if kv:
            k, x = kv.split("=")
            opt[k] = int(x)
    txt = gen(args.prof, opt)
    path = args.o or os.path.join(os.path.dirname(os.path.abspath(__file__)), "..", "cdna_kernels", NAME + ".s")
    open(path, "w").write(txt)
    print("wrote", path, len(txt.split("\n")), "lines")
```

```python
import sys
import os
sys.path.insert(0, os.path.dirname(os.path.abspath(__file__)))
from asmlib import Asm

NAME = "sequential_preLN__sliding_block_cached__glu_gated_bilinear__decode"

EPOCH = 0
S1 = 0x20000
S2ML = 0x11000
S3 = 0x40000
S4 = 0xF8000
SBELL = 0x160000
SRDY = 0x138000
SQF = 0x5C000
S2O = 0x60000
PROFB = 0x200000

LK = 0
LV = 32768
LG = 65536
LD = 98304
LRED = 114688
LQ = 119040
LMX = 120128
LLS = 120256
LP = 120768
LH = 121856
LGP = 122880
LCS = 123904
LST = 124928
LWT = 124992
LEP = 125504
LRM = 125512
LDS_BYTES = 125568

DPP = "row_mask:0xf bank_mask:0xf"
SPIN_LIMIT = 1 << 18


class Regs:
    def __init__(self, start):
        self.n = start
        self.hi = start

    def __call__(self, cnt=1, align=None):
        if align is None:
            align = 2 if cnt > 1 else 1
        self.n = (self.n + align - 1) // align * align
        b = self.n
        self.n += cnt
        self.hi = max(self.hi, self.n)
        return b

    def mark(self):
        return self.n

    def release(self, m):
        self.n = m


def v(b, n=1):
    return "v%d" % b if n == 1 else "v[%d:%d]" % (b, b + n - 1)


def s(b, n=1):
    return "s%d" % b if n == 1 else "s[%d:%d]" % (b, b + n - 1)


def gen(prof=False, opt=None):
    opt = dict(opt or {})
    global S1, S3, S4, SRDY, SBELL, S2ML, S2O
    if opt.get("lay") == 1:
        S1, S3, S4, SRDY, SBELL = 0x1000, 0x15000, 0xE0000, 0x120000, 0x140000
    if opt.get("lay") == 2:
        S1, S2ML, S3, SBELL, SRDY, S4, S2O = 0x1000, 0x11000, 0x15000, 0x1D000, 0x20000, 0x40000, 0x80000
    if opt.get("lay") == 3:
        S1, S2ML, S3, SBELL, SRDY, S4, S2O = 0x1080, 0x11100, 0x15180, 0x1D280, 0x20300, 0x40380, 0x80400
    for k_, x_ in dict(bx=0, qpol=4, win=3, mb=0, sw=6, sf=1, ft=7, t0p=2, fack=0, ost=1, amx=0, pl=0, sb2=2, sb3=1, rs2=10, dh=4, cf=1, hp=2, c3=1, wt=2).items():
        opt.setdefault(k_, x_)
    a = Asm()
    V = Regs(1)
    sX, sK, sVp, sWQ, sWO, sBX, sWG, sWU = 4, 6, 8, 10, 12, 14, 16, 18
    sWD, sOUT, sDBG, sWS = 20, 22, 24, 26
    sE, sW, sH, sJ = 28, 29, 30, 31
    sT0, sT1, sT2, sT3 = 32, 33, 34, 35
    sB0, sB1, sB2, sB3 = 36, 38, 40, 42
    sM8, sM10, sTag8, sTag10, sT32 = 44, 45, 46, 47, 48
    sSpin, sTmp, sDummy = 49, 50, 51
    sPC = 52
    sB4 = 54
    sU, sFI = 56, 57
    sMean, sVar = 58, 59
    sBo, sBml = 60, 62
    sBfl = 94
    sB5, sInb = 98, 100
    sFl = 4
    sRep = 92
    sScale = 14
    sPROF = 64
    uid = [0]
    ST1, ST2, ST3 = opt.get("st1", 2048), opt.get("st2", 2048), opt.get("st3", 2048)
    XS = ["", " nt", " sc0"][opt.get("xsk", 0)] if opt.get("xs", 0) & 1 else " sc1"
    R2, R3 = opt.get("r2", 4), opt.get("r3", 16)
    RS2, RS3 = opt.get("rs2", 8), opt.get("rs3", 7)
    P2, P3 = opt.get("p2", 2), opt.get("p3", 1)
    vm = []

    def waitfor(name):
        n = len(vm) - 1 - vm.index(name)
        a("    s_waitcnt vmcnt(%d)" % n)

    STM = opt.get("stamps", 0xFFFF)

    def stamp(i):
        if opt.get("diagph") == i:
            a("    s_memrealtime s[90:91]")
        if prof and (STM >> i) & 1:
            a("    s_memrealtime %s" % s(sPROF + 2 * i, 2))

    def cstamp(i):
        if prof and opt.get("cst"):
            a("    s_memtime %s" % s(sPROF + 2 * i, 2))

    def setexec(lo, hi):
        if lo == hi == 0xFFFFFFFF:
            a("    s_mov_b64 exec, -1")
        else:
            a("    s_mov_b32 exec_lo, 0x%x" % lo)
            a("    s_mov_b32 exec_hi, 0x%x" % hi)

    def base(dst, ptr, off_sreg):
        a("    s_add_u32 %s, %s, %s" % (s(dst), s(ptr), off_sreg))
        a("    s_addc_u32 %s, %s, 0" % (s(dst + 1), s(ptr + 1)))

    def finish():
        if prof:
            a("    s_branch L_PROF")
        else:
            a("    s_endpgm")

    def bf16r(dst, src):
        a("    v_cvt_pk_bf16_f32 %s, %s, %s" % (v(dst), v(src), v(src)))
        a("    v_and_b32 %s, 0xffff0000, %s" % (v(dst), v(dst)))

    def wavesum_to_sgpr(r, sd):
        for sh in (1, 2, 4, 8):
            a("    v_add_f32_dpp %s, %s, %s row_ror:%d %s" % (v(r), v(r), v(r), sh, DPP))
        a("    v_add_f32_dpp %s, %s, %s row_bcast:15 row_mask:0xa bank_mask:0xf" % (v(r), v(r), v(r)))
        a("    v_add_f32_dpp %s, %s, %s row_bcast:31 row_mask:0xc bank_mask:0xf" % (v(r), v(r), v(r)))
        a("    v_readlane_b32 %s, %s, 63" % (s(sd), v(r)))

    def tagcheck(regs, tagreg, tmp, first=True):
        for i, r in enumerate(regs):
            if first and i == 0:
                a("    v_xor_b32 %s, %s, %s" % (v(tmp), s(tagreg), v(r)))
            else:
                a("    v_bitop3_b32 %s, %s, %s, %s bitop3:0xf6" % (v(tmp), v(tmp), v(r), s(tagreg)))

    def poll(loads, check, firstwait, post=None, cnt=None, keepexec=False):
        uid[0] += 1
        u = uid[0]
        a("    s_mov_b32 %s, 0" % s(sSpin))
        a("    s_branch L_CHECK%d" % u)
        a("L_RETRY%d:" % u)
        a("    s_add_u32 %s, %s, 1" % (s(sSpin), s(sSpin)))
        a("    s_cmp_ge_u32 %s, 0x%x" % (s(sSpin), SPIN_LIMIT))
        a("    s_cbranch_scc1 L_OK%d" % u)
        a("    s_mov_b64 exec, vcc")
        loads()
        if firstwait:
            a("    s_waitcnt vmcnt(0)")
        a("L_CHECK%d:" % u)
        a("    s_waitcnt vmcnt(%d)" % firstwait)
        check()
        a("    s_cbranch_vccnz L_RETRY%d" % u)
        a("L_OK%d:" % u)
        a("    s_mov_b64 exec, -1")
        if prof and cnt is not None and (not opt.get("astamps") or cnt == 15):
            a("    s_mov_b32 %s, %s" % (s(sPROF + 2 * cnt), s(sSpin)))
        if post:
            post()

    def spoll(pair, off, rep, parts=1, rep3=False):
        uid[0] += 1
        u = uid[0]
        a("    s_mov_b32 %s, 0" % s(sSpin))
        depth = opt.get("spd", 1)
        if depth > 1:
            for k in range(4):
                a("    s_not_b64 %s, %s" % (s(sFl + 2 * k, 2), s(rep, 2)))
            a("L_SP%d:" % u)
            a("    s_add_u32 %s, %s, 1" % (s(sSpin), s(sSpin)))
            a("    s_cmp_ge_u32 %s, 0x%x" % (s(sSpin), SPIN_LIMIT))
            a("    s_cbranch_scc1 L_SPD%d" % u)
            a("    s_load_dwordx8 %s, %s, %s glc" % (s(sFl, 8), s(pair, 2), off))
            a("    s_waitcnt lgkmcnt(%d)" % (2 * depth - 2))
            for k in range(4):
                a("    s_cmp_eq_u64 %s, %s" % (s(sFl + 2 * k, 2), s(rep, 2)))
                a("    s_cbranch_scc0 L_SP%d" % u)
            a("L_SPD%d:" % u)
            return
        if parts > 1:
            base(sB0 if rep3 else sB1, pair, off)
        a("L_SP%d:" % u)
        if parts == 1:
            a("    s_load_dwordx8 %s, %s, %s glc" % (s(sFl, 8), s(pair, 2), off))
        else:
            n = 8 // parts
            for k in range(parts):
                a("    s_load_dword%s %s, %s, 0x%x glc" % ("" if n == 1 else "x%d" % n, s(sFl + n * k, n), s(sB0 if rep3 else sB1, 2), 128 * k))
        a("    s_add_u32 %s, %s, 1" % (s(sSpin), s(sSpin)))
        a("    s_cmp_ge_u32 %s, 0x%x" % (s(sSpin), SPIN_LIMIT))
        a("    s_waitcnt lgkmcnt(0)")
        a("    s_cbranch_scc1 L_SPD%d" % u)
        for k in range(4):
            a("    s_xor_b64 %s, %s, %s" % (s(sFl + 2 * k, 2), s(sFl + 2 * k, 2), s(rep, 2)))
        a("    s_or_b64 %s, %s, %s" % (s(sFl, 2), s(sFl, 2), s(sFl + 2, 2)))
        a("    s_or_b64 %s, %s, %s" % (s(sFl + 4, 2), s(sFl + 4, 2), s(sFl + 6, 2)))
        a("    s_or_b64 %s, %s, %s" % (s(sFl, 2), s(sFl, 2), s(sFl + 4, 2)))
        a("    s_cbranch_scc1 L_SP%d" % u)
        a("L_SPD%d:" % u)

    def spoll2(offA, dist, rep, parts, bp, between=None, phase=0):
        assert not prof
        uid[0] += 1
        u = uid[0]
        sets = (sFl, 64)
        n = 8 // parts
        SENT = 0x5a5aa5a5
        if phase != 2:
            base(bp, sWS, offA)

        def issue(k):
            a("    s_mov_b32 %s, 0x%x" % (s(sets[k] + 7), SENT))
            for q in range(parts):
                a("    s_load_dword%s %s, %s, 0x%x glc" % ("x%d" % n, s(sets[k] + n * q, n), s(bp, 2), 128 * q + dist * k))
        if phase != 2:
            issue(0)
        if phase == 1:
            return
        issue(1)
        a("    s_mov_b32 %s, 0" % s(sSpin))
        for k in (0, 1):
            a("L_S2%d_%d:" % (u, k))
            if k == 0:
                a("    s_add_u32 %s, %s, 1" % (s(sSpin), s(sSpin)))
                a("    s_cmp_ge_u32 %s, 0x%x" % (s(sSpin), SPIN_LIMIT * 8))
                a("    s_cbranch_scc1 L_S2D%d" % u)
            a("    s_cmp_eq_u32 %s, 0x%x" % (s(sets[k] + 7), SENT))
            a("    s_cbranch_scc1 L_S2%d_%d" % (u, 1 - k))
            for q in range(4):
                a("    s_cmp_eq_u64 %s, %s" % (s(sets[k] + 2 * q, 2), s(rep, 2)))
                a("    s_cbranch_scc0 L_S2R%d_%d" % (u, k))
            a("    s_branch L_S2D%d" % u)
            a("L_S2R%d_%d:" % (u, k))
            issue(k)
            if k == 1:
                a("    s_branch L_S2%d_0" % u)
        a("L_S2D%d:" % u)

    def gather(loads, regs, tag, lowmask, acc, cnt=None, before=None, ordered=True, younger=0):
        uid[0] += 1
        u = uid[0]
        n = len(regs)

        def strip(i, first):
            r = regs[i]
            for k in range(4):
                a("    v_xor_b32 %s, %s, %s" % (v(r + k), s(tag), v(r + k)))
            if first:
                a("    v_or3_b32 %s, %s, %s, %s" % (v(vG0), v(r), v(r + 1), v(r + 2)))
                a("    v_or_b32 %s, %s, %s" % (v(vG0), v(vG0), v(r + 3)))
            else:
                a("    v_or3_b32 %s, %s, %s, %s" % (v(vG0), v(vG0), v(r), v(r + 1)))
                a("    v_or3_b32 %s, %s, %s, %s" % (v(vG0), v(vG0), v(r + 2), v(r + 3)))

        def verdict():
            a("    v_and_b32 %s, 0x%x, %s" % (v(vG0), lowmask, v(vG0)))
            a("    v_cmp_ne_u32 vcc, 0, %s" % v(vG0))
        a("    s_mov_b32 %s, 0" % s(sSpin))
        a("    s_branch L_FIRST%d" % u)
        a("L_RETRY%d:" % u)
        a("    s_add_u32 %s, %s, 1" % (s(sSpin), s(sSpin)))
        a("    s_cmp_ge_u32 %s, 0x%x" % (s(sSpin), SPIN_LIMIT))
        a("    s_cbranch_scc1 L_REDO%d" % u)
        a("    s_mov_b64 exec, vcc")
        loads()
        a("    s_waitcnt vmcnt(0)")
        for i in range(n):
            strip(i, i == 0)
        verdict()
        a("    s_cbranch_vccnz L_RETRY%d" % u)
        a("L_REDO%d:" % u)
        a("    s_mov_b64 exec, -1")
        for i in range(n):
            acc(i)
        a("    s_branch L_OK%d" % u)
        a("L_FIRST%d:" % u)
        if before:
            before()
        for i in range(n):
            if ordered or i == 0:
                a("    s_waitcnt vmcnt(%d)" % (n - 1 - i + younger if ordered else 0))
            strip(i, i == 0)
            if i == n - 1:
                verdict()
            acc(i)
        a("    s_cbranch_vccnz L_RETRY%d" % u)
        a("L_OK%d:" % u)
        if prof and cnt is not None and not opt.get("astamps"):
            a("    s_mov_b32 %s, %s" % (s(sPROF + 2 * cnt), s(sSpin)))

    def allred_hi(r, tmp, op):
        for sh in (4, 8):
            a("    v_%s_f32_dpp %s, %s, %s row_ror:%d %s" % (op, v(r), v(r), v(r), sh, DPP))
        for sw in ("16", "32"):
            a("    v_mov_b32 %s, %s" % (v(tmp), v(r)))
            a("    v_permlane%s_swap_b32 %s, %s" % (sw, v(r), v(tmp)))
            a("    v_%s_f32 %s, %s, %s" % (op, v(r), v(r), v(tmp)))

    def rowpack(r, dst, n):
        a("    v_mov_b32_dpp %s, %s quad_perm:[1,1,3,3] %s" % (v(r + 1), v(r), DPP))
        a("    v_cvt_pk_bf16_f32 %s, %s, %s" % (v(r + 1), v(r), v(r + 1)))
        for i in range(n):
            a("    v_mov_b32_dpp %s, %s row_newbcast:%d %s" % (v(dst + i), v(r + 1), 2 * i, DPP))

    def treduce4(r):
        a("    v_permlane32_swap_b32 %s, %s" % (v(r), v(r + 2)))
        a("    v_permlane32_swap_b32 %s, %s" % (v(r + 1), v(r + 3)))
        a("    v_add_f32 %s, %s, %s" % (v(r), v(r), v(r + 2)))
        a("    v_add_f32 %s, %s, %s" % (v(r + 1), v(r + 1), v(r + 3)))
        a("    v_permlane16_swap_b32 %s, %s" % (v(r), v(r + 1)))
        a("    v_add_f32 %s, %s, %s" % (v(r), v(r), v(r + 1)))

    hdr = open(os.path.join(os.path.dirname(os.path.abspath(__file__)), "..", "cdna_kernels", NAME + ".s.ref")).read()
    head = [l for l in hdr.split("\n") if l.startswith("; Kernarg") or l.startswith(";   offset")]
    out = "\n".join(head) + "\n"
    doc = """
One persistent launch: 256 workgroups (one per CU, all co-resident) x 8 waves.  wg = 8 j + h.
  every wg : LN(x), a 128-row x 64-column piece of q = LN(x) wq, then flash-decoding of KV head h
             over keys 128 j .. 128 j + 127 of the window (true max per chunk, combined later)
  j < 16   : combines the 32 chunks of head group h for 64 of its dims and multiplies by a 256 x 64 piece of wo
  112 wgs  : h = x + attn, LN(h) folded around the products, 16 columns of gate / up, 16 rows of w_down;
             32 of their waves add the 112 partial results and write the output
Hand-offs go through d_ws with write-through stores.  Every word handed over carries a tag taken from an
epoch word (read at entry, advanced at the end), so a launch never takes an earlier launch's words for its own;
a consumer reloads until every tag matches.  Small hint words only tell a consumer when a first look is worth it.
All waits are bounded.
"""
    out += "".join("; " + l + "\n" for l in doc.strip().split("\n"))
    out += "; @launch grid=(256,1,1) block=(512,1,1) lds=%d\n" % LDS_BYTES
    a('.amdgcn_target "amdgcn-amd-amdhsa--gfx950"')
    a(".text")
    a(".globl %s_kernel" % NAME)
    a(".p2align 8")
    a(".type %s_kernel,@function" % NAME)
    a("%s_kernel:" % NAME)

    vL = 0
    vM = V(4, 4)
    vSink = V() if opt.get("vt", 0) else None
    vTag8, vTag10, vG0 = V(), V(), V()
    vL3, vL7, vG, vJ = V(), V(), V(), V()
    vRedW, vRedR, vRedR8, vC4 = V(), V(), V(), V()
    vD = V(4, 4)
    vT = V(8, 4)
    vV0 = V(4)
    vV1 = vV0 + 1
    vW = V(16, 4)
    vAk = V(4)
    vKo = V(4)
    vAq, vAqw, vAmw, vAmr, vAlw, vApw, vApr, vAv, vAo, vAlr, vQo = [V() for _ in range(11)]
    mk = V.mark()

    def attn_addresses():
        a("    s_lshl_b32 %s, %s, 12" % (s(sT0), s(sW)))
        a("    v_xor_b32 %s, %s, %s" % (v(vT), v(vJ), v(vG)))
        a("    v_lshlrev_b32 %s, 4, %s" % (v(vT), v(vT)))
        a("    v_lshl_or_b32 %s, %s, 8, %s" % (v(vT), v(vJ), v(vT)))
        a("    v_add_u32 %s, %s, %s" % (v(vAk), s(sT0), v(vT)))
        for i in (1, 2, 3):
            a("    v_xor_b32 %s, 0x%x, %s" % (v(vAk + i), 64 * i, v(vAk)))
        a("    v_and_b32 %s, 3, v0" % v(vT))
        a("    v_mul_u32_u24 %s, 272, %s" % (v(vT + 1), v(vT)))
        a("    v_lshl_add_u32 %s, %s, 4, %s" % (v(vT + 2), v(vG), v(vT + 1)))
        a("    v_add_u32 %s, 0x%x, %s" % (v(vAq), LQ, v(vT + 2)))
        a("    v_add_u32 %s, 0x%x, %s" % (v(vApr), LP, v(vT + 2)))
        a("    s_lshr_b32 %s, %s, 1" % (s(sT0), s(sW)))
        a("    s_and_b32 %s, %s, 1" % (s(sT1), s(sW)))
        a("    s_lshl_b32 %s, %s, 6" % (s(sT2), s(sT0)))
        a("    s_lshl_b32 %s, %s, 3" % (s(sT3), s(sT1)))
        a("    s_add_u32 %s, %s, %s" % (s(sT2), s(sT2), s(sT3)))
        a("    v_add_u32 %s, %s, %s" % (v(vApw), s(sT2), v(vApr)))
        a("    s_mul_i32 %s, %s, 272" % (s(sT0), s(sT0)))
        a("    s_lshl_b32 %s, %s, 7" % (s(sT1), s(sT1)))
        a("    s_add_u32 %s, %s, %s" % (s(sT0), s(sT0), s(sT1)))
        a("    s_add_u32 %s, %s, 0x%x" % (s(sT0), s(sT0), LQ))
        a("    v_lshl_add_u32 %s, %s, 2, %s" % (v(vT + 3), v(vJ), v(vG)))
        a("    v_lshl_add_u32 %s, %s, 1, %s" % (v(vAqw), v(vT + 3), s(sT0)))
        a("    v_lshlrev_b32 %s, 5, %s" % (v(vT + 1), v(vT)))
        a("    v_add_u32 %s, 0x%x, %s" % (v(vAmr), LMX, v(vT + 1)))
        a("    s_lshl_b32 %s, %s, 2" % (s(sT0), s(sW)))
        a("    v_add_u32 %s, %s, %s" % (v(vAmw), s(sT0), v(vAmr)))
        a("    s_lshl_b32 %s, %s, 4" % (s(sT0), s(sW)))
        a("    s_add_u32 %s, %s, 0x%x" % (s(sT0), s(sT0), LLS))
        a("    v_lshlrev_b32 %s, 7, %s" % (v(vT + 1), v(vT)))
        a("    v_lshl_add_u32 %s, %s, 2, %s" % (v(vT + 1), v(vG), v(vT + 1)))
        a("    v_add_u32 %s, %s, %s" % (v(vAlw), s(sT0), v(vT + 1)))
        a("    v_lshrrev_b32 %s, 2, v0" % v(vT + 1))
        a("    v_lshlrev_b32 %s, 3, %s" % (v(vT + 1), v(vT + 1)))
        a("    v_lshl_add_u32 %s, %s, 7, %s" % (v(vT + 1), v(vT), v(vT + 1)))
        a("    v_add_u32 %s, 0x%x, %s" % (v(vAlr), LLS, v(vT + 1)))
        a("    v_lshrrev_b32 %s, 2, %s" % (v(vT + 1), v(vJ)))
        a("    v_lshl_add_u32 %s, %s, 2, %s" % (v(vT + 1), v(vG), v(vT + 1)))
        a("    v_and_b32 %s, 7, %s" % (v(vT + 2), v(vT + 1)))
        a("    v_lshlrev_b32 %s, 1, %s" % (v(vT + 2), v(vT + 2)))
        a("    v_bfe_u32 %s, v0, 1, 1" % v(vT + 3))
        a("    s_lshl_b32 %s, %s, 1" % (s(sT0), s(sW)))
        a("    v_add_u32 %s, %s, %s" % (v(vT + 3), s(sT0), v(vT + 3)))
        a("    v_xor_b32 %s, %s, %s" % (v(vT + 2), v(vT + 2), v(vT + 3)))
        a("    v_lshlrev_b32 %s, 4, %s" % (v(vT + 2), v(vT + 2)))
        a("    v_lshl_or_b32 %s, %s, 8, %s" % (v(vT + 1), v(vT + 1), v(vT + 2)))
        a("    v_and_b32 %s, 1, v0" % v(vT + 2))
        a("    v_lshl_or_b32 %s, %s, 3, %s" % (v(vT + 1), v(vT + 2), v(vT + 1)))
        a("    v_add_u32 %s, 0x%x, %s" % (v(vAv), LV, v(vT + 1)))
        a("    s_lshl_b32 %s, %s, 5" % (s(sT0), s(sH)))
        a("    s_add_u32 %s, %s, %s" % (s(sT0), s(sT0), s(sJ)))
        a("    s_lshl_b32 %s, %s, 6" % (s(sT2), s(sT0)))
        a("    s_add_u32 %s, %s, 0x%x" % (s(sT2), s(sT2), S2ML))
        base(sBml, sWS, s(sT2))
        if opt.get("sb2", 0):
            per = 32 // P2
            a("    s_lshl_b32 %s, %s, %d" % (s(sT0), s(sH), RS2 + 4))
            a("    s_and_b32 %s, %s, %d" % (s(sT1), s(sJ), per - 1))
            a("    s_add_u32 %s, %s, %s" % (s(sT0), s(sT0), s(sT1)))
            a("    s_lshr_b32 %s, %s, %d" % (s(sT1), s(sJ), per.bit_length() - 1))
            a("    s_lshl_b32 %s, %s, 7" % (s(sT1), s(sT1)))
            a("    s_add_u32 %s, %s, %s" % (s(sT0), s(sT0), s(sT1)))
            a("    s_add_u32 %s, %s, 0x%x" % (s(sT0), s(sT0), SRDY))
            base(sBfl, sWS, s(sT0))

    a("    s_cmp_ge_u32 s2, 0x100")
    a("    s_cbranch_scc1 L_END")
    a("    s_load_dwordx16 s[4:19], s[0:1], 0x0")
    a("    s_load_dwordx8 s[20:27], s[0:1], 0x40")
    if opt.get("diagspin"):
        a("    s_memrealtime s[96:97]")
    if prof == 2:
        for i in range(1, 12):
            a("    s_mov_b32 %s, 0" % s(sPROF + 2 * i))
    stamp(0)
    vXo = vAo
    vXSo, vWQ0, vWQ1 = V(), V(), V()
    vXf = V(4, 4)
    vXs = V()
    KVM = 0
    OCLR = 0
    sIdx = sDummy + 0
    a("    v_lshrrev_b32 %s, 6, v0" % v(vT))
    a("    v_and_b32 v0, 63, v0")
    a("    s_lshr_b32 %s, s2, 3" % s(sJ))
    a("    v_readfirstlane_b32 %s, %s" % (s(sW), v(vT)))
    a("    s_and_b32 %s, s2, 7" % s(sH))
    a("    v_lshlrev_b32 %s, 4, v0" % v(vXo))
    a("    v_lshrrev_b32 %s, 3, v0" % v(vL3))
    a("    v_and_b32 %s, 0x70, %s" % (v(vT), v(vXo)))
    a("    v_lshlrev_b32 %s, 2, %s" % (v(vXSo), v(vL3)))
    a("    v_lshl_or_b32 %s, %s, 14, %s" % (v(vWQ0), v(vL3), v(vT)))
    a("    s_and_b32 %s, %s, 24" % (s(sT0), s(sJ)))
    a("    s_add_u32 %s, %s, %s" % (s(sT0), s(sT0), s(sW)))
    a("    s_and_b32 %s, %s, 7" % (s(sT3), s(sJ)))
    a("    s_lshl3_add_u32 %s, %s, %s" % (s(sT3), s(sH), s(sT3)))
    a("    s_lshl_b32 %s, %s, 10" % (s(sT1), s(sT0)))
    a("    s_add_u32 %s, %s, %s" % (s(sT1), s(sT1), s(sT3)))
    a("    s_lshl_b32 %s, %s, 7" % (s(sT1), s(sT1)))
    a("    s_lshl_b32 %s, %s, 5" % (s(sT0), s(sT0)))
    a("    v_add_u32 %s, 0x2000, %s" % (v(vWQ1), v(vWQ0)))

    def later():
        a("    v_lshrrev_b32 %s, 4, v0" % v(vG))
        a("    v_and_b32 %s, 15, v0" % v(vJ))
        a("    s_lshl3_add_u32 %s, %s, %s" % (s(sT3), s(sJ), s(sW)))
        a("    s_lshl_b32 %s, %s, 12" % (s(sT2), s(sH)))
        a("    v_xor_b32 %s, %s, %s" % (v(vT), v(vJ), v(vG)))
        a("    s_add_u32 %s, %s, %s" % (s(sT2), s(sT2), s(sT3)))
        a("    v_lshlrev_b32 %s, 4, %s" % (v(vT), v(vT)))
        a("    s_add_u32 %s, %s, 0xf00" % (s(sT2), s(sT2)))
        a("    v_lshl_or_b32 %s, %s, 8, %s" % (v(vKo), v(vG), v(vT)))
        a("    s_lshl_b32 %s, %s, 12" % (s(sT2), s(sT2)))
        a("    s_lshl_b32 %s, %s, 12" % (s(sTmp), s(sW)))
        a("    s_mov_b32 m0, %s" % s(sTmp))
    PL = opt.get("pl", 1)
    if not PL:
        later()
    a.c("x, this wave's 16 rows of wq, first K piece (LDS-DMA, bank-swizzled through the source address)")
    a("    s_waitcnt lgkmcnt(0)")
    T2 = opt.get("touch2", 0)
    if T2:
        assert not PL
        a("    s_cmp_eq_u32 %s, 1" % s(sW))
        a("    s_cselect_b64 %s, %s, %s" % (s(sB4, 2), s(sWQ, 2), s(sK, 2)))
        a("    s_cselect_b32 %s, %s, %s" % (s(sDummy), s(sT1), s(sT2)))
        a("    s_cmp_gt_u32 %s, 1" % s(sW) if T2 == 1 else "    s_cmp_gt_u32 %s, 1" % s(sT3))
        a("    s_cbranch_scc1 L_NOT2")
        a("    s_load_dword %s, %s, %s" % (s(sDummy), s(sB4, 2), s(sDummy)))
        a("L_NOT2:")
    LN0 = opt.get("ln0", 0)
    if LN0:
        a("    s_cmp_lg_u32 %s, 0" % s(sW))
        a("    s_cbranch_scc1 L_NOX")
        a("    global_load_dwordx4 %s, %s, %s" % (v(vXf, 4), v(vXo), s(sX, 2)))
        a("L_NOX:")
        a("    s_add_u32 %s, %s, 0x%x" % (s(sB0), s(sT0), LH))
    else:
        a("    global_load_dwordx4 %s, %s, %s" % (v(vXf, 4), v(vXo), s(sX, 2)))
        base(sB0, sX, s(sT0))
        a("    global_load_dword %s, %s, %s" % (v(vXs), v(vXSo), s(sB0, 2)))
    base(sB1, sWQ, s(sT1))
    if opt.get("bx", 0):
        a("    s_barrier")
    a("    global_load_dwordx4 %s, %s, %s nt" % (v(vW, 4), v(vWQ0), s(sB1, 2)))
    a("    global_load_dwordx4 %s, %s, %s nt" % (v(vW + 4, 4), v(vWQ1), s(sB1, 2)))
    vm.extend(["x", "xs", "wq0", "wq1"])
    if PL:
        later()
    base(sB2, sK, s(sT2))
    VT = opt.get("vt", 0)

    def vtouch():
        a("    s_cmp_lg_u32 %s, 7" % s(sW))
        a("    s_cbranch_scc1 L_NOVT")
        base(sB3, sVp, s(sT2))
        a("    s_lshl_b32 %s, %s, 19" % (s(sT1), s(sH)))
        base(sB4, sWO, s(sT1))
        a("    v_mov_b32 %s, %s" % (v(vD), s(sB3)))
        a("    v_mov_b32 %s, %s" % (v(vD + 1), s(sB3 + 1)))
        for k, p in enumerate((sWS, sB4, sWG, sWU, sWD)):
            a("    v_writelane_b32 %s, %s, %d" % (v(vD), s(p), k + 1))
            a("    v_writelane_b32 %s, %s, %d" % (v(vD + 1), s(p + 1), k + 1))
        a("    s_lshl_b32 %s, s2, 7" % s(sT1))
        a("    s_add_u32 %s, %s, 0x20000" % (s(sT1), s(sT1)))
        setexec(0x3E, 0)
        a("    v_add_co_u32 %s, vcc, %s, %s" % (v(vD), s(sT1), v(vD)))
        a("    v_addc_co_u32 %s, vcc, 0, %s, vcc" % (v(vD + 1), v(vD + 1)))
        setexec(0x3F, 0)
        a("    global_load_dword %s, %s, off nt" % (v(vSink), v(vD, 2)))
        setexec(0xFFFFFFFF, 0xFFFFFFFF)
        a("L_NOVT:")
    if VT == 1:
        vtouch()
    if opt.get("b0", 1):
        a("    s_barrier")
    WIN = opt.get("win", 3)
    QPOS = opt.get("qpos", 7)
    stream = ["wq0", "wq1", "K0", "K1", "K2", "K3", "V0", "V1", "V2", "V3"]

    def sload(i):
        nm = stream[i]
        k = int(nm[1])
        if KVM == 2:
            if nm[0] == "K":
                a("    s_add_u32 m0, %s, %s" % (s(92), s(sRot + k)))
                a("    global_load_lds_dwordx4 %s, %s nt" % (v(vKo + k), s(sB2, 2)))
            else:
                a("    s_add_u32 m0, %s, %s" % (s(sTmp), s(sRot + k)))
                a("    global_load_lds_dwordx4 %s, %s nt" % (v(vV0 + k), s(sB3, 2)))
        elif nm[0] == "K":
            a("    global_load_lds_dwordx4 %s, %s offset:%d nt" % (v(vKo + k), s(sB2, 2), 1024 * k))
        else:
            if k == 0:
                a("    s_mov_b32 m0, %s" % s(sTmp))
            a("    global_load_lds_dwordx4 %s, %s offset:%d nt" % (v(vV0 + k) if KVM else v(vV1 if k & 1 else vV0), s(sB3, 2), 1024 * k))
        vm.append(nm)
    assert WIN == 3
    WIN0 = opt.get("win0", WIN)
    for i in range(2, WIN0):
        if i > 2:
            a("    v_xor_b32 %s, 0x%x, %s" % (v(vKo + i - 2), 64 * (i - 2), v(vKo)))
        sload(i)
    if VT == 2:
        vtouch()
    base(sB3, sVp, s(sT2))
    for i in (1, 2, 3):
        a("    v_xor_b32 %s, 0x%x, %s" % (v(vKo + i), 64 * i, v(vKo)))
    a("    v_and_b32 %s, 7, v0" % v(vL7))
    a("    s_lshl_b32 %s, %s, 5" % (s(sT1), s(sH)))
    a("    s_add_u32 %s, %s, %s" % (s(sT1), s(sT1), s(sJ)))
    a("    s_mul_i32 %s, %s, %d" % (s(sT1), s(sT1), ST2))
    a("    s_lshl_b32 %s, %s, 8" % (s(sT0), s(sW)))
    a("    s_add_u32 %s, %s, %s" % (s(sT1), s(sT1), s(sT0)))
    a("    s_add_u32 %s, %s, 0x%x" % (s(sT1), s(sT1), S2O))
    base(sBo, sWS, s(sT1))
    E0 = opt.get("e0", 1)
    a("    s_lshl_b32 %s, %s, 3" % (s(sT0), s(sJ)))
    a("    s_add_u32 %s, %s, %s" % (s(sT0), s(sT0), s(sW)))
    if E0:
        a("    s_cmp_lg_u32 %s, %d" % (s(sW), 1 if LN0 else 0))
        a("    s_cbranch_scc1 L_NOE")
        if opt.get("prio", 0) == 1:
            a("    s_setprio 3")
    a("    s_load_dword %s, %s, 0x%x" % (s(sE), s(sWS, 2), EPOCH))
    a("L_NOE:")
    if opt.get("prio", 0) == 2:
        a("    s_cmp_lt_u32 %s, 4" % s(sW))
        a("    s_cbranch_scc1 L_NOPR")
        a("    s_setprio 1")
        a("L_NOPR:")
    a("    s_getpc_b64 %s" % s(sPC, 2))
    a("L_PC:")
    if opt.get("pf", 1):
        if LN0:
            a("    s_cmp_eq_u32 %s, 0" % s(sW))
            a("    s_cbranch_scc1 L_NOPF")
            a("    s_sub_u32 %s, %s, %s" % (s(sT1), s(sT0), s(sJ)))
            a("    s_sub_u32 %s, %s, 1" % (s(sT1), s(sT1)))
        else:
            a("    s_mov_b32 %s, %s" % (s(sT1), s(sT0)))
        a("    s_cmp_gt_u32 %s, (L_CODE_END-L_PC-4)/128" % s(sT1))
        a("    s_cbranch_scc1 L_NOPF")
        a("    s_lshl_b32 %s, %s, 7" % (s(sT1), s(sT1)))
        a("    s_load_dword %s, %s, %s" % (s(sDummy), s(sPC, 2), s(sT1)))
        a("L_NOPF:")
    if opt.get("touch", 1):
        a("    s_xor_b32 %s, %s, %d" % (s(sT1), s(sH), opt.get("dh", 0)))
        a("    s_lshl_b32 %s, %s, 19" % (s(sT1), s(sT1)))
        base(sB4, sWO, s(sT1))
        for k, p in enumerate((sB3, sWG, sWU, sWD, sOUT)):
            a("    s_cmp_eq_u32 %s, %d" % (s(sT0), 8 * (17 + k) + 7))
            a("    s_cselect_b64 %s, %s, %s" % (s(sB4, 2), s(p, 2), s(sB4, 2)))
        a("    s_sub_u32 %s, %s, %d" % (s(sT1), s(sT0), 8 * 16 + 7))
        a("    s_and_b32 %s, %s, 0xffffffc7" % (s(sT3), s(sT1)))
        a("    s_cmp_lg_u32 %s, 0" % s(sT3))
        a("    s_cbranch_scc1 L_NOTOUCH")
        a("    s_load_dword %s, %s, 0x0" % (s(sDummy), s(sB4, 2)))
        a("L_NOTOUCH:")
    a("    v_lshlrev_b32 %s, 1, %s" % (v(vT), v(vG)))
    a("    v_xor_b32 %s, %s, %s" % (v(vT), v(vJ), v(vT)))
    a("    v_lshlrev_b32 %s, 4, %s" % (v(vT), v(vT)))
    a("    v_lshl_or_b32 %s, %s, 8, %s" % (v(vV0), v(vG), v(vT)))
    a("    v_xor_b32 %s, 0x80, %s" % (v(vV1), v(vV0)))
    if KVM == 2:
        for i in (3, 2, 1, 0):
            a("    s_lshr_b32 %s, %s, 3" % (s(sT0), s(sRot + i)))
            a("    s_and_b32 %s, %s, 0x80" % (s(sT0), s(sT0)))
            a("    s_or_b32 %s, %s, %s" % (s(sT0), s(sT0), s(sRot + i)))
            a("    v_xor_b32 %s, %s, %s" % (v(vV0 + i), s(sT0), v(vV0)))
    if KVM == 1:
        a("    v_add_u32 %s, 0x%x, %s" % (v(vV0 + 3), 7168 * 3, v(vV1)))
        a("    v_add_u32 %s, 0x%x, %s" % (v(vV0 + 2), 7168 * 2, v(vV0)))
        a("    v_add_u32 %s, 0x%x, %s" % (v(vV1), 7168, v(vV1)))
    a("    s_add_u32 %s, %s, 0x%x" % (s(sTmp), s(sTmp), LV))
    a("    v_and_b32 %s, 1, v0" % v(vT))
    a("    v_lshlrev_b32 %s, 4, %s" % (v(vT), v(vT)))
    a("    v_lshlrev_b32 %s, %s, %s" % (v(vT + 1), v(vT), v(vT + 2)) if False else
      "    v_mov_b32 %s, 0xffff" % v(vT + 1))
    a("    v_lshlrev_b32 %s, %s, %s" % (v(vT + 1), v(vT), v(vT + 1)))
    a("    v_lshrrev_b32 %s, 1, %s" % (v(vT), v(vL7)))
    for r in range(4):
        a("    v_cmp_eq_u32 vcc, %d, %s" % (r, v(vT)))
        a("    v_cndmask_b32 %s, 0, %s, vcc" % (v(vM + r), v(vT + 1)))
    a("    v_lshrrev_b32 %s, 5, v0" % v(vT))
    a("    s_lshl_b32 %s, %s, 1" % (s(sT0), s(sW)))
    a("    v_add_u32 %s, %s, %s" % (v(vT), s(sT0), v(vT)))
    a("    v_mul_u32_u24 %s, 272, %s" % (v(vT), v(vT)))
    a("    v_and_b32 %s, 1, %s" % (v(vT + 1), v(vG)))
    a("    v_lshl_or_b32 %s, %s, 1, %s" % (v(vT + 1), v(vL7), v(vT + 1)))
    a("    v_lshl_add_u32 %s, %s, 4, %s" % (v(vT), v(vT + 1), v(vT)))
    a("    v_add_u32 %s, 0x%x, %s" % (v(vRedW), LRED, v(vT)))
    a("    v_and_b32 %s, 3, v0" % v(vT))
    a("    v_lshl_add_u32 %s, %s, 2, %s" % (v(vC4), v(vG), v(vT)))
    a("    v_lshlrev_b32 %s, 4, %s" % (v(vC4), v(vC4)))
    a("    v_bfe_u32 %s, v0, 2, 2" % v(vT))
    a("    v_mul_u32_u24 %s, 544, %s" % (v(vT), v(vT)))
    a("    v_add_u32 %s, %s, %s" % (v(vT + 1), v(vC4), v(vT)))
    a("    v_add_u32 %s, 0x%x, %s" % (v(vRedR8), LRED, v(vT + 1)))
    a("    v_add_u32 %s, %s, %s" % (v(vRedR), v(vRedR8), v(vT)))
    a("    s_mov_b32 %s, 0x3db504f3" % s(sScale))
    a("    s_mov_b32 %s, 0x3fb8aa3b" % s(sScale + 1))
    a("    s_mov_b32 %s, 0xffffff00" % s(sM8))
    a("    s_mov_b32 %s, 0xfffffc00" % s(sM10))

    a.c("LayerNorm of x, rounded to bf16 where the reference rounds")
    vXu = V(8, 4)
    vXk = V(8, 4)
    if LN0:
        a("    v_add_u32 %s, %s, %s" % (v(vXSo), s(sB0), v(vXSo)))
        a("    s_cmp_lg_u32 %s, 0" % s(sW))
        a("    s_cbranch_scc1 L_NOLN")
    waitfor("xs")
    stamp(1)
    for i in range(4):
        a("    v_lshlrev_b32 %s, 16, %s" % (v(vXu + 2 * i), v(vXf + i)))
        a("    v_and_b32 %s, 0xffff0000, %s" % (v(vXu + 2 * i + 1), v(vXf + i)))
    for i in range(4):
        a("    v_add_f32 %s, %s, %s" % (v(vT + i), v(vXu + 2 * i), v(vXu + 2 * i + 1)))
    a("    v_add_f32 %s, %s, %s" % (v(vT), v(vT), v(vT + 1)))
    a("    v_add_f32 %s, %s, %s" % (v(vT + 2), v(vT + 2), v(vT + 3)))
    a("    v_add_f32 %s, %s, %s" % (v(vT), v(vT), v(vT + 2)))
    a("    v_mul_f32 %s, 0x3b000000, %s" % (v(vT), v(vT)))
    wavesum_to_sgpr(vT, sMean)
    for i in range(8):
        a("    v_subrev_f32 %s, %s, %s" % (v(vXk + i), s(sMean), v(vXu + i)))
    a("    v_mul_f32 %s, %s, %s" % (v(vT), v(vXk), v(vXk)))
    a("    v_mul_f32 %s, %s, %s" % (v(vT + 1), v(vXk + 1), v(vXk + 1)))
    for i in range(2, 8):
        a("    v_fmac_f32 %s, %s, %s" % (v(vT + (i & 1)), v(vXk + i), v(vXk + i)))
    a("    v_add_f32 %s, %s, %s" % (v(vT), v(vT), v(vT + 1)))
    a("    v_mul_f32 %s, 0x3b000000, %s" % (v(vT), v(vT)))
    wavesum_to_sgpr(vT, sVar)
    a("    v_mov_b32 %s, %s" % (v(vT + 1), s(sMean)))
    bf16r(vT + 1, vT + 1)
    a("    v_mov_b32 %s, %s" % (v(vT), s(sVar)))
    bf16r(vT, vT)
    a("    v_add_f32 %s, 0x3727c5ac, %s" % (v(vT), v(vT)))
    bf16r(vT, vT)
    a("    v_sqrt_f32 %s, %s" % (v(vT), v(vT)))
    bf16r(vT, vT)
    a("    v_rcp_f32 %s, %s" % (v(vT + 2), v(vT)))
    vA = V(8, 4)
    if LN0:
        for i in range(0, 8, 2):
            a("    v_pk_add_f32 %s, %s, %s op_sel:[0,1] op_sel_hi:[1,1] neg_lo:[0,1] neg_hi:[0,1]" % (v(vXu + i, 2), v(vXu + i, 2), v(vT, 2)))
        for i in range(4):
            a("    v_cvt_pk_bf16_f32 %s, %s, %s" % (v(vXf + i), v(vXu + 2 * i), v(vXu + 2 * i + 1)))
        for i in range(4):
            a("    v_lshlrev_b32 %s, 16, %s" % (v(vXu + 2 * i), v(vXf + i)))
            a("    v_and_b32 %s, 0xffff0000, %s" % (v(vXu + 2 * i + 1), v(vXf + i)))
        for i in range(0, 8, 2):
            a("    v_pk_mul_f32 %s, %s, %s op_sel_hi:[1,0]" % (v(vXk + i, 2), v(vXu + i, 2), v(vT + 2, 2)))
        for i in range(0, 8, 2):
            a("    v_pk_fma_f32 %s, %s, %s, %s op_sel_hi:[1,0,1] neg_lo:[1,0,0] neg_hi:[1,0,0]" %
              (v(vXu + i, 2), v(vXk + i, 2), v(vT, 2), v(vXu + i, 2)))
        for i in range(0, 8, 2):
            a("    v_pk_fma_f32 %s, %s, %s, %s op_sel_hi:[1,0,1]" % (v(vXk + i, 2), v(vXu + i, 2), v(vT + 2, 2), v(vXk + i, 2)))
        for i in range(4):
            a("    v_cvt_pk_bf16_f32 %s, %s, %s" % (v(vXf + i), v(vXk + 2 * i), v(vXk + 2 * i + 1)))
        a("    v_add_u32 %s, 0x%x, %s" % (v(vT), LH, v(vXo)))
        a("    ds_write_b128 %s, %s" % (v(vT), v(vXf, 4)))
        a("    s_waitcnt lgkmcnt(0)")
        a("    s_load_dword %s, %s, 0x%x" % (s(sE), s(sWS, 2), EPOCH))
        a("L_NOLN:")
        a("    s_barrier")
        a("    ds_read_b32 %s, %s" % (v(vXs), v(vXSo)))
        a("    s_mov_b32 %s, 0x01000100" % s(sT0))
        a("    s_mov_b32 %s, 0x03020302" % s(sT1))

        def xoperand():
            a("    s_waitcnt lgkmcnt(0)")
            for i in range(2):
                a("    v_perm_b32 %s, %s, %s, %s" % (v(vT + 5 + i), v(vXs), v(vXs), s(sT0 + i)))
            for i in range(2):
                for r in range(4):
                    a("    v_and_b32 %s, %s, %s" % (v(vA + 4 * i + r), v(vT + 5 + i), v(vM + r)))
        if LN0 == 1:
            xoperand()
    else:
        a("    v_lshlrev_b32 %s, 16, %s" % (v(vT + 3), v(vXs)))
        a("    v_and_b32 %s, 0xffff0000, %s" % (v(vT + 4), v(vXs)))
        a("    v_sub_f32 %s, %s, %s" % (v(vT + 3), v(vT + 3), v(vT + 1)))
        a("    v_sub_f32 %s, %s, %s" % (v(vT + 4), v(vT + 4), v(vT + 1)))
        bf16r(vT + 3, vT + 3)
        bf16r(vT + 4, vT + 4)
        for i in range(2):
            y, q = vT + 3 + i, vT + 5 + i
            a("    v_mul_f32 %s, %s, %s" % (v(q), v(y), v(vT + 2)))
            a("    v_fma_f32 %s, -%s, %s, %s" % (v(y), v(q), v(vT), v(y)))
            a("    v_fmac_f32 %s, %s, %s" % (v(q), v(y), v(vT + 2)))
            a("    v_cvt_pk_bf16_f32 %s, %s, %s" % (v(q), v(q), v(q)))
            for r in range(4):
                a("    v_and_b32 %s, %s, %s" % (v(vA + 4 * i + r), v(q), v(vM + r)))
    a("    v_lshlrev_b32 %s, 4, %s" % (v(vQo), v(vJ)))
    a("    v_mul_u32_u24 %s, %d, %s" % (v(vT + 7), ST1, v(vG)))
    a("    v_add_u32 %s, %s, %s" % (v(vQo), v(vT + 7), v(vQo)))

    def tags():
        a("    s_add_u32 %s, %s, 1" % (s(sT32), s(sE)))
        a("    s_and_b32 %s, %s, 0xff" % (s(sTag8), s(sT32)))
        a("    s_and_b32 %s, %s, 0x3ff" % (s(sTag10), s(sT32)))
        a("    v_mov_b32 %s, %s" % (v(vTag8), s(sTag8)))
        a("    v_mov_b32 %s, %s" % (v(vTag10), s(sTag10)))
    if not E0:
        a("    s_waitcnt lgkmcnt(0)")
        tags()
    a.c("q partial: one-hot A operand turns the row-major weight registers into a GEMV")
    waitfor("wq0")
    for i in range(WIN0, WIN + 1):
        sload(i)
    if LN0 == 2:
        xoperand()
    waitfor("clr" if OCLR else "wq1")
    sload(WIN + 1)
    if LN0 == 3:
        xoperand()
    stamp(2)
    a("    v_mfma_f32_16x16x32_bf16 %s, %s, %s, 0" % (v(vD, 4), v(vA, 4), v(vW, 4)))
    a("    v_mfma_f32_16x16x32_bf16 %s, %s, %s, %s" % (v(vD, 4), v(vA + 4, 4), v(vW + 4, 4), v(vD, 4)))

    def red_publish(nrows, tagv, mask, rnd, basepair, label, mid=None):
        a("    s_waitcnt lgkmcnt(0)")
        a("    s_barrier")
        a("    s_cmp_lg_u32 %s, 0" % s(sW))
        a("    s_cbranch_scc1 %s" % label)
        m = V.mark()
        r = V(16, 4)
        n = nrows // 4
        for i in range(n):
            a("    ds_read_b128 %s, %s offset:%d" % (v(r + 4 * i, 4), v(vRedR if n == 4 else vRedR8), 272 * i))
        if mid:
            mid()
        a("    s_waitcnt lgkmcnt(%d)" % (0 if prof else n - 2))
        a("    v_pk_add_f32 %s, %s, %s" % (v(r, 2), v(r, 2), v(r + 4, 2)))
        a("    v_pk_add_f32 %s, %s, %s" % (v(r + 2, 2), v(r + 2, 2), v(r + 6, 2)))
        if n == 4:
            a("    s_waitcnt lgkmcnt(0)")
            a("    v_pk_add_f32 %s, %s, %s" % (v(r + 8, 2), v(r + 8, 2), v(r + 12, 2)))
            a("    v_pk_add_f32 %s, %s, %s" % (v(r + 10, 2), v(r + 10, 2), v(r + 14, 2)))
            a("    v_pk_add_f32 %s, %s, %s" % (v(r, 2), v(r, 2), v(r + 8, 2)))
            a("    v_pk_add_f32 %s, %s, %s" % (v(r + 2, 2), v(r + 2, 2), v(r + 10, 2)))
        for sh in (4, 8):
            for i in range(4):
                a("    v_add_f32_dpp %s, %s, %s row_ror:%d %s" % (v(r + i), v(r + i), v(r + i), sh, DPP))
        for i in range(4):
            if rnd:
                a("    v_add_u32 %s, 0x%x, %s" % (v(r + i), rnd, v(r + i)))
        setexec(0x000F000F, 0x000F000F)
        for i in range(4):
            a("    v_and_or_b32 %s, %s, %s, %s" % (v(r + i), v(r + i), s(mask), v(tagv)))
        a("    global_store_dwordx4 %s, %s, %s%s" % (v(vC4), v(r, 4), s(basepair, 2), "" if (nrows == 16 and opt.get("xs", 0) & 4) else " sc1"))
        setexec(0xFFFFFFFF, 0xFFFFFFFF)
        V.release(m)

    a("    s_mul_i32 %s, %s, %d" % (s(sT0), s(sH), 4 * ST1))
    a("    s_add_u32 %s, %s, 0x%x" % (s(sT0), s(sT0), S1))
    a("    s_lshr_b32 %s, %s, 3" % (s(sT1), s(sJ)))
    a("    s_mul_i32 %s, %s, %d" % (s(sT1), s(sT1), ST1 - 2048))
    a("    s_add_u32 %s, %s, %s" % (s(sT2), s(sT1), s(sT0)))
    a("    s_lshl_b32 %s, %s, 8" % (s(sT1), s(sJ)))
    a("    s_add_u32 %s, %s, %s" % (s(sT1), s(sT1), s(sT2)))
    base(sB0, sWS, s(sT1))
    a("    s_lshl_b32 %s, %s, 8" % (s(sT1), s(sW)))
    a("    s_add_u32 %s, %s, %s" % (s(sT1), s(sT1), s(sT0)))
    base(sB1, sWS, s(sT1))
    V.release(mk)
    if E0:
        a("    s_cmp_lg_u32 %s, 0" % s(sW))
        a("    s_cbranch_scc1 L_NOE2")
        a("    s_waitcnt lgkmcnt(0)")
        tags()
        a("    v_mov_b32 %s, 0x%x" % (v(vT), LEP))
        a("    v_mov_b32 %s, %s" % (v(vT + 1), s(sE)))
        a("    ds_write_b32 %s, %s" % (v(vT), v(vT + 1)))
        if opt.get("la", 0):
            a("    v_mov_b32 %s, 0" % v(vT + 4))
            a("    v_mov_b32 %s, 0" % v(vT + 5))
            a("    v_lshlrev_b32 %s, 3, v0" % v(vT + 6))
            a("    v_add_u32 %s, 0x%x, %s" % (v(vT + 6), LGP, v(vT + 6)))
            a("    ds_write_b64 %s, %s" % (v(vT + 6), v(vT + 4, 2)))
        if opt.get("pg", 0):
            a("    v_mov_b32 %s, 0" % v(vT + 4))
            a("    ds_write_b32 %s, %s offset:%d" % (v(vT), v(vT + 4), LRM - LEP))
        a("    v_lshlrev_b32 %s, 2, v0" % v(vT + 2))
        a("    v_mov_b32 %s, 0xff800000" % v(vT + 3))
        a("    v_and_b32 %s, 0x7c, %s" % (v(vT + 2), v(vT + 2)))
        a("    v_add_u32 %s, 0x%x, %s" % (v(vT + 2), LMX, v(vT + 2)))
        a("    ds_write_b32 %s, %s" % (v(vT + 2), v(vT + 3)))
        a("L_NOE2:")
    setexec(0x00FF00FF, 0xFF00FF00)
    a("    ds_write_b128 %s, %s" % (v(vRedW), v(vD, 4)))
    setexec(0xFFFFFFFF, 0xFFFFFFFF)
    vQ = V(4, 4)
    vQ2 = V(4, 4)
    QP1 = opt.get("qp1", 0)
    K3F = opt.get("k3f", 0)

    def k3first():
        waitfor("K0")
        sload(5)
    a.c("cross-wave sum, wave 0 publishes 64 tagged q partials; K / V keep streaming, three pieces in flight per wave")
    keep0 = list(vm)
    red_publish(16, vTag8, sM8, 0x80, sB0, "L_QPUB", mid=k3first if K3F else None)

    def qload():
        a("    global_load_dwordx4 %s, %s, %s sc1" % (v(vQ, 4), v(vQo), s(sB1, 2)))

    extra = {}
    CW = opt.get("cw", 0)
    C3 = opt.get("c3", 0)

    def run_sched(text):
        for tok in text.split():
            if tok[0] == "|":
                waitfor(tok[1:])
            elif tok == "q":
                qload()
                vm.append("q")
            elif tok in stream:
                sload(stream.index(tok))
            else:
                extra[tok]()
                if len(tok) > 1:
                    vm.append(tok)

    def paced(gete=False):
        stamp(3)
        assert WIN == 3
        if "K3" not in vm:
            run_sched(["|K0 K3", "|K0 K3 V0", "K3 |K0 V0", "|K1 K3", "|K0 K3"][CW])
        if gete:
            a("    s_waitcnt lgkmcnt(0)")
            a("    v_readfirstlane_b32 %s, %s" % (s(sE), v(vT + 7)))
            a("    s_nop 0")
            tags()
        attn_addresses()
        run_sched(["|K1 V0", "|K1 V1", "|K1 V1", "|K2 V0", "|K2 V0"][CW])
        if C3:
            run_sched("|K2 V1")
    keep = keep0
    vm.append("qstore")
    DQ = opt.get("dq", 0)
    sQF = 88
    if DQ:
        a("    s_and_b32 %s, %s, 7" % (s(sT0), s(sJ)))
        a("    s_lshl3_add_u32 %s, %s, %s" % (s(sT0), s(sH), s(sT0)))
        a("    s_lshl_b32 %s, %s, 5" % (s(sT0), s(sT0)))
        a("    s_lshr_b32 %s, %s, 3" % (s(sT1), s(sJ)))
        a("    s_add_u32 %s, %s, %s" % (s(sT0), s(sT0), s(sT1)))
        a("    s_lshl_b32 %s, %s, 2" % (s(sT0), s(sT0)))
        a("    s_add_u32 %s, %s, 0x%x" % (s(sT0), s(sT0), SQF))
        setexec(1, 0)
        a("    v_mov_b32 %s, %s" % (v(vT), s(sT0)))
        a("    v_mov_b32 %s, %s" % (v(vT + 1), s(sT32)))
        a("    global_store_dword %s, %s, %s sc1" % (v(vT), v(vT + 1), s(sWS, 2)))
        setexec(0xFFFFFFFF, 0xFFFFFFFF)
        vm.append("qflag")
    paced()
    a("    s_branch L_PACED")
    a("L_QPUB:")
    vm[:] = keep
    if E0:
        a("    v_mov_b32 %s, 0x%x" % (v(vT + 7), LEP))
        a("    ds_read_b32 %s, %s" % (v(vT + 7), v(vT + 7)))
    paced(E0)
    a("L_PACED:")
    if DQ:
        a("    s_lshl3_add_u32 %s, %s, %s" % (s(sT0), s(sH), s(sW)))
        a("    s_lshl_b32 %s, %s, 7" % (s(sT0), s(sT0)))
        a("    s_add_u32 %s, %s, 0x%x" % (s(sT0), s(sT0), SQF))
        a("    s_load_dwordx4 %s, %s, %s glc" % (s(sQF, 4), s(sWS, 2), s(sT0)))
        a("    s_mov_b32 %s, %s" % (s(sRep), s(sT32)))
        a("    s_mov_b32 %s, %s" % (s(sRep + 1), s(sT32)))
    common = list(vm)
    SCHED = {
        "s": ["|K2 V1 |K3 V2 q |V0 V3"],
        "w": ["|K2 V1 |K3 V2 q |V0 V3 A |V1 T0 B",
              "|K2 V1 |K3 V2 q |V0 V3 A T0 |V1 T1 B",
              "|K2 V1 |K3 V2 q V3 A |V0 T0 |V1 T1 B",
              "|K2 V1 |K3 V2 q V3 A |V0 T0 |V1 T1 T2 B",
              "|K2 V1 |K3 V2 q |V0 V3 A B",
              "|K2 V1 V2 |K3 V3 q A |V0 T0 |V1 T1 B |V2 T2",
              "|K2 V1 |K3 V2 q |V0 V3 A T0 |V1 T1",
              "|K2 V1 |K3 V2 q |V0 V3 A |V1 T0"],
        "f": ["|K2 V1 |K3 V2 q |V0 V3 A",
              "|K2 V1 |K3 V2 q |V0 V3 A |V1 D0 D1",
              "|K2 V1 |K3 V2 q |V0 V3 A D0 |V1 D1",
              "|K2 V1 |K3 V2 q |V0 V3 A |V1 D0",
              "|K2 V1 |K3 V2 q |V0 V3 A |V1 Qa"],
    }
    if C3:
        SCHED = {k_: [x_.replace("|K2 V1 ", "", 1) for x_ in v_] for k_, v_ in SCHED.items()}
    if opt.get("pt", 0):
        def pretouch():
            setexec(0xFFFF, 0)
            a("    global_load_dwordx4 %s, %s, %s%s" % (v(vQ2, 4), v(vAo), s(sBo, 2), ["", "", " nt"][opt["pt"]]))
            setexec(0xFFFFFFFF, 0xFFFFFFFF)
        extra["PT"] = pretouch
        SCHED = {k_: [x_.replace("|V0 V3", "|V0 V3 PT") for x_ in v_] for k_, v_ in SCHED.items()}
    QV = opt.get("qv", 0)
    if QV:
        old_, new_ = "|K2 V1 |K3 V2 q |V0 V3", ["", "|K2 V1 |K3 q V2 |V0 V3", "|K2 V1 |K3 V2 |V0 q V3", "|K2 V1 |K3 V2 |V0 V3 q",
                                                 "|K2 V1 |K3 q V2 V3", "|K3 q V1 V2 V3", "|K2 V1 |K3 q V2 V3 |V0"][QV]
        SCHED = {k_: [x_.replace(old_, new_) for x_ in v_] for k_, v_ in SCHED.items()}
    if CW >= 3:
        hd = ["|K3 q V1 V2 |V0 V3", "|K3 V1 q V2 |V0 V3", "|K3 V1 q |V0 V2 V3", "|K3 V1 V2 q |V0 V3"][opt.get("cv", 0)]
        SCHED = {k_: [x_.replace("|K2 V1 |K3 V2 q |V0 V3", hd) for x_ in v_] for k_, v_ in SCHED.items()}
    elif CW:
        SCHED = {
            "s": ["|K2 V2 |K3 V3 q"],
            "w": ["|K2 V2 |K3 V3 q A |V0 T0 |V1 T1 B |V2 T2",
                  "|K2 V2 |K3 V3 q A |V0 T0 |V1 T1 B |V2 T2 |V3 T3",
                  "|K2 V2 |K3 V3 q A |V1 T0 B |V2 T1",
                  "|K2 V2 |K3 V3 A |V0 q T0 |V1 T1 B |V2 T2"],
            "f": ["|K2 V2 |K3 V3 q A", "|K2 V2 |K3 V3 q A |V0 D0 |V1 D1", "|K2 V2 |K3 V3 A |V0 q D0 |V1 D1"],
        }
        if opt.get("ss"):
            SCHED["s"] = ["|K2 V2 |K3 V3 |V0 q"]
    a("    s_cmp_lt_u32 %s, 16" % s(sJ))
    a("    s_cbranch_scc1 L_ROLE_WO")
    a("    s_cmp_lt_u32 %s, 4" % s(sH))
    a("    s_cbranch_scc1 L_ROLE_FFN")
    a("    s_cmp_lt_u32 %s, 28" % s(sJ))
    a("    s_cbranch_scc1 L_ROLE_FFN")

    def attention(sched, t0=(), t1=(), w0extra=None):
        m0 = V.mark()
        vKa = V(16, 4)
        vQb = V(16, 4)
        vPb = vQb
        vVa = vKa
        vS = V(4, 4)
        vMx, vMl = V(), V(4, 4)
        def kreads():
            for i in range(4):
                a("    ds_read_b128 %s, %s" % (v(vKa + 4 * i, 4), v(vAk + i)))

        vm[:] = common
        if DQ:
            uid[0] += 1
            ud = uid[0]
            head = "|K2 V1 "
            assert sched.startswith(head + "|K3 V2 q |V0 V3")
            run_sched(head)
            if DQ == 2:
                a("    s_getreg_b32 %s, hwreg(HW_REG_IB_STS, 8, 4)" % s(sT0))
                a("    s_cmp_lg_u32 %s, 0" % s(sT0))
                a("    s_cbranch_scc1 L_QLATE%d" % ud)
            a("    s_waitcnt lgkmcnt(0)")
            a("    s_xor_b64 %s, %s, %s" % (s(sQF, 2), s(sQF, 2), s(sRep, 2)))
            a("    s_xor_b64 %s, %s, %s" % (s(sQF + 2, 2), s(sQF + 2, 2), s(sRep, 2)))
            a("    s_or_b64 %s, %s, %s" % (s(sQF, 2), s(sQF, 2), s(sQF + 2, 2)))
            a("    s_cbranch_scc1 L_QLATE%d" % ud)
            mid = list(vm)
            rest_ = sched[len(head + "|K3 V2 q |V0 V3"):]
            run_sched("q |K3 V2 |V0 V3 " + " ".join(t for t in rest_.split() if t[0] != "|"))
            kreads()
            waitfor("q")
            early = [t for t in vm if t != "q"]
            a("    s_branch L_QJOIN%d" % ud)
            a("L_QLATE%d:" % ud)
            vm[:] = mid
            run_sched(sched[len(head):])
            kreads()
            waitfor("q")
            assert early == [t for t in vm if t != "q"]
            a("L_QJOIN%d:" % ud)
            NVA = 63
        else:
            run_sched(sched)
            kreads()
            NVA = len(vm) - 1 - vm.index("q")
        ntail = len(vm) - 1 - vm.index("V3") + len(t0)
        tp = ()
        def qcheck():
            for k in range(4):
                a("    v_xor_b32 %s, %s, %s" % (v(vQ + k), s(sTag8), v(vQ + k)))
            a("    v_or3_b32 %s, %s, %s, %s" % (v(vT), v(vQ), v(vQ + 1), v(vQ + 2)))
            a("    v_or_b32 %s, %s, %s" % (v(vT), v(vT), v(vQ + 3)))
            a("    v_and_b32 %s, 0xff, %s" % (v(vT), v(vT)))
            a("    v_cmp_ne_u32 vcc, 0, %s" % v(vT))
        RDY = opt.get("rdy", 0)

        def rdyhint():
            uid[0] += 1
            a("    s_cmp_lg_u32 %s, 7" % s(sW))
            a("    s_cbranch_scc1 L_NORDY%d" % uid[0])
            setexec(1, 0)
            a("    v_mov_b32 %s, 0x%x" % (v(vG0), SRDY - S2ML))
            a("    v_mov_b32 %s, %s" % (v(vMx), s(sT32)))
            a("    global_store_dword %s, %s, %s sc1" % (v(vG0), v(vMx), s(sBml, 2)))
            setexec(0xFFFFFFFF, 0xFFFFFFFF)
            a("L_NORDY%d:" % uid[0])
        a.c("q: sum of the four row partials -> bf16 -> LDS; scores, chunk max, exp, P V")
        MB = opt.get("mb", 1)
        AMX = opt.get("amx", 1)
        if QP1:
            uid[0] += 1
            uq = uid[0]
            a("    s_waitcnt vmcnt(%d)" % (len(vm) - 1 - vm.index("q1") + len(tp)))
            qcheck()
            a("    s_cbranch_vccz L_QOK%d" % uq)
            a("    s_waitcnt vmcnt(%d)" % (NVA + len(tp)))
            for i in range(0, 4, 2):
                a("    v_mov_b64 %s, %s" % (v(vQ + i, 2), v(vQ2 + i, 2)))
            poll(qload, qcheck, NVA + len(tp), cnt=15 if opt.get("astamps") else None)
            a("L_QOK%d:" % uq)
        else:
            poll(qload, qcheck, NVA + len(tp), cnt=15 if opt.get("astamps") else None)
        stamp(4)
        treduce4(vQ)
        a("    v_cvt_pk_bf16_f32 %s, %s, %s" % (v(vQ), v(vQ), v(vQ)))
        a("    ds_write_b16 %s, %s" % (v(vAqw), v(vQ)))
        a("    s_waitcnt lgkmcnt(0)")
        a("    s_barrier")
        for i in range(4):
            a("    ds_read_b128 %s, %s offset:%d" % (v(vQb + 4 * i, 4), v(vAq), 64 * i))
        T0P = opt.get("t0p", 1)
        if T0P == 0:
            for f in t0:
                f()
        for i in range(4):
            a("    s_waitcnt lgkmcnt(%d)" % (0 if prof else 3 - i))
            a("    v_mfma_f32_16x16x32_bf16 %s, %s, %s, %s" %
              (v(vD, 4), v(vKa + 4 * i, 4), v(vQb + 4 * i, 4), "0" if i == 0 else v(vD, 4)))
        if T0P == 1:
            for f in t0:
                f()
        a("    v_cvt_pk_bf16_f32 %s, %s, %s" % (v(vT), v(vD), v(vD + 1)))
        a("    v_cvt_pk_bf16_f32 %s, %s, %s" % (v(vT + 1), v(vD + 2), v(vD + 3)))
        for rnd in range(2):
            for i in range(2):
                a("    v_lshlrev_b32 %s, 16, %s" % (v(vS + 2 * i), v(vT + i)))
                a("    v_and_b32 %s, 0xffff0000, %s" % (v(vS + 2 * i + 1), v(vT + i)))
            if rnd == 0:
                for i in (0, 2):
                    a("    v_pk_mul_f32 %s, %s, %s op_sel_hi:[1,0]" % (v(vS + i, 2), v(vS + i, 2), s(sScale, 2)))
                a("    v_cvt_pk_bf16_f32 %s, %s, %s" % (v(vT), v(vS), v(vS + 1)))
                a("    v_cvt_pk_bf16_f32 %s, %s, %s" % (v(vT + 1), v(vS + 2), v(vS + 3)))
        a("    v_max3_f32 %s, %s, %s, %s" % (v(vMx), v(vS), v(vS + 1), v(vS + 2)))
        a("    v_max_f32 %s, %s, %s" % (v(vMx), v(vMx), v(vS + 3)))
        if AMX:
            setexec(0x000F000F, 0x000F000F)
            a("    ds_max_f32 %s, %s" % (v(vAmr), v(vMx)))
        else:
            for sw in ("16", "32"):
                a("    v_mov_b32 %s, %s" % (v(vT), v(vMx)))
                a("    v_permlane%s_swap_b32 %s, %s" % (sw, v(vMx), v(vT)))
                a("    v_max_f32 %s, %s, %s" % (v(vMx), v(vMx), v(vT)))
            setexec(0xF, 0)
            a("    ds_write_b32 %s, %s" % (v(vAmw), v(vMx)))
        setexec(0xFFFFFFFF, 0xFFFFFFFF)
        if T0P == 2:
            for f in t0:
                f()
        VB3 = opt.get("vb3", 0)

        def vreads(t):
            for hh in range(2):
                a("    ds_read_b64_tr_b16 %s, %s offset:%d" % (v(vVa + 4 * t + 2 * hh, 2), v(vAv), 8192 * t + 4096 * hh))
        if VB3:
            assert MB
            a("    s_waitcnt vmcnt(%d) lgkmcnt(0)" % ntail)
            for f in t1:
                f()
        else:
            a("    s_waitcnt lgkmcnt(0)")
        if RDY == 1:
            rdyhint()
        a("    s_barrier")
        if AMX:
            a("    ds_read_b32 %s, %s" % (v(vMl), v(vAmr)))
            if RDY == 2:
                rdyhint()
            if VB3:
                for t in range(4):
                    vreads(t)
            a("    s_waitcnt lgkmcnt(%d)" % (8 if VB3 and not prof else 0))
        else:
            a("    ds_read_b128 %s, %s" % (v(vT, 4), v(vAmr)))
            a("    ds_read_b128 %s, %s offset:16" % (v(vT + 4, 4), v(vAmr)))
            if VB3:
                for t in range(4):
                    vreads(t)
            a("    s_waitcnt lgkmcnt(%d)" % (8 if VB3 and not prof else 0))
            a("    v_max3_f32 %s, %s, %s, %s" % (v(vT), v(vT), v(vT + 1), v(vT + 2)))
            a("    v_max3_f32 %s, %s, %s, %s" % (v(vT + 4), v(vT + 4), v(vT + 5), v(vT + 6)))
            a("    v_max3_f32 %s, %s, %s, %s" % (v(vT), v(vT), v(vT + 3), v(vT + 7)))
            a("    v_max_f32 %s, %s, %s" % (v(vMl), v(vT), v(vT + 4)))
        for i in (0, 2):
            a("    v_pk_add_f32 %s, %s, %s op_sel_hi:[1,0] neg_lo:[0,1] neg_hi:[0,1]" % (v(vS + i, 2), v(vS + i, 2), v(vMl, 2)))
        for i in (0, 2):
            a("    v_pk_mul_f32 %s, %s, %s op_sel:[0,1] op_sel_hi:[1,1]" % (v(vS + i, 2), v(vS + i, 2), s(sScale, 2)))
        for i in range(4):
            a("    v_exp_f32 %s, %s" % (v(vS + i), v(vS + i)))
        a("    v_cvt_pk_bf16_f32 %s, %s, %s" % (v(vT + 2), v(vS), v(vS + 1)))
        a("    v_cvt_pk_bf16_f32 %s, %s, %s" % (v(vT + 3), v(vS + 2), v(vS + 3)))
        setexec(0x000F000F, 0x000F000F)
        a("    ds_write_b64 %s, %s" % (v(vApw), v(vT + 2, 2)))
        a("    v_pk_add_f32 %s, %s, %s" % (v(vT, 2), v(vS, 2), v(vS + 2, 2)))
        a("    v_add_f32 %s, %s, %s" % (v(vT), v(vT), v(vT + 1)))
        a("    ds_write_b32 %s, %s" % (v(vAlw), v(vT)))
        setexec(0xFFFFFFFF, 0xFFFFFFFF)
        if MB and not VB3:
            a("    s_waitcnt vmcnt(%d) lgkmcnt(0)" % ntail)
            for f in t1:
                f()
        else:
            a("    s_waitcnt lgkmcnt(0)")
        a("    s_barrier")
        if opt.get("astamps"):
            stamp(13)
        if RDY == 3:
            rdyhint()
        uid[0] += 1
        u = uid[0]

        def preads():
            for i in range(4):
                a("    ds_read_b128 %s, %s offset:%d" % (v(vPb + 4 * i, 4), v(vApr), 64 * i))

        def mlpub():
            a("    v_add_f32 %s, %s, %s" % (v(vMl + 1), v(vT), v(vT + 1)))
            allred_hi(vMl + 1, vT, "add")
            setexec(0xF, 0)
            a("    global_store_dwordx4 %s, %s, %s%s" % (v(vAo), v(vMl, 4), s(sBml, 2), XS))
            setexec(0xFFFFFFFF, 0xFFFFFFFF)

        SB2 = opt.get("sb2", 0)

        def sflag(t=vT):
            setexec((1 << R2) - 1, 0)
            a("    v_lshlrev_b32 %s, %d, v0" % (v(t), RS2))
            a("    global_store_byte %s, %s, %s%s" % (v(t), v(vTag8), s(sBfl, 2), "" if opt.get("xs", 0) & 2 else " sc1"))
            setexec(0xFFFFFFFF, 0xFFFFFFFF)

        def pv(first):
            for t in range(4):
                a("    s_waitcnt lgkmcnt(%d)" % (0 if prof else first[t]))
                a("    v_mfma_f32_16x16x32_bf16 %s, %s, %s, %s" %
                  (v(vD, 4), v(vPb + 4 * t, 4), v(vVa + 4 * t, 4), "0" if t == 0 else v(vD, 4)))
        if MB:
            a("    ds_read_b64 %s, %s" % (v(vT, 2), v(vAlr)))
            for t in range(4):
                a("    ds_read_b128 %s, %s offset:%d" % (v(vPb + 4 * t, 4), v(vApr), 64 * t))
                if not VB3:
                    vreads(t)
            a("    v_mov_b32 %s, %s" % (v(vMl + 2), s(sT32)))
            a("    v_mov_b32 %s, %s" % (v(vMl + 3), s(sT32)))
            a("    s_cmp_lg_u32 %s, 0" % s(sW))
            a("    s_cbranch_scc1 L_NOML%d" % u)
            if SB2 in (1, 3):
                sflag(vT + 2)
            a("    s_waitcnt lgkmcnt(%d)" % (0 if prof else (4 if VB3 else 12)))
            mlpub()
            if SB2 in (2, 4):
                sflag(vT + 2)
            a("L_NOML%d:" % u)
            pv([3, 2, 1, 0] if VB3 else [9, 6, 3, 0])
        else:
            preads()
            a("    s_cmp_lg_u32 %s, 0" % s(sW))
            a("    s_cbranch_scc1 L_NOML%d" % u)
            a("    ds_read_b64 %s, %s" % (v(vT, 2), v(vAlr)))
            if SB2 == 3:
                sflag(vT + 2)
            if SB2 == 4:
                a("    s_waitcnt vmcnt(%d)" % ntail)
                sflag(vT + 2)
            a("    v_mov_b32 %s, %s" % (v(vMl + 2), s(sT32)))
            a("    v_mov_b32 %s, %s" % (v(vMl + 3), s(sT32)))
            a("    s_waitcnt lgkmcnt(0)")
            mlpub()
            nx = w0extra() if w0extra else 0
            if SB2 in (3, 4):
                nx += 1
            if SB2 == 1:
                sflag()
                nx += 1
            a("    s_waitcnt vmcnt(%d)" % (1 + nx + ntail))
            if SB2 == 2:
                sflag()
            a("    s_branch L_MLD%d" % u)
            a("L_NOML%d:" % u)
            a("    s_waitcnt vmcnt(%d)" % ntail)
            a("L_MLD%d:" % u)
            if opt.get("astamps"):
                stamp(14)
            for f in t1:
                f()
            a("    s_barrier")
            stamp(5)
            for t in range(4):
                vreads(t)
            pv([6, 4, 2, 0])
        setexec(0xFFFF, 0)
        if OCLR:
            a("    v_min_u32 %s, -2, %s" % (v(vD), v(vD)))
        else:
            for i in range(4):
                a("    v_and_or_b32 %s, %s, %s, %s" % (v(vD + i), v(vD + i), s(sM10), v(vTag10)))
        a("    global_store_dwordx4 %s, %s, %s%s" % (v(vAo), v(vD, 4), s(sBo, 2), XS))
        setexec(0xFFFFFFFF, 0xFFFFFFFF)
        stamp(6)
        if opt.get("ackstamp") and not w0extra:
            a("    s_waitcnt vmcnt(0)")
            stamp(1)
        V.release(m0)

    attention(SCHED["s"][0])
    finish()

    a("L_ROLE_WO:")
    mrole = V.mark()
    sD0 = sU
    vWo = V(4)

    def wo_setup():
        if opt.get("dh", 0):
            a("    s_%s_b32 %s, %s, %d" % ("xor", s(sH), s(sH), opt["dh"]))
        a("    s_lshr_b32 %s, %s, 3" % (s(sT1), s(sJ)))
        a("    s_lshl_b32 %s, %s, 3" % (s(sT1), s(sT1)))
        a("    s_add_u32 %s, %s, %s" % (s(sT1), s(sT1), s(sW)))
        a("    s_lshl_b32 %s, %s, 3" % (s(sD0), s(sT1)))
        a("    s_lshl_b32 %s, %s, 9" % (s(sT0), s(sH)))
        a("    s_add_u32 %s, %s, %s" % (s(sT0), s(sT0), s(sD0)))
        a("    s_lshl_b32 %s, %s, 10" % (s(sT0), s(sT0)))
        a("    s_and_b32 %s, %s, 7" % (s(sT1), s(sJ)))
        a("    s_lshl_b32 %s, %s, 7" % (s(sT1), s(sT1)))
        a("    s_add_u32 %s, %s, %s" % (s(sT0), s(sT0), s(sT1)))
        base(sB4, sWO, s(sT0))
        a("    v_lshlrev_b32 %s, 4, %s" % (v(vWo), v(vL7)))
        a("    v_lshl_or_b32 %s, %s, 10, %s" % (v(vWo), v(vL3), v(vWo)))
        for i in (1, 2, 3):
            a("    v_add_u32 %s, 0x%x, %s" % (v(vWo + i), i * (131072 - 1024), v(vWo)))
        a("    s_lshl_b32 %s, %s, 12" % (s(sFI), s(sW)))
        a("    s_add_u32 %s, %s, 0x%x" % (s(sFI), s(sFI), LG))

    def woload(i):
        def f():
            if i == 0:
                a("    s_mov_b32 m0, %s" % s(sFI))
            a("    global_load_lds_dwordx4 %s, %s offset:%d nt" % (v(vWo + i), s(sB4, 2), 1024 * i))
        return f
    vOo = V(4)
    vAtr, vAw, vArw = [V() for _ in range(3)]
    vO = V(16, 4)
    vWt = V(16, 4)
    vML = V(8, 4)
    vDt = V(16, 4)

    def wo_addresses():
        a("    s_lshl_b32 %s, %s, 11" % (s(sT1), s(sH)))
        a("    s_add_u32 %s, %s, 0x%x" % (s(sT1), s(sT1), S2ML))
        base(sB0, sWS, s(sT1))
        a("    s_mul_i32 %s, %s, %d" % (s(sT1), s(sH), 32 * ST2))
        a("    s_lshl_b32 %s, %s, 4" % (s(sT0), s(sD0)))
        a("    s_add_u32 %s, %s, %s" % (s(sT1), s(sT1), s(sT0)))
        a("    s_add_u32 %s, %s, 0x%x" % (s(sT1), s(sT1), S2O))
        base(sB5, sWS, s(sT1))
        a("    v_lshlrev_b32 %s, 4, %s" % (v(vT), v(vL7)))
        a("    v_mul_u32_u24 %s, %d, %s" % (v(vOo), ST2, v(vL3)))
        a("    v_add_u32 %s, %s, %s" % (v(vOo), v(vOo), v(vT)))
        for i in (1, 2, 3):
            a("    v_add_u32 %s, 0x%x, %s" % (v(vOo + i), 8 * ST2 * i, v(vOo)))
        a("    s_lshr_b32 %s, %s, 3" % (s(sT1), s(sJ)))
        a("    s_lshl1_add_u32 %s, %s, %s" % (s(sT0), s(sH), s(sT1)))
        a("    s_mul_i32 %s, %s, %d" % (s(sT0), s(sT0), ST3))
        a("    s_and_b32 %s, %s, 7" % (s(sT1), s(sJ)))
        a("    s_lshl_b32 %s, %s, 8" % (s(sT1), s(sT1)))
        a("    s_add_u32 %s, %s, %s" % (s(sT0), s(sT0), s(sT1)))
        a("    s_add_u32 %s, %s, 0x%x" % (s(sT0), s(sT0), S3))
        base(sB2, sWS, s(sT0))
        a("    v_lshrrev_b32 %s, 2, %s" % (v(vT), v(vJ)))
        a("    v_lshl_add_u32 %s, %s, 3, %s" % (v(vT), v(vG), v(vT)))
        a("    v_lshlrev_b32 %s, 7, %s" % (v(vT), v(vT)))
        a("    v_and_b32 %s, 3, v0" % v(vT + 1))
        a("    v_lshl_add_u32 %s, %s, 3, %s" % (v(vT), v(vT + 1), v(vT)))
        a("    v_add_u32 %s, %s, %s" % (v(vAtr), s(sFI), v(vT)))
        a("    v_lshlrev_b32 %s, 4, %s" % (v(vT), v(vL3)))
        a("    v_add_u32 %s, 0x%x, %s" % (v(vAw), LWT, v(vT)))
        a("    s_mul_i32 %s, %s, 272" % (s(sT0), s(sW)))
        a("    s_add_u32 %s, %s, 0x%x" % (s(sT0), s(sT0), LRED))
        a("    v_lshl_add_u32 %s, %s, 4, %s" % (v(vArw), v(vG), s(sT0)))
        per = 8 // P3
        a("    s_and_b32 %s, %s, %d" % (s(sT0), s(sH), per - 1))
        a("    s_lshl_b32 %s, %s, 2" % (s(sT0), s(sT0)))
        a("    s_lshr_b32 %s, %s, %d" % (s(sT1), s(sH), per.bit_length() - 1))
        a("    s_lshl_b32 %s, %s, 7" % (s(sT1), s(sT1)))
        a("    s_add_u32 %s, %s, %s" % (s(sT0), s(sT0), s(sT1)))
        a("    s_add_u32 %s, %s, 0x%x" % (s(sInb), s(sT0), SBELL))
        if opt.get("hn", 1) == 4:
            a("    s_lshr_b32 %s, %s, 2" % (s(sT0), s(sJ)))
            a("    s_add_u32 %s, %s, %s" % (s(sInb), s(sInb), s(sT0)))
    def bell():
        for i in range(2):
            a("    global_load_dwordx3 %s, %s, %s offset:%d%s" % (v(vML + 4 * i, 3), v(vAo), s(sB0, 2), 1024 * i, " nt" if opt.get("xl", 0) else " sc1"))

    def bellcheck():
        tagcheck([vML + 2, vML + 6], sT32, vT)
        a("    v_cmp_ne_u32 vcc, 0, %s" % v(vT))

    EB = opt.get("eb", 0)

    def earlybell():
        bell()
        return 2
    extra.update(A=wo_setup, B=wo_addresses, T0=woload(0), T1=woload(1), T2=woload(2), T3=woload(3))
    sw = SCHED["w"][opt.get("sw", 0)]
    rest = [i for i in range(4) if "T%d" % i not in sw.split()]
    WO2 = min(opt.get("wo2", 0), len(rest))
    late = rest[len(rest) - WO2:]
    rest = rest[:len(rest) - WO2]
    WO1 = min(opt.get("wo1", 0), len(rest))
    attention(sw, [woload(i) for i in rest[:len(rest) - WO1]], [woload(i) for i in rest[len(rest) - WO1:]],
              earlybell if EB else None)
    for i in late:
        woload(i)()
    def bellprep():
        a("    s_mul_i32 %s, %s, 0x01010101" % (s(sRep), s(sTag8)))
        a("    s_mov_b32 %s, %s" % (s(sRep + 1), s(sRep)))
        a("    s_and_b32 %s, %s, %d" % (s(sT0), s(sJ), (R2 // 2 if opt.get("dp2", 0) else R2) - 1))
        a("    s_lshl4_add_u32 %s, %s, %s" % (s(sT0), s(sH), s(sT0)))
        a("    s_lshl_b32 %s, %s, %d" % (s(sT0), s(sT0), RS2))
        a("    s_add_u32 %s, %s, 0x%x" % (s(sT0), s(sT0), SRDY))
    if opt.get("dp2", 0) == 2:
        a("    s_cmp_lg_u32 %s, 0" % s(sW))
        a("    s_cbranch_scc1 L_BP")
        bellprep()
        spoll2(s(sT0), (R2 // 2) << RS2, sRep, P2, sB1, phase=1)
        a("L_BP:")
    if "B" not in sw.split():
        wo_addresses()

    def oloads():
        for i in range(4):
            a("    global_load_dwordx4 %s, %s, %s%s" % (v(vO + 4 * i, 4), v(vOo + i), s(sB5, 2), [" sc1", " nt", "", " sc0"][opt.get("xl", 0)]))

    def wtr():
        for t in range(4):
            for hh in range(2):
                a("    ds_read_b64_tr_b16 %s, %s offset:%d" % (v(vW + 4 * t + 2 * hh, 2), v(vAtr), 512 * hh + 32 * t))
    a.c("combine the 32 chunks: wave 0 waits for the hints, turns (m, l) into weights; all waves gather o")
    a("    s_cmp_eq_u32 %s, 0" % s(sW))
    a("    s_cbranch_scc1 L_BELL1")
    S2M = opt.get("s2mode", 0)
    if opt.get("sb2", 0):
        a("    s_barrier")
        oloads()
        a("    s_waitcnt vmcnt(4)")
        wtr()
    else:
        a("    s_waitcnt vmcnt(%d)" % (1 if EB else 0))
        stamp(12)
        wtr()
        a("    s_barrier")
        oloads()
    a("    s_branch L_BELL2")
    a("L_BELL1:")
    if opt.get("rdy", 0):
        a("    v_and_b32 %s, 31, v0" % v(vT + 1))
        a("    v_lshlrev_b32 %s, 6, %s" % (v(vT + 1), v(vT + 1)))
        a("    v_add_u32 %s, 0x%x, %s" % (v(vT + 1), SRDY - S2ML, v(vT + 1)))

        def rdy():
            a("    global_load_dword %s, %s, %s sc1" % (v(vT + 2), v(vT + 1), s(sB0, 2)))

        def rdycheck():
            a("    v_cmp_ne_u32 vcc, %s, %s" % (s(sT32), v(vT + 2)))
        setexec(0xFFFFFFFF, 0)
        rdy()
        poll(rdy, rdycheck, 0, cnt=13)
        a("    s_barrier")
        bell()
        oloads()
        stamp(11)
        wtr()
        poll(bell, bellcheck, 4)
    elif opt.get("sb2", 0):
        if opt.get("dp2", 0) != 2:
            bellprep()
        stamp(12)
        if opt.get("dp2", 0):
            spoll2(s(sT0), (R2 // 2) << RS2, sRep, P2, sB1, phase=2 if opt["dp2"] == 2 else 0)
        else:
            spoll(sWS, s(sT0), sRep, P2)
        if prof:
            a("    s_mov_b32 %s, %s" % (s(sPROF + 26), s(sSpin)))
        a("    s_barrier")
        bell()
        oloads()
        stamp(11)
        if opt.get("wt", 0) == 1:
            a("    s_waitcnt vmcnt(6)")
            wtr()
            poll(bell, bellcheck, 4)
        elif opt.get("wt", 0) == 2:
            poll(bell, bellcheck, 4)
        else:
            poll(bell, bellcheck, 4, post=wtr)
    elif EB:
        assert WO1 == 0 and not opt.get("mb")
        poll(bell, bellcheck, 1, cnt=13)
        a("    s_barrier")
        oloads()
        wtr()
        stamp(11)
    else:
        bell()
        poll(bell, bellcheck, 0, cnt=13)
        a("    s_barrier")
        oloads()
        wtr()
        stamp(11)
    a("    v_max_f32 %s, %s, %s" % (v(vT + 1), v(vML), v(vML + 4)))
    allred_hi(vT + 1, vT, "max")
    for i in range(2):
        a("    v_sub_f32 %s, %s, %s" % (v(vML + 4 * i), v(vML + 4 * i), v(vT + 1)))
    for i in range(2):
        a("    v_mul_f32 %s, 0x3fb8aa3b, %s" % (v(vML + 4 * i), v(vML + 4 * i)))
    for i in range(2):
        a("    v_exp_f32 %s, %s" % (v(vML + 4 * i), v(vML + 4 * i)))
    a("    v_lshlrev_b32 %s, 2, v0" % v(vT + 2))
    a("    v_mul_f32 %s, %s, %s" % (v(vT + 1), v(vML), v(vML + 1)))
    a("    v_fmac_f32 %s, %s, %s" % (v(vT + 1), v(vML + 4), v(vML + 5)))
    allred_hi(vT + 1, vT, "add")
    a("    v_rcp_f32 %s, %s" % (v(vT + 1), v(vT + 1)))
    a("    v_add_u32 %s, 0x%x, %s" % (v(vT + 2), LWT, v(vT + 2)))
    for i in range(2):
        a("    v_mul_f32 %s, %s, %s" % (v(vML + 4 * i), v(vML + 4 * i), v(vT + 1)))
    for i in range(2):
        a("    ds_write_b32 %s, %s offset:%d" % (v(vT + 2), v(vML + 4 * i), 256 * i))
    a("    s_waitcnt lgkmcnt(0)")
    if opt.get("wt", 0) == 2:
        a("    s_barrier")
        wtr()
        a("    s_branch L_BELL3")
    a("L_BELL2:")
    WB = opt.get("wbar", 0)

    def wreads():
        a("    s_barrier")
        a("L_BELL3:")
        for i in range(4):
            a("    ds_read_b128 %s, %s offset:%d" % (v(vWt + 4 * i, 4), v(vAw), 128 * i))

    wreads()

    def oacc(i):
        for r in (0, 2):
            if i == 0:
                a("    v_pk_mul_f32 %s, %s, %s" % (v(vT + r, 2), v(vO + r, 2), v(vWt + r, 2)))
            else:
                a("    v_pk_fma_f32 %s, %s, %s, %s" % (v(vT + r, 2), v(vO + 4 * i + r, 2), v(vWt + 4 * i + r, 2), v(vT + r, 2)))

    HN = opt.get("hn", 1)

    def s3hint():
        if HN == 1:
            a("    s_or_b32 %s, %s, %s" % (s(sT0), s(sJ), s(sW)))
        else:
            a("    s_and_b32 %s, %s, 3" % (s(sT0), s(sJ)))
            a("    s_or_b32 %s, %s, %s" % (s(sT0), s(sT0), s(sW)))
        a("    s_cbranch_scc1 L_NOHINT")
        if R3 < 64:
            setexec((1 << R3) - 1, 0)
        a("    v_lshl_add_u32 %s, v0, %d, %s" % (v(vG0), RS3, s(sInb)))
        if HN == 1:
            a("    v_mov_b32 %s, %s" % (v(vQo), s(sT32)))
            a("    global_store_dword %s, %s, %s sc1" % (v(vG0), v(vQo), s(sWS, 2)))
        else:
            a("    global_store_byte %s, %s, %s sc1" % (v(vG0), v(vTag8), s(sWS, 2)))
        setexec(0xFFFFFFFF, 0xFFFFFFFF)
        a("L_NOHINT:")
    HP = opt.get("hp", 0)

    def obefore():
        if HP == 1:
            a("    s_waitcnt vmcnt(3)")
            s3hint()
        a("    s_waitcnt lgkmcnt(0)")
    gather(oloads, [vO + 4 * i for i in range(4)], sTag10, 0x3ff, oacc, cnt=14, before=obefore)
    stamp(7)
    if HP == 0:
        s3hint()
    a.c("o (bf16) times the wo piece, cross-wave sum, publish")
    treduce4(vT)
    a("    v_add_f32_dpp %s, %s, %s row_ror:8 %s" % (v(vT), v(vT), v(vT), DPP))
    rowpack(vT, vT + 4, 4)
    for t in range(4):
        a("    v_mfma_f32_16x16x32_bf16 %s, %s, %s, 0" % (v(vDt + 4 * t, 4), v(vW + 4 * t, 4), v(vT + 4, 4)))
    if HP == 2:
        s3hint()
    setexec(0x00010001, 0x00010001)
    for t in range(4):
        a("    ds_write_b128 %s, %s offset:%d" % (v(vArw), v(vDt + 4 * t, 4), 64 * t))
    setexec(0xFFFFFFFF, 0xFFFFFFFF)
    red_publish(8, vTag10, sM10, 0, sB2, "L_FIN", mid=s3hint if HP == 3 else None)
    if HP == 4:
        s3hint()
    stamp(8)
    a("L_FIN:")
    if opt.get("wb", 0):
        a("    s_lshl3_add_u32 %s, %s, %s" % (s(sT0), s(sJ), s(sW)))
        a("    s_cmp_lg_u32 %s, 1" % s(sT0))
        a("    s_cbranch_scc1 L_FIN3")
        a("    buffer_wbl2 sc1")
        a("    s_waitcnt vmcnt(0)")
        a("L_FIN3:")
    finish()
    V.release(mrole)

    a("L_ROLE_FFN:")
    vGo = V()
    vDo = V(2)

    def quarter_prep(n, pair, m0reg):
        a("    s_add_u32 %s, %s, %d" % (s(sT0), s(sU), 0 if opt.get("fdiag") == 4 else n))
        a("    s_and_b32 %s, %s, 1" % (s(sT1), s(sT0)))
        a("    s_bfe_u32 %s, %s, 0x10001" % (s(sT0), s(sT0)))
        a("    s_lshl_b32 %s, %s, 1" % (s(sT2), s(sW)))
        a("    s_add_u32 %s, %s, %s" % (s(sT2), s(sT2), s(sT1)))
        a("    s_lshl_b32 %s, %s, 4" % (s(sT3), s(sT0)))
        a("    s_add_u32 %s, %s, %s" % (s(sT3), s(sT3), s(sT2)))
        a("    s_lshl_b32 %s, %s, 10" % (s(sT3), s(sT3)))
        a("    s_add_u32 %s, %s, 0x%x" % (s(m0reg), s(sT3), LG))
        a("    s_mul_i32 %s, %s, %d" % (s(sT2), s(sT2), 32 * 3584))
        a("    s_lshl_b32 %s, %s, 5" % (s(sT1), s(sFI)))
        a("    s_add_u32 %s, %s, %s" % (s(sT2), s(sT2), s(sT1)))
        a("    s_cmp_eq_u32 %s, 0" % s(sT0))
        a("    s_cselect_b64 %s, %s, %s" % (s(pair, 2), s(sWG, 2), s(sWU, 2)))
        base(pair, pair, s(sT2))
    QB = [(sK, sPC), (sVp, sPC + 1), (sWQ, sMean), (sWO, sVar)]

    def quarter(n):
        a("    s_mov_b32 m0, %s" % s(QB[n][1]))
        a("    global_load_lds_dwordx4 %s, %s%s" % (v(vGo), s(QB[n][0], 2),
          {0: " nt", 1: "" if n == 0 else " nt", 2: "", 3: " nt" if n == 0 else "", 4: " nt" if n == 0 else " sc1"}[opt.get("qpol", 0)]))

    def ffn_setup():
        a("    s_and_b32 %s, %s, 3" % (s(sU), s(sJ)))
        a("    s_min_u32 %s, %s, 4" % (s(sT0), s(sH)))
        a("    s_mul_i32 %s, %s, 3" % (s(sT1), s(sH)))
        a("    s_add_u32 %s, %s, %s" % (s(sT0), s(sT0), s(sT1)))
        a("    s_lshl_b32 %s, %s, 2" % (s(sT0), s(sT0)))
        a("    s_add_u32 %s, %s, %s" % (s(sT0), s(sT0), s(sJ)))
        a("    s_sub_u32 %s, %s, 16" % (s(sFI), s(sT0)))
        a("    v_lshrrev_b32 %s, 1, v0" % v(vT))
        a("    v_mul_u32_u24 %s, 3584, %s" % (v(vT), v(vT)))
        a("    v_and_b32 %s, 1, v0" % v(vT + 1))
        a("    v_lshl_add_u32 %s, %s, 4, %s" % (v(vGo), v(vT + 1), v(vT)))
        for n in range(4):
            quarter_prep(n, *QB[n])
        a("    s_lshl_b32 %s, %s, 14" % (s(sT0), s(sFI)))
        a("    s_lshl_b32 %s, %s, 7" % (s(sT1), s(sW)))
        a("    s_add_u32 %s, %s, %s" % (s(sT0), s(sT0), s(sT1)))
        base(sB5, sWD, s(sT0))
        a("    s_lshl_b32 %s, %s, 11" % (s(sT1), s(sW)))
        a("    s_add_u32 %s, %s, 0x%x" % (s(sInb), s(sT1), LD))
        a("    v_lshlrev_b32 %s, 4, %s" % (v(vDo), v(vL7)))
        a("    v_lshl_or_b32 %s, %s, 10, %s" % (v(vDo), v(vL3), v(vDo)))
        a("    v_add_u32 %s, 0x1c00, %s" % (v(vDo + 1), v(vDo)))

    def dload(i):
        def f():
            a("    s_mov_b32 m0, %s" % s(sInb))
            a("    global_load_lds_dwordx4 %s, %s offset:%d nt" % (v(vDo + i), s(sB5, 2), 1024 * i))
        return f
    def qhalf(lo, hi):
        def f():
            setexec(lo, hi)
            quarter(0)
            setexec(0xFFFFFFFF, 0xFFFFFFFF)
        return f
    L = dict(D0=dload(0), D1=dload(1), Q0=lambda: quarter(0), Q1=lambda: quarter(1), Q2=lambda: quarter(2), Q3=lambda: quarter(3))
    L2 = dict(Qa=qhalf(0xFFFFFFFF, 0), Qb=qhalf(0, 0xFFFFFFFF), Qc=qhalf(0xFFFF, 0), Qd=qhalf(0xFFFF0000, 0xFFFFFFFF))
    extra.update(A=ffn_setup, **L)
    extra.update(L2)
    sf = SCHED["f"][opt.get("sf", 0)]
    FT = [("Q0", "Q1 Q2 Q3 b D0 D1"), ("Q0", "Q1 Q2 Q3"), ("", "Q0 b Q1 Q2 Q3"), ("D0 D1", "Q0 b Q1 Q2 Q3"),
          ("", "Q0 D1 b Q1 Q2 Q3"), ("", "Q0 D0 D1 b Q1 Q2 Q3"), ("D1", "Q0 b Q1 Q2 Q3"),
          ("Qa", "Qb b Q1 Q2 Q3"), ("Qc", "Qd b Q1 Q2 Q3"), ("Qa", "Qb D0 D1 b Q1 Q2 Q3"), ("Qa", "Qb b Q1 Q2 Q3 b D0 D1"),
          ("Qb", "D0 D1 b Q1 Q2 Q3"), ("Qb", "Q1 Q2 Q3 b D0 D1"),
          ("Qa", "D0 D1 b Q1 Q2 Q3", "Qb"), ("Qa", "Q1 Q2 Q3 b D0 D1", "Qb"), ("Qa", "D1 b Q1 Q2 Q3", "Qb"), ("Qa", "Q1 Q2 Q3", "Qb"),
          ("", "Qb b Q1 Q2 Q3", "Qa"), ("Qc", "Q1 Q2 Q3", "Qd"),
          ("Qb", "Q1 Q2 Q3"), ("", "Q1 Q2 Q3", "Qb"), ("Q0", "Q1 Q2 Q3"), ("Qa", "Q1 Q2 Q3", "Qb"), ("Qa", "Qb b Q1 Q2 Q3"),
          ("Qa", "Qb Q1 Q2 Q3"), ("Qa", "Qb b Q1 b Q2 b Q3"), ("Qa", "Qb Q1 b Q2 Q3")][opt.get("ft", 0)]
    FT = FT + ("",) * (3 - len(FT))
    DL = opt.get("dl", 0)
    allf = (sf + " " + FT[0] + " " + FT[1] + " " + FT[2] + " " + " ".join(["D0", "D1"][2 - DL:])).replace("Qb", "Q0").replace("Qd", "Q0").split()
    assert sorted(t for t in allf if t in L) == sorted(L), allf
    L.update(L2)
    attention(sf, [L[t] for t in FT[0].split()], [L[t] for t in FT[2].split()])
    if opt.get("fack", 0):
        a("    s_waitcnt vmcnt(0)")
    if not opt.get("nfb", 0):
        a("    s_barrier")
    for t in FT[1].split():
        if t == "b":
            a("    s_barrier")
        else:
            L[t]()

    def hintprep():
        if opt.get("hn", 1) == 1:
            a("    s_mov_b32 %s, %s" % (s(sRep), s(sT32)))
        else:
            a("    s_mul_i32 %s, %s, 0x01010101" % (s(sRep), s(sTag8)))
        a("    s_mov_b32 %s, %s" % (s(sRep + 1), s(sRep)))
        a("    s_and_b32 %s, %s, %d" % (s(sT0), s(sFI), (R3 // 2 if opt.get("dp3", 0) else R3) - 1))
        a("    s_lshl_b32 %s, %s, %d" % (s(sT0), s(sT0), RS3))
        a("    s_add_u32 %s, %s, 0x%x" % (s(sT0), s(sT0), SBELL))
    a("    s_lshl_b32 %s, %s, 11" % (s(sT1), s(sW)))
    stamp(11)
    vXc = V()
    vHs = V(16, 4)
    vHo = V(4)
    vWg = V(16, 4)
    vWd = V(8, 4)
    P4 = opt.get("p4", 0)
    RW = P4 or opt.get("rw", 0)
    vWd2 = V(8, 4)
    vDv = V(4, 4)
    vAy2 = V(2)
    vHb = V(8, 4)
    vDu = V(4, 4)
    vCs = V(4, 4)
    vMt = V(4)
    vB = V(8, 4)
    vAgw, vAgr, vAsw, vAsr, vAy, vHr = [V() for _ in range(6)]
    a("    s_lshl_b32 %s, %s, 7" % (s(sT0), s(sW)))
    base(sB0, sX, s(sT0))
    a("    v_lshl_add_u32 %s, %s, 2, %s" % (v(vT + 2), v(vJ), v(vG)))
    a("    v_lshlrev_b32 %s, 1, %s" % (v(vT + 2), v(vT + 2)))
    a("    global_load_ushort %s, %s, %s" % (v(vXc), v(vT + 2), s(sB0, 2)))
    a("    global_load_ushort %s, %s, %s" % (v(vHr), v(vT + 2), s(sOUT, 2)))
    if opt.get("dp3", 0) == 2:
        a("    s_cmp_lg_u32 %s, 0" % s(sW))
        a("    s_cbranch_scc1 L_HP")
        hintprep()
        spoll2(s(sT0), (R3 // 2) << RS3, sRep, P3, sB4, phase=1)
        a("    s_lshl_b32 %s, %s, 7" % (s(sT0), s(sW)))
        a("L_HP:")
    a("    s_add_u32 %s, %s, 0x%x" % (s(sT2), s(sT0), LGP))
    a("    v_lshl_add_u32 %s, %s, 4, %s" % (v(vAgw), v(vG), s(sT2)))
    a("    v_lshrrev_b32 %s, 3, %s" % (v(vT + 2), v(vJ)))
    a("    v_lshl_add_u32 %s, %s, 1, %s" % (v(vT + 2), v(vL7), v(vT + 2)))
    a("    v_lshlrev_b32 %s, 6, %s" % (v(vT + 2), v(vT + 2)))
    a("    v_lshl_add_u32 %s, %s, 4, %s" % (v(vT + 2), v(vG), v(vT + 2)))
    a("    v_add_u32 %s, 0x%x, %s" % (v(vAgr), LGP, v(vT + 2)))
    a("    s_lshl_b32 %s, %s, 3" % (s(sT2), s(sW)))
    a("    s_add_u32 %s, %s, 0x%x" % (s(sT2), s(sT2), LST))
    a("    v_mov_b32 %s, %s" % (v(vAsw), s(sT2)))
    a("    v_lshlrev_b32 %s, 3, %s" % (v(vT + 2), v(vL7)))
    a("    v_add_u32 %s, 0x%x, %s" % (v(vAsr), LST, v(vT + 2)))
    for t in range(4):
        a("    v_cmp_eq_u32 vcc, %d, %s" % (t, v(vJ)))
        a("    v_cndmask_b32 %s, 0, -1, vcc" % v(vMt + t))
    a("    s_lshl_b32 %s, %s, 8" % (s(sT0), s(sW)))
    a("    s_add_u32 %s, %s, 0x%x" % (s(sT0), s(sT0), S3))
    base(sB1, sWS, s(sT0))
    a("    v_lshlrev_b32 %s, 4, %s" % (v(vT + 2), v(vJ)))
    a("    v_mul_u32_u24 %s, %d, %s" % (v(vHo), ST3, v(vG)))
    a("    v_add_u32 %s, %s, %s" % (v(vHo), v(vHo), v(vT + 2)))
    for i in (1, 2, 3):
        a("    v_add_u32 %s, 0x%x, %s" % (v(vHo + i), 4 * ST3 * i, v(vHo)))
    a("    s_mul_i32 %s, %s, %d" % (s(sT0), s(sW), 4 * 7168))
    a("    s_lshl_b32 %s, %s, 6" % (s(sT2), s(sFI)))
    a("    s_add_u32 %s, %s, %s" % (s(sT0), s(sT0), s(sT2)))
    a("    s_add_u32 %s, %s, 0x%x" % (s(sT0), s(sT0), S4))
    base(sB2, sWS, s(sT0))
    a("    v_lshrrev_b32 %s, 2, %s" % (v(vT + 2), v(vJ)))
    a("    v_mul_u32_u24 %s, 7168, %s" % (v(vT + 2), v(vT + 2)))
    a("    v_and_b32 %s, 3, v0" % v(vT + 3))
    a("    v_lshl_add_u32 %s, %s, 4, %s" % (v(vAy), v(vT + 3), v(vT + 2)))
    a("    v_lshrrev_b32 %s, 2, %s" % (v(vT + 2), v(vJ)))
    a("    v_and_b32 %s, 3, v0" % v(vT + 3))
    a("    v_lshl_add_u32 %s, %s, 2, %s" % (v(vT + 4), v(vT + 2), v(vG)))
    a("    v_lshlrev_b32 %s, 5, %s" % (v(vT + 4), v(vT + 4)))
    a("    v_lshl_add_u32 %s, %s, 3, %s" % (v(vT + 4), v(vT + 3), v(vT + 4)))
    a("    s_add_u32 %s, %s, 0x%x" % (s(sT2), s(sT1), LG))
    a("    v_add_u32 %s, %s, %s" % (v(vT + 4), s(sT2), v(vT + 4)))
    a("    v_lshl_add_u32 %s, %s, 2, %s" % (v(vT + 5), v(vG), v(vT + 2)))
    a("    v_lshlrev_b32 %s, 7, %s" % (v(vT + 5), v(vT + 5)))
    a("    v_lshl_add_u32 %s, %s, 3, %s" % (v(vT + 5), v(vT + 3), v(vT + 5)))
    a("    s_add_u32 %s, %s, 0x%x" % (s(sT2), s(sT1), LD))
    a("    v_add_u32 %s, %s, %s" % (v(vT + 5), s(sT2), v(vT + 5)))
    for i in range(4):
        a("    v_mov_b32 %s, 0x3f803f80" % v(vHb + i))

    def hloadsf():
        for i in range(4):
            a("    global_load_dwordx4 %s, %s, %s sc1" % (v(vHs + 4 * i, 4), v(vHo + i), s(sB1, 2)))
    a.c("gather the 16 wo partials; meanwhile transpose the weights and take their column sums")
    S3B = opt.get("s3bell", 1)
    PG = opt.get("pg", 0)
    if PG:
        sDone, sNew = sU + 0, sMean
        sDone = sVar
        a("    s_mov_b32 %s, %s" % (s(sRep), s(sT32)))
        a("    s_mov_b32 %s, %s" % (s(sRep + 1), s(sRep)))
        a("    s_and_b32 %s, %s, %d" % (s(sT0), s(sFI), R3 - 1))
        a("    s_lshl_b32 %s, %s, %d" % (s(sT0), s(sT0), RS3))
        a("    s_add_u32 %s, %s, 0x%x" % (s(sT0), s(sT0), SBELL))
        a("    v_mov_b32 %s, 0x%x" % (v(vT + 1), LRM))
        a("    s_mov_b32 %s, 0" % s(sDone))
        a("    s_mov_b32 %s, 0" % s(sSpin))
        sPrev = sPC
        a("    s_mov_b32 %s, 0" % s(sPrev))
        a("L_PG:")
        a("    s_add_u32 %s, %s, 1" % (s(sSpin), s(sSpin)))
        a("    v_xor_b32 %s, 4, %s" % (v(vT + 1), v(vT + 1)))
        a("    s_cmp_lg_u32 %s, 0" % s(sW))
        a("    s_cbranch_scc1 L_PGR")
        a("    s_load_dwordx8 %s, %s, %s glc" % (s(sFl, 8), s(sWS, 2), s(sT0)))
        a("    s_mov_b32 %s, 0" % s(sNew))
        a("    s_waitcnt lgkmcnt(0)")
        for k in range(4):
            a("    s_cmp_eq_u64 %s, %s" % (s(sFl + 2 * k, 2), s(sRep, 2)))
            a("    s_cselect_b32 %s, %d, 0" % (s(sT1), 1 << k))
            a("    s_or_b32 %s, %s, %s" % (s(sNew), s(sNew), s(sT1)))
        a("    s_cmp_ge_u32 %s, 0x%x" % (s(sSpin), SPIN_LIMIT))
        a("    s_cselect_b32 %s, 15, %s" % (s(sNew), s(sNew)))
        if PG >= 2:
            a("    s_cmp_eq_u32 %s, 15" % s(sNew))
            a("    s_cselect_b32 %s, 15, %s" % (s(sT1), s(sPrev)))
            a("    s_mov_b32 %s, %s" % (s(sPrev), s(sNew)))
            a("    s_mov_b32 %s, %s" % (s(sNew), s(sT1)))
        a("    v_mov_b32 %s, %s" % (v(vT + 2), s(sNew)))
        a("    ds_write_b32 %s, %s" % (v(vT + 1), v(vT + 2)))
        a("    s_waitcnt lgkmcnt(0)")
        a("    s_barrier")
        a("    s_branch L_PGI")
        a("L_PGR:")
        a("    s_barrier")
        a("    ds_read_b32 %s, %s" % (v(vT + 2), v(vT + 1)))
        a("    s_waitcnt lgkmcnt(0)")
        a("    v_readfirstlane_b32 %s, %s" % (s(sNew), v(vT + 2)))
        a("L_PGI:")
        a("    s_andn2_b32 %s, %s, %s" % (s(sNew), s(sNew), s(sDone)))
        a("    s_cbranch_scc0 L_PG")
        a("    s_or_b32 %s, %s, %s" % (s(sDone), s(sDone), s(sNew)))
        for i in range(4):
            a("    s_bitcmp1_b32 %s, %d" % (s(sNew), i))
            a("    s_cbranch_scc0 L_PGS%d" % i)
            a("    global_load_dwordx4 %s, %s, %s sc1" % (v(vHs + 4 * i, 4), v(vHo + i), s(sB1, 2)))
            a("L_PGS%d:" % i)
        a("    s_cmp_lg_u32 %s, 15" % s(sDone))
        a("    s_cbranch_scc1 L_PG")
    elif opt.get("sb3", 0):
        a("    s_cmp_lg_u32 %s, 0" % s(sW))
        a("    s_cbranch_scc1 L_HINT")
        if opt.get("dp3", 0) != 2:
            hintprep()
        if opt.get("dp3", 0):
            spoll2(s(sT0), (R3 // 2) << RS3, sRep, P3, sB4 if opt["dp3"] == 2 else sB0, phase=2 if opt["dp3"] == 2 else 0)
        else:
            spoll(sWS, s(sT0), sRep, P3, True)
        a("L_HINT:")
        a("    s_barrier")
    elif S3B:
        a("    s_cmp_lg_u32 %s, 0" % s(sW))
        a("    s_cbranch_scc1 L_HINT")
        a("    v_lshlrev_b32 %s, 7, %s" % (v(vT + 1), v(vL7)))
        a("    v_add_u32 %s, 0x%x, %s" % (v(vT + 1), SBELL, v(vT + 1)))

        def hint():
            a("    global_load_dword %s, %s, %s sc1" % (v(vT + 2), v(vT + 1), s(sWS, 2)))

        def hintcheck():
            a("    v_cmp_ne_u32 vcc, %s, %s" % (s(sT32), v(vT + 2)))
        setexec(0xFF, 0)
        hint()
        poll(hint, hintcheck, 0, cnt=12)
        a("L_HINT:")
        a("    s_barrier")
    if not PG:
        hloadsf()
    for t in ["D0", "D1"][2 - DL:]:
        L[t]()
    a("    s_waitcnt vmcnt(%d)" % (4 + DL))
    stamp(7)
    for mat in range(2):
        for st in range(2):
            for hh in range(2):
                a("    ds_read_b64_tr_b16 %s, %s offset:%d" %
                  (v(vWg + 8 * mat + 4 * st + 2 * hh, 2), v(vT + 4), 16384 * mat + 1024 * st + 512 * hh))
    vAd = V()

    def dreads():
        for t in range(4):
            a("    ds_read_b64_tr_b16 %s, %s offset:%d" % (v(vWd + 2 * t, 2), v(vAd), 32 * t))
    a("    v_mov_b32 %s, %s" % (v(vAd), v(vT + 5)))
    if not DL:
        dreads()
    a("    v_lshlrev_b32 %s, 16, %s" % (v(vXc), v(vXc)))
    if P4:
        a("    v_add_u32 %s, 0x%x, %s" % (v(vAy2), 16 * 7168, v(vAy)))
    if RW:
        a("    s_lshl_b32 %s, %s, 8" % (s(sT0), s(sW)))
        a("    s_add_u32 %s, %s, 0x%x" % (s(sT0), s(sT0), LRED))
        a("    v_lshl_add_u32 %s, v0, 2, %s" % (v(vAy2 + 1), s(sT0)))
    LA = opt.get("la", 0)
    sM0, sM1, sM2, sM8_, sM9 = sB0, sB4, sPC, sMean, sBo
    if LA:
        a("    v_and_b32 %s, 3, v0" % v(vT))
        a("    v_lshl_add_u32 %s, %s, 2, %s" % (v(vT), v(vG), v(vT)))
        a("    v_bfe_u32 %s, v0, 2, 1" % v(vT + 1))
        a("    v_lshl_add_u32 %s, %s, 4, %s" % (v(vT), v(vT + 1), v(vT)))
        a("    v_add_u32 %s, 56, %s" % (v(vT + 1), v(vJ)))
        a("    v_cmp_gt_u32 vcc, 8, %s" % v(vJ))
        a("    v_cndmask_b32 %s, %s, %s, vcc" % (v(vT), v(vT + 1), v(vT)))
        a("    v_lshlrev_b32 %s, 2, %s" % (v(vT), v(vT)))
        a("    v_add_u32 %s, 0x%x, %s" % (v(vAgw), LGP, v(vT)))
        a("    v_lshlrev_b32 %s, 4, %s" % (v(vT), v(vG)))
        a("    v_add_u32 %s, 0x%x, %s" % (v(vAgr), LGP, v(vT)))
        a("    v_mov_b32 %s, 0x%x" % (v(vAsr), LGP + 256))
        for r_, c_ in ((sM0, 0xAAAAAAAA), (sM1, 0xCCCCCCCC), (sM2, 0xF0F0F0F0), (sM8_, 0x01000100), (sM9, 0x02000200)):
            a("    s_mov_b32 %s, 0x%x" % (s(r_), c_))
            a("    s_mov_b32 %s, 0x%x" % (s(r_ + 1), c_))

    def pick(dst):
        a("    v_cndmask_b32 %s, %s, %s, %s" % (v(vD), v(vD), v(vD + 1), s(sM0, 2)))
        a("    v_cndmask_b32 %s, %s, %s, %s" % (v(vD + 2), v(vD + 2), v(vD + 3), s(sM0, 2)))
        a("    v_cndmask_b32 %s, %s, %s, %s" % (v(vDu), v(vDu), v(vDu + 1), s(sM0, 2)))
        a("    v_cndmask_b32 %s, %s, %s, %s" % (v(vDu + 2), v(vDu + 2), v(vDu + 3), s(sM0, 2)))
        a("    v_cndmask_b32 %s, %s, %s, %s" % (v(vD), v(vD), v(vD + 2), s(sM1, 2)))
        a("    v_cndmask_b32 %s, %s, %s, %s" % (v(vDu), v(vDu), v(vDu + 2), s(sM1, 2)))
        a("    v_cndmask_b32 %s, %s, %s, %s" % (v(dst), v(vD), v(vDu), s(sM2, 2)))
    CF2 = opt.get("cf", 0) == 2
    vOne = V(4, 4) if CF2 else None
    vC1 = V(8, 4) if CF2 else None

    def gate_up(b0, b1, d0=None, d1=None):
        d0 = vD if d0 is None else d0
        d1 = vDu if d1 is None else d1
        a("    v_mfma_f32_16x16x32_bf16 %s, %s, %s, 0" % (v(d0, 4), v(vWg, 4), v(b0, 4)))
        a("    v_mfma_f32_16x16x32_bf16 %s, %s, %s, 0" % (v(d1, 4), v(vWg + 8, 4), v(b0, 4)))
        a("    v_mfma_f32_16x16x32_bf16 %s, %s, %s, %s" % (v(d0, 4), v(vWg + 4, 4), v(b1, 4), v(d0, 4)))
        a("    v_mfma_f32_16x16x32_bf16 %s, %s, %s, %s" % (v(d1, 4), v(vWg + 12, 4), v(b1, 4), v(d1, 4)))
    if CF2:
        for i in range(4):
            a("    v_mov_b32 %s, 0x3f803f80" % v(vOne + i))
    else:
        a("    s_waitcnt lgkmcnt(0)")
        gate_up(vHb, vHb)
        if LA:
            pick(vD)
            setexec(0x00FF00FF, 0x00FF00FF)
            a("    ds_add_f32 %s, %s offset:128" % (v(vAgw), v(vD)))
        else:
            setexec(0x00010001, 0x00010001)
            a("    ds_write_b128 %s, %s offset:%d" % (v(vAgw), v(vD, 4), LCS - LGP))
            a("    ds_write_b128 %s, %s offset:%d" % (v(vAgw), v(vDu, 4), LCS - LGP + 64))
        setexec(0xFFFFFFFF, 0xFFFFFFFF)
    CF = opt.get("cf", 0)
    if not CF:
        a("    s_waitcnt lgkmcnt(0)")
        a("    s_barrier")
        a("    ds_read_b128 %s, %s offset:%d" % (v(vCs, 4), v(vAgr), LCS - LGP))
        a("    s_waitcnt lgkmcnt(0)")
        for pat in ("quad_perm:[1,0,3,2]", "quad_perm:[2,3,0,1]", "row_half_mirror"):
            for r in range(4):
                a("    v_add_f32_dpp %s, %s, %s %s %s" % (v(vCs + r), v(vCs + r), v(vCs + r), pat, DPP))

    vHa = V(4, 4)

    def sumacc(dst, src):
        def f(i):
            for r in (0, 2):
                if i == 1:
                    a("    v_pk_add_f32 %s, %s, %s" % (v(dst + r, 2), v(src + r, 2), v(src + 4 + r, 2)))
                elif i > 1:
                    a("    v_pk_add_f32 %s, %s, %s" % (v(dst + r, 2), v(dst + r, 2), v(src + 4 * i + r, 2)))
        return f
    gather(hloadsf, [vHs + 4 * i for i in range(4)], sTag10, 0x3ff, sumacc(vHa, vHs), cnt=13, ordered=not PG, younger=DL)
    stamp(8)
    if CF2:
        a("    s_waitcnt lgkmcnt(0)")
        gate_up(vOne, vOne, vC1, vC1 + 4)
    vHs = vHa
    a.c("h, gate / up products on h itself, statistics of h")
    treduce4(vHs)
    bf16r(vHs, vHs)
    a("    v_add_f32 %s, %s, %s" % (v(vHs), v(vHs), v(vXc)))
    rowpack(vHs, vHb, 8)
    bf16r(vHr, vHs)
    gate_up(vHb, vHb + 4)
    if RW:
        a("    ds_write_b32 %s, %s" % (v(vAy2 + 1), v(vHr)))
    if CF2:
        setexec(0x00010001, 0x00010001)
        a("    ds_write_b128 %s, %s offset:%d" % (v(vAgw), v(vC1, 4), LCS - LGP))
        a("    ds_write_b128 %s, %s offset:%d" % (v(vAgw), v(vC1 + 4, 4), LCS - LGP + 64))
        setexec(0xFFFFFFFF, 0xFFFFFFFF)
    a("    v_mul_f32 %s, %s, %s" % (v(vT + 1), v(vHr), v(vHr)))
    a("    v_add_f32_dpp %s, %s, %s row_ror:1 %s" % (v(vT), v(vHr), v(vHr), DPP))
    a("    v_add_f32_dpp %s, %s, %s row_ror:1 %s" % (v(vT + 1), v(vT + 1), v(vT + 1), DPP))
    for sh in (2, 4, 8):
        for r in range(2):
            a("    v_add_f32_dpp %s, %s, %s row_ror:%d %s" % (v(vT + r), v(vT + r), v(vT + r), sh, DPP))
    if LA:
        pick(vD)
        a("    v_cndmask_b32 %s, %s, %s, %s" % (v(vD), v(vD), v(vT), s(sM8_, 2)))
        a("    v_cndmask_b32 %s, %s, %s, %s" % (v(vD), v(vD), v(vT + 1), s(sM9, 2)))
        setexec(0x03FF03FF, 0x03FF03FF)
        a("    ds_add_f32 %s, %s" % (v(vAgw), v(vD)))
        setexec(0xFFFFFFFF, 0xFFFFFFFF)
        a("    s_waitcnt lgkmcnt(0)")
        a("    s_barrier")
    else:
        for pat in ("row_bcast:15 row_mask:0xa", "row_bcast:31 row_mask:0xc"):
            for r in range(2):
                a("    v_add_f32_dpp %s, %s, %s %s bank_mask:0xf" % (v(vT + r), v(vT + r), v(vT + r), pat))
        if opt.get("fst") == 1:
            stamp(3)
        setexec(0, 0x80000000)
        a("    ds_write_b64 %s, %s" % (v(vAsw), v(vT, 2)))
        setexec(0x00010001, 0x00010001)
        a("    ds_write_b128 %s, %s" % (v(vAgw), v(vD, 4)))
        a("    ds_write_b128 %s, %s offset:64" % (v(vAgw), v(vDu, 4)))
        setexec(0xFFFFFFFF, 0xFFFFFFFF)
        a("    s_waitcnt lgkmcnt(0)")
        a("    s_barrier")
    cstamp(1)
    if DL:
        assert not P4
    if P4:
        a("    s_cmp_ge_u32 %s, 4" % s(sW))
        a("    s_cbranch_scc1 L_FIN2")
    a("    ds_read_b64 %s, %s" % (v(vT, 2), v(vAsr)))
    a("    ds_read_b128 %s, %s" % (v(vD, 4), v(vAgr)))
    if LA:
        a("    ds_read_b128 %s, %s offset:128" % (v(vCs, 4), v(vAgr)))
        a("    ds_read_b128 %s, %s offset:64" % (v(vHb, 4), v(vAgr)))
        a("    ds_read_b128 %s, %s offset:192" % (v(vHb + 4, 4), v(vAgr)))
    elif CF:
        a("    ds_read_b128 %s, %s offset:%d" % (v(vCs, 4), v(vAgr), LCS - LGP))
    if P4:
        assert CF
        for t in range(4):
            a("    ds_read_b64_tr_b16 %s, %s offset:%d" % (v(vWd2 + 2 * t, 2), v(vAd), 8192 + 32 * t))
    pats = ("quad_perm:[1,0,3,2]", "quad_perm:[2,3,0,1]", "row_half_mirror")

    def meanfix():
        a.c("g u with the mean removed, down projection, 1 / sigma^2, publish")
        a("    v_mul_f32 %s, 0x3b000000, %s" % (v(vT), v(vT)))
        bf16r(vT + 2, vT)
        for r in (0, 2):
            a("    v_pk_fma_f32 %s, %s, %s, %s op_sel_hi:[0,1,1] neg_lo:[1,0,0] neg_hi:[1,0,0]" %
              (v(vD + r, 2), v(vT + 2, 2), v(vCs + r, 2), v(vD + r, 2)))
    if LA:
        a("    s_waitcnt lgkmcnt(%d)" % (0 if prof else 4))
        a("    v_mul_f32 %s, 0x3b000000, %s" % (v(vT), v(vT)))
        bf16r(vT + 2, vT)
        a("    s_waitcnt lgkmcnt(%d)" % (0 if prof else 2))
        for r in (0, 2):
            a("    v_pk_fma_f32 %s, %s, %s, %s op_sel_hi:[0,1,1] neg_lo:[1,0,0] neg_hi:[1,0,0]" %
              (v(vD + r, 2), v(vT + 2, 2), v(vCs + r, 2), v(vD + r, 2)))
        a("    s_waitcnt lgkmcnt(0)")
        cstamp(2)
        for r in (0, 2):
            a("    v_pk_fma_f32 %s, %s, %s, %s op_sel_hi:[0,1,1] neg_lo:[1,0,0] neg_hi:[1,0,0]" %
              (v(vHb + r, 2), v(vT + 2, 2), v(vHb + 4 + r, 2), v(vHb + r, 2)))
    elif CF:
        a("    s_waitcnt lgkmcnt(%d)" % (0 if prof else (6 if P4 else 2)))
        for pat in pats:
            for r in (vT, vT + 1):
                a("    v_add_f32_dpp %s, %s, %s %s %s" % (v(r), v(r), v(r), pat, DPP))
        a("    s_waitcnt lgkmcnt(%d)" % (4 if P4 and not prof else 0))
        cstamp(2)
        meanfix()
        for pat in pats:
            for r in range(4):
                a("    v_add_f32_dpp %s, %s, %s %s %s" % (v(vD + r), v(vD + r), v(vD + r), pat, DPP))
    else:
        a("    s_waitcnt lgkmcnt(0)")
        for pat in pats:
            for r in (vT, vT + 1, vD, vD + 1, vD + 2, vD + 3):
                a("    v_add_f32_dpp %s, %s, %s %s %s" % (v(r), v(r), v(r), pat, DPP))
        meanfix()
    cstamp(3)
    a("    v_mul_f32 %s, 0x3b000000, %s" % (v(vT + 1), v(vT + 1)))
    a("    v_fma_f32 %s, -%s, %s, %s" % (v(vT + 1), v(vT), v(vT), v(vT + 1)))
    if LA:
        for r in (0, 2):
            a("    v_pk_mul_f32 %s, %s, %s" % (v(vT + 4 + r, 2), v(vD + r, 2), v(vHb + r, 2)))
    else:
        for r in range(4):
            a("    v_mul_f32_dpp %s, %s, %s row_ror:8 %s" % (v(vT + 4 + r), v(vD + r), v(vD + r), DPP))
    a("    v_cvt_pk_bf16_f32 %s, %s, %s" % (v(vT + 2), v(vT + 4), v(vT + 5)))
    a("    v_cvt_pk_bf16_f32 %s, %s, %s" % (v(vT + 3), v(vT + 6), v(vT + 7)))
    if DL or P4:
        a("    s_waitcnt lgkmcnt(0)")
    for t in range(4):
        a("    v_and_b32 %s, %s, %s" % (v(vB + 2 * t), v(vT + 2), v(vMt + t)))
        a("    v_and_b32 %s, %s, %s" % (v(vB + 2 * t + 1), v(vT + 3), v(vMt + t)))
        if t:
            a("    v_mfma_f32_16x16x16_bf16 %s, %s, %s, %s" %
              (v(vDu, 4), v(vB + 2 * t - 2, 2), v(vWd + 2 * t - 2, 2), "0" if t == 1 else v(vDu, 4)))
            if P4:
                a("    v_mfma_f32_16x16x16_bf16 %s, %s, %s, %s" %
                  (v(vDv, 4), v(vB + 2 * t - 2, 2), v(vWd2 + 2 * t - 2, 2), "0" if t == 1 else v(vDv, 4)))
    cstamp(4)
    a("    v_max_f32 %s, 0, %s" % (v(vT + 1), v(vT + 1)))
    a("    v_mfma_f32_16x16x16_bf16 %s, %s, %s, %s" % (v(vDu, 4), v(vB + 6, 2), v(vWd + 6, 2), v(vDu, 4)))
    if P4:
        a("    v_mfma_f32_16x16x16_bf16 %s, %s, %s, %s" % (v(vDv, 4), v(vB + 6, 2), v(vWd2 + 6, 2), v(vDv, 4)))
    bf16r(vT + 1, vT + 1)
    a("    v_add_f32 %s, 0x3727c5ac, %s" % (v(vT + 1), v(vT + 1)))
    bf16r(vT + 1, vT + 1)
    a("    v_sqrt_f32 %s, %s" % (v(vT + 1), v(vT + 1)))
    bf16r(vT + 1, vT + 1)
    a("    v_mul_f32 %s, %s, %s" % (v(vT + 1), v(vT + 1), v(vT + 1)))
    a("    v_rcp_f32 %s, %s" % (v(vT), v(vT + 1)))
    cstamp(5)
    setexec(0xFFFF, 0)
    for r in (0, 2):
        a("    v_pk_mul_f32 %s, %s, %s op_sel_hi:[1,0]" % (v(vDu + r, 2), v(vDu + r, 2), v(vT, 2)))
    for i in range(4):
        a("    v_and_or_b32 %s, %s, %s, %s" % (v(vDu + i), v(vDu + i), s(sM10), v(vTag10)))
    a("    global_store_dwordx4 %s, %s, %s sc1" % (v(vAy), v(vDu, 4), s(sB2, 2)))
    cstamp(6)
    if P4:
        for r in (0, 2):
            a("    v_pk_mul_f32 %s, %s, %s op_sel_hi:[1,0]" % (v(vDv + r, 2), v(vDv + r, 2), v(vT, 2)))
        for i in range(4):
            a("    v_and_or_b32 %s, %s, %s, %s" % (v(vDv + i), v(vDv + i), s(sM10), v(vTag10)))
        a("    global_store_dwordx4 %s, %s, %s sc1" % (v(vAy2), v(vDv, 4), s(sB2, 2)))
    stamp(9)
    if RW:
        a("    s_cmp_ge_u32 %s, 32" % s(sFI))
        a("    s_cbranch_scc1 L_FIN2")
    a.c("final sum over the 112 partials for 16 columns")
    a("    s_lshr_b32 %s, %s, 2" % (s(sT0), s(sFI)))
    if RW:
        a("    s_and_b32 %s, %s, 3" % (s(sT1), s(sT0)))
        if opt.get("rw") == 2:
            a("    s_add_u32 %s, %s, 4" % (s(sT1), s(sT1)))
        a("    s_cmp_lg_u32 %s, %s" % (s(sT1), s(sW)))
        a("    s_cbranch_scc1 L_FIN2")
        a("    s_mov_b32 %s, %s" % (s(sMean), s(sT0)))
    else:
        a("    s_cmp_lg_u32 %s, %s" % (s(sT0), s(sW)))
        a("    s_cbranch_scc1 L_FIN2")
    setexec(0xFFFFFFFF, 0xFFFFFFFF)
    if opt.get("yd", 0) >= 1:
        a("    s_waitcnt vmcnt(0)")
    vY = V(28, 4)
    vCo = V()
    a("    v_and_b32 %s, 3, v0" % v(vT))
    a("    v_lshlrev_b32 %s, 2, %s" % (v(vT + 1), v(vG)))
    a("    v_lshl_add_u32 %s, %s, 4, %s" % (v(vT + 1), v(vT), v(vT + 1)))
    a("    v_add_u32 %s, %s, %s" % (v(vT + 1), s(sU), v(vT + 1)))
    a("    v_lshlrev_b32 %s, 2, %s" % (v(vT + 1), v(vT + 1)))
    if RW:
        a("    s_lshl_b32 %s, %s, 8" % (s(sT0), s(sMean)))
        a("    s_add_u32 %s, %s, 0x%x" % (s(sT0), s(sT0), LRED))
        a("    v_add_u32 %s, %s, %s" % (v(vT + 1), s(sT0), v(vT + 1)))
        a("    ds_read_b32 %s, %s" % (v(vHr), v(vT + 1)))
    else:
        a("    ds_bpermute_b32 %s, %s, %s" % (v(vHr), v(vT + 1), v(vHr)))
    a("    v_lshl_add_u32 %s, %s, 4, %s" % (v(vCo), v(vG), v(vT)))
    a("    v_lshlrev_b32 %s, 1, %s" % (v(vCo), v(vCo)))
    a("    s_lshl_b32 %s, %s, 7" % (s(sT0), s(sMean if RW else sW)))
    a("    s_lshl_b32 %s, %s, 3" % (s(sT1), s(sU)))
    a("    s_add_u32 %s, %s, %s" % (s(sT0), s(sT0), s(sT1)))
    base(sB3, sOUT, s(sT0))
    if opt.get("odiag"):
        a("    s_lshl_b32 %s, %s, 12" % (s(sT0), s(sFI)))
        a("    s_add_u32 %s, %s, 0x180000" % (s(sT0), s(sT0)))
        base(sB3, sWS, s(sT0))
        if opt["odiag"] == 2:
            a("    v_lshlrev_b32 %s, 4, %s" % (v(vCo), v(vCo)))
    a("    s_mul_i32 %s, %s, 7168" % (s(sT1), s(sFI)))
    a("    s_add_u32 %s, %s, 0x%x" % (s(sT1), s(sT1), S4 + 3072))
    base(sB2, sWS, s(sT1))

    def yloads():
        for n in range(7):
            a("    global_load_dwordx4 %s, %s, %s offset:%d%s" % (v(vY + 4 * n, 4), v(vAo), s(sB2, 2), 1024 * n - 3072,
                                                                 [" sc1", " sc1 nt", " sc0 sc1 nt", " sc0 sc1"][opt.get("yl", 0)]))

    if opt.get("ackwait", 1):
        a("    s_waitcnt vmcnt(0)")
    if opt.get("yd", 0) >= 2:
        a("    global_load_ushort %s, %s, %s sc1" % (v(vY), v(vCo), s(sB3, 2)))
        a("    s_waitcnt vmcnt(0)")
    yloads()
    gather(yloads, [vY + 4 * i for i in range(7)], sTag10, 0x3ff, sumacc(vHa, vY), cnt=15)
    if not opt.get("astamps"):
        stamp(14)
    vY = vHa
    treduce4(vY)
    for sh in (4, 8):
        a("    v_add_f32_dpp %s, %s, %s row_ror:%d %s" % (v(vY), v(vY), v(vY), sh, DPP))
    bf16r(vY, vY)
    a("    s_waitcnt lgkmcnt(0)")
    a("    v_add_f32 %s, %s, %s" % (v(vY), v(vY), v(vHr)))
    a("    v_cvt_pk_bf16_f32 %s, %s, %s" % (v(vY), v(vY), v(vY)))
    setexec(0x000F000F, 0x000F000F)
    a("    global_store_short %s, %s, %s%s" % (v(vCo), v(vY), s(sB3, 2), ["", " sc1", " nt", " sc0 sc1"][opt.get("ost", 0)]))
    a("    s_cmp_lg_u32 %s, 0" % s(sFI))
    a("    s_cbranch_scc1 L_FIN2")
    setexec(1, 0)
    a("    v_mov_b32 %s, 0" % v(vT))
    a("    v_mov_b32 %s, %s" % (v(vT + 1), s(sT32)))
    a("    global_store_dword %s, %s, %s sc1" % (v(vT), v(vT + 1), s(sWS, 2)))
    if opt.get("diagspin"):
        a("    s_waitcnt lgkmcnt(0)")
        if "diagph" in opt:
            a("    s_sub_u32 s90, s90, s96")
            a("    s_lshl_b32 s90, s90, 2")
            a("    s_add_u32 s96, s96, s90")
        a("    s_add_u32 s96, s96, %d" % opt["diagspin"])
        a("L_DIAG:")
        a("    s_memrealtime s[92:93]")
        a("    s_waitcnt lgkmcnt(0)")
        a("    s_sub_u32 s92, s92, s96")
        a("    s_cmp_lt_i32 s92, 0")
        a("    s_cbranch_scc1 L_DIAG")
    a("L_FIN2:")
    finish()

    if prof:
        a("L_PROF:")
        a("    s_memrealtime %s" % s(sPROF + 20, 2))
        a("    s_mov_b64 exec, 1")
        a("    s_lshl_b32 %s, s2, 3" % s(sT0))
        a("    s_add_u32 %s, %s, %s" % (s(sT0), s(sT0), s(sW)))
        a("    s_lshl_b32 %s, %s, 7" % (s(sT0), s(sT0)))
        a("    s_add_u32 %s, %s, 0x%x" % (s(sT0), s(sT0), PROFB))
        base(sB0, sWS, s(sT0))
        a("    v_mov_b32 v1, 0")
        a("    s_waitcnt lgkmcnt(0)")
        for i in range(16):
            a("    v_mov_b32 v2, %s" % s(sPROF + 2 * i))
            if prof == 2:
                a("    global_atomic_umax v1, v2, %s offset:%d sc1" % (s(sDBG, 2), 4 * i))
            else:
                a("    global_store_dword v1, v2, %s offset:%d" % (s(sB0, 2), 4 * i))
        if prof == 2:
            a("    s_not_b32 %s, %s" % (s(sT0), s(sPROF)))
            a("    v_mov_b32 v2, %s" % s(sT0))
            a("    global_atomic_umax v1, v2, %s offset:48 sc1" % s(sDBG, 2))
        a("    s_endpgm")
    a("L_END:")
    a("    s_endpgm")
    a("L_CODE_END:")
    nv = (V.hi + 7) // 8 * 8
    a('.section .rodata,"a"')
    a(".p2align 6")
    a(".amdhsa_kernel %s_kernel" % NAME)
    a("  .amdhsa_next_free_vgpr %d" % nv)
    a("  .amdhsa_next_free_sgpr 102")
    a("  .amdhsa_accum_offset %d" % nv)
    a("  .amdhsa_group_segment_fixed_size 0")
    a("  .amdhsa_kernarg_size 96")
    a("  .amdhsa_user_sgpr_count 2")
    a("  .amdhsa_user_sgpr_kernarg_segment_ptr 1")
    a("  .amdhsa_system_sgpr_workgroup_id_x 1")
    a("  .amdhsa_float_denorm_mode_32 3")
    a(".end_amdhsa_kernel")
    return out + a.finalize()


if __name__ == "__main__":
    import argparse
    ap = argparse.ArgumentParser()
    ap.add_argument("-o", default=None)
    ap.add_argument("--prof", type=int, default=0)
    ap.add_argument("--opt", default="")
    args = ap.parse_args()
    opt = {}
    for kv in args.opt.split(","):
        if kv:
            k, x = kv.split("=")
            opt[k] = int(x)
    txt = gen(args.prof, opt)
    path = args.o or os.path.join(os.path.dirname(os.path.abspath(__file__)), "..", "cdna_kernels", NAME + ".s")
    open(path, "w").write(txt)
    print("wrote", path, len(txt.split("\n")), "lines")
```

```python
import sys
import os
sys.path.insert(0, os.path.dirname(os.path.abspath(__file__)))
from asmlib import Asm

NAME = "sequential_preLN__sliding_block_cached__glu_gated_bilinear__decode"

EPOCH = 0
S1 = 0x20000
S2ML = 0x11000
S3 = 0x40000
S4 = 0xF8000
SBELL = 0x160000
SRDY = 0x138000
SQF = 0x5C000
S2O = 0x60000
PROFB = 0x200000

LK = 0
LV = 32768
LG = 65536
LD = 98304
LRED = 114688
LQ = 119040
LMX = 120128
LLS = 120256
LP = 120768
LH = 121856
LGP = 122880
LCS = 123904
LST = 124928
LWT = 124992
LEP = 125504
LRM = 125512
LDS_BYTES = 125568

DPP = "row_mask:0xf bank_mask:0xf"
SPIN_LIMIT = 1 << 18


class Regs:
    def __init__(self, start):
        self.n = start
        self.hi = start

    def __call__(self, cnt=1, align=None):
        if align is None:
            align = 2 if cnt > 1 else 1
        self.n = (self.n + align - 1) // align * align
        b = self.n
        self.n += cnt
        self.hi = max(self.hi, self.n)
        return b

    def mark(self):
        return self.n

    def release(self, m):
        self.n = m


def v(b, n=1):
    return "v%d" % b if n == 1 else "v[%d:%d]" % (b, b + n - 1)


def s(b, n=1):
    return "s%d" % b if n == 1 else "s[%d:%d]" % (b, b + n - 1)


def gen(prof=False, opt=None):
    opt = dict(opt or {})
    global S1, S3, S4, SRDY, SBELL, S2ML, S2O
    if opt.get("lay") == 1:
        S1, S3, S4, SRDY, SBELL = 0x1000, 0x15000, 0xE0000, 0x120000, 0x140000
    if opt.get("lay") == 2:
        S1, S2ML, S3, SBELL, SRDY, S4, S2O = 0x1000, 0x11000, 0x15000, 0x1D000, 0x20000, 0x40000, 0x80000
    if opt.get("lay") == 3:
        S1, S2ML, S3, SBELL, SRDY, S4, S2O = 0x1080, 0x11100, 0x15180, 0x1D280, 0x20300, 0x40380, 0x80400
    for k_, x_ in dict(bx=0, qpol=4, win=3, mb=0, sw=6, sf=1, ft=25, t0p=2, fack=0, ost=1, amx=0, pl=0, sb2=3, sb3=1, rs2=10, dh=4, cf=1, hp=2, c3=1, wt=2, ln1p=1, lq=1).items():
        opt.setdefault(k_, x_)
    a = Asm()
    V = Regs(1)
    sX, sK, sVp, sWQ, sWO, sBX, sWG, sWU = 4, 6, 8, 10, 12, 14, 16, 18
    sWD, sOUT, sDBG, sWS = 20, 22, 24, 26
    sE, sW, sH, sJ = 28, 29, 30, 31
    sT0, sT1, sT2, sT3 = 32, 33, 34, 35
    sB0, sB1, sB2, sB3 = 36, 38, 40, 42
    sM8, sM10, sTag8, sTag10, sT32 = 44, 45, 46, 47, 48
    sSpin, sTmp, sDummy = 49, 50, 51
    sPC = 52
    sB4 = 54
    sU, sFI = 56, 57
    sMean, sVar = 58, 59
    sBo, sBml = 60, 62
    sBfl = 94
    sB5, sInb = 98, 100
    sFl = 4
    sRep = 92
    sScale = 14
    sPROF = 64
    uid = [0]
    ST1, ST2, ST3 = opt.get("st1", 2048), opt.get("st2", 2048), opt.get("st3", 2048)
    XS = ["", " nt", " sc0"][opt.get("xsk", 0)] if opt.get("xs", 0) & 1 else " sc1"
    R2, R3 = opt.get("r2", 4), opt.get("r3", 16)
    RS2, RS3 = opt.get("rs2", 8), opt.get("rs3", 7)
    P2, P3 = opt.get("p2", 2), opt.get("p3", 1)
    vm = []

    def waitfor(name):
        n = len(vm) - 1 - vm.index(name)
        a("    s_waitcnt vmcnt(%d)" % n)

    STM = opt.get("stamps", 0xFFFF)

    def stamp(i):
        if opt.get("diagph") == i:
            a("    s_memrealtime s[90:91]")
        if prof and (STM >> i) & 1:
            a("    s_memrealtime %s" % s(sPROF + 2 * i, 2))

    def cstamp(i):
        if prof and opt.get("cst"):
            a("    s_memtime %s" % s(sPROF + 2 * i, 2))

    def setexec(lo, hi):
        if lo == hi == 0xFFFFFFFF:
            a("    s_mov_b64 exec, -1")
        else:
            a("    s_mov_b32 exec_lo, 0x%x" % lo)
            a("    s_mov_b32 exec_hi, 0x%x" % hi)

    def base(dst, ptr, off_sreg):
        a("    s_add_u32 %s, %s, %s" % (s(dst), s(ptr), off_sreg))
        a("    s_addc_u32 %s, %s, 0" % (s(dst + 1), s(ptr + 1)))

    def finish():
        if prof:
            a("    s_branch L_PROF")
        else:
            a("    s_endpgm")

    def bf16r(dst, src):
        a("    v_cvt_pk_bf16_f32 %s, %s, %s" % (v(dst), v(src), v(src)))
        a("    v_and_b32 %s, 0xffff0000, %s" % (v(dst), v(dst)))

    def wavesum_to_sgpr(r, sd):
        for sh in (1, 2, 4, 8):
            a("    v_add_f32_dpp %s, %s, %s row_ror:%d %s" % (v(r), v(r), v(r), sh, DPP))
        a("    v_add_f32_dpp %s, %s, %s row_bcast:15 row_mask:0xa bank_mask:0xf" % (v(r), v(r), v(r)))
        a("    v_add_f32_dpp %s, %s, %s row_bcast:31 row_mask:0xc bank_mask:0xf" % (v(r), v(r), v(r)))
        a("    v_readlane_b32 %s, %s, 63" % (s(sd), v(r)))

    def tagcheck(regs, tagreg, tmp, first=True):
        for i, r in enumerate(regs):
            if first and i == 0:
                a("    v_xor_b32 %s, %s, %s" % (v(tmp), s(tagreg), v(r)))
            else:
                a("    v_bitop3_b32 %s, %s, %s, %s bitop3:0xf6" % (v(tmp), v(tmp), v(r), s(tagreg)))

    def poll(loads, check, firstwait, post=None, cnt=None, keepexec=False):
        uid[0] += 1
        u = uid[0]
        a("    s_mov_b32 %s, 0" % s(sSpin))
        a("    s_branch L_CHECK%d" % u)
        a("L_RETRY%d:" % u)
        a("    s_add_u32 %s, %s, 1" % (s(sSpin), s(sSpin)))
        a("    s_cmp_ge_u32 %s, 0x%x" % (s(sSpin), SPIN_LIMIT))
        a("    s_cbranch_scc1 L_OK%d" % u)
        a("    s_mov_b64 exec, vcc")
        loads()
        if firstwait:
            a("    s_waitcnt vmcnt(0)")
        a("L_CHECK%d:" % u)
        a("    s_waitcnt vmcnt(%d)" % firstwait)
        check()
        a("    s_cbranch_vccnz L_RETRY%d" % u)
        a("L_OK%d:" % u)
        a("    s_mov_b64 exec, -1")
        if prof and cnt is not None and (not opt.get("astamps") or cnt == 15):
            a("    s_mov_b32 %s, %s" % (s(sPROF + 2 * cnt), s(sSpin)))
        if post:
            post()

    def spoll(pair, off, rep, parts=1, rep3=False):
        uid[0] += 1
        u = uid[0]
        a("    s_mov_b32 %s, 0" % s(sSpin))
        depth = opt.get("spd", 1)
        if depth > 1:
            for k in range(4):
                a("    s_not_b64 %s, %s" % (s(sFl + 2 * k, 2), s(rep, 2)))
            a("L_SP%d:" % u)
            a("    s_add_u32 %s, %s, 1" % (s(sSpin), s(sSpin)))
            a("    s_cmp_ge_u32 %s, 0x%x" % (s(sSpin), SPIN_LIMIT))
            a("    s_cbranch_scc1 L_SPD%d" % u)
            a("    s_load_dwordx8 %s, %s, %s glc" % (s(sFl, 8), s(pair, 2), off))
            a("    s_waitcnt lgkmcnt(%d)" % (2 * depth - 2))
            for k in range(4):
                a("    s_cmp_eq_u64 %s, %s" % (s(sFl + 2 * k, 2), s(rep, 2)))
                a("    s_cbranch_scc0 L_SP%d" % u)
            a("L_SPD%d:" % u)
            return
        if parts > 1:
            base(sB0 if rep3 else sB1, pair, off)
        a("L_SP%d:" % u)
        if parts == 1:
            a("    s_load_dwordx8 %s, %s, %s glc" % (s(sFl, 8), s(pair, 2), off))
        else:
            n = 8 // parts
            for k in range(parts):
                a("    s_load_dword%s %s, %s, 0x%x glc" % ("" if n == 1 else "x%d" % n, s(sFl + n * k, n), s(sB0 if rep3 else sB1, 2), 128 * k))
        a("    s_add_u32 %s, %s, 1" % (s(sSpin), s(sSpin)))
        a("    s_cmp_ge_u32 %s, 0x%x" % (s(sSpin), SPIN_LIMIT))
        a("    s_waitcnt lgkmcnt(0)")
        a("    s_cbranch_scc1 L_SPD%d" % u)
        for k in range(4):
            a("    s_xor_b64 %s, %s, %s" % (s(sFl + 2 * k, 2), s(sFl + 2 * k, 2), s(rep, 2)))
        a("    s_or_b64 %s, %s, %s" % (s(sFl, 2), s(sFl, 2), s(sFl + 2, 2)))
        a("    s_or_b64 %s, %s, %s" % (s(sFl + 4, 2), s(sFl + 4, 2), s(sFl + 6, 2)))
        a("    s_or_b64 %s, %s, %s" % (s(sFl, 2), s(sFl, 2), s(sFl + 4, 2)))
        a("    s_cbranch_scc1 L_SP%d" % u)
        a("L_SPD%d:" % u)

    def spoll2(offA, dist, rep, parts, bp, between=None, phase=0):
        assert not prof
        uid[0] += 1
        u = uid[0]
        sets = (sFl, 64)
        n = 8 // parts
        SENT = 0x5a5aa5a5
        if phase != 2:
            base(bp, sWS, offA)

        def issue(k):
            a("    s_mov_b32 %s, 0x%x" % (s(sets[k] + 7), SENT))
            for q in range(parts):
                a("    s_load_dword%s %s, %s, 0x%x glc" % ("x%d" % n, s(sets[k] + n * q, n), s(bp, 2), 128 * q + dist * k))
        if phase != 2:
            issue(0)
        if phase == 1:
            return
        issue(1)
        a("    s_mov_b32 %s, 0" % s(sSpin))
        for k in (0, 1):
            a("L_S2%d_%d:" % (u, k))
            if k == 0:
                a("    s_add_u32 %s, %s, 1" % (s(sSpin), s(sSpin)))
                a("    s_cmp_ge_u32 %s, 0x%x" % (s(sSpin), SPIN_LIMIT * 8))
                a("    s_cbranch_scc1 L_S2D%d" % u)
            a("    s_cmp_eq_u32 %s, 0x%x" % (s(sets[k] + 7), SENT))
            a("    s_cbranch_scc1 L_S2%d_%d" % (u, 1 - k))
            for q in range(4):
                a("    s_cmp_eq_u64 %s, %s" % (s(sets[k] + 2 * q, 2), s(rep, 2)))
                a("    s_cbranch_scc0 L_S2R%d_%d" % (u, k))
            a("    s_branch L_S2D%d" % u)
            a("L_S2R%d_%d:" % (u, k))
            issue(k)
            if k == 1:
                a("    s_branch L_S2%d_0" % u)
        a("L_S2D%d:" % u)

    def gather(loads, regs, tag, lowmask, acc, cnt=None, before=None, ordered=True, younger=0):
        uid[0] += 1
        u = uid[0]
        n = len(regs)

        def strip(i, first):
            r = regs[i]
            for k in range(4):
                a("    v_xor_b32 %s, %s, %s" % (v(r + k), s(tag), v(r + k)))
            if first:
                a("    v_or3_b32 %s, %s, %s, %s" % (v(vG0), v(r), v(r + 1), v(r + 2)))
                a("    v_or_b32 %s, %s, %s" % (v(vG0), v(vG0), v(r + 3)))
            else:
                a("    v_or3_b32 %s, %s, %s, %s" % (v(vG0), v(vG0), v(r), v(r + 1)))
                a("    v_or3_b32 %s, %s, %s, %s" % (v(vG0), v(vG0), v(r + 2), v(r + 3)))

        def verdict():
            a("    v_and_b32 %s, 0x%x, %s" % (v(vG0), lowmask, v(vG0)))
            a("    v_cmp_ne_u32 vcc, 0, %s" % v(vG0))
        a("    s_mov_b32 %s, 0" % s(sSpin))
        a("    s_branch L_FIRST%d" % u)
        a("L_RETRY%d:" % u)
        a("    s_add_u32 %s, %s, 1" % (s(sSpin), s(sSpin)))
        a("    s_cmp_ge_u32 %s, 0x%x" % (s(sSpin), SPIN_LIMIT))
        a("    s_cbranch_scc1 L_REDO%d" % u)
        a("    s_mov_b64 exec, vcc")
        loads()
        a("    s_waitcnt vmcnt(0)")
        for i in range(n):
            strip(i, i == 0)
        verdict()
        a("    s_cbranch_vccnz L_RETRY%d" % u)
        a("L_REDO%d:" % u)
        a("    s_mov_b64 exec, -1")
        for i in range(n):
            acc(i)
        a("    s_branch L_OK%d" % u)
        a("L_FIRST%d:" % u)
        if before:
            before()
        for i in range(n):
            if ordered or i == 0:
                a("    s_waitcnt vmcnt(%d)" % (n - 1 - i + younger if ordered else 0))
            strip(i, i == 0)
            if i == n - 1:
                verdict()
            acc(i)
        a("    s_cbranch_vccnz L_RETRY%d" % u)
        a("L_OK%d:" % u)
        if prof and cnt is not None and not opt.get("astamps"):
            a("    s_mov_b32 %s, %s" % (s(sPROF + 2 * cnt), s(sSpin)))

    def allred_hi(r, tmp, op):
        for sh in (4, 8):
            a("    v_%s_f32_dpp %s, %s, %s row_ror:%d %s" % (op, v(r), v(r), v(r), sh, DPP))
        for sw in ("16", "32"):
            a("    v_mov_b32 %s, %s" % (v(tmp), v(r)))
            a("    v_permlane%s_swap_b32 %s, %s" % (sw, v(r), v(tmp)))
            a("    v_%s_f32 %s, %s, %s" % (op, v(r), v(r), v(tmp)))

    def rowpack(r, dst, n):
        a("    v_mov_b32_dpp %s, %s quad_perm:[1,1,3,3] %s" % (v(r + 1), v(r), DPP))
        a("    v_cvt_pk_bf16_f32 %s, %s, %s" % (v(r + 1), v(r), v(r + 1)))
        for i in range(n):
            a("    v_mov_b32_dpp %s, %s row_newbcast:%d %s" % (v(dst + i), v(r + 1), 2 * i, DPP))

    def treduce4(r):
        a("    v_permlane32_swap_b32 %s, %s" % (v(r), v(r + 2)))
        a("    v_permlane32_swap_b32 %s, %s" % (v(r + 1), v(r + 3)))
        a("    v_add_f32 %s, %s, %s" % (v(r), v(r), v(r + 2)))
        a("    v_add_f32 %s, %s, %s" % (v(r + 1), v(r + 1), v(r + 3)))
        a("    v_permlane16_swap_b32 %s, %s" % (v(r), v(r + 1)))
        a("    v_add_f32 %s, %s, %s" % (v(r), v(r), v(r + 1)))

    hdr = open(os.path.join(os.path.dirname(os.path.abspath(__file__)), "..", "cdna_kernels", NAME + ".s.ref")).read()
    head = [l for l in hdr.split("\n") if l.startswith("; Kernarg") or l.startswith(";   offset")]
    out = "\n".join(head) + "\n"
    doc = """
One persistent launch: 256 workgroups (one per CU, all co-resident) x 8 waves.  wg = 8 j + h.
  every wg : LN(x), a 128-row x 64-column piece of q = LN(x) wq, then flash-decoding of KV head h
             over keys 128 j .. 128 j + 127 of the window (true max per chunk, combined later)
  j < 16   : combines the 32 chunks of head group h for 64 of its dims and multiplies by a 256 x 64 piece of wo
  112 wgs  : h = x + attn, LN(h) folded around the products, 16 columns of gate / up, 16 rows of w_down;
             32 of their waves add the 112 partial results and write the output
Hand-offs go through d_ws with write-through stores.  Every word handed over carries a tag taken from an
epoch word (read at entry, advanced at the end), so a launch never takes an earlier launch's words for its own;
a consumer reloads until every tag matches.  Small hint words only tell a consumer when a first look is worth it.
All waits are bounded.
"""
    out += "".join("; " + l + "\n" for l in doc.strip().split("\n"))
    out += "; @launch grid=(256,1,1) block=(512,1,1) lds=%d\n" % LDS_BYTES
    a('.amdgcn_target "amdgcn-amd-amdhsa--gfx950"')
    a(".text")
    a(".globl %s_kernel" % NAME)
    a(".p2align 8")
    a(".type %s_kernel,@function" % NAME)
    a("%s_kernel:" % NAME)

    vL = 0
    vM = V(4, 4)
    vSink = V() if opt.get("vt", 0) else None
    vTag8, vTag10, vG0 = V(), V(), V()
    vL3, vL7, vG, vJ = V(), V(), V(), V()
    vRedW, vRedR, vRedR8, vC4 = V(), V(), V(), V()
    vD = V(4, 4)
    vT = V(8, 4)
    vV0 = V(4)
    vV1 = vV0 + 1
    vW = V(16, 4)
    vAk = V(4)
    vKo = V(4)
    vAq, vAqw, vAmw, vAmr, vAlw, vApw, vApr, vAv, vAo, vAlr, vQo = [V() for _ in range(11)]
    mk = V.mark()

    def attn_addresses():
        a("    s_lshl_b32 %s, %s, 12" % (s(sT0), s(sW)))
        a("    v_xor_b32 %s, %s, %s" % (v(vT), v(vJ), v(vG)))
        a("    v_lshlrev_b32 %s, 4, %s" % (v(vT), v(vT)))
        a("    v_lshl_or_b32 %s, %s, 8, %s" % (v(vT), v(vJ), v(vT)))
        a("    v_add_u32 %s, %s, %s" % (v(vAk), s(sT0), v(vT)))
        for i in (1, 2, 3):
            a("    v_xor_b32 %s, 0x%x, %s" % (v(vAk + i), 64 * i, v(vAk)))
        a("    v_and_b32 %s, 3, v0" % v(vT))
        a("    v_mul_u32_u24 %s, 272, %s" % (v(vT + 1), v(vT)))
        a("    v_lshl_add_u32 %s, %s, 4, %s" % (v(vT + 2), v(vG), v(vT + 1)))
        a("    v_add_u32 %s, 0x%x, %s" % (v(vAq), LQ, v(vT + 2)))
        a("    v_add_u32 %s, 0x%x, %s" % (v(vApr), LP, v(vT + 2)))
        a("    s_lshr_b32 %s, %s, 1" % (s(sT0), s(sW)))
        a("    s_and_b32 %s, %s, 1" % (s(sT1), s(sW)))
        a("    s_lshl_b32 %s, %s, 6" % (s(sT2), s(sT0)))
        a("    s_lshl_b32 %s, %s, 3" % (s(sT3), s(sT1)))
        a("    s_add_u32 %s, %s, %s" % (s(sT2), s(sT2), s(sT3)))
        a("    v_add_u32 %s, %s, %s" % (v(vApw), s(sT2), v(vApr)))
        a("    s_mul_i32 %s, %s, 272" % (s(sT0), s(sT0)))
        a("    s_lshl_b32 %s, %s, 7" % (s(sT1), s(sT1)))
        a("    s_add_u32 %s, %s, %s" % (s(sT0), s(sT0), s(sT1)))
        a("    s_add_u32 %s, %s, 0x%x" % (s(sT0), s(sT0), LQ))
        a("    v_lshl_add_u32 %s, %s, 2, %s" % (v(vT + 3), v(vJ), v(vG)))
        a("    v_lshl_add_u32 %s, %s, 1, %s" % (v(vAqw), v(vT + 3), s(sT0)))
        a("    v_lshlrev_b32 %s, 5, %s" % (v(vT + 1), v(vT)))
        a("    v_add_u32 %s, 0x%x, %s" % (v(vAmr), LMX, v(vT + 1)))
        a("    s_lshl_b32 %s, %s, 2" % (s(sT0), s(sW)))
        a("    v_add_u32 %s, %s, %s" % (v(vAmw), s(sT0), v(vAmr)))
        a("    s_lshl_b32 %s, %s, 4" % (s(sT0), s(sW)))
        a("    s_add_u32 %s, %s, 0x%x" % (s(sT0), s(sT0), LLS))
        a("    v_lshlrev_b32 %s, 7, %s" % (v(vT + 1), v(vT)))
        a("    v_lshl_add_u32 %s, %s, 2, %s" % (v(vT + 1), v(vG), v(vT + 1)))
        a("    v_add_u32 %s, %s, %s" % (v(vAlw), s(sT0), v(vT + 1)))
        a("    v_lshrrev_b32 %s, 2, v0" % v(vT + 1))
        a("    v_lshlrev_b32 %s, 3, %s" % (v(vT + 1), v(vT + 1)))
        a("    v_lshl_add_u32 %s, %s, 7, %s" % (v(vT + 1), v(vT), v(vT + 1)))
        a("    v_add_u32 %s, 0x%x, %s" % (v(vAlr), LLS, v(vT + 1)))
        a("    v_lshrrev_b32 %s, 2, %s" % (v(vT + 1), v(vJ)))
        a("    v_lshl_add_u32 %s, %s, 2, %s" % (v(vT + 1), v(vG), v(vT + 1)))
        a("    v_and_b32 %s, 7, %s" % (v(vT + 2), v(vT + 1)))
        a("    v_lshlrev_b32 %s, 1, %s" % (v(vT + 2), v(vT + 2)))
        a("    v_bfe_u32 %s, v0, 1, 1" % v(vT + 3))
        a("    s_lshl_b32 %s, %s, 1" % (s(sT0), s(sW)))
        a("    v_add_u32 %s, %s, %s" % (v(vT + 3), s(sT0), v(vT + 3)))
        a("    v_xor_b32 %s, %s, %s" % (v(vT + 2), v(vT + 2), v(vT + 3)))
        a("    v_lshlrev_b32 %s, 4, %s" % (v(vT + 2), v(vT + 2)))
        a("    v_lshl_or_b32 %s, %s, 8, %s" % (v(vT + 1), v(vT + 1), v(vT + 2)))
        a("    v_and_b32 %s, 1, v0" % v(vT + 2))
        a("    v_lshl_or_b32 %s, %s, 3, %s" % (v(vT + 1), v(vT + 2), v(vT + 1)))
        a("    v_add_u32 %s, 0x%x, %s" % (v(vAv), LV, v(vT + 1)))
        a("    s_lshl_b32 %s, %s, 5" % (s(sT0), s(sH)))
        a("    s_add_u32 %s, %s, %s" % (s(sT0), s(sT0), s(sJ)))
        a("    s_lshl_b32 %s, %s, 6" % (s(sT2), s(sT0)))
        a("    s_add_u32 %s, %s, 0x%x" % (s(sT2), s(sT2), S2ML))
        base(sBml, sWS, s(sT2))
        if opt.get("sb2", 0):
            per = 32 // P2
            a("    s_lshl_b32 %s, %s, %d" % (s(sT0), s(sH), RS2 + 4))
            a("    s_and_b32 %s, %s, %d" % (s(sT1), s(sJ), per - 1))
            a("    s_add_u32 %s, %s, %s" % (s(sT0), s(sT0), s(sT1)))
            a("    s_lshr_b32 %s, %s, %d" % (s(sT1), s(sJ), per.bit_length() - 1))
            a("    s_lshl_b32 %s, %s, 7" % (s(sT1), s(sT1)))
            a("    s_add_u32 %s, %s, %s" % (s(sT0), s(sT0), s(sT1)))
            a("    s_add_u32 %s, %s, 0x%x" % (s(sT0), s(sT0), SRDY))
            base(sBfl, sWS, s(sT0))

    a("    s_cmp_ge_u32 s2, 0x100")
    a("    s_cbranch_scc1 L_END")
    a("    s_load_dwordx16 s[4:19], s[0:1], 0x0")
    a("    s_load_dwordx8 s[20:27], s[0:1], 0x40")
    if opt.get("diagspin"):
        a("    s_memrealtime s[96:97]")
    if prof == 2:
        for i in range(1, 12):
            a("    s_mov_b32 %s, 0" % s(sPROF + 2 * i))
    stamp(0)
    vXo = vAo
    vXSo, vWQ0, vWQ1 = V(), V(), V()
    vXf = V(4, 4)
    vXs = V()
    KVM = 0
    OCLR = 0
    sIdx = sDummy + 0
    a("    v_lshrrev_b32 %s, 6, v0" % v(vT))
    a("    v_and_b32 v0, 63, v0")
    a("    s_lshr_b32 %s, s2, 3" % s(sJ))
    a("    v_readfirstlane_b32 %s, %s" % (s(sW), v(vT)))
    a("    s_and_b32 %s, s2, 7" % s(sH))
    a("    v_lshlrev_b32 %s, 4, v0" % v(vXo))
    a("    v_lshrrev_b32 %s, 3, v0" % v(vL3))
    a("    v_and_b32 %s, 0x70, %s" % (v(vT), v(vXo)))
    a("    v_lshlrev_b32 %s, 2, %s" % (v(vXSo), v(vL3)))
    a("    v_lshl_or_b32 %s, %s, 14, %s" % (v(vWQ0), v(vL3), v(vT)))
    a("    s_and_b32 %s, %s, 24" % (s(sT0), s(sJ)))
    a("    s_add_u32 %s, %s, %s" % (s(sT0), s(sT0), s(sW)))
    a("    s_and_b32 %s, %s, 7" % (s(sT3), s(sJ)))
    a("    s_lshl3_add_u32 %s, %s, %s" % (s(sT3), s(sH), s(sT3)))
    a("    s_lshl_b32 %s, %s, 10" % (s(sT1), s(sT0)))
    a("    s_add_u32 %s, %s, %s" % (s(sT1), s(sT1), s(sT3)))
    a("    s_lshl_b32 %s, %s, 7" % (s(sT1), s(sT1)))
    a("    s_lshl_b32 %s, %s, 5" % (s(sT0), s(sT0)))
    a("    v_add_u32 %s, 0x2000, %s" % (v(vWQ1), v(vWQ0)))

    def later():
        a("    v_lshrrev_b32 %s, 4, v0" % v(vG))
        a("    v_and_b32 %s, 15, v0" % v(vJ))
        a("    s_lshl3_add_u32 %s, %s, %s" % (s(sT3), s(sJ), s(sW)))
        a("    s_lshl_b32 %s, %s, 12" % (s(sT2), s(sH)))
        a("    v_xor_b32 %s, %s, %s" % (v(vT), v(vJ), v(vG)))
        a("    s_add_u32 %s, %s, %s" % (s(sT2), s(sT2), s(sT3)))
        a("    v_lshlrev_b32 %s, 4, %s" % (v(vT), v(vT)))
        a("    s_add_u32 %s, %s, 0xf00" % (s(sT2), s(sT2)))
        a("    v_lshl_or_b32 %s, %s, 8, %s" % (v(vKo), v(vG), v(vT)))
        a("    s_lshl_b32 %s, %s, 12" % (s(sT2), s(sT2)))
        a("    s_lshl_b32 %s, %s, 12" % (s(sTmp), s(sW)))
        a("    s_mov_b32 m0, %s" % s(sTmp))
    PL = opt.get("pl", 1)
    if not PL:
        later()
    a.c("x, this wave's 16 rows of wq, first K piece (LDS-DMA, bank-swizzled through the source address)")
    a("    s_waitcnt lgkmcnt(0)")
    T2 = opt.get("touch2", 0)
    if T2:
        assert not PL
        a("    s_cmp_eq_u32 %s, 1" % s(sW))
        a("    s_cselect_b64 %s, %s, %s" % (s(sB4, 2), s(sWQ, 2), s(sK, 2)))
        a("    s_cselect_b32 %s, %s, %s" % (s(sDummy), s(sT1), s(sT2)))
        a("    s_cmp_gt_u32 %s, 1" % s(sW) if T2 == 1 else "    s_cmp_gt_u32 %s, 1" % s(sT3))
        a("    s_cbranch_scc1 L_NOT2")
        a("    s_load_dword %s, %s, %s" % (s(sDummy), s(sB4, 2), s(sDummy)))
        a("L_NOT2:")
    LN0 = opt.get("ln0", 0)
    if LN0:
        a("    s_cmp_lg_u32 %s, 0" % s(sW))
        a("    s_cbranch_scc1 L_NOX")
        a("    global_load_dwordx4 %s, %s, %s" % (v(vXf, 4), v(vXo), s(sX, 2)))
        a("L_NOX:")
        a("    s_add_u32 %s, %s, 0x%x" % (s(sB0), s(sT0), LH))
    else:
        a("    global_load_dwordx4 %s, %s, %s" % (v(vXf, 4), v(vXo), s(sX, 2)))
        base(sB0, sX, s(sT0))
        a("    global_load_dword %s, %s, %s" % (v(vXs), v(vXSo), s(sB0, 2)))
    base(sB1, sWQ, s(sT1))
    if opt.get("bx", 0):
        a("    s_barrier")
    a("    global_load_dwordx4 %s, %s, %s nt" % (v(vW, 4), v(vWQ0), s(sB1, 2)))
    a("    global_load_dwordx4 %s, %s, %s nt" % (v(vW + 4, 4), v(vWQ1), s(sB1, 2)))
    vm.extend(["x", "xs", "wq0", "wq1"])
    if PL:
        later()
    base(sB2, sK, s(sT2))
    VT = opt.get("vt", 0)

    def vtouch():
        a("    s_cmp_lg_u32 %s, 7" % s(sW))
        a("    s_cbranch_scc1 L_NOVT")
        base(sB3, sVp, s(sT2))
        a("    s_lshl_b32 %s, %s, 19" % (s(sT1), s(sH)))
        base(sB4, sWO, s(sT1))
        a("    v_mov_b32 %s, %s" % (v(vD), s(sB3)))
        a("    v_mov_b32 %s, %s" % (v(vD + 1), s(sB3 + 1)))
        for k, p in enumerate((sWS, sB4, sWG, sWU, sWD)):
            a("    v_writelane_b32 %s, %s, %d" % (v(vD), s(p), k + 1))
            a("    v_writelane_b32 %s, %s, %d" % (v(vD + 1), s(p + 1), k + 1))
        a("    s_lshl_b32 %s, s2, 7" % s(sT1))
        a("    s_add_u32 %s, %s, 0x20000" % (s(sT1), s(sT1)))
        setexec(0x3E, 0)
        a("    v_add_co_u32 %s, vcc, %s, %s" % (v(vD), s(sT1), v(vD)))
        a("    v_addc_co_u32 %s, vcc, 0, %s, vcc" % (v(vD + 1), v(vD + 1)))
        setexec(0x3F, 0)
        a("    global_load_dword %s, %s, off nt" % (v(vSink), v(vD, 2)))
        setexec(0xFFFFFFFF, 0xFFFFFFFF)
        a("L_NOVT:")
    if VT == 1:
        vtouch()
    if opt.get("b0", 1):
        a("    s_barrier")
    WIN = opt.get("win", 3)
    QPOS = opt.get("qpos", 7)
    stream = ["wq0", "wq1", "K0", "K1", "K2", "K3", "V0", "V1", "V2", "V3"]

    def sload(i):
        nm = stream[i]
        k = int(nm[1])
        if KVM == 2:
            if nm[0] == "K":
                a("    s_add_u32 m0, %s, %s" % (s(92), s(sRot + k)))
                a("    global_load_lds_dwordx4 %s, %s nt" % (v(vKo + k), s(sB2, 2)))
            else:
                a("    s_add_u32 m0, %s, %s" % (s(sTmp), s(sRot + k)))
                a("    global_load_lds_dwordx4 %s, %s nt" % (v(vV0 + k), s(sB3, 2)))
        elif nm[0] == "K":
            a("    global_load_lds_dwordx4 %s, %s offset:%d nt" % (v(vKo + k), s(sB2, 2), 1024 * k))
        else:
            if k == 0:
                a("    s_mov_b32 m0, %s" % s(sTmp))
            a("    global_load_lds_dwordx4 %s, %s offset:%d nt" % (v(vV0 + k) if KVM else v(vV1 if k & 1 else vV0), s(sB3, 2), 1024 * k))
        vm.append(nm)
    assert WIN == 3
    WIN0 = opt.get("win0", WIN)
    for i in range(2, WIN0):
        if i > 2:
            a("    v_xor_b32 %s, 0x%x, %s" % (v(vKo + i - 2), 64 * (i - 2), v(vKo)))
        sload(i)
    if VT == 2:
        vtouch()
    base(sB3, sVp, s(sT2))
    for i in (1, 2, 3):
        a("    v_xor_b32 %s, 0x%x, %s" % (v(vKo + i), 64 * i, v(vKo)))
    a("    v_and_b32 %s, 7, v0" % v(vL7))
    a("    s_lshl_b32 %s, %s, 5" % (s(sT1), s(sH)))
    a("    s_add_u32 %s, %s, %s" % (s(sT1), s(sT1), s(sJ)))
    a("    s_mul_i32 %s, %s, %d" % (s(sT1), s(sT1), ST2))
    a("    s_lshl_b32 %s, %s, 8" % (s(sT0), s(sW)))
    a("    s_add_u32 %s, %s, %s" % (s(sT1), s(sT1), s(sT0)))
    a("    s_add_u32 %s, %s, 0x%x" % (s(sT1), s(sT1), S2O))
    base(sBo, sWS, s(sT1))
    E0 = opt.get("e0", 1)
    a("    s_lshl_b32 %s, %s, 3" % (s(sT0), s(sJ)))
    a("    s_add_u32 %s, %s, %s" % (s(sT0), s(sT0), s(sW)))
    if E0:
        a("    s_cmp_lg_u32 %s, %d" % (s(sW), 1 if LN0 else 0))
        a("    s_cbranch_scc1 L_NOE")
        if opt.get("prio", 0) == 1:
            a("    s_setprio 3")
    a("    s_load_dword %s, %s, 0x%x" % (s(sE), s(sWS, 2), EPOCH))
    a("L_NOE:")
    if opt.get("prio", 0) == 2:
        a("    s_cmp_lt_u32 %s, 4" % s(sW))
        a("    s_cbranch_scc1 L_NOPR")
        a("    s_setprio 1")
        a("L_NOPR:")
    a("    s_getpc_b64 %s" % s(sPC, 2))
    a("L_PC:")
    if opt.get("pf", 1):
        if LN0:
            a("    s_cmp_eq_u32 %s, 0" % s(sW))
            a("    s_cbranch_scc1 L_NOPF")
            a("    s_sub_u32 %s, %s, %s" % (s(sT1), s(sT0), s(sJ)))
            a("    s_sub_u32 %s, %s, 1" % (s(sT1), s(sT1)))
        else:
            a("    s_mov_b32 %s, %s" % (s(sT1), s(sT0)))
        a("    s_cmp_gt_u32 %s, (L_CODE_END-L_PC-4)/128" % s(sT1))
        a("    s_cbranch_scc1 L_NOPF")
        a("    s_lshl_b32 %s, %s, 7" % (s(sT1), s(sT1)))
        a("    s_load_dword %s, %s, %s" % (s(sDummy), s(sPC, 2), s(sT1)))
        a("L_NOPF:")
    if opt.get("touch", 1):
        a("    s_xor_b32 %s, %s, %d" % (s(sT1), s(sH), opt.get("dh", 0)))
        a("    s_lshl_b32 %s, %s, 19" % (s(sT1), s(sT1)))
        base(sB4, sWO, s(sT1))
        for k, p in enumerate((sB3, sWG, sWU, sWD, sOUT)):
            a("    s_cmp_eq_u32 %s, %d" % (s(sT0), 8 * (17 + k) + 7))
            a("    s_cselect_b64 %s, %s, %s" % (s(sB4, 2), s(p, 2), s(sB4, 2)))
        a("    s_sub_u32 %s, %s, %d" % (s(sT1), s(sT0), 8 * 16 + 7))
        a("    s_and_b32 %s, %s, 0xffffffc7" % (s(sT3), s(sT1)))
        a("    s_cmp_lg_u32 %s, 0" % s(sT3))
        a("    s_cbranch_scc1 L_NOTOUCH")
        a("    s_load_dword %s, %s, 0x0" % (s(sDummy), s(sB4, 2)))
        a("L_NOTOUCH:")
    a("    v_lshlrev_b32 %s, 1, %s" % (v(vT), v(vG)))
    a("    v_xor_b32 %s, %s, %s" % (v(vT), v(vJ), v(vT)))
    a("    v_lshlrev_b32 %s, 4, %s" % (v(vT), v(vT)))
    a("    v_lshl_or_b32 %s, %s, 8, %s" % (v(vV0), v(vG), v(vT)))
    a("    v_xor_b32 %s, 0x80, %s" % (v(vV1), v(vV0)))
    if KVM == 2:
        for i in (3, 2, 1, 0):
            a("    s_lshr_b32 %s, %s, 3" % (s(sT0), s(sRot + i)))
            a("    s_and_b32 %s, %s, 0x80" % (s(sT0), s(sT0)))
            a("    s_or_b32 %s, %s, %s" % (s(sT0), s(sT0), s(sRot + i)))
            a("    v_xor_b32 %s, %s, %s" % (v(vV0 + i), s(sT0), v(vV0)))
    if KVM == 1:
        a("    v_add_u32 %s, 0x%x, %s" % (v(vV0 + 3), 7168 * 3, v(vV1)))
        a("    v_add_u32 %s, 0x%x, %s" % (v(vV0 + 2), 7168 * 2, v(vV0)))
        a("    v_add_u32 %s, 0x%x, %s" % (v(vV1), 7168, v(vV1)))
    a("    s_add_u32 %s, %s, 0x%x" % (s(sTmp), s(sTmp), LV))
    a("    v_and_b32 %s, 1, v0" % v(vT))
    a("    v_lshlrev_b32 %s, 4, %s" % (v(vT), v(vT)))
    a("    v_lshlrev_b32 %s, %s, %s" % (v(vT + 1), v(vT), v(vT + 2)) if False else
      "    v_mov_b32 %s, 0xffff" % v(vT + 1))
    a("    v_lshlrev_b32 %s, %s, %s" % (v(vT + 1), v(vT), v(vT + 1)))
    a("    v_lshrrev_b32 %s, 1, %s" % (v(vT), v(vL7)))
    for r in range(4):
        a("    v_cmp_eq_u32 vcc, %d, %s" % (r, v(vT)))
        a("    v_cndmask_b32 %s, 0, %s, vcc" % (v(vM + r), v(vT + 1)))
    a("    v_lshrrev_b32 %s, 5, v0" % v(vT))
    a("    s_lshl_b32 %s, %s, 1" % (s(sT0), s(sW)))
    a("    v_add_u32 %s, %s, %s" % (v(vT), s(sT0), v(vT)))
    a("    v_mul_u32_u24 %s, 272, %s" % (v(vT), v(vT)))
    a("    v_and_b32 %s, 1, %s" % (v(vT + 1), v(vG)))
    a("    v_lshl_or_b32 %s, %s, 1, %s" % (v(vT + 1), v(vL7), v(vT + 1)))
    a("    v_lshl_add_u32 %s, %s, 4, %s" % (v(vT), v(vT + 1), v(vT)))
    a("    v_add_u32 %s, 0x%x, %s" % (v(vRedW), LRED, v(vT)))
    a("    v_and_b32 %s, 3, v0" % v(vT))
    a("    v_lshl_add_u32 %s, %s, 2, %s" % (v(vC4), v(vG), v(vT)))
    a("    v_lshlrev_b32 %s, 4, %s" % (v(vC4), v(vC4)))
    a("    v_bfe_u32 %s, v0, 2, 2" % v(vT))
    a("    v_mul_u32_u24 %s, 544, %s" % (v(vT), v(vT)))
    a("    v_add_u32 %s, %s, %s" % (v(vT + 1), v(vC4), v(vT)))
    a("    v_add_u32 %s, 0x%x, %s" % (v(vRedR8), LRED, v(vT + 1)))
    a("    v_add_u32 %s, %s, %s" % (v(vRedR), v(vRedR8), v(vT)))
    a("    s_mov_b32 %s, 0x3db504f3" % s(sScale))
    a("    s_mov_b32 %s, 0x3fb8aa3b" % s(sScale + 1))
    a("    s_mov_b32 %s, 0xffffff00" % s(sM8))
    a("    s_mov_b32 %s, 0xfffffc00" % s(sM10))

    def s1bases():
        a("    s_mul_i32 %s, %s, %d" % (s(sT0), s(sH), 4 * ST1))
        a("    s_add_u32 %s, %s, 0x%x" % (s(sT0), s(sT0), S1))
        a("    s_lshr_b32 %s, %s, 3" % (s(sT1), s(sJ)))
        a("    s_mul_i32 %s, %s, %d" % (s(sT1), s(sT1), ST1 - 2048))
        a("    s_add_u32 %s, %s, %s" % (s(sT2), s(sT1), s(sT0)))
        a("    s_lshl_b32 %s, %s, 8" % (s(sT1), s(sJ)))
        a("    s_add_u32 %s, %s, %s" % (s(sT1), s(sT1), s(sT2)))
        base(sB0, sWS, s(sT1))
        a("    s_lshl_b32 %s, %s, 8" % (s(sT1), s(sW)))
        a("    s_add_u32 %s, %s, %s" % (s(sT1), s(sT1), s(sT0)))
        base(sB1, sWS, s(sT1))

    a.c("LayerNorm of x, rounded to bf16 where the reference rounds")
    vXu = V(8, 4)
    vXk = V(8, 4)
    if LN0:
        a("    v_add_u32 %s, %s, %s" % (v(vXSo), s(sB0), v(vXSo)))
        a("    s_cmp_lg_u32 %s, 0" % s(sW))
        a("    s_cbranch_scc1 L_NOLN")
    def qoff():
        a("    v_lshlrev_b32 %s, 4, %s" % (v(vQo), v(vJ)))
        a("    v_mul_u32_u24 %s, %d, %s" % (v(vG0), ST1, v(vG)))
        a("    v_add_u32 %s, %s, %s" % (v(vQo), v(vG0), v(vQo)))
    if opt.get("lq", 0):
        qoff()
        a("    v_mov_b32 %s, 0x3f803f80" % v(vXu))
        s1bases()
    LNL = opt.get("lnl", 0)

    def k12():
        waitfor("wq0")
        for i in range(WIN0, WIN + 1):
            sload(i)
        waitfor("wq1")
        sload(WIN + 1)
    if LNL == 1:
        k12()
    else:
        waitfor("xs")
    stamp(1)
    LQ2 = opt.get("lq", 0)
    if LQ2:
        for i in range(4):
            a("    v_dot2_f32_bf16 %s, %s, %s, %s" % (v(vT + 1), v(vXf + i), v(vXf + i), "0" if i == 0 else v(vT + 1)))
            a("    v_dot2_f32_bf16 %s, %s, %s, %s" % (v(vT), v(vXf + i), v(vXu), "0" if i == 0 else v(vT)))
    else:
        for i in range(4):
            a("    v_lshlrev_b32 %s, 16, %s" % (v(vXu + 2 * i), v(vXf + i)))
            a("    v_and_b32 %s, 0xffff0000, %s" % (v(vXu + 2 * i + 1), v(vXf + i)))
        for i in range(4):
            a("    v_add_f32 %s, %s, %s" % (v(vT + i), v(vXu + 2 * i), v(vXu + 2 * i + 1)))
        a("    v_add_f32 %s, %s, %s" % (v(vT), v(vT), v(vT + 1)))
        a("    v_add_f32 %s, %s, %s" % (v(vT + 2), v(vT + 2), v(vT + 3)))
        a("    v_add_f32 %s, %s, %s" % (v(vT), v(vT), v(vT + 2)))
    if opt.get("ln1p", 0):
        if not LQ2:
            a("    v_mul_f32 %s, %s, %s" % (v(vT + 1), v(vXu), v(vXu)))
            a("    v_mul_f32 %s, %s, %s" % (v(vT + 2), v(vXu + 1), v(vXu + 1)))
            for i in range(2, 8):
                a("    v_fmac_f32 %s, %s, %s" % (v(vT + 1 + (i & 1)), v(vXu + i), v(vXu + i)))
            a("    v_add_f32 %s, %s, %s" % (v(vT + 1), v(vT + 1), v(vT + 2)))
        for sh in (1, 2, 4, 8):
            for r in range(2):
                a("    v_add_f32_dpp %s, %s, %s row_ror:%d %s" % (v(vT + r), v(vT + r), v(vT + r), sh, DPP))
        for pat in ("row_bcast:15 row_mask:0xa", "row_bcast:31 row_mask:0xc"):
            for r in range(2):
                a("    v_add_f32_dpp %s, %s, %s %s bank_mask:0xf" % (v(vT + r), v(vT + r), v(vT + r), pat))
        a("    v_mul_f32 %s, 0x3b000000, %s" % (v(vT), v(vT)))
        a("    v_mul_f32 %s, 0x3b000000, %s" % (v(vT + 1), v(vT + 1)))
        a("    v_fma_f32 %s, -%s, %s, %s" % (v(vT + 1), v(vT), v(vT), v(vT + 1)))
        a("    v_max_f32 %s, 0, %s" % (v(vT + 1), v(vT + 1)))
        a("    v_readlane_b32 %s, %s, 63" % (s(sMean), v(vT)))
        a("    v_readlane_b32 %s, %s, 63" % (s(sVar), v(vT + 1)))
    else:
        a("    v_mul_f32 %s, 0x3b000000, %s" % (v(vT), v(vT)))
        wavesum_to_sgpr(vT, sMean)
        if LNL == 2:
            k12()
        for i in range(8):
            a("    v_subrev_f32 %s, %s, %s" % (v(vXk + i), s(sMean), v(vXu + i)))
        a("    v_mul_f32 %s, %s, %s" % (v(vT), v(vXk), v(vXk)))
        a("    v_mul_f32 %s, %s, %s" % (v(vT + 1), v(vXk + 1), v(vXk + 1)))
        for i in range(2, 8):
            a("    v_fmac_f32 %s, %s, %s" % (v(vT + (i & 1)), v(vXk + i), v(vXk + i)))
        a("    v_add_f32 %s, %s, %s" % (v(vT), v(vT), v(vT + 1)))
        a("    v_mul_f32 %s, 0x3b000000, %s" % (v(vT), v(vT)))
        wavesum_to_sgpr(vT, sVar)
    a("    v_mov_b32 %s, %s" % (v(vT + 1), s(sMean)))
    bf16r(vT + 1, vT + 1)
    a("    v_mov_b32 %s, %s" % (v(vT), s(sVar)))
    bf16r(vT, vT)
    a("    v_add_f32 %s, 0x3727c5ac, %s" % (v(vT), v(vT)))
    bf16r(vT, vT)
    a("    v_sqrt_f32 %s, %s" % (v(vT), v(vT)))
    bf16r(vT, vT)
    a("    v_rcp_f32 %s, %s" % (v(vT + 2), v(vT)))
    vA = V(8, 4)
    if LN0:
        for i in range(0, 8, 2):
            a("    v_pk_add_f32 %s, %s, %s op_sel:[0,1] op_sel_hi:[1,1] neg_lo:[0,1] neg_hi:[0,1]" % (v(vXu + i, 2), v(vXu + i, 2), v(vT, 2)))
        for i in range(4):
            a("    v_cvt_pk_bf16_f32 %s, %s, %s" % (v(vXf + i), v(vXu + 2 * i), v(vXu + 2 * i + 1)))
        for i in range(4):
            a("    v_lshlrev_b32 %s, 16, %s" % (v(vXu + 2 * i), v(vXf + i)))
            a("    v_and_b32 %s, 0xffff0000, %s" % (v(vXu + 2 * i + 1), v(vXf + i)))
        for i in range(0, 8, 2):
            a("    v_pk_mul_f32 %s, %s, %s op_sel_hi:[1,0]" % (v(vXk + i, 2), v(vXu + i, 2), v(vT + 2, 2)))
        for i in range(0, 8, 2):
            a("    v_pk_fma_f32 %s, %s, %s, %s op_sel_hi:[1,0,1] neg_lo:[1,0,0] neg_hi:[1,0,0]" %
              (v(vXu + i, 2), v(vXk + i, 2), v(vT, 2), v(vXu + i, 2)))
        for i in range(0, 8, 2):
            a("    v_pk_fma_f32 %s, %s, %s, %s op_sel_hi:[1,0,1]" % (v(vXk + i, 2), v(vXu + i, 2), v(vT + 2, 2), v(vXk + i, 2)))
        for i in range(4):
            a("    v_cvt_pk_bf16_f32 %s, %s, %s" % (v(vXf + i), v(vXk + 2 * i), v(vXk + 2 * i + 1)))
        a("    v_add_u32 %s, 0x%x, %s" % (v(vT), LH, v(vXo)))
        a("    ds_write_b128 %s, %s" % (v(vT), v(vXf, 4)))
        a("    s_waitcnt lgkmcnt(0)")
        a("    s_load_dword %s, %s, 0x%x" % (s(sE), s(sWS, 2), EPOCH))
        a("L_NOLN:")
        a("    s_barrier")
        a("    ds_read_b32 %s, %s" % (v(vXs), v(vXSo)))
        a("    s_mov_b32 %s, 0x01000100" % s(sT0))
        a("    s_mov_b32 %s, 0x03020302" % s(sT1))

        def xoperand():
            a("    s_waitcnt lgkmcnt(0)")
            for i in range(2):
                a("    v_perm_b32 %s, %s, %s, %s" % (v(vT + 5 + i), v(vXs), v(vXs), s(sT0 + i)))
            for i in range(2):
                for r in range(4):
                    a("    v_and_b32 %s, %s, %s" % (v(vA + 4 * i + r), v(vT + 5 + i), v(vM + r)))
        if LN0 == 1:
            xoperand()
    elif LQ2:
        a("    v_lshlrev_b32 %s, 16, %s" % (v(vT + 4), v(vXs)))
        a("    v_and_b32 %s, 0xffff0000, %s" % (v(vT + 5), v(vXs)))
        a("    v_pk_add_f32 %s, %s, %s op_sel:[0,1] op_sel_hi:[1,1] neg_lo:[0,1] neg_hi:[0,1]" % (v(vT + 4, 2), v(vT + 4, 2), v(vT, 2)))
        a("    v_cvt_pk_bf16_f32 %s, %s, %s" % (v(vT + 5), v(vT + 4), v(vT + 5)))
        a("    v_lshlrev_b32 %s, 16, %s" % (v(vT + 4), v(vT + 5)))
        a("    v_and_b32 %s, 0xffff0000, %s" % (v(vT + 5), v(vT + 5)))
        a("    v_pk_mul_f32 %s, %s, %s op_sel_hi:[1,0]" % (v(vT + 6, 2), v(vT + 4, 2), v(vT + 2, 2)))
        a("    v_pk_fma_f32 %s, %s, %s, %s op_sel_hi:[1,0,1] neg_lo:[1,0,0] neg_hi:[1,0,0]" % (v(vT + 4, 2), v(vT + 6, 2), v(vT, 2), v(vT + 4, 2)))
        a("    v_pk_fma_f32 %s, %s, %s, %s op_sel_hi:[1,0,1]" % (v(vT + 6, 2), v(vT + 4, 2), v(vT + 2, 2), v(vT + 6, 2)))
        for i in range(2):
            a("    v_cvt_pk_bf16_f32 %s, %s, %s" % (v(vT + 6 + i), v(vT + 6 + i), v(vT + 6 + i)))
        for i in range(2):
            for r in range(4):
                a("    v_and_b32 %s, %s, %s" % (v(vA + 4 * i + r), v(vT + 6 + i), v(vM + r)))
    else:
        a("    v_lshlrev_b32 %s, 16, %s" % (v(vT + 3), v(vXs)))
        a("    v_and_b32 %s, 0xffff0000, %s" % (v(vT + 4), v(vXs)))
        a("    v_sub_f32 %s, %s, %s" % (v(vT + 3), v(vT + 3), v(vT + 1)))
        a("    v_sub_f32 %s, %s, %s" % (v(vT + 4), v(vT + 4), v(vT + 1)))
        bf16r(vT + 3, vT + 3)
        bf16r(vT + 4, vT + 4)
        for i in range(2):
            y, q = vT + 3 + i, vT + 5 + i
            a("    v_mul_f32 %s, %s, %s" % (v(q), v(y), v(vT + 2)))
            a("    v_fma_f32 %s, -%s, %s, %s" % (v(y), v(q), v(vT), v(y)))
            a("    v_fmac_f32 %s, %s, %s" % (v(q), v(y), v(vT + 2)))
            a("    v_cvt_pk_bf16_f32 %s, %s, %s" % (v(q), v(q), v(q)))
            for r in range(4):
                a("    v_and_b32 %s, %s, %s" % (v(vA + 4 * i + r), v(q), v(vM + r)))
    if not LQ2:
        qoff()

    def tags():
        a("    s_add_u32 %s, %s, 1" % (s(sT32), s(sE)))
        a("    s_and_b32 %s, %s, 0xff" % (s(sTag8), s(sT32)))
        a("    s_and_b32 %s, %s, 0x3ff" % (s(sTag10), s(sT32)))
        a("    v_mov_b32 %s, %s" % (v(vTag8), s(sTag8)))
        a("    v_mov_b32 %s, %s" % (v(vTag10), s(sTag10)))
    if not E0:
        a("    s_waitcnt lgkmcnt(0)")
        tags()
    a.c("q partial: one-hot A operand turns the row-major weight registers into a GEMV")
    if not LNL:
        k12()
    if LN0 == 3:
        xoperand()
    stamp(2)
    a("    v_mfma_f32_16x16x32_bf16 %s, %s, %s, 0" % (v(vD, 4), v(vA, 4), v(vW, 4)))
    a("    v_mfma_f32_16x16x32_bf16 %s, %s, %s, %s" % (v(vD, 4), v(vA + 4, 4), v(vW + 4, 4), v(vD, 4)))

    def red_publish(nrows, tagv, mask, rnd, basepair, label, mid=None):
        a("    s_waitcnt lgkmcnt(0)")
        a("    s_barrier")
        a("    s_cmp_lg_u32 %s, 0" % s(sW))
        a("    s_cbranch_scc1 %s" % label)
        m = V.mark()
        r = V(16, 4)
        n = nrows // 4
        for i in range(n):
            a("    ds_read_b128 %s, %s offset:%d" % (v(r + 4 * i, 4), v(vRedR if n == 4 else vRedR8), 272 * i))
        if mid:
            mid()
        a("    s_waitcnt lgkmcnt(%d)" % (0 if prof else n - 2))
        a("    v_pk_add_f32 %s, %s, %s" % (v(r, 2), v(r, 2), v(r + 4, 2)))
        a("    v_pk_add_f32 %s, %s, %s" % (v(r + 2, 2), v(r + 2, 2), v(r + 6, 2)))
        if n == 4:
            a("    s_waitcnt lgkmcnt(0)")
            a("    v_pk_add_f32 %s, %s, %s" % (v(r + 8, 2), v(r + 8, 2), v(r + 12, 2)))
            a("    v_pk_add_f32 %s, %s, %s" % (v(r + 10, 2), v(r + 10, 2), v(r + 14, 2)))
            a("    v_pk_add_f32 %s, %s, %s" % (v(r, 2), v(r, 2), v(r + 8, 2)))
            a("    v_pk_add_f32 %s, %s, %s" % (v(r + 2, 2), v(r + 2, 2), v(r + 10, 2)))
        for sh in (4, 8):
            for i in range(4):
                a("    v_add_f32_dpp %s, %s, %s row_ror:%d %s" % (v(r + i), v(r + i), v(r + i), sh, DPP))
        for i in range(4):
            if rnd:
                a("    v_add_u32 %s, 0x%x, %s" % (v(r + i), rnd, v(r + i)))
        setexec(0x000F000F, 0x000F000F)
        for i in range(4):
            a("    v_and_or_b32 %s, %s, %s, %s" % (v(r + i), v(r + i), s(mask), v(tagv)))
        a("    global_store_dwordx4 %s, %s, %s%s" % (v(vC4), v(r, 4), s(basepair, 2), "" if (nrows == 16 and opt.get("xs", 0) & 4) else " sc1"))
        setexec(0xFFFFFFFF, 0xFFFFFFFF)
        V.release(m)

    if not opt.get("lq", 0):
        s1bases()
    V.release(mk)
    if E0:
        a("    s_cmp_lg_u32 %s, 0" % s(sW))
        a("    s_cbranch_scc1 L_NOE2")
        a("    s_waitcnt lgkmcnt(0)")
        tags()
        a("    v_mov_b32 %s, 0x%x" % (v(vT), LEP))
        a("    v_mov_b32 %s, %s" % (v(vT + 1), s(sE)))
        a("    ds_write_b32 %s, %s" % (v(vT), v(vT + 1)))
        if opt.get("la", 0):
            a("    v_mov_b32 %s, 0" % v(vT + 4))
            a("    v_mov_b32 %s, 0" % v(vT + 5))
            a("    v_lshlrev_b32 %s, 3, v0" % v(vT + 6))
            a("    v_add_u32 %s, 0x%x, %s" % (v(vT + 6), LGP, v(vT + 6)))
            a("    ds_write_b64 %s, %s" % (v(vT + 6), v(vT + 4, 2)))
        if opt.get("pg", 0):
            a("    v_mov_b32 %s, 0" % v(vT + 4))
            a("    ds_write_b32 %s, %s offset:%d" % (v(vT), v(vT + 4), LRM - LEP))
        if opt.get("amx", 1):
            a("    v_lshlrev_b32 %s, 2, v0" % v(vT + 2))
            a("    v_mov_b32 %s, 0xff800000" % v(vT + 3))
            a("    v_and_b32 %s, 0x7c, %s" % (v(vT + 2), v(vT + 2)))
            a("    v_add_u32 %s, 0x%x, %s" % (v(vT + 2), LMX, v(vT + 2)))
            a("    ds_write_b32 %s, %s" % (v(vT + 2), v(vT + 3)))
        a("L_NOE2:")
    setexec(0x00FF00FF, 0xFF00FF00)
    a("    ds_write_b128 %s, %s" % (v(vRedW), v(vD, 4)))
    setexec(0xFFFFFFFF, 0xFFFFFFFF)
    vQ = V(4, 4)
    vQ2 = V(4, 4)
    QP1 = opt.get("qp1", 0)
    K3F = opt.get("k3f", 0)

    def k3first():
        waitfor("K0")
        sload(5)
    a.c("cross-wave sum, wave 0 publishes 64 tagged q partials; K / V keep streaming, three pieces in flight per wave")
    keep0 = list(vm)
    red_publish(16, vTag8, sM8, 0 if opt.get("nornd") else 0x80, sB0, "L_QPUB", mid=k3first if K3F else None)

    def qload():
        a("    global_load_dwordx4 %s, %s, %s sc1" % (v(vQ, 4), v(vQo), s(sB1, 2)))

    extra = {}
    CW = opt.get("cw", 0)
    C3 = opt.get("c3", 0)

    def run_sched(text):
        for tok in text.split():
            if tok[0] == "|":
                waitfor(tok[1:])
            elif tok == "q":
                qload()
                vm.append("q")
            elif tok in stream:
                sload(stream.index(tok))
            else:
                extra[tok]()
                if len(tok) > 1:
                    vm.append(tok)

    def paced(gete=False):
        stamp(3)
        assert WIN == 3
        if "K3" not in vm:
            run_sched(["|K0 K3", "|K0 K3 V0", "K3 |K0 V0", "|K1 K3", "|K0 K3"][CW])
        if gete:
            a("    s_waitcnt lgkmcnt(0)")
            a("    v_readfirstlane_b32 %s, %s" % (s(sE), v(vT + 7)))
            a("    s_nop 0")
            tags()
        attn_addresses()
        run_sched(["|K1 V0", "|K1 V1", "|K1 V1", "|K2 V0", "|K2 V0"][CW])
        if C3:
            run_sched("|K2 V1")
    keep = keep0
    vm.append("qstore")
    DQ = opt.get("dq", 0)
    sQF = 88
    if DQ:
        a("    s_and_b32 %s, %s, 7" % (s(sT0), s(sJ)))
        a("    s_lshl3_add_u32 %s, %s, %s" % (s(sT0), s(sH), s(sT0)))
        a("    s_lshl_b32 %s, %s, 5" % (s(sT0), s(sT0)))
        a("    s_lshr_b32 %s, %s, 3" % (s(sT1), s(sJ)))
        a("    s_add_u32 %s, %s, %s" % (s(sT0), s(sT0), s(sT1)))
        a("    s_lshl_b32 %s, %s, 2" % (s(sT0), s(sT0)))
        a("    s_add_u32 %s, %s, 0x%x" % (s(sT0), s(sT0), SQF))
        setexec(1, 0)
        a("    v_mov_b32 %s, %s" % (v(vT), s(sT0)))
        a("    v_mov_b32 %s, %s" % (v(vT + 1), s(sT32)))
        a("    global_store_dword %s, %s, %s sc1" % (v(vT), v(vT + 1), s(sWS, 2)))
        setexec(0xFFFFFFFF, 0xFFFFFFFF)
        vm.append("qflag")
    paced()
    a("    s_branch L_PACED")
    a("L_QPUB:")
    vm[:] = keep
    if E0:
        a("    v_mov_b32 %s, 0x%x" % (v(vT + 7), LEP))
        a("    ds_read_b32 %s, %s" % (v(vT + 7), v(vT + 7)))
    paced(E0)
    a("L_PACED:")
    if DQ:
        a("    s_lshl3_add_u32 %s, %s, %s" % (s(sT0), s(sH), s(sW)))
        a("    s_lshl_b32 %s, %s, 7" % (s(sT0), s(sT0)))
        a("    s_add_u32 %s, %s, 0x%x" % (s(sT0), s(sT0), SQF))
        a("    s_load_dwordx4 %s, %s, %s glc" % (s(sQF, 4), s(sWS, 2), s(sT0)))
        a("    s_mov_b32 %s, %s" % (s(sRep), s(sT32)))
        a("    s_mov_b32 %s, %s" % (s(sRep + 1), s(sT32)))
    common = list(vm)
    SCHED = {
        "s": ["|K2 V1 |K3 V2 q |V0 V3"],
        "w": ["|K2 V1 |K3 V2 q |V0 V3 A |V1 T0 B",
              "|K2 V1 |K3 V2 q |V0 V3 A T0 |V1 T1 B",
              "|K2 V1 |K3 V2 q V3 A |V0 T0 |V1 T1 B",
              "|K2 V1 |K3 V2 q V3 A |V0 T0 |V1 T1 T2 B",
              "|K2 V1 |K3 V2 q |V0 V3 A B",
              "|K2 V1 V2 |K3 V3 q A |V0 T0 |V1 T1 B |V2 T2",
              "|K2 V1 |K3 V2 q |V0 V3 A T0 |V1 T1",
              "|K2 V1 |K3 V2 q |V0 V3 A |V1 T0"],
        "f": ["|K2 V1 |K3 V2 q |V0 V3 A",
              "|K2 V1 |K3 V2 q |V0 V3 A |V1 D0 D1",
              "|K2 V1 |K3 V2 q |V0 V3 A D0 |V1 D1",
              "|K2 V1 |K3 V2 q |V0 V3 A |V1 D0",
              "|K2 V1 |K3 V2 q |V0 V3 A |V1 Qa"],
    }
    if C3:
        SCHED = {k_: [x_.replace("|K2 V1 ", "", 1) for x_ in v_] for k_, v_ in SCHED.items()}
    if opt.get("qe", 0) == 1:
        SCHED = {k_: [x_.replace("|K3 V2 q ", "q |K3 V2 ", 1) for x_ in v_] for k_, v_ in SCHED.items()}
    if opt.get("qe", 0) == 2:
        SCHED = {k_: [x_.replace("|K3 V2 q ", "|K3 q V2 ", 1) for x_ in v_] for k_, v_ in SCHED.items()}
    if opt.get("pt", 0):
        def pretouch():
            setexec(0xFFFF, 0)
            a("    global_load_dwordx4 %s, %s, %s%s" % (v(vQ2, 4), v(vAo), s(sBo, 2), ["", "", " nt"][opt["pt"]]))
            setexec(0xFFFFFFFF, 0xFFFFFFFF)
        extra["PT"] = pretouch
        SCHED = {k_: [x_.replace("|V0 V3", "|V0 V3 PT") for x_ in v_] for k_, v_ in SCHED.items()}
    QV = opt.get("qv", 0)
    if QV:
        old_, new_ = "|K2 V1 |K3 V2 q |V0 V3", ["", "|K2 V1 |K3 q V2 |V0 V3", "|K2 V1 |K3 V2 |V0 q V3", "|K2 V1 |K3 V2 |V0 V3 q",
                                                 "|K2 V1 |K3 q V2 V3", "|K3 q V1 V2 V3", "|K2 V1 |K3 q V2 V3 |V0"][QV]
        SCHED = {k_: [x_.replace(old_, new_) for x_ in v_] for k_, v_ in SCHED.items()}
    if CW >= 3:
        hd = ["|K3 q V1 V2 |V0 V3", "|K3 V1 q V2 |V0 V3", "|K3 V1 q |V0 V2 V3", "|K3 V1 V2 q |V0 V3"][opt.get("cv", 0)]
        SCHED = {k_: [x_.replace("|K2 V1 |K3 V2 q |V0 V3", hd) for x_ in v_] for k_, v_ in SCHED.items()}
    elif CW:
        SCHED = {
            "s": ["|K2 V2 |K3 V3 q"],
            "w": ["|K2 V2 |K3 V3 q A |V0 T0 |V1 T1 B |V2 T2",
                  "|K2 V2 |K3 V3 q A |V0 T0 |V1 T1 B |V2 T2 |V3 T3",
                  "|K2 V2 |K3 V3 q A |V1 T0 B |V2 T1",
                  "|K2 V2 |K3 V3 A |V0 q T0 |V1 T1 B |V2 T2"],
            "f": ["|K2 V2 |K3 V3 q A", "|K2 V2 |K3 V3 q A |V0 D0 |V1 D1", "|K2 V2 |K3 V3 A |V0 q D0 |V1 D1"],
        }
        if opt.get("ss"):
            SCHED["s"] = ["|K2 V2 |K3 V3 |V0 q"]
    a("    s_cmp_lt_u32 %s, 16" % s(sJ))
    a("    s_cbranch_scc1 L_ROLE_WO")
    a("    s_cmp_lt_u32 %s, 4" % s(sH))
    a("    s_cbranch_scc1 L_ROLE_FFN")
    a("    s_cmp_lt_u32 %s, 28" % s(sJ))
    a("    s_cbranch_scc1 L_ROLE_FFN")

    def attention(sched, t0=(), t1=(), w0extra=None):
        m0 = V.mark()
        vKa = V(16, 4)
        vQb = V(16, 4)
        vPb = vQb
        vVa = vKa
        vS = V(4, 4)
        vMx, vMl = V(), V(4, 4)
        def kreads():
            for i in range(4):
                a("    ds_read_b128 %s, %s" % (v(vKa + 4 * i, 4), v(vAk + i)))

        vm[:] = common
        if DQ:
            uid[0] += 1
            ud = uid[0]
            head = "|K2 V1 "
            assert sched.startswith(head + "|K3 V2 q |V0 V3")
            run_sched(head)
            if DQ == 2:
                a("    s_getreg_b32 %s, hwreg(HW_REG_IB_STS, 8, 4)" % s(sT0))
                a("    s_cmp_lg_u32 %s, 0" % s(sT0))
                a("    s_cbranch_scc1 L_QLATE%d" % ud)
            a("    s_waitcnt lgkmcnt(0)")
            a("    s_xor_b64 %s, %s, %s" % (s(sQF, 2), s(sQF, 2), s(sRep, 2)))
            a("    s_xor_b64 %s, %s, %s" % (s(sQF + 2, 2), s(sQF + 2, 2), s(sRep, 2)))
            a("    s_or_b64 %s, %s, %s" % (s(sQF, 2), s(sQF, 2), s(sQF + 2, 2)))
            a("    s_cbranch_scc1 L_QLATE%d" % ud)
            mid = list(vm)
            rest_ = sched[len(head + "|K3 V2 q |V0 V3"):]
            run_sched("q |K3 V2 |V0 V3 " + " ".join(t for t in rest_.split() if t[0] != "|"))
            kreads()
            waitfor("q")
            early = [t for t in vm if t != "q"]
            a("    s_branch L_QJOIN%d" % ud)
            a("L_QLATE%d:" % ud)
            vm[:] = mid
            run_sched(sched[len(head):])
            kreads()
            waitfor("q")
            assert early == [t for t in vm if t != "q"]
            a("L_QJOIN%d:" % ud)
            NVA = 63
        else:
            run_sched(sched)
            kreads()
            NVA = len(vm) - 1 - vm.index("q")
        ntail = len(vm) - 1 - vm.index("V3") + len(t0)
        tp = ()
        def qcheck():
            for k in range(4):
                a("    v_xor_b32 %s, %s, %s" % (v(vQ + k), s(sTag8), v(vQ + k)))
            a("    v_or3_b32 %s, %s, %s, %s" % (v(vT), v(vQ), v(vQ + 1), v(vQ + 2)))
            a("    v_or_b32 %s, %s, %s" % (v(vT), v(vT), v(vQ + 3)))
            a("    v_and_b32 %s, 0xff, %s" % (v(vT), v(vT)))
            a("    v_cmp_ne_u32 vcc, 0, %s" % v(vT))
        SB2 = opt.get("sb2", 0)

        def sflag(t=vT):
            setexec((1 << R2) - 1, 0)
            a("    v_lshlrev_b32 %s, %d, v0" % (v(t), RS2))
            a("    global_store_byte %s, %s, %s%s" % (v(t), v(vTag8), s(sBfl, 2), "" if opt.get("xs", 0) & 2 else " sc1"))
            setexec(0xFFFFFFFF, 0xFFFFFFFF)

        def w0flag():
            uid[0] += 1
            a("    s_cmp_lg_u32 %s, 0" % s(sW))
            a("    s_cbranch_scc1 L_NF%d" % uid[0])
            sflag(vG0)
            a("L_NF%d:" % uid[0])
        RDY = opt.get("rdy", 0)

        def rdyhint():
            uid[0] += 1
            a("    s_cmp_lg_u32 %s, 7" % s(sW))
            a("    s_cbranch_scc1 L_NORDY%d" % uid[0])
            setexec(1, 0)
            a("    v_mov_b32 %s, 0x%x" % (v(vG0), SRDY - S2ML))
            a("    v_mov_b32 %s, %s" % (v(vMx), s(sT32)))
            a("    global_store_dword %s, %s, %s sc1" % (v(vG0), v(vMx), s(sBml, 2)))
            setexec(0xFFFFFFFF, 0xFFFFFFFF)
            a("L_NORDY%d:" % uid[0])
        a.c("q: sum of the four row partials -> bf16 -> LDS; scores, chunk max, exp, P V")
        MB = opt.get("mb", 1)
        AMX = opt.get("amx", 1)
        if QP1:
            uid[0] += 1
            uq = uid[0]
            a("    s_waitcnt vmcnt(%d)" % (len(vm) - 1 - vm.index("q1") + len(tp)))
            qcheck()
            a("    s_cbranch_vccz L_QOK%d" % uq)
            a("    s_waitcnt vmcnt(%d)" % (NVA + len(tp)))
            for i in range(0, 4, 2):
                a("    v_mov_b64 %s, %s" % (v(vQ + i, 2), v(vQ2 + i, 2)))
            poll(qload, qcheck, NVA + len(tp), cnt=15 if opt.get("astamps") else None)
            a("L_QOK%d:" % uq)
        else:
            poll(qload, qcheck, NVA + len(tp), cnt=15 if opt.get("astamps") else None)
        stamp(4)
        treduce4(vQ)
        a("    v_cvt_pk_bf16_f32 %s, %s, %s" % (v(vQ), v(vQ), v(vQ)))
        a("    ds_write_b16 %s, %s" % (v(vAqw), v(vQ)))
        a("    s_waitcnt lgkmcnt(0)")
        a("    s_barrier")
        for i in range(4):
            a("    ds_read_b128 %s, %s offset:%d" % (v(vQb + 4 * i, 4), v(vAq), 64 * i))
        if SB2 == 7:
            w0flag()
        T0P = opt.get("t0p", 1)
        if T0P == 0:
            for f in t0:
                f()
        for i in range(4):
            a("    s_waitcnt lgkmcnt(%d)" % (0 if prof else 3 - i))
            a("    v_mfma_f32_16x16x32_bf16 %s, %s, %s, %s" %
              (v(vD, 4), v(vKa + 4 * i, 4), v(vQb + 4 * i, 4), "0" if i == 0 else v(vD, 4)))
        if T0P == 1:
            for f in t0:
                f()
        a("    v_cvt_pk_bf16_f32 %s, %s, %s" % (v(vT), v(vD), v(vD + 1)))
        a("    v_cvt_pk_bf16_f32 %s, %s, %s" % (v(vT + 1), v(vD + 2), v(vD + 3)))
        for rnd in range(2):
            for i in range(2):
                a("    v_lshlrev_b32 %s, 16, %s" % (v(vS + 2 * i), v(vT + i)))
                a("    v_and_b32 %s, 0xffff0000, %s" % (v(vS + 2 * i + 1), v(vT + i)))
            if rnd == 0:
                for i in (0, 2):
                    a("    v_pk_mul_f32 %s, %s, %s op_sel_hi:[1,0]" % (v(vS + i, 2), v(vS + i, 2), s(sScale, 2)))
                a("    v_cvt_pk_bf16_f32 %s, %s, %s" % (v(vT), v(vS), v(vS + 1)))
                a("    v_cvt_pk_bf16_f32 %s, %s, %s" % (v(vT + 1), v(vS + 2), v(vS + 3)))
        a("    v_max3_f32 %s, %s, %s, %s" % (v(vMx), v(vS), v(vS + 1), v(vS + 2)))
        a("    v_max_f32 %s, %s, %s" % (v(vMx), v(vMx), v(vS + 3)))
        if AMX:
            setexec(0x000F000F, 0x000F000F)
            a("    ds_max_f32 %s, %s" % (v(vAmr), v(vMx)))
        else:
            for sw in ("16", "32"):
                a("    v_mov_b32 %s, %s" % (v(vT), v(vMx)))
                a("    v_permlane%s_swap_b32 %s, %s" % (sw, v(vMx), v(vT)))
                a("    v_max_f32 %s, %s, %s" % (v(vMx), v(vMx), v(vT)))
            setexec(0xF, 0)
            a("    ds_write_b32 %s, %s" % (v(vAmw), v(vMx)))
        setexec(0xFFFFFFFF, 0xFFFFFFFF)
        if T0P == 2:
            for f in t0:
                f()
        VB3 = opt.get("vb3", 0)

        def vreads(t):
            for hh in range(2):
                a("    ds_read_b64_tr_b16 %s, %s offset:%d" % (v(vVa + 4 * t + 2 * hh, 2), v(vAv), 8192 * t + 4096 * hh))
        if VB3:
            assert MB
            a("    s_waitcnt vmcnt(%d) lgkmcnt(0)" % ntail)
            for f in t1:
                f()
        else:
            a("    s_waitcnt lgkmcnt(0)")
        if RDY == 1:
            rdyhint()
        a("    s_barrier")
        if AMX:
            a("    ds_read_b32 %s, %s" % (v(vMl), v(vAmr)))
            if RDY == 2:
                rdyhint()
            if VB3:
                for t in range(4):
                    vreads(t)
            a("    s_waitcnt lgkmcnt(%d)" % (8 if VB3 and not prof else 0))
        else:
            a("    ds_read_b128 %s, %s" % (v(vT, 4), v(vAmr)))
            a("    ds_read_b128 %s, %s offset:16" % (v(vT + 4, 4), v(vAmr)))
            if SB2 == 5:
                w0flag()
            if VB3:
                for t in range(4):
                    vreads(t)
            a("    s_waitcnt lgkmcnt(%d)" % (8 if VB3 and not prof else 0))
            a("    v_max3_f32 %s, %s, %s, %s" % (v(vT), v(vT), v(vT + 1), v(vT + 2)))
            a("    v_max3_f32 %s, %s, %s, %s" % (v(vT + 4), v(vT + 4), v(vT + 5), v(vT + 6)))
            a("    v_max3_f32 %s, %s, %s, %s" % (v(vT), v(vT), v(vT + 3), v(vT + 7)))
            a("    v_max_f32 %s, %s, %s" % (v(vMl), v(vT), v(vT + 4)))
        for i in (0, 2):
            a("    v_pk_add_f32 %s, %s, %s op_sel_hi:[1,0] neg_lo:[0,1] neg_hi:[0,1]" % (v(vS + i, 2), v(vS + i, 2), v(vMl, 2)))
        for i in (0, 2):
            a("    v_pk_mul_f32 %s, %s, %s op_sel:[0,1] op_sel_hi:[1,1]" % (v(vS + i, 2), v(vS + i, 2), s(sScale, 2)))
        for i in range(4):
            a("    v_exp_f32 %s, %s" % (v(vS + i), v(vS + i)))
        a("    v_cvt_pk_bf16_f32 %s, %s, %s" % (v(vT + 2), v(vS), v(vS + 1)))
        a("    v_cvt_pk_bf16_f32 %s, %s, %s" % (v(vT + 3), v(vS + 2), v(vS + 3)))
        setexec(0x000F000F, 0x000F000F)
        a("    ds_write_b64 %s, %s" % (v(vApw), v(vT + 2, 2)))
        a("    v_pk_add_f32 %s, %s, %s" % (v(vT, 2), v(vS, 2), v(vS + 2, 2)))
        a("    v_add_f32 %s, %s, %s" % (v(vT), v(vT), v(vT + 1)))
        a("    ds_write_b32 %s, %s" % (v(vAlw), v(vT)))
        setexec(0xFFFFFFFF, 0xFFFFFFFF)
        if SB2 == 6:
            w0flag()
        if MB and not VB3:
            a("    s_waitcnt vmcnt(%d) lgkmcnt(0)" % ntail)
            for f in t1:
                f()
        else:
            a("    s_waitcnt lgkmcnt(0)")
        a("    s_barrier")
        if opt.get("astamps"):
            stamp(13)
        if RDY == 3:
            rdyhint()
        uid[0] += 1
        u = uid[0]

        def preads():
            for i in range(4):
                a("    ds_read_b128 %s, %s offset:%d" % (v(vPb + 4 * i, 4), v(vApr), 64 * i))

        def mlpub():
            a("    v_add_f32 %s, %s, %s" % (v(vMl + 1), v(vT), v(vT + 1)))
            allred_hi(vMl + 1, vT, "add")
            setexec(0xF, 0)
            a("    global_store_dwordx4 %s, %s, %s%s" % (v(vAo), v(vMl, 4), s(sBml, 2), XS))
            setexec(0xFFFFFFFF, 0xFFFFFFFF)

        def pv(first):
            for t in range(4):
                a("    s_waitcnt lgkmcnt(%d)" % (0 if prof else first[t]))
                a("    v_mfma_f32_16x16x32_bf16 %s, %s, %s, %s" %
                  (v(vD, 4), v(vPb + 4 * t, 4), v(vVa + 4 * t, 4), "0" if t == 0 else v(vD, 4)))
        if MB:
            a("    ds_read_b64 %s, %s" % (v(vT, 2), v(vAlr)))
            for t in range(4):
                a("    ds_read_b128 %s, %s offset:%d" % (v(vPb + 4 * t, 4), v(vApr), 64 * t))
                if not VB3:
                    vreads(t)
            a("    v_mov_b32 %s, %s" % (v(vMl + 2), s(sT32)))
            a("    v_mov_b32 %s, %s" % (v(vMl + 3), s(sT32)))
            a("    s_cmp_lg_u32 %s, 0" % s(sW))
            a("    s_cbranch_scc1 L_NOML%d" % u)
            if SB2 in (1, 3):
                sflag(vT + 2)
            a("    s_waitcnt lgkmcnt(%d)" % (0 if prof else (4 if VB3 else 12)))
            mlpub()
            if SB2 in (2, 4):
                sflag(vT + 2)
            a("L_NOML%d:" % u)
            pv([3, 2, 1, 0] if VB3 else [9, 6, 3, 0])
        else:
            preads()
            a("    s_cmp_lg_u32 %s, 0" % s(sW))
            a("    s_cbranch_scc1 L_NOML%d" % u)
            a("    ds_read_b64 %s, %s" % (v(vT, 2), v(vAlr)))
            if SB2 == 3:
                sflag(vT + 2)
            if SB2 == 4:
                a("    s_waitcnt vmcnt(%d)" % ntail)
                sflag(vT + 2)
            a("    v_mov_b32 %s, %s" % (v(vMl + 2), s(sT32)))
            a("    v_mov_b32 %s, %s" % (v(vMl + 3), s(sT32)))
            a("    s_waitcnt lgkmcnt(0)")
            mlpub()
            nx = w0extra() if w0extra else 0
            if SB2 in (3, 4, 5, 6, 7):
                nx += 1
            if SB2 == 1:
                sflag()
                nx += 1
            a("    s_waitcnt vmcnt(%d)" % (1 + nx + ntail))
            if SB2 == 2:
                sflag()
            a("    s_branch L_MLD%d" % u)
            a("L_NOML%d:" % u)
            a("    s_waitcnt vmcnt(%d)" % ntail)
            a("L_MLD%d:" % u)
            if opt.get("astamps"):
                stamp(14)
            for f in t1:
                f()
            a("    s_barrier")
            stamp(5)
            for t in range(4):
                vreads(t)
            pv([6, 4, 2, 0])
        setexec(0xFFFF, 0)
        if OCLR:
            a("    v_min_u32 %s, -2, %s" % (v(vD), v(vD)))
        else:
            for i in range(4):
                a("    v_and_or_b32 %s, %s, %s, %s" % (v(vD + i), v(vD + i), s(sM10), v(vTag10)))
        a("    global_store_dwordx4 %s, %s, %s%s" % (v(vAo), v(vD, 4), s(sBo, 2), XS))
        setexec(0xFFFFFFFF, 0xFFFFFFFF)
        stamp(6)
        if opt.get("ackstamp") and not w0extra:
            a("    s_waitcnt vmcnt(0)")
            stamp(1)
        V.release(m0)

    attention(SCHED["s"][0])
    finish()

    a("L_ROLE_WO:")
    mrole = V.mark()
    sD0 = sU
    vWo = V(4)

    def wo_setup():
        if opt.get("dh", 0):
            a("    s_%s_b32 %s, %s, %d" % ("xor", s(sH), s(sH), opt["dh"]))
        a("    s_lshr_b32 %s, %s, 3" % (s(sT1), s(sJ)))
        a("    s_lshl_b32 %s, %s, 3" % (s(sT1), s(sT1)))
        a("    s_add_u32 %s, %s, %s" % (s(sT1), s(sT1), s(sW)))
        a("    s_lshl_b32 %s, %s, 3" % (s(sD0), s(sT1)))
        a("    s_lshl_b32 %s, %s, 9" % (s(sT0), s(sH)))
        a("    s_add_u32 %s, %s, %s" % (s(sT0), s(sT0), s(sD0)))
        a("    s_lshl_b32 %s, %s, 10" % (s(sT0), s(sT0)))
        a("    s_and_b32 %s, %s, 7" % (s(sT1), s(sJ)))
        a("    s_lshl_b32 %s, %s, 7" % (s(sT1), s(sT1)))
        a("    s_add_u32 %s, %s, %s" % (s(sT0), s(sT0), s(sT1)))
        base(sB4, sWO, s(sT0))
        a("    v_lshlrev_b32 %s, 4, %s" % (v(vWo), v(vL7)))
        a("    v_lshl_or_b32 %s, %s, 10, %s" % (v(vWo), v(vL3), v(vWo)))
        for i in (1, 2, 3):
            a("    v_add_u32 %s, 0x%x, %s" % (v(vWo + i), i * (131072 - 1024), v(vWo)))
        a("    s_lshl_b32 %s, %s, 12" % (s(sFI), s(sW)))
        a("    s_add_u32 %s, %s, 0x%x" % (s(sFI), s(sFI), LG))

    def woload(i):
        def f():
            if i == 0:
                a("    s_mov_b32 m0, %s" % s(sFI))
            a("    global_load_lds_dwordx4 %s, %s offset:%d nt" % (v(vWo + i), s(sB4, 2), 1024 * i))
        return f
    vOo = V(4)
    vAtr, vAw, vArw = [V() for _ in range(3)]
    vO = V(16, 4)
    vWt = V(16, 4)
    vML = V(8, 4)
    vDt = V(16, 4)

    def wo_addresses():
        a("    s_lshl_b32 %s, %s, 11" % (s(sT1), s(sH)))
        a("    s_add_u32 %s, %s, 0x%x" % (s(sT1), s(sT1), S2ML))
        base(sB0, sWS, s(sT1))
        a("    s_mul_i32 %s, %s, %d" % (s(sT1), s(sH), 32 * ST2))
        a("    s_lshl_b32 %s, %s, 4" % (s(sT0), s(sD0)))
        a("    s_add_u32 %s, %s, %s" % (s(sT1), s(sT1), s(sT0)))
        a("    s_add_u32 %s, %s, 0x%x" % (s(sT1), s(sT1), S2O))
        base(sB5, sWS, s(sT1))
        a("    v_lshlrev_b32 %s, 4, %s" % (v(vT), v(vL7)))
        a("    v_mul_u32_u24 %s, %d, %s" % (v(vOo), ST2, v(vL3)))
        a("    v_add_u32 %s, %s, %s" % (v(vOo), v(vOo), v(vT)))
        for i in (1, 2, 3):
            a("    v_add_u32 %s, 0x%x, %s" % (v(vOo + i), 8 * ST2 * i, v(vOo)))
        a("    s_lshr_b32 %s, %s, 3" % (s(sT1), s(sJ)))
        a("    s_lshl1_add_u32 %s, %s, %s" % (s(sT0), s(sH), s(sT1)))
        a("    s_mul_i32 %s, %s, %d" % (s(sT0), s(sT0), ST3))
        a("    s_and_b32 %s, %s, 7" % (s(sT1), s(sJ)))
        a("    s_lshl_b32 %s, %s, 8" % (s(sT1), s(sT1)))
        a("    s_add_u32 %s, %s, %s" % (s(sT0), s(sT0), s(sT1)))
        a("    s_add_u32 %s, %s, 0x%x" % (s(sT0), s(sT0), S3))
        base(sB2, sWS, s(sT0))
        a("    v_lshrrev_b32 %s, 2, %s" % (v(vT), v(vJ)))
        a("    v_lshl_add_u32 %s, %s, 3, %s" % (v(vT), v(vG), v(vT)))
        a("    v_lshlrev_b32 %s, 7, %s" % (v(vT), v(vT)))
        a("    v_and_b32 %s, 3, v0" % v(vT + 1))
        a("    v_lshl_add_u32 %s, %s, 3, %s" % (v(vT), v(vT + 1), v(vT)))
        a("    v_add_u32 %s, %s, %s" % (v(vAtr), s(sFI), v(vT)))
        a("    v_lshlrev_b32 %s, 4, %s" % (v(vT), v(vL3)))
        a("    v_add_u32 %s, 0x%x, %s" % (v(vAw), LWT, v(vT)))
        a("    s_mul_i32 %s, %s, 272" % (s(sT0), s(sW)))
        a("    s_add_u32 %s, %s, 0x%x" % (s(sT0), s(sT0), LRED))
        a("    v_lshl_add_u32 %s, %s, 4, %s" % (v(vArw), v(vG), s(sT0)))
        per = 8 // P3
        a("    s_and_b32 %s, %s, %d" % (s(sT0), s(sH), per - 1))
        a("    s_lshl_b32 %s, %s, 2" % (s(sT0), s(sT0)))
        a("    s_lshr_b32 %s, %s, %d" % (s(sT1), s(sH), per.bit_length() - 1))
        a("    s_lshl_b32 %s, %s, 7" % (s(sT1), s(sT1)))
        a("    s_add_u32 %s, %s, %s" % (s(sT0), s(sT0), s(sT1)))
        a("    s_add_u32 %s, %s, 0x%x" % (s(sInb), s(sT0), SBELL))
        if opt.get("hn", 1) == 4:
            a("    s_lshr_b32 %s, %s, 2" % (s(sT0), s(sJ)))
            a("    s_add_u32 %s, %s, %s" % (s(sInb), s(sInb), s(sT0)))
    def bell():
        for i in range(2):
            a("    global_load_dwordx3 %s, %s, %s offset:%d%s" % (v(vML + 4 * i, 3), v(vAo), s(sB0, 2), 1024 * i, " nt" if opt.get("xl", 0) else " sc1"))

    def bellcheck():
        tagcheck([vML + 2, vML + 6], sT32, vT)
        a("    v_cmp_ne_u32 vcc, 0, %s" % v(vT))

    EB = opt.get("eb", 0)

    def earlybell():
        bell()
        return 2
    extra.update(A=wo_setup, B=wo_addresses, T0=woload(0), T1=woload(1), T2=woload(2), T3=woload(3))
    sw = SCHED["w"][opt.get("sw", 0)]
    rest = [i for i in range(4) if "T%d" % i not in sw.split()]
    WO2 = min(opt.get("wo2", 0), len(rest))
    late = rest[len(rest) - WO2:]
    rest = rest[:len(rest) - WO2]
    WO1 = min(opt.get("wo1", 0), len(rest))
    attention(sw, [woload(i) for i in rest[:len(rest) - WO1]], [woload(i) for i in rest[len(rest) - WO1:]],
              earlybell if EB else None)
    for i in late:
        woload(i)()
    def bellprep():
        a("    s_mul_i32 %s, %s, 0x01010101" % (s(sRep), s(sTag8)))
        a("    s_mov_b32 %s, %s" % (s(sRep + 1), s(sRep)))
        a("    s_and_b32 %s, %s, %d" % (s(sT0), s(sJ), (R2 // 2 if opt.get("dp2", 0) else R2) - 1))
        a("    s_lshl4_add_u32 %s, %s, %s" % (s(sT0), s(sH), s(sT0)))
        a("    s_lshl_b32 %s, %s, %d" % (s(sT0), s(sT0), RS2))
        a("    s_add_u32 %s, %s, 0x%x" % (s(sT0), s(sT0), SRDY))
    if opt.get("dp2", 0) == 2:
        a("    s_cmp_lg_u32 %s, 0" % s(sW))
        a("    s_cbranch_scc1 L_BP")
        bellprep()
        spoll2(s(sT0), (R2 // 2) << RS2, sRep, P2, sB1, phase=1)
        a("L_BP:")
    if "B" not in sw.split():
        wo_addresses()

    NO = opt.get("dno", 4)

    def oloads():
        for i in range(NO):
            a("    global_load_dwordx4 %s, %s, %s%s" % (v(vO + 4 * i, 4), v(vOo + i), s(sB5, 2), [" sc1", " nt", "", " sc0"][opt.get("xl", 0)]))

    def wtr():
        for t in range(4):
            for hh in range(2):
                a("    ds_read_b64_tr_b16 %s, %s offset:%d" % (v(vW + 4 * t + 2 * hh, 2), v(vAtr), 512 * hh + 32 * t))
    a.c("combine the 32 chunks: wave 0 waits for the hints, turns (m, l) into weights; all waves gather o")
    a("    s_cmp_eq_u32 %s, 0" % s(sW))
    a("    s_cbranch_scc1 L_BELL1")
    S2M = opt.get("s2mode", 0)
    if opt.get("sb2", 0):
        a("    s_barrier")
        oloads()
        a("    s_waitcnt vmcnt(%d)" % NO)
        wtr()
    else:
        a("    s_waitcnt vmcnt(%d)" % (1 if EB else 0))
        stamp(12)
        wtr()
        a("    s_barrier")
        oloads()
    a("    s_branch L_BELL2")
    a("L_BELL1:")
    if opt.get("rdy", 0):
        a("    v_and_b32 %s, 31, v0" % v(vT + 1))
        a("    v_lshlrev_b32 %s, 6, %s" % (v(vT + 1), v(vT + 1)))
        a("    v_add_u32 %s, 0x%x, %s" % (v(vT + 1), SRDY - S2ML, v(vT + 1)))

        def rdy():
            a("    global_load_dword %s, %s, %s sc1" % (v(vT + 2), v(vT + 1), s(sB0, 2)))

        def rdycheck():
            a("    v_cmp_ne_u32 vcc, %s, %s" % (s(sT32), v(vT + 2)))
        setexec(0xFFFFFFFF, 0)
        rdy()
        poll(rdy, rdycheck, 0, cnt=13)
        a("    s_barrier")
        bell()
        oloads()
        stamp(11)
        wtr()
        poll(bell, bellcheck, 4)
    elif opt.get("sb2", 0):
        if opt.get("dp2", 0) != 2:
            bellprep()
        stamp(12)
        if opt.get("dp2", 0):
            spoll2(s(sT0), (R2 // 2) << RS2, sRep, P2, sB1, phase=2 if opt["dp2"] == 2 else 0)
        else:
            spoll(sWS, s(sT0), sRep, P2)
        if prof:
            a("    s_mov_b32 %s, %s" % (s(sPROF + 26), s(sSpin)))
        a("    s_barrier")
        bell()
        oloads()
        stamp(11)
        if opt.get("wt", 0) == 1:
            a("    s_waitcnt vmcnt(6)")
            wtr()
            poll(bell, bellcheck, 4)
        elif opt.get("wt", 0) == 2:
            poll(bell, bellcheck, NO)
        else:
            poll(bell, bellcheck, 4, post=wtr)
    elif EB:
        assert WO1 == 0 and not opt.get("mb")
        poll(bell, bellcheck, 1, cnt=13)
        a("    s_barrier")
        oloads()
        wtr()
        stamp(11)
    else:
        bell()
        poll(bell, bellcheck, 0, cnt=13)
        a("    s_barrier")
        oloads()
        wtr()
        stamp(11)
    a("    v_max_f32 %s, %s, %s" % (v(vT + 1), v(vML), v(vML + 4)))
    allred_hi(vT + 1, vT, "max")
    for i in range(2):
        a("    v_sub_f32 %s, %s, %s" % (v(vML + 4 * i), v(vML + 4 * i), v(vT + 1)))
    for i in range(2):
        a("    v_mul_f32 %s, 0x3fb8aa3b, %s" % (v(vML + 4 * i), v(vML + 4 * i)))
    for i in range(2):
        a("    v_exp_f32 %s, %s" % (v(vML + 4 * i), v(vML + 4 * i)))
    a("    v_lshlrev_b32 %s, 2, v0" % v(vT + 2))
    a("    v_mul_f32 %s, %s, %s" % (v(vT + 1), v(vML), v(vML + 1)))
    a("    v_fmac_f32 %s, %s, %s" % (v(vT + 1), v(vML + 4), v(vML + 5)))
    allred_hi(vT + 1, vT, "add")
    a("    v_rcp_f32 %s, %s" % (v(vT + 1), v(vT + 1)))
    a("    v_add_u32 %s, 0x%x, %s" % (v(vT + 2), LWT, v(vT + 2)))
    for i in range(2):
        a("    v_mul_f32 %s, %s, %s" % (v(vML + 4 * i), v(vML + 4 * i), v(vT + 1)))
    for i in range(2):
        a("    ds_write_b32 %s, %s offset:%d" % (v(vT + 2), v(vML + 4 * i), 256 * i))
    a("    s_waitcnt lgkmcnt(0)")
    if opt.get("wt", 0) == 2:
        a("    s_barrier")
        wtr()
        a("    s_branch L_BELL3")
    a("L_BELL2:")
    WB = opt.get("wbar", 0)

    def wreads():
        a("    s_barrier")
        a("L_BELL3:")
        for i in range(4):
            a("    ds_read_b128 %s, %s offset:%d" % (v(vWt + 4 * i, 4), v(vAw), 128 * i))

    wreads()

    def oacc(i):
        for r in (0, 2):
            if i == 0:
                a("    v_pk_mul_f32 %s, %s, %s" % (v(vT + r, 2), v(vO + r, 2), v(vWt + r, 2)))
            else:
                a("    v_pk_fma_f32 %s, %s, %s, %s" % (v(vT + r, 2), v(vO + 4 * i + r, 2), v(vWt + 4 * i + r, 2), v(vT + r, 2)))

    HN = opt.get("hn", 1)

    def s3hint():
        if HN == 1:
            a("    s_or_b32 %s, %s, %s" % (s(sT0), s(sJ), s(sW)))
        else:
            a("    s_and_b32 %s, %s, 3" % (s(sT0), s(sJ)))
            a("    s_or_b32 %s, %s, %s" % (s(sT0), s(sT0), s(sW)))
        a("    s_cbranch_scc1 L_NOHINT")
        if R3 < 64:
            setexec((1 << R3) - 1, 0)
        a("    v_lshl_add_u32 %s, v0, %d, %s" % (v(vG0), RS3, s(sInb)))
        if HN == 1:
            a("    v_mov_b32 %s, %s" % (v(vQo), s(sT32)))
            a("    global_store_dword %s, %s, %s sc1" % (v(vG0), v(vQo), s(sWS, 2)))
        else:
            a("    global_store_byte %s, %s, %s sc1" % (v(vG0), v(vTag8), s(sWS, 2)))
        setexec(0xFFFFFFFF, 0xFFFFFFFF)
        a("L_NOHINT:")
    HP = opt.get("hp", 0)

    def obefore():
        if HP == 1:
            a("    s_waitcnt vmcnt(3)")
            s3hint()
        a("    s_waitcnt lgkmcnt(0)")
    gather(oloads, [vO + 4 * i for i in range(NO)], sTag10, 0x3ff, oacc, cnt=14, before=obefore)
    stamp(7)
    if HP == 0:
        s3hint()
    a.c("o (bf16) times the wo piece, cross-wave sum, publish")
    treduce4(vT)
    a("    v_add_f32_dpp %s, %s, %s row_ror:8 %s" % (v(vT), v(vT), v(vT), DPP))
    rowpack(vT, vT + 4, 4)
    for t in range(4):
        a("    v_mfma_f32_16x16x32_bf16 %s, %s, %s, 0" % (v(vDt + 4 * t, 4), v(vW + 4 * t, 4), v(vT + 4, 4)))
    if HP == 2:
        s3hint()
    setexec(0x00010001, 0x00010001)
    for t in range(4):
        a("    ds_write_b128 %s, %s offset:%d" % (v(vArw), v(vDt + 4 * t, 4), 64 * t))
    setexec(0xFFFFFFFF, 0xFFFFFFFF)
    red_publish(8, vTag10, sM10, 0, sB2, "L_FIN", mid=s3hint if HP == 3 else None)
    if HP == 4:
        s3hint()
    stamp(8)
    a("L_FIN:")
    if opt.get("wb", 0):
        a("    s_lshl3_add_u32 %s, %s, %s" % (s(sT0), s(sJ), s(sW)))
        a("    s_cmp_lg_u32 %s, 1" % s(sT0))
        a("    s_cbranch_scc1 L_FIN3")
        a("    buffer_wbl2 sc1")
        a("    s_waitcnt vmcnt(0)")
        a("L_FIN3:")
    finish()
    V.release(mrole)

    a("L_ROLE_FFN:")
    vGo = V()
    vDo = V(2)

    def quarter_prep(n, pair, m0reg):
        a("    s_add_u32 %s, %s, %d" % (s(sT0), s(sU), 0 if opt.get("fdiag") == 4 else n))
        a("    s_and_b32 %s, %s, 1" % (s(sT1), s(sT0)))
        a("    s_bfe_u32 %s, %s, 0x10001" % (s(sT0), s(sT0)))
        a("    s_lshl_b32 %s, %s, 1" % (s(sT2), s(sW)))
        a("    s_add_u32 %s, %s, %s" % (s(sT2), s(sT2), s(sT1)))
        a("    s_lshl_b32 %s, %s, 4" % (s(sT3), s(sT0)))
        a("    s_add_u32 %s, %s, %s" % (s(sT3), s(sT3), s(sT2)))
        a("    s_lshl_b32 %s, %s, 10" % (s(sT3), s(sT3)))
        a("    s_add_u32 %s, %s, 0x%x" % (s(m0reg), s(sT3), LG))
        a("    s_mul_i32 %s, %s, %d" % (s(sT2), s(sT2), 32 * 3584))
        a("    s_lshl_b32 %s, %s, 5" % (s(sT1), s(sFI)))
        a("    s_add_u32 %s, %s, %s" % (s(sT2), s(sT2), s(sT1)))
        a("    s_cmp_eq_u32 %s, 0" % s(sT0))
        a("    s_cselect_b64 %s, %s, %s" % (s(pair, 2), s(sWG, 2), s(sWU, 2)))
        base(pair, pair, s(sT2))
    QB = [(sK, sPC), (sVp, sPC + 1), (sWQ, sMean), (sWO, sVar)]

    def quarter(n):
        a("    s_mov_b32 m0, %s" % s(QB[n][1]))
        a("    global_load_lds_dwordx4 %s, %s%s" % (v(vGo), s(QB[n][0], 2),
          {0: " nt", 1: "" if n == 0 else " nt", 2: "", 3: " nt" if n == 0 else "", 4: " nt" if n == 0 else " sc1"}[opt.get("qpol", 0)]))

    def ffn_setup():
        a("    s_and_b32 %s, %s, 3" % (s(sU), s(sJ)))
        a("    s_min_u32 %s, %s, 4" % (s(sT0), s(sH)))
        a("    s_mul_i32 %s, %s, 3" % (s(sT1), s(sH)))
        a("    s_add_u32 %s, %s, %s" % (s(sT0), s(sT0), s(sT1)))
        a("    s_lshl_b32 %s, %s, 2" % (s(sT0), s(sT0)))
        a("    s_add_u32 %s, %s, %s" % (s(sT0), s(sT0), s(sJ)))
        a("    s_sub_u32 %s, %s, 16" % (s(sFI), s(sT0)))
        a("    v_lshrrev_b32 %s, 1, v0" % v(vT))
        a("    v_mul_u32_u24 %s, 3584, %s" % (v(vT), v(vT)))
        a("    v_and_b32 %s, 1, v0" % v(vT + 1))
        a("    v_lshl_add_u32 %s, %s, 4, %s" % (v(vGo), v(vT + 1), v(vT)))
        for n in range(4):
            quarter_prep(n, *QB[n])
        a("    s_lshl_b32 %s, %s, 14" % (s(sT0), s(sFI)))
        a("    s_lshl_b32 %s, %s, 7" % (s(sT1), s(sW)))
        a("    s_add_u32 %s, %s, %s" % (s(sT0), s(sT0), s(sT1)))
        base(sB5, sWD, s(sT0))
        a("    s_lshl_b32 %s, %s, 11" % (s(sT1), s(sW)))
        a("    s_add_u32 %s, %s, 0x%x" % (s(sInb), s(sT1), LD))
        a("    v_lshlrev_b32 %s, 4, %s" % (v(vDo), v(vL7)))
        a("    v_lshl_or_b32 %s, %s, 10, %s" % (v(vDo), v(vL3), v(vDo)))
        a("    v_add_u32 %s, 0x1c00, %s" % (v(vDo + 1), v(vDo)))

    def dload(i):
        def f():
            a("    s_mov_b32 m0, %s" % s(sInb))
            a("    global_load_lds_dwordx4 %s, %s offset:%d nt" % (v(vDo + i), s(sB5, 2), 1024 * i))
        return f
    def qhalf(lo, hi):
        def f():
            setexec(lo, hi)
            quarter(0)
            setexec(0xFFFFFFFF, 0xFFFFFFFF)
        return f
    L = dict(D0=dload(0), D1=dload(1), Q0=lambda: quarter(0), Q1=lambda: quarter(1), Q2=lambda: quarter(2), Q3=lambda: quarter(3))
    L2 = dict(Qa=qhalf(0xFFFFFFFF, 0), Qb=qhalf(0, 0xFFFFFFFF), Qc=qhalf(0xFFFF, 0), Qd=qhalf(0xFFFF0000, 0xFFFFFFFF))
    extra.update(A=ffn_setup, **L)
    extra.update(L2)
    sf = SCHED["f"][opt.get("sf", 0)]
    FT = [("Q0", "Q1 Q2 Q3 b D0 D1"), ("Q0", "Q1 Q2 Q3"), ("", "Q0 b Q1 Q2 Q3"), ("D0 D1", "Q0 b Q1 Q2 Q3"),
          ("", "Q0 D1 b Q1 Q2 Q3"), ("", "Q0 D0 D1 b Q1 Q2 Q3"), ("D1", "Q0 b Q1 Q2 Q3"),
          ("Qa", "Qb b Q1 Q2 Q3"), ("Qc", "Qd b Q1 Q2 Q3"), ("Qa", "Qb D0 D1 b Q1 Q2 Q3"), ("Qa", "Qb b Q1 Q2 Q3 b D0 D1"),
          ("Qb", "D0 D1 b Q1 Q2 Q3"), ("Qb", "Q1 Q2 Q3 b D0 D1"),
          ("Qa", "D0 D1 b Q1 Q2 Q3", "Qb"), ("Qa", "Q1 Q2 Q3 b D0 D1", "Qb"), ("Qa", "D1 b Q1 Q2 Q3", "Qb"), ("Qa", "Q1 Q2 Q3", "Qb"),
          ("", "Qb b Q1 Q2 Q3", "Qa"), ("Qc", "Q1 Q2 Q3", "Qd"),
          ("Qb", "Q1 Q2 Q3"), ("", "Q1 Q2 Q3", "Qb"), ("Q0", "Q1 Q2 Q3"), ("Qa", "Q1 Q2 Q3", "Qb"), ("Qa", "Qb b Q1 Q2 Q3"),
          ("Qa", "Qb Q1 Q2 Q3"), ("Qa", "Qb b Q1 b Q2 b Q3"), ("Qa", "Qb Q1 b Q2 Q3")][opt.get("ft", 0)]
    FT = FT + ("",) * (3 - len(FT))
    DL = opt.get("dl", 0)
    allf = (sf + " " + FT[0] + " " + FT[1] + " " + FT[2] + " " + " ".join(["D0", "D1"][2 - DL:])).replace("Qb", "Q0").replace("Qd", "Q0").split()
    assert sorted(t for t in allf if t in L) == sorted(L), allf
    L.update(L2)
    attention(sf, [L[t] for t in FT[0].split()], [L[t] for t in FT[2].split()])
    if opt.get("fack", 0):
        a("    s_waitcnt vmcnt(0)")
    if not opt.get("nfb", 0):
        a("    s_barrier")
    for t in FT[1].split():
        if t == "b":
            a("    s_barrier")
        else:
            L[t]()

    def hintprep():
        if opt.get("hn", 1) == 1:
            a("    s_mov_b32 %s, %s" % (s(sRep), s(sT32)))
        else:
            a("    s_mul_i32 %s, %s, 0x01010101" % (s(sRep), s(sTag8)))
        a("    s_mov_b32 %s, %s" % (s(sRep + 1), s(sRep)))
        a("    s_and_b32 %s, %s, %d" % (s(sT0), s(sFI), (R3 // 2 if opt.get("dp3", 0) else R3) - 1))
        a("    s_lshl_b32 %s, %s, %d" % (s(sT0), s(sT0), RS3))
        a("    s_add_u32 %s, %s, 0x%x" % (s(sT0), s(sT0), SBELL))
    a("    s_lshl_b32 %s, %s, 11" % (s(sT1), s(sW)))
    stamp(11)
    vXc = V()
    vHs = V(16, 4)
    vHo = V(4)
    vWg = V(16, 4)
    vWd = V(8, 4)
    P4 = opt.get("p4", 0)
    RW = P4 or opt.get("rw", 0)
    vWd2 = V(8, 4)
    vDv = V(4, 4)
    vAy2 = V(2)
    vHb = V(8, 4)
    vDu = V(4, 4)
    vCs = V(4, 4)
    vMt = V(4)
    vB = V(8, 4)
    vAgw, vAgr, vAsw, vAsr, vAy, vHr = [V() for _ in range(6)]
    a("    s_lshl_b32 %s, %s, 7" % (s(sT0), s(sW)))
    base(sB0, sX, s(sT0))
    a("    v_lshl_add_u32 %s, %s, 2, %s" % (v(vT + 2), v(vJ), v(vG)))
    a("    v_lshlrev_b32 %s, 1, %s" % (v(vT + 2), v(vT + 2)))
    a("    global_load_ushort %s, %s, %s" % (v(vXc), v(vT + 2), s(sB0, 2)))
    a("    global_load_ushort %s, %s, %s" % (v(vHr), v(vT + 2), s(sOUT, 2)))
    if opt.get("dp3", 0) == 2:
        a("    s_cmp_lg_u32 %s, 0" % s(sW))
        a("    s_cbranch_scc1 L_HP")
        hintprep()
        spoll2(s(sT0), (R3 // 2) << RS3, sRep, P3, sB4, phase=1)
        a("    s_lshl_b32 %s, %s, 7" % (s(sT0), s(sW)))
        a("L_HP:")
    a("    s_add_u32 %s, %s, 0x%x" % (s(sT2), s(sT0), LGP))
    a("    v_lshl_add_u32 %s, %s, 4, %s" % (v(vAgw), v(vG), s(sT2)))
    a("    v_lshrrev_b32 %s, 3, %s" % (v(vT + 2), v(vJ)))
    a("    v_lshl_add_u32 %s, %s, 1, %s" % (v(vT + 2), v(vL7), v(vT + 2)))
    a("    v_lshlrev_b32 %s, 6, %s" % (v(vT + 2), v(vT + 2)))
    a("    v_lshl_add_u32 %s, %s, 4, %s" % (v(vT + 2), v(vG), v(vT + 2)))
    a("    v_add_u32 %s, 0x%x, %s" % (v(vAgr), LGP, v(vT + 2)))
    a("    s_lshl_b32 %s, %s, 3" % (s(sT2), s(sW)))
    a("    s_add_u32 %s, %s, 0x%x" % (s(sT2), s(sT2), LST))
    a("    v_mov_b32 %s, %s" % (v(vAsw), s(sT2)))
    a("    v_lshlrev_b32 %s, 3, %s" % (v(vT + 2), v(vL7)))
    a("    v_add_u32 %s, 0x%x, %s" % (v(vAsr), LST, v(vT + 2)))
    for t in range(4):
        a("    v_cmp_eq_u32 vcc, %d, %s" % (t, v(vJ)))
        a("    v_cndmask_b32 %s, 0, -1, vcc" % v(vMt + t))
    a("    s_lshl_b32 %s, %s, 8" % (s(sT0), s(sW)))
    a("    s_add_u32 %s, %s, 0x%x" % (s(sT0), s(sT0), S3))
    base(sB1, sWS, s(sT0))
    a("    v_lshlrev_b32 %s, 4, %s" % (v(vT + 2), v(vJ)))
    a("    v_mul_u32_u24 %s, %d, %s" % (v(vHo), ST3, v(vG)))
    a("    v_add_u32 %s, %s, %s" % (v(vHo), v(vHo), v(vT + 2)))
    for i in (1, 2, 3):
        a("    v_add_u32 %s, 0x%x, %s" % (v(vHo + i), 4 * ST3 * i, v(vHo)))
    a("    s_mul_i32 %s, %s, %d" % (s(sT0), s(sW), 4 * 7168))
    a("    s_lshl_b32 %s, %s, 6" % (s(sT2), s(sFI)))
    a("    s_add_u32 %s, %s, %s" % (s(sT0), s(sT0), s(sT2)))
    a("    s_add_u32 %s, %s, 0x%x" % (s(sT0), s(sT0), S4))
    base(sB2, sWS, s(sT0))
    a("    v_lshrrev_b32 %s, 2, %s" % (v(vT + 2), v(vJ)))
    a("    v_mul_u32_u24 %s, 7168, %s" % (v(vT + 2), v(vT + 2)))
    a("    v_and_b32 %s, 3, v0" % v(vT + 3))
    a("    v_lshl_add_u32 %s, %s, 4, %s" % (v(vAy), v(vT + 3), v(vT + 2)))
    a("    v_lshrrev_b32 %s, 2, %s" % (v(vT + 2), v(vJ)))
    a("    v_and_b32 %s, 3, v0" % v(vT + 3))
    a("    v_lshl_add_u32 %s, %s, 2, %s" % (v(vT + 4), v(vT + 2), v(vG)))
    a("    v_lshlrev_b32 %s, 5, %s" % (v(vT + 4), v(vT + 4)))
    a("    v_lshl_add_u32 %s, %s, 3, %s" % (v(vT + 4), v(vT + 3), v(vT + 4)))
    a("    s_add_u32 %s, %s, 0x%x" % (s(sT2), s(sT1), LG))
    a("    v_add_u32 %s, %s, %s" % (v(vT + 4), s(sT2), v(vT + 4)))
    a("    v_lshl_add_u32 %s, %s, 2, %s" % (v(vT + 5), v(vG), v(vT + 2)))
    a("    v_lshlrev_b32 %s, 7, %s" % (v(vT + 5), v(vT + 5)))
    a("    v_lshl_add_u32 %s, %s, 3, %s" % (v(vT + 5), v(vT + 3), v(vT + 5)))
    a("    s_add_u32 %s, %s, 0x%x" % (s(sT2), s(sT1), LD))
    a("    v_add_u32 %s, %s, %s" % (v(vT + 5), s(sT2), v(vT + 5)))
    for i in range(4):
        a("    v_mov_b32 %s, 0x3f803f80" % v(vHb + i))

    NH = opt.get("dnh", 4)

    def hloadsf():
        for i in range(NH):
            a("    global_load_dwordx4 %s, %s, %s sc1" % (v(vHs + 4 * i, 4), v(vHo + i), s(sB1, 2)))
    a.c("gather the 16 wo partials; meanwhile transpose the weights and take their column sums")
    S3B = opt.get("s3bell", 1)
    PG = opt.get("pg", 0)
    if PG:
        sDone, sNew = sU + 0, sMean
        sDone = sVar
        a("    s_mov_b32 %s, %s" % (s(sRep), s(sT32)))
        a("    s_mov_b32 %s, %s" % (s(sRep + 1), s(sRep)))
        a("    s_and_b32 %s, %s, %d" % (s(sT0), s(sFI), R3 - 1))
        a("    s_lshl_b32 %s, %s, %d" % (s(sT0), s(sT0), RS3))
        a("    s_add_u32 %s, %s, 0x%x" % (s(sT0), s(sT0), SBELL))
        a("    v_mov_b32 %s, 0x%x" % (v(vT + 1), LRM))
        a("    s_mov_b32 %s, 0" % s(sDone))
        a("    s_mov_b32 %s, 0" % s(sSpin))
        sPrev = sPC
        a("    s_mov_b32 %s, 0" % s(sPrev))
        a("L_PG:")
        a("    s_add_u32 %s, %s, 1" % (s(sSpin), s(sSpin)))
        a("    v_xor_b32 %s, 4, %s" % (v(vT + 1), v(vT + 1)))
        a("    s_cmp_lg_u32 %s, 0" % s(sW))
        a("    s_cbranch_scc1 L_PGR")
        a("    s_load_dwordx8 %s, %s, %s glc" % (s(sFl, 8), s(sWS, 2), s(sT0)))
        a("    s_mov_b32 %s, 0" % s(sNew))
        a("    s_waitcnt lgkmcnt(0)")
        for k in range(4):
            a("    s_cmp_eq_u64 %s, %s" % (s(sFl + 2 * k, 2), s(sRep, 2)))
            a("    s_cselect_b32 %s, %d, 0" % (s(sT1), 1 << k))
            a("    s_or_b32 %s, %s, %s" % (s(sNew), s(sNew), s(sT1)))
        a("    s_cmp_ge_u32 %s, 0x%x" % (s(sSpin), SPIN_LIMIT))
        a("    s_cselect_b32 %s, 15, %s" % (s(sNew), s(sNew)))
        if PG >= 2:
            a("    s_cmp_eq_u32 %s, 15" % s(sNew))
            a("    s_cselect_b32 %s, 15, %s" % (s(sT1), s(sPrev)))
            a("    s_mov_b32 %s, %s" % (s(sPrev), s(sNew)))
            a("    s_mov_b32 %s, %s" % (s(sNew), s(sT1)))
        a("    v_mov_b32 %s, %s" % (v(vT + 2), s(sNew)))
        a("    ds_write_b32 %s, %s" % (v(vT + 1), v(vT + 2)))
        a("    s_waitcnt lgkmcnt(0)")
        a("    s_barrier")
        a("    s_branch L_PGI")
        a("L_PGR:")
        a("    s_barrier")
        a("    ds_read_b32 %s, %s" % (v(vT + 2), v(vT + 1)))
        a("    s_waitcnt lgkmcnt(0)")
        a("    v_readfirstlane_b32 %s, %s" % (s(sNew), v(vT + 2)))
        a("L_PGI:")
        a("    s_andn2_b32 %s, %s, %s" % (s(sNew), s(sNew), s(sDone)))
        a("    s_cbranch_scc0 L_PG")
        a("    s_or_b32 %s, %s, %s" % (s(sDone), s(sDone), s(sNew)))
        for i in range(4):
            a("    s_bitcmp1_b32 %s, %d" % (s(sNew), i))
            a("    s_cbranch_scc0 L_PGS%d" % i)
            a("    global_load_dwordx4 %s, %s, %s sc1" % (v(vHs + 4 * i, 4), v(vHo + i), s(sB1, 2)))
            a("L_PGS%d:" % i)
        a("    s_cmp_lg_u32 %s, 15" % s(sDone))
        a("    s_cbranch_scc1 L_PG")
    elif opt.get("sb3", 0):
        a("    s_cmp_lg_u32 %s, 0" % s(sW))
        a("    s_cbranch_scc1 L_HINT")
        if opt.get("dp3", 0) != 2:
            hintprep()
        if opt.get("dp3", 0):
            spoll2(s(sT0), (R3 // 2) << RS3, sRep, P3, sB4 if opt["dp3"] == 2 else sB0, phase=2 if opt["dp3"] == 2 else 0)
        else:
            spoll(sWS, s(sT0), sRep, P3, True)
        a("L_HINT:")
        a("    s_barrier")
    elif S3B:
        a("    s_cmp_lg_u32 %s, 0" % s(sW))
        a("    s_cbranch_scc1 L_HINT")
        a("    v_lshlrev_b32 %s, 7, %s" % (v(vT + 1), v(vL7)))
        a("    v_add_u32 %s, 0x%x, %s" % (v(vT + 1), SBELL, v(vT + 1)))

        def hint():
            a("    global_load_dword %s, %s, %s sc1" % (v(vT + 2), v(vT + 1), s(sWS, 2)))

        def hintcheck():
            a("    v_cmp_ne_u32 vcc, %s, %s" % (s(sT32), v(vT + 2)))
        setexec(0xFF, 0)
        hint()
        poll(hint, hintcheck, 0, cnt=12)
        a("L_HINT:")
        a("    s_barrier")
    if not PG:
        hloadsf()
    for t in ["D0", "D1"][2 - DL:]:
        L[t]()
    a("    s_waitcnt vmcnt(%d)" % (NH + DL))
    stamp(7)
    for mat in range(2):
        for st in range(2):
            for hh in range(2):
                a("    ds_read_b64_tr_b16 %s, %s offset:%d" %
                  (v(vWg + 8 * mat + 4 * st + 2 * hh, 2), v(vT + 4), 16384 * mat + 1024 * st + 512 * hh))
    vAd = V()

    def dreads():
        for t in range(4):
            a("    ds_read_b64_tr_b16 %s, %s offset:%d" % (v(vWd + 2 * t, 2), v(vAd), 32 * t))
    a("    v_mov_b32 %s, %s" % (v(vAd), v(vT + 5)))
    if not DL:
        dreads()
    a("    v_lshlrev_b32 %s, 16, %s" % (v(vXc), v(vXc)))
    if P4:
        a("    v_add_u32 %s, 0x%x, %s" % (v(vAy2), 16 * 7168, v(vAy)))
    if RW:
        a("    s_lshl_b32 %s, %s, 8" % (s(sT0), s(sW)))
        a("    s_add_u32 %s, %s, 0x%x" % (s(sT0), s(sT0), LRED))
        a("    v_lshl_add_u32 %s, v0, 2, %s" % (v(vAy2 + 1), s(sT0)))
    LA = opt.get("la", 0)
    sM0, sM1, sM2, sM8_, sM9 = sB0, sB4, sPC, sMean, sBo
    if LA:
        a("    v_and_b32 %s, 3, v0" % v(vT))
        a("    v_lshl_add_u32 %s, %s, 2, %s" % (v(vT), v(vG), v(vT)))
        a("    v_bfe_u32 %s, v0, 2, 1" % v(vT + 1))
        a("    v_lshl_add_u32 %s, %s, 4, %s" % (v(vT), v(vT + 1), v(vT)))
        a("    v_add_u32 %s, 56, %s" % (v(vT + 1), v(vJ)))
        a("    v_cmp_gt_u32 vcc, 8, %s" % v(vJ))
        a("    v_cndmask_b32 %s, %s, %s, vcc" % (v(vT), v(vT + 1), v(vT)))
        a("    v_lshlrev_b32 %s, 2, %s" % (v(vT), v(vT)))
        a("    v_add_u32 %s, 0x%x, %s" % (v(vAgw), LGP, v(vT)))
        a("    v_lshlrev_b32 %s, 4, %s" % (v(vT), v(vG)))
        a("    v_add_u32 %s, 0x%x, %s" % (v(vAgr), LGP, v(vT)))
        a("    v_mov_b32 %s, 0x%x" % (v(vAsr), LGP + 256))
        for r_, c_ in ((sM0, 0xAAAAAAAA), (sM1, 0xCCCCCCCC), (sM2, 0xF0F0F0F0), (sM8_, 0x01000100), (sM9, 0x02000200)):
            a("    s_mov_b32 %s, 0x%x" % (s(r_), c_))
            a("    s_mov_b32 %s, 0x%x" % (s(r_ + 1), c_))

    def pick(dst):
        a("    v_cndmask_b32 %s, %s, %s, %s" % (v(vD), v(vD), v(vD + 1), s(sM0, 2)))
        a("    v_cndmask_b32 %s, %s, %s, %s" % (v(vD + 2), v(vD + 2), v(vD + 3), s(sM0, 2)))
        a("    v_cndmask_b32 %s, %s, %s, %s" % (v(vDu), v(vDu), v(vDu + 1), s(sM0, 2)))
        a("    v_cndmask_b32 %s, %s, %s, %s" % (v(vDu + 2), v(vDu + 2), v(vDu + 3), s(sM0, 2)))
        a("    v_cndmask_b32 %s, %s, %s, %s" % (v(vD), v(vD), v(vD + 2), s(sM1, 2)))
        a("    v_cndmask_b32 %s, %s, %s, %s" % (v(vDu), v(vDu), v(vDu + 2), s(sM1, 2)))
        a("    v_cndmask_b32 %s, %s, %s, %s" % (v(dst), v(vD), v(vDu), s(sM2, 2)))
    CF2 = opt.get("cf", 0) == 2
    vOne = V(4, 4) if CF2 else None
    vC1 = V(8, 4) if CF2 else None

    def gate_up(b0, b1, d0=None, d1=None):
        d0 = vD if d0 is None else d0
        d1 = vDu if d1 is None else d1
        a("    v_mfma_f32_16x16x32_bf16 %s, %s, %s, 0" % (v(d0, 4), v(vWg, 4), v(b0, 4)))
        a("    v_mfma_f32_16x16x32_bf16 %s, %s, %s, 0" % (v(d1, 4), v(vWg + 8, 4), v(b0, 4)))
        a("    v_mfma_f32_16x16x32_bf16 %s, %s, %s, %s" % (v(d0, 4), v(vWg + 4, 4), v(b1, 4), v(d0, 4)))
        a("    v_mfma_f32_16x16x32_bf16 %s, %s, %s, %s" % (v(d1, 4), v(vWg + 12, 4), v(b1, 4), v(d1, 4)))
    if CF2:
        for i in range(4):
            a("    v_mov_b32 %s, 0x3f803f80" % v(vOne + i))
    else:
        a("    s_waitcnt lgkmcnt(0)")
        gate_up(vHb, vHb)
        if LA:
            pick(vD)
            setexec(0x00FF00FF, 0x00FF00FF)
            a("    ds_add_f32 %s, %s offset:128" % (v(vAgw), v(vD)))
        else:
            setexec(0x00010001, 0x00010001)
            a("    ds_write_b128 %s, %s offset:%d" % (v(vAgw), v(vD, 4), LCS - LGP))
            a("    ds_write_b128 %s, %s offset:%d" % (v(vAgw), v(vDu, 4), LCS - LGP + 64))
        setexec(0xFFFFFFFF, 0xFFFFFFFF)
    CF = opt.get("cf", 0)
    if not CF:
        a("    s_waitcnt lgkmcnt(0)")
        a("    s_barrier")
        a("    ds_read_b128 %s, %s offset:%d" % (v(vCs, 4), v(vAgr), LCS - LGP))
        a("    s_waitcnt lgkmcnt(0)")
        for pat in ("quad_perm:[1,0,3,2]", "quad_perm:[2,3,0,1]", "row_half_mirror"):
            for r in range(4):
                a("    v_add_f32_dpp %s, %s, %s %s %s" % (v(vCs + r), v(vCs + r), v(vCs + r), pat, DPP))

    vHa = V(4, 4)

    def sumacc(dst, src):
        def f(i):
            for r in (0, 2):
                if i == 1:
                    a("    v_pk_add_f32 %s, %s, %s" % (v(dst + r, 2), v(src + r, 2), v(src + 4 + r, 2)))
                elif i > 1:
                    a("    v_pk_add_f32 %s, %s, %s" % (v(dst + r, 2), v(dst + r, 2), v(src + 4 * i + r, 2)))
        return f
    gather(hloadsf, [vHs + 4 * i for i in range(NH)], sTag10, 0x3ff, sumacc(vHa, vHs), cnt=13, ordered=not PG, younger=DL)
    stamp(8)
    if CF2:
        a("    s_waitcnt lgkmcnt(0)")
        gate_up(vOne, vOne, vC1, vC1 + 4)
    vHs = vHa
    a.c("h, gate / up products on h itself, statistics of h")
    treduce4(vHs)
    bf16r(vHs, vHs)
    a("    v_add_f32 %s, %s, %s" % (v(vHs), v(vHs), v(vXc)))
    rowpack(vHs, vHb, 8)
    bf16r(vHr, vHs)
    gate_up(vHb, vHb + 4)
    if RW:
        a("    ds_write_b32 %s, %s" % (v(vAy2 + 1), v(vHr)))
    if CF2:
        setexec(0x00010001, 0x00010001)
        a("    ds_write_b128 %s, %s offset:%d" % (v(vAgw), v(vC1, 4), LCS - LGP))
        a("    ds_write_b128 %s, %s offset:%d" % (v(vAgw), v(vC1 + 4, 4), LCS - LGP + 64))
        setexec(0xFFFFFFFF, 0xFFFFFFFF)
    a("    v_mul_f32 %s, %s, %s" % (v(vT + 1), v(vHr), v(vHr)))
    a("    v_add_f32_dpp %s, %s, %s row_ror:1 %s" % (v(vT), v(vHr), v(vHr), DPP))
    a("    v_add_f32_dpp %s, %s, %s row_ror:1 %s" % (v(vT + 1), v(vT + 1), v(vT + 1), DPP))
    for sh in (2, 4, 8):
        for r in range(2):
            a("    v_add_f32_dpp %s, %s, %s row_ror:%d %s" % (v(vT + r), v(vT + r), v(vT + r), sh, DPP))
    if LA:
        pick(vD)
        a("    v_cndmask_b32 %s, %s, %s, %s" % (v(vD), v(vD), v(vT), s(sM8_, 2)))
        a("    v_cndmask_b32 %s, %s, %s, %s" % (v(vD), v(vD), v(vT + 1), s(sM9, 2)))
        setexec(0x03FF03FF, 0x03FF03FF)
        a("    ds_add_f32 %s, %s" % (v(vAgw), v(vD)))
        setexec(0xFFFFFFFF, 0xFFFFFFFF)
        a("    s_waitcnt lgkmcnt(0)")
        a("    s_barrier")
    else:
        for pat in ("row_bcast:15 row_mask:0xa", "row_bcast:31 row_mask:0xc"):
            for r in range(2):
                a("    v_add_f32_dpp %s, %s, %s %s bank_mask:0xf" % (v(vT + r), v(vT + r), v(vT + r), pat))
        if opt.get("fst") == 1:
            stamp(3)
        setexec(0, 0x80000000)
        a("    ds_write_b64 %s, %s" % (v(vAsw), v(vT, 2)))
        setexec(0x00010001, 0x00010001)
        a("    ds_write_b128 %s, %s" % (v(vAgw), v(vD, 4)))
        a("    ds_write_b128 %s, %s offset:64" % (v(vAgw), v(vDu, 4)))
        setexec(0xFFFFFFFF, 0xFFFFFFFF)
        a("    s_waitcnt lgkmcnt(0)")
        a("    s_barrier")
    cstamp(1)
    if DL:
        assert not P4
    if P4:
        a("    s_cmp_ge_u32 %s, 4" % s(sW))
        a("    s_cbranch_scc1 L_FIN2")
    a("    ds_read_b64 %s, %s" % (v(vT, 2), v(vAsr)))
    a("    ds_read_b128 %s, %s" % (v(vD, 4), v(vAgr)))
    if LA:
        a("    ds_read_b128 %s, %s offset:128" % (v(vCs, 4), v(vAgr)))
        a("    ds_read_b128 %s, %s offset:64" % (v(vHb, 4), v(vAgr)))
        a("    ds_read_b128 %s, %s offset:192" % (v(vHb + 4, 4), v(vAgr)))
    elif CF:
        a("    ds_read_b128 %s, %s offset:%d" % (v(vCs, 4), v(vAgr), LCS - LGP))
    if P4:
        assert CF
        for t in range(4):
            a("    ds_read_b64_tr_b16 %s, %s offset:%d" % (v(vWd2 + 2 * t, 2), v(vAd), 8192 + 32 * t))
    pats = ("quad_perm:[1,0,3,2]", "quad_perm:[2,3,0,1]", "row_half_mirror")

    def meanfix():
        a.c("g u with the mean removed, down projection, 1 / sigma^2, publish")
        a("    v_mul_f32 %s, 0x3b000000, %s" % (v(vT), v(vT)))
        bf16r(vT + 2, vT)
        for r in (0, 2):
            a("    v_pk_fma_f32 %s, %s, %s, %s op_sel_hi:[0,1,1] neg_lo:[1,0,0] neg_hi:[1,0,0]" %
              (v(vD + r, 2), v(vT + 2, 2), v(vCs + r, 2), v(vD + r, 2)))
    if LA:
        a("    s_waitcnt lgkmcnt(%d)" % (0 if prof else 4))
        a("    v_mul_f32 %s, 0x3b000000, %s" % (v(vT), v(vT)))
        bf16r(vT + 2, vT)
        a("    s_waitcnt lgkmcnt(%d)" % (0 if prof else 2))
        for r in (0, 2):
            a("    v_pk_fma_f32 %s, %s, %s, %s op_sel_hi:[0,1,1] neg_lo:[1,0,0] neg_hi:[1,0,0]" %
              (v(vD + r, 2), v(vT + 2, 2), v(vCs + r, 2), v(vD + r, 2)))
        a("    s_waitcnt lgkmcnt(0)")
        cstamp(2)
        for r in (0, 2):
            a("    v_pk_fma_f32 %s, %s, %s, %s op_sel_hi:[0,1,1] neg_lo:[1,0,0] neg_hi:[1,0,0]" %
              (v(vHb + r, 2), v(vT + 2, 2), v(vHb + 4 + r, 2), v(vHb + r, 2)))
    elif CF:
        a("    s_waitcnt lgkmcnt(%d)" % (0 if prof else (6 if P4 else 2)))
        for pat in pats:
            for r in (vT, vT + 1):
                a("    v_add_f32_dpp %s, %s, %s %s %s" % (v(r), v(r), v(r), pat, DPP))
        a("    s_waitcnt lgkmcnt(%d)" % (4 if P4 and not prof else 0))
        cstamp(2)
        meanfix()
        for pat in pats:
            for r in range(4):
                a("    v_add_f32_dpp %s, %s, %s %s %s" % (v(vD + r), v(vD + r), v(vD + r), pat, DPP))
    else:
        a("    s_waitcnt lgkmcnt(0)")
        for pat in pats:
            for r in (vT, vT + 1, vD, vD + 1, vD + 2, vD + 3):
                a("    v_add_f32_dpp %s, %s, %s %s %s" % (v(r), v(r), v(r), pat, DPP))
        meanfix()
    cstamp(3)
    a("    v_mul_f32 %s, 0x3b000000, %s" % (v(vT + 1), v(vT + 1)))
    a("    v_fma_f32 %s, -%s, %s, %s" % (v(vT + 1), v(vT), v(vT), v(vT + 1)))
    if LA:
        for r in (0, 2):
            a("    v_pk_mul_f32 %s, %s, %s" % (v(vT + 4 + r, 2), v(vD + r, 2), v(vHb + r, 2)))
    else:
        for r in range(4):
            a("    v_mul_f32_dpp %s, %s, %s row_ror:8 %s" % (v(vT + 4 + r), v(vD + r), v(vD + r), DPP))
    a("    v_cvt_pk_bf16_f32 %s, %s, %s" % (v(vT + 2), v(vT + 4), v(vT + 5)))
    a("    v_cvt_pk_bf16_f32 %s, %s, %s" % (v(vT + 3), v(vT + 6), v(vT + 7)))
    if DL or P4:
        a("    s_waitcnt lgkmcnt(0)")
    for t in range(4):
        a("    v_and_b32 %s, %s, %s" % (v(vB + 2 * t), v(vT + 2), v(vMt + t)))
        a("    v_and_b32 %s, %s, %s" % (v(vB + 2 * t + 1), v(vT + 3), v(vMt + t)))
        if t:
            a("    v_mfma_f32_16x16x16_bf16 %s, %s, %s, %s" %
              (v(vDu, 4), v(vB + 2 * t - 2, 2), v(vWd + 2 * t - 2, 2), "0" if t == 1 else v(vDu, 4)))
            if P4:
                a("    v_mfma_f32_16x16x16_bf16 %s, %s, %s, %s" %
                  (v(vDv, 4), v(vB + 2 * t - 2, 2), v(vWd2 + 2 * t - 2, 2), "0" if t == 1 else v(vDv, 4)))
    cstamp(4)
    a("    v_max_f32 %s, 0, %s" % (v(vT + 1), v(vT + 1)))
    a("    v_mfma_f32_16x16x16_bf16 %s, %s, %s, %s" % (v(vDu, 4), v(vB + 6, 2), v(vWd + 6, 2), v(vDu, 4)))
    if P4:
        a("    v_mfma_f32_16x16x16_bf16 %s, %s, %s, %s" % (v(vDv, 4), v(vB + 6, 2), v(vWd2 + 6, 2), v(vDv, 4)))
    bf16r(vT + 1, vT + 1)
    a("    v_add_f32 %s, 0x3727c5ac, %s" % (v(vT + 1), v(vT + 1)))
    bf16r(vT + 1, vT + 1)
    a("    v_sqrt_f32 %s, %s" % (v(vT + 1), v(vT + 1)))
    bf16r(vT + 1, vT + 1)
    a("    v_mul_f32 %s, %s, %s" % (v(vT + 1), v(vT + 1), v(vT + 1)))
    a("    v_rcp_f32 %s, %s" % (v(vT), v(vT + 1)))
    cstamp(5)
    setexec(0xFFFF, 0)
    for r in (0, 2):
        a("    v_pk_mul_f32 %s, %s, %s op_sel_hi:[1,0]" % (v(vDu + r, 2), v(vDu + r, 2), v(vT, 2)))
    for i in range(4):
        a("    v_and_or_b32 %s, %s, %s, %s" % (v(vDu + i), v(vDu + i), s(sM10), v(vTag10)))
    a("    global_store_dwordx4 %s, %s, %s sc1" % (v(vAy), v(vDu, 4), s(sB2, 2)))
    cstamp(6)
    if P4:
        for r in (0, 2):
            a("    v_pk_mul_f32 %s, %s, %s op_sel_hi:[1,0]" % (v(vDv + r, 2), v(vDv + r, 2), v(vT, 2)))
        for i in range(4):
            a("    v_and_or_b32 %s, %s, %s, %s" % (v(vDv + i), v(vDv + i), s(sM10), v(vTag10)))
        a("    global_store_dwordx4 %s, %s, %s sc1" % (v(vAy2), v(vDv, 4), s(sB2, 2)))
    stamp(9)
    if RW:
        a("    s_cmp_ge_u32 %s, 32" % s(sFI))
        a("    s_cbranch_scc1 L_FIN2")
    a.c("final sum over the 112 partials for 16 columns")
    a("    s_lshr_b32 %s, %s, 2" % (s(sT0), s(sFI)))
    if RW:
        a("    s_and_b32 %s, %s, 3" % (s(sT1), s(sT0)))
        if opt.get("rw") == 2:
            a("    s_add_u32 %s, %s, 4" % (s(sT1), s(sT1)))
        a("    s_cmp_lg_u32 %s, %s" % (s(sT1), s(sW)))
        a("    s_cbranch_scc1 L_FIN2")
        a("    s_mov_b32 %s, %s" % (s(sMean), s(sT0)))
    else:
        a("    s_cmp_lg_u32 %s, %s" % (s(sT0), s(sW)))
        a("    s_cbranch_scc1 L_FIN2")
    setexec(0xFFFFFFFF, 0xFFFFFFFF)
    if opt.get("yd", 0) >= 1:
        a("    s_waitcnt vmcnt(0)")
    vY = V(28, 4)
    vCo = V()
    a("    v_and_b32 %s, 3, v0" % v(vT))
    a("    v_lshlrev_b32 %s, 2, %s" % (v(vT + 1), v(vG)))
    a("    v_lshl_add_u32 %s, %s, 4, %s" % (v(vT + 1), v(vT), v(vT + 1)))
    a("    v_add_u32 %s, %s, %s" % (v(vT + 1), s(sU), v(vT + 1)))
    a("    v_lshlrev_b32 %s, 2, %s" % (v(vT + 1), v(vT + 1)))
    if RW:
        a("    s_lshl_b32 %s, %s, 8" % (s(sT0), s(sMean)))
        a("    s_add_u32 %s, %s, 0x%x" % (s(sT0), s(sT0), LRED))
        a("    v_add_u32 %s, %s, %s" % (v(vT + 1), s(sT0), v(vT + 1)))
        a("    ds_read_b32 %s, %s" % (v(vHr), v(vT + 1)))
    else:
        a("    ds_bpermute_b32 %s, %s, %s" % (v(vHr), v(vT + 1), v(vHr)))
    a("    v_lshl_add_u32 %s, %s, 4, %s" % (v(vCo), v(vG), v(vT)))
    a("    v_lshlrev_b32 %s, 1, %s" % (v(vCo), v(vCo)))
    a("    s_lshl_b32 %s, %s, 7" % (s(sT0), s(sMean if RW else sW)))
    a("    s_lshl_b32 %s, %s, 3" % (s(sT1), s(sU)))
    a("    s_add_u32 %s, %s, %s" % (s(sT0), s(sT0), s(sT1)))
    base(sB3, sOUT, s(sT0))
    if opt.get("odiag"):
        a("    s_lshl_b32 %s, %s, 12" % (s(sT0), s(sFI)))
        a("    s_add_u32 %s, %s, 0x180000" % (s(sT0), s(sT0)))
        base(sB3, sWS, s(sT0))
        if opt["odiag"] == 2:
            a("    v_lshlrev_b32 %s, 4, %s" % (v(vCo), v(vCo)))
    a("    s_mul_i32 %s, %s, 7168" % (s(sT1), s(sFI)))
    a("    s_add_u32 %s, %s, 0x%x" % (s(sT1), s(sT1), S4 + 3072))
    base(sB2, sWS, s(sT1))

    def yloads():
        for n in range(7):
            a("    global_load_dwordx4 %s, %s, %s offset:%d%s" % (v(vY + 4 * n, 4), v(vAo), s(sB2, 2), 1024 * n - 3072,
                                                                 [" sc1", " sc1 nt", " sc0 sc1 nt", " sc0 sc1"][opt.get("yl", 0)]))

    if opt.get("ackwait", 1):
        a("    s_waitcnt vmcnt(0)")
    if opt.get("yd", 0) >= 2:
        a("    global_load_ushort %s, %s, %s sc1" % (v(vY), v(vCo), s(sB3, 2)))
        a("    s_waitcnt vmcnt(0)")
    yloads()
    gather(yloads, [vY + 4 * i for i in range(7)], sTag10, 0x3ff, sumacc(vHa, vY), cnt=15)
    if not opt.get("astamps"):
        stamp(14)
    vY = vHa
    treduce4(vY)
    for sh in (4, 8):
        a("    v_add_f32_dpp %s, %s, %s row_ror:%d %s" % (v(vY), v(vY), v(vY), sh, DPP))
    bf16r(vY, vY)
    a("    s_waitcnt lgkmcnt(0)")
    a("    v_add_f32 %s, %s, %s" % (v(vY), v(vY), v(vHr)))
    a("    v_cvt_pk_bf16_f32 %s, %s, %s" % (v(vY), v(vY), v(vY)))
    setexec(0x000F000F, 0x000F000F)
    a("    global_store_short %s, %s, %s%s" % (v(vCo), v(vY), s(sB3, 2), ["", " sc1", " nt", " sc0 sc1"][opt.get("ost", 0)]))
    a("    s_cmp_lg_u32 %s, 0" % s(sFI))
    a("    s_cbranch_scc1 L_FIN2")
    setexec(1, 0)
    a("    v_mov_b32 %s, 0" % v(vT))
    a("    v_mov_b32 %s, %s" % (v(vT + 1), s(sT32)))
    a("    global_store_dword %s, %s, %s sc1" % (v(vT), v(vT + 1), s(sWS, 2)))
    if opt.get("diagspin"):
        a("    s_waitcnt lgkmcnt(0)")
        if "diagph" in opt:
            a("    s_sub_u32 s90, s90, s96")
            a("    s_lshl_b32 s90, s90, 2")
            a("    s_add_u32 s96, s96, s90")
        a("    s_add_u32 s96, s96, %d" % opt["diagspin"])
        a("L_DIAG:")
        a("    s_memrealtime s[92:93]")
        a("    s_waitcnt lgkmcnt(0)")
        a("    s_sub_u32 s92, s92, s96")
        a("    s_cmp_lt_i32 s92, 0")
        a("    s_cbranch_scc1 L_DIAG")
    a("L_FIN2:")
    finish()

    if prof:
        a("L_PROF:")
        a("    s_memrealtime %s" % s(sPROF + 20, 2))
        a("    s_mov_b64 exec, 1")
        a("    s_lshl_b32 %s, s2, 3" % s(sT0))
        a("    s_add_u32 %s, %s, %s" % (s(sT0), s(sT0), s(sW)))
        a("    s_lshl_b32 %s, %s, 7" % (s(sT0), s(sT0)))
        a("    s_add_u32 %s, %s, 0x%x" % (s(sT0), s(sT0), PROFB))
        base(sB0, sWS, s(sT0))
        a("    v_mov_b32 v1, 0")
        a("    s_waitcnt lgkmcnt(0)")
        for i in range(16):
            a("    v_mov_b32 v2, %s" % s(sPROF + 2 * i))
            if prof == 2:
                a("    global_atomic_umax v1, v2, %s offset:%d sc1" % (s(sDBG, 2), 4 * i))
            else:
                a("    global_store_dword v1, v2, %s offset:%d" % (s(sB0, 2), 4 * i))
        if prof == 2:
            a("    s_not_b32 %s, %s" % (s(sT0), s(sPROF)))
            a("    v_mov_b32 v2, %s" % s(sT0))
            a("    global_atomic_umax v1, v2, %s offset:48 sc1" % s(sDBG, 2))
        a("    s_endpgm")
    a("L_END:")
    a("    s_endpgm")
    a("L_CODE_END:")
    nv = (V.hi + 7) // 8 * 8
    a('.section .rodata,"a"')
    a(".p2align 6")
    a(".amdhsa_kernel %s_kernel" % NAME)
    a("  .amdhsa_next_free_vgpr %d" % nv)
    a("  .amdhsa_next_free_sgpr 102")
    a("  .amdhsa_accum_offset %d" % nv)
    a("  .amdhsa_group_segment_fixed_size 0")
    a("  .amdhsa_kernarg_size 96")
    a("  .amdhsa_user_sgpr_count 2")
    a("  .amdhsa_user_sgpr_kernarg_segment_ptr 1")
    a("  .amdhsa_system_sgpr_workgroup_id_x 1")
    a("  .amdhsa_float_denorm_mode_32 3")
    a(".end_amdhsa_kernel")
    return out + a.finalize()


if __name__ == "__main__":
    import argparse
    ap = argparse.ArgumentParser()
    ap.add_argument("-o", default=None)
    ap.add_argument("--prof", type=int, default=0)
    ap.add_argument("--opt", default="")
    args = ap.parse_args()
    opt = {}
    for kv in args.opt.split(","):
        if kv:
            k, x = kv.split("=")
            opt[k] = int(x)
    txt = gen(args.prof, opt)
    path = args.o or os.path.join(os.path.dirname(os.path.abspath(__file__)), "..", "cdna_kernels", NAME + ".s")
    open(path, "w").write(txt)
    print("wrote", path, len(txt.split("\n")), "lines")
```

```python
import sys
import os
sys.path.insert(0, os.path.dirname(os.path.abspath(__file__)))
from asmlib import Asm

NAME = "sequential_preLN__sliding_block_cached__glu_gated_bilinear__decode"

EPOCH = 0
S1 = 0x20000
S2ML = 0x11000
S3 = 0x40000
S4 = 0xF8000
SBELL = 0x160000
SRDY = 0x138000
SQF = 0x5C000
S2O = 0x60000
PROFB = 0x200000

LK = 0
LV = 32768
LG = 65536
LD = 98304
LRED = 114688
LQ = 119040
LMX = 120128
LLS = 120256
LP = 120768
LH = 121856
LGP = 122880
LCS = 123904
LST = 124928
LWT = 124992
LEP = 125504
LRM = 125512
LDS_BYTES = 125568

DPP = "row_mask:0xf bank_mask:0xf"
SPIN_LIMIT = 1 << 18


class Regs:
    def __init__(self, start):
        self.n = start
        self.hi = start

    def __call__(self, cnt=1, align=None):
        if align is None:
            align = 2 if cnt > 1 else 1
        self.n = (self.n + align - 1) // align * align
        b = self.n
        self.n += cnt
        self.hi = max(self.hi, self.n)
        return b

    def mark(self):
        return self.n

    def release(self, m):
        self.n = m


def v(b, n=1):
    return "v%d" % b if n == 1 else "v[%d:%d]" % (b, b + n - 1)


def s(b, n=1):
    return "s%d" % b if n == 1 else "s[%d:%d]" % (b, b + n - 1)


def gen(prof=False, opt=None):
    opt = dict(opt or {})
    global S1, S3, S4, SRDY, SBELL, S2ML, S2O
    if opt.get("lay") == 1:
        S1, S3, S4, SRDY, SBELL = 0x1000, 0x15000, 0xE0000, 0x120000, 0x140000
    if opt.get("lay") == 2:
        S1, S2ML, S3, SBELL, SRDY, S4, S2O = 0x1000, 0x11000, 0x15000, 0x1D000, 0x20000, 0x40000, 0x80000
    if opt.get("lay") == 3:
        S1, S2ML, S3, SBELL, SRDY, S4, S2O = 0x1080, 0x11100, 0x15180, 0x1D280, 0x20300, 0x40380, 0x80400
    for k_, x_ in dict(bx=0, qpol=4, win=3, mb=0, sw=6, sf=1, ft=25, t0p=2, fack=0, ost=1, amx=0, pl=0, sb2=3, sb3=1, rs2=10, dh=4, cf=1, hp=2, c3=1, wt=2, ln1p=1, lq=2, k2p=1, k1p=2).items():
        opt.setdefault(k_, x_)
    a = Asm()
    V = Regs(1)
    sX, sK, sVp, sWQ, sWO, sBX, sWG, sWU = 4, 6, 8, 10, 12, 14, 16, 18
    sWD, sOUT, sDBG, sWS = 20, 22, 24, 26
    sE, sW, sH, sJ = 28, 29, 30, 31
    sT0, sT1, sT2, sT3 = 32, 33, 34, 35
    sB0, sB1, sB2, sB3 = 36, 38, 40, 42
    sM8, sM10, sTag8, sTag10, sT32 = 44, 45, 46, 47, 48
    sSpin, sTmp, sDummy = 49, 50, 51
    sPC = 52
    sB4 = 54
    sU, sFI = 56, 57
    sMean, sVar = 58, 59
    sBo, sBml = 60, 62
    sBfl = 94
    sB5, sInb = 98, 100
    sFl = 4
    sRep = 92
    sScale = 14
    sPROF = 64
    uid = [0]
    ST1, ST2, ST3 = opt.get("st1", 2048), opt.get("st2", 2048), opt.get("st3", 2048)
    XS = ["", " nt", " sc0"][opt.get("xsk", 0)] if opt.get("xs", 0) & 1 else " sc1"
    R2, R3 = opt.get("r2", 4), opt.get("r3", 16)
    RS2, RS3 = opt.get("rs2", 8), opt.get("rs3", 7)
    P2, P3 = opt.get("p2", 2), opt.get("p3", 1)
    vm = []

    def waitfor(name):
        n = len(vm) - 1 - vm.index(name)
        a("    s_waitcnt vmcnt(%d)" % n)

    STM = opt.get("stamps", 0xFFFF)

    def stamp(i):
        if opt.get("diagph") == i:
            a("    s_memrealtime s[90:91]")
        if prof and (STM >> i) & 1:
            a("    s_memrealtime %s" % s(sPROF + 2 * i, 2))

    def gstamp(i):
        if prof and opt.get("cst") == 2:
            a("    s_memtime %s" % s(sPROF + 2 * i, 2))

    def cstamp(i):
        if prof and opt.get("cst") == 1:
            a("    s_memtime %s" % s(sPROF + 2 * i, 2))

    def setexec(lo, hi):
        if lo == hi == 0xFFFFFFFF:
            a("    s_mov_b64 exec, -1")
        else:
            a("    s_mov_b32 exec_lo, 0x%x" % lo)
            a("    s_mov_b32 exec_hi, 0x%x" % hi)

    def base(dst, ptr, off_sreg):
        a("    s_add_u32 %s, %s, %s" % (s(dst), s(ptr), off_sreg))
        a("    s_addc_u32 %s, %s, 0" % (s(dst + 1), s(ptr + 1)))

    def finish():
        if prof:
            a("    s_branch L_PROF")
        else:
            a("    s_endpgm")

    def bf16r(dst, src):
        a("    v_cvt_pk_bf16_f32 %s, %s, %s" % (v(dst), v(src), v(src)))
        a("    v_and_b32 %s, 0xffff0000, %s" % (v(dst), v(dst)))

    def wavesum_to_sgpr(r, sd):
        for sh in (1, 2, 4, 8):
            a("    v_add_f32_dpp %s, %s, %s row_ror:%d %s" % (v(r), v(r), v(r), sh, DPP))
        a("    v_add_f32_dpp %s, %s, %s row_bcast:15 row_mask:0xa bank_mask:0xf" % (v(r), v(r), v(r)))
        a("    v_add_f32_dpp %s, %s, %s row_bcast:31 row_mask:0xc bank_mask:0xf" % (v(r), v(r), v(r)))
        a("    v_readlane_b32 %s, %s, 63" % (s(sd), v(r)))

    def tagcheck(regs, tagreg, tmp, first=True):
        for i, r in enumerate(regs):
            if first and i == 0:
                a("    v_xor_b32 %s, %s, %s" % (v(tmp), s(tagreg), v(r)))
            else:
                a("    v_bitop3_b32 %s, %s, %s, %s bitop3:0xf6" % (v(tmp), v(tmp), v(r), s(tagreg)))

    def poll(loads, check, firstwait, post=None, cnt=None, keepexec=False):
        uid[0] += 1
        u = uid[0]
        a("    s_mov_b32 %s, 0" % s(sSpin))
        a("    s_branch L_CHECK%d" % u)
        a("L_RETRY%d:" % u)
        a("    s_add_u32 %s, %s, 1" % (s(sSpin), s(sSpin)))
        a("    s_cmp_ge_u32 %s, 0x%x" % (s(sSpin), SPIN_LIMIT))
        a("    s_cbranch_scc1 L_OK%d" % u)
        a("    s_mov_b64 exec, vcc")
        loads()
        if firstwait:
            a("    s_waitcnt vmcnt(0)")
        a("L_CHECK%d:" % u)
        a("    s_waitcnt vmcnt(%d)" % firstwait)
        check()
        a("    s_cbranch_vccnz L_RETRY%d" % u)
        a("L_OK%d:" % u)
        a("    s_mov_b64 exec, -1")
        if prof and cnt is not None and (not opt.get("astamps") or cnt == 15):
            a("    s_mov_b32 %s, %s" % (s(sPROF + 2 * cnt), s(sSpin)))
        if post:
            post()

    def spoll(pair, off, rep, parts=1, rep3=False, tries=None, fail=None):
        uid[0] += 1
        u = uid[0]
        a("    s_mov_b32 %s, 0" % s(sSpin))
        depth = opt.get("spd", 1)
        if depth > 1:
            for k in range(4):
                a("    s_not_b64 %s, %s" % (s(sFl + 2 * k, 2), s(rep, 2)))
            a("L_SP%d:" % u)
            a("    s_add_u32 %s, %s, 1" % (s(sSpin), s(sSpin)))
            a("    s_cmp_ge_u32 %s, 0x%x" % (s(sSpin), SPIN_LIMIT))
            a("    s_cbranch_scc1 L_SPD%d" % u)
            a("    s_load_dwordx8 %s, %s, %s glc" % (s(sFl, 8), s(pair, 2), off))
            a("    s_waitcnt lgkmcnt(%d)" % (2 * depth - 2))
            for k in range(4):
                a("    s_cmp_eq_u64 %s, %s" % (s(sFl + 2 * k, 2), s(rep, 2)))
                a("    s_cbranch_scc0 L_SP%d" % u)
            a("L_SPD%d:" % u)
            return
        if parts > 1:
            base(sB0 if rep3 else sB1, pair, off)
        a("L_SP%d:" % u)
        if parts == 1:
            a("    s_load_dwordx8 %s, %s, %s glc" % (s(sFl, 8), s(pair, 2), off))
        else:
            n = 8 // parts
            for k in range(parts):
                a("    s_load_dword%s %s, %s, 0x%x glc" % ("" if n == 1 else "x%d" % n, s(sFl + n * k, n), s(sB0 if rep3 else sB1, 2), 128 * k))
        a("    s_add_u32 %s, %s, 1" % (s(sSpin), s(sSpin)))
        if tries is None:
            a("    s_cmp_ge_u32 %s, 0x%x" % (s(sSpin), SPIN_LIMIT))
        a("    s_waitcnt lgkmcnt(0)")
        if tries is None:
            a("    s_cbranch_scc1 L_SPD%d" % u)
        for k in range(4):
            a("    s_xor_b64 %s, %s, %s" % (s(sFl + 2 * k, 2), s(sFl + 2 * k, 2), s(rep, 2)))
        a("    s_or_b64 %s, %s, %s" % (s(sFl, 2), s(sFl, 2), s(sFl + 2, 2)))
        a("    s_or_b64 %s, %s, %s" % (s(sFl + 4, 2), s(sFl + 4, 2), s(sFl + 6, 2)))
        a("    s_or_b64 %s, %s, %s" % (s(sFl, 2), s(sFl, 2), s(sFl + 4, 2)))
        if tries is None:
            a("    s_cbranch_scc1 L_SP%d" % u)
        elif tries == 1:
            a("    s_cbranch_scc1 %s" % fail)
        else:
            a("    s_cbranch_scc0 L_SPD%d" % u)
            a("    s_cmp_lt_u32 %s, %d" % (s(sSpin), tries))
            a("    s_cbranch_scc1 L_SP%d" % u)
            a("    s_branch %s" % fail)
        a("L_SPD%d:" % u)

    def spoll2(offA, dist, rep, parts, bp, between=None, phase=0):
        assert not prof
        uid[0] += 1
        u = uid[0]
        sets = (sFl, 64)
        n = 8 // parts
        SENT = 0x5a5aa5a5
        if phase != 2:
            base(bp, sWS, offA)

        def issue(k):
            a("    s_mov_b32 %s, 0x%x" % (s(sets[k] + 7), SENT))
            for q in range(parts):
                a("    s_load_dword%s %s, %s, 0x%x glc" % ("x%d" % n, s(sets[k] + n * q, n), s(bp, 2), 128 * q + dist * k))
        if phase != 2:
            issue(0)
        if phase == 1:
            return
        issue(1)
        a("    s_mov_b32 %s, 0" % s(sSpin))
        for k in (0, 1):
            a("L_S2%d_%d:" % (u, k))
            if k == 0:
                a("    s_add_u32 %s, %s, 1" % (s(sSpin), s(sSpin)))
                a("    s_cmp_ge_u32 %s, 0x%x" % (s(sSpin), SPIN_LIMIT * 8))
                a("    s_cbranch_scc1 L_S2D%d" % u)
            a("    s_cmp_eq_u32 %s, 0x%x" % (s(sets[k] + 7), SENT))
            a("    s_cbranch_scc1 L_S2%d_%d" % (u, 1 - k))
            for q in range(4):
                a("    s_cmp_eq_u64 %s, %s" % (s(sets[k] + 2 * q, 2), s(rep, 2)))
                a("    s_cbranch_scc0 L_S2R%d_%d" % (u, k))
            a("    s_branch L_S2D%d" % u)
            a("L_S2R%d_%d:" % (u, k))
            issue(k)
            if k == 1:
                a("    s_branch L_S2%d_0" % u)
        a("L_S2D%d:" % u)

    def gather(loads, regs, tag, lowmask, acc, cnt=None, before=None, ordered=True, younger=0):
        uid[0] += 1
        u = uid[0]
        n = len(regs)

        def strip(i, first):
            r = regs[i]
            for k in range(4):
                a("    v_xor_b32 %s, %s, %s" % (v(r + k), s(tag), v(r + k)))
            if first:
                a("    v_or3_b32 %s, %s, %s, %s" % (v(vG0), v(r), v(r + 1), v(r + 2)))
                a("    v_or_b32 %s, %s, %s" % (v(vG0), v(vG0), v(r + 3)))
            else:
                a("    v_or3_b32 %s, %s, %s, %s" % (v(vG0), v(vG0), v(r), v(r + 1)))
                a("    v_or3_b32 %s, %s, %s, %s" % (v(vG0), v(vG0), v(r + 2), v(r + 3)))

        def verdict():
            a("    v_and_b32 %s, 0x%x, %s" % (v(vG0), lowmask, v(vG0)))
            a("    v_cmp_ne_u32 vcc, 0, %s" % v(vG0))
        a("    s_mov_b32 %s, 0" % s(sSpin))
        a("    s_branch L_FIRST%d" % u)
        a("L_RETRY%d:" % u)
        a("    s_add_u32 %s, %s, 1" % (s(sSpin), s(sSpin)))
        a("    s_cmp_ge_u32 %s, 0x%x" % (s(sSpin), SPIN_LIMIT))
        a("    s_cbranch_scc1 L_REDO%d" % u)
        a("    s_mov_b64 exec, vcc")
        loads()
        a("    s_waitcnt vmcnt(0)")
        for i in range(n):
            strip(i, i == 0)
        verdict()
        a("    s_cbranch_vccnz L_RETRY%d" % u)
        a("L_REDO%d:" % u)
        a("    s_mov_b64 exec, -1")
        for i in range(n):
            acc(i)
        a("    s_branch L_OK%d" % u)
        a("L_FIRST%d:" % u)
        if before:
            before()
        for i in range(n):
            if ordered or i == 0:
                a("    s_waitcnt vmcnt(%d)" % (n - 1 - i + younger if ordered else 0))
            if cnt == 13 and i in (0, n - 1):
                gstamp(4 if i == 0 else 5)
            strip(i, i == 0)
            if i == n - 1:
                verdict()
            acc(i)
        a("    s_cbranch_vccnz L_RETRY%d" % u)
        a("L_OK%d:" % u)
        if prof and cnt is not None and not opt.get("astamps"):
            a("    s_mov_b32 %s, %s" % (s(sPROF + 2 * cnt), s(sSpin)))

    def allred_hi(r, tmp, op):
        for sh in (4, 8):
            a("    v_%s_f32_dpp %s, %s, %s row_ror:%d %s" % (op, v(r), v(r), v(r), sh, DPP))
        for sw in ("16", "32"):
            a("    v_mov_b32 %s, %s" % (v(tmp), v(r)))
            a("    v_permlane%s_swap_b32 %s, %s" % (sw, v(r), v(tmp)))
            a("    v_%s_f32 %s, %s, %s" % (op, v(r), v(r), v(tmp)))

    def rowpack(r, dst, n, *fill):
        a("    v_mov_b32_dpp %s, %s quad_perm:[1,1,3,3] %s" % (v(r + 1), v(r), DPP))
        a("    v_cvt_pk_bf16_f32 %s, %s, %s" % (v(r + 1), v(r), v(r + 1)))
        for f in fill:
            f()
        for i in range(n):
            a("    v_mov_b32_dpp %s, %s row_newbcast:%d %s" % (v(dst + i), v(r + 1), 2 * i, DPP))

    def treduce4(r):
        a("    v_permlane32_swap_b32 %s, %s" % (v(r), v(r + 2)))
        a("    v_permlane32_swap_b32 %s, %s" % (v(r + 1), v(r + 3)))
        a("    v_add_f32 %s, %s, %s" % (v(r), v(r), v(r + 2)))
        a("    v_add_f32 %s, %s, %s" % (v(r + 1), v(r + 1), v(r + 3)))
        a("    v_permlane16_swap_b32 %s, %s" % (v(r), v(r + 1)))
        a("    v_add_f32 %s, %s, %s" % (v(r), v(r), v(r + 1)))

    hdr = open(os.path.join(os.path.dirname(os.path.abspath(__file__)), "..", "cdna_kernels", NAME + ".s.ref")).read()
    head = [l for l in hdr.split("\n") if l.startswith("; Kernarg") or l.startswith(";   offset")]
    out = "\n".join(head) + "\n"
    doc = """
One persistent launch: 256 workgroups (one per CU, all co-resident) x 8 waves.  wg = 8 j + h.
  every wg : LN(x), a 128-row x 64-column piece of q = LN(x) wq, then flash-decoding of KV head h
             over keys 128 j .. 128 j + 127 of the window (true max per chunk, combined later)
  j < 16   : combines the 32 chunks of head group h^4 for 64 of its dims and multiplies by a 256 x 64 piece of wo
  112 wgs  : h = x + attn, LN(h) folded around the products, 16 columns of gate / up, 16 rows of w_down;
             32 of their waves add the 112 partial results and write the output
Hand-offs go through d_ws with write-through stores.  Every word handed over carries a tag taken from an
epoch word (read at entry, advanced at the end), so a launch never takes an earlier launch's words for its own;
a consumer reloads until every tag matches.  Small hint words only tell a consumer when a first look is worth it.
All waits are bounded.
"""
    out += "".join("; " + l + "\n" for l in doc.strip().split("\n"))
    out += "; @launch grid=(256,1,1) block=(512,1,1) lds=%d\n" % LDS_BYTES
    a('.amdgcn_target "amdgcn-amd-amdhsa--gfx950"')
    a(".text")
    a(".globl %s_kernel" % NAME)
    a(".p2align 8")
    a(".type %s_kernel,@function" % NAME)
    a("%s_kernel:" % NAME)

    vL = 0
    vM = V(4, 4)
    vSink = V() if opt.get("vt", 0) else None
    vTag8, vTag10, vG0 = V(), V(), V()
    vL3, vL7, vG, vJ = V(), V(), V(), V()
    vRedW, vRedR, vRedR8, vC4 = V(), V(), V(), V()
    vD = V(4, 4)
    vT = V(8, 4)
    vV0 = V(4)
    vV1 = vV0 + 1
    vW = V(16, 4)
    vAk = V(4)
    vKo = V(4)
    vAq, vAqw, vAmw, vAmr, vAlw, vApw, vApr, vAv, vAo, vAlr, vQo = [V() for _ in range(11)]
    mk = V.mark()

    def attn_addresses():
        a("    s_lshl_b32 %s, %s, 12" % (s(sT0), s(sW)))
        a("    v_xor_b32 %s, %s, %s" % (v(vT), v(vJ), v(vG)))
        a("    v_lshlrev_b32 %s, 4, %s" % (v(vT), v(vT)))
        a("    v_lshl_or_b32 %s, %s, 8, %s" % (v(vT), v(vJ), v(vT)))
        a("    v_add_u32 %s, %s, %s" % (v(vAk), s(sT0), v(vT)))
        for i in (1, 2, 3):
            a("    v_xor_b32 %s, 0x%x, %s" % (v(vAk + i), 64 * i, v(vAk)))
        a("    v_and_b32 %s, 3, v0" % v(vT))
        a("    v_mul_u32_u24 %s, 272, %s" % (v(vT + 1), v(vT)))
        a("    v_lshl_add_u32 %s, %s, 4, %s" % (v(vT + 2), v(vG), v(vT + 1)))
        a("    v_add_u32 %s, 0x%x, %s" % (v(vAq), LQ, v(vT + 2)))
        a("    v_add_u32 %s, 0x%x, %s" % (v(vApr), LP, v(vT + 2)))
        a("    s_lshr_b32 %s, %s, 1" % (s(sT0), s(sW)))
        a("    s_and_b32 %s, %s, 1" % (s(sT1), s(sW)))
        a("    s_lshl_b32 %s, %s, 6" % (s(sT2), s(sT0)))
        a("    s_lshl_b32 %s, %s, 3" % (s(sT3), s(sT1)))
        a("    s_add_u32 %s, %s, %s" % (s(sT2), s(sT2), s(sT3)))
        a("    v_add_u32 %s, %s, %s" % (v(vApw), s(sT2), v(vApr)))
        a("    s_mul_i32 %s, %s, 272" % (s(sT0), s(sT0)))
        a("    s_lshl_b32 %s, %s, 7" % (s(sT1), s(sT1)))
        a("    s_add_u32 %s, %s, %s" % (s(sT0), s(sT0), s(sT1)))
        a("    s_add_u32 %s, %s, 0x%x" % (s(sT0), s(sT0), LQ))
        a("    v_lshl_add_u32 %s, %s, 2, %s" % (v(vT + 3), v(vJ), v(vG)))
        a("    v_lshl_add_u32 %s, %s, 1, %s" % (v(vAqw), v(vT + 3), s(sT0)))
        a("    v_lshlrev_b32 %s, 5, %s" % (v(vT + 1), v(vT)))
        a("    v_add_u32 %s, 0x%x, %s" % (v(vAmr), LMX, v(vT + 1)))
        a("    s_lshl_b32 %s, %s, 2" % (s(sT0), s(sW)))
        a("    v_add_u32 %s, %s, %s" % (v(vAmw), s(sT0), v(vAmr)))
        a("    s_lshl_b32 %s, %s, 4" % (s(sT0), s(sW)))
        a("    s_add_u32 %s, %s, 0x%x" % (s(sT0), s(sT0), LLS))
        a("    v_lshlrev_b32 %s, 7, %s" % (v(vT + 1), v(vT)))
        a("    v_lshl_add_u32 %s, %s, 2, %s" % (v(vT + 1), v(vG), v(vT + 1)))
        a("    v_add_u32 %s, %s, %s" % (v(vAlw), s(sT0), v(vT + 1)))
        a("    v_lshrrev_b32 %s, 2, v0" % v(vT + 1))
        a("    v_lshlrev_b32 %s, 3, %s" % (v(vT + 1), v(vT + 1)))
        a("    v_lshl_add_u32 %s, %s, 7, %s" % (v(vT + 1), v(vT), v(vT + 1)))
        a("    v_add_u32 %s, 0x%x, %s" % (v(vAlr), LLS, v(vT + 1)))
        a("    v_lshrrev_b32 %s, 2, %s" % (v(vT + 1), v(vJ)))
        a("    v_lshl_add_u32 %s, %s, 2, %s" % (v(vT + 1), v(vG), v(vT + 1)))
        a("    v_and_b32 %s, 7, %s" % (v(vT + 2), v(vT + 1)))
        a("    v_lshlrev_b32 %s, 1, %s" % (v(vT + 2), v(vT + 2)))
        a("    v_bfe_u32 %s, v0, 1, 1" % v(vT + 3))
        a("    s_lshl_b32 %s, %s, 1" % (s(sT0), s(sW)))
        a("    v_add_u32 %s, %s, %s" % (v(vT + 3), s(sT0), v(vT + 3)))
        a("    v_xor_b32 %s, %s, %s" % (v(vT + 2), v(vT + 2), v(vT + 3)))
        a("    v_lshlrev_b32 %s, 4, %s" % (v(vT + 2), v(vT + 2)))
        a("    v_lshl_or_b32 %s, %s, 8, %s" % (v(vT + 1), v(vT + 1), v(vT + 2)))
        a("    v_and_b32 %s, 1, v0" % v(vT + 2))
        a("    v_lshl_or_b32 %s, %s, 3, %s" % (v(vT + 1), v(vT + 2), v(vT + 1)))
        a("    v_add_u32 %s, 0x%x, %s" % (v(vAv), LV, v(vT + 1)))
        a("    s_lshl_b32 %s, %s, 5" % (s(sT0), s(sH)))
        a("    s_add_u32 %s, %s, %s" % (s(sT0), s(sT0), s(sJ)))
        a("    s_lshl_b32 %s, %s, 6" % (s(sT2), s(sT0)))
        a("    s_add_u32 %s, %s, 0x%x" % (s(sT2), s(sT2), S2ML))
        base(sBml, sWS, s(sT2))
        if opt.get("sb2", 0):
            per = 32 // P2
            a("    s_lshl_b32 %s, %s, %d" % (s(sT0), s(sH), RS2 + 4))
            a("    s_and_b32 %s, %s, %d" % (s(sT1), s(sJ), per - 1))
            a("    s_add_u32 %s, %s, %s" % (s(sT0), s(sT0), s(sT1)))
            a("    s_lshr_b32 %s, %s, %d" % (s(sT1), s(sJ), per.bit_length() - 1))
            a("    s_lshl_b32 %s, %s, 7" % (s(sT1), s(sT1)))
            a("    s_add_u32 %s, %s, %s" % (s(sT0), s(sT0), s(sT1)))
            a("    s_add_u32 %s, %s, 0x%x" % (s(sT0), s(sT0), SRDY))
            base(sBfl, sWS, s(sT0))

    a("    s_cmp_ge_u32 s2, 0x100")
    a("    s_cbranch_scc1 L_END")
    a("    s_load_dwordx16 s[4:19], s[0:1], 0x0")
    a("    s_load_dwordx8 s[20:27], s[0:1], 0x40")
    if opt.get("diagspin"):
        a("    s_memrealtime s[96:97]")
    if prof == 2:
        for i in range(1, 12):
            a("    s_mov_b32 %s, 0" % s(sPROF + 2 * i))
    stamp(0)
    vXo = vAo
    vXSo, vWQ0, vWQ1 = V(), V(), V()
    vXf = V(4, 4)
    vXs = V()
    KVM = 0
    OCLR = 0
    sIdx = sDummy + 0
    a("    v_lshrrev_b32 %s, 6, v0" % v(vT))
    a("    v_and_b32 v0, 63, v0")
    a("    s_lshr_b32 %s, s2, 3" % s(sJ))
    a("    v_readfirstlane_b32 %s, %s" % (s(sW), v(vT)))
    a("    s_and_b32 %s, s2, 7" % s(sH))
    a("    v_lshlrev_b32 %s, 4, v0" % v(vXo))
    a("    v_lshrrev_b32 %s, 3, v0" % v(vL3))
    a("    v_and_b32 %s, 0x70, %s" % (v(vT), v(vXo)))
    a("    v_lshlrev_b32 %s, 2, %s" % (v(vXSo), v(vL3)))
    a("    v_lshl_or_b32 %s, %s, 14, %s" % (v(vWQ0), v(vL3), v(vT)))
    a("    s_and_b32 %s, %s, 24" % (s(sT0), s(sJ)))
    a("    s_add_u32 %s, %s, %s" % (s(sT0), s(sT0), s(sW)))
    a("    s_and_b32 %s, %s, 7" % (s(sT3), s(sJ)))
    a("    s_lshl3_add_u32 %s, %s, %s" % (s(sT3), s(sH), s(sT3)))
    a("    s_lshl_b32 %s, %s, 10" % (s(sT1), s(sT0)))
    a("    s_add_u32 %s, %s, %s" % (s(sT1), s(sT1), s(sT3)))
    a("    s_lshl_b32 %s, %s, 7" % (s(sT1), s(sT1)))
    a("    s_lshl_b32 %s, %s, 5" % (s(sT0), s(sT0)))
    a("    v_add_u32 %s, 0x2000, %s" % (v(vWQ1), v(vWQ0)))

    def later():
        a("    v_lshrrev_b32 %s, 4, v0" % v(vG))
        a("    v_and_b32 %s, 15, v0" % v(vJ))
        a("    s_lshl3_add_u32 %s, %s, %s" % (s(sT3), s(sJ), s(sW)))
        a("    s_lshl_b32 %s, %s, 12" % (s(sT2), s(sH)))
        a("    v_xor_b32 %s, %s, %s" % (v(vT), v(vJ), v(vG)))
        a("    s_add_u32 %s, %s, %s" % (s(sT2), s(sT2), s(sT3)))
        a("    v_lshlrev_b32 %s, 4, %s" % (v(vT), v(vT)))
        a("    s_add_u32 %s, %s, 0xf00" % (s(sT2), s(sT2)))
        a("    v_lshl_or_b32 %s, %s, 8, %s" % (v(vKo), v(vG), v(vT)))
        a("    s_lshl_b32 %s, %s, 12" % (s(sT2), s(sT2)))
        a("    s_lshl_b32 %s, %s, 12" % (s(sTmp), s(sW)))
        a("    s_mov_b32 m0, %s" % s(sTmp))
    PL = opt.get("pl", 1)
    if not PL:
        later()
    a.c("x, this wave's 16 rows of wq, first K piece (LDS-DMA, bank-swizzled through the source address)")
    a("    s_waitcnt lgkmcnt(0)")
    T2 = opt.get("touch2", 0)
    if T2:
        assert not PL
        a("    s_cmp_eq_u32 %s, 1" % s(sW))
        a("    s_cselect_b64 %s, %s, %s" % (s(sB4, 2), s(sWQ, 2), s(sK, 2)))
        a("    s_cselect_b32 %s, %s, %s" % (s(sDummy), s(sT1), s(sT2)))
        a("    s_cmp_gt_u32 %s, 1" % s(sW) if T2 == 1 else "    s_cmp_gt_u32 %s, 1" % s(sT3))
        a("    s_cbranch_scc1 L_NOT2")
        a("    s_load_dword %s, %s, %s" % (s(sDummy), s(sB4, 2), s(sDummy)))
        a("L_NOT2:")
    LN0 = opt.get("ln0", 0)
    if LN0:
        a("    s_cmp_lg_u32 %s, 0" % s(sW))
        a("    s_cbranch_scc1 L_NOX")
        a("    global_load_dwordx4 %s, %s, %s" % (v(vXf, 4), v(vXo), s(sX, 2)))
        a("L_NOX:")
        a("    s_add_u32 %s, %s, 0x%x" % (s(sB0), s(sT0), LH))
    else:
        a("    global_load_dwordx4 %s, %s, %s" % (v(vXf, 4), v(vXo), s(sX, 2)))
        base(sB0, sX, s(sT0))
        a("    global_load_dword %s, %s, %s" % (v(vXs), v(vXSo), s(sB0, 2)))
    base(sB1, sWQ, s(sT1))
    if opt.get("bx", 0):
        a("    s_barrier")
    a("    global_load_dwordx4 %s, %s, %s nt" % (v(vW, 4), v(vWQ0), s(sB1, 2)))
    a("    global_load_dwordx4 %s, %s, %s nt" % (v(vW + 4, 4), v(vWQ1), s(sB1, 2)))
    vm.extend(["x", "xs", "wq0", "wq1"])
    if PL:
        later()
    base(sB2, sK, s(sT2))
    VT = opt.get("vt", 0)

    def vtouch():
        a("    s_cmp_lg_u32 %s, 7" % s(sW))
        a("    s_cbranch_scc1 L_NOVT")
        base(sB3, sVp, s(sT2))
        a("    s_lshl_b32 %s, %s, 19" % (s(sT1), s(sH)))
        base(sB4, sWO, s(sT1))
        a("    v_mov_b32 %s, %s" % (v(vD), s(sB3)))
        a("    v_mov_b32 %s, %s" % (v(vD + 1), s(sB3 + 1)))
        for k, p in enumerate((sWS, sB4, sWG, sWU, sWD)):
            a("    v_writelane_b32 %s, %s, %d" % (v(vD), s(p), k + 1))
            a("    v_writelane_b32 %s, %s, %d" % (v(vD + 1), s(p + 1), k + 1))
        a("    s_lshl_b32 %s, s2, 7" % s(sT1))
        a("    s_add_u32 %s, %s, 0x20000" % (s(sT1), s(sT1)))
        setexec(0x3E, 0)
        a("    v_add_co_u32 %s, vcc, %s, %s" % (v(vD), s(sT1), v(vD)))
        a("    v_addc_co_u32 %s, vcc, 0, %s, vcc" % (v(vD + 1), v(vD + 1)))
        setexec(0x3F, 0)
        a("    global_load_dword %s, %s, off nt" % (v(vSink), v(vD, 2)))
        setexec(0xFFFFFFFF, 0xFFFFFFFF)
        a("L_NOVT:")
    if VT == 1:
        vtouch()
    if opt.get("b0", 1):
        a("    s_barrier")
    WIN = opt.get("win", 3)
    QPOS = opt.get("qpos", 7)
    stream = ["wq0", "wq1", "K0", "K1", "K2", "K3", "V0", "V1", "V2", "V3"]

    def sload(i):
        nm = stream[i]
        k = int(nm[1])
        if KVM == 2:
            if nm[0] == "K":
                a("    s_add_u32 m0, %s, %s" % (s(92), s(sRot + k)))
                a("    global_load_lds_dwordx4 %s, %s nt" % (v(vKo + k), s(sB2, 2)))
            else:
                a("    s_add_u32 m0, %s, %s" % (s(sTmp), s(sRot + k)))
                a("    global_load_lds_dwordx4 %s, %s nt" % (v(vV0 + k), s(sB3, 2)))
        elif nm[0] == "K":
            a("    global_load_lds_dwordx4 %s, %s offset:%d nt" % (v(vKo + k), s(sB2, 2), 1024 * k))
        else:
            if k == 0:
                a("    s_mov_b32 m0, %s" % s(sTmp))
            a("    global_load_lds_dwordx4 %s, %s offset:%d nt" % (v(vV0 + k) if KVM else v(vV1 if k & 1 else vV0), s(sB3, 2), 1024 * k))
        vm.append(nm)
    assert WIN == 3
    WIN0 = opt.get("win0", WIN)
    for i in range(2, WIN0):
        if i > 2:
            a("    v_xor_b32 %s, 0x%x, %s" % (v(vKo + i - 2), 64 * (i - 2), v(vKo)))
        sload(i)
    if VT == 2:
        vtouch()
    base(sB3, sVp, s(sT2))
    for i in (1, 2, 3):
        a("    v_xor_b32 %s, 0x%x, %s" % (v(vKo + i), 64 * i, v(vKo)))
    a("    v_and_b32 %s, 7, v0" % v(vL7))
    a("    s_lshl_b32 %s, %s, 5" % (s(sT1), s(sH)))
    a("    s_add_u32 %s, %s, %s" % (s(sT1), s(sT1), s(sJ)))
    a("    s_mul_i32 %s, %s, %d" % (s(sT1), s(sT1), ST2))
    a("    s_lshl_b32 %s, %s, 8" % (s(sT0), s(sW)))
    a("    s_add_u32 %s, %s, %s" % (s(sT1), s(sT1), s(sT0)))
    a("    s_add_u32 %s, %s, 0x%x" % (s(sT1), s(sT1), S2O))
    base(sBo, sWS, s(sT1))
    E0 = opt.get("e0", 1)
    a("    s_lshl_b32 %s, %s, 3" % (s(sT0), s(sJ)))
    a("    s_add_u32 %s, %s, %s" % (s(sT0), s(sT0), s(sW)))
    if E0:
        a("    s_cmp_lg_u32 %s, %d" % (s(sW), 1 if LN0 else 0))
        a("    s_cbranch_scc1 L_NOE")
        if opt.get("prio", 0) == 1:
            a("    s_setprio 3")
    a("    s_load_dword %s, %s, 0x%x" % (s(sE), s(sWS, 2), EPOCH))
    a("L_NOE:")
    if opt.get("prio", 0) == 2:
        a("    s_cmp_lt_u32 %s, 4" % s(sW))
        a("    s_cbranch_scc1 L_NOPR")
        a("    s_setprio 1")
        a("L_NOPR:")
    a.c("prefetch: one line of this kernel's code per wave into L2, one touch per buffer that is first used later (values unused)")
    a("    s_getpc_b64 %s" % s(sPC, 2))
    a("L_PC:")
    if opt.get("pf", 1):
        if LN0:
            a("    s_cmp_eq_u32 %s, 0" % s(sW))
            a("    s_cbranch_scc1 L_NOPF")
            a("    s_sub_u32 %s, %s, %s" % (s(sT1), s(sT0), s(sJ)))
            a("    s_sub_u32 %s, %s, 1" % (s(sT1), s(sT1)))
        else:
            a("    s_mov_b32 %s, %s" % (s(sT1), s(sT0)))
        a("    s_cmp_gt_u32 %s, (L_CODE_END-L_PC-4)/128" % s(sT1))
        a("    s_cbranch_scc1 L_NOPF")
        a("    s_lshl_b32 %s, %s, 7" % (s(sT1), s(sT1)))
        a("    s_load_dword %s, %s, %s" % (s(sDummy), s(sPC, 2), s(sT1)))
        a("L_NOPF:")
    if opt.get("touch", 1):
        a("    s_xor_b32 %s, %s, %d" % (s(sT1), s(sH), opt.get("dh", 0)))
        a("    s_lshl_b32 %s, %s, 19" % (s(sT1), s(sT1)))
        base(sB4, sWO, s(sT1))
        for k, p in enumerate((sB3, sWG, sWU, sWD, sOUT)):
            a("    s_cmp_eq_u32 %s, %d" % (s(sT0), 8 * (17 + k) + 7))
            a("    s_cselect_b64 %s, %s, %s" % (s(sB4, 2), s(p, 2), s(sB4, 2)))
        a("    s_sub_u32 %s, %s, %d" % (s(sT1), s(sT0), 8 * 16 + 7))
        a("    s_and_b32 %s, %s, 0xffffffc7" % (s(sT3), s(sT1)))
        a("    s_cmp_lg_u32 %s, 0" % s(sT3))
        a("    s_cbranch_scc1 L_NOTOUCH")
        a("    s_load_dword %s, %s, 0x0" % (s(sDummy), s(sB4, 2)))
        a("L_NOTOUCH:")
    a("    v_lshlrev_b32 %s, 1, %s" % (v(vT), v(vG)))
    a("    v_xor_b32 %s, %s, %s" % (v(vT), v(vJ), v(vT)))
    a("    v_lshlrev_b32 %s, 4, %s" % (v(vT), v(vT)))
    a("    v_lshl_or_b32 %s, %s, 8, %s" % (v(vV0), v(vG), v(vT)))
    a("    v_xor_b32 %s, 0x80, %s" % (v(vV1), v(vV0)))
    if KVM == 2:
        for i in (3, 2, 1, 0):
            a("    s_lshr_b32 %s, %s, 3" % (s(sT0), s(sRot + i)))
            a("    s_and_b32 %s, %s, 0x80" % (s(sT0), s(sT0)))
            a("    s_or_b32 %s, %s, %s" % (s(sT0), s(sT0), s(sRot + i)))
            a("    v_xor_b32 %s, %s, %s" % (v(vV0 + i), s(sT0), v(vV0)))
    if KVM == 1:
        a("    v_add_u32 %s, 0x%x, %s" % (v(vV0 + 3), 7168 * 3, v(vV1)))
        a("    v_add_u32 %s, 0x%x, %s" % (v(vV0 + 2), 7168 * 2, v(vV0)))
        a("    v_add_u32 %s, 0x%x, %s" % (v(vV1), 7168, v(vV1)))
    a("    s_add_u32 %s, %s, 0x%x" % (s(sTmp), s(sTmp), LV))
    a("    v_and_b32 %s, 1, v0" % v(vT))
    a("    v_lshlrev_b32 %s, 4, %s" % (v(vT), v(vT)))
    a("    v_lshlrev_b32 %s, %s, %s" % (v(vT + 1), v(vT), v(vT + 2)) if False else
      "    v_mov_b32 %s, 0xffff" % v(vT + 1))
    a("    v_lshlrev_b32 %s, %s, %s" % (v(vT + 1), v(vT), v(vT + 1)))
    a("    v_lshrrev_b32 %s, 1, %s" % (v(vT), v(vL7)))
    for r in range(4):
        a("    v_cmp_eq_u32 vcc, %d, %s" % (r, v(vT)))
        a("    v_cndmask_b32 %s, 0, %s, vcc" % (v(vM + r), v(vT + 1)))
    a("    v_lshrrev_b32 %s, 5, v0" % v(vT))
    a("    s_lshl_b32 %s, %s, 1" % (s(sT0), s(sW)))
    a("    v_add_u32 %s, %s, %s" % (v(vT), s(sT0), v(vT)))
    a("    v_mul_u32_u24 %s, 272, %s" % (v(vT), v(vT)))
    a("    v_and_b32 %s, 1, %s" % (v(vT + 1), v(vG)))
    a("    v_lshl_or_b32 %s, %s, 1, %s" % (v(vT + 1), v(vL7), v(vT + 1)))
    a("    v_lshl_add_u32 %s, %s, 4, %s" % (v(vT), v(vT + 1), v(vT)))
    a("    v_add_u32 %s, 0x%x, %s" % (v(vRedW), LRED, v(vT)))
    a("    v_and_b32 %s, 3, v0" % v(vT))
    a("    v_lshl_add_u32 %s, %s, 2, %s" % (v(vC4), v(vG), v(vT)))
    a("    v_lshlrev_b32 %s, 4, %s" % (v(vC4), v(vC4)))
    a("    v_bfe_u32 %s, v0, 2, 2" % v(vT))
    a("    v_mul_u32_u24 %s, 544, %s" % (v(vT), v(vT)))
    a("    v_add_u32 %s, %s, %s" % (v(vT + 1), v(vC4), v(vT)))
    a("    v_add_u32 %s, 0x%x, %s" % (v(vRedR8), LRED, v(vT + 1)))
    a("    v_add_u32 %s, %s, %s" % (v(vRedR), v(vRedR8), v(vT)))
    a("    s_mov_b32 %s, 0x3db504f3" % s(sScale))
    a("    s_mov_b32 %s, 0x3fb8aa3b" % s(sScale + 1))
    a("    s_mov_b32 %s, 0xffffff00" % s(sM8))
    a("    s_mov_b32 %s, 0xfffffc00" % s(sM10))

    def s1bases():
        a("    s_mul_i32 %s, %s, %d" % (s(sT0), s(sH), 4 * ST1))
        a("    s_add_u32 %s, %s, 0x%x" % (s(sT0), s(sT0), S1))
        a("    s_lshr_b32 %s, %s, 3" % (s(sT1), s(sJ)))
        a("    s_mul_i32 %s, %s, %d" % (s(sT1), s(sT1), ST1 - 2048))
        a("    s_add_u32 %s, %s, %s" % (s(sT2), s(sT1), s(sT0)))
        a("    s_lshl_b32 %s, %s, 8" % (s(sT1), s(sJ)))
        a("    s_add_u32 %s, %s, %s" % (s(sT1), s(sT1), s(sT2)))
        base(sB0, sWS, s(sT1))
        a("    s_lshl_b32 %s, %s, 8" % (s(sT1), s(sW)))
        a("    s_add_u32 %s, %s, %s" % (s(sT1), s(sT1), s(sT0)))
        base(sB1, sWS, s(sT1))

    a.c("LayerNorm of x, rounded to bf16 where the reference rounds")
    vXu = V(8, 4)
    vXk = V(8, 4)
    if LN0:
        a("    v_add_u32 %s, %s, %s" % (v(vXSo), s(sB0), v(vXSo)))
        a("    s_cmp_lg_u32 %s, 0" % s(sW))
        a("    s_cbranch_scc1 L_NOLN")
    def qoff():
        a("    v_lshlrev_b32 %s, 4, %s" % (v(vQo), v(vJ)))
        a("    v_mul_u32_u24 %s, %d, %s" % (v(vG0), ST1, v(vG)))
        a("    v_add_u32 %s, %s, %s" % (v(vQo), v(vG0), v(vQo)))
    if opt.get("lq", 0):
        qoff()
        a("    v_mov_b32 %s, %s" % (v(vXu), "0x3b003b00" if opt["lq"] == 2 else "0x3f803f80"))
        if opt["lq"] == 2:
            a("    v_mov_b32 %s, 0x3727c5ac" % v(vXu + 1))
        s1bases()
    LNL = opt.get("lnl", 0)

    def k12():
        if not opt.get("k1p", 0):
            waitfor("wq0")
            for i in range(WIN0, WIN + 1):
                sload(i)
        waitfor("wq1")
        if not opt.get("k2p", 0):
            sload(WIN + 1)
    if LNL == 1:
        k12()
    else:
        waitfor("xs")
    stamp(1)
    LQ2 = opt.get("lq", 0)
    if LQ2:
        for i in range(4):
            a("    v_dot2_f32_bf16 %s, %s, %s, %s" % (v(vT + 1), v(vXf + i), v(vXf + i), "0" if i == 0 else v(vT + 1)))
            a("    v_dot2_f32_bf16 %s, %s, %s, %s" % (v(vT), v(vXf + i), v(vXu), "0" if i == 0 else v(vT)))
    else:
        for i in range(4):
            a("    v_lshlrev_b32 %s, 16, %s" % (v(vXu + 2 * i), v(vXf + i)))
            a("    v_and_b32 %s, 0xffff0000, %s" % (v(vXu + 2 * i + 1), v(vXf + i)))
        for i in range(4):
            a("    v_add_f32 %s, %s, %s" % (v(vT + i), v(vXu + 2 * i), v(vXu + 2 * i + 1)))
        a("    v_add_f32 %s, %s, %s" % (v(vT), v(vT), v(vT + 1)))
        a("    v_add_f32 %s, %s, %s" % (v(vT + 2), v(vT + 2), v(vT + 3)))
        a("    v_add_f32 %s, %s, %s" % (v(vT), v(vT), v(vT + 2)))
    if opt.get("ln1p", 0):
        if not LQ2:
            a("    v_mul_f32 %s, %s, %s" % (v(vT + 1), v(vXu), v(vXu)))
            a("    v_mul_f32 %s, %s, %s" % (v(vT + 2), v(vXu + 1), v(vXu + 1)))
            for i in range(2, 8):
                a("    v_fmac_f32 %s, %s, %s" % (v(vT + 1 + (i & 1)), v(vXu + i), v(vXu + i)))
            a("    v_add_f32 %s, %s, %s" % (v(vT + 1), v(vT + 1), v(vT + 2)))
        for sh in (1, 2, 4, 8):
            for r in range(2):
                a("    v_add_f32_dpp %s, %s, %s row_ror:%d %s" % (v(vT + r), v(vT + r), v(vT + r), sh, DPP))
        for pat in ("row_bcast:15 row_mask:0xa", "row_bcast:31 row_mask:0xc"):
            for r in range(2):
                a("    v_add_f32_dpp %s, %s, %s %s bank_mask:0xf" % (v(vT + r), v(vT + r), v(vT + r), pat))
        if LQ2 != 2:
            a("    v_mul_f32 %s, 0x3b000000, %s" % (v(vT), v(vT)))
        a("    v_mul_f32 %s, 0x3b000000, %s" % (v(vT + 1), v(vT + 1)))
        a("    v_fma_f32 %s, -%s, %s, %s" % (v(vT + 1), v(vT), v(vT), v(vT + 1)))
        a("    v_max_f32 %s, 0, %s" % (v(vT + 1), v(vT + 1)))
        if LQ2 == 2:
            a("    v_cvt_pk_bf16_f32 %s, %s, %s" % (v(vT), v(vT + 1), v(vT)))
            a("    v_lshlrev_b32 %s, 16, %s" % (v(vT + 4), v(vXs)))
            a("    v_readlane_b32 %s, %s, 63" % (s(sMean), v(vT)))
            a("    v_and_b32 %s, 0xffff0000, %s" % (v(vT + 5), v(vXs)))
            a("    s_lshl_b32 %s, %s, 16" % (s(sVar), s(sMean)))
            a("    s_and_b32 %s, %s, 0xffff0000" % (s(sMean), s(sMean)))
            a("    v_add_f32 %s, %s, %s" % (v(vT), s(sVar), v(vXu + 1)))
            a("    v_pk_add_f32 %s, %s, %s op_sel_hi:[1,0] neg_lo:[0,1] neg_hi:[0,1]" % (v(vT + 4, 2), v(vT + 4, 2), s(sMean, 2)))
            bf16r(vT, vT)
            a("    v_sqrt_f32 %s, %s" % (v(vT), v(vT)))
            a("    v_cvt_pk_bf16_f32 %s, %s, %s" % (v(vT + 5), v(vT + 4), v(vT + 5)))
            bf16r(vT, vT)
            a("    v_rcp_f32 %s, %s" % (v(vT + 2), v(vT)))
        else:
            a("    v_readlane_b32 %s, %s, 63" % (s(sMean), v(vT)))
            a("    v_readlane_b32 %s, %s, 63" % (s(sVar), v(vT + 1)))
    else:
        a("    v_mul_f32 %s, 0x3b000000, %s" % (v(vT), v(vT)))
        wavesum_to_sgpr(vT, sMean)
        if LNL == 2:
            k12()
        for i in range(8):
            a("    v_subrev_f32 %s, %s, %s" % (v(vXk + i), s(sMean), v(vXu + i)))
        a("    v_mul_f32 %s, %s, %s" % (v(vT), v(vXk), v(vXk)))
        a("    v_mul_f32 %s, %s, %s" % (v(vT + 1), v(vXk + 1), v(vXk + 1)))
        for i in range(2, 8):
            a("    v_fmac_f32 %s, %s, %s" % (v(vT + (i & 1)), v(vXk + i), v(vXk + i)))
        a("    v_add_f32 %s, %s, %s" % (v(vT), v(vT), v(vT + 1)))
        a("    v_mul_f32 %s, 0x3b000000, %s" % (v(vT), v(vT)))
        wavesum_to_sgpr(vT, sVar)
    if LQ2 != 2:
        a("    v_mov_b32 %s, %s" % (v(vT + 1), s(sMean)))
        bf16r(vT + 1, vT + 1)
        a("    v_mov_b32 %s, %s" % (v(vT), s(sVar)))
        bf16r(vT, vT)
        a("    v_add_f32 %s, 0x3727c5ac, %s" % (v(vT), v(vT)))
        bf16r(vT, vT)
        a("    v_sqrt_f32 %s, %s" % (v(vT), v(vT)))
        bf16r(vT, vT)
        a("    v_rcp_f32 %s, %s" % (v(vT + 2), v(vT)))
    vA = V(8, 4)
    if LN0:
        for i in range(0, 8, 2):
            a("    v_pk_add_f32 %s, %s, %s op_sel:[0,1] op_sel_hi:[1,1] neg_lo:[0,1] neg_hi:[0,1]" % (v(vXu + i, 2), v(vXu + i, 2), v(vT, 2)))
        for i in range(4):
            a("    v_cvt_pk_bf16_f32 %s, %s, %s" % (v(vXf + i), v(vXu + 2 * i), v(vXu + 2 * i + 1)))
        for i in range(4):
            a("    v_lshlrev_b32 %s, 16, %s" % (v(vXu + 2 * i), v(vXf + i)))
            a("    v_and_b32 %s, 0xffff0000, %s" % (v(vXu + 2 * i + 1), v(vXf + i)))
        for i in range(0, 8, 2):
            a("    v_pk_mul_f32 %s, %s, %s op_sel_hi:[1,0]" % (v(vXk + i, 2), v(vXu + i, 2), v(vT + 2, 2)))
        for i in range(0, 8, 2):
            a("    v_pk_fma_f32 %s, %s, %s, %s op_sel_hi:[1,0,1] neg_lo:[1,0,0] neg_hi:[1,0,0]" %
              (v(vXu + i, 2), v(vXk + i, 2), v(vT, 2), v(vXu + i, 2)))
        for i in range(0, 8, 2):
            a("    v_pk_fma_f32 %s, %s, %s, %s op_sel_hi:[1,0,1]" % (v(vXk + i, 2), v(vXu + i, 2), v(vT + 2, 2), v(vXk + i, 2)))
        for i in range(4):
            a("    v_cvt_pk_bf16_f32 %s, %s, %s" % (v(vXf + i), v(vXk + 2 * i), v(vXk + 2 * i + 1)))
        a("    v_add_u32 %s, 0x%x, %s" % (v(vT), LH, v(vXo)))
        a("    ds_write_b128 %s, %s" % (v(vT), v(vXf, 4)))
        a("    s_waitcnt lgkmcnt(0)")
        a("    s_load_dword %s, %s, 0x%x" % (s(sE), s(sWS, 2), EPOCH))
        a("L_NOLN:")
        a("    s_barrier")
        a("    ds_read_b32 %s, %s" % (v(vXs), v(vXSo)))
        a("    s_mov_b32 %s, 0x01000100" % s(sT0))
        a("    s_mov_b32 %s, 0x03020302" % s(sT1))

        def xoperand():
            a("    s_waitcnt lgkmcnt(0)")
            for i in range(2):
                a("    v_perm_b32 %s, %s, %s, %s" % (v(vT + 5 + i), v(vXs), v(vXs), s(sT0 + i)))
            for i in range(2):
                for r in range(4):
                    a("    v_and_b32 %s, %s, %s" % (v(vA + 4 * i + r), v(vT + 5 + i), v(vM + r)))
        if LN0 == 1:
            xoperand()
    elif LQ2:
        if LQ2 != 2:
            a("    v_lshlrev_b32 %s, 16, %s" % (v(vT + 4), v(vXs)))
            a("    v_and_b32 %s, 0xffff0000, %s" % (v(vT + 5), v(vXs)))
            a("    v_pk_add_f32 %s, %s, %s op_sel:[0,1] op_sel_hi:[1,1] neg_lo:[0,1] neg_hi:[0,1]" % (v(vT + 4, 2), v(vT + 4, 2), v(vT, 2)))
            a("    v_cvt_pk_bf16_f32 %s, %s, %s" % (v(vT + 5), v(vT + 4), v(vT + 5)))
        a("    v_lshlrev_b32 %s, 16, %s" % (v(vT + 4), v(vT + 5)))
        a("    v_and_b32 %s, 0xffff0000, %s" % (v(vT + 5), v(vT + 5)))
        a("    v_pk_mul_f32 %s, %s, %s op_sel_hi:[1,0]" % (v(vT + 6, 2), v(vT + 4, 2), v(vT + 2, 2)))
        a("    v_pk_fma_f32 %s, %s, %s, %s op_sel_hi:[1,0,1] neg_lo:[1,0,0] neg_hi:[1,0,0]" % (v(vT + 4, 2), v(vT + 6, 2), v(vT, 2), v(vT + 4, 2)))
        a("    v_pk_fma_f32 %s, %s, %s, %s op_sel_hi:[1,0,1]" % (v(vT + 6, 2), v(vT + 4, 2), v(vT + 2, 2), v(vT + 6, 2)))
        for i in range(2):
            a("    v_cvt_pk_bf16_f32 %s, %s, %s" % (v(vT + 6 + i), v(vT + 6 + i), v(vT + 6 + i)))
        for i in range(2):
            for r in range(4):
                a("    v_and_b32 %s, %s, %s" % (v(vA + 4 * i + r), v(vT + 6 + i), v(vM + r)))
    else:
        a("    v_lshlrev_b32 %s, 16, %s" % (v(vT + 3), v(vXs)))
        a("    v_and_b32 %s, 0xffff0000, %s" % (v(vT + 4), v(vXs)))
        a("    v_sub_f32 %s, %s, %s" % (v(vT + 3), v(vT + 3), v(vT + 1)))
        a("    v_sub_f32 %s, %s, %s" % (v(vT + 4), v(vT + 4), v(vT + 1)))
        bf16r(vT + 3, vT + 3)
        bf16r(vT + 4, vT + 4)
        for i in range(2):
            y, q = vT + 3 + i, vT + 5 + i
            a("    v_mul_f32 %s, %s, %s" % (v(q), v(y), v(vT + 2)))
            a("    v_fma_f32 %s, -%s, %s, %s" % (v(y), v(q), v(vT), v(y)))
            a("    v_fmac_f32 %s, %s, %s" % (v(q), v(y), v(vT + 2)))
            a("    v_cvt_pk_bf16_f32 %s, %s, %s" % (v(q), v(q), v(q)))
            for r in range(4):
                a("    v_and_b32 %s, %s, %s" % (v(vA + 4 * i + r), v(q), v(vM + r)))
    if not LQ2:
        qoff()

    def tags():
        a("    s_add_u32 %s, %s, 1" % (s(sT32), s(sE)))
        a("    s_and_b32 %s, %s, 0xff" % (s(sTag8), s(sT32)))
        a("    s_and_b32 %s, %s, 0x3ff" % (s(sTag10), s(sT32)))
        a("    v_mov_b32 %s, %s" % (v(vTag8), s(sTag8)))
        a("    v_mov_b32 %s, %s" % (v(vTag10), s(sTag10)))
    if not E0:
        a("    s_waitcnt lgkmcnt(0)")
        tags()
    a.c("q partial: one-hot A operand turns the row-major weight registers into a GEMV")
    def eblock():
        if E0:
            a("    s_cmp_lg_u32 %s, 0" % s(sW))
            a("    s_cbranch_scc1 L_NOE2")
            a("    s_waitcnt lgkmcnt(0)")
            tags()
            a("    v_mov_b32 %s, 0x%x" % (v(vT), LEP))
            a("    v_mov_b32 %s, %s" % (v(vT + 1), s(sE)))
            a("    ds_write_b32 %s, %s" % (v(vT), v(vT + 1)))
            if opt.get("la", 0):
                a("    v_mov_b32 %s, 0" % v(vT + 4))
                a("    v_mov_b32 %s, 0" % v(vT + 5))
                a("    v_lshlrev_b32 %s, 3, v0" % v(vT + 6))
                a("    v_add_u32 %s, 0x%x, %s" % (v(vT + 6), LGP, v(vT + 6)))
                a("    ds_write_b64 %s, %s" % (v(vT + 6), v(vT + 4, 2)))
            if opt.get("pg", 0):
                a("    v_mov_b32 %s, 0" % v(vT + 4))
                a("    ds_write_b32 %s, %s offset:%d" % (v(vT), v(vT + 4), LRM - LEP))
            if opt.get("amx", 1):
                a("    v_lshlrev_b32 %s, 2, v0" % v(vT + 2))
                a("    v_mov_b32 %s, 0xff800000" % v(vT + 3))
                a("    v_and_b32 %s, 0x7c, %s" % (v(vT + 2), v(vT + 2)))
                a("    v_add_u32 %s, 0x%x, %s" % (v(vT + 2), LMX, v(vT + 2)))
                a("    ds_write_b32 %s, %s" % (v(vT + 2), v(vT + 3)))
            a("L_NOE2:")
    if opt.get("eb2", 0) == 2:
        eblock()
    if not LNL:
        k12()
    if opt.get("k3p", 0) == 3:
        sload(5)
    if LN0 == 3:
        xoperand()
    stamp(2)
    a("    v_mfma_f32_16x16x32_bf16 %s, %s, %s, 0" % (v(vD, 4), v(vA, 4), v(vW, 4)))
    a("    v_mfma_f32_16x16x32_bf16 %s, %s, %s, %s" % (v(vD, 4), v(vA + 4, 4), v(vW + 4, 4), v(vD, 4)))
    if opt.get("k1p", 0) == 2:
        sload(3)
    if opt.get("k2p", 0) == 3:
        sload(4)

    def red_publish(nrows, tagv, mask, rnd, basepair, label, mid=None):
        a("    s_waitcnt lgkmcnt(0)")
        a("    s_barrier")
        a("    s_cmp_lg_u32 %s, 0" % s(sW))
        a("    s_cbranch_scc1 %s" % label)
        m = V.mark()
        r = V(16, 4)
        n = nrows // 4
        for i in range(n):
            a("    ds_read_b128 %s, %s offset:%d" % (v(r + 4 * i, 4), v(vRedR if n == 4 else vRedR8), 272 * i))
        if mid:
            mid()
        a("    s_waitcnt lgkmcnt(%d)" % (0 if prof else n - 2))
        a("    v_pk_add_f32 %s, %s, %s" % (v(r, 2), v(r, 2), v(r + 4, 2)))
        a("    v_pk_add_f32 %s, %s, %s" % (v(r + 2, 2), v(r + 2, 2), v(r + 6, 2)))
        if n == 4:
            a("    s_waitcnt lgkmcnt(0)")
            a("    v_pk_add_f32 %s, %s, %s" % (v(r + 8, 2), v(r + 8, 2), v(r + 12, 2)))
            a("    v_pk_add_f32 %s, %s, %s" % (v(r + 10, 2), v(r + 10, 2), v(r + 14, 2)))
            a("    v_pk_add_f32 %s, %s, %s" % (v(r, 2), v(r, 2), v(r + 8, 2)))
            a("    v_pk_add_f32 %s, %s, %s" % (v(r + 2, 2), v(r + 2, 2), v(r + 10, 2)))
        for sh in (4, 8):
            for i in range(4):
                a("    v_add_f32_dpp %s, %s, %s row_ror:%d %s" % (v(r + i), v(r + i), v(r + i), sh, DPP))
        for i in range(4):
            if rnd:
                a("    v_add_u32 %s, 0x%x, %s" % (v(r + i), rnd, v(r + i)))
        setexec(0x000F000F, 0x000F000F)
        for i in range(4):
            a("    v_and_or_b32 %s, %s, %s, %s" % (v(r + i), v(r + i), s(mask), v(tagv)))
        a("    global_store_dwordx4 %s, %s, %s%s" % (v(vC4), v(r, 4), s(basepair, 2), "" if (nrows == 16 and opt.get("xs", 0) & 4) else " sc1"))
        setexec(0xFFFFFFFF, 0xFFFFFFFF)
        V.release(m)

    if not opt.get("lq", 0):
        s1bases()
    V.release(mk)
    EB2 = opt.get("eb2", 0)
    if not EB2:
        eblock()
    setexec(0x00FF00FF, 0xFF00FF00)
    a("    ds_write_b128 %s, %s" % (v(vRedW), v(vD, 4)))
    setexec(0xFFFFFFFF, 0xFFFFFFFF)
    if opt.get("k1p", 0) == 1:
        sload(3)
    if opt.get("k2p", 0) == 1:
        sload(4)
    if EB2 == 1:
        eblock()
    if opt.get("k3p", 0) == 1:
        waitfor("K0")
        sload(5)
    if opt.get("k3p", 0) == 2:
        sload(5)
    vQ = V(4, 4)
    vQ2 = V(4, 4)
    QP1 = opt.get("qp1", 0)
    K3F = opt.get("k3f", 0)

    def k3first():
        waitfor("K0")
        sload(5)
    a.c("cross-wave sum, wave 0 publishes 64 tagged q partials; K / V keep streaming, three pieces in flight per wave")
    keep0 = list(vm)
    red_publish(16, vTag8, sM8, 0 if opt.get("nornd") else 0x80, sB0, "L_QPUB", mid=k3first if K3F else None)

    def qload():
        a("    global_load_dwordx4 %s, %s, %s sc1" % (v(vQ, 4), v(vQo), s(sB1, 2)))

    extra = {}
    CW = opt.get("cw", 0)
    C3 = opt.get("c3", 0)

    def run_sched(text):
        for tok in text.split():
            if tok[0] == "|":
                waitfor(tok[1:])
            elif tok == "q":
                qload()
                vm.append("q")
            elif tok in stream:
                sload(stream.index(tok))
            else:
                extra[tok]()
                if len(tok) > 1:
                    vm.append(tok)

    def paced(gete=False):
        stamp(3)
        assert WIN == 3
        if "K2" not in vm:
            run_sched("K2")
        if "K3" not in vm:
            run_sched(["|K0 K3", "|K0 K3 V0", "K3 |K0 V0", "|K1 K3", "|K0 K3"][CW])
        if gete:
            a("    s_waitcnt lgkmcnt(0)")
            a("    v_readfirstlane_b32 %s, %s" % (s(sE), v(vT + 7)))
            a("    s_nop 0")
            tags()
        attn_addresses()
        run_sched(["|K1 V0", "|K1 V1", "|K1 V1", "|K2 V0", "|K2 V0"][CW])
        if C3:
            run_sched("|K2 V1")
    keep = keep0
    vm.append("qstore")
    DQ = opt.get("dq", 0)
    sQF = 88
    if DQ:
        a("    s_and_b32 %s, %s, 7" % (s(sT0), s(sJ)))
        a("    s_lshl3_add_u32 %s, %s, %s" % (s(sT0), s(sH), s(sT0)))
        a("    s_lshl_b32 %s, %s, 5" % (s(sT0), s(sT0)))
        a("    s_lshr_b32 %s, %s, 3" % (s(sT1), s(sJ)))
        a("    s_add_u32 %s, %s, %s" % (s(sT0), s(sT0), s(sT1)))
        a("    s_lshl_b32 %s, %s, 2" % (s(sT0), s(sT0)))
        a("    s_add_u32 %s, %s, 0x%x" % (s(sT0), s(sT0), SQF))
        setexec(1, 0)
        a("    v_mov_b32 %s, %s" % (v(vT), s(sT0)))
        a("    v_mov_b32 %s, %s" % (v(vT + 1), s(sT32)))
        a("    global_store_dword %s, %s, %s sc1" % (v(vT), v(vT + 1), s(sWS, 2)))
        setexec(0xFFFFFFFF, 0xFFFFFFFF)
        vm.append("qflag")
    paced()
    a("    s_branch L_PACED")
    a("L_QPUB:")
    vm[:] = keep
    if E0:
        a("    v_mov_b32 %s, 0x%x" % (v(vT + 7), LEP))
        a("    ds_read_b32 %s, %s" % (v(vT + 7), v(vT + 7)))
    paced(E0)
    a("L_PACED:")
    if DQ:
        a("    s_lshl3_add_u32 %s, %s, %s" % (s(sT0), s(sH), s(sW)))
        a("    s_lshl_b32 %s, %s, 7" % (s(sT0), s(sT0)))
        a("    s_add_u32 %s, %s, 0x%x" % (s(sT0), s(sT0), SQF))
        a("    s_load_dwordx4 %s, %s, %s glc" % (s(sQF, 4), s(sWS, 2), s(sT0)))
        a("    s_mov_b32 %s, %s" % (s(sRep), s(sT32)))
        a("    s_mov_b32 %s, %s" % (s(sRep + 1), s(sT32)))
    common = list(vm)
    SCHED = {
        "s": ["|K2 V1 |K3 V2 q |V0 V3"],
        "w": ["|K2 V1 |K3 V2 q |V0 V3 A |V1 T0 B",
              "|K2 V1 |K3 V2 q |V0 V3 A T0 |V1 T1 B",
              "|K2 V1 |K3 V2 q V3 A |V0 T0 |V1 T1 B",
              "|K2 V1 |K3 V2 q V3 A |V0 T0 |V1 T1 T2 B",
              "|K2 V1 |K3 V2 q |V0 V3 A B",
              "|K2 V1 V2 |K3 V3 q A |V0 T0 |V1 T1 B |V2 T2",
              "|K2 V1 |K3 V2 q |V0 V3 A T0 |V1 T1",
              "|K2 V1 |K3 V2 q |V0 V3 A |V1 T0"],
        "f": ["|K2 V1 |K3 V2 q |V0 V3 A",
              "|K2 V1 |K3 V2 q |V0 V3 A |V1 D0 D1",
              "|K2 V1 |K3 V2 q |V0 V3 A D0 |V1 D1",
              "|K2 V1 |K3 V2 q |V0 V3 A |V1 D0",
              "|K2 V1 |K3 V2 q |V0 V3 A |V1 Qa"],
    }
    if C3:
        SCHED = {k_: [x_.replace("|K2 V1 ", "", 1) for x_ in v_] for k_, v_ in SCHED.items()}
    if opt.get("qe", 0) == 1:
        SCHED = {k_: [x_.replace("|K3 V2 q ", "q |K3 V2 ", 1) for x_ in v_] for k_, v_ in SCHED.items()}
    if opt.get("qe", 0) == 2:
        SCHED = {k_: [x_.replace("|K3 V2 q ", "|K3 q V2 ", 1) for x_ in v_] for k_, v_ in SCHED.items()}
    if opt.get("pt", 0):
        def pretouch():
            setexec(0xFFFF, 0)
            a("    global_load_dwordx4 %s, %s, %s%s" % (v(vQ2, 4), v(vAo), s(sBo, 2), ["", "", " nt"][opt["pt"]]))
            setexec(0xFFFFFFFF, 0xFFFFFFFF)
        extra["PT"] = pretouch
        SCHED = {k_: [x_.replace("|V0 V3", "|V0 V3 PT") for x_ in v_] for k_, v_ in SCHED.items()}
    QV = opt.get("qv", 0)
    if QV:
        old_, new_ = "|K2 V1 |K3 V2 q |V0 V3", ["", "|K2 V1 |K3 q V2 |V0 V3", "|K2 V1 |K3 V2 |V0 q V3", "|K2 V1 |K3 V2 |V0 V3 q",
                                                 "|K2 V1 |K3 q V2 V3", "|K3 q V1 V2 V3", "|K2 V1 |K3 q V2 V3 |V0"][QV]
        SCHED = {k_: [x_.replace(old_, new_) for x_ in v_] for k_, v_ in SCHED.items()}
    if CW >= 3:
        hd = ["|K3 q V1 V2 |V0 V3", "|K3 V1 q V2 |V0 V3", "|K3 V1 q |V0 V2 V3", "|K3 V1 V2 q |V0 V3"][opt.get("cv", 0)]
        SCHED = {k_: [x_.replace("|K2 V1 |K3 V2 q |V0 V3", hd) for x_ in v_] for k_, v_ in SCHED.items()}
    elif CW:
        SCHED = {
            "s": ["|K2 V2 |K3 V3 q"],
            "w": ["|K2 V2 |K3 V3 q A |V0 T0 |V1 T1 B |V2 T2",
                  "|K2 V2 |K3 V3 q A |V0 T0 |V1 T1 B |V2 T2 |V3 T3",
                  "|K2 V2 |K3 V3 q A |V1 T0 B |V2 T1",
                  "|K2 V2 |K3 V3 A |V0 q T0 |V1 T1 B |V2 T2"],
            "f": ["|K2 V2 |K3 V3 q A", "|K2 V2 |K3 V3 q A |V0 D0 |V1 D1", "|K2 V2 |K3 V3 A |V0 q D0 |V1 D1"],
        }
        if opt.get("ss"):
            SCHED["s"] = ["|K2 V2 |K3 V3 |V0 q"]
    a.c("roles after the attention part: j < 16 output projection, 112 workgroups FFN, 16 workgroups attention only")
    a("    s_cmp_lt_u32 %s, 16" % s(sJ))
    a("    s_cbranch_scc1 L_ROLE_WO")
    a("    s_cmp_lt_u32 %s, 4" % s(sH))
    a("    s_cbranch_scc1 L_ROLE_FFN")
    a("    s_cmp_lt_u32 %s, 28" % s(sJ))
    a("    s_cbranch_scc1 L_ROLE_FFN")

    def attention(sched, t0=(), t1=(), w0extra=None):
        m0 = V.mark()
        vKa = V(16, 4)
        vQb = V(16, 4)
        vPb = vQb
        vVa = vKa
        vS = V(4, 4)
        vMx, vMl = V(), V(4, 4)
        def kreads():
            for i in range(4):
                a("    ds_read_b128 %s, %s" % (v(vKa + 4 * i, 4), v(vAk + i)))

        vm[:] = common
        if DQ:
            uid[0] += 1
            ud = uid[0]
            head = "|K2 V1 "
            assert sched.startswith(head + "|K3 V2 q |V0 V3")
            run_sched(head)
            if DQ == 2:
                a("    s_getreg_b32 %s, hwreg(HW_REG_IB_STS, 8, 4)" % s(sT0))
                a("    s_cmp_lg_u32 %s, 0" % s(sT0))
                a("    s_cbranch_scc1 L_QLATE%d" % ud)
            a("    s_waitcnt lgkmcnt(0)")
            a("    s_xor_b64 %s, %s, %s" % (s(sQF, 2), s(sQF, 2), s(sRep, 2)))
            a("    s_xor_b64 %s, %s, %s" % (s(sQF + 2, 2), s(sQF + 2, 2), s(sRep, 2)))
            a("    s_or_b64 %s, %s, %s" % (s(sQF, 2), s(sQF, 2), s(sQF + 2, 2)))
            a("    s_cbranch_scc1 L_QLATE%d" % ud)
            mid = list(vm)
            rest_ = sched[len(head + "|K3 V2 q |V0 V3"):]
            run_sched("q |K3 V2 |V0 V3 " + " ".join(t for t in rest_.split() if t[0] != "|"))
            kreads()
            waitfor("q")
            early = [t for t in vm if t != "q"]
            a("    s_branch L_QJOIN%d" % ud)
            a("L_QLATE%d:" % ud)
            vm[:] = mid
            run_sched(sched[len(head):])
            kreads()
            waitfor("q")
            assert early == [t for t in vm if t != "q"]
            a("L_QJOIN%d:" % ud)
            NVA = 63
        else:
            run_sched(sched)
            kreads()
            NVA = len(vm) - 1 - vm.index("q")
        ntail = len(vm) - 1 - vm.index("V3") + len(t0)
        tp = ()
        def qcheck():
            for k in range(4):
                a("    v_xor_b32 %s, %s, %s" % (v(vQ + k), s(sTag8), v(vQ + k)))
            a("    v_or3_b32 %s, %s, %s, %s" % (v(vT), v(vQ), v(vQ + 1), v(vQ + 2)))
            a("    v_or_b32 %s, %s, %s" % (v(vT), v(vT), v(vQ + 3)))
            a("    v_and_b32 %s, 0xff, %s" % (v(vT), v(vT)))
            a("    v_cmp_ne_u32 vcc, 0, %s" % v(vT))
        SB2 = opt.get("sb2", 0)

        def sflag(t=vT):
            setexec((1 << R2) - 1, 0)
            a("    v_lshlrev_b32 %s, %d, v0" % (v(t), RS2))
            a("    global_store_byte %s, %s, %s%s" % (v(t), v(vTag8), s(sBfl, 2), "" if opt.get("xs", 0) & 2 else " sc1"))
            setexec(0xFFFFFFFF, 0xFFFFFFFF)

        def w0flag():
            uid[0] += 1
            a("    s_cmp_lg_u32 %s, 0" % s(sW))
            a("    s_cbranch_scc1 L_NF%d" % uid[0])
            sflag(vG0)
            a("L_NF%d:" % uid[0])
        RDY = opt.get("rdy", 0)

        def rdyhint():
            uid[0] += 1
            a("    s_cmp_lg_u32 %s, 7" % s(sW))
            a("    s_cbranch_scc1 L_NORDY%d" % uid[0])
            setexec(1, 0)
            a("    v_mov_b32 %s, 0x%x" % (v(vG0), SRDY - S2ML))
            a("    v_mov_b32 %s, %s" % (v(vMx), s(sT32)))
            a("    global_store_dword %s, %s, %s sc1" % (v(vG0), v(vMx), s(sBml, 2)))
            setexec(0xFFFFFFFF, 0xFFFFFFFF)
            a("L_NORDY%d:" % uid[0])
        a.c("q: sum of the four row partials -> bf16 -> LDS; scores, chunk max, exp, P V")
        MB = opt.get("mb", 1)
        AMX = opt.get("amx", 1)
        if QP1:
            uid[0] += 1
            uq = uid[0]
            a("    s_waitcnt vmcnt(%d)" % (len(vm) - 1 - vm.index("q1") + len(tp)))
            qcheck()
            a("    s_cbranch_vccz L_QOK%d" % uq)
            a("    s_waitcnt vmcnt(%d)" % (NVA + len(tp)))
            for i in range(0, 4, 2):
                a("    v_mov_b64 %s, %s" % (v(vQ + i, 2), v(vQ2 + i, 2)))
            poll(qload, qcheck, NVA + len(tp), cnt=15 if opt.get("astamps") else None)
            a("L_QOK%d:" % uq)
        else:
            poll(qload, qcheck, NVA + len(tp), cnt=15 if opt.get("astamps") else None)
        stamp(4)
        treduce4(vQ)
        a("    v_cvt_pk_bf16_f32 %s, %s, %s" % (v(vQ), v(vQ), v(vQ)))
        a("    ds_write_b16 %s, %s" % (v(vAqw), v(vQ)))
        a("    s_waitcnt lgkmcnt(0)")
        a("    s_barrier")
        for i in range(4):
            a("    ds_read_b128 %s, %s offset:%d" % (v(vQb + 4 * i, 4), v(vAq), 64 * i))
        if SB2 == 7:
            w0flag()
        T0P = opt.get("t0p", 1)
        if T0P == 0:
            for f in t0:
                f()
        for i in range(4):
            a("    s_waitcnt lgkmcnt(%d)" % (0 if prof else 3 - i))
            a("    v_mfma_f32_16x16x32_bf16 %s, %s, %s, %s" %
              (v(vD, 4), v(vKa + 4 * i, 4), v(vQb + 4 * i, 4), "0" if i == 0 else v(vD, 4)))
        if T0P == 1:
            for f in t0:
                f()
        a("    v_cvt_pk_bf16_f32 %s, %s, %s" % (v(vT), v(vD), v(vD + 1)))
        a("    v_cvt_pk_bf16_f32 %s, %s, %s" % (v(vT + 1), v(vD + 2), v(vD + 3)))
        for rnd in range(2):
            for i in range(2):
                a("    v_lshlrev_b32 %s, 16, %s" % (v(vS + 2 * i), v(vT + i)))
                a("    v_and_b32 %s, 0xffff0000, %s" % (v(vS + 2 * i + 1), v(vT + i)))
            if rnd == 0:
                for i in (0, 2):
                    a("    v_pk_mul_f32 %s, %s, %s op_sel_hi:[1,0]" % (v(vS + i, 2), v(vS + i, 2), s(sScale, 2)))
                a("    v_cvt_pk_bf16_f32 %s, %s, %s" % (v(vT), v(vS), v(vS + 1)))
                a("    v_cvt_pk_bf16_f32 %s, %s, %s" % (v(vT + 1), v(vS + 2), v(vS + 3)))
        a("    v_max3_f32 %s, %s, %s, %s" % (v(vMx), v(vS), v(vS + 1), v(vS + 2)))
        a("    v_max_f32 %s, %s, %s" % (v(vMx), v(vMx), v(vS + 3)))
        if AMX:
            setexec(0x000F000F, 0x000F000F)
            a("    ds_max_f32 %s, %s" % (v(vAmr), v(vMx)))
        else:
            for sw in ("16", "32"):
                a("    v_mov_b32 %s, %s" % (v(vT), v(vMx)))
                a("    v_permlane%s_swap_b32 %s, %s" % (sw, v(vMx), v(vT)))
                a("    v_max_f32 %s, %s, %s" % (v(vMx), v(vMx), v(vT)))
            setexec(0xF, 0)
            a("    ds_write_b32 %s, %s" % (v(vAmw), v(vMx)))
        setexec(0xFFFFFFFF, 0xFFFFFFFF)
        if T0P == 2:
            for f in t0:
                f()
        VB3 = opt.get("vb3", 0)

        def vreads(t):
            for hh in range(2):
                a("    ds_read_b64_tr_b16 %s, %s offset:%d" % (v(vVa + 4 * t + 2 * hh, 2), v(vAv), 8192 * t + 4096 * hh))
        if VB3:
            assert MB
            a("    s_waitcnt vmcnt(%d) lgkmcnt(0)" % ntail)
            for f in t1:
                f()
        else:
            a("    s_waitcnt lgkmcnt(0)")
        if RDY == 1:
            rdyhint()
        a("    s_barrier")
        if AMX:
            a("    ds_read_b32 %s, %s" % (v(vMl), v(vAmr)))
            if RDY == 2:
                rdyhint()
            if VB3:
                for t in range(4):
                    vreads(t)
            a("    s_waitcnt lgkmcnt(%d)" % (8 if VB3 and not prof else 0))
        else:
            a("    ds_read_b128 %s, %s" % (v(vT, 4), v(vAmr)))
            a("    ds_read_b128 %s, %s offset:16" % (v(vT + 4, 4), v(vAmr)))
            if SB2 == 5:
                w0flag()
            if VB3:
                for t in range(4):
                    vreads(t)
            a("    s_waitcnt lgkmcnt(%d)" % (8 if VB3 and not prof else 0))
            a("    v_max3_f32 %s, %s, %s, %s" % (v(vT), v(vT), v(vT + 1), v(vT + 2)))
            a("    v_max3_f32 %s, %s, %s, %s" % (v(vT + 4), v(vT + 4), v(vT + 5), v(vT + 6)))
            a("    v_max3_f32 %s, %s, %s, %s" % (v(vT), v(vT), v(vT + 3), v(vT + 7)))
            a("    v_max_f32 %s, %s, %s" % (v(vMl), v(vT), v(vT + 4)))
        for i in (0, 2):
            a("    v_pk_add_f32 %s, %s, %s op_sel_hi:[1,0] neg_lo:[0,1] neg_hi:[0,1]" % (v(vS + i, 2), v(vS + i, 2), v(vMl, 2)))
        for i in (0, 2):
            a("    v_pk_mul_f32 %s, %s, %s op_sel:[0,1] op_sel_hi:[1,1]" % (v(vS + i, 2), v(vS + i, 2), s(sScale, 2)))
        for i in range(4):
            a("    v_exp_f32 %s, %s" % (v(vS + i), v(vS + i)))
        a("    v_cvt_pk_bf16_f32 %s, %s, %s" % (v(vT + 2), v(vS), v(vS + 1)))
        a("    v_cvt_pk_bf16_f32 %s, %s, %s" % (v(vT + 3), v(vS + 2), v(vS + 3)))
        setexec(0x000F000F, 0x000F000F)
        a("    ds_write_b64 %s, %s" % (v(vApw), v(vT + 2, 2)))
        a("    v_pk_add_f32 %s, %s, %s" % (v(vT, 2), v(vS, 2), v(vS + 2, 2)))
        a("    v_add_f32 %s, %s, %s" % (v(vT), v(vT), v(vT + 1)))
        a("    ds_write_b32 %s, %s" % (v(vAlw), v(vT)))
        setexec(0xFFFFFFFF, 0xFFFFFFFF)
        if SB2 == 6:
            w0flag()
        if MB and not VB3:
            a("    s_waitcnt vmcnt(%d) lgkmcnt(0)" % ntail)
            for f in t1:
                f()
        else:
            a("    s_waitcnt lgkmcnt(0)")
        a("    s_barrier")
        if opt.get("astamps"):
            stamp(13)
        if RDY == 3:
            rdyhint()
        uid[0] += 1
        u = uid[0]

        def preads():
            for i in range(4):
                a("    ds_read_b128 %s, %s offset:%d" % (v(vPb + 4 * i, 4), v(vApr), 64 * i))

        def mlpub():
            a("    v_add_f32 %s, %s, %s" % (v(vMl + 1), v(vT), v(vT + 1)))
            allred_hi(vMl + 1, vT, "add")
            setexec(0xF, 0)
            a("    global_store_dwordx4 %s, %s, %s%s" % (v(vAo), v(vMl, 4), s(sBml, 2), XS))
            setexec(0xFFFFFFFF, 0xFFFFFFFF)

        def pv(first):
            for t in range(4):
                a("    s_waitcnt lgkmcnt(%d)" % (0 if prof else first[t]))
                a("    v_mfma_f32_16x16x32_bf16 %s, %s, %s, %s" %
                  (v(vD, 4), v(vPb + 4 * t, 4), v(vVa + 4 * t, 4), "0" if t == 0 else v(vD, 4)))
        if MB:
            a("    ds_read_b64 %s, %s" % (v(vT, 2), v(vAlr)))
            for t in range(4):
                a("    ds_read_b128 %s, %s offset:%d" % (v(vPb + 4 * t, 4), v(vApr), 64 * t))
                if not VB3:
                    vreads(t)
            a("    v_mov_b32 %s, %s" % (v(vMl + 2), s(sT32)))
            a("    v_mov_b32 %s, %s" % (v(vMl + 3), s(sT32)))
            a("    s_cmp_lg_u32 %s, 0" % s(sW))
            a("    s_cbranch_scc1 L_NOML%d" % u)
            if SB2 in (1, 3):
                sflag(vT + 2)
            a("    s_waitcnt lgkmcnt(%d)" % (0 if prof else (4 if VB3 else 12)))
            mlpub()
            if SB2 in (2, 4):
                sflag(vT + 2)
            a("L_NOML%d:" % u)
            pv([3, 2, 1, 0] if VB3 else [9, 6, 3, 0])
        else:
            preads()
            a("    s_cmp_lg_u32 %s, 0" % s(sW))
            a("    s_cbranch_scc1 L_NOML%d" % u)
            a("    ds_read_b64 %s, %s" % (v(vT, 2), v(vAlr)))
            if SB2 == 3:
                sflag(vT + 2)
            if SB2 == 4:
                a("    s_waitcnt vmcnt(%d)" % ntail)
                sflag(vT + 2)
            a("    v_mov_b32 %s, %s" % (v(vMl + 2), s(sT32)))
            a("    v_mov_b32 %s, %s" % (v(vMl + 3), s(sT32)))
            a("    s_waitcnt lgkmcnt(0)")
            mlpub()
            nx = w0extra() if w0extra else 0
            if SB2 in (3, 4, 5, 6, 7):
                nx += 1
            if SB2 == 1:
                sflag()
                nx += 1
            a("    s_waitcnt vmcnt(%d)" % (1 + nx + ntail))
            if SB2 == 2:
                sflag()
            a("    s_branch L_MLD%d" % u)
            a("L_NOML%d:" % u)
            a("    s_waitcnt vmcnt(%d)" % ntail)
            a("L_MLD%d:" % u)
            if opt.get("astamps"):
                stamp(14)
            for f in t1:
                f()
            a("    s_barrier")
            stamp(5)
            for t in range(4):
                vreads(t)
            pv([6, 4, 2, 0])
        setexec(0xFFFF, 0)
        if OCLR:
            a("    v_min_u32 %s, -2, %s" % (v(vD), v(vD)))
        else:
            for i in range(4):
                a("    v_and_or_b32 %s, %s, %s, %s" % (v(vD + i), v(vD + i), s(sM10), v(vTag10)))
        a("    global_store_dwordx4 %s, %s, %s%s" % (v(vAo), v(vD, 4), s(sBo, 2), XS))
        setexec(0xFFFFFFFF, 0xFFFFFFFF)
        stamp(6)
        if opt.get("ackstamp") and not w0extra:
            a("    s_waitcnt vmcnt(0)")
            stamp(1)
        V.release(m0)

    attention(SCHED["s"][0])
    finish()

    a("L_ROLE_WO:")
    mrole = V.mark()
    sD0 = sU
    vWo = V(4)

    def wo_setup():
        if opt.get("dh", 0):
            a("    s_%s_b32 %s, %s, %d" % ("xor", s(sH), s(sH), opt["dh"]))
        a("    s_lshr_b32 %s, %s, 3" % (s(sT1), s(sJ)))
        a("    s_lshl_b32 %s, %s, 3" % (s(sT1), s(sT1)))
        a("    s_add_u32 %s, %s, %s" % (s(sT1), s(sT1), s(sW)))
        a("    s_lshl_b32 %s, %s, 3" % (s(sD0), s(sT1)))
        a("    s_lshl_b32 %s, %s, 9" % (s(sT0), s(sH)))
        a("    s_add_u32 %s, %s, %s" % (s(sT0), s(sT0), s(sD0)))
        a("    s_lshl_b32 %s, %s, 10" % (s(sT0), s(sT0)))
        a("    s_and_b32 %s, %s, 7" % (s(sT1), s(sJ)))
        a("    s_lshl_b32 %s, %s, 7" % (s(sT1), s(sT1)))
        a("    s_add_u32 %s, %s, %s" % (s(sT0), s(sT0), s(sT1)))
        base(sB4, sWO, s(sT0))
        a("    v_lshlrev_b32 %s, 4, %s" % (v(vWo), v(vL7)))
        a("    v_lshl_or_b32 %s, %s, 10, %s" % (v(vWo), v(vL3), v(vWo)))
        for i in (1, 2, 3):
            a("    v_add_u32 %s, 0x%x, %s" % (v(vWo + i), i * (131072 - 1024), v(vWo)))
        a("    s_lshl_b32 %s, %s, 12" % (s(sFI), s(sW)))
        a("    s_add_u32 %s, %s, 0x%x" % (s(sFI), s(sFI), LG))

    def woload(i):
        def f():
            if i == 0:
                a("    s_mov_b32 m0, %s" % s(sFI))
            a("    global_load_lds_dwordx4 %s, %s offset:%d nt" % (v(vWo + i), s(sB4, 2), 1024 * i))
        return f
    vOo = V(4)
    vAtr, vAw, vArw = [V() for _ in range(3)]
    vO = V(16, 4)
    vWt = V(16, 4)
    vML = V(8, 4)
    vDt = V(16, 4)

    def wo_addresses():
        a("    s_lshl_b32 %s, %s, 11" % (s(sT1), s(sH)))
        a("    s_add_u32 %s, %s, 0x%x" % (s(sT1), s(sT1), S2ML))
        base(sB0, sWS, s(sT1))
        a("    s_mul_i32 %s, %s, %d" % (s(sT1), s(sH), 32 * ST2))
        a("    s_lshl_b32 %s, %s, 4" % (s(sT0), s(sD0)))
        a("    s_add_u32 %s, %s, %s" % (s(sT1), s(sT1), s(sT0)))
        a("    s_add_u32 %s, %s, 0x%x" % (s(sT1), s(sT1), S2O))
        base(sB5, sWS, s(sT1))
        a("    v_lshlrev_b32 %s, 4, %s" % (v(vT), v(vL7)))
        a("    v_mul_u32_u24 %s, %d, %s" % (v(vOo), ST2, v(vL3)))
        a("    v_add_u32 %s, %s, %s" % (v(vOo), v(vOo), v(vT)))
        for i in (1, 2, 3):
            a("    v_add_u32 %s, 0x%x, %s" % (v(vOo + i), 8 * ST2 * i, v(vOo)))
        a("    s_lshr_b32 %s, %s, 3" % (s(sT1), s(sJ)))
        a("    s_lshl1_add_u32 %s, %s, %s" % (s(sT0), s(sH), s(sT1)))
        a("    s_mul_i32 %s, %s, %d" % (s(sT0), s(sT0), ST3))
        a("    s_and_b32 %s, %s, 7" % (s(sT1), s(sJ)))
        a("    s_lshl_b32 %s, %s, 8" % (s(sT1), s(sT1)))
        a("    s_add_u32 %s, %s, %s" % (s(sT0), s(sT0), s(sT1)))
        a("    s_add_u32 %s, %s, 0x%x" % (s(sT0), s(sT0), S3))
        base(sB2, sWS, s(sT0))
        a("    v_lshrrev_b32 %s, 2, %s" % (v(vT), v(vJ)))
        a("    v_lshl_add_u32 %s, %s, 3, %s" % (v(vT), v(vG), v(vT)))
        a("    v_lshlrev_b32 %s, 7, %s" % (v(vT), v(vT)))
        a("    v_and_b32 %s, 3, v0" % v(vT + 1))
        a("    v_lshl_add_u32 %s, %s, 3, %s" % (v(vT), v(vT + 1), v(vT)))
        a("    v_add_u32 %s, %s, %s" % (v(vAtr), s(sFI), v(vT)))
        a("    v_lshlrev_b32 %s, 4, %s" % (v(vT), v(vL3)))
        a("    v_add_u32 %s, 0x%x, %s" % (v(vAw), LWT, v(vT)))
        a("    s_mul_i32 %s, %s, 272" % (s(sT0), s(sW)))
        a("    s_add_u32 %s, %s, 0x%x" % (s(sT0), s(sT0), LRED))
        a("    v_lshl_add_u32 %s, %s, 4, %s" % (v(vArw), v(vG), s(sT0)))
        per = 8 // P3
        a("    s_and_b32 %s, %s, %d" % (s(sT0), s(sH), per - 1))
        a("    s_lshl_b32 %s, %s, 2" % (s(sT0), s(sT0)))
        a("    s_lshr_b32 %s, %s, %d" % (s(sT1), s(sH), per.bit_length() - 1))
        a("    s_lshl_b32 %s, %s, 7" % (s(sT1), s(sT1)))
        a("    s_add_u32 %s, %s, %s" % (s(sT0), s(sT0), s(sT1)))
        a("    s_add_u32 %s, %s, 0x%x" % (s(sInb), s(sT0), SBELL))
        if opt.get("hn", 1) == 4:
            a("    s_lshr_b32 %s, %s, 2" % (s(sT0), s(sJ)))
            a("    s_add_u32 %s, %s, %s" % (s(sInb), s(sInb), s(sT0)))
    def bell():
        for i in range(2):
            a("    global_load_dwordx3 %s, %s, %s offset:%d%s" % (v(vML + 4 * i, 3), v(vAo), s(sB0, 2), 1024 * i, " nt" if opt.get("xl", 0) else " sc1"))

    def bellcheck():
        tagcheck([vML + 2, vML + 6], sT32, vT)
        a("    v_cmp_ne_u32 vcc, 0, %s" % v(vT))

    EB = opt.get("eb", 0)

    def earlybell():
        bell()
        return 2
    extra.update(A=wo_setup, B=wo_addresses, T0=woload(0), T1=woload(1), T2=woload(2), T3=woload(3))
    sw = SCHED["w"][opt.get("sw", 0)]
    rest = [i for i in range(4) if "T%d" % i not in sw.split()]
    WO2 = min(opt.get("wo2", 0), len(rest))
    late = rest[len(rest) - WO2:]
    rest = rest[:len(rest) - WO2]
    WO1 = min(opt.get("wo1", 0), len(rest))
    attention(sw, [woload(i) for i in rest[:len(rest) - WO1]], [woload(i) for i in rest[len(rest) - WO1:]],
              earlybell if EB else None)
    for i in late:
        woload(i)()
    def bellprep():
        a("    s_mul_i32 %s, %s, 0x01010101" % (s(sRep), s(sTag8)))
        a("    s_mov_b32 %s, %s" % (s(sRep + 1), s(sRep)))
        a("    s_and_b32 %s, %s, %d" % (s(sT0), s(sJ), (R2 // 2 if opt.get("dp2", 0) else R2) - 1))
        a("    s_lshl4_add_u32 %s, %s, %s" % (s(sT0), s(sH), s(sT0)))
        a("    s_lshl_b32 %s, %s, %d" % (s(sT0), s(sT0), RS2))
        a("    s_add_u32 %s, %s, 0x%x" % (s(sT0), s(sT0), SRDY))
    if opt.get("dp2", 0) == 2:
        a("    s_cmp_lg_u32 %s, 0" % s(sW))
        a("    s_cbranch_scc1 L_BP")
        bellprep()
        spoll2(s(sT0), (R2 // 2) << RS2, sRep, P2, sB1, phase=1)
        a("L_BP:")
    if "B" not in sw.split():
        wo_addresses()

    NO = opt.get("dno", 4)

    def oloads():
        for i in range(NO):
            a("    global_load_dwordx4 %s, %s, %s%s" % (v(vO + 4 * i, 4), v(vOo + i), s(sB5, 2), [" sc1", " nt", "", " sc0"][opt.get("xl", 0)]))

    def wtr():
        for t in range(4):
            for hh in range(2):
                a("    ds_read_b64_tr_b16 %s, %s offset:%d" % (v(vW + 4 * t + 2 * hh, 2), v(vAtr), 512 * hh + 32 * t))
    a.c("combine the 32 chunks: wave 0 waits for the hints, turns (m, l) into weights; all waves gather o")
    a("    s_cmp_eq_u32 %s, 0" % s(sW))
    a("    s_cbranch_scc1 L_BELL1")
    S2M = opt.get("s2mode", 0)
    if opt.get("sb2", 0):
        a("    s_barrier")
        oloads()
        a("    s_waitcnt vmcnt(%d)" % NO)
        wtr()
    else:
        a("    s_waitcnt vmcnt(%d)" % (1 if EB else 0))
        stamp(12)
        wtr()
        a("    s_barrier")
        oloads()
    a("    s_branch L_BELL2")
    a("L_BELL1:")
    if opt.get("rdy", 0):
        a("    v_and_b32 %s, 31, v0" % v(vT + 1))
        a("    v_lshlrev_b32 %s, 6, %s" % (v(vT + 1), v(vT + 1)))
        a("    v_add_u32 %s, 0x%x, %s" % (v(vT + 1), SRDY - S2ML, v(vT + 1)))

        def rdy():
            a("    global_load_dword %s, %s, %s sc1" % (v(vT + 2), v(vT + 1), s(sB0, 2)))

        def rdycheck():
            a("    v_cmp_ne_u32 vcc, %s, %s" % (s(sT32), v(vT + 2)))
        setexec(0xFFFFFFFF, 0)
        rdy()
        poll(rdy, rdycheck, 0, cnt=13)
        a("    s_barrier")
        bell()
        oloads()
        stamp(11)
        wtr()
        poll(bell, bellcheck, 4)
    elif opt.get("sb2", 0):
        if opt.get("dp2", 0) != 2:
            bellprep()
        stamp(12)
        if opt.get("dp2", 0):
            spoll2(s(sT0), (R2 // 2) << RS2, sRep, P2, sB1, phase=2 if opt["dp2"] == 2 else 0)
        elif opt.get("hy", 0):
            spoll(sWS, s(sT0), sRep, P2, tries=opt["hy"], fail="L_VEC")
        else:
            spoll(sWS, s(sT0), sRep, P2)
        if prof:
            a("    s_mov_b32 %s, %s" % (s(sPROF + 26), s(sSpin)))
        a("    s_barrier")
        bell()
        oloads()
        stamp(11)
        if opt.get("wt", 0) == 1:
            a("    s_waitcnt vmcnt(6)")
            wtr()
            poll(bell, bellcheck, 4)
        elif opt.get("wt", 0) == 2:
            poll(bell, bellcheck, NO)
            if opt.get("hy", 0):
                a("    s_branch L_WTS")
                a("L_VEC:")
                bell()
                poll(bell, bellcheck, 0)
                a("    s_barrier")
                oloads()
                a("L_WTS:")
        else:
            poll(bell, bellcheck, 4, post=wtr)
    elif EB:
        assert WO1 == 0 and not opt.get("mb")
        poll(bell, bellcheck, 1, cnt=13)
        a("    s_barrier")
        oloads()
        wtr()
        stamp(11)
    else:
        bell()
        poll(bell, bellcheck, 0, cnt=13)
        a("    s_barrier")
        oloads()
        wtr()
        stamp(11)
    a("    v_max_f32 %s, %s, %s" % (v(vT + 1), v(vML), v(vML + 4)))
    allred_hi(vT + 1, vT, "max")
    for i in range(2):
        a("    v_sub_f32 %s, %s, %s" % (v(vML + 4 * i), v(vML + 4 * i), v(vT + 1)))
    for i in range(2):
        a("    v_mul_f32 %s, 0x3fb8aa3b, %s" % (v(vML + 4 * i), v(vML + 4 * i)))
    for i in range(2):
        a("    v_exp_f32 %s, %s" % (v(vML + 4 * i), v(vML + 4 * i)))
    a("    v_lshlrev_b32 %s, 2, v0" % v(vT + 2))
    a("    v_mul_f32 %s, %s, %s" % (v(vT + 1), v(vML), v(vML + 1)))
    a("    v_fmac_f32 %s, %s, %s" % (v(vT + 1), v(vML + 4), v(vML + 5)))
    allred_hi(vT + 1, vT, "add")
    a("    v_rcp_f32 %s, %s" % (v(vT + 1), v(vT + 1)))
    a("    v_add_u32 %s, 0x%x, %s" % (v(vT + 2), LWT, v(vT + 2)))
    for i in range(2):
        a("    v_mul_f32 %s, %s, %s" % (v(vML + 4 * i), v(vML + 4 * i), v(vT + 1)))
    for i in range(2):
        a("    ds_write_b32 %s, %s offset:%d" % (v(vT + 2), v(vML + 4 * i), 256 * i))
    a("    s_waitcnt lgkmcnt(0)")
    if opt.get("wt", 0) == 2:
        a("    s_barrier")
        wtr()
        a("    s_branch L_BELL3")
    a("L_BELL2:")
    WB = opt.get("wbar", 0)

    def wreads():
        a("    s_barrier")
        a("L_BELL3:")
        for i in range(4):
            a("    ds_read_b128 %s, %s offset:%d" % (v(vWt + 4 * i, 4), v(vAw), 128 * i))

    wreads()

    def oacc(i):
        for r in (0, 2):
            if i == 0:
                a("    v_pk_mul_f32 %s, %s, %s" % (v(vT + r, 2), v(vO + r, 2), v(vWt + r, 2)))
            else:
                a("    v_pk_fma_f32 %s, %s, %s, %s" % (v(vT + r, 2), v(vO + 4 * i + r, 2), v(vWt + 4 * i + r, 2), v(vT + r, 2)))

    HN = opt.get("hn", 1)

    def s3hint():
        if HN == 1:
            a("    s_or_b32 %s, %s, %s" % (s(sT0), s(sJ), s(sW)))
        else:
            a("    s_and_b32 %s, %s, 3" % (s(sT0), s(sJ)))
            a("    s_or_b32 %s, %s, %s" % (s(sT0), s(sT0), s(sW)))
        a("    s_cbranch_scc1 L_NOHINT")
        if R3 < 64:
            setexec((1 << R3) - 1, 0)
        a("    v_lshl_add_u32 %s, v0, %d, %s" % (v(vG0), RS3, s(sInb)))
        if HN == 1:
            a("    v_mov_b32 %s, %s" % (v(vQo), s(sT32)))
            a("    global_store_dword %s, %s, %s sc1" % (v(vG0), v(vQo), s(sWS, 2)))
        else:
            a("    global_store_byte %s, %s, %s sc1" % (v(vG0), v(vTag8), s(sWS, 2)))
        setexec(0xFFFFFFFF, 0xFFFFFFFF)
        a("L_NOHINT:")
    HP = opt.get("hp", 0)

    def obefore():
        if HP == 1:
            a("    s_waitcnt vmcnt(3)")
            s3hint()
        a("    s_waitcnt lgkmcnt(0)")
    gather(oloads, [vO + 4 * i for i in range(NO)], sTag10, 0x3ff, oacc, cnt=14, before=obefore)
    stamp(7)
    if HP == 0:
        s3hint()
    a.c("o (bf16) times the wo piece, cross-wave sum, publish")
    treduce4(vT)
    a("    v_add_f32_dpp %s, %s, %s row_ror:8 %s" % (v(vT), v(vT), v(vT), DPP))
    rowpack(vT, vT + 4, 4)
    for t in range(4):
        a("    v_mfma_f32_16x16x32_bf16 %s, %s, %s, 0" % (v(vDt + 4 * t, 4), v(vW + 4 * t, 4), v(vT + 4, 4)))
    if HP == 2:
        s3hint()
    setexec(0x00010001, 0x00010001)
    for t in range(4):
        a("    ds_write_b128 %s, %s offset:%d" % (v(vArw), v(vDt + 4 * t, 4), 64 * t))
    setexec(0xFFFFFFFF, 0xFFFFFFFF)
    red_publish(8, vTag10, sM10, 0, sB2, "L_FIN", mid=s3hint if HP == 3 else None)
    if HP == 4:
        s3hint()
    stamp(8)
    a("L_FIN:")
    if opt.get("wb", 0):
        a("    s_lshl3_add_u32 %s, %s, %s" % (s(sT0), s(sJ), s(sW)))
        a("    s_cmp_lg_u32 %s, 1" % s(sT0))
        a("    s_cbranch_scc1 L_FIN3")
        a("    buffer_wbl2 sc1")
        a("    s_waitcnt vmcnt(0)")
        a("L_FIN3:")
    finish()
    V.release(mrole)

    a("L_ROLE_FFN:")
    vGo = V()
    vDo = V(2)

    def quarter_prep(n, pair, m0reg):
        a("    s_add_u32 %s, %s, %d" % (s(sT0), s(sU), 0 if opt.get("fdiag") == 4 else n))
        a("    s_and_b32 %s, %s, 1" % (s(sT1), s(sT0)))
        a("    s_bfe_u32 %s, %s, 0x10001" % (s(sT0), s(sT0)))
        a("    s_lshl_b32 %s, %s, 1" % (s(sT2), s(sW)))
        a("    s_add_u32 %s, %s, %s" % (s(sT2), s(sT2), s(sT1)))
        a("    s_lshl_b32 %s, %s, 4" % (s(sT3), s(sT0)))
        a("    s_add_u32 %s, %s, %s" % (s(sT3), s(sT3), s(sT2)))
        a("    s_lshl_b32 %s, %s, 10" % (s(sT3), s(sT3)))
        a("    s_add_u32 %s, %s, 0x%x" % (s(m0reg), s(sT3), LG))
        a("    s_mul_i32 %s, %s, %d" % (s(sT2), s(sT2), 32 * 3584))
        a("    s_lshl_b32 %s, %s, 5" % (s(sT1), s(sFI)))
        a("    s_add_u32 %s, %s, %s" % (s(sT2), s(sT2), s(sT1)))
        a("    s_cmp_eq_u32 %s, 0" % s(sT0))
        a("    s_cselect_b64 %s, %s, %s" % (s(pair, 2), s(sWG, 2), s(sWU, 2)))
        base(pair, pair, s(sT2))
    QB = [(sK, sPC), (sVp, sPC + 1), (sWQ, sMean), (sWO, sVar)]

    def quarter(n):
        a("    s_mov_b32 m0, %s" % s(QB[n][1]))
        a("    global_load_lds_dwordx4 %s, %s%s" % (v(vGo), s(QB[n][0], 2),
          {0: " nt", 1: "" if n == 0 else " nt", 2: "", 3: " nt" if n == 0 else "", 4: " nt" if n == 0 else " sc1"}[opt.get("qpol", 0)]))

    def ffn_setup():
        a("    s_and_b32 %s, %s, 3" % (s(sU), s(sJ)))
        a("    s_min_u32 %s, %s, 4" % (s(sT0), s(sH)))
        a("    s_mul_i32 %s, %s, 3" % (s(sT1), s(sH)))
        a("    s_add_u32 %s, %s, %s" % (s(sT0), s(sT0), s(sT1)))
        a("    s_lshl_b32 %s, %s, 2" % (s(sT0), s(sT0)))
        a("    s_add_u32 %s, %s, %s" % (s(sT0), s(sT0), s(sJ)))
        a("    s_sub_u32 %s, %s, 16" % (s(sFI), s(sT0)))
        a("    v_lshrrev_b32 %s, 1, v0" % v(vT))
        a("    v_mul_u32_u24 %s, 3584, %s" % (v(vT), v(vT)))
        a("    v_and_b32 %s, 1, v0" % v(vT + 1))
        a("    v_lshl_add_u32 %s, %s, 4, %s" % (v(vGo), v(vT + 1), v(vT)))
        for n in range(4):
            quarter_prep(n, *QB[n])
        a("    s_lshl_b32 %s, %s, 14" % (s(sT0), s(sFI)))
        a("    s_lshl_b32 %s, %s, 7" % (s(sT1), s(sW)))
        a("    s_add_u32 %s, %s, %s" % (s(sT0), s(sT0), s(sT1)))
        base(sB5, sWD, s(sT0))
        a("    s_lshl_b32 %s, %s, 11" % (s(sT1), s(sW)))
        a("    s_add_u32 %s, %s, 0x%x" % (s(sInb), s(sT1), LD))
        a("    v_lshlrev_b32 %s, 4, %s" % (v(vDo), v(vL7)))
        a("    v_lshl_or_b32 %s, %s, 10, %s" % (v(vDo), v(vL3), v(vDo)))
        a("    v_add_u32 %s, 0x1c00, %s" % (v(vDo + 1), v(vDo)))

    def dload(i):
        def f():
            a("    s_mov_b32 m0, %s" % s(sInb))
            a("    global_load_lds_dwordx4 %s, %s offset:%d nt" % (v(vDo + i), s(sB5, 2), 1024 * i))
        return f
    def qhalf(lo, hi):
        def f():
            setexec(lo, hi)
            quarter(0)
            setexec(0xFFFFFFFF, 0xFFFFFFFF)
        return f
    L = dict(D0=dload(0), D1=dload(1), Q0=lambda: quarter(0), Q1=lambda: quarter(1), Q2=lambda: quarter(2), Q3=lambda: quarter(3))
    L2 = dict(Qa=qhalf(0xFFFFFFFF, 0), Qb=qhalf(0, 0xFFFFFFFF), Qc=qhalf(0xFFFF, 0), Qd=qhalf(0xFFFF0000, 0xFFFFFFFF))
    extra.update(A=ffn_setup, **L)
    extra.update(L2)
    sf = SCHED["f"][opt.get("sf", 0)]
    FT = [("Q0", "Q1 Q2 Q3 b D0 D1"), ("Q0", "Q1 Q2 Q3"), ("", "Q0 b Q1 Q2 Q3"), ("D0 D1", "Q0 b Q1 Q2 Q3"),
          ("", "Q0 D1 b Q1 Q2 Q3"), ("", "Q0 D0 D1 b Q1 Q2 Q3"), ("D1", "Q0 b Q1 Q2 Q3"),
          ("Qa", "Qb b Q1 Q2 Q3"), ("Qc", "Qd b Q1 Q2 Q3"), ("Qa", "Qb D0 D1 b Q1 Q2 Q3"), ("Qa", "Qb b Q1 Q2 Q3 b D0 D1"),
          ("Qb", "D0 D1 b Q1 Q2 Q3"), ("Qb", "Q1 Q2 Q3 b D0 D1"),
          ("Qa", "D0 D1 b Q1 Q2 Q3", "Qb"), ("Qa", "Q1 Q2 Q3 b D0 D1", "Qb"), ("Qa", "D1 b Q1 Q2 Q3", "Qb"), ("Qa", "Q1 Q2 Q3", "Qb"),
          ("", "Qb b Q1 Q2 Q3", "Qa"), ("Qc", "Q1 Q2 Q3", "Qd"),
          ("Qb", "Q1 Q2 Q3"), ("", "Q1 Q2 Q3", "Qb"), ("Q0", "Q1 Q2 Q3"), ("Qa", "Q1 Q2 Q3", "Qb"), ("Qa", "Qb b Q1 Q2 Q3"),
          ("Qa", "Qb Q1 Q2 Q3"), ("Qa", "Qb b Q1 b Q2 b Q3"), ("Qa", "Qb Q1 b Q2 Q3")][opt.get("ft", 0)]
    FT = FT + ("",) * (3 - len(FT))
    DL = opt.get("dl", 0)
    allf = (sf + " " + FT[0] + " " + FT[1] + " " + FT[2] + " " + " ".join(["D0", "D1"][2 - DL:])).replace("Qb", "Q0").replace("Qd", "Q0").split()
    assert sorted(t for t in allf if t in L) == sorted(L), allf
    L.update(L2)
    attention(sf, [L[t] for t in FT[0].split()], [L[t] for t in FT[2].split()])
    if opt.get("fack", 0):
        a("    s_waitcnt vmcnt(0)")
    if not opt.get("nfb", 0):
        a("    s_barrier")
    for t in FT[1].split():
        if t == "b":
            a("    s_barrier")
        else:
            L[t]()

    def hintprep():
        if opt.get("hn", 1) == 1:
            a("    s_mov_b32 %s, %s" % (s(sRep), s(sT32)))
        else:
            a("    s_mul_i32 %s, %s, 0x01010101" % (s(sRep), s(sTag8)))
        a("    s_mov_b32 %s, %s" % (s(sRep + 1), s(sRep)))
        a("    s_and_b32 %s, %s, %d" % (s(sT0), s(sFI), (R3 // 2 if opt.get("dp3", 0) else R3) - 1))
        a("    s_lshl_b32 %s, %s, %d" % (s(sT0), s(sT0), RS3))
        a("    s_add_u32 %s, %s, 0x%x" % (s(sT0), s(sT0), SBELL))
    a("    s_lshl_b32 %s, %s, 11" % (s(sT1), s(sW)))
    stamp(11)
    vXc = V()
    vHs = V(16, 4)
    vHo = V(4)
    vWg = V(16, 4)
    vWd = V(8, 4)
    P4 = opt.get("p4", 0)
    RW = P4 or opt.get("rw", 0)
    vWd2 = V(8, 4)
    vDv = V(4, 4)
    vAy2 = V(2)
    vHb = V(8, 4)
    vDu = V(4, 4)
    vCs = V(4, 4)
    vMt = V(4)
    vB = V(8, 4)
    vAgw, vAgr, vAsw, vAsr, vAy, vHr = [V() for _ in range(6)]
    a("    s_lshl_b32 %s, %s, 7" % (s(sT0), s(sW)))
    base(sB0, sX, s(sT0))
    a("    v_lshl_add_u32 %s, %s, 2, %s" % (v(vT + 2), v(vJ), v(vG)))
    a("    v_lshlrev_b32 %s, 1, %s" % (v(vT + 2), v(vT + 2)))
    a("    global_load_ushort %s, %s, %s" % (v(vXc), v(vT + 2), s(sB0, 2)))
    a.c("the value of this load is never used: it only fetches the translation and the lines of d_out ahead of the final store")
    a("    global_load_ushort %s, %s, %s" % (v(vHr), v(vT + 2), s(sOUT, 2)))
    if opt.get("dp3", 0) == 2:
        a("    s_cmp_lg_u32 %s, 0" % s(sW))
        a("    s_cbranch_scc1 L_HP")
        hintprep()
        spoll2(s(sT0), (R3 // 2) << RS3, sRep, P3, sB4, phase=1)
        a("    s_lshl_b32 %s, %s, 7" % (s(sT0), s(sW)))
        a("L_HP:")
    a("    s_add_u32 %s, %s, 0x%x" % (s(sT2), s(sT0), LGP))
    a("    v_lshl_add_u32 %s, %s, 4, %s" % (v(vAgw), v(vG), s(sT2)))
    a("    v_lshrrev_b32 %s, 3, %s" % (v(vT + 2), v(vJ)))
    a("    v_lshl_add_u32 %s, %s, 1, %s" % (v(vT + 2), v(vL7), v(vT + 2)))
    a("    v_lshlrev_b32 %s, 6, %s" % (v(vT + 2), v(vT + 2)))
    a("    v_lshl_add_u32 %s, %s, 4, %s" % (v(vT + 2), v(vG), v(vT + 2)))
    a("    v_add_u32 %s, 0x%x, %s" % (v(vAgr), LGP, v(vT + 2)))
    a("    s_lshl_b32 %s, %s, 3" % (s(sT2), s(sW)))
    a("    s_add_u32 %s, %s, 0x%x" % (s(sT2), s(sT2), LST))
    a("    v_mov_b32 %s, %s" % (v(vAsw), s(sT2)))
    a("    v_lshlrev_b32 %s, 3, %s" % (v(vT + 2), v(vL7)))
    a("    v_add_u32 %s, 0x%x, %s" % (v(vAsr), LST, v(vT + 2)))
    for t in range(4):
        a("    v_cmp_eq_u32 vcc, %d, %s" % (t, v(vJ)))
        a("    v_cndmask_b32 %s, 0, -1, vcc" % v(vMt + t))
    a("    s_lshl_b32 %s, %s, 8" % (s(sT0), s(sW)))
    a("    s_add_u32 %s, %s, 0x%x" % (s(sT0), s(sT0), S3))
    base(sB1, sWS, s(sT0))
    a("    v_lshlrev_b32 %s, 4, %s" % (v(vT + 2), v(vJ)))
    a("    v_mul_u32_u24 %s, %d, %s" % (v(vHo), ST3, v(vG)))
    a("    v_add_u32 %s, %s, %s" % (v(vHo), v(vHo), v(vT + 2)))
    for i in (1, 2, 3):
        a("    v_add_u32 %s, 0x%x, %s" % (v(vHo + i), 4 * ST3 * i, v(vHo)))
    a("    s_mul_i32 %s, %s, %d" % (s(sT0), s(sW), 4 * 7168))
    a("    s_lshl_b32 %s, %s, 6" % (s(sT2), s(sFI)))
    a("    s_add_u32 %s, %s, %s" % (s(sT0), s(sT0), s(sT2)))
    a("    s_add_u32 %s, %s, 0x%x" % (s(sT0), s(sT0), S4))
    base(sB2, sWS, s(sT0))
    a("    v_lshrrev_b32 %s, 2, %s" % (v(vT + 2), v(vJ)))
    a("    v_mul_u32_u24 %s, 7168, %s" % (v(vT + 2), v(vT + 2)))
    a("    v_and_b32 %s, 3, v0" % v(vT + 3))
    a("    v_lshl_add_u32 %s, %s, 4, %s" % (v(vAy), v(vT + 3), v(vT + 2)))
    a("    v_lshrrev_b32 %s, 2, %s" % (v(vT + 2), v(vJ)))
    a("    v_and_b32 %s, 3, v0" % v(vT + 3))
    a("    v_lshl_add_u32 %s, %s, 2, %s" % (v(vT + 4), v(vT + 2), v(vG)))
    a("    v_lshlrev_b32 %s, 5, %s" % (v(vT + 4), v(vT + 4)))
    a("    v_lshl_add_u32 %s, %s, 3, %s" % (v(vT + 4), v(vT + 3), v(vT + 4)))
    a("    s_add_u32 %s, %s, 0x%x" % (s(sT2), s(sT1), LG))
    a("    v_add_u32 %s, %s, %s" % (v(vT + 4), s(sT2), v(vT + 4)))
    a("    v_lshl_add_u32 %s, %s, 2, %s" % (v(vT + 5), v(vG), v(vT + 2)))
    a("    v_lshlrev_b32 %s, 7, %s" % (v(vT + 5), v(vT + 5)))
    a("    v_lshl_add_u32 %s, %s, 3, %s" % (v(vT + 5), v(vT + 3), v(vT + 5)))
    a("    s_add_u32 %s, %s, 0x%x" % (s(sT2), s(sT1), LD))
    a("    v_add_u32 %s, %s, %s" % (v(vT + 5), s(sT2), v(vT + 5)))
    for i in range(4):
        a("    v_mov_b32 %s, 0x3f803f80" % v(vHb + i))

    NH = opt.get("dnh", 4)

    def hloadsf():
        for i in range(NH):
            a("    global_load_dwordx4 %s, %s, %s sc1" % (v(vHs + 4 * i, 4), v(vHo + i), s(sB1, 2)))
    a.c("gather the 16 wo partials; meanwhile transpose the weights and take their column sums")
    S3B = opt.get("s3bell", 1)
    PG = opt.get("pg", 0)
    if PG:
        sDone, sNew = sU + 0, sMean
        sDone = sVar
        a("    s_mov_b32 %s, %s" % (s(sRep), s(sT32)))
        a("    s_mov_b32 %s, %s" % (s(sRep + 1), s(sRep)))
        a("    s_and_b32 %s, %s, %d" % (s(sT0), s(sFI), R3 - 1))
        a("    s_lshl_b32 %s, %s, %d" % (s(sT0), s(sT0), RS3))
        a("    s_add_u32 %s, %s, 0x%x" % (s(sT0), s(sT0), SBELL))
        a("    v_mov_b32 %s, 0x%x" % (v(vT + 1), LRM))
        a("    s_mov_b32 %s, 0" % s(sDone))
        a("    s_mov_b32 %s, 0" % s(sSpin))
        sPrev = sPC
        a("    s_mov_b32 %s, 0" % s(sPrev))
        a("L_PG:")
        a("    s_add_u32 %s, %s, 1" % (s(sSpin), s(sSpin)))
        a("    v_xor_b32 %s, 4, %s" % (v(vT + 1), v(vT + 1)))
        a("    s_cmp_lg_u32 %s, 0" % s(sW))
        a("    s_cbranch_scc1 L_PGR")
        a("    s_load_dwordx8 %s, %s, %s glc" % (s(sFl, 8), s(sWS, 2), s(sT0)))
        a("    s_mov_b32 %s, 0" % s(sNew))
        a("    s_waitcnt lgkmcnt(0)")
        for k in range(4):
            a("    s_cmp_eq_u64 %s, %s" % (s(sFl + 2 * k, 2), s(sRep, 2)))
            a("    s_cselect_b32 %s, %d, 0" % (s(sT1), 1 << k))
            a("    s_or_b32 %s, %s, %s" % (s(sNew), s(sNew), s(sT1)))
        a("    s_cmp_ge_u32 %s, 0x%x" % (s(sSpin), SPIN_LIMIT))
        a("    s_cselect_b32 %s, 15, %s" % (s(sNew), s(sNew)))
        if PG >= 2:
            a("    s_cmp_eq_u32 %s, 15" % s(sNew))
            a("    s_cselect_b32 %s, 15, %s" % (s(sT1), s(sPrev)))
            a("    s_mov_b32 %s, %s" % (s(sPrev), s(sNew)))
            a("    s_mov_b32 %s, %s" % (s(sNew), s(sT1)))
        a("    v_mov_b32 %s, %s" % (v(vT + 2), s(sNew)))
        a("    ds_write_b32 %s, %s" % (v(vT + 1), v(vT + 2)))
        a("    s_waitcnt lgkmcnt(0)")
        a("    s_barrier")
        a("    s_branch L_PGI")
        a("L_PGR:")
        a("    s_barrier")
        a("    ds_read_b32 %s, %s" % (v(vT + 2), v(vT + 1)))
        a("    s_waitcnt lgkmcnt(0)")
        a("    v_readfirstlane_b32 %s, %s" % (s(sNew), v(vT + 2)))
        a("L_PGI:")
        a("    s_andn2_b32 %s, %s, %s" % (s(sNew), s(sNew), s(sDone)))
        a("    s_cbranch_scc0 L_PG")
        a("    s_or_b32 %s, %s, %s" % (s(sDone), s(sDone), s(sNew)))
        for i in range(4):
            a("    s_bitcmp1_b32 %s, %d" % (s(sNew), i))
            a("    s_cbranch_scc0 L_PGS%d" % i)
            a("    global_load_dwordx4 %s, %s, %s sc1" % (v(vHs + 4 * i, 4), v(vHo + i), s(sB1, 2)))
            a("L_PGS%d:" % i)
        a("    s_cmp_lg_u32 %s, 15" % s(sDone))
        a("    s_cbranch_scc1 L_PG")
    elif opt.get("sb3", 0):
        a("    s_cmp_lg_u32 %s, 0" % s(sW))
        a("    s_cbranch_scc1 L_HINT")
        if opt.get("dp3", 0) != 2:
            hintprep()
        if opt.get("dp3", 0):
            spoll2(s(sT0), (R3 // 2) << RS3, sRep, P3, sB4 if opt["dp3"] == 2 else sB0, phase=2 if opt["dp3"] == 2 else 0)
        else:
            spoll(sWS, s(sT0), sRep, P3, True)
        a("L_HINT:")
        a("    s_barrier")
    elif S3B:
        a("    s_cmp_lg_u32 %s, 0" % s(sW))
        a("    s_cbranch_scc1 L_HINT")
        a("    v_lshlrev_b32 %s, 7, %s" % (v(vT + 1), v(vL7)))
        a("    v_add_u32 %s, 0x%x, %s" % (v(vT + 1), SBELL, v(vT + 1)))

        def hint():
            a("    global_load_dword %s, %s, %s sc1" % (v(vT + 2), v(vT + 1), s(sWS, 2)))

        def hintcheck():
            a("    v_cmp_ne_u32 vcc, %s, %s" % (s(sT32), v(vT + 2)))
        setexec(0xFF, 0)
        hint()
        poll(hint, hintcheck, 0, cnt=12)
        a("L_HINT:")
        a("    s_barrier")
    gstamp(1)
    if not PG:
        hloadsf()
    for t in ["D0", "D1"][2 - DL:]:
        L[t]()
    a("    s_waitcnt vmcnt(%d)" % (NH + DL))
    gstamp(2)
    stamp(7)
    for mat in range(2):
        for st in range(2):
            for hh in range(2):
                a("    ds_read_b64_tr_b16 %s, %s offset:%d" %
                  (v(vWg + 8 * mat + 4 * st + 2 * hh, 2), v(vT + 4), 16384 * mat + 1024 * st + 512 * hh))
    vAd = V()

    def dreads():
        for t in range(4):
            a("    ds_read_b64_tr_b16 %s, %s offset:%d" % (v(vWd + 2 * t, 2), v(vAd), 32 * t))
    a("    v_mov_b32 %s, %s" % (v(vAd), v(vT + 5)))
    if not DL:
        dreads()
    a("    v_lshlrev_b32 %s, 16, %s" % (v(vXc), v(vXc)))
    if P4:
        a("    v_add_u32 %s, 0x%x, %s" % (v(vAy2), 16 * 7168, v(vAy)))
    if RW:
        a("    s_lshl_b32 %s, %s, 8" % (s(sT0), s(sW)))
        a("    s_add_u32 %s, %s, 0x%x" % (s(sT0), s(sT0), LRED))
        a("    v_lshl_add_u32 %s, v0, 2, %s" % (v(vAy2 + 1), s(sT0)))
    LA = opt.get("la", 0)
    sM0, sM1, sM2, sM8_, sM9 = sB0, sB4, sPC, sMean, sBo
    if LA:
        a("    v_and_b32 %s, 3, v0" % v(vT))
        a("    v_lshl_add_u32 %s, %s, 2, %s" % (v(vT), v(vG), v(vT)))
        a("    v_bfe_u32 %s, v0, 2, 1" % v(vT + 1))
        a("    v_lshl_add_u32 %s, %s, 4, %s" % (v(vT), v(vT + 1), v(vT)))
        a("    v_add_u32 %s, 56, %s" % (v(vT + 1), v(vJ)))
        a("    v_cmp_gt_u32 vcc, 8, %s" % v(vJ))
        a("    v_cndmask_b32 %s, %s, %s, vcc" % (v(vT), v(vT + 1), v(vT)))
        a("    v_lshlrev_b32 %s, 2, %s" % (v(vT), v(vT)))
        a("    v_add_u32 %s, 0x%x, %s" % (v(vAgw), LGP, v(vT)))
        a("    v_lshlrev_b32 %s, 4, %s" % (v(vT), v(vG)))
        a("    v_add_u32 %s, 0x%x, %s" % (v(vAgr), LGP, v(vT)))
        a("    v_mov_b32 %s, 0x%x" % (v(vAsr), LGP + 256))
        for r_, c_ in ((sM0, 0xAAAAAAAA), (sM1, 0xCCCCCCCC), (sM2, 0xF0F0F0F0), (sM8_, 0x01000100), (sM9, 0x02000200)):
            a("    s_mov_b32 %s, 0x%x" % (s(r_), c_))
            a("    s_mov_b32 %s, 0x%x" % (s(r_ + 1), c_))

    def pick(dst):
        a("    v_cndmask_b32 %s, %s, %s, %s" % (v(vD), v(vD), v(vD + 1), s(sM0, 2)))
        a("    v_cndmask_b32 %s, %s, %s, %s" % (v(vD + 2), v(vD + 2), v(vD + 3), s(sM0, 2)))
        a("    v_cndmask_b32 %s, %s, %s, %s" % (v(vDu), v(vDu), v(vDu + 1), s(sM0, 2)))
        a("    v_cndmask_b32 %s, %s, %s, %s" % (v(vDu + 2), v(vDu + 2), v(vDu + 3), s(sM0, 2)))
        a("    v_cndmask_b32 %s, %s, %s, %s" % (v(vD), v(vD), v(vD + 2), s(sM1, 2)))
        a("    v_cndmask_b32 %s, %s, %s, %s" % (v(vDu), v(vDu), v(vDu + 2), s(sM1, 2)))
        a("    v_cndmask_b32 %s, %s, %s, %s" % (v(dst), v(vD), v(vDu), s(sM2, 2)))
    CF2 = opt.get("cf", 0) == 2
    vOne = V(4, 4) if CF2 else None
    vC1 = V(8, 4) if CF2 else None

    def gate_up(b0, b1, d0=None, d1=None):
        d0 = vD if d0 is None else d0
        d1 = vDu if d1 is None else d1
        a("    v_mfma_f32_16x16x32_bf16 %s, %s, %s, 0" % (v(d0, 4), v(vWg, 4), v(b0, 4)))
        a("    v_mfma_f32_16x16x32_bf16 %s, %s, %s, 0" % (v(d1, 4), v(vWg + 8, 4), v(b0, 4)))
        a("    v_mfma_f32_16x16x32_bf16 %s, %s, %s, %s" % (v(d0, 4), v(vWg + 4, 4), v(b1, 4), v(d0, 4)))
        a("    v_mfma_f32_16x16x32_bf16 %s, %s, %s, %s" % (v(d1, 4), v(vWg + 12, 4), v(b1, 4), v(d1, 4)))
    if CF2:
        for i in range(4):
            a("    v_mov_b32 %s, 0x3f803f80" % v(vOne + i))
    else:
        a("    s_waitcnt lgkmcnt(0)")
        gate_up(vHb, vHb)
        if LA:
            pick(vD)
            setexec(0x00FF00FF, 0x00FF00FF)
            a("    ds_add_f32 %s, %s offset:128" % (v(vAgw), v(vD)))
        else:
            setexec(0x00010001, 0x00010001)
            a("    ds_write_b128 %s, %s offset:%d" % (v(vAgw), v(vD, 4), LCS - LGP))
            a("    ds_write_b128 %s, %s offset:%d" % (v(vAgw), v(vDu, 4), LCS - LGP + 64))
        setexec(0xFFFFFFFF, 0xFFFFFFFF)
    CF = opt.get("cf", 0)
    if not CF:
        a("    s_waitcnt lgkmcnt(0)")
        a("    s_barrier")
        a("    ds_read_b128 %s, %s offset:%d" % (v(vCs, 4), v(vAgr), LCS - LGP))
        a("    s_waitcnt lgkmcnt(0)")
        for pat in ("quad_perm:[1,0,3,2]", "quad_perm:[2,3,0,1]", "row_half_mirror"):
            for r in range(4):
                a("    v_add_f32_dpp %s, %s, %s %s %s" % (v(vCs + r), v(vCs + r), v(vCs + r), pat, DPP))

    vHa = V(4, 4)

    def sumacc(dst, src):
        def f(i):
            for r in (0, 2):
                if i == 1:
                    a("    v_pk_add_f32 %s, %s, %s" % (v(dst + r, 2), v(src + r, 2), v(src + 4 + r, 2)))
                elif i > 1:
                    a("    v_pk_add_f32 %s, %s, %s" % (v(dst + r, 2), v(dst + r, 2), v(src + 4 * i + r, 2)))
        return f
    gstamp(3)
    gather(hloadsf, [vHs + 4 * i for i in range(NH)], sTag10, 0x3ff, sumacc(vHa, vHs), cnt=13, ordered=not PG, younger=DL)
    gstamp(6)
    stamp(8)
    if CF2:
        a("    s_waitcnt lgkmcnt(0)")
        gate_up(vOne, vOne, vC1, vC1 + 4)
    vHs = vHa
    a.c("h, gate / up products on h itself, statistics of h")
    treduce4(vHs)
    bf16r(vHs, vHs)
    a("    v_add_f32 %s, %s, %s" % (v(vHs), v(vHs), v(vXc)))
    bf16r(vHr, vHs)
    rowpack(vHs, vHb, 8, lambda: a("    v_mul_f32 %s, %s, %s" % (v(vT + 1), v(vHr), v(vHr))),
            lambda: a("    v_add_f32_dpp %s, %s, %s row_ror:1 %s" % (v(vT), v(vHr), v(vHr), DPP)))
    gate_up(vHb, vHb + 4)
    if RW:
        a("    ds_write_b32 %s, %s" % (v(vAy2 + 1), v(vHr)))
    if CF2:
        setexec(0x00010001, 0x00010001)
        a("    ds_write_b128 %s, %s offset:%d" % (v(vAgw), v(vC1, 4), LCS - LGP))
        a("    ds_write_b128 %s, %s offset:%d" % (v(vAgw), v(vC1 + 4, 4), LCS - LGP + 64))
        setexec(0xFFFFFFFF, 0xFFFFFFFF)
    a("    v_add_f32_dpp %s, %s, %s row_ror:1 %s" % (v(vT + 1), v(vT + 1), v(vT + 1), DPP))
    for sh in (2, 4, 8):
        for r in range(2):
            a("    v_add_f32_dpp %s, %s, %s row_ror:%d %s" % (v(vT + r), v(vT + r), v(vT + r), sh, DPP))
    if LA:
        pick(vD)
        a("    v_cndmask_b32 %s, %s, %s, %s" % (v(vD), v(vD), v(vT), s(sM8_, 2)))
        a("    v_cndmask_b32 %s, %s, %s, %s" % (v(vD), v(vD), v(vT + 1), s(sM9, 2)))
        setexec(0x03FF03FF, 0x03FF03FF)
        a("    ds_add_f32 %s, %s" % (v(vAgw), v(vD)))
        setexec(0xFFFFFFFF, 0xFFFFFFFF)
        a("    s_waitcnt lgkmcnt(0)")
        a("    s_barrier")
    else:
        for pat in ("row_bcast:15 row_mask:0xa", "row_bcast:31 row_mask:0xc"):
            for r in range(2):
                a("    v_add_f32_dpp %s, %s, %s %s bank_mask:0xf" % (v(vT + r), v(vT + r), v(vT + r), pat))
        if opt.get("fst") == 1:
            stamp(3)
        setexec(0, 0x80000000)
        a("    ds_write_b64 %s, %s" % (v(vAsw), v(vT, 2)))
        setexec(0x00010001, 0x00010001)
        a("    ds_write_b128 %s, %s" % (v(vAgw), v(vD, 4)))
        a("    ds_write_b128 %s, %s offset:64" % (v(vAgw), v(vDu, 4)))
        setexec(0xFFFFFFFF, 0xFFFFFFFF)
        a("    s_waitcnt lgkmcnt(0)")
        a("    s_barrier")
    cstamp(1)
    if DL:
        assert not P4
    if P4:
        a("    s_cmp_ge_u32 %s, 4" % s(sW))
        a("    s_cbranch_scc1 L_FIN2")
    a("    ds_read_b64 %s, %s" % (v(vT, 2), v(vAsr)))
    a("    ds_read_b128 %s, %s" % (v(vD, 4), v(vAgr)))
    if LA:
        a("    ds_read_b128 %s, %s offset:128" % (v(vCs, 4), v(vAgr)))
        a("    ds_read_b128 %s, %s offset:64" % (v(vHb, 4), v(vAgr)))
        a("    ds_read_b128 %s, %s offset:192" % (v(vHb + 4, 4), v(vAgr)))
    elif CF:
        a("    ds_read_b128 %s, %s offset:%d" % (v(vCs, 4), v(vAgr), LCS - LGP))
    if P4:
        assert CF
        for t in range(4):
            a("    ds_read_b64_tr_b16 %s, %s offset:%d" % (v(vWd2 + 2 * t, 2), v(vAd), 8192 + 32 * t))
    pats = ("quad_perm:[1,0,3,2]", "quad_perm:[2,3,0,1]", "row_half_mirror")

    def meanfix():
        a.c("g u with the mean removed, down projection, 1 / sigma^2, publish")
        a("    v_mul_f32 %s, 0x3b000000, %s" % (v(vT), v(vT)))
        bf16r(vT + 2, vT)
        for r in (0, 2):
            a("    v_pk_fma_f32 %s, %s, %s, %s op_sel_hi:[0,1,1] neg_lo:[1,0,0] neg_hi:[1,0,0]" %
              (v(vD + r, 2), v(vT + 2, 2), v(vCs + r, 2), v(vD + r, 2)))
    if LA:
        a("    s_waitcnt lgkmcnt(%d)" % (0 if prof else 4))
        a("    v_mul_f32 %s, 0x3b000000, %s" % (v(vT), v(vT)))
        bf16r(vT + 2, vT)
        a("    s_waitcnt lgkmcnt(%d)" % (0 if prof else 2))
        for r in (0, 2):
            a("    v_pk_fma_f32 %s, %s, %s, %s op_sel_hi:[0,1,1] neg_lo:[1,0,0] neg_hi:[1,0,0]" %
              (v(vD + r, 2), v(vT + 2, 2), v(vCs + r, 2), v(vD + r, 2)))
        a("    s_waitcnt lgkmcnt(0)")
        cstamp(2)
        for r in (0, 2):
            a("    v_pk_fma_f32 %s, %s, %s, %s op_sel_hi:[0,1,1] neg_lo:[1,0,0] neg_hi:[1,0,0]" %
              (v(vHb + r, 2), v(vT + 2, 2), v(vHb + 4 + r, 2), v(vHb + r, 2)))
    elif CF:
        a("    s_waitcnt lgkmcnt(%d)" % (0 if prof else (6 if P4 else 2)))
        for pat in pats:
            for r in (vT, vT + 1):
                a("    v_add_f32_dpp %s, %s, %s %s %s" % (v(r), v(r), v(r), pat, DPP))
        a("    s_waitcnt lgkmcnt(%d)" % (4 if P4 and not prof else 0))
        cstamp(2)
        meanfix()
        for pat in pats:
            for r in range(4):
                a("    v_add_f32_dpp %s, %s, %s %s %s" % (v(vD + r), v(vD + r), v(vD + r), pat, DPP))
    else:
        a("    s_waitcnt lgkmcnt(0)")
        for pat in pats:
            for r in (vT, vT + 1, vD, vD + 1, vD + 2, vD + 3):
                a("    v_add_f32_dpp %s, %s, %s %s %s" % (v(r), v(r), v(r), pat, DPP))
        meanfix()
    cstamp(3)
    a("    v_mul_f32 %s, 0x3b000000, %s" % (v(vT + 1), v(vT + 1)))
    a("    v_fma_f32 %s, -%s, %s, %s" % (v(vT + 1), v(vT), v(vT), v(vT + 1)))
    if LA:
        for r in (0, 2):
            a("    v_pk_mul_f32 %s, %s, %s" % (v(vT + 4 + r, 2), v(vD + r, 2), v(vHb + r, 2)))
    else:
        for r in range(4):
            a("    v_mul_f32_dpp %s, %s, %s row_ror:8 %s" % (v(vT + 4 + r), v(vD + r), v(vD + r), DPP))
    a("    v_cvt_pk_bf16_f32 %s, %s, %s" % (v(vT + 2), v(vT + 4), v(vT + 5)))
    a("    v_cvt_pk_bf16_f32 %s, %s, %s" % (v(vT + 3), v(vT + 6), v(vT + 7)))
    if DL or P4:
        a("    s_waitcnt lgkmcnt(0)")
    for t in range(4):
        a("    v_and_b32 %s, %s, %s" % (v(vB + 2 * t), v(vT + 2), v(vMt + t)))
        a("    v_and_b32 %s, %s, %s" % (v(vB + 2 * t + 1), v(vT + 3), v(vMt + t)))
        if t:
            a("    v_mfma_f32_16x16x16_bf16 %s, %s, %s, %s" %
              (v(vDu, 4), v(vB + 2 * t - 2, 2), v(vWd + 2 * t - 2, 2), "0" if t == 1 else v(vDu, 4)))
            if P4:
                a("    v_mfma_f32_16x16x16_bf16 %s, %s, %s, %s" %
                  (v(vDv, 4), v(vB + 2 * t - 2, 2), v(vWd2 + 2 * t - 2, 2), "0" if t == 1 else v(vDv, 4)))
    cstamp(4)
    a("    v_max_f32 %s, 0, %s" % (v(vT + 1), v(vT + 1)))
    a("    v_mfma_f32_16x16x16_bf16 %s, %s, %s, %s" % (v(vDu, 4), v(vB + 6, 2), v(vWd + 6, 2), v(vDu, 4)))
    if P4:
        a("    v_mfma_f32_16x16x16_bf16 %s, %s, %s, %s" % (v(vDv, 4), v(vB + 6, 2), v(vWd2 + 6, 2), v(vDv, 4)))
    bf16r(vT + 1, vT + 1)
    a("    v_add_f32 %s, 0x3727c5ac, %s" % (v(vT + 1), v(vT + 1)))
    bf16r(vT + 1, vT + 1)
    a("    v_sqrt_f32 %s, %s" % (v(vT + 1), v(vT + 1)))
    bf16r(vT + 1, vT + 1)
    a("    v_mul_f32 %s, %s, %s" % (v(vT + 1), v(vT + 1), v(vT + 1)))
    a("    v_rcp_f32 %s, %s" % (v(vT), v(vT + 1)))
    cstamp(5)
    setexec(0xFFFF, 0)
    for r in (0, 2):
        a("    v_pk_mul_f32 %s, %s, %s op_sel_hi:[1,0]" % (v(vDu + r, 2), v(vDu + r, 2), v(vT, 2)))
    for i in range(4):
        a("    v_and_or_b32 %s, %s, %s, %s" % (v(vDu + i), v(vDu + i), s(sM10), v(vTag10)))
    a("    global_store_dwordx4 %s, %s, %s sc1" % (v(vAy), v(vDu, 4), s(sB2, 2)))
    cstamp(6)
    if P4:
        for r in (0, 2):
            a("    v_pk_mul_f32 %s, %s, %s op_sel_hi:[1,0]" % (v(vDv + r, 2), v(vDv + r, 2), v(vT, 2)))
        for i in range(4):
            a("    v_and_or_b32 %s, %s, %s, %s" % (v(vDv + i), v(vDv + i), s(sM10), v(vTag10)))
        a("    global_store_dwordx4 %s, %s, %s sc1" % (v(vAy2), v(vDv, 4), s(sB2, 2)))
    stamp(9)
    if RW:
        a("    s_cmp_ge_u32 %s, 32" % s(sFI))
        a("    s_cbranch_scc1 L_FIN2")
    a.c("final sum over the 112 partials for 16 columns")
    a("    s_lshr_b32 %s, %s, 2" % (s(sT0), s(sFI)))
    if RW:
        a("    s_and_b32 %s, %s, 3" % (s(sT1), s(sT0)))
        if opt.get("rw") == 2:
            a("    s_add_u32 %s, %s, 4" % (s(sT1), s(sT1)))
        a("    s_cmp_lg_u32 %s, %s" % (s(sT1), s(sW)))
        a("    s_cbranch_scc1 L_FIN2")
        a("    s_mov_b32 %s, %s" % (s(sMean), s(sT0)))
    else:
        a("    s_cmp_lg_u32 %s, %s" % (s(sT0), s(sW)))
        a("    s_cbranch_scc1 L_FIN2")
    setexec(0xFFFFFFFF, 0xFFFFFFFF)
    if opt.get("yd", 0) >= 1:
        a("    s_waitcnt vmcnt(0)")
    vY = V(28, 4)
    vCo = V()
    a("    v_and_b32 %s, 3, v0" % v(vT))
    a("    v_lshlrev_b32 %s, 2, %s" % (v(vT + 1), v(vG)))
    a("    v_lshl_add_u32 %s, %s, 4, %s" % (v(vT + 1), v(vT), v(vT + 1)))
    a("    v_add_u32 %s, %s, %s" % (v(vT + 1), s(sU), v(vT + 1)))
    a("    v_lshlrev_b32 %s, 2, %s" % (v(vT + 1), v(vT + 1)))
    if RW:
        a("    s_lshl_b32 %s, %s, 8" % (s(sT0), s(sMean)))
        a("    s_add_u32 %s, %s, 0x%x" % (s(sT0), s(sT0), LRED))
        a("    v_add_u32 %s, %s, %s" % (v(vT + 1), s(sT0), v(vT + 1)))
        a("    ds_read_b32 %s, %s" % (v(vHr), v(vT + 1)))
    else:
        a("    ds_bpermute_b32 %s, %s, %s" % (v(vHr), v(vT + 1), v(vHr)))
    a("    v_lshl_add_u32 %s, %s, 4, %s" % (v(vCo), v(vG), v(vT)))
    a("    v_lshlrev_b32 %s, 1, %s" % (v(vCo), v(vCo)))
    a("    s_lshl_b32 %s, %s, 7" % (s(sT0), s(sMean if RW else sW)))
    a("    s_lshl_b32 %s, %s, 3" % (s(sT1), s(sU)))
    a("    s_add_u32 %s, %s, %s" % (s(sT0), s(sT0), s(sT1)))
    base(sB3, sOUT, s(sT0))
    if opt.get("odiag"):
        a("    s_lshl_b32 %s, %s, 12" % (s(sT0), s(sFI)))
        a("    s_add_u32 %s, %s, 0x180000" % (s(sT0), s(sT0)))
        base(sB3, sWS, s(sT0))
        if opt["odiag"] == 2:
            a("    v_lshlrev_b32 %s, 4, %s" % (v(vCo), v(vCo)))
    a("    s_mul_i32 %s, %s, 7168" % (s(sT1), s(sFI)))
    a("    s_add_u32 %s, %s, 0x%x" % (s(sT1), s(sT1), S4 + 3072))
    base(sB2, sWS, s(sT1))

    def yloads():
        for n in range(7):
            a("    global_load_dwordx4 %s, %s, %s offset:%d%s" % (v(vY + 4 * n, 4), v(vAo), s(sB2, 2), 1024 * n - 3072,
                                                                 [" sc1", " sc1 nt", " sc0 sc1 nt", " sc0 sc1"][opt.get("yl", 0)]))

    if opt.get("ackwait", 1):
        a("    s_waitcnt vmcnt(0)")
    if opt.get("yd", 0) >= 2:
        a("    global_load_ushort %s, %s, %s sc1" % (v(vY), v(vCo), s(sB3, 2)))
        a("    s_waitcnt vmcnt(0)")
    yloads()
    gather(yloads, [vY + 4 * i for i in range(7)], sTag10, 0x3ff, sumacc(vHa, vY), cnt=15)
    if not opt.get("astamps"):
        stamp(14)
    vY = vHa
    treduce4(vY)
    for sh in (4, 8):
        a("    v_add_f32_dpp %s, %s, %s row_ror:%d %s" % (v(vY), v(vY), v(vY), sh, DPP))
    bf16r(vY, vY)
    a("    s_waitcnt lgkmcnt(0)")
    a("    v_add_f32 %s, %s, %s" % (v(vY), v(vY), v(vHr)))
    a("    v_cvt_pk_bf16_f32 %s, %s, %s" % (v(vY), v(vY), v(vY)))
    setexec(0x000F000F, 0x000F000F)
    a("    global_store_short %s, %s, %s%s" % (v(vCo), v(vY), s(sB3, 2), ["", " sc1", " nt", " sc0 sc1"][opt.get("ost", 0)]))
    a.c("advance the epoch word: by now every workgroup of this launch has read it")
    a("    s_cmp_lg_u32 %s, 0" % s(sFI))
    a("    s_cbranch_scc1 L_FIN2")
    setexec(1, 0)
    a("    v_mov_b32 %s, 0" % v(vT))
    a("    v_mov_b32 %s, %s" % (v(vT + 1), s(sT32)))
    a("    global_store_dword %s, %s, %s sc1" % (v(vT), v(vT + 1), s(sWS, 2)))
    if opt.get("diagspin"):
        a("    s_waitcnt lgkmcnt(0)")
        if "diagph" in opt:
            a("    s_sub_u32 s90, s90, s96")
            a("    s_lshl_b32 s90, s90, 2")
            a("    s_add_u32 s96, s96, s90")
        a("    s_add_u32 s96, s96, %d" % opt["diagspin"])
        a("L_DIAG:")
        a("    s_memrealtime s[92:93]")
        a("    s_waitcnt lgkmcnt(0)")
        a("    s_sub_u32 s92, s92, s96")
        a("    s_cmp_lt_i32 s92, 0")
        a("    s_cbranch_scc1 L_DIAG")
    a("L_FIN2:")
    finish()

    if prof:
        a("L_PROF:")
        a("    s_memrealtime %s" % s(sPROF + 20, 2))
        a("    s_mov_b64 exec, 1")
        a("    s_lshl_b32 %s, s2, 3" % s(sT0))
        a("    s_add_u32 %s, %s, %s" % (s(sT0), s(sT0), s(sW)))
        a("    s_lshl_b32 %s, %s, 7" % (s(sT0), s(sT0)))
        a("    s_add_u32 %s, %s, 0x%x" % (s(sT0), s(sT0), PROFB))
        base(sB0, sWS, s(sT0))
        a("    v_mov_b32 v1, 0")
        a("    s_waitcnt lgkmcnt(0)")
        for i in range(16):
            a("    v_mov_b32 v2, %s" % s(sPROF + 2 * i))
            if prof == 2:
                a("    global_atomic_umax v1, v2, %s offset:%d sc1" % (s(sDBG, 2), 4 * i))
            else:
                a("    global_store_dword v1, v2, %s offset:%d" % (s(sB0, 2), 4 * i))
        if prof == 2:
            a("    s_not_b32 %s, %s" % (s(sT0), s(sPROF)))
            a("    v_mov_b32 v2, %s" % s(sT0))
            a("    global_atomic_umax v1, v2, %s offset:48 sc1" % s(sDBG, 2))
        a("    s_endpgm")
    a("L_END:")
    a("    s_endpgm")
    a("L_CODE_END:")
    nv = (V.hi + 7) // 8 * 8
    a('.section .rodata,"a"')
    a(".p2align 6")
    a(".amdhsa_kernel %s_kernel" % NAME)
    a("  .amdhsa_next_free_vgpr %d" % nv)
    a("  .amdhsa_next_free_sgpr 102")
    a("  .amdhsa_accum_offset %d" % nv)
    a("  .amdhsa_group_segment_fixed_size 0")
    a("  .amdhsa_kernarg_size 96")
    a("  .amdhsa_user_sgpr_count 2")
    a("  .amdhsa_user_sgpr_kernarg_segment_ptr 1")
    a("  .amdhsa_system_sgpr_workgroup_id_x 1")
    a("  .amdhsa_float_denorm_mode_32 3")
    a(".end_amdhsa_kernel")
    return out + a.finalize()


if __name__ == "__main__":
    import argparse
    ap = argparse.ArgumentParser()
    ap.add_argument("-o", default=None)
    ap.add_argument("--prof", type=int, default=0)
    ap.add_argument("--opt", default="")
    args = ap.parse_args()
    opt = {}
    for kv in args.opt.split(","):
        if kv:
            k, x = kv.split("=")
            opt[k] = int(x)
    txt = gen(args.prof, opt)
    path = args.o or os.path.join(os.path.dirname(os.path.abspath(__file__)), "..", "cdna_kernels", NAME + ".s")
    open(path, "w").write(txt)
    print("wrote", path, len(txt.split("\n")), "lines")
```

```python
import sys
import os
sys.path.insert(0, os.path.dirname(os.path.abspath(__file__)))
from asmlib import Asm

NAME = "sequential_preLN__sliding_block_cached__glu_gated_bilinear__decode"

EPOCH = 0
S1 = 0x20000
S2ML = 0x11000
S3 = 0x40000
S4 = 0xF8000
SBELL = 0x160000
SRDY = 0x138000
SQF = 0x5C000
S2O = 0x60000
PROFB = 0x200000

LK = 0
LV = 32768
LG = 65536
LD = 98304
LRED = 114688
LQ = 119040
LMX = 120128
LLS = 120256
LP = 120768
LH = 121856
LGP = 122880
LCS = 123904
LST = 124928
LWT = 124992
LEP = 125504
LRM = 125512
LSS = 125536
LDS_BYTES = 125568

DPP = "row_mask:0xf bank_mask:0xf"
SPIN_LIMIT = 1 << 18


class Regs:
    def __init__(self, start):
        self.n = start
        self.hi = start

    def __call__(self, cnt=1, align=None):
        if align is None:
            align = 2 if cnt > 1 else 1
        self.n = (self.n + align - 1) // align * align
        b = self.n
        self.n += cnt
        self.hi = max(self.hi, self.n)
        return b

    def mark(self):
        return self.n

    def release(self, m):
        self.n = m


def v(b, n=1):
    return "v%d" % b if n == 1 else "v[%d:%d]" % (b, b + n - 1)


def s(b, n=1):
    return "s%d" % b if n == 1 else "s[%d:%d]" % (b, b + n - 1)


def gen(prof=False, opt=None):
    opt = dict(opt or {})
    global S1, S3, S4, SRDY, SBELL, S2ML, S2O
    if opt.get("lay") == 1:
        S1, S3, S4, SRDY, SBELL = 0x1000, 0x15000, 0xE0000, 0x120000, 0x140000
    if opt.get("lay") == 2:
        S1, S2ML, S3, SBELL, SRDY, S4, S2O = 0x1000, 0x11000, 0x15000, 0x1D000, 0x20000, 0x40000, 0x80000
    if opt.get("lay") == 3:
        S1, S2ML, S3, SBELL, SRDY, S4, S2O = 0x1080, 0x11100, 0x15180, 0x1D280, 0x20300, 0x40380, 0x80400
    for k_, x_ in dict(bx=0, qpol=4, win=3, mb=0, sw=6, sf=1, ft=25, t0p=2, fack=0, ost=1, amx=0, pl=0, sb2=3, sb3=1, rs2=10, dh=4, cf=1, hp=2, c3=1, wt=2, ln1p=1, lq=2, k2p=1, k1p=2, hy=1, he=1, p2=4, qe=2, prio=1, pdrop=1).items():
        opt.setdefault(k_, x_)
    a = Asm()
    V = Regs(1)
    sX, sK, sVp, sWQ, sWO, sBX, sWG, sWU = 4, 6, 8, 10, 12, 14, 16, 18
    sWD, sOUT, sDBG, sWS = 20, 22, 24, 26
    sE, sW, sH, sJ = 28, 29, 30, 31
    sT0, sT1, sT2, sT3 = 32, 33, 34, 35
    sB0, sB1, sB2, sB3 = 36, 38, 40, 42
    sM8, sM10, sTag8, sTag10, sT32 = 44, 45, 46, 47, 48
    sSpin, sTmp, sDummy = 49, 50, 51
    sPC = 52
    sB4 = 54
    sU, sFI = 56, 57
    sMean, sVar = 58, 59
    sBo, sBml = 60, 62
    sBfl = 94
    sB5, sInb = 98, 100
    sFl = 4
    sRep = 92
    sScale = 14
    sPROF = 64
    uid = [0]
    ST1, ST2, ST3 = opt.get("st1", 2048), opt.get("st2", 2048), opt.get("st3", 2048)
    XS = ["", " nt", " sc0"][opt.get("xsk", 0)] if opt.get("xs", 0) & 1 else " sc1"
    R2, R3 = opt.get("r2", 4), opt.get("r3", 16)
    RS2, RS3 = opt.get("rs2", 8), opt.get("rs3", 7)
    P2, P3 = opt.get("p2", 2), opt.get("p3", 1)
    vm = []

    def waitfor(name):
        n = len(vm) - 1 - vm.index(name)
        a("    s_waitcnt vmcnt(%d)" % n)

    STM = opt.get("stamps", 0xFFFF)

    def stamp(i):
        if opt.get("diagph") == i:
            a("    s_memrealtime s[90:91]")
        if prof and (STM >> i) & 1:
            a("    s_memrealtime %s" % s(sPROF + 2 * i, 2))

    def gstamp(i):
        if prof and opt.get("cst") == 2:
            a("    s_memtime %s" % s(sPROF + 2 * i, 2))

    def cstamp(i):
        if prof and opt.get("cst") == 1:
            a("    s_memtime %s" % s(sPROF + 2 * i, 2))

    def setexec(lo, hi):
        if lo == hi == 0xFFFFFFFF:
            a("    s_mov_b64 exec, -1")
        else:
            a("    s_mov_b32 exec_lo, 0x%x" % lo)
            a("    s_mov_b32 exec_hi, 0x%x" % hi)

    def base(dst, ptr, off_sreg):
        a("    s_add_u32 %s, %s, %s" % (s(dst), s(ptr), off_sreg))
        a("    s_addc_u32 %s, %s, 0" % (s(dst + 1), s(ptr + 1)))

    def finish():
        if prof:
            a("    s_branch L_PROF")
        else:
            a("    s_endpgm")

    def bf16r(dst, src):
        a("    v_cvt_pk_bf16_f32 %s, %s, %s" % (v(dst), v(src), v(src)))
        a("    v_and_b32 %s, 0xffff0000, %s" % (v(dst), v(dst)))

    def wavesum_to_sgpr(r, sd):
        for sh in (1, 2, 4, 8):
            a("    v_add_f32_dpp %s, %s, %s row_ror:%d %s" % (v(r), v(r), v(r), sh, DPP))
        a("    v_add_f32_dpp %s, %s, %s row_bcast:15 row_mask:0xa bank_mask:0xf" % (v(r), v(r), v(r)))
        a("    v_add_f32_dpp %s, %s, %s row_bcast:31 row_mask:0xc bank_mask:0xf" % (v(r), v(r), v(r)))
        a("    v_readlane_b32 %s, %s, 63" % (s(sd), v(r)))

    def tagcheck(regs, tagreg, tmp, first=True):
        for i, r in enumerate(regs):
            if first and i == 0:
                a("    v_xor_b32 %s, %s, %s" % (v(tmp), s(tagreg), v(r)))
            else:
                a("    v_bitop3_b32 %s, %s, %s, %s bitop3:0xf6" % (v(tmp), v(tmp), v(r), s(tagreg)))

    def poll(loads, check, firstwait, post=None, cnt=None, keepexec=False):
        uid[0] += 1
        u = uid[0]
        a("    s_mov_b32 %s, 0" % s(sSpin))
        a("    s_branch L_CHECK%d" % u)
        a("L_RETRY%d:" % u)
        a("    s_add_u32 %s, %s, 1" % (s(sSpin), s(sSpin)))
        a("    s_cmp_ge_u32 %s, 0x%x" % (s(sSpin), SPIN_LIMIT))
        a("    s_cbranch_scc1 L_OK%d" % u)
        a("    s_mov_b64 exec, vcc")
        loads()
        if firstwait:
            a("    s_waitcnt vmcnt(0)")
        a("L_CHECK%d:" % u)
        a("    s_waitcnt vmcnt(%d)" % firstwait)
        check()
        a("    s_cbranch_vccnz L_RETRY%d" % u)
        a("L_OK%d:" % u)
        a("    s_mov_b64 exec, -1")
        if prof and cnt is not None and (not opt.get("astamps") or cnt == 15):
            a("    s_mov_b32 %s, %s" % (s(sPROF + 2 * cnt), s(sSpin)))
        if post:
            post()

    def spoll(pair, off, rep, parts=1, rep3=False, tries=None, fail=None):
        uid[0] += 1
        u = uid[0]
        a("    s_mov_b32 %s, 0" % s(sSpin))
        depth = opt.get("spd", 1)
        if depth > 1:
            for k in range(4):
                a("    s_not_b64 %s, %s" % (s(sFl + 2 * k, 2), s(rep, 2)))
            a("L_SP%d:" % u)
            a("    s_add_u32 %s, %s, 1" % (s(sSpin), s(sSpin)))
            a("    s_cmp_ge_u32 %s, 0x%x" % (s(sSpin), SPIN_LIMIT))
            a("    s_cbranch_scc1 L_SPD%d" % u)
            a("    s_load_dwordx8 %s, %s, %s glc" % (s(sFl, 8), s(pair, 2), off))
            a("    s_waitcnt lgkmcnt(%d)" % (2 * depth - 2))
            for k in range(4):
                a("    s_cmp_eq_u64 %s, %s" % (s(sFl + 2 * k, 2), s(rep, 2)))
                a("    s_cbranch_scc0 L_SP%d" % u)
            a("L_SPD%d:" % u)
            return
        if parts > 1:
            base(sB0 if rep3 else sB1, pair, off)
        a("L_SP%d:" % u)
        if parts == 1:
            a("    s_load_dwordx8 %s, %s, %s glc" % (s(sFl, 8), s(pair, 2), off))
        else:
            n = 8 // parts
            for k in range(parts):
                a("    s_load_dword%s %s, %s, 0x%x glc" % ("" if n == 1 else "x%d" % n, s(sFl + n * k, n), s(sB0 if rep3 else sB1, 2), 128 * k))
        a("    s_add_u32 %s, %s, 1" % (s(sSpin), s(sSpin)))
        if tries is None:
            a("    s_cmp_ge_u32 %s, 0x%x" % (s(sSpin), SPIN_LIMIT))
        a("    s_waitcnt lgkmcnt(0)")
        if tries is None:
            a("    s_cbranch_scc1 L_SPD%d" % u)
        for k in range(4):
            a("    s_xor_b64 %s, %s, %s" % (s(sFl + 2 * k, 2), s(sFl + 2 * k, 2), s(rep, 2)))
        a("    s_or_b64 %s, %s, %s" % (s(sFl, 2), s(sFl, 2), s(sFl + 2, 2)))
        a("    s_or_b64 %s, %s, %s" % (s(sFl + 4, 2), s(sFl + 4, 2), s(sFl + 6, 2)))
        a("    s_or_b64 %s, %s, %s" % (s(sFl, 2), s(sFl, 2), s(sFl + 4, 2)))
        if tries is None:
            a("    s_cbranch_scc1 L_SP%d" % u)
        elif tries == 1:
            a("    s_cbranch_scc1 %s" % fail)
        else:
            a("    s_cbranch_scc0 L_SPD%d" % u)
            a("    s_cmp_lt_u32 %s, %d" % (s(sSpin), tries))
            a("    s_cbranch_scc1 L_SP%d" % u)
            a("    s_branch %s" % fail)
        a("L_SPD%d:" % u)

    def spoll2(offA, dist, rep, parts, bp, between=None, phase=0):
        assert not prof
        uid[0] += 1
        u = uid[0]
        sets = (sFl, 64)
        n = 8 // parts
        SENT = 0x5a5aa5a5
        if phase != 2:
            base(bp, sWS, offA)

        def issue(k):
            a("    s_mov_b32 %s, 0x%x" % (s(sets[k] + 7), SENT))
            for q in range(parts):
                a("    s_load_dword%s %s, %s, 0x%x glc" % ("x%d" % n, s(sets[k] + n * q, n), s(bp, 2), 128 * q + dist * k))
        if phase != 2:
            issue(0)
        if phase == 1:
            return
        issue(1)
        a("    s_mov_b32 %s, 0" % s(sSpin))
        for k in (0, 1):
            a("L_S2%d_%d:" % (u, k))
            if k == 0:
                a("    s_add_u32 %s, %s, 1" % (s(sSpin), s(sSpin)))
                a("    s_cmp_ge_u32 %s, 0x%x" % (s(sSpin), SPIN_LIMIT * 8))
                a("    s_cbranch_scc1 L_S2D%d" % u)
            a("    s_cmp_eq_u32 %s, 0x%x" % (s(sets[k] + 7), SENT))
            a("    s_cbranch_scc1 L_S2%d_%d" % (u, 1 - k))
            for q in range(4):
                a("    s_cmp_eq_u64 %s, %s" % (s(sets[k] + 2 * q, 2), s(rep, 2)))
                a("    s_cbranch_scc0 L_S2R%d_%d" % (u, k))
            a("    s_branch L_S2D%d" % u)
            a("L_S2R%d_%d:" % (u, k))
            issue(k)
            if k == 1:
                a("    s_branch L_S2%d_0" % u)
        a("L_S2D%d:" % u)

    def gather(loads, regs, tag, lowmask, acc, cnt=None, before=None, ordered=True, younger=0):
        uid[0] += 1
        u = uid[0]
        n = len(regs)

        def strip(i, first):
            r = regs[i]
            for k in range(4):
                a("    v_xor_b32 %s, %s, %s" % (v(r + k), s(tag), v(r + k)))
            if first:
                a("    v_or3_b32 %s, %s, %s, %s" % (v(vG0), v(r), v(r + 1), v(r + 2)))
                a("    v_or_b32 %s, %s, %s" % (v(vG0), v(vG0), v(r + 3)))
            else:
                a("    v_or3_b32 %s, %s, %s, %s" % (v(vG0), v(vG0), v(r), v(r + 1)))
                a("    v_or3_b32 %s, %s, %s, %s" % (v(vG0), v(vG0), v(r + 2), v(r + 3)))

        def verdict():
            a("    v_and_b32 %s, 0x%x, %s" % (v(vG0), lowmask, v(vG0)))
            a("    v_cmp_ne_u32 vcc, 0, %s" % v(vG0))
        a("    s_mov_b32 %s, 0" % s(sSpin))
        a("    s_branch L_FIRST%d" % u)
        a("L_RETRY%d:" % u)
        a("    s_add_u32 %s, %s, 1" % (s(sSpin), s(sSpin)))
        a("    s_cmp_ge_u32 %s, 0x%x" % (s(sSpin), SPIN_LIMIT))
        a("    s_cbranch_scc1 L_REDO%d" % u)
        a("    s_mov_b64 exec, vcc")
        loads()
        a("    s_waitcnt vmcnt(0)")
        for i in range(n):
            strip(i, i == 0)
        verdict()
        a("    s_cbranch_vccnz L_RETRY%d" % u)
        a("L_REDO%d:" % u)
        a("    s_mov_b64 exec, -1")
        for i in range(n):
            acc(i)
        a("    s_branch L_OK%d" % u)
        a("L_FIRST%d:" % u)
        if before:
            before()
        for i in range(n):
            if ordered or i == 0:
                a("    s_waitcnt vmcnt(%d)" % (n - 1 - i + younger if ordered else 0))
            if cnt == 13 and i in (0, n - 1):
                gstamp(4 if i == 0 else 5)
            strip(i, i == 0)
            if i == n - 1:
                verdict()
            acc(i)
        a("    s_cbranch_vccnz L_RETRY%d" % u)
        a("L_OK%d:" % u)
        if prof and cnt is not None and not opt.get("astamps"):
            a("    s_mov_b32 %s, %s" % (s(sPROF + 2 * cnt), s(sSpin)))

    def allred_hi(r, tmp, op):
        for sh in (4, 8):
            a("    v_%s_f32_dpp %s, %s, %s row_ror:%d %s" % (op, v(r), v(r), v(r), sh, DPP))
        for sw in ("16", "32"):
            a("    v_mov_b32 %s, %s" % (v(tmp), v(r)))
            a("    v_permlane%s_swap_b32 %s, %s" % (sw, v(r), v(tmp)))
            a("    v_%s_f32 %s, %s, %s" % (op, v(r), v(r), v(tmp)))

    def rowpack(r, dst, n, *fill):
        a("    v_mov_b32_dpp %s, %s quad_perm:[1,1,3,3] %s" % (v(r + 1), v(r), DPP))
        a("    v_cvt_pk_bf16_f32 %s, %s, %s" % (v(r + 1), v(r), v(r + 1)))
        for f in fill:
            f()
        for i in range(n):
            a("    v_mov_b32_dpp %s, %s row_newbcast:%d %s" % (v(dst + i), v(r + 1), 2 * i, DPP))

    def treduce4(r):
        a("    v_permlane32_swap_b32 %s, %s" % (v(r), v(r + 2)))
        a("    v_permlane32_swap_b32 %s, %s" % (v(r + 1), v(r + 3)))
        a("    v_add_f32 %s, %s, %s" % (v(r), v(r), v(r + 2)))
        a("    v_add_f32 %s, %s, %s" % (v(r + 1), v(r + 1), v(r + 3)))
        a("    v_permlane16_swap_b32 %s, %s" % (v(r), v(r + 1)))
        a("    v_add_f32 %s, %s, %s" % (v(r), v(r), v(r + 1)))

    hdr = open(os.path.join(os.path.dirname(os.path.abspath(__file__)), "..", "cdna_kernels", NAME + ".s.ref")).read()
    head = [l for l in hdr.split("\n") if l.startswith("; Kernarg") or l.startswith(";   offset")]
    out = "\n".join(head) + "\n"
    doc = """
One persistent launch: 256 workgroups (one per CU, all co-resident) x 8 waves.  wg = 8 j + h.
  every wg : LN(x), a 128-row x 64-column piece of q = LN(x) wq, then flash-decoding of KV head h
             over keys 128 j .. 128 j + 127 of the window (true max per chunk, combined later)
  j < 16   : combines the 32 chunks of head group h^4 for 64 of its dims and multiplies by a 256 x 64 piece of wo
  112 wgs  : h = x + attn, LN(h) folded around the products, 16 columns of gate / up, 16 rows of w_down;
             32 of their waves add the 112 partial results and write the output
Hand-offs go through d_ws with write-through stores.  Every word handed over carries a tag taken from an
epoch word (read at entry, advanced at the end), so a launch never takes an earlier launch's words for its own;
a consumer reloads until every tag matches.  Small hint words only tell a consumer when a first look is worth it.
All waits are bounded.
"""
    out += "".join("; " + l + "\n" for l in doc.strip().split("\n"))
    out += "; @launch grid=(256,1,1) block=(512,1,1) lds=%d\n" % LDS_BYTES
    a('.amdgcn_target "amdgcn-amd-amdhsa--gfx950"')
    a(".text")
    a(".globl %s_kernel" % NAME)
    a(".p2align 8")
    a(".type %s_kernel,@function" % NAME)
    a("%s_kernel:" % NAME)

    vL = 0
    vM = V(4, 4)
    vSink = V() if opt.get("vt", 0) else None
    vTag8, vTag10, vG0 = V(), V(), V()
    vL3, vL7, vG, vJ = V(), V(), V(), V()
    vRedW, vRedR, vRedR8, vC4 = V(), V(), V(), V()
    vD = V(4, 4)
    vT = V(8, 4)
    vV0 = V(4)
    vV1 = vV0 + 1
    vW = V(16, 4)
    vAk = V(4)
    vKo = V(4)
    vAq, vAqw, vAmw, vAmr, vAlw, vApw, vApr, vAv, vAo, vAlr, vQo = [V() for _ in range(11)]
    mk = V.mark()

    def attn_addresses():
        a("    s_lshl_b32 %s, %s, 12" % (s(sT0), s(sW)))
        a("    v_xor_b32 %s, %s, %s" % (v(vT), v(vJ), v(vG)))
        a("    v_lshlrev_b32 %s, 4, %s" % (v(vT), v(vT)))
        a("    v_lshl_or_b32 %s, %s, 8, %s" % (v(vT), v(vJ), v(vT)))
        a("    v_add_u32 %s, %s, %s" % (v(vAk), s(sT0), v(vT)))
        for i in (1, 2, 3):
            a("    v_xor_b32 %s, 0x%x, %s" % (v(vAk + i), 64 * i, v(vAk)))
        a("    v_and_b32 %s, 3, v0" % v(vT))
        a("    v_mul_u32_u24 %s, 272, %s" % (v(vT + 1), v(vT)))
        a("    v_lshl_add_u32 %s, %s, 4, %s" % (v(vT + 2), v(vG), v(vT + 1)))
        a("    v_add_u32 %s, 0x%x, %s" % (v(vAq), LQ, v(vT + 2)))
        a("    v_add_u32 %s, 0x%x, %s" % (v(vApr), LP, v(vT + 2)))
        a("    s_lshr_b32 %s, %s, 1" % (s(sT0), s(sW)))
        a("    s_and_b32 %s, %s, 1" % (s(sT1), s(sW)))
        a("    s_lshl_b32 %s, %s, 6" % (s(sT2), s(sT0)))
        a("    s_lshl_b32 %s, %s, 3" % (s(sT3), s(sT1)))
        a("    s_add_u32 %s, %s, %s" % (s(sT2), s(sT2), s(sT3)))
        a("    v_add_u32 %s, %s, %s" % (v(vApw), s(sT2), v(vApr)))
        a("    s_mul_i32 %s, %s, 272" % (s(sT0), s(sT0)))
        a("    s_lshl_b32 %s, %s, 7" % (s(sT1), s(sT1)))
        a("    s_add_u32 %s, %s, %s" % (s(sT0), s(sT0), s(sT1)))
        a("    s_add_u32 %s, %s, 0x%x" % (s(sT0), s(sT0), LQ))
        a("    v_lshl_add_u32 %s, %s, 2, %s" % (v(vT + 3), v(vJ), v(vG)))
        a("    v_lshl_add_u32 %s, %s, 1, %s" % (v(vAqw), v(vT + 3), s(sT0)))
        a("    v_lshlrev_b32 %s, 5, %s" % (v(vT + 1), v(vT)))
        a("    v_add_u32 %s, 0x%x, %s" % (v(vAmr), LMX, v(vT + 1)))
        a("    s_lshl_b32 %s, %s, 2" % (s(sT0), s(sW)))
        a("    v_add_u32 %s, %s, %s" % (v(vAmw), s(sT0), v(vAmr)))
        a("    s_lshl_b32 %s, %s, 4" % (s(sT0), s(sW)))
        a("    s_add_u32 %s, %s, 0x%x" % (s(sT0), s(sT0), LLS))
        a("    v_lshlrev_b32 %s, 7, %s" % (v(vT + 1), v(vT)))
        a("    v_lshl_add_u32 %s, %s, 2, %s" % (v(vT + 1), v(vG), v(vT + 1)))
        a("    v_add_u32 %s, %s, %s" % (v(vAlw), s(sT0), v(vT + 1)))
        a("    v_lshrrev_b32 %s, 2, v0" % v(vT + 1))
        a("    v_lshlrev_b32 %s, 3, %s" % (v(vT + 1), v(vT + 1)))
        a("    v_lshl_add_u32 %s, %s, 7, %s" % (v(vT + 1), v(vT), v(vT + 1)))
        a("    v_add_u32 %s, 0x%x, %s" % (v(vAlr), LLS, v(vT + 1)))
        a("    v_lshrrev_b32 %s, 2, %s" % (v(vT + 1), v(vJ)))
        a("    v_lshl_add_u32 %s, %s, 2, %s" % (v(vT + 1), v(vG), v(vT + 1)))
        a("    v_and_b32 %s, 7, %s" % (v(vT + 2), v(vT + 1)))
        a("    v_lshlrev_b32 %s, 1, %s" % (v(vT + 2), v(vT + 2)))
        a("    v_bfe_u32 %s, v0, 1, 1" % v(vT + 3))
        a("    s_lshl_b32 %s, %s, 1" % (s(sT0), s(sW)))
        a("    v_add_u32 %s, %s, %s" % (v(vT + 3), s(sT0), v(vT + 3)))
        a("    v_xor_b32 %s, %s, %s" % (v(vT + 2), v(vT + 2), v(vT + 3)))
        a("    v_lshlrev_b32 %s, 4, %s" % (v(vT + 2), v(vT + 2)))
        a("    v_lshl_or_b32 %s, %s, 8, %s" % (v(vT + 1), v(vT + 1), v(vT + 2)))
        a("    v_and_b32 %s, 1, v0" % v(vT + 2))
        a("    v_lshl_or_b32 %s, %s, 3, %s" % (v(vT + 1), v(vT + 2), v(vT + 1)))
        a("    v_add_u32 %s, 0x%x, %s" % (v(vAv), LV, v(vT + 1)))
        a("    s_lshl_b32 %s, %s, 5" % (s(sT0), s(sH)))
        a("    s_add_u32 %s, %s, %s" % (s(sT0), s(sT0), s(sJ)))
        a("    s_lshl_b32 %s, %s, 6" % (s(sT2), s(sT0)))
        a("    s_add_u32 %s, %s, 0x%x" % (s(sT2), s(sT2), S2ML))
        base(sBml, sWS, s(sT2))
        if opt.get("sb2", 0):
            per = 32 // P2
            a("    s_lshl_b32 %s, %s, %d" % (s(sT0), s(sH), RS2 + 4))
            a("    s_and_b32 %s, %s, %d" % (s(sT1), s(sJ), per - 1))
            a("    s_add_u32 %s, %s, %s" % (s(sT0), s(sT0), s(sT1)))
            a("    s_lshr_b32 %s, %s, %d" % (s(sT1), s(sJ), per.bit_length() - 1))
            a("    s_lshl_b32 %s, %s, 7" % (s(sT1), s(sT1)))
            a("    s_add_u32 %s, %s, %s" % (s(sT0), s(sT0), s(sT1)))
            a("    s_add_u32 %s, %s, 0x%x" % (s(sT0), s(sT0), SRDY))
            base(sBfl, sWS, s(sT0))

    a("    s_cmp_ge_u32 s2, 0x100")
    a("    s_cbranch_scc1 L_END")
    a("    s_load_dwordx16 s[4:19], s[0:1], 0x0")
    a("    s_load_dwordx8 s[20:27], s[0:1], 0x40")
    if opt.get("diagspin"):
        a("    s_memrealtime s[96:97]")
    if prof == 2:
        for i in range(1, 12):
            a("    s_mov_b32 %s, 0" % s(sPROF + 2 * i))
    stamp(0)
    vXo = vAo
    vXSo, vWQ0, vWQ1 = V(), V(), V()
    vXf = V(4, 4)
    vXs = V()
    vSS = V()
    KVM = 0
    OCLR = 0
    sIdx = sDummy + 0
    a("    v_lshrrev_b32 %s, 6, v0" % v(vT))
    a("    v_and_b32 v0, 63, v0")
    a("    s_lshr_b32 %s, s2, 3" % s(sJ))
    a("    v_readfirstlane_b32 %s, %s" % (s(sW), v(vT)))
    a("    s_and_b32 %s, s2, 7" % s(sH))
    a("    v_lshlrev_b32 %s, 4, v0" % v(vXo))
    a("    v_lshrrev_b32 %s, 3, v0" % v(vL3))
    a("    v_and_b32 %s, 0x70, %s" % (v(vT), v(vXo)))
    a("    v_lshlrev_b32 %s, 2, %s" % (v(vXSo), v(vL3)))
    a("    v_lshl_or_b32 %s, %s, 14, %s" % (v(vWQ0), v(vL3), v(vT)))
    a("    s_and_b32 %s, %s, 24" % (s(sT0), s(sJ)))
    a("    s_add_u32 %s, %s, %s" % (s(sT0), s(sT0), s(sW)))
    a("    s_and_b32 %s, %s, 7" % (s(sT3), s(sJ)))
    a("    s_lshl3_add_u32 %s, %s, %s" % (s(sT3), s(sH), s(sT3)))
    a("    s_lshl_b32 %s, %s, 10" % (s(sT1), s(sT0)))
    a("    s_add_u32 %s, %s, %s" % (s(sT1), s(sT1), s(sT3)))
    a("    s_lshl_b32 %s, %s, 7" % (s(sT1), s(sT1)))
    a("    s_lshl_b32 %s, %s, 5" % (s(sT0), s(sT0)))
    a("    v_add_u32 %s, 0x2000, %s" % (v(vWQ1), v(vWQ0)))

    def later():
        a("    v_lshrrev_b32 %s, 4, v0" % v(vG))
        a("    v_and_b32 %s, 15, v0" % v(vJ))
        a("    s_lshl3_add_u32 %s, %s, %s" % (s(sT3), s(sJ), s(sW)))
        a("    s_lshl_b32 %s, %s, 12" % (s(sT2), s(sH)))
        a("    v_xor_b32 %s, %s, %s" % (v(vT), v(vJ), v(vG)))
        a("    s_add_u32 %s, %s, %s" % (s(sT2), s(sT2), s(sT3)))
        a("    v_lshlrev_b32 %s, 4, %s" % (v(vT), v(vT)))
        a("    s_add_u32 %s, %s, 0xf00" % (s(sT2), s(sT2)))
        a("    v_lshl_or_b32 %s, %s, 8, %s" % (v(vKo), v(vG), v(vT)))
        a("    s_lshl_b32 %s, %s, 12" % (s(sT2), s(sT2)))
        a("    s_lshl_b32 %s, %s, 12" % (s(sTmp), s(sW)))
        a("    s_mov_b32 m0, %s" % s(sTmp))
    PL = opt.get("pl", 1)
    if not PL:
        later()
    ST0 = opt.get("st0", 0)
    if ST0:
        a("    v_mov_b32 %s, 0x%x" % (v(vSS), LSS))
        a("    v_mov_b32 %s, 0" % v(vT + 1))
        a("    s_cmp_lg_u32 %s, 0" % s(sW))
        a("    s_cbranch_scc1 L_NOZ")
        a("    ds_write_b32 %s, %s offset:12" % (v(vSS), v(vT + 1)))
        a("L_NOZ:")
    a.c("x, this wave's 16 rows of wq, first K piece (LDS-DMA, bank-swizzled through the source address)")
    a("    s_waitcnt lgkmcnt(0)")
    T2 = opt.get("touch2", 0)
    if T2:
        assert not PL
        a("    s_cmp_eq_u32 %s, 1" % s(sW))
        a("    s_cselect_b64 %s, %s, %s" % (s(sB4, 2), s(sWQ, 2), s(sK, 2)))
        a("    s_cselect_b32 %s, %s, %s" % (s(sDummy), s(sT1), s(sT2)))
        a("    s_cmp_gt_u32 %s, 1" % s(sW) if T2 == 1 else "    s_cmp_gt_u32 %s, 1" % s(sT3))
        a("    s_cbranch_scc1 L_NOT2")
        a("    s_load_dword %s, %s, %s" % (s(sDummy), s(sB4, 2), s(sDummy)))
        a("L_NOT2:")
    LN0 = opt.get("ln0", 0)
    if LN0:
        a("    s_cmp_lg_u32 %s, 0" % s(sW))
        a("    s_cbranch_scc1 L_NOX")
        a("    global_load_dwordx4 %s, %s, %s" % (v(vXf, 4), v(vXo), s(sX, 2)))
        a("L_NOX:")
        a("    s_add_u32 %s, %s, 0x%x" % (s(sB0), s(sT0), LH))
    else:
        if ST0:
            a("    s_cbranch_scc1 L_NOX")
        a("    global_load_dwordx4 %s, %s, %s" % (v(vXf, 4), v(vXo), s(sX, 2)))
        if ST0:
            a("L_NOX:")
        base(sB0, sX, s(sT0))
        a("    global_load_dword %s, %s, %s" % (v(vXs), v(vXSo), s(sB0, 2)))
    base(sB1, sWQ, s(sT1))
    if opt.get("bx", 0):
        a("    s_barrier")
    a("    global_load_dwordx4 %s, %s, %s nt" % (v(vW, 4), v(vWQ0), s(sB1, 2)))
    a("    global_load_dwordx4 %s, %s, %s nt" % (v(vW + 4, 4), v(vWQ1), s(sB1, 2)))
    vm.extend(["x", "xs", "wq0", "wq1"])
    if PL:
        later()
    base(sB2, sK, s(sT2))
    VT = opt.get("vt", 0)

    def vtouch():
        a("    s_cmp_lg_u32 %s, 7" % s(sW))
        a("    s_cbranch_scc1 L_NOVT")
        base(sB3, sVp, s(sT2))
        a("    s_lshl_b32 %s, %s, 19" % (s(sT1), s(sH)))
        base(sB4, sWO, s(sT1))
        a("    v_mov_b32 %s, %s" % (v(vD), s(sB3)))
        a("    v_mov_b32 %s, %s" % (v(vD + 1), s(sB3 + 1)))
        for k, p in enumerate((sWS, sB4, sWG, sWU, sWD)):
            a("    v_writelane_b32 %s, %s, %d" % (v(vD), s(p), k + 1))
            a("    v_writelane_b32 %s, %s, %d" % (v(vD + 1), s(p + 1), k + 1))
        a("    s_lshl_b32 %s, s2, 7" % s(sT1))
        a("    s_add_u32 %s, %s, 0x20000" % (s(sT1), s(sT1)))
        setexec(0x3E, 0)
        a("    v_add_co_u32 %s, vcc, %s, %s" % (v(vD), s(sT1), v(vD)))
        a("    v_addc_co_u32 %s, vcc, 0, %s, vcc" % (v(vD + 1), v(vD + 1)))
        setexec(0x3F, 0)
        a("    global_load_dword %s, %s, off nt" % (v(vSink), v(vD, 2)))
        setexec(0xFFFFFFFF, 0xFFFFFFFF)
        a("L_NOVT:")
    if VT == 1:
        vtouch()
    if opt.get("b0", 1):
        a("    s_barrier")
    WIN = opt.get("win", 3)
    QPOS = opt.get("qpos", 7)
    stream = ["wq0", "wq1", "K0", "K1", "K2", "K3", "V0", "V1", "V2", "V3"]

    def sload(i):
        nm = stream[i]
        k = int(nm[1])
        if KVM == 2:
            if nm[0] == "K":
                a("    s_add_u32 m0, %s, %s" % (s(92), s(sRot + k)))
                a("    global_load_lds_dwordx4 %s, %s nt" % (v(vKo + k), s(sB2, 2)))
            else:
                a("    s_add_u32 m0, %s, %s" % (s(sTmp), s(sRot + k)))
                a("    global_load_lds_dwordx4 %s, %s nt" % (v(vV0 + k), s(sB3, 2)))
        elif nm[0] == "K":
            a("    global_load_lds_dwordx4 %s, %s offset:%d nt" % (v(vKo + k), s(sB2, 2), 1024 * k))
        else:
            if k == 0:
                a("    s_mov_b32 m0, %s" % s(sTmp))
            a("    global_load_lds_dwordx4 %s, %s offset:%d nt" % (v(vV0 + k) if KVM else v(vV1 if k & 1 else vV0), s(sB3, 2), 1024 * k))
        vm.append(nm)
    assert WIN == 3
    WIN0 = opt.get("win0", WIN)
    for i in range(2, WIN0):
        if i > 2:
            a("    v_xor_b32 %s, 0x%x, %s" % (v(vKo + i - 2), 64 * (i - 2), v(vKo)))
        sload(i)
    if VT == 2:
        vtouch()
    base(sB3, sVp, s(sT2))
    for i in (1, 2, 3):
        a("    v_xor_b32 %s, 0x%x, %s" % (v(vKo + i), 64 * i, v(vKo)))
    a("    v_and_b32 %s, 7, v0" % v(vL7))
    a("    s_lshl_b32 %s, %s, 5" % (s(sT1), s(sH)))
    a("    s_add_u32 %s, %s, %s" % (s(sT1), s(sT1), s(sJ)))
    a("    s_mul_i32 %s, %s, %d" % (s(sT1), s(sT1), ST2))
    a("    s_lshl_b32 %s, %s, 8" % (s(sT0), s(sW)))
    a("    s_add_u32 %s, %s, %s" % (s(sT1), s(sT1), s(sT0)))
    a("    s_add_u32 %s, %s, 0x%x" % (s(sT1), s(sT1), S2O))
    base(sBo, sWS, s(sT1))
    E0 = opt.get("e0", 1)
    a("    s_lshl_b32 %s, %s, 3" % (s(sT0), s(sJ)))
    a("    s_add_u32 %s, %s, %s" % (s(sT0), s(sT0), s(sW)))
    if E0:
        a("    s_cmp_lg_u32 %s, %d" % (s(sW), 1 if LN0 else 0))
        a("    s_cbranch_scc1 L_NOE")
        if opt.get("prio", 0) in (1, 3, 4):
            a("    s_setprio 3")
    a("    s_load_dword %s, %s, 0x%x" % (s(sE), s(sWS, 2), EPOCH))
    a("L_NOE:")
    if opt.get("prio", 0) == 4:
        a("    s_cmp_lt_u32 %s, 5" % s(sW))
        a("    s_cbranch_scc1 L_NOPR4")
        a("    s_setprio 1")
        a("L_NOPR4:")
    if opt.get("prio", 0) in (2, 3):
        a("    s_cmp_lt_u32 %s, 4" % s(sW))
        a("    s_cbranch_scc1 L_NOPR")
        a("    s_setprio 1")
        a("L_NOPR:")
    a.c("prefetch: one line of this kernel's code per wave into L2, one touch per buffer that is first used later (values unused)")
    a("    s_getpc_b64 %s" % s(sPC, 2))
    a("L_PC:")
    def codepf(tag):
        a("    s_lshl3_add_u32 %s, %s, %s" % (s(sT1), s(sJ), s(sW)))
        a("    s_cmp_gt_u32 %s, (L_CODE_END-L_PC-4)/128" % s(sT1))
        a("    s_cbranch_scc1 L_NOPF%s" % tag)
        a("    s_lshl_b32 %s, %s, 7" % (s(sT1), s(sT1)))
        a("    s_load_dword %s, %s, %s" % (s(sDummy), s(sPC, 2), s(sT1)))
        a("L_NOPF%s:" % tag)
    PFL = opt.get("pfl", 0)
    if opt.get("pf", 1) and not PFL:
        codepf("")
    if opt.get("touch", 1):
        a("    s_xor_b32 %s, %s, %d" % (s(sT1), s(sH), opt.get("dh", 0)))
        a("    s_lshl_b32 %s, %s, 19" % (s(sT1), s(sT1)))
        base(sB4, sWO, s(sT1))
        for k, p in enumerate((sB3, sWG, sWU, sWD, sOUT)):
            a("    s_cmp_eq_u32 %s, %d" % (s(sT0), 8 * (17 + k) + 7))
            a("    s_cselect_b64 %s, %s, %s" % (s(sB4, 2), s(p, 2), s(sB4, 2)))
        a("    s_sub_u32 %s, %s, %d" % (s(sT1), s(sT0), 8 * 16 + 7))
        a("    s_and_b32 %s, %s, 0xffffffc7" % (s(sT3), s(sT1)))
        a("    s_cmp_lg_u32 %s, 0" % s(sT3))
        a("    s_cbranch_scc1 L_NOTOUCH")
        a("    s_load_dword %s, %s, 0x0" % (s(sDummy), s(sB4, 2)))
        a("L_NOTOUCH:")
    a("    v_lshlrev_b32 %s, 1, %s" % (v(vT), v(vG)))
    a("    v_xor_b32 %s, %s, %s" % (v(vT), v(vJ), v(vT)))
    a("    v_lshlrev_b32 %s, 4, %s" % (v(vT), v(vT)))
    a("    v_lshl_or_b32 %s, %s, 8, %s" % (v(vV0), v(vG), v(vT)))
    a("    v_xor_b32 %s, 0x80, %s" % (v(vV1), v(vV0)))
    if KVM == 2:
        for i in (3, 2, 1, 0):
            a("    s_lshr_b32 %s, %s, 3" % (s(sT0), s(sRot + i)))
            a("    s_and_b32 %s, %s, 0x80" % (s(sT0), s(sT0)))
            a("    s_or_b32 %s, %s, %s" % (s(sT0), s(sT0), s(sRot + i)))
            a("    v_xor_b32 %s, %s, %s" % (v(vV0 + i), s(sT0), v(vV0)))
    if KVM == 1:
        a("    v_add_u32 %s, 0x%x, %s" % (v(vV0 + 3), 7168 * 3, v(vV1)))
        a("    v_add_u32 %s, 0x%x, %s" % (v(vV0 + 2), 7168 * 2, v(vV0)))
        a("    v_add_u32 %s, 0x%x, %s" % (v(vV1), 7168, v(vV1)))
    a("    s_add_u32 %s, %s, 0x%x" % (s(sTmp), s(sTmp), LV))
    a("    v_and_b32 %s, 1, v0" % v(vT))
    a("    v_lshlrev_b32 %s, 4, %s" % (v(vT), v(vT)))
    a("    v_lshlrev_b32 %s, %s, %s" % (v(vT + 1), v(vT), v(vT + 2)) if False else
      "    v_mov_b32 %s, 0xffff" % v(vT + 1))
    a("    v_lshlrev_b32 %s, %s, %s" % (v(vT + 1), v(vT), v(vT + 1)))
    a("    v_lshrrev_b32 %s, 1, %s" % (v(vT), v(vL7)))
    for r in range(4):
        a("    v_cmp_eq_u32 vcc, %d, %s" % (r, v(vT)))
        a("    v_cndmask_b32 %s, 0, %s, vcc" % (v(vM + r), v(vT + 1)))
    a("    v_lshrrev_b32 %s, 5, v0" % v(vT))
    a("    s_lshl_b32 %s, %s, 1" % (s(sT0), s(sW)))
    a("    v_add_u32 %s, %s, %s" % (v(vT), s(sT0), v(vT)))
    a("    v_mul_u32_u24 %s, 272, %s" % (v(vT), v(vT)))
    a("    v_and_b32 %s, 1, %s" % (v(vT + 1), v(vG)))
    a("    v_lshl_or_b32 %s, %s, 1, %s" % (v(vT + 1), v(vL7), v(vT + 1)))
    a("    v_lshl_add_u32 %s, %s, 4, %s" % (v(vT), v(vT + 1), v(vT)))
    a("    v_add_u32 %s, 0x%x, %s" % (v(vRedW), LRED, v(vT)))
    a("    v_and_b32 %s, 3, v0" % v(vT))
    a("    v_lshl_add_u32 %s, %s, 2, %s" % (v(vC4), v(vG), v(vT)))
    a("    v_lshlrev_b32 %s, 4, %s" % (v(vC4), v(vC4)))
    a("    v_bfe_u32 %s, v0, 2, 2" % v(vT))
    a("    v_mul_u32_u24 %s, 544, %s" % (v(vT), v(vT)))
    a("    v_add_u32 %s, %s, %s" % (v(vT + 1), v(vC4), v(vT)))
    a("    v_add_u32 %s, 0x%x, %s" % (v(vRedR8), LRED, v(vT + 1)))
    a("    v_add_u32 %s, %s, %s" % (v(vRedR), v(vRedR8), v(vT)))
    a("    s_mov_b32 %s, 0x3db504f3" % s(sScale))
    a("    s_mov_b32 %s, 0x3fb8aa3b" % s(sScale + 1))
    a("    s_mov_b32 %s, 0xffffff00" % s(sM8))
    a("    s_mov_b32 %s, 0xfffffc00" % s(sM10))

    def s1bases():
        a("    s_mul_i32 %s, %s, %d" % (s(sT0), s(sH), 4 * ST1))
        a("    s_add_u32 %s, %s, 0x%x" % (s(sT0), s(sT0), S1))
        a("    s_lshr_b32 %s, %s, 3" % (s(sT1), s(sJ)))
        a("    s_mul_i32 %s, %s, %d" % (s(sT1), s(sT1), ST1 - 2048))
        a("    s_add_u32 %s, %s, %s" % (s(sT2), s(sT1), s(sT0)))
        a("    s_lshl_b32 %s, %s, 8" % (s(sT1), s(sJ)))
        a("    s_add_u32 %s, %s, %s" % (s(sT1), s(sT1), s(sT2)))
        base(sB0, sWS, s(sT1))
        a("    s_lshl_b32 %s, %s, 8" % (s(sT1), s(sW)))
        a("    s_add_u32 %s, %s, %s" % (s(sT1), s(sT1), s(sT0)))
        base(sB1, sWS, s(sT1))

    a.c("LayerNorm of x, rounded to bf16 where the reference rounds")
    vXu = V(8, 4)
    vXk = V(8, 4)
    if LN0:
        a("    v_add_u32 %s, %s, %s" % (v(vXSo), s(sB0), v(vXSo)))
        a("    s_cmp_lg_u32 %s, 0" % s(sW))
        a("    s_cbranch_scc1 L_NOLN")
    def qoff():
        a("    v_lshlrev_b32 %s, 4, %s" % (v(vQo), v(vJ)))
        a("    v_mul_u32_u24 %s, %d, %s" % (v(vG0), ST1, v(vG)))
        a("    v_add_u32 %s, %s, %s" % (v(vQo), v(vG0), v(vQo)))
    if opt.get("lq", 0):
        qoff()
        a("    v_mov_b32 %s, %s" % (v(vXu), "0x3b003b00" if opt["lq"] == 2 else "0x3f803f80"))
        if opt["lq"] == 2:
            a("    v_mov_b32 %s, 0x3727c5ac" % v(vXu + 1))
        s1bases()
    LNL = opt.get("lnl", 0)

    def k12():
        if not opt.get("k1p", 0):
            waitfor("wq0")
            for i in range(WIN0, WIN + 1):
                sload(i)
        waitfor("wq1")
        if not opt.get("k2p", 0):
            sload(WIN + 1)
    if ST0:
        a("    s_cmp_lg_u32 %s, 0" % s(sW))
        a("    s_cbranch_scc1 L_GETST")
    if LNL == 1:
        k12()
    else:
        waitfor("xs")
    stamp(1)
    LQ2 = opt.get("lq", 0)
    if LQ2:
        for i in range(4):
            a("    v_dot2_f32_bf16 %s, %s, %s, %s" % (v(vT + 1), v(vXf + i), v(vXf + i), "0" if i == 0 else v(vT + 1)))
            a("    v_dot2_f32_bf16 %s, %s, %s, %s" % (v(vT), v(vXf + i), v(vXu), "0" if i == 0 else v(vT)))
    else:
        for i in range(4):
            a("    v_lshlrev_b32 %s, 16, %s" % (v(vXu + 2 * i), v(vXf + i)))
            a("    v_and_b32 %s, 0xffff0000, %s" % (v(vXu + 2 * i + 1), v(vXf + i)))
        for i in range(4):
            a("    v_add_f32 %s, %s, %s" % (v(vT + i), v(vXu + 2 * i), v(vXu + 2 * i + 1)))
        a("    v_add_f32 %s, %s, %s" % (v(vT), v(vT), v(vT + 1)))
        a("    v_add_f32 %s, %s, %s" % (v(vT + 2), v(vT + 2), v(vT + 3)))
        a("    v_add_f32 %s, %s, %s" % (v(vT), v(vT), v(vT + 2)))
    if opt.get("ln1p", 0):
        if not LQ2:
            a("    v_mul_f32 %s, %s, %s" % (v(vT + 1), v(vXu), v(vXu)))
            a("    v_mul_f32 %s, %s, %s" % (v(vT + 2), v(vXu + 1), v(vXu + 1)))
            for i in range(2, 8):
                a("    v_fmac_f32 %s, %s, %s" % (v(vT + 1 + (i & 1)), v(vXu + i), v(vXu + i)))
            a("    v_add_f32 %s, %s, %s" % (v(vT + 1), v(vT + 1), v(vT + 2)))
        for sh in (1, 2, 4, 8):
            for r in range(2):
                a("    v_add_f32_dpp %s, %s, %s row_ror:%d %s" % (v(vT + r), v(vT + r), v(vT + r), sh, DPP))
        for pat in ("row_bcast:15 row_mask:0xa", "row_bcast:31 row_mask:0xc"):
            for r in range(2):
                a("    v_add_f32_dpp %s, %s, %s %s bank_mask:0xf" % (v(vT + r), v(vT + r), v(vT + r), pat))
        if LQ2 != 2:
            a("    v_mul_f32 %s, 0x3b000000, %s" % (v(vT), v(vT)))
        a("    v_mul_f32 %s, 0x3b000000, %s" % (v(vT + 1), v(vT + 1)))
        a("    v_fma_f32 %s, -%s, %s, %s" % (v(vT + 1), v(vT), v(vT), v(vT + 1)))
        a("    v_max_f32 %s, 0, %s" % (v(vT + 1), v(vT + 1)))
        if LQ2 == 2:
            a("    v_cvt_pk_bf16_f32 %s, %s, %s" % (v(vT), v(vT + 1), v(vT)))
            a("    v_lshlrev_b32 %s, 16, %s" % (v(vT + 4), v(vXs)))
            a("    v_readlane_b32 %s, %s, 63" % (s(sMean), v(vT)))
            a("    v_and_b32 %s, 0xffff0000, %s" % (v(vT + 5), v(vXs)))
            a("    s_lshl_b32 %s, %s, 16" % (s(sVar), s(sMean)))
            a("    s_and_b32 %s, %s, 0xffff0000" % (s(sMean), s(sMean)))
            a("    v_add_f32 %s, %s, %s" % (v(vT), s(sVar), v(vXu + 1)))
            a("    v_pk_add_f32 %s, %s, %s op_sel_hi:[1,0] neg_lo:[0,1] neg_hi:[0,1]" % (v(vT + 4, 2), v(vT + 4, 2), s(sMean, 2)))
            bf16r(vT, vT)
            a("    v_sqrt_f32 %s, %s" % (v(vT), v(vT)))
            a("    v_cvt_pk_bf16_f32 %s, %s, %s" % (v(vT + 5), v(vT + 4), v(vT + 5)))
            bf16r(vT, vT)
            a("    v_rcp_f32 %s, %s" % (v(vT + 2), v(vT)))
            if ST0:
                a("    v_mov_b32 %s, %s" % (v(vT + 1), s(sMean)))
                a("    v_mov_b32 %s, 1" % v(vT + 3))
                setexec(1, 0)
                a("    ds_write_b128 %s, %s" % (v(vSS), v(vT, 4)))
                setexec(0xFFFFFFFF, 0xFFFFFFFF)
                a("    s_branch L_HAVEST")
                a("L_GETST:")
                a("    s_mov_b32 %s, 0" % s(sSpin))
                a("L_STL:")
                a("    ds_read_b128 %s, %s" % (v(vT, 4), v(vSS)))
                a("    s_add_u32 %s, %s, 1" % (s(sSpin), s(sSpin)))
                a("    s_cmp_ge_u32 %s, 0x%x" % (s(sSpin), SPIN_LIMIT))
                a("    s_waitcnt lgkmcnt(0)")
                a("    s_cbranch_scc1 L_STD")
                a("    v_cmp_eq_u32 vcc, 0, %s" % v(vT + 3))
                a("    s_cbranch_vccnz L_STL")
                a("L_STD:")
                waitfor("xs")
                a("    v_lshlrev_b32 %s, 16, %s" % (v(vT + 4), v(vXs)))
                a("    v_and_b32 %s, 0xffff0000, %s" % (v(vT + 5), v(vXs)))
                a("    v_pk_add_f32 %s, %s, %s op_sel:[0,1] op_sel_hi:[1,1] neg_lo:[0,1] neg_hi:[0,1]" % (v(vT + 4, 2), v(vT + 4, 2), v(vT, 2)))
                a("    v_cvt_pk_bf16_f32 %s, %s, %s" % (v(vT + 5), v(vT + 4), v(vT + 5)))
                a("L_HAVEST:")
        else:
            a("    v_readlane_b32 %s, %s, 63" % (s(sMean), v(vT)))
            a("    v_readlane_b32 %s, %s, 63" % (s(sVar), v(vT + 1)))
    else:
        a("    v_mul_f32 %s, 0x3b000000, %s" % (v(vT), v(vT)))
        wavesum_to_sgpr(vT, sMean)
        if LNL == 2:
            k12()
        for i in range(8):
            a("    v_subrev_f32 %s, %s, %s" % (v(vXk + i), s(sMean), v(vXu + i)))
        a("    v_mul_f32 %s, %s, %s" % (v(vT), v(vXk), v(vXk)))
        a("    v_mul_f32 %s, %s, %s" % (v(vT + 1), v(vXk + 1), v(vXk + 1)))
        for i in range(2, 8):
            a("    v_fmac_f32 %s, %s, %s" % (v(vT + (i & 1)), v(vXk + i), v(vXk + i)))
        a("    v_add_f32 %s, %s, %s" % (v(vT), v(vT), v(vT + 1)))
        a("    v_mul_f32 %s, 0x3b000000, %s" % (v(vT), v(vT)))
        wavesum_to_sgpr(vT, sVar)
    if LQ2 != 2:
        a("    v_mov_b32 %s, %s" % (v(vT + 1), s(sMean)))
        bf16r(vT + 1, vT + 1)
        a("    v_mov_b32 %s, %s" % (v(vT), s(sVar)))
        bf16r(vT, vT)
        a("    v_add_f32 %s, 0x3727c5ac, %s" % (v(vT), v(vT)))
        bf16r(vT, vT)
        a("    v_sqrt_f32 %s, %s" % (v(vT), v(vT)))
        bf16r(vT, vT)
        a("    v_rcp_f32 %s, %s" % (v(vT + 2), v(vT)))
    vA = V(8, 4)
    if LN0:
        for i in range(0, 8, 2):
            a("    v_pk_add_f32 %s, %s, %s op_sel:[0,1] op_sel_hi:[1,1] neg_lo:[0,1] neg_hi:[0,1]" % (v(vXu + i, 2), v(vXu + i, 2), v(vT, 2)))
        for i in range(4):
            a("    v_cvt_pk_bf16_f32 %s, %s, %s" % (v(vXf + i), v(vXu + 2 * i), v(vXu + 2 * i + 1)))
        for i in range(4):
            a("    v_lshlrev_b32 %s, 16, %s" % (v(vXu + 2 * i), v(vXf + i)))
            a("    v_and_b32 %s, 0xffff0000, %s" % (v(vXu + 2 * i + 1), v(vXf + i)))
        for i in range(0, 8, 2):
            a("    v_pk_mul_f32 %s, %s, %s op_sel_hi:[1,0]" % (v(vXk + i, 2), v(vXu + i, 2), v(vT + 2, 2)))
        for i in range(0, 8, 2):
            a("    v_pk_fma_f32 %s, %s, %s, %s op_sel_hi:[1,0,1] neg_lo:[1,0,0] neg_hi:[1,0,0]" %
              (v(vXu + i, 2), v(vXk + i, 2), v(vT, 2), v(vXu + i, 2)))
        for i in range(0, 8, 2):
            a("    v_pk_fma_f32 %s, %s, %s, %s op_sel_hi:[1,0,1]" % (v(vXk + i, 2), v(vXu + i, 2), v(vT + 2, 2), v(vXk + i, 2)))
        for i in range(4):
            a("    v_cvt_pk_bf16_f32 %s, %s, %s" % (v(vXf + i), v(vXk + 2 * i), v(vXk + 2 * i + 1)))
        a("    v_add_u32 %s, 0x%x, %s" % (v(vT), LH, v(vXo)))
        a("    ds_write_b128 %s, %s" % (v(vT), v(vXf, 4)))
        a("    s_waitcnt lgkmcnt(0)")
        a("    s_load_dword %s, %s, 0x%x" % (s(sE), s(sWS, 2), EPOCH))
        a("L_NOLN:")
        a("    s_barrier")
        a("    ds_read_b32 %s, %s" % (v(vXs), v(vXSo)))
        a("    s_mov_b32 %s, 0x01000100" % s(sT0))
        a("    s_mov_b32 %s, 0x03020302" % s(sT1))

        def xoperand():
            a("    s_waitcnt lgkmcnt(0)")
            for i in range(2):
                a("    v_perm_b32 %s, %s, %s, %s" % (v(vT + 5 + i), v(vXs), v(vXs), s(sT0 + i)))
            for i in range(2):
                for r in range(4):
                    a("    v_and_b32 %s, %s, %s" % (v(vA + 4 * i + r), v(vT + 5 + i), v(vM + r)))
        if LN0 == 1:
            xoperand()
    elif LQ2:
        if LQ2 != 2:
            a("    v_lshlrev_b32 %s, 16, %s" % (v(vT + 4), v(vXs)))
            a("    v_and_b32 %s, 0xffff0000, %s" % (v(vT + 5), v(vXs)))
            a("    v_pk_add_f32 %s, %s, %s op_sel:[0,1] op_sel_hi:[1,1] neg_lo:[0,1] neg_hi:[0,1]" % (v(vT + 4, 2), v(vT + 4, 2), v(vT, 2)))
            a("    v_cvt_pk_bf16_f32 %s, %s, %s" % (v(vT + 5), v(vT + 4), v(vT + 5)))
        a("    v_lshlrev_b32 %s, 16, %s" % (v(vT + 4), v(vT + 5)))
        a("    v_and_b32 %s, 0xffff0000, %s" % (v(vT + 5), v(vT + 5)))
        a("    v_pk_mul_f32 %s, %s, %s op_sel_hi:[1,0]" % (v(vT + 6, 2), v(vT + 4, 2), v(vT + 2, 2)))
        a("    v_pk_fma_f32 %s, %s, %s, %s op_sel_hi:[1,0,1] neg_lo:[1,0,0] neg_hi:[1,0,0]" % (v(vT + 4, 2), v(vT + 6, 2), v(vT, 2), v(vT + 4, 2)))
        a("    v_pk_fma_f32 %s, %s, %s, %s op_sel_hi:[1,0,1]" % (v(vT + 6, 2), v(vT + 4, 2), v(vT + 2, 2), v(vT + 6, 2)))
        for i in range(2):
            a("    v_cvt_pk_bf16_f32 %s, %s, %s" % (v(vT + 6 + i), v(vT + 6 + i), v(vT + 6 + i)))
        for i in range(2):
            for r in range(4):
                a("    v_and_b32 %s, %s, %s" % (v(vA + 4 * i + r), v(vT + 6 + i), v(vM + r)))
    else:
        a("    v_lshlrev_b32 %s, 16, %s" % (v(vT + 3), v(vXs)))
        a("    v_and_b32 %s, 0xffff0000, %s" % (v(vT + 4), v(vXs)))
        a("    v_sub_f32 %s, %s, %s" % (v(vT + 3), v(vT + 3), v(vT + 1)))
        a("    v_sub_f32 %s, %s, %s" % (v(vT + 4), v(vT + 4), v(vT + 1)))
        bf16r(vT + 3, vT + 3)
        bf16r(vT + 4, vT + 4)
        for i in range(2):
            y, q = vT + 3 + i, vT + 5 + i
            a("    v_mul_f32 %s, %s, %s" % (v(q), v(y), v(vT + 2)))
            a("    v_fma_f32 %s, -%s, %s, %s" % (v(y), v(q), v(vT), v(y)))
            a("    v_fmac_f32 %s, %s, %s" % (v(q), v(y), v(vT + 2)))
            a("    v_cvt_pk_bf16_f32 %s, %s, %s" % (v(q), v(q), v(q)))
            for r in range(4):
                a("    v_and_b32 %s, %s, %s" % (v(vA + 4 * i + r), v(q), v(vM + r)))
    if not LQ2:
        qoff()

    def tags():
        a("    s_add_u32 %s, %s, 1" % (s(sT32), s(sE)))
        a("    s_and_b32 %s, %s, 0xff" % (s(sTag8), s(sT32)))
        a("    s_and_b32 %s, %s, 0x3ff" % (s(sTag10), s(sT32)))
        a("    v_mov_b32 %s, %s" % (v(vTag8), s(sTag8)))
        a("    v_mov_b32 %s, %s" % (v(vTag10), s(sTag10)))
    if not E0:
        a("    s_waitcnt lgkmcnt(0)")
        tags()
    a.c("q partial: one-hot A operand turns the row-major weight registers into a GEMV")
    def eblock():
        if E0:
            a("    s_cmp_lg_u32 %s, 0" % s(sW))
            a("    s_cbranch_scc1 L_NOE2")
            a("    s_waitcnt lgkmcnt(0)")
            tags()
            a("    v_mov_b32 %s, 0x%x" % (v(vT), LEP))
            a("    v_mov_b32 %s, %s" % (v(vT + 1), s(sE)))
            a("    ds_write_b32 %s, %s" % (v(vT), v(vT + 1)))
            if opt.get("la", 0):
                a("    v_mov_b32 %s, 0" % v(vT + 4))
                a("    v_mov_b32 %s, 0" % v(vT + 5))
                a("    v_lshlrev_b32 %s, 3, v0" % v(vT + 6))
                a("    v_add_u32 %s, 0x%x, %s" % (v(vT + 6), LGP, v(vT + 6)))
                a("    ds_write_b64 %s, %s" % (v(vT + 6), v(vT + 4, 2)))
            if opt.get("pg", 0):
                a("    v_mov_b32 %s, 0" % v(vT + 4))
                a("    ds_write_b32 %s, %s offset:%d" % (v(vT), v(vT + 4), LRM - LEP))
            if opt.get("amx", 1):
                a("    v_lshlrev_b32 %s, 2, v0" % v(vT + 2))
                a("    v_mov_b32 %s, 0xff800000" % v(vT + 3))
                a("    v_and_b32 %s, 0x7c, %s" % (v(vT + 2), v(vT + 2)))
                a("    v_add_u32 %s, 0x%x, %s" % (v(vT + 2), LMX, v(vT + 2)))
                a("    ds_write_b32 %s, %s" % (v(vT + 2), v(vT + 3)))
            a("L_NOE2:")
    if opt.get("eb2", 0) == 2:
        eblock()
    if not LNL:
        k12()
    if opt.get("k3p", 0) == 3:
        sload(5)
    if LN0 == 3:
        xoperand()
    stamp(2)
    a("    v_mfma_f32_16x16x32_bf16 %s, %s, %s, 0" % (v(vD, 4), v(vA, 4), v(vW, 4)))
    a("    v_mfma_f32_16x16x32_bf16 %s, %s, %s, %s" % (v(vD, 4), v(vA + 4, 4), v(vW + 4, 4), v(vD, 4)))
    if opt.get("k1p", 0) == 2:
        sload(3)
    if opt.get("k2p", 0) == 3:
        sload(4)

    def red_publish(nrows, tagv, mask, rnd, basepair, label, mid=None):
        a("    s_waitcnt lgkmcnt(0)")
        a("    s_barrier")
        a("    s_cmp_lg_u32 %s, 0" % s(sW))
        a("    s_cbranch_scc1 %s" % label)
        m = V.mark()
        r = V(16, 4)
        n = nrows // 4
        for i in range(n):
            a("    ds_read_b128 %s, %s offset:%d" % (v(r + 4 * i, 4), v(vRedR if n == 4 else vRedR8), 272 * i))
        if mid:
            mid()
        a("    s_waitcnt lgkmcnt(%d)" % (0 if prof else n - 2))
        a("    v_pk_add_f32 %s, %s, %s" % (v(r, 2), v(r, 2), v(r + 4, 2)))
        a("    v_pk_add_f32 %s, %s, %s" % (v(r + 2, 2), v(r + 2, 2), v(r + 6, 2)))
        if n == 4:
            a("    s_waitcnt lgkmcnt(0)")
            a("    v_pk_add_f32 %s, %s, %s" % (v(r + 8, 2), v(r + 8, 2), v(r + 12, 2)))
            a("    v_pk_add_f32 %s, %s, %s" % (v(r + 10, 2), v(r + 10, 2), v(r + 14, 2)))
            a("    v_pk_add_f32 %s, %s, %s" % (v(r, 2), v(r, 2), v(r + 8, 2)))
            a("    v_pk_add_f32 %s, %s, %s" % (v(r + 2, 2), v(r + 2, 2), v(r + 10, 2)))
        for sh in (4, 8):
            for i in range(4):
                a("    v_add_f32_dpp %s, %s, %s row_ror:%d %s" % (v(r + i), v(r + i), v(r + i), sh, DPP))
        for i in range(4):
            if rnd:
                a("    v_add_u32 %s, 0x%x, %s" % (v(r + i), rnd, v(r + i)))
        setexec(0x000F000F, 0x000F000F)
        for i in range(4):
            a("    v_and_or_b32 %s, %s, %s, %s" % (v(r + i), v(r + i), s(mask), v(tagv)))
        a("    global_store_dwordx4 %s, %s, %s%s" % (v(vC4), v(r, 4), s(basepair, 2), "" if (nrows == 16 and opt.get("xs", 0) & 4) else " sc1"))
        setexec(0xFFFFFFFF, 0xFFFFFFFF)
        V.release(m)

    if not opt.get("lq", 0):
        s1bases()
    V.release(mk)
    EB2 = opt.get("eb2", 0)
    if not EB2:
        eblock()
    setexec(0x00FF00FF, 0xFF00FF00)
    a("    ds_write_b128 %s, %s" % (v(vRedW), v(vD, 4)))
    setexec(0xFFFFFFFF, 0xFFFFFFFF)
    if opt.get("k1p", 0) == 1:
        sload(3)
    if opt.get("k2p", 0) == 1:
        sload(4)
    if EB2 == 1:
        eblock()
    if opt.get("k3p", 0) == 1:
        waitfor("K0")
        sload(5)
    if opt.get("k3p", 0) == 2:
        sload(5)
    vQ = V(4, 4)
    vQ2 = V(4, 4)
    QP1 = opt.get("qp1", 0)
    K3F = opt.get("k3f", 0)

    def k3first():
        waitfor("K0")
        sload(5)
    a.c("cross-wave sum, wave 0 publishes 64 tagged q partials; K / V keep streaming, three pieces in flight per wave")
    keep0 = list(vm)
    red_publish(16, vTag8, sM8, 0 if opt.get("nornd") else 0x80, sB0, "L_QPUB", mid=k3first if K3F else None)

    def qload():
        a("    global_load_dwordx4 %s, %s, %s sc1" % (v(vQ, 4), v(vQo), s(sB1, 2)))

    extra = {}
    CW = opt.get("cw", 0)
    C3 = opt.get("c3", 0)

    def run_sched(text):
        for tok in text.split():
            if tok[0] == "|":
                waitfor(tok[1:])
            elif tok == "q":
                qload()
                vm.append("q")
            elif tok in stream:
                sload(stream.index(tok))
            else:
                extra[tok]()
                if len(tok) > 1:
                    vm.append(tok)

    def paced(gete=False):
        stamp(3)
        assert WIN == 3
        if "K2" not in vm:
            run_sched("K2")
        if "K3" not in vm:
            run_sched(["|K0 K3", "|K0 K3 V0", "K3 |K0 V0", "|K1 K3", "|K0 K3"][CW])
        if gete:
            a("    s_waitcnt lgkmcnt(0)")
            a("    v_readfirstlane_b32 %s, %s" % (s(sE), v(vT + 7)))
            a("    s_nop 0")
            tags()
        if PFL:
            codepf("a" if gete else "b")
        attn_addresses()
        run_sched(["|K1 V0", "|K1 V1", "|K1 V1", "|K2 V0", "|K2 V0"][CW])
        if C3:
            run_sched("|K2 V1")
    keep = keep0
    vm.append("qstore")
    DQ = opt.get("dq", 0)
    sQF = 88
    if DQ:
        a("    s_and_b32 %s, %s, 7" % (s(sT0), s(sJ)))
        a("    s_lshl3_add_u32 %s, %s, %s" % (s(sT0), s(sH), s(sT0)))
        a("    s_lshl_b32 %s, %s, 5" % (s(sT0), s(sT0)))
        a("    s_lshr_b32 %s, %s, 3" % (s(sT1), s(sJ)))
        a("    s_add_u32 %s, %s, %s" % (s(sT0), s(sT0), s(sT1)))
        a("    s_lshl_b32 %s, %s, 2" % (s(sT0), s(sT0)))
        a("    s_add_u32 %s, %s, 0x%x" % (s(sT0), s(sT0), SQF))
        setexec(1, 0)
        a("    v_mov_b32 %s, %s" % (v(vT), s(sT0)))
        a("    v_mov_b32 %s, %s" % (v(vT + 1), s(sT32)))
        a("    global_store_dword %s, %s, %s sc1" % (v(vT), v(vT + 1), s(sWS, 2)))
        setexec(0xFFFFFFFF, 0xFFFFFFFF)
        vm.append("qflag")
    paced()
    a("    s_branch L_PACED")
    a("L_QPUB:")
    vm[:] = keep
    if E0:
        a("    v_mov_b32 %s, 0x%x" % (v(vT + 7), LEP))
        a("    ds_read_b32 %s, %s" % (v(vT + 7), v(vT + 7)))
    paced(E0)
    a("L_PACED:")
    if opt.get("pdrop", 0) == 1:
        a("    s_setprio 0")
    if DQ:
        a("    s_lshl3_add_u32 %s, %s, %s" % (s(sT0), s(sH), s(sW)))
        a("    s_lshl_b32 %s, %s, 7" % (s(sT0), s(sT0)))
        a("    s_add_u32 %s, %s, 0x%x" % (s(sT0), s(sT0), SQF))
        a("    s_load_dwordx4 %s, %s, %s glc" % (s(sQF, 4), s(sWS, 2), s(sT0)))
        a("    s_mov_b32 %s, %s" % (s(sRep), s(sT32)))
        a("    s_mov_b32 %s, %s" % (s(sRep + 1), s(sT32)))
    common = list(vm)
    SCHED = {
        "s": ["|K2 V1 |K3 V2 q |V0 V3"],
        "w": ["|K2 V1 |K3 V2 q |V0 V3 A |V1 T0 B",
              "|K2 V1 |K3 V2 q |V0 V3 A T0 |V1 T1 B",
              "|K2 V1 |K3 V2 q V3 A |V0 T0 |V1 T1 B",
              "|K2 V1 |K3 V2 q V3 A |V0 T0 |V1 T1 T2 B",
              "|K2 V1 |K3 V2 q |V0 V3 A B",
              "|K2 V1 V2 |K3 V3 q A |V0 T0 |V1 T1 B |V2 T2",
              "|K2 V1 |K3 V2 q |V0 V3 A T0 |V1 T1",
              "|K2 V1 |K3 V2 q |V0 V3 A |V1 T0"],
        "f": ["|K2 V1 |K3 V2 q |V0 V3 A",
              "|K2 V1 |K3 V2 q |V0 V3 A |V1 D0 D1",
              "|K2 V1 |K3 V2 q |V0 V3 A D0 |V1 D1",
              "|K2 V1 |K3 V2 q |V0 V3 A |V1 D0",
              "|K2 V1 |K3 V2 q |V0 V3 A |V1 Qa"],
    }
    if C3:
        SCHED = {k_: [x_.replace("|K2 V1 ", "", 1) for x_ in v_] for k_, v_ in SCHED.items()}
    if opt.get("qe", 0) == 1:
        SCHED = {k_: [x_.replace("|K3 V2 q ", "q |K3 V2 ", 1) for x_ in v_] for k_, v_ in SCHED.items()}
    if opt.get("qe", 0) == 2:
        SCHED = {k_: [x_.replace("|K3 V2 q ", "|K3 q V2 ", 1) for x_ in v_] for k_, v_ in SCHED.items()}
    if opt.get("pt", 0):
        def pretouch():
            setexec(0xFFFF, 0)
            a("    global_load_dwordx4 %s, %s, %s%s" % (v(vQ2, 4), v(vAo), s(sBo, 2), ["", "", " nt"][opt["pt"]]))
            setexec(0xFFFFFFFF, 0xFFFFFFFF)
        extra["PT"] = pretouch
        SCHED = {k_: [x_.replace("|V0 V3", "|V0 V3 PT") for x_ in v_] for k_, v_ in SCHED.items()}
    QV = opt.get("qv", 0)
    if QV:
        old_, new_ = "|K2 V1 |K3 V2 q |V0 V3", ["", "|K2 V1 |K3 q V2 |V0 V3", "|K2 V1 |K3 V2 |V0 q V3", "|K2 V1 |K3 V2 |V0 V3 q",
                                                 "|K2 V1 |K3 q V2 V3", "|K3 q V1 V2 V3", "|K2 V1 |K3 q V2 V3 |V0"][QV]
        SCHED = {k_: [x_.replace(old_, new_) for x_ in v_] for k_, v_ in SCHED.items()}
    if CW >= 3:
        hd = ["|K3 q V1 V2 |V0 V3", "|K3 V1 q V2 |V0 V3", "|K3 V1 q |V0 V2 V3", "|K3 V1 V2 q |V0 V3"][opt.get("cv", 0)]
        SCHED = {k_: [x_.replace("|K2 V1 |K3 V2 q |V0 V3", hd) for x_ in v_] for k_, v_ in SCHED.items()}
    elif CW:
        SCHED = {
            "s": ["|K2 V2 |K3 V3 q"],
            "w": ["|K2 V2 |K3 V3 q A |V0 T0 |V1 T1 B |V2 T2",
                  "|K2 V2 |K3 V3 q A |V0 T0 |V1 T1 B |V2 T2 |V3 T3",
                  "|K2 V2 |K3 V3 q A |V1 T0 B |V2 T1",
                  "|K2 V2 |K3 V3 A |V0 q T0 |V1 T1 B |V2 T2"],
            "f": ["|K2 V2 |K3 V3 q A", "|K2 V2 |K3 V3 q A |V0 D0 |V1 D1", "|K2 V2 |K3 V3 A |V0 q D0 |V1 D1"],
        }
        if opt.get("ss"):
            SCHED["s"] = ["|K2 V2 |K3 V3 |V0 q"]
    a.c("roles after the attention part: j < 16 output projection, 112 workgroups FFN, 16 workgroups attention only")
    a("    s_cmp_lt_u32 %s, 16" % s(sJ))
    a("    s_cbranch_scc1 L_ROLE_WO")
    a("    s_cmp_lt_u32 %s, 4" % s(sH))
    a("    s_cbranch_scc1 L_ROLE_FFN")
    a("    s_cmp_lt_u32 %s, 28" % s(sJ))
    a("    s_cbranch_scc1 L_ROLE_FFN")

    def attention(sched, t0=(), t1=(), w0extra=None):
        m0 = V.mark()
        vKa = V(16, 4)
        vQb = V(16, 4)
        vPb = vQb
        vVa = vKa
        vS = V(4, 4)
        vMx, vMl = V(), V(4, 4)
        def kreads():
            for i in range(4):
                a("    ds_read_b128 %s, %s" % (v(vKa + 4 * i, 4), v(vAk + i)))

        vm[:] = common
        if DQ:
            uid[0] += 1
            ud = uid[0]
            head = "|K2 V1 "
            assert sched.startswith(head + "|K3 V2 q |V0 V3")
            run_sched(head)
            if DQ == 2:
                a("    s_getreg_b32 %s, hwreg(HW_REG_IB_STS, 8, 4)" % s(sT0))
                a("    s_cmp_lg_u32 %s, 0" % s(sT0))
                a("    s_cbranch_scc1 L_QLATE%d" % ud)
            a("    s_waitcnt lgkmcnt(0)")
            a("    s_xor_b64 %s, %s, %s" % (s(sQF, 2), s(sQF, 2), s(sRep, 2)))
            a("    s_xor_b64 %s, %s, %s" % (s(sQF + 2, 2), s(sQF + 2, 2), s(sRep, 2)))
            a("    s_or_b64 %s, %s, %s" % (s(sQF, 2), s(sQF, 2), s(sQF + 2, 2)))
            a("    s_cbranch_scc1 L_QLATE%d" % ud)
            mid = list(vm)
            rest_ = sched[len(head + "|K3 V2 q |V0 V3"):]
            run_sched("q |K3 V2 |V0 V3 " + " ".join(t for t in rest_.split() if t[0] != "|"))
            kreads()
            waitfor("q")
            early = [t for t in vm if t != "q"]
            a("    s_branch L_QJOIN%d" % ud)
            a("L_QLATE%d:" % ud)
            vm[:] = mid
            run_sched(sched[len(head):])
            kreads()
            waitfor("q")
            assert early == [t for t in vm if t != "q"]
            a("L_QJOIN%d:" % ud)
            NVA = 63
        else:
            run_sched(sched)
            kreads()
            NVA = len(vm) - 1 - vm.index("q")
        ntail = len(vm) - 1 - vm.index("V3") + len(t0)
        tp = ()
        def qcheck():
            for k in range(4):
                a("    v_xor_b32 %s, %s, %s" % (v(vQ + k), s(sTag8), v(vQ + k)))
            a("    v_or3_b32 %s, %s, %s, %s" % (v(vT), v(vQ), v(vQ + 1), v(vQ + 2)))
            a("    v_or_b32 %s, %s, %s" % (v(vT), v(vT), v(vQ + 3)))
            a("    v_and_b32 %s, 0xff, %s" % (v(vT), v(vT)))
            a("    v_cmp_ne_u32 vcc, 0, %s" % v(vT))
        SB2 = opt.get("sb2", 0)

        def sflag(t=vT):
            setexec((1 << R2) - 1, 0)
            a("    v_lshlrev_b32 %s, %d, v0" % (v(t), RS2))
            a("    global_store_byte %s, %s, %s%s" % (v(t), v(vTag8), s(sBfl, 2), "" if opt.get("xs", 0) & 2 else " sc1"))
            setexec(0xFFFFFFFF, 0xFFFFFFFF)

        def w0flag():
            uid[0] += 1
            a("    s_cmp_lg_u32 %s, 0" % s(sW))
            a("    s_cbranch_scc1 L_NF%d" % uid[0])
            sflag(vG0)
            a("L_NF%d:" % uid[0])
        RDY = opt.get("rdy", 0)

        def rdyhint():
            uid[0] += 1
            a("    s_cmp_lg_u32 %s, 7" % s(sW))
            a("    s_cbranch_scc1 L_NORDY%d" % uid[0])
            setexec(1, 0)
            a("    v_mov_b32 %s, 0x%x" % (v(vG0), SRDY - S2ML))
            a("    v_mov_b32 %s, %s" % (v(vMx), s(sT32)))
            a("    global_store_dword %s, %s, %s sc1" % (v(vG0), v(vMx), s(sBml, 2)))
            setexec(0xFFFFFFFF, 0xFFFFFFFF)
            a("L_NORDY%d:" % uid[0])
        a.c("q: sum of the four row partials -> bf16 -> LDS; scores, chunk max, exp, P V")
        MB = opt.get("mb", 1)
        AMX = opt.get("amx", 1)
        if QP1:
            uid[0] += 1
            uq = uid[0]
            a("    s_waitcnt vmcnt(%d)" % (len(vm) - 1 - vm.index("q1") + len(tp)))
            qcheck()
            a("    s_cbranch_vccz L_QOK%d" % uq)
            a("    s_waitcnt vmcnt(%d)" % (NVA + len(tp)))
            for i in range(0, 4, 2):
                a("    v_mov_b64 %s, %s" % (v(vQ + i, 2), v(vQ2 + i, 2)))
            poll(qload, qcheck, NVA + len(tp), cnt=15 if opt.get("astamps") else None)
            a("L_QOK%d:" % uq)
        else:
            poll(qload, qcheck, NVA + len(tp), cnt=15 if opt.get("astamps") else None)
        stamp(4)
        treduce4(vQ)
        a("    v_cvt_pk_bf16_f32 %s, %s, %s" % (v(vQ), v(vQ), v(vQ)))
        a("    ds_write_b16 %s, %s" % (v(vAqw), v(vQ)))
        a("    s_waitcnt lgkmcnt(0)")
        a("    s_barrier")
        for i in range(4):
            a("    ds_read_b128 %s, %s offset:%d" % (v(vQb + 4 * i, 4), v(vAq), 64 * i))
        if SB2 == 7:
            w0flag()
        T0P = opt.get("t0p", 1)
        if T0P == 0:
            for f in t0:
                f()
        for i in range(4):
            a("    s_waitcnt lgkmcnt(%d)" % (0 if prof else 3 - i))
            a("    v_mfma_f32_16x16x32_bf16 %s, %s, %s, %s" %
              (v(vD, 4), v(vKa + 4 * i, 4), v(vQb + 4 * i, 4), "0" if i == 0 else v(vD, 4)))
        if T0P == 1:
            for f in t0:
                f()
        a("    v_cvt_pk_bf16_f32 %s, %s, %s" % (v(vT), v(vD), v(vD + 1)))
        a("    v_cvt_pk_bf16_f32 %s, %s, %s" % (v(vT + 1), v(vD + 2), v(vD + 3)))
        for rnd in range(2):
            for i in range(2):
                a("    v_lshlrev_b32 %s, 16, %s" % (v(vS + 2 * i), v(vT + i)))
                a("    v_and_b32 %s, 0xffff0000, %s" % (v(vS + 2 * i + 1), v(vT + i)))
            if rnd == 0:
                for i in (0, 2):
                    a("    v_pk_mul_f32 %s, %s, %s op_sel_hi:[1,0]" % (v(vS + i, 2), v(vS + i, 2), s(sScale, 2)))
                a("    v_cvt_pk_bf16_f32 %s, %s, %s" % (v(vT), v(vS), v(vS + 1)))
                a("    v_cvt_pk_bf16_f32 %s, %s, %s" % (v(vT + 1), v(vS + 2), v(vS + 3)))
        a("    v_max3_f32 %s, %s, %s, %s" % (v(vMx), v(vS), v(vS + 1), v(vS + 2)))
        a("    v_max_f32 %s, %s, %s" % (v(vMx), v(vMx), v(vS + 3)))
        if AMX:
            setexec(0x000F000F, 0x000F000F)
            a("    ds_max_f32 %s, %s" % (v(vAmr), v(vMx)))
        else:
            for sw in ("16", "32"):
                a("    v_mov_b32 %s, %s" % (v(vT), v(vMx)))
                a("    v_permlane%s_swap_b32 %s, %s" % (sw, v(vMx), v(vT)))
                a("    v_max_f32 %s, %s, %s" % (v(vMx), v(vMx), v(vT)))
            setexec(0xF, 0)
            a("    ds_write_b32 %s, %s" % (v(vAmw), v(vMx)))
        setexec(0xFFFFFFFF, 0xFFFFFFFF)
        if T0P == 2:
            for f in t0:
                f()
        VB3 = opt.get("vb3", 0)

        def vreads(t):
            for hh in range(2):
                a("    ds_read_b64_tr_b16 %s, %s offset:%d" % (v(vVa + 4 * t + 2 * hh, 2), v(vAv), 8192 * t + 4096 * hh))
        if VB3:
            assert MB
            a("    s_waitcnt vmcnt(%d) lgkmcnt(0)" % ntail)
            for f in t1:
                f()
        else:
            a("    s_waitcnt lgkmcnt(0)")
        if RDY == 1:
            rdyhint()
        a("    s_barrier")
        if AMX:
            a("    ds_read_b32 %s, %s" % (v(vMl), v(vAmr)))
            if RDY == 2:
                rdyhint()
            if VB3:
                for t in range(4):
                    vreads(t)
            a("    s_waitcnt lgkmcnt(%d)" % (8 if VB3 and not prof else 0))
        else:
            a("    ds_read_b128 %s, %s" % (v(vT, 4), v(vAmr)))
            a("    ds_read_b128 %s, %s offset:16" % (v(vT + 4, 4), v(vAmr)))
            if SB2 == 5:
                w0flag()
            if VB3:
                for t in range(4):
                    vreads(t)
            a("    s_waitcnt lgkmcnt(%d)" % (8 if VB3 and not prof else 0))
            a("    v_max3_f32 %s, %s, %s, %s" % (v(vT), v(vT), v(vT + 1), v(vT + 2)))
            a("    v_max3_f32 %s, %s, %s, %s" % (v(vT + 4), v(vT + 4), v(vT + 5), v(vT + 6)))
            a("    v_max3_f32 %s, %s, %s, %s" % (v(vT), v(vT), v(vT + 3), v(vT + 7)))
            a("    v_max_f32 %s, %s, %s" % (v(vMl), v(vT), v(vT + 4)))
        for i in (0, 2):
            a("    v_pk_add_f32 %s, %s, %s op_sel_hi:[1,0] neg_lo:[0,1] neg_hi:[0,1]" % (v(vS + i, 2), v(vS + i, 2), v(vMl, 2)))
        for i in (0, 2):
            a("    v_pk_mul_f32 %s, %s, %s op_sel:[0,1] op_sel_hi:[1,1]" % (v(vS + i, 2), v(vS + i, 2), s(sScale, 2)))
        for i in range(4):
            a("    v_exp_f32 %s, %s" % (v(vS + i), v(vS + i)))
        a("    v_cvt_pk_bf16_f32 %s, %s, %s" % (v(vT + 2), v(vS), v(vS + 1)))
        a("    v_cvt_pk_bf16_f32 %s, %s, %s" % (v(vT + 3), v(vS + 2), v(vS + 3)))
        setexec(0x000F000F, 0x000F000F)
        a("    ds_write_b64 %s, %s" % (v(vApw), v(vT + 2, 2)))
        a("    v_pk_add_f32 %s, %s, %s" % (v(vT, 2), v(vS, 2), v(vS + 2, 2)))
        a("    v_add_f32 %s, %s, %s" % (v(vT), v(vT), v(vT + 1)))
        a("    ds_write_b32 %s, %s" % (v(vAlw), v(vT)))
        setexec(0xFFFFFFFF, 0xFFFFFFFF)
        if SB2 == 6:
            w0flag()
        if MB and not VB3:
            a("    s_waitcnt vmcnt(%d) lgkmcnt(0)" % ntail)
            for f in t1:
                f()
        else:
            a("    s_waitcnt lgkmcnt(0)")
        a("    s_barrier")
        if opt.get("astamps"):
            stamp(13)
        if RDY == 3:
            rdyhint()
        uid[0] += 1
        u = uid[0]

        def preads():
            for i in range(4):
                a("    ds_read_b128 %s, %s offset:%d" % (v(vPb + 4 * i, 4), v(vApr), 64 * i))

        def mlpub():
            a("    v_add_f32 %s, %s, %s" % (v(vMl + 1), v(vT), v(vT + 1)))
            allred_hi(vMl + 1, vT, "add")
            setexec(0xF, 0)
            a("    global_store_dwordx4 %s, %s, %s%s" % (v(vAo), v(vMl, 4), s(sBml, 2), XS))
            setexec(0xFFFFFFFF, 0xFFFFFFFF)

        def pv(first):
            for t in range(4):
                a("    s_waitcnt lgkmcnt(%d)" % (0 if prof else first[t]))
                a("    v_mfma_f32_16x16x32_bf16 %s, %s, %s, %s" %
                  (v(vD, 4), v(vPb + 4 * t, 4), v(vVa + 4 * t, 4), "0" if t == 0 else v(vD, 4)))
        if MB:
            a("    ds_read_b64 %s, %s" % (v(vT, 2), v(vAlr)))
            for t in range(4):
                a("    ds_read_b128 %s, %s offset:%d" % (v(vPb + 4 * t, 4), v(vApr), 64 * t))
                if not VB3:
                    vreads(t)
            a("    v_mov_b32 %s, %s" % (v(vMl + 2), s(sT32)))
            a("    v_mov_b32 %s, %s" % (v(vMl + 3), s(sT32)))
            a("    s_cmp_lg_u32 %s, 0" % s(sW))
            a("    s_cbranch_scc1 L_NOML%d" % u)
            if SB2 in (1, 3):
                sflag(vT + 2)
            a("    s_waitcnt lgkmcnt(%d)" % (0 if prof else (4 if VB3 else 12)))
            mlpub()
            if SB2 in (2, 4):
                sflag(vT + 2)
            a("L_NOML%d:" % u)
            pv([3, 2, 1, 0] if VB3 else [9, 6, 3, 0])
        else:
            preads()
            a("    s_cmp_lg_u32 %s, 0" % s(sW))
            a("    s_cbranch_scc1 L_NOML%d" % u)
            a("    ds_read_b64 %s, %s" % (v(vT, 2), v(vAlr)))
            if SB2 == 3:
                sflag(vT + 2)
            if SB2 == 4:
                a("    s_waitcnt vmcnt(%d)" % ntail)
                sflag(vT + 2)
            a("    v_mov_b32 %s, %s" % (v(vMl + 2), s(sT32)))
            a("    v_mov_b32 %s, %s" % (v(vMl + 3), s(sT32)))
            a("    s_waitcnt lgkmcnt(0)")
            mlpub()
            nx = w0extra() if w0extra else 0
            if SB2 in (3, 4, 5, 6, 7):
                nx += 1
            if SB2 == 1:
                sflag()
                nx += 1
            a("    s_waitcnt vmcnt(%d)" % (1 + nx + ntail))
            if SB2 == 2:
                sflag()
            a("    s_branch L_MLD%d" % u)
            a("L_NOML%d:" % u)
            a("    s_waitcnt vmcnt(%d)" % ntail)
            a("L_MLD%d:" % u)
            if opt.get("astamps"):
                stamp(14)
            for f in t1:
                f()
            a("    s_barrier")
            stamp(5)
            for t in range(4):
                vreads(t)
            pv([6, 4, 2, 0])
        setexec(0xFFFF, 0)
        if OCLR:
            a("    v_min_u32 %s, -2, %s" % (v(vD), v(vD)))
        else:
            for i in range(4):
                a("    v_and_or_b32 %s, %s, %s, %s" % (v(vD + i), v(vD + i), s(sM10), v(vTag10)))
        a("    global_store_dwordx4 %s, %s, %s%s" % (v(vAo), v(vD, 4), s(sBo, 2), XS))
        setexec(0xFFFFFFFF, 0xFFFFFFFF)
        stamp(6)
        if opt.get("ackstamp") and not w0extra:
            a("    s_waitcnt vmcnt(0)")
            stamp(1)
        V.release(m0)

    attention(SCHED["s"][0])
    finish()

    a("L_ROLE_WO:")
    mrole = V.mark()
    sD0 = sU
    vWo = V(4)

    def wo_setup():
        if opt.get("dh", 0):
            a("    s_%s_b32 %s, %s, %d" % ("xor", s(sH), s(sH), opt["dh"]))
        a("    s_lshr_b32 %s, %s, 3" % (s(sT1), s(sJ)))
        a("    s_lshl_b32 %s, %s, 3" % (s(sT1), s(sT1)))
        a("    s_add_u32 %s, %s, %s" % (s(sT1), s(sT1), s(sW)))
        a("    s_lshl_b32 %s, %s, 3" % (s(sD0), s(sT1)))
        a("    s_lshl_b32 %s, %s, 9" % (s(sT0), s(sH)))
        a("    s_add_u32 %s, %s, %s" % (s(sT0), s(sT0), s(sD0)))
        a("    s_lshl_b32 %s, %s, 10" % (s(sT0), s(sT0)))
        a("    s_and_b32 %s, %s, 7" % (s(sT1), s(sJ)))
        a("    s_lshl_b32 %s, %s, 7" % (s(sT1), s(sT1)))
        a("    s_add_u32 %s, %s, %s" % (s(sT0), s(sT0), s(sT1)))
        base(sB4, sWO, s(sT0))
        a("    v_lshlrev_b32 %s, 4, %s" % (v(vWo), v(vL7)))
        a("    v_lshl_or_b32 %s, %s, 10, %s" % (v(vWo), v(vL3), v(vWo)))
        for i in (1, 2, 3):
            a("    v_add_u32 %s, 0x%x, %s" % (v(vWo + i), i * (131072 - 1024), v(vWo)))
        a("    s_lshl_b32 %s, %s, 12" % (s(sFI), s(sW)))
        a("    s_add_u32 %s, %s, 0x%x" % (s(sFI), s(sFI), LG))

    def woload(i):
        def f():
            if i == 0:
                a("    s_mov_b32 m0, %s" % s(sFI))
            a("    global_load_lds_dwordx4 %s, %s offset:%d nt" % (v(vWo + i), s(sB4, 2), 1024 * i))
        return f
    vOo = V(4)
    vAtr, vAw, vArw = [V() for _ in range(3)]
    vO = V(16, 4)
    vWt = V(16, 4)
    vML = V(8, 4)
    vDt = V(16, 4)

    def wo_addresses():
        a("    s_lshl_b32 %s, %s, 11" % (s(sT1), s(sH)))
        a("    s_add_u32 %s, %s, 0x%x" % (s(sT1), s(sT1), S2ML))
        base(sB0, sWS, s(sT1))
        a("    s_mul_i32 %s, %s, %d" % (s(sT1), s(sH), 32 * ST2))
        a("    s_lshl_b32 %s, %s, 4" % (s(sT0), s(sD0)))
        a("    s_add_u32 %s, %s, %s" % (s(sT1), s(sT1), s(sT0)))
        a("    s_add_u32 %s, %s, 0x%x" % (s(sT1), s(sT1), S2O))
        base(sB5, sWS, s(sT1))
        a("    v_lshlrev_b32 %s, 4, %s" % (v(vT), v(vL7)))
        a("    v_mul_u32_u24 %s, %d, %s" % (v(vOo), ST2, v(vL3)))
        a("    v_add_u32 %s, %s, %s" % (v(vOo), v(vOo), v(vT)))
        for i in (1, 2, 3):
            a("    v_add_u32 %s, 0x%x, %s" % (v(vOo + i), 8 * ST2 * i, v(vOo)))
        a("    s_lshr_b32 %s, %s, 3" % (s(sT1), s(sJ)))
        a("    s_lshl1_add_u32 %s, %s, %s" % (s(sT0), s(sH), s(sT1)))
        a("    s_mul_i32 %s, %s, %d" % (s(sT0), s(sT0), ST3))
        a("    s_and_b32 %s, %s, 7" % (s(sT1), s(sJ)))
        a("    s_lshl_b32 %s, %s, 8" % (s(sT1), s(sT1)))
        a("    s_add_u32 %s, %s, %s" % (s(sT0), s(sT0), s(sT1)))
        a("    s_add_u32 %s, %s, 0x%x" % (s(sT0), s(sT0), S3))
        base(sB2, sWS, s(sT0))
        a("    v_lshrrev_b32 %s, 2, %s" % (v(vT), v(vJ)))
        a("    v_lshl_add_u32 %s, %s, 3, %s" % (v(vT), v(vG), v(vT)))
        a("    v_lshlrev_b32 %s, 7, %s" % (v(vT), v(vT)))
        a("    v_and_b32 %s, 3, v0" % v(vT + 1))
        a("    v_lshl_add_u32 %s, %s, 3, %s" % (v(vT), v(vT + 1), v(vT)))
        a("    v_add_u32 %s, %s, %s" % (v(vAtr), s(sFI), v(vT)))
        a("    v_lshlrev_b32 %s, 4, %s" % (v(vT), v(vL3)))
        a("    v_add_u32 %s, 0x%x, %s" % (v(vAw), LWT, v(vT)))
        a("    s_mul_i32 %s, %s, 272" % (s(sT0), s(sW)))
        a("    s_add_u32 %s, %s, 0x%x" % (s(sT0), s(sT0), LRED))
        a("    v_lshl_add_u32 %s, %s, 4, %s" % (v(vArw), v(vG), s(sT0)))
        per = 8 // P3
        a("    s_and_b32 %s, %s, %d" % (s(sT0), s(sH), per - 1))
        a("    s_lshl_b32 %s, %s, 2" % (s(sT0), s(sT0)))
        a("    s_lshr_b32 %s, %s, %d" % (s(sT1), s(sH), per.bit_length() - 1))
        a("    s_lshl_b32 %s, %s, 7" % (s(sT1), s(sT1)))
        a("    s_add_u32 %s, %s, %s" % (s(sT0), s(sT0), s(sT1)))
        a("    s_add_u32 %s, %s, 0x%x" % (s(sInb), s(sT0), SBELL))
        if opt.get("hn", 1) == 4:
            a("    s_lshr_b32 %s, %s, 2" % (s(sT0), s(sJ)))
            a("    s_add_u32 %s, %s, %s" % (s(sInb), s(sInb), s(sT0)))
    def bell():
        for i in range(2):
            a("    global_load_dwordx3 %s, %s, %s offset:%d%s" % (v(vML + 4 * i, 3), v(vAo), s(sB0, 2), 1024 * i, " nt" if opt.get("xl", 0) else " sc1"))

    def bellcheck():
        tagcheck([vML + 2, vML + 6], sT32, vT)
        a("    v_cmp_ne_u32 vcc, 0, %s" % v(vT))

    EB = opt.get("eb", 0)

    def earlybell():
        bell()
        return 2
    extra.update(A=wo_setup, B=wo_addresses, T0=woload(0), T1=woload(1), T2=woload(2), T3=woload(3))
    sw = SCHED["w"][opt.get("sw", 0)]
    rest = [i for i in range(4) if "T%d" % i not in sw.split()]
    WO2 = min(opt.get("wo2", 0), len(rest))
    late = rest[len(rest) - WO2:]
    rest = rest[:len(rest) - WO2]
    WO1 = min(opt.get("wo1", 0), len(rest))
    attention(sw, [woload(i) for i in rest[:len(rest) - WO1]], [woload(i) for i in rest[len(rest) - WO1:]],
              earlybell if EB else None)
    for i in late:
        woload(i)()
    def bellprep():
        a("    s_mul_i32 %s, %s, 0x01010101" % (s(sRep), s(sTag8)))
        a("    s_mov_b32 %s, %s" % (s(sRep + 1), s(sRep)))
        a("    s_and_b32 %s, %s, %d" % (s(sT0), s(sJ), (R2 // 2 if opt.get("dp2", 0) else R2) - 1))
        a("    s_lshl4_add_u32 %s, %s, %s" % (s(sT0), s(sH), s(sT0)))
        a("    s_lshl_b32 %s, %s, %d" % (s(sT0), s(sT0), RS2))
        a("    s_add_u32 %s, %s, 0x%x" % (s(sT0), s(sT0), SRDY))
    HE = opt.get("he", 0)
    if HE:
        a("    s_cmp_lg_u32 %s, 0" % s(sW))
        a("    s_cbranch_scc1 L_BP")
        bellprep()
        base(sB1, sWS, s(sT0))
        for k in range(P2):
            n_ = 8 // P2
            a("    s_load_dword%s %s, %s, 0x%x glc" % ("x%d" % n_ if n_ > 1 else "", s(sFl + n_ * k, n_), s(sB1, 2), 128 * k))
        a("L_BP:")
    if opt.get("dp2", 0) == 2:
        a("    s_cmp_lg_u32 %s, 0" % s(sW))
        a("    s_cbranch_scc1 L_BP")
        bellprep()
        spoll2(s(sT0), (R2 // 2) << RS2, sRep, P2, sB1, phase=1)
        a("L_BP:")
    if "B" not in sw.split():
        wo_addresses()

    NO = opt.get("dno", 4)

    def oloads():
        for i in range(NO):
            a("    global_load_dwordx4 %s, %s, %s%s" % (v(vO + 4 * i, 4), v(vOo + i), s(sB5, 2), [" sc1", " nt", "", " sc0"][opt.get("xl", 0)]))

    def wtr():
        for t in range(4):
            for hh in range(2):
                a("    ds_read_b64_tr_b16 %s, %s offset:%d" % (v(vW + 4 * t + 2 * hh, 2), v(vAtr), 512 * hh + 32 * t))
    a.c("combine the 32 chunks: wave 0 waits for the hints, turns (m, l) into weights; all waves gather o")
    a("    s_cmp_eq_u32 %s, 0" % s(sW))
    a("    s_cbranch_scc1 L_BELL1")
    S2M = opt.get("s2mode", 0)
    if opt.get("sb2", 0):
        a("    s_barrier")
        oloads()
        a("    s_waitcnt vmcnt(%d)" % NO)
        wtr()
    else:
        a("    s_waitcnt vmcnt(%d)" % (1 if EB else 0))
        stamp(12)
        wtr()
        a("    s_barrier")
        oloads()
    a("    s_branch L_BELL2")
    a("L_BELL1:")
    if opt.get("rdy", 0):
        a("    v_and_b32 %s, 31, v0" % v(vT + 1))
        a("    v_lshlrev_b32 %s, 6, %s" % (v(vT + 1), v(vT + 1)))
        a("    v_add_u32 %s, 0x%x, %s" % (v(vT + 1), SRDY - S2ML, v(vT + 1)))

        def rdy():
            a("    global_load_dword %s, %s, %s sc1" % (v(vT + 2), v(vT + 1), s(sB0, 2)))

        def rdycheck():
            a("    v_cmp_ne_u32 vcc, %s, %s" % (s(sT32), v(vT + 2)))
        setexec(0xFFFFFFFF, 0)
        rdy()
        poll(rdy, rdycheck, 0, cnt=13)
        a("    s_barrier")
        bell()
        oloads()
        stamp(11)
        wtr()
        poll(bell, bellcheck, 4)
    elif opt.get("sb2", 0):
        if opt.get("dp2", 0) != 2 and not HE:
            bellprep()
        stamp(12)
        if opt.get("dp2", 0):
            spoll2(s(sT0), (R2 // 2) << RS2, sRep, P2, sB1, phase=2 if opt["dp2"] == 2 else 0)
        elif HE:
            a("    s_waitcnt lgkmcnt(0)")
            for k in range(4):
                a("    s_cmp_eq_u64 %s, %s" % (s(sFl + 2 * k, 2), s(sRep, 2)))
                a("    s_cbranch_scc0 L_VEC")
        elif opt.get("hy", 0):
            spoll(sWS, s(sT0), sRep, P2, tries=opt["hy"], fail="L_VEC")
        else:
            spoll(sWS, s(sT0), sRep, P2)
        if prof:
            a("    s_mov_b32 %s, %s" % (s(sPROF + 26), s(sSpin)))
        a("    s_barrier")
        bell()
        oloads()
        stamp(11)
        if opt.get("wt", 0) == 1:
            a("    s_waitcnt vmcnt(6)")
            wtr()
            poll(bell, bellcheck, 4)
        elif opt.get("wt", 0) == 2:
            poll(bell, bellcheck, NO)
            if opt.get("hy", 0):
                a("    s_branch L_WTS")
                a("L_VEC:")
                bell()
                poll(bell, bellcheck, 0)
                a("    s_barrier")
                oloads()
                a("L_WTS:")
        else:
            poll(bell, bellcheck, 4, post=wtr)
    elif EB:
        assert WO1 == 0 and not opt.get("mb")
        poll(bell, bellcheck, 1, cnt=13)
        a("    s_barrier")
        oloads()
        wtr()
        stamp(11)
    else:
        bell()
        poll(bell, bellcheck, 0, cnt=13)
        a("    s_barrier")
        oloads()
        wtr()
        stamp(11)
    a("    v_max_f32 %s, %s, %s" % (v(vT + 1), v(vML), v(vML + 4)))
    allred_hi(vT + 1, vT, "max")
    for i in range(2):
        a("    v_sub_f32 %s, %s, %s" % (v(vML + 4 * i), v(vML + 4 * i), v(vT + 1)))
    for i in range(2):
        a("    v_mul_f32 %s, 0x3fb8aa3b, %s" % (v(vML + 4 * i), v(vML + 4 * i)))
    for i in range(2):
        a("    v_exp_f32 %s, %s" % (v(vML + 4 * i), v(vML + 4 * i)))
    a("    v_lshlrev_b32 %s, 2, v0" % v(vT + 2))
    a("    v_mul_f32 %s, %s, %s" % (v(vT + 1), v(vML), v(vML + 1)))
    a("    v_fmac_f32 %s, %s, %s" % (v(vT + 1), v(vML + 4), v(vML + 5)))
    allred_hi(vT + 1, vT, "add")
    a("    v_rcp_f32 %s, %s" % (v(vT + 1), v(vT + 1)))
    a("    v_add_u32 %s, 0x%x, %s" % (v(vT + 2), LWT, v(vT + 2)))
    for i in range(2):
        a("    v_mul_f32 %s, %s, %s" % (v(vML + 4 * i), v(vML + 4 * i), v(vT + 1)))
    for i in range(2):
        a("    ds_write_b32 %s, %s offset:%d" % (v(vT + 2), v(vML + 4 * i), 256 * i))
    a("    s_waitcnt lgkmcnt(0)")
    if opt.get("wt", 0) == 2:
        a("    s_barrier")
        wtr()
        a("    s_branch L_BELL3")
    a("L_BELL2:")
    WB = opt.get("wbar", 0)

    def wreads():
        a("    s_barrier")
        a("L_BELL3:")
        for i in range(4):
            a("    ds_read_b128 %s, %s offset:%d" % (v(vWt + 4 * i, 4), v(vAw), 128 * i))

    wreads()

    def oacc(i):
        for r in (0, 2):
            if i == 0:
                a("    v_pk_mul_f32 %s, %s, %s" % (v(vT + r, 2), v(vO + r, 2), v(vWt + r, 2)))
            else:
                a("    v_pk_fma_f32 %s, %s, %s, %s" % (v(vT + r, 2), v(vO + 4 * i + r, 2), v(vWt + 4 * i + r, 2), v(vT + r, 2)))

    HN = opt.get("hn", 1)

    def s3hint():
        if HN == 1:
            a("    s_or_b32 %s, %s, %s" % (s(sT0), s(sJ), s(sW)))
        else:
            a("    s_and_b32 %s, %s, 3" % (s(sT0), s(sJ)))
            a("    s_or_b32 %s, %s, %s" % (s(sT0), s(sT0), s(sW)))
        a("    s_cbranch_scc1 L_NOHINT")
        if R3 < 64:
            setexec((1 << (R3 + (8 if opt.get("hy3", 0) else 0))) - 1, 0)
        a("    v_lshl_add_u32 %s, v0, %d, %s" % (v(vG0), RS3, s(sInb)))
        if HN == 1:
            a("    v_mov_b32 %s, %s" % (v(vQo), s(sT32)))
            a("    global_store_dword %s, %s, %s sc1" % (v(vG0), v(vQo), s(sWS, 2)))
        else:
            a("    global_store_byte %s, %s, %s sc1" % (v(vG0), v(vTag8), s(sWS, 2)))
        setexec(0xFFFFFFFF, 0xFFFFFFFF)
        a("L_NOHINT:")
    HP = opt.get("hp", 0)

    def obefore():
        if HP == 1:
            a("    s_waitcnt vmcnt(3)")
            s3hint()
        a("    s_waitcnt lgkmcnt(0)")
    gather(oloads, [vO + 4 * i for i in range(NO)], sTag10, 0x3ff, oacc, cnt=14, before=obefore)
    stamp(7)
    if HP == 0:
        s3hint()
    a.c("o (bf16) times the wo piece, cross-wave sum, publish")
    treduce4(vT)
    a("    v_add_f32_dpp %s, %s, %s row_ror:8 %s" % (v(vT), v(vT), v(vT), DPP))
    rowpack(vT, vT + 4, 4)
    for t in range(4):
        a("    v_mfma_f32_16x16x32_bf16 %s, %s, %s, 0" % (v(vDt + 4 * t, 4), v(vW + 4 * t, 4), v(vT + 4, 4)))
    if HP == 2:
        s3hint()
    setexec(0x00010001, 0x00010001)
    for t in range(4):
        a("    ds_write_b128 %s, %s offset:%d" % (v(vArw), v(vDt + 4 * t, 4), 64 * t))
    setexec(0xFFFFFFFF, 0xFFFFFFFF)
    if HP == 5:
        s3hint()
    red_publish(8, vTag10, sM10, 0, sB2, "L_FIN", mid=s3hint if HP == 3 else None)
    if HP == 4:
        s3hint()
    stamp(8)
    a("L_FIN:")
    if opt.get("wb", 0):
        a("    s_lshl3_add_u32 %s, %s, %s" % (s(sT0), s(sJ), s(sW)))
        a("    s_cmp_lg_u32 %s, 1" % s(sT0))
        a("    s_cbranch_scc1 L_FIN3")
        a("    buffer_wbl2 sc1")
        a("    s_waitcnt vmcnt(0)")
        a("L_FIN3:")
    finish()
    V.release(mrole)

    a("L_ROLE_FFN:")
    vGo = V()
    vDo = V(2)

    def quarter_prep(n, pair, m0reg):
        a("    s_add_u32 %s, %s, %d" % (s(sT0), s(sU), 0 if opt.get("fdiag") == 4 else n))
        a("    s_and_b32 %s, %s, 1" % (s(sT1), s(sT0)))
        a("    s_bfe_u32 %s, %s, 0x10001" % (s(sT0), s(sT0)))
        a("    s_lshl_b32 %s, %s, 1" % (s(sT2), s(sW)))
        a("    s_add_u32 %s, %s, %s" % (s(sT2), s(sT2), s(sT1)))
        a("    s_lshl_b32 %s, %s, 4" % (s(sT3), s(sT0)))
        a("    s_add_u32 %s, %s, %s" % (s(sT3), s(sT3), s(sT2)))
        a("    s_lshl_b32 %s, %s, 10" % (s(sT3), s(sT3)))
        a("    s_add_u32 %s, %s, 0x%x" % (s(m0reg), s(sT3), LG))
        a("    s_mul_i32 %s, %s, %d" % (s(sT2), s(sT2), 32 * 3584))
        a("    s_lshl_b32 %s, %s, 5" % (s(sT1), s(sFI)))
        a("    s_add_u32 %s, %s, %s" % (s(sT2), s(sT2), s(sT1)))
        a("    s_cmp_eq_u32 %s, 0" % s(sT0))
        a("    s_cselect_b64 %s, %s, %s" % (s(pair, 2), s(sWG, 2), s(sWU, 2)))
        base(pair, pair, s(sT2))
    QB = [(sK, sPC), (sVp, sPC + 1), (sWQ, sMean), (sWO, sVar)]

    def quarter(n):
        a("    s_mov_b32 m0, %s" % s(QB[n][1]))
        a("    global_load_lds_dwordx4 %s, %s%s" % (v(vGo), s(QB[n][0], 2),
          {0: " nt", 1: "" if n == 0 else " nt", 2: "", 3: " nt" if n == 0 else "", 4: " nt" if n == 0 else " sc1"}[opt.get("qpol", 0)]))

    def ffn_setup():
        a("    s_and_b32 %s, %s, 3" % (s(sU), s(sJ)))
        a("    s_min_u32 %s, %s, 4" % (s(sT0), s(sH)))
        a("    s_mul_i32 %s, %s, 3" % (s(sT1), s(sH)))
        a("    s_add_u32 %s, %s, %s" % (s(sT0), s(sT0), s(sT1)))
        a("    s_lshl_b32 %s, %s, 2" % (s(sT0), s(sT0)))
        a("    s_add_u32 %s, %s, %s" % (s(sT0), s(sT0), s(sJ)))
        a("    s_sub_u32 %s, %s, 16" % (s(sFI), s(sT0)))
        a("    v_lshrrev_b32 %s, 1, v0" % v(vT))
        a("    v_mul_u32_u24 %s, 3584, %s" % (v(vT), v(vT)))
        a("    v_and_b32 %s, 1, v0" % v(vT + 1))
        a("    v_lshl_add_u32 %s, %s, 4, %s" % (v(vGo), v(vT + 1), v(vT)))
        for n in range(4):
            quarter_prep(n, *QB[n])
        a("    s_lshl_b32 %s, %s, 14" % (s(sT0), s(sFI)))
        a("    s_lshl_b32 %s, %s, 7" % (s(sT1), s(sW)))
        a("    s_add_u32 %s, %s, %s" % (s(sT0), s(sT0), s(sT1)))
        base(sB5, sWD, s(sT0))
        a("    s_lshl_b32 %s, %s, 11" % (s(sT1), s(sW)))
        a("    s_add_u32 %s, %s, 0x%x" % (s(sInb), s(sT1), LD))
        a("    v_lshlrev_b32 %s, 4, %s" % (v(vDo), v(vL7)))
        a("    v_lshl_or_b32 %s, %s, 10, %s" % (v(vDo), v(vL3), v(vDo)))
        a("    v_add_u32 %s, 0x1c00, %s" % (v(vDo + 1), v(vDo)))

    def dload(i):
        def f():
            a("    s_mov_b32 m0, %s" % s(sInb))
            a("    global_load_lds_dwordx4 %s, %s offset:%d nt" % (v(vDo + i), s(sB5, 2), 1024 * i))
        return f
    def qhalf(lo, hi):
        def f():
            setexec(lo, hi)
            quarter(0)
            setexec(0xFFFFFFFF, 0xFFFFFFFF)
        return f
    L = dict(D0=dload(0), D1=dload(1), Q0=lambda: quarter(0), Q1=lambda: quarter(1), Q2=lambda: quarter(2), Q3=lambda: quarter(3))
    L2 = dict(Qa=qhalf(0xFFFFFFFF, 0), Qb=qhalf(0, 0xFFFFFFFF), Qc=qhalf(0xFFFF, 0), Qd=qhalf(0xFFFF0000, 0xFFFFFFFF))
    extra.update(A=ffn_setup, **L)
    extra.update(L2)
    sf = SCHED["f"][opt.get("sf", 0)]
    FT = [("Q0", "Q1 Q2 Q3 b D0 D1"), ("Q0", "Q1 Q2 Q3"), ("", "Q0 b Q1 Q2 Q3"), ("D0 D1", "Q0 b Q1 Q2 Q3"),
          ("", "Q0 D1 b Q1 Q2 Q3"), ("", "Q0 D0 D1 b Q1 Q2 Q3"), ("D1", "Q0 b Q1 Q2 Q3"),
          ("Qa", "Qb b Q1 Q2 Q3"), ("Qc", "Qd b Q1 Q2 Q3"), ("Qa", "Qb D0 D1 b Q1 Q2 Q3"), ("Qa", "Qb b Q1 Q2 Q3 b D0 D1"),
          ("Qb", "D0 D1 b Q1 Q2 Q3"), ("Qb", "Q1 Q2 Q3 b D0 D1"),
          ("Qa", "D0 D1 b Q1 Q2 Q3", "Qb"), ("Qa", "Q1 Q2 Q3 b D0 D1", "Qb"), ("Qa", "D1 b Q1 Q2 Q3", "Qb"), ("Qa", "Q1 Q2 Q3", "Qb"),
          ("", "Qb b Q1 Q2 Q3", "Qa"), ("Qc", "Q1 Q2 Q3", "Qd"),
          ("Qb", "Q1 Q2 Q3"), ("", "Q1 Q2 Q3", "Qb"), ("Q0", "Q1 Q2 Q3"), ("Qa", "Q1 Q2 Q3", "Qb"), ("Qa", "Qb b Q1 Q2 Q3"),
          ("Qa", "Qb Q1 Q2 Q3"), ("Qa", "Qb b Q1 b Q2 b Q3"), ("Qa", "Qb Q1 b Q2 Q3")][opt.get("ft", 0)]
    FT = FT + ("",) * (3 - len(FT))
    DL = opt.get("dl", 0)
    allf = (sf + " " + FT[0] + " " + FT[1] + " " + FT[2] + " " + " ".join(["D0", "D1"][2 - DL:])).replace("Qb", "Q0").replace("Qd", "Q0").split()
    assert sorted(t for t in allf if t in L) == sorted(L), allf
    L.update(L2)
    attention(sf, [L[t] for t in FT[0].split()], [L[t] for t in FT[2].split()])
    if opt.get("fack", 0):
        a("    s_waitcnt vmcnt(0)")
    if not opt.get("nfb", 0):
        a("    s_barrier")
    for t in FT[1].split():
        if t == "b":
            a("    s_barrier")
        else:
            L[t]()

    def hintprep():
        if opt.get("hn", 1) == 1:
            a("    s_mov_b32 %s, %s" % (s(sRep), s(sT32)))
        else:
            a("    s_mul_i32 %s, %s, 0x01010101" % (s(sRep), s(sTag8)))
        a("    s_mov_b32 %s, %s" % (s(sRep + 1), s(sRep)))
        a("    s_and_b32 %s, %s, %d" % (s(sT0), s(sFI), (R3 // 2 if opt.get("dp3", 0) else R3) - 1))
        a("    s_lshl_b32 %s, %s, %d" % (s(sT0), s(sT0), RS3))
        a("    s_add_u32 %s, %s, 0x%x" % (s(sT0), s(sT0), SBELL))
    a("    s_lshl_b32 %s, %s, 11" % (s(sT1), s(sW)))
    stamp(11)
    vXc = V()
    vHs = V(16, 4)
    vHo = V(4)
    vWg = V(16, 4)
    vWd = V(8, 4)
    P4 = opt.get("p4", 0)
    RW = P4 or opt.get("rw", 0)
    vWd2 = V(8, 4)
    vDv = V(4, 4)
    vAy2 = V(2)
    vHb = V(8, 4)
    vDu = V(4, 4)
    vCs = V(4, 4)
    vMt = V(4)
    vB = V(8, 4)
    vAgw, vAgr, vAsw, vAsr, vAy, vHr = [V() for _ in range(6)]
    a("    s_lshl_b32 %s, %s, 7" % (s(sT0), s(sW)))
    base(sB0, sX, s(sT0))
    a("    v_lshl_add_u32 %s, %s, 2, %s" % (v(vT + 2), v(vJ), v(vG)))
    a("    v_lshlrev_b32 %s, 1, %s" % (v(vT + 2), v(vT + 2)))
    a("    global_load_ushort %s, %s, %s" % (v(vXc), v(vT + 2), s(sB0, 2)))
    a.c("the value of this load is never used: it only fetches the translation and the lines of d_out ahead of the final store")
    a("    global_load_ushort %s, %s, %s" % (v(vHr), v(vT + 2), s(sOUT, 2)))
    if opt.get("dp3", 0) == 2:
        a("    s_cmp_lg_u32 %s, 0" % s(sW))
        a("    s_cbranch_scc1 L_HP")
        hintprep()
        spoll2(s(sT0), (R3 // 2) << RS3, sRep, P3, sB4, phase=1)
        a("    s_lshl_b32 %s, %s, 7" % (s(sT0), s(sW)))
        a("L_HP:")
    a("    s_add_u32 %s, %s, 0x%x" % (s(sT2), s(sT0), LGP))
    a("    v_lshl_add_u32 %s, %s, 4, %s" % (v(vAgw), v(vG), s(sT2)))
    a("    v_lshrrev_b32 %s, 3, %s" % (v(vT + 2), v(vJ)))
    a("    v_lshl_add_u32 %s, %s, 1, %s" % (v(vT + 2), v(vL7), v(vT + 2)))
    a("    v_lshlrev_b32 %s, 6, %s" % (v(vT + 2), v(vT + 2)))
    a("    v_lshl_add_u32 %s, %s, 4, %s" % (v(vT + 2), v(vG), v(vT + 2)))
    a("    v_add_u32 %s, 0x%x, %s" % (v(vAgr), LGP, v(vT + 2)))
    a("    s_lshl_b32 %s, %s, 3" % (s(sT2), s(sW)))
    a("    s_add_u32 %s, %s, 0x%x" % (s(sT2), s(sT2), LST))
    a("    v_mov_b32 %s, %s" % (v(vAsw), s(sT2)))
    a("    v_lshlrev_b32 %s, 3, %s" % (v(vT + 2), v(vL7)))
    a("    v_add_u32 %s, 0x%x, %s" % (v(vAsr), LST, v(vT + 2)))
    for t in range(4):
        a("    v_cmp_eq_u32 vcc, %d, %s" % (t, v(vJ)))
        a("    v_cndmask_b32 %s, 0, -1, vcc" % v(vMt + t))
    a("    s_lshl_b32 %s, %s, 8" % (s(sT0), s(sW)))
    a("    s_add_u32 %s, %s, 0x%x" % (s(sT0), s(sT0), S3))
    base(sB1, sWS, s(sT0))
    a("    v_lshlrev_b32 %s, 4, %s" % (v(vT + 2), v(vJ)))
    a("    v_mul_u32_u24 %s, %d, %s" % (v(vHo), ST3, v(vG)))
    a("    v_add_u32 %s, %s, %s" % (v(vHo), v(vHo), v(vT + 2)))
    for i in (1, 2, 3):
        a("    v_add_u32 %s, 0x%x, %s" % (v(vHo + i), 4 * ST3 * i, v(vHo)))
    a("    s_mul_i32 %s, %s, %d" % (s(sT0), s(sW), 4 * 7168))
    a("    s_lshl_b32 %s, %s, 6" % (s(sT2), s(sFI)))
    a("    s_add_u32 %s, %s, %s" % (s(sT0), s(sT0), s(sT2)))
    a("    s_add_u32 %s, %s, 0x%x" % (s(sT0), s(sT0), S4))
    base(sB2, sWS, s(sT0))
    a("    v_lshrrev_b32 %s, 2, %s" % (v(vT + 2), v(vJ)))
    a("    v_mul_u32_u24 %s, 7168, %s" % (v(vT + 2), v(vT + 2)))
    a("    v_and_b32 %s, 3, v0" % v(vT + 3))
    a("    v_lshl_add_u32 %s, %s, 4, %s" % (v(vAy), v(vT + 3), v(vT + 2)))
    a("    v_lshrrev_b32 %s, 2, %s" % (v(vT + 2), v(vJ)))
    a("    v_and_b32 %s, 3, v0" % v(vT + 3))
    a("    v_lshl_add_u32 %s, %s, 2, %s" % (v(vT + 4), v(vT + 2), v(vG)))
    a("    v_lshlrev_b32 %s, 5, %s" % (v(vT + 4), v(vT + 4)))
    a("    v_lshl_add_u32 %s, %s, 3, %s" % (v(vT + 4), v(vT + 3), v(vT + 4)))
    a("    s_add_u32 %s, %s, 0x%x" % (s(sT2), s(sT1), LG))
    a("    v_add_u32 %s, %s, %s" % (v(vT + 4), s(sT2), v(vT + 4)))
    a("    v_lshl_add_u32 %s, %s, 2, %s" % (v(vT + 5), v(vG), v(vT + 2)))
    a("    v_lshlrev_b32 %s, 7, %s" % (v(vT + 5), v(vT + 5)))
    a("    v_lshl_add_u32 %s, %s, 3, %s" % (v(vT + 5), v(vT + 3), v(vT + 5)))
    a("    s_add_u32 %s, %s, 0x%x" % (s(sT2), s(sT1), LD))
    a("    v_add_u32 %s, %s, %s" % (v(vT + 5), s(sT2), v(vT + 5)))
    for i in range(4):
        a("    v_mov_b32 %s, 0x3f803f80" % v(vHb + i))

    NH = opt.get("dnh", 4)

    def hloadsf():
        for i in range(NH):
            a("    global_load_dwordx4 %s, %s, %s sc1" % (v(vHs + 4 * i, 4), v(vHo + i), s(sB1, 2)))
    if opt.get("pdrop", 0) == 2:
        a("    s_setprio 0")
    a.c("gather the 16 wo partials; meanwhile transpose the weights and take their column sums")
    S3B = opt.get("s3bell", 1)
    PG = opt.get("pg", 0)
    if PG:
        sDone, sNew = sU + 0, sMean
        sDone = sVar
        a("    s_mov_b32 %s, %s" % (s(sRep), s(sT32)))
        a("    s_mov_b32 %s, %s" % (s(sRep + 1), s(sRep)))
        a("    s_and_b32 %s, %s, %d" % (s(sT0), s(sFI), R3 - 1))
        a("    s_lshl_b32 %s, %s, %d" % (s(sT0), s(sT0), RS3))
        a("    s_add_u32 %s, %s, 0x%x" % (s(sT0), s(sT0), SBELL))
        a("    v_mov_b32 %s, 0x%x" % (v(vT + 1), LRM))
        a("    s_mov_b32 %s, 0" % s(sDone))
        a("    s_mov_b32 %s, 0" % s(sSpin))
        sPrev = sPC
        a("    s_mov_b32 %s, 0" % s(sPrev))
        a("L_PG:")
        a("    s_add_u32 %s, %s, 1" % (s(sSpin), s(sSpin)))
        a("    v_xor_b32 %s, 4, %s" % (v(vT + 1), v(vT + 1)))
        a("    s_cmp_lg_u32 %s, 0" % s(sW))
        a("    s_cbranch_scc1 L_PGR")
        a("    s_load_dwordx8 %s, %s, %s glc" % (s(sFl, 8), s(sWS, 2), s(sT0)))
        a("    s_mov_b32 %s, 0" % s(sNew))
        a("    s_waitcnt lgkmcnt(0)")
        for k in range(4):
            a("    s_cmp_eq_u64 %s, %s" % (s(sFl + 2 * k, 2), s(sRep, 2)))
            a("    s_cselect_b32 %s, %d, 0" % (s(sT1), 1 << k))
            a("    s_or_b32 %s, %s, %s" % (s(sNew), s(sNew), s(sT1)))
        a("    s_cmp_ge_u32 %s, 0x%x" % (s(sSpin), SPIN_LIMIT))
        a("    s_cselect_b32 %s, 15, %s" % (s(sNew), s(sNew)))
        if PG >= 2:
            a("    s_cmp_eq_u32 %s, 15" % s(sNew))
            a("    s_cselect_b32 %s, 15, %s" % (s(sT1), s(sPrev)))
            a("    s_mov_b32 %s, %s" % (s(sPrev), s(sNew)))
            a("    s_mov_b32 %s, %s" % (s(sNew), s(sT1)))
        a("    v_mov_b32 %s, %s" % (v(vT + 2), s(sNew)))
        a("    ds_write_b32 %s, %s" % (v(vT + 1), v(vT + 2)))
        a("    s_waitcnt lgkmcnt(0)")
        a("    s_barrier")
        a("    s_branch L_PGI")
        a("L_PGR:")
        a("    s_barrier")
        a("    ds_read_b32 %s, %s" % (v(vT + 2), v(vT + 1)))
        a("    s_waitcnt lgkmcnt(0)")
        a("    v_readfirstlane_b32 %s, %s" % (s(sNew), v(vT + 2)))
        a("L_PGI:")
        a("    s_andn2_b32 %s, %s, %s" % (s(sNew), s(sNew), s(sDone)))
        a("    s_cbranch_scc0 L_PG")
        a("    s_or_b32 %s, %s, %s" % (s(sDone), s(sDone), s(sNew)))
        for i in range(4):
            a("    s_bitcmp1_b32 %s, %d" % (s(sNew), i))
            a("    s_cbranch_scc0 L_PGS%d" % i)
            a("    global_load_dwordx4 %s, %s, %s sc1" % (v(vHs + 4 * i, 4), v(vHo + i), s(sB1, 2)))
            a("L_PGS%d:" % i)
        a("    s_cmp_lg_u32 %s, 15" % s(sDone))
        a("    s_cbranch_scc1 L_PG")
    elif opt.get("sb3", 0):
        a("    s_cmp_lg_u32 %s, 0" % s(sW))
        a("    s_cbranch_scc1 L_HINT")
        if opt.get("dp3", 0) != 2:
            hintprep()
        if opt.get("dp3", 0):
            spoll2(s(sT0), (R3 // 2) << RS3, sRep, P3, sB4 if opt["dp3"] == 2 else sB0, phase=2 if opt["dp3"] == 2 else 0)
        elif opt.get("hy3", 0):
            if opt["hy3"] < 9:
                spoll(sWS, s(sT0), sRep, P3, True, tries=opt["hy3"], fail="L_VEC3")
                a("    s_branch L_HINT")
            a("L_VEC3:")
            a("    s_add_u32 %s, %s, 16" % (s(sT0), s(sH)))
            a("    s_lshl_b32 %s, %s, %d" % (s(sT0), s(sT0), RS3))
            a("    s_add_u32 %s, %s, 0x%x" % (s(sT0), s(sT0), SBELL))
            a("    v_lshl_add_u32 %s, %s, 2, %s" % (v(vT + 1), v(vL7), s(sT0)))

            def hint3():
                a("    global_load_dword %s, %s, %s sc1" % (v(vT + 2), v(vT + 1), s(sWS, 2)))

            def hint3check():
                a("    v_cmp_ne_u32 vcc, %s, %s" % (s(sT32), v(vT + 2)))
            setexec(0xFF, 0)
            hint3()
            poll(hint3, hint3check, 0)
        else:
            spoll(sWS, s(sT0), sRep, P3, True)
        a("L_HINT:")
        a("    s_barrier")
    elif S3B:
        a("    s_cmp_lg_u32 %s, 0" % s(sW))
        a("    s_cbranch_scc1 L_HINT")
        a("    v_lshlrev_b32 %s, 7, %s" % (v(vT + 1), v(vL7)))
        a("    v_add_u32 %s, 0x%x, %s" % (v(vT + 1), SBELL, v(vT + 1)))

        def hint():
            a("    global_load_dword %s, %s, %s sc1" % (v(vT + 2), v(vT + 1), s(sWS, 2)))

        def hintcheck():
            a("    v_cmp_ne_u32 vcc, %s, %s" % (s(sT32), v(vT + 2)))
        setexec(0xFF, 0)
        hint()
        poll(hint, hintcheck, 0, cnt=12)
        a("L_HINT:")
        a("    s_barrier")
    gstamp(1)
    if not PG:
        hloadsf()
    for t in ["D0", "D1"][2 - DL:]:
        L[t]()
    a("    s_waitcnt vmcnt(%d)" % (NH + DL))
    gstamp(2)
    stamp(7)
    for mat in range(2):
        for st in range(2):
            for hh in range(2):
                a("    ds_read_b64_tr_b16 %s, %s offset:%d" %
                  (v(vWg + 8 * mat + 4 * st + 2 * hh, 2), v(vT + 4), 16384 * mat + 1024 * st + 512 * hh))
    vAd = V()

    def dreads():
        for t in range(4):
            a("    ds_read_b64_tr_b16 %s, %s offset:%d" % (v(vWd + 2 * t, 2), v(vAd), 32 * t))
    a("    v_mov_b32 %s, %s" % (v(vAd), v(vT + 5)))
    if not DL:
        dreads()
    a("    v_lshlrev_b32 %s, 16, %s" % (v(vXc), v(vXc)))
    if P4:
        a("    v_add_u32 %s, 0x%x, %s" % (v(vAy2), 16 * 7168, v(vAy)))
    if RW:
        a("    s_lshl_b32 %s, %s, 8" % (s(sT0), s(sW)))
        a("    s_add_u32 %s, %s, 0x%x" % (s(sT0), s(sT0), LRED))
        a("    v_lshl_add_u32 %s, v0, 2, %s" % (v(vAy2 + 1), s(sT0)))
    LA = opt.get("la", 0)
    sM0, sM1, sM2, sM8_, sM9 = sB0, sB4, sPC, sMean, sBo
    if LA:
        a("    v_and_b32 %s, 3, v0" % v(vT))
        a("    v_lshl_add_u32 %s, %s, 2, %s" % (v(vT), v(vG), v(vT)))
        a("    v_bfe_u32 %s, v0, 2, 1" % v(vT + 1))
        a("    v_lshl_add_u32 %s, %s, 4, %s" % (v(vT), v(vT + 1), v(vT)))
        a("    v_add_u32 %s, 56, %s" % (v(vT + 1), v(vJ)))
        a("    v_cmp_gt_u32 vcc, 8, %s" % v(vJ))
        a("    v_cndmask_b32 %s, %s, %s, vcc" % (v(vT), v(vT + 1), v(vT)))
        a("    v_lshlrev_b32 %s, 2, %s" % (v(vT), v(vT)))
        a("    v_add_u32 %s, 0x%x, %s" % (v(vAgw), LGP, v(vT)))
        a("    v_lshlrev_b32 %s, 4, %s" % (v(vT), v(vG)))
        a("    v_add_u32 %s, 0x%x, %s" % (v(vAgr), LGP, v(vT)))
        a("    v_mov_b32 %s, 0x%x" % (v(vAsr), LGP + 256))
        for r_, c_ in ((sM0, 0xAAAAAAAA), (sM1, 0xCCCCCCCC), (sM2, 0xF0F0F0F0), (sM8_, 0x01000100), (sM9, 0x02000200)):
            a("    s_mov_b32 %s, 0x%x" % (s(r_), c_))
            a("    s_mov_b32 %s, 0x%x" % (s(r_ + 1), c_))

    def pick(dst):
        a("    v_cndmask_b32 %s, %s, %s, %s" % (v(vD), v(vD), v(vD + 1), s(sM0, 2)))
        a("    v_cndmask_b32 %s, %s, %s, %s" % (v(vD + 2), v(vD + 2), v(vD + 3), s(sM0, 2)))
        a("    v_cndmask_b32 %s, %s, %s, %s" % (v(vDu), v(vDu), v(vDu + 1), s(sM0, 2)))
        a("    v_cndmask_b32 %s, %s, %s, %s" % (v(vDu + 2), v(vDu + 2), v(vDu + 3), s(sM0, 2)))
        a("    v_cndmask_b32 %s, %s, %s, %s" % (v(vD), v(vD), v(vD + 2), s(sM1, 2)))
        a("    v_cndmask_b32 %s, %s, %s, %s" % (v(vDu), v(vDu), v(vDu + 2), s(sM1, 2)))
        a("    v_cndmask_b32 %s, %s, %s, %s" % (v(dst), v(vD), v(vDu), s(sM2, 2)))
    CF2 = opt.get("cf", 0) == 2
    vOne = V(4, 4) if CF2 else None
    vC1 = V(8, 4) if CF2 else None

    def gate_up(b0, b1, d0=None, d1=None):
        d0 = vD if d0 is None else d0
        d1 = vDu if d1 is None else d1
        a("    v_mfma_f32_16x16x32_bf16 %s, %s, %s, 0" % (v(d0, 4), v(vWg, 4), v(b0, 4)))
        a("    v_mfma_f32_16x16x32_bf16 %s, %s, %s, 0" % (v(d1, 4), v(vWg + 8, 4), v(b0, 4)))
        a("    v_mfma_f32_16x16x32_bf16 %s, %s, %s, %s" % (v(d0, 4), v(vWg + 4, 4), v(b1, 4), v(d0, 4)))
        a("    v_mfma_f32_16x16x32_bf16 %s, %s, %s, %s" % (v(d1, 4), v(vWg + 12, 4), v(b1, 4), v(d1, 4)))
    if CF2:
        for i in range(4):
            a("    v_mov_b32 %s, 0x3f803f80" % v(vOne + i))
    else:
        a("    s_waitcnt lgkmcnt(0)")
        gate_up(vHb, vHb)
        if LA:
            pick(vD)
            setexec(0x00FF00FF, 0x00FF00FF)
            a("    ds_add_f32 %s, %s offset:128" % (v(vAgw), v(vD)))
        else:
            setexec(0x00010001, 0x00010001)
            a("    ds_write_b128 %s, %s offset:%d" % (v(vAgw), v(vD, 4), LCS - LGP))
            a("    ds_write_b128 %s, %s offset:%d" % (v(vAgw), v(vDu, 4), LCS - LGP + 64))
        setexec(0xFFFFFFFF, 0xFFFFFFFF)
    CF = opt.get("cf", 0)
    if not CF:
        a("    s_waitcnt lgkmcnt(0)")
        a("    s_barrier")
        a("    ds_read_b128 %s, %s offset:%d" % (v(vCs, 4), v(vAgr), LCS - LGP))
        a("    s_waitcnt lgkmcnt(0)")
        for pat in ("quad_perm:[1,0,3,2]", "quad_perm:[2,3,0,1]", "row_half_mirror"):
            for r in range(4):
                a("    v_add_f32_dpp %s, %s, %s %s %s" % (v(vCs + r), v(vCs + r), v(vCs + r), pat, DPP))

    vHa = V(4, 4)

    def sumacc(dst, src):
        def f(i):
            for r in (0, 2):
                if i == 1:
                    a("    v_pk_add_f32 %s, %s, %s" % (v(dst + r, 2), v(src + r, 2), v(src + 4 + r, 2)))
                elif i > 1:
                    a("    v_pk_add_f32 %s, %s, %s" % (v(dst + r, 2), v(dst + r, 2), v(src + 4 * i + r, 2)))
        return f
    gstamp(3)
    gather(hloadsf, [vHs + 4 * i for i in range(NH)], sTag10, 0x3ff, sumacc(vHa, vHs), cnt=13, ordered=not PG, younger=DL)
    gstamp(6)
    stamp(8)
    if CF2:
        a("    s_waitcnt lgkmcnt(0)")
        gate_up(vOne, vOne, vC1, vC1 + 4)
    vHs = vHa
    a.c("h, gate / up products on h itself, statistics of h")
    treduce4(vHs)
    bf16r(vHs, vHs)
    a("    v_add_f32 %s, %s, %s" % (v(vHs), v(vHs), v(vXc)))
    bf16r(vHr, vHs)
    rowpack(vHs, vHb, 8, lambda: a("    v_mul_f32 %s, %s, %s" % (v(vT + 1), v(vHr), v(vHr))),
            lambda: a("    v_add_f32_dpp %s, %s, %s row_ror:1 %s" % (v(vT), v(vHr), v(vHr), DPP)))
    gate_up(vHb, vHb + 4)
    if RW:
        a("    ds_write_b32 %s, %s" % (v(vAy2 + 1), v(vHr)))
    if CF2:
        setexec(0x00010001, 0x00010001)
        a("    ds_write_b128 %s, %s offset:%d" % (v(vAgw), v(vC1, 4), LCS - LGP))
        a("    ds_write_b128 %s, %s offset:%d" % (v(vAgw), v(vC1 + 4, 4), LCS - LGP + 64))
        setexec(0xFFFFFFFF, 0xFFFFFFFF)
    a("    v_add_f32_dpp %s, %s, %s row_ror:1 %s" % (v(vT + 1), v(vT + 1), v(vT + 1), DPP))
    for sh in (2, 4, 8):
        for r in range(2):
            a("    v_add_f32_dpp %s, %s, %s row_ror:%d %s" % (v(vT + r), v(vT + r), v(vT + r), sh, DPP))
    if LA:
        pick(vD)
        a("    v_cndmask_b32 %s, %s, %s, %s" % (v(vD), v(vD), v(vT), s(sM8_, 2)))
        a("    v_cndmask_b32 %s, %s, %s, %s" % (v(vD), v(vD), v(vT + 1), s(sM9, 2)))
        setexec(0x03FF03FF, 0x03FF03FF)
        a("    ds_add_f32 %s, %s" % (v(vAgw), v(vD)))
        setexec(0xFFFFFFFF, 0xFFFFFFFF)
        a("    s_waitcnt lgkmcnt(0)")
        a("    s_barrier")
    else:
        for pat in ("row_bcast:15 row_mask:0xa", "row_bcast:31 row_mask:0xc"):
            for r in range(2):
                a("    v_add_f32_dpp %s, %s, %s %s bank_mask:0xf" % (v(vT + r), v(vT + r), v(vT + r), pat))
        if opt.get("fst") == 1:
            stamp(3)
        setexec(0, 0x80000000)
        a("    ds_write_b64 %s, %s" % (v(vAsw), v(vT, 2)))
        setexec(0x00010001, 0x00010001)
        a("    ds_write_b128 %s, %s" % (v(vAgw), v(vD, 4)))
        a("    ds_write_b128 %s, %s offset:64" % (v(vAgw), v(vDu, 4)))
        setexec(0xFFFFFFFF, 0xFFFFFFFF)
        a("    s_waitcnt lgkmcnt(0)")
        a("    s_barrier")
    cstamp(1)
    if DL:
        assert not P4
    if P4:
        a("    s_cmp_ge_u32 %s, 4" % s(sW))
        a("    s_cbranch_scc1 L_FIN2")
    a("    ds_read_b64 %s, %s" % (v(vT, 2), v(vAsr)))
    a("    ds_read_b128 %s, %s" % (v(vD, 4), v(vAgr)))
    if LA:
        a("    ds_read_b128 %s, %s offset:128" % (v(vCs, 4), v(vAgr)))
        a("    ds_read_b128 %s, %s offset:64" % (v(vHb, 4), v(vAgr)))
        a("    ds_read_b128 %s, %s offset:192" % (v(vHb + 4, 4), v(vAgr)))
    elif CF:
        a("    ds_read_b128 %s, %s offset:%d" % (v(vCs, 4), v(vAgr), LCS - LGP))
    if P4:
        assert CF
        for t in range(4):
            a("    ds_read_b64_tr_b16 %s, %s offset:%d" % (v(vWd2 + 2 * t, 2), v(vAd), 8192 + 32 * t))
    pats = ("quad_perm:[1,0,3,2]", "quad_perm:[2,3,0,1]", "row_half_mirror")

    def meanfix():
        a.c("g u with the mean removed, down projection, 1 / sigma^2, publish")
        a("    v_mul_f32 %s, 0x3b000000, %s" % (v(vT), v(vT)))
        bf16r(vT + 2, vT)
        for r in (0, 2):
            a("    v_pk_fma_f32 %s, %s, %s, %s op_sel_hi:[0,1,1] neg_lo:[1,0,0] neg_hi:[1,0,0]" %
              (v(vD + r, 2), v(vT + 2, 2), v(vCs + r, 2), v(vD + r, 2)))
    if LA:
        a("    s_waitcnt lgkmcnt(%d)" % (0 if prof else 4))
        a("    v_mul_f32 %s, 0x3b000000, %s" % (v(vT), v(vT)))
        bf16r(vT + 2, vT)
        a("    s_waitcnt lgkmcnt(%d)" % (0 if prof else 2))
        for r in (0, 2):
            a("    v_pk_fma_f32 %s, %s, %s, %s op_sel_hi:[0,1,1] neg_lo:[1,0,0] neg_hi:[1,0,0]" %
              (v(vD + r, 2), v(vT + 2, 2), v(vCs + r, 2), v(vD + r, 2)))
        a("    s_waitcnt lgkmcnt(0)")
        cstamp(2)
        for r in (0, 2):
            a("    v_pk_fma_f32 %s, %s, %s, %s op_sel_hi:[0,1,1] neg_lo:[1,0,0] neg_hi:[1,0,0]" %
              (v(vHb + r, 2), v(vT + 2, 2), v(vHb + 4 + r, 2), v(vHb + r, 2)))
    elif CF:
        a("    s_waitcnt lgkmcnt(%d)" % (0 if prof else (6 if P4 else 2)))
        for pat in pats:
            for r in (vT, vT + 1):
                a("    v_add_f32_dpp %s, %s, %s %s %s" % (v(r), v(r), v(r), pat, DPP))
        a("    s_waitcnt lgkmcnt(%d)" % (4 if P4 and not prof else 0))
        cstamp(2)
        meanfix()
        for pat in pats:
            for r in range(4):
                a("    v_add_f32_dpp %s, %s, %s %s %s" % (v(vD + r), v(vD + r), v(vD + r), pat, DPP))
    else:
        a("    s_waitcnt lgkmcnt(0)")
        for pat in pats:
            for r in (vT, vT + 1, vD, vD + 1, vD + 2, vD + 3):
                a("    v_add_f32_dpp %s, %s, %s %s %s" % (v(r), v(r), v(r), pat, DPP))
        meanfix()
    cstamp(3)
    a("    v_mul_f32 %s, 0x3b000000, %s" % (v(vT + 1), v(vT + 1)))
    a("    v_fma_f32 %s, -%s, %s, %s" % (v(vT + 1), v(vT), v(vT), v(vT + 1)))
    if LA:
        for r in (0, 2):
            a("    v_pk_mul_f32 %s, %s, %s" % (v(vT + 4 + r, 2), v(vD + r, 2), v(vHb + r, 2)))
    else:
        for r in range(4):
            a("    v_mul_f32_dpp %s, %s, %s row_ror:8 %s" % (v(vT + 4 + r), v(vD + r), v(vD + r), DPP))
    a("    v_cvt_pk_bf16_f32 %s, %s, %s" % (v(vT + 2), v(vT + 4), v(vT + 5)))
    a("    v_cvt_pk_bf16_f32 %s, %s, %s" % (v(vT + 3), v(vT + 6), v(vT + 7)))
    if DL or P4:
        a("    s_waitcnt lgkmcnt(0)")
    for t in range(4):
        a("    v_and_b32 %s, %s, %s" % (v(vB + 2 * t), v(vT + 2), v(vMt + t)))
        a("    v_and_b32 %s, %s, %s" % (v(vB + 2 * t + 1), v(vT + 3), v(vMt + t)))
        if t:
            a("    v_mfma_f32_16x16x16_bf16 %s, %s, %s, %s" %
              (v(vDu, 4), v(vB + 2 * t - 2, 2), v(vWd + 2 * t - 2, 2), "0" if t == 1 else v(vDu, 4)))
            if P4:
                a("    v_mfma_f32_16x16x16_bf16 %s, %s, %s, %s" %
                  (v(vDv, 4), v(vB + 2 * t - 2, 2), v(vWd2 + 2 * t - 2, 2), "0" if t == 1 else v(vDv, 4)))
    cstamp(4)
    a("    v_max_f32 %s, 0, %s" % (v(vT + 1), v(vT + 1)))
    a("    v_mfma_f32_16x16x16_bf16 %s, %s, %s, %s" % (v(vDu, 4), v(vB + 6, 2), v(vWd + 6, 2), v(vDu, 4)))
    if P4:
        a("    v_mfma_f32_16x16x16_bf16 %s, %s, %s, %s" % (v(vDv, 4), v(vB + 6, 2), v(vWd2 + 6, 2), v(vDv, 4)))
    bf16r(vT + 1, vT + 1)
    a("    v_add_f32 %s, 0x3727c5ac, %s" % (v(vT + 1), v(vT + 1)))
    bf16r(vT + 1, vT + 1)
    a("    v_sqrt_f32 %s, %s" % (v(vT + 1), v(vT + 1)))
    bf16r(vT + 1, vT + 1)
    a("    v_mul_f32 %s, %s, %s" % (v(vT + 1), v(vT + 1), v(vT + 1)))
    a("    v_rcp_f32 %s, %s" % (v(vT), v(vT + 1)))
    cstamp(5)
    setexec(0xFFFF, 0)
    for r in (0, 2):
        a("    v_pk_mul_f32 %s, %s, %s op_sel_hi:[1,0]" % (v(vDu + r, 2), v(vDu + r, 2), v(vT, 2)))
    for i in range(4):
        a("    v_and_or_b32 %s, %s, %s, %s" % (v(vDu + i), v(vDu + i), s(sM10), v(vTag10)))
    a("    global_store_dwordx4 %s, %s, %s sc1" % (v(vAy), v(vDu, 4), s(sB2, 2)))
    cstamp(6)
    if P4:
        for r in (0, 2):
            a("    v_pk_mul_f32 %s, %s, %s op_sel_hi:[1,0]" % (v(vDv + r, 2), v(vDv + r, 2), v(vT, 2)))
        for i in range(4):
            a("    v_and_or_b32 %s, %s, %s, %s" % (v(vDv + i), v(vDv + i), s(sM10), v(vTag10)))
        a("    global_store_dwordx4 %s, %s, %s sc1" % (v(vAy2), v(vDv, 4), s(sB2, 2)))
    stamp(9)
    if RW:
        a("    s_cmp_ge_u32 %s, 32" % s(sFI))
        a("    s_cbranch_scc1 L_FIN2")
    a.c("final sum over the 112 partials for 16 columns")
    a("    s_lshr_b32 %s, %s, 2" % (s(sT0), s(sFI)))
    if RW:
        a("    s_and_b32 %s, %s, 3" % (s(sT1), s(sT0)))
        if opt.get("rw") == 2:
            a("    s_add_u32 %s, %s, 4" % (s(sT1), s(sT1)))
        a("    s_cmp_lg_u32 %s, %s" % (s(sT1), s(sW)))
        a("    s_cbranch_scc1 L_FIN2")
        a("    s_mov_b32 %s, %s" % (s(sMean), s(sT0)))
    else:
        a("    s_cmp_lg_u32 %s, %s" % (s(sT0), s(sW)))
        a("    s_cbranch_scc1 L_FIN2")
    setexec(0xFFFFFFFF, 0xFFFFFFFF)
    if opt.get("yd", 0) >= 1:
        a("    s_waitcnt vmcnt(0)")
    vY = V(28, 4)
    vCo = V()
    a("    v_and_b32 %s, 3, v0" % v(vT))
    a("    v_lshlrev_b32 %s, 2, %s" % (v(vT + 1), v(vG)))
    a("    v_lshl_add_u32 %s, %s, 4, %s" % (v(vT + 1), v(vT), v(vT + 1)))
    a("    v_add_u32 %s, %s, %s" % (v(vT + 1), s(sU), v(vT + 1)))
    a("    v_lshlrev_b32 %s, 2, %s" % (v(vT + 1), v(vT + 1)))
    if RW:
        a("    s_lshl_b32 %s, %s, 8" % (s(sT0), s(sMean)))
        a("    s_add_u32 %s, %s, 0x%x" % (s(sT0), s(sT0), LRED))
        a("    v_add_u32 %s, %s, %s" % (v(vT + 1), s(sT0), v(vT + 1)))
        a("    ds_read_b32 %s, %s" % (v(vHr), v(vT + 1)))
    else:
        a("    ds_bpermute_b32 %s, %s, %s" % (v(vHr), v(vT + 1), v(vHr)))
    a("    v_lshl_add_u32 %s, %s, 4, %s" % (v(vCo), v(vG), v(vT)))
    a("    v_lshlrev_b32 %s, 1, %s" % (v(vCo), v(vCo)))
    a("    s_lshl_b32 %s, %s, 7" % (s(sT0), s(sMean if RW else sW)))
    a("    s_lshl_b32 %s, %s, 3" % (s(sT1), s(sU)))
    a("    s_add_u32 %s, %s, %s" % (s(sT0), s(sT0), s(sT1)))
    base(sB3, sOUT, s(sT0))
    if opt.get("odiag"):
        a("    s_lshl_b32 %s, %s, 12" % (s(sT0), s(sFI)))
        a("    s_add_u32 %s, %s, 0x180000" % (s(sT0), s(sT0)))
        base(sB3, sWS, s(sT0))
        if opt["odiag"] == 2:
            a("    v_lshlrev_b32 %s, 4, %s" % (v(vCo), v(vCo)))
    a("    s_mul_i32 %s, %s, 7168" % (s(sT1), s(sFI)))
    a("    s_add_u32 %s, %s, 0x%x" % (s(sT1), s(sT1), S4 + 3072))
    base(sB2, sWS, s(sT1))

    def yloads():
        for n in range(7):
            a("    global_load_dwordx4 %s, %s, %s offset:%d%s" % (v(vY + 4 * n, 4), v(vAo), s(sB2, 2), 1024 * n - 3072,
                                                                 [" sc1", " sc1 nt", " sc0 sc1 nt", " sc0 sc1"][opt.get("yl", 0)]))

    if opt.get("ackwait", 1):
        a("    s_waitcnt vmcnt(0)")
    if opt.get("yd", 0) >= 2:
        a("    global_load_ushort %s, %s, %s sc1" % (v(vY), v(vCo), s(sB3, 2)))
        a("    s_waitcnt vmcnt(0)")
    yloads()
    gather(yloads, [vY + 4 * i for i in range(7)], sTag10, 0x3ff, sumacc(vHa, vY), cnt=15)
    if not opt.get("astamps"):
        stamp(14)
    vY = vHa
    treduce4(vY)
    for sh in (4, 8):
        a("    v_add_f32_dpp %s, %s, %s row_ror:%d %s" % (v(vY), v(vY), v(vY), sh, DPP))
    bf16r(vY, vY)
    a("    s_waitcnt lgkmcnt(0)")
    a("    v_add_f32 %s, %s, %s" % (v(vY), v(vY), v(vHr)))
    a("    v_cvt_pk_bf16_f32 %s, %s, %s" % (v(vY), v(vY), v(vY)))
    setexec(0x000F000F, 0x000F000F)
    a("    global_store_short %s, %s, %s%s" % (v(vCo), v(vY), s(sB3, 2), ["", " sc1", " nt", " sc0 sc1"][opt.get("ost", 0)]))
    a.c("advance the epoch word: by now every workgroup of this launch has read it")
    a("    s_cmp_lg_u32 %s, 0" % s(sFI))
    a("    s_cbranch_scc1 L_FIN2")
    setexec(1, 0)
    a("    v_mov_b32 %s, 0" % v(vT))
    a("    v_mov_b32 %s, %s" % (v(vT + 1), s(sT32)))
    a("    global_store_dword %s, %s, %s sc1" % (v(vT), v(vT + 1), s(sWS, 2)))
    if opt.get("diagspin"):
        a("    s_waitcnt lgkmcnt(0)")
        if "diagph" in opt:
            a("    s_sub_u32 s90, s90, s96")
            a("    s_lshl_b32 s90, s90, 2")
            a("    s_add_u32 s96, s96, s90")
        a("    s_add_u32 s96, s96, %d" % opt["diagspin"])
        a("L_DIAG:")
        a("    s_memrealtime s[92:93]")
        a("    s_waitcnt lgkmcnt(0)")
        a("    s_sub_u32 s92, s92, s96")
        a("    s_cmp_lt_i32 s92, 0")
        a("    s_cbranch_scc1 L_DIAG")
    a("L_FIN2:")
    finish()

    if prof:
        a("L_PROF:")
        a("    s_memrealtime %s" % s(sPROF + 20, 2))
        a("    s_mov_b64 exec, 1")
        a("    s_lshl_b32 %s, s2, 3" % s(sT0))
        a("    s_add_u32 %s, %s, %s" % (s(sT0), s(sT0), s(sW)))
        a("    s_lshl_b32 %s, %s, 7" % (s(sT0), s(sT0)))
        a("    s_add_u32 %s, %s, 0x%x" % (s(sT0), s(sT0), PROFB))
        base(sB0, sWS, s(sT0))
        a("    v_mov_b32 v1, 0")
        a("    s_waitcnt lgkmcnt(0)")
        for i in range(16):
            a("    v_mov_b32 v2, %s" % s(sPROF + 2 * i))
            if prof == 2:
                a("    global_atomic_umax v1, v2, %s offset:%d sc1" % (s(sDBG, 2), 4 * i))
            else:
                a("    global_store_dword v1, v2, %s offset:%d" % (s(sB0, 2), 4 * i))
        if prof == 2:
            a("    s_not_b32 %s, %s" % (s(sT0), s(sPROF)))
            a("    v_mov_b32 v2, %s" % s(sT0))
            a("    global_atomic_umax v1, v2, %s offset:48 sc1" % s(sDBG, 2))
        a("    s_endpgm")
    a("L_END:")
    a("    s_endpgm")
    a("L_CODE_END:")
    nv = (V.hi + 7) // 8 * 8
    a('.section .rodata,"a"')
    a(".p2align 6")
    a(".amdhsa_kernel %s_kernel" % NAME)
    a("  .amdhsa_next_free_vgpr %d" % nv)
    a("  .amdhsa_next_free_sgpr 102")
    a("  .amdhsa_accum_offset %d" % nv)
    a("  .amdhsa_group_segment_fixed_size 0")
    a("  .amdhsa_kernarg_size 96")
    a("  .amdhsa_user_sgpr_count 2")
    a("  .amdhsa_user_sgpr_kernarg_segment_ptr 1")
    a("  .amdhsa_system_sgpr_workgroup_id_x 1")
    a("  .amdhsa_float_denorm_mode_32 3")
    a(".end_amdhsa_kernel")
    return out + a.finalize()


if __name__ == "__main__":
    import argparse
    ap = argparse.ArgumentParser()
    ap.add_argument("-o", default=None)
    ap.add_argument("--prof", type=int, default=0)
    ap.add_argument("--opt", default="")
    args = ap.parse_args()
    opt = {}
    for kv in args.opt.split(","):
        if kv:
            k, x = kv.split("=")
            opt[k] = int(x)
    txt = gen(args.prof, opt)
    path = args.o or os.path.join(os.path.dirname(os.path.abspath(__file__)), "..", "cdna_kernels", NAME + ".s")
    open(path, "w").write(txt)
    print("wrote", path, len(txt.split("\n")), "lines")
```

```python
import sys
import os
sys.path.insert(0, os.path.dirname(os.path.abspath(__file__)))
from asmlib import Asm

NAME = "sequential_preLN__sliding_block_cached__glu_gated_bilinear__decode"

EPOCH = 0
S1 = 0x20000
S2ML = 0x11000
S3 = 0x40000
S4 = 0xF8000
SBELL = 0x160000
SRDY = 0x138000
SQF = 0x5C000
S2O = 0x60000
PROFB = 0x200000

LK = 0
LV = 32768
LG = 65536
LD = 98304
LRED = 114688
LQ = 119040
LMX = 120128
LLS = 120256
LP = 120768
LH = 121856
LGP = 122880
LCS = 123904
LST = 124928
LWT = 124992
LEP = 125504
LRM = 125512
LSS = 125536
LDS_BYTES = 125568

DPP = "row_mask:0xf bank_mask:0xf"
SPIN_LIMIT = 1 << 18


class Regs:
    def __init__(self, start):
        self.n = start
        self.hi = start

    def __call__(self, cnt=1, align=None):
        if align is None:
            align = 2 if cnt > 1 else 1
        self.n = (self.n + align - 1) // align * align
        b = self.n
        self.n += cnt
        self.hi = max(self.hi, self.n)
        return b

    def mark(self):
        return self.n

    def release(self, m):
        self.n = m


def v(b, n=1):
    return "v%d" % b if n == 1 else "v[%d:%d]" % (b, b + n - 1)


def s(b, n=1):
    return "s%d" % b if n == 1 else "s[%d:%d]" % (b, b + n - 1)


def gen(prof=False, opt=None):
    opt = dict(opt or {})
    global S1, S3, S4, SRDY, SBELL, S2ML, S2O
    if opt.get("lay") == 1:
        S1, S3, S4, SRDY, SBELL = 0x1000, 0x15000, 0xE0000, 0x120000, 0x140000
    if opt.get("lay") == 2:
        S1, S2ML, S3, SBELL, SRDY, S4, S2O = 0x1000, 0x11000, 0x15000, 0x1D000, 0x20000, 0x40000, 0x80000
    if opt.get("lay") == 3:
        S1, S2ML, S3, SBELL, SRDY, S4, S2O = 0x1080, 0x11100, 0x15180, 0x1D280, 0x20300, 0x40380, 0x80400
    for k_, x_ in dict(bx=0, qpol=4, win=3, mb=0, sw=6, sf=1, ft=25, t0p=2, fack=0, ost=1, amx=0, pl=0, sb2=3, sb3=1, rs2=10, dh=4, cf=1, hp=2, c3=1, wt=2, ln1p=1, lq=2, k2p=1, k1p=2, hy=1, he=1, p2=4, qe=2, prio=1, pdrop=1).items():
        opt.setdefault(k_, x_)
    a = Asm()
    V = Regs(1)
    sX, sK, sVp, sWQ, sWO, sBX, sWG, sWU = 4, 6, 8, 10, 12, 14, 16, 18
    sWD, sOUT, sDBG, sWS = 20, 22, 24, 26
    sE, sW, sH, sJ = 28, 29, 30, 31
    sT0, sT1, sT2, sT3 = 32, 33, 34, 35
    sB0, sB1, sB2, sB3 = 36, 38, 40, 42
    sM8, sM10, sTag8, sTag10, sT32 = 44, 45, 46, 47, 48
    sSpin, sTmp, sDummy = 49, 50, 51
    sPC = 52
    sB4 = 54
    sU, sFI = 56, 57
    sMean, sVar = 58, 59
    sBo, sBml = 60, 62
    sBfl = 94
    sB5, sInb = 98, 100
    sFl = 4
    sRep = 92
    sScale = 14
    sPROF = 64
    uid = [0]
    ST1, ST2, ST3 = opt.get("st1", 2048), opt.get("st2", 2048), opt.get("st3", 2048)
    XS = ["", " nt", " sc0"][opt.get("xsk", 0)] if opt.get("xs", 0) & 1 else " sc1"
    R2, R3 = opt.get("r2", 4), opt.get("r3", 16)
    RS2, RS3 = opt.get("rs2", 8), opt.get("rs3", 7)
    P2, P3 = opt.get("p2", 2), opt.get("p3", 1)
    vm = []

    def waitfor(name):
        n = len(vm) - 1 - vm.index(name)
        a("    s_waitcnt vmcnt(%d)" % n)

    STM = opt.get("stamps", 0xFFFF)

    def stamp(i):
        if opt.get("diagph") == i:
            a("    s_memrealtime s[90:91]")
        if prof and (STM >> i) & 1:
            a("    s_memrealtime %s" % s(sPROF + 2 * i, 2))

    def gstamp(i):
        if prof and opt.get("cst") == 2:
            a("    s_memtime %s" % s(sPROF + 2 * i, 2))

    def cstamp(i):
        if prof and opt.get("cst") == 1:
            a("    s_memtime %s" % s(sPROF + 2 * i, 2))

    def setexec(lo, hi):
        if lo == hi == 0xFFFFFFFF:
            a("    s_mov_b64 exec, -1")
        else:
            a("    s_mov_b32 exec_lo, 0x%x" % lo)
            a("    s_mov_b32 exec_hi, 0x%x" % hi)

    def base(dst, ptr, off_sreg):
        a("    s_add_u32 %s, %s, %s" % (s(dst), s(ptr), off_sreg))
        a("    s_addc_u32 %s, %s, 0" % (s(dst + 1), s(ptr + 1)))

    def finish():
        if prof:
            a("    s_branch L_PROF")
        else:
            a("    s_endpgm")

    def bf16r(dst, src):
        a("    v_cvt_pk_bf16_f32 %s, %s, %s" % (v(dst), v(src), v(src)))
        a("    v_and_b32 %s, 0xffff0000, %s" % (v(dst), v(dst)))

    def wavesum_to_sgpr(r, sd):
        for sh in (1, 2, 4, 8):
            a("    v_add_f32_dpp %s, %s, %s row_ror:%d %s" % (v(r), v(r), v(r), sh, DPP))
        a("    v_add_f32_dpp %s, %s, %s row_bcast:15 row_mask:0xa bank_mask:0xf" % (v(r), v(r), v(r)))
        a("    v_add_f32_dpp %s, %s, %s row_bcast:31 row_mask:0xc bank_mask:0xf" % (v(r), v(r), v(r)))
        a("    v_readlane_b32 %s, %s, 63" % (s(sd), v(r)))

    def tagcheck(regs, tagreg, tmp, first=True):
        for i, r in enumerate(regs):
            if first and i == 0:
                a("    v_xor_b32 %s, %s, %s" % (v(tmp), s(tagreg), v(r)))
            else:
                a("    v_bitop3_b32 %s, %s, %s, %s bitop3:0xf6" % (v(tmp), v(tmp), v(r), s(tagreg)))

    def poll(loads, check, firstwait, post=None, cnt=None, keepexec=False):
        uid[0] += 1
        u = uid[0]
        a("    s_mov_b32 %s, 0" % s(sSpin))
        a("    s_branch L_CHECK%d" % u)
        a("L_RETRY%d:" % u)
        a("    s_add_u32 %s, %s, 1" % (s(sSpin), s(sSpin)))
        a("    s_cmp_ge_u32 %s, 0x%x" % (s(sSpin), SPIN_LIMIT))
        a("    s_cbranch_scc1 L_OK%d" % u)
        a("    s_mov_b64 exec, vcc")
        loads()
        if firstwait:
            a("    s_waitcnt vmcnt(0)")
        a("L_CHECK%d:" % u)
        a("    s_waitcnt vmcnt(%d)" % firstwait)
        check()
        a("    s_cbranch_vccnz L_RETRY%d" % u)
        a("L_OK%d:" % u)
        a("    s_mov_b64 exec, -1")
        if prof and cnt is not None and (not opt.get("astamps") or cnt == 15):
            a("    s_mov_b32 %s, %s" % (s(sPROF + 2 * cnt), s(sSpin)))
        if post:
            post()

    def spoll(pair, off, rep, parts=1, rep3=False, tries=None, fail=None):
        uid[0] += 1
        u = uid[0]
        a("    s_mov_b32 %s, 0" % s(sSpin))
        depth = opt.get("spd", 1)
        if depth > 1:
            for k in range(4):
                a("    s_not_b64 %s, %s" % (s(sFl + 2 * k, 2), s(rep, 2)))
            a("L_SP%d:" % u)
            a("    s_add_u32 %s, %s, 1" % (s(sSpin), s(sSpin)))
            a("    s_cmp_ge_u32 %s, 0x%x" % (s(sSpin), SPIN_LIMIT))
            a("    s_cbranch_scc1 L_SPD%d" % u)
            a("    s_load_dwordx8 %s, %s, %s glc" % (s(sFl, 8), s(pair, 2), off))
            a("    s_waitcnt lgkmcnt(%d)" % (2 * depth - 2))
            for k in range(4):
                a("    s_cmp_eq_u64 %s, %s" % (s(sFl + 2 * k, 2), s(rep, 2)))
                a("    s_cbranch_scc0 L_SP%d" % u)
            a("L_SPD%d:" % u)
            return
        if parts > 1:
            base(sB0 if rep3 else sB1, pair, off)
        a("L_SP%d:" % u)
        if parts == 1:
            a("    s_load_dwordx8 %s, %s, %s glc" % (s(sFl, 8), s(pair, 2), off))
        else:
            n = 8 // parts
            for k in range(parts):
                a("    s_load_dword%s %s, %s, 0x%x glc" % ("" if n == 1 else "x%d" % n, s(sFl + n * k, n), s(sB0 if rep3 else sB1, 2), 128 * k))
        a("    s_add_u32 %s, %s, 1" % (s(sSpin), s(sSpin)))
        if tries is None:
            a("    s_cmp_ge_u32 %s, 0x%x" % (s(sSpin), SPIN_LIMIT))
        a("    s_waitcnt lgkmcnt(0)")
        if tries is None:
            a("    s_cbranch_scc1 L_SPD%d" % u)
        for k in range(4):
            a("    s_xor_b64 %s, %s, %s" % (s(sFl + 2 * k, 2), s(sFl + 2 * k, 2), s(rep, 2)))
        a("    s_or_b64 %s, %s, %s" % (s(sFl, 2), s(sFl, 2), s(sFl + 2, 2)))
        a("    s_or_b64 %s, %s, %s" % (s(sFl + 4, 2), s(sFl + 4, 2), s(sFl + 6, 2)))
        a("    s_or_b64 %s, %s, %s" % (s(sFl, 2), s(sFl, 2), s(sFl + 4, 2)))
        if tries is None:
            a("    s_cbranch_scc1 L_SP%d" % u)
        elif tries == 1:
            a("    s_cbranch_scc1 %s" % fail)
        else:
            a("    s_cbranch_scc0 L_SPD%d" % u)
            a("    s_cmp_lt_u32 %s, %d" % (s(sSpin), tries))
            a("    s_cbranch_scc1 L_SP%d" % u)
            a("    s_branch %s" % fail)
        a("L_SPD%d:" % u)

    def spoll2(offA, dist, rep, parts, bp, between=None, phase=0):
        assert not prof
        uid[0] += 1
        u = uid[0]
        sets = (sFl, 64)
        n = 8 // parts
        SENT = 0x5a5aa5a5
        if phase != 2:
            base(bp, sWS, offA)

        def issue(k):
            a("    s_mov_b32 %s, 0x%x" % (s(sets[k] + 7), SENT))
            for q in range(parts):
                a("    s_load_dword%s %s, %s, 0x%x glc" % ("x%d" % n, s(sets[k] + n * q, n), s(bp, 2), 128 * q + dist * k))
        if phase != 2:
            issue(0)
        if phase == 1:
            return
        issue(1)
        a("    s_mov_b32 %s, 0" % s(sSpin))
        for k in (0, 1):
            a("L_S2%d_%d:" % (u, k))
            if k == 0:
                a("    s_add_u32 %s, %s, 1" % (s(sSpin), s(sSpin)))
                a("    s_cmp_ge_u32 %s, 0x%x" % (s(sSpin), SPIN_LIMIT * 8))
                a("    s_cbranch_scc1 L_S2D%d" % u)
            a("    s_cmp_eq_u32 %s, 0x%x" % (s(sets[k] + 7), SENT))
            a("    s_cbranch_scc1 L_S2%d_%d" % (u, 1 - k))
            for q in range(4):
                a("    s_cmp_eq_u64 %s, %s" % (s(sets[k] + 2 * q, 2), s(rep, 2)))
                a("    s_cbranch_scc0 L_S2R%d_%d" % (u, k))
            a("    s_branch L_S2D%d" % u)
            a("L_S2R%d_%d:" % (u, k))
            issue(k)
            if k == 1:
                a("    s_branch L_S2%d_0" % u)
        a("L_S2D%d:" % u)

    def gather(loads, regs, tag, lowmask, acc, cnt=None, before=None, ordered=True, younger=0):
        uid[0] += 1
        u = uid[0]
        n = len(regs)

        def strip(i, first):
            r = regs[i]
            for k in range(4):
                a("    v_xor_b32 %s, %s, %s" % (v(r + k), s(tag), v(r + k)))
            if first:
                a("    v_or3_b32 %s, %s, %s, %s" % (v(vG0), v(r), v(r + 1), v(r + 2)))
                a("    v_or_b32 %s, %s, %s" % (v(vG0), v(vG0), v(r + 3)))
            else:
                a("    v_or3_b32 %s, %s, %s, %s" % (v(vG0), v(vG0), v(r), v(r + 1)))
                a("    v_or3_b32 %s, %s, %s, %s" % (v(vG0), v(vG0), v(r + 2), v(r + 3)))

        def verdict():
            a("    v_and_b32 %s, 0x%x, %s" % (v(vG0), lowmask, v(vG0)))
            a("    v_cmp_ne_u32 vcc, 0, %s" % v(vG0))
        a("    s_mov_b32 %s, 0" % s(sSpin))
        a("    s_branch L_FIRST%d" % u)
        a("L_RETRY%d:" % u)
        a("    s_add_u32 %s, %s, 1" % (s(sSpin), s(sSpin)))
        a("    s_cmp_ge_u32 %s, 0x%x" % (s(sSpin), SPIN_LIMIT))
        a("    s_cbranch_scc1 L_REDO%d" % u)
        a("    s_mov_b64 exec, vcc")
        loads()
        a("    s_waitcnt vmcnt(0)")
        for i in range(n):
            strip(i, i == 0)
        verdict()
        a("    s_cbranch_vccnz L_RETRY%d" % u)
        a("L_REDO%d:" % u)
        a("    s_mov_b64 exec, -1")
        for i in range(n):
            acc(i)
        a("    s_branch L_OK%d" % u)
        a("L_FIRST%d:" % u)
        if before:
            before()
        for i in range(n):
            if ordered or i == 0:
                a("    s_waitcnt vmcnt(%d)" % (n - 1 - i + younger if ordered else 0))
            if cnt == 13 and i in (0, n - 1):
                gstamp(4 if i == 0 else 5)
            strip(i, i == 0)
            if i == n - 1:
                verdict()
            acc(i)
        a("    s_cbranch_vccnz L_RETRY%d" % u)
        a("L_OK%d:" % u)
        if prof and cnt is not None and not opt.get("astamps"):
            a("    s_mov_b32 %s, %s" % (s(sPROF + 2 * cnt), s(sSpin)))

    def allred_hi(r, tmp, op):
        for sh in (4, 8):
            a("    v_%s_f32_dpp %s, %s, %s row_ror:%d %s" % (op, v(r), v(r), v(r), sh, DPP))
        for sw in ("16", "32"):
            a("    v_mov_b32 %s, %s" % (v(tmp), v(r)))
            a("    v_permlane%s_swap_b32 %s, %s" % (sw, v(r), v(tmp)))
            a("    v_%s_f32 %s, %s, %s" % (op, v(r), v(r), v(tmp)))

    def rowpack(r, dst, n, *fill):
        a("    v_mov_b32_dpp %s, %s quad_perm:[1,1,3,3] %s" % (v(r + 1), v(r), DPP))
        a("    v_cvt_pk_bf16_f32 %s, %s, %s" % (v(r + 1), v(r), v(r + 1)))
        for f in fill:
            f()
        for i in range(n):
            a("    v_mov_b32_dpp %s, %s row_newbcast:%d %s" % (v(dst + i), v(r + 1), 2 * i, DPP))

    def treduce4(r):
        a("    v_permlane32_swap_b32 %s, %s" % (v(r), v(r + 2)))
        a("    v_permlane32_swap_b32 %s, %s" % (v(r + 1), v(r + 3)))
        a("    v_add_f32 %s, %s, %s" % (v(r), v(r), v(r + 2)))
        a("    v_add_f32 %s, %s, %s" % (v(r + 1), v(r + 1), v(r + 3)))
        a("    v_permlane16_swap_b32 %s, %s" % (v(r), v(r + 1)))
        a("    v_add_f32 %s, %s, %s" % (v(r), v(r), v(r + 1)))

    hdr = open(os.path.join(os.path.dirname(os.path.abspath(__file__)), "..", "cdna_kernels", NAME + ".s.ref")).read()
    head = [l for l in hdr.split("\n") if l.startswith("; Kernarg") or l.startswith(";   offset")]
    out = "\n".join(head) + "\n"
    doc = """
One persistent launch: 256 workgroups (one per CU, all co-resident) x 8 waves.  wg = 8 j + h.
  every wg : LN(x), a 128-row x 64-column piece of q = LN(x) wq, then flash-decoding of KV head h
             over keys 128 j .. 128 j + 127 of the window (true max per chunk, combined later)
  j < 16   : combines the 32 chunks of head group h^4 for 64 of its dims and multiplies by a 256 x 64 piece of wo
  112 wgs  : h = x + attn, LN(h) folded around the products, 16 columns of gate / up, 16 rows of w_down;
             32 of their waves add the 112 partial results and write the output
Hand-offs go through d_ws with write-through stores.  Every word handed over carries a tag taken from an
epoch word (read at entry, advanced at the end), so a launch never takes an earlier launch's words for its own;
a consumer reloads until every tag matches.  Small hint words only tell a consumer when a first look is worth it.
All waits are bounded.
"""
    out += "".join("; " + l + "\n" for l in doc.strip().split("\n"))
    out += "; @launch grid=(256,1,1) block=(512,1,1) lds=%d\n" % LDS_BYTES
    a('.amdgcn_target "amdgcn-amd-amdhsa--gfx950"')
    a(".text")
    a(".globl %s_kernel" % NAME)
    a(".p2align 8")
    a(".type %s_kernel,@function" % NAME)
    a("%s_kernel:" % NAME)

    vL = 0
    vM = V(4, 4)
    vSink = V() if opt.get("vt", 0) else None
    vTag8, vTag10, vG0 = V(), V(), V()
    vL3, vL7, vG, vJ = V(), V(), V(), V()
    vRedW, vRedR, vRedR8, vC4 = V(), V(), V(), V()
    vD = V(4, 4)
    vT = V(8, 4)
    vV0 = V(4)
    vV1 = vV0 + 1
    vW = V(16, 4)
    vAk = V(4)
    vKo = V(4)
    vAq, vAqw, vAmw, vAmr, vAlw, vApw, vApr, vAv, vAo, vAlr, vQo = [V() for _ in range(11)]
    mk = V.mark()

    def attn_addresses():
        a("    s_lshl_b32 %s, %s, 12" % (s(sT0), s(sW)))
        a("    v_xor_b32 %s, %s, %s" % (v(vT), v(vJ), v(vG)))
        a("    v_lshlrev_b32 %s, 4, %s" % (v(vT), v(vT)))
        a("    v_lshl_or_b32 %s, %s, 8, %s" % (v(vT), v(vJ), v(vT)))
        a("    v_add_u32 %s, %s, %s" % (v(vAk), s(sT0), v(vT)))
        for i in (1, 2, 3):
            a("    v_xor_b32 %s, 0x%x, %s" % (v(vAk + i), 64 * i, v(vAk)))
        a("    v_and_b32 %s, 3, v0" % v(vT))
        a("    v_mul_u32_u24 %s, 272, %s" % (v(vT + 1), v(vT)))
        a("    v_lshl_add_u32 %s, %s, 4, %s" % (v(vT + 2), v(vG), v(vT + 1)))
        a("    v_add_u32 %s, 0x%x, %s" % (v(vAq), LQ, v(vT + 2)))
        a("    v_add_u32 %s, 0x%x, %s" % (v(vApr), LP, v(vT + 2)))
        a("    s_lshr_b32 %s, %s, 1" % (s(sT0), s(sW)))
        a("    s_and_b32 %s, %s, 1" % (s(sT1), s(sW)))
        a("    s_lshl_b32 %s, %s, 6" % (s(sT2), s(sT0)))
        a("    s_lshl_b32 %s, %s, 3" % (s(sT3), s(sT1)))
        a("    s_add_u32 %s, %s, %s" % (s(sT2), s(sT2), s(sT3)))
        a("    v_add_u32 %s, %s, %s" % (v(vApw), s(sT2), v(vApr)))
        a("    s_mul_i32 %s, %s, 272" % (s(sT0), s(sT0)))
        a("    s_lshl_b32 %s, %s, 7" % (s(sT1), s(sT1)))
        a("    s_add_u32 %s, %s, %s" % (s(sT0), s(sT0), s(sT1)))
        a("    s_add_u32 %s, %s, 0x%x" % (s(sT0), s(sT0), LQ))
        a("    v_lshl_add_u32 %s, %s, 2, %s" % (v(vT + 3), v(vJ), v(vG)))
        a("    v_lshl_add_u32 %s, %s, 1, %s" % (v(vAqw), v(vT + 3), s(sT0)))
        a("    v_lshlrev_b32 %s, 5, %s" % (v(vT + 1), v(vT)))
        a("    v_add_u32 %s, 0x%x, %s" % (v(vAmr), LMX, v(vT + 1)))
        a("    s_lshl_b32 %s, %s, 2" % (s(sT0), s(sW)))
        a("    v_add_u32 %s, %s, %s" % (v(vAmw), s(sT0), v(vAmr)))
        a("    s_lshl_b32 %s, %s, 4" % (s(sT0), s(sW)))
        a("    s_add_u32 %s, %s, 0x%x" % (s(sT0), s(sT0), LLS))
        a("    v_lshlrev_b32 %s, 7, %s" % (v(vT + 1), v(vT)))
        a("    v_lshl_add_u32 %s, %s, 2, %s" % (v(vT + 1), v(vG), v(vT + 1)))
        a("    v_add_u32 %s, %s, %s" % (v(vAlw), s(sT0), v(vT + 1)))
        a("    v_lshrrev_b32 %s, 2, v0" % v(vT + 1))
        a("    v_lshlrev_b32 %s, 3, %s" % (v(vT + 1), v(vT + 1)))
        a("    v_lshl_add_u32 %s, %s, 7, %s" % (v(vT + 1), v(vT), v(vT + 1)))
        a("    v_add_u32 %s, 0x%x, %s" % (v(vAlr), LLS, v(vT + 1)))
        a("    v_lshrrev_b32 %s, 2, %s" % (v(vT + 1), v(vJ)))
        a("    v_lshl_add_u32 %s, %s, 2, %s" % (v(vT + 1), v(vG), v(vT + 1)))
        a("    v_and_b32 %s, 7, %s" % (v(vT + 2), v(vT + 1)))
        a("    v_lshlrev_b32 %s, 1, %s" % (v(vT + 2), v(vT + 2)))
        a("    v_bfe_u32 %s, v0, 1, 1" % v(vT + 3))
        a("    s_lshl_b32 %s, %s, 1" % (s(sT0), s(sW)))
        a("    v_add_u32 %s, %s, %s" % (v(vT + 3), s(sT0), v(vT + 3)))
        a("    v_xor_b32 %s, %s, %s" % (v(vT + 2), v(vT + 2), v(vT + 3)))
        a("    v_lshlrev_b32 %s, 4, %s" % (v(vT + 2), v(vT + 2)))
        a("    v_lshl_or_b32 %s, %s, 8, %s" % (v(vT + 1), v(vT + 1), v(vT + 2)))
        a("    v_and_b32 %s, 1, v0" % v(vT + 2))
        a("    v_lshl_or_b32 %s, %s, 3, %s" % (v(vT + 1), v(vT + 2), v(vT + 1)))
        a("    v_add_u32 %s, 0x%x, %s" % (v(vAv), LV, v(vT + 1)))
        a("    s_lshl_b32 %s, %s, 5" % (s(sT0), s(sH)))
        a("    s_add_u32 %s, %s, %s" % (s(sT0), s(sT0), s(sJ)))
        a("    s_lshl_b32 %s, %s, 6" % (s(sT2), s(sT0)))
        a("    s_add_u32 %s, %s, 0x%x" % (s(sT2), s(sT2), S2ML))
        base(sBml, sWS, s(sT2))
        if opt.get("sb2", 0):
            per = 32 // P2
            a("    s_lshl_b32 %s, %s, %d" % (s(sT0), s(sH), RS2 + 4))
            a("    s_and_b32 %s, %s, %d" % (s(sT1), s(sJ), per - 1))
            a("    s_add_u32 %s, %s, %s" % (s(sT0), s(sT0), s(sT1)))
            a("    s_lshr_b32 %s, %s, %d" % (s(sT1), s(sJ), per.bit_length() - 1))
            a("    s_lshl_b32 %s, %s, 7" % (s(sT1), s(sT1)))
            a("    s_add_u32 %s, %s, %s" % (s(sT0), s(sT0), s(sT1)))
            a("    s_add_u32 %s, %s, 0x%x" % (s(sT0), s(sT0), SRDY))
            base(sBfl, sWS, s(sT0))

    a("    s_cmp_ge_u32 s2, 0x100")
    a("    s_cbranch_scc1 L_END")
    a("    s_load_dwordx16 s[4:19], s[0:1], 0x0")
    a("    s_load_dwordx8 s[20:27], s[0:1], 0x40")
    if opt.get("diagspin"):
        a("    s_memrealtime s[96:97]")
    if prof == 2:
        for i in range(1, 12):
            a("    s_mov_b32 %s, 0" % s(sPROF + 2 * i))
    stamp(0)
    vXo = vAo
    vXSo, vWQ0, vWQ1 = V(), V(), V()
    vXf = V(4, 4)
    vXs = V()
    vSS = V()
    KVM = 0
    OCLR = 0
    sIdx = sDummy + 0
    a("    v_lshrrev_b32 %s, 6, v0" % v(vT))
    a("    v_and_b32 v0, 63, v0")
    a("    s_lshr_b32 %s, s2, 3" % s(sJ))
    a("    v_readfirstlane_b32 %s, %s" % (s(sW), v(vT)))
    a("    s_and_b32 %s, s2, 7" % s(sH))
    a("    v_lshlrev_b32 %s, 4, v0" % v(vXo))
    a("    v_lshrrev_b32 %s, 3, v0" % v(vL3))
    a("    v_and_b32 %s, 0x70, %s" % (v(vT), v(vXo)))
    a("    v_lshlrev_b32 %s, 2, %s" % (v(vXSo), v(vL3)))
    a("    v_lshl_or_b32 %s, %s, 14, %s" % (v(vWQ0), v(vL3), v(vT)))
    a("    s_and_b32 %s, %s, 24" % (s(sT0), s(sJ)))
    a("    s_add_u32 %s, %s, %s" % (s(sT0), s(sT0), s(sW)))
    a("    s_and_b32 %s, %s, 7" % (s(sT3), s(sJ)))
    a("    s_lshl3_add_u32 %s, %s, %s" % (s(sT3), s(sH), s(sT3)))
    a("    s_lshl_b32 %s, %s, 10" % (s(sT1), s(sT0)))
    a("    s_add_u32 %s, %s, %s" % (s(sT1), s(sT1), s(sT3)))
    a("    s_lshl_b32 %s, %s, 7" % (s(sT1), s(sT1)))
    a("    s_lshl_b32 %s, %s, 5" % (s(sT0), s(sT0)))
    a("    v_add_u32 %s, 0x2000, %s" % (v(vWQ1), v(vWQ0)))

    def later():
        a("    v_lshrrev_b32 %s, 4, v0" % v(vG))
        a("    v_and_b32 %s, 15, v0" % v(vJ))
        a("    s_lshl3_add_u32 %s, %s, %s" % (s(sT3), s(sJ), s(sW)))
        a("    s_lshl_b32 %s, %s, 12" % (s(sT2), s(sH)))
        a("    v_xor_b32 %s, %s, %s" % (v(vT), v(vJ), v(vG)))
        a("    s_add_u32 %s, %s, %s" % (s(sT2), s(sT2), s(sT3)))
        a("    v_lshlrev_b32 %s, 4, %s" % (v(vT), v(vT)))
        a("    s_add_u32 %s, %s, 0xf00" % (s(sT2), s(sT2)))
        a("    v_lshl_or_b32 %s, %s, 8, %s" % (v(vKo), v(vG), v(vT)))
        a("    s_lshl_b32 %s, %s, 12" % (s(sT2), s(sT2)))
        a("    s_lshl_b32 %s, %s, 12" % (s(sTmp), s(sW)))
        a("    s_mov_b32 m0, %s" % s(sTmp))
    PL = opt.get("pl", 1)
    if not PL:
        later()
    ST0 = opt.get("st0", 0)
    if ST0:
        a("    v_mov_b32 %s, 0x%x" % (v(vSS), LSS))
        a("    v_mov_b32 %s, 0" % v(vT + 1))
        a("    s_cmp_lg_u32 %s, 0" % s(sW))
        a("    s_cbranch_scc1 L_NOZ")
        a("    ds_write_b32 %s, %s offset:12" % (v(vSS), v(vT + 1)))
        a("L_NOZ:")
    a.c("x, this wave's 16 rows of wq, first K piece (LDS-DMA, bank-swizzled through the source address)")
    a("    s_waitcnt lgkmcnt(0)")
    T2 = opt.get("touch2", 0)
    if T2:
        assert not PL
        a("    s_cmp_eq_u32 %s, 1" % s(sW))
        a("    s_cselect_b64 %s, %s, %s" % (s(sB4, 2), s(sWQ, 2), s(sK, 2)))
        a("    s_cselect_b32 %s, %s, %s" % (s(sDummy), s(sT1), s(sT2)))
        a("    s_cmp_gt_u32 %s, 1" % s(sW) if T2 == 1 else "    s_cmp_gt_u32 %s, 1" % s(sT3))
        a("    s_cbranch_scc1 L_NOT2")
        a("    s_load_dword %s, %s, %s" % (s(sDummy), s(sB4, 2), s(sDummy)))
        a("L_NOT2:")
    LN0 = opt.get("ln0", 0)
    if LN0:
        a("    s_cmp_lg_u32 %s, 0" % s(sW))
        a("    s_cbranch_scc1 L_NOX")
        a("    global_load_dwordx4 %s, %s, %s" % (v(vXf, 4), v(vXo), s(sX, 2)))
        a("L_NOX:")
        a("    s_add_u32 %s, %s, 0x%x" % (s(sB0), s(sT0), LH))
    else:
        if ST0:
            a("    s_cbranch_scc1 L_NOX")
        a("    global_load_dwordx4 %s, %s, %s" % (v(vXf, 4), v(vXo), s(sX, 2)))
        if ST0:
            a("L_NOX:")
        base(sB0, sX, s(sT0))
        a("    global_load_dword %s, %s, %s" % (v(vXs), v(vXSo), s(sB0, 2)))
    base(sB1, sWQ, s(sT1))
    if opt.get("bx", 0):
        a("    s_barrier")
    a("    global_load_dwordx4 %s, %s, %s nt" % (v(vW, 4), v(vWQ0), s(sB1, 2)))
    a("    global_load_dwordx4 %s, %s, %s nt" % (v(vW + 4, 4), v(vWQ1), s(sB1, 2)))
    vm.extend(["x", "xs", "wq0", "wq1"])
    if PL:
        later()
    base(sB2, sK, s(sT2))
    VT = opt.get("vt", 0)

    def vtouch():
        a("    s_cmp_lg_u32 %s, 7" % s(sW))
        a("    s_cbranch_scc1 L_NOVT")
        base(sB3, sVp, s(sT2))
        a("    s_lshl_b32 %s, %s, 19" % (s(sT1), s(sH)))
        base(sB4, sWO, s(sT1))
        a("    v_mov_b32 %s, %s" % (v(vD), s(sB3)))
        a("    v_mov_b32 %s, %s" % (v(vD + 1), s(sB3 + 1)))
        for k, p in enumerate((sWS, sB4, sWG, sWU, sWD)):
            a("    v_writelane_b32 %s, %s, %d" % (v(vD), s(p), k + 1))
            a("    v_writelane_b32 %s, %s, %d" % (v(vD + 1), s(p + 1), k + 1))
        a("    s_lshl_b32 %s, s2, 7" % s(sT1))
        a("    s_add_u32 %s, %s, 0x20000" % (s(sT1), s(sT1)))
        setexec(0x3E, 0)
        a("    v_add_co_u32 %s, vcc, %s, %s" % (v(vD), s(sT1), v(vD)))
        a("    v_addc_co_u32 %s, vcc, 0, %s, vcc" % (v(vD + 1), v(vD + 1)))
        setexec(0x3F, 0)
        a("    global_load_dword %s, %s, off nt" % (v(vSink), v(vD, 2)))
        setexec(0xFFFFFFFF, 0xFFFFFFFF)
        a("L_NOVT:")
    if VT == 1:
        vtouch()
    if opt.get("b0", 1):
        a("    s_barrier")
    WIN = opt.get("win", 3)
    QPOS = opt.get("qpos", 7)
    stream = ["wq0", "wq1", "K0", "K1", "K2", "K3", "V0", "V1", "V2", "V3"]

    def sload(i):
        nm = stream[i]
        k = int(nm[1])
        if KVM == 2:
            if nm[0] == "K":
                a("    s_add_u32 m0, %s, %s" % (s(92), s(sRot + k)))
                a("    global_load_lds_dwordx4 %s, %s nt" % (v(vKo + k), s(sB2, 2)))
            else:
                a("    s_add_u32 m0, %s, %s" % (s(sTmp), s(sRot + k)))
                a("    global_load_lds_dwordx4 %s, %s nt" % (v(vV0 + k), s(sB3, 2)))
        elif nm[0] == "K":
            a("    global_load_lds_dwordx4 %s, %s offset:%d nt" % (v(vKo + k), s(sB2, 2), 1024 * k))
        else:
            if k == 0:
                a("    s_mov_b32 m0, %s" % s(sTmp))
            a("    global_load_lds_dwordx4 %s, %s offset:%d nt" % (v(vV0 + k) if KVM else v(vV1 if k & 1 else vV0), s(sB3, 2), 1024 * k))
        vm.append(nm)
    assert WIN == 3
    WIN0 = opt.get("win0", WIN)
    for i in range(2, WIN0):
        if i > 2:
            a("    v_xor_b32 %s, 0x%x, %s" % (v(vKo + i - 2), 64 * (i - 2), v(vKo)))
        sload(i)
    if VT == 2:
        vtouch()
    base(sB3, sVp, s(sT2))
    for i in (1, 2, 3):
        a("    v_xor_b32 %s, 0x%x, %s" % (v(vKo + i), 64 * i, v(vKo)))
    a("    v_and_b32 %s, 7, v0" % v(vL7))
    a("    s_lshl_b32 %s, %s, 5" % (s(sT1), s(sH)))
    a("    s_add_u32 %s, %s, %s" % (s(sT1), s(sT1), s(sJ)))
    a("    s_mul_i32 %s, %s, %d" % (s(sT1), s(sT1), ST2))
    a("    s_lshl_b32 %s, %s, 8" % (s(sT0), s(sW)))
    a("    s_add_u32 %s, %s, %s" % (s(sT1), s(sT1), s(sT0)))
    a("    s_add_u32 %s, %s, 0x%x" % (s(sT1), s(sT1), S2O))
    base(sBo, sWS, s(sT1))
    E0 = opt.get("e0", 1)
    a("    s_lshl_b32 %s, %s, 3" % (s(sT0), s(sJ)))
    a("    s_add_u32 %s, %s, %s" % (s(sT0), s(sT0), s(sW)))
    if E0:
        a("    s_cmp_lg_u32 %s, %d" % (s(sW), 1 if LN0 else 0))
        a("    s_cbranch_scc1 L_NOE")
        if opt.get("prio", 0) in (1, 3, 4):
            a("    s_setprio 3")
    a("    s_load_dword %s, %s, 0x%x" % (s(sE), s(sWS, 2), EPOCH))
    a("L_NOE:")
    if opt.get("prio", 0) == 4:
        a("    s_cmp_lt_u32 %s, 5" % s(sW))
        a("    s_cbranch_scc1 L_NOPR4")
        a("    s_setprio 1")
        a("L_NOPR4:")
    if opt.get("prio", 0) in (2, 3):
        a("    s_cmp_lt_u32 %s, 4" % s(sW))
        a("    s_cbranch_scc1 L_NOPR")
        a("    s_setprio 1")
        a("L_NOPR:")
    a.c("prefetch: one line of this kernel's code per wave into L2, one touch per buffer that is first used later (values unused)")
    a("    s_getpc_b64 %s" % s(sPC, 2))
    a("L_PC:")
    def codepf(tag):
        a("    s_lshl3_add_u32 %s, %s, %s" % (s(sT1), s(sJ), s(sW)))
        a("    s_cmp_gt_u32 %s, (L_CODE_END-L_PC-4)/128" % s(sT1))
        a("    s_cbranch_scc1 L_NOPF%s" % tag)
        a("    s_lshl_b32 %s, %s, 7" % (s(sT1), s(sT1)))
        a("    s_load_dword %s, %s, %s" % (s(sDummy), s(sPC, 2), s(sT1)))
        a("L_NOPF%s:" % tag)
    PFL = opt.get("pfl", 0)
    if opt.get("pf", 1) and not PFL:
        codepf("")
    if opt.get("touch", 1):
        a("    s_xor_b32 %s, %s, %d" % (s(sT1), s(sH), opt.get("dh", 0)))
        a("    s_lshl_b32 %s, %s, 19" % (s(sT1), s(sT1)))
        base(sB4, sWO, s(sT1))
        for k, p in enumerate((sB3, sWG, sWU, sWD, sOUT)):
            a("    s_cmp_eq_u32 %s, %d" % (s(sT0), 8 * (17 + k) + 7))
            a("    s_cselect_b64 %s, %s, %s" % (s(sB4, 2), s(p, 2), s(sB4, 2)))
        a("    s_sub_u32 %s, %s, %d" % (s(sT1), s(sT0), 8 * 16 + 7))
        a("    s_and_b32 %s, %s, 0xffffffc7" % (s(sT3), s(sT1)))
        a("    s_cmp_lg_u32 %s, 0" % s(sT3))
        a("    s_cbranch_scc1 L_NOTOUCH")
        a("    s_load_dword %s, %s, 0x0" % (s(sDummy), s(sB4, 2)))
        a("L_NOTOUCH:")
    a("    v_lshlrev_b32 %s, 1, %s" % (v(vT), v(vG)))
    a("    v_xor_b32 %s, %s, %s" % (v(vT), v(vJ), v(vT)))
    a("    v_lshlrev_b32 %s, 4, %s" % (v(vT), v(vT)))
    a("    v_lshl_or_b32 %s, %s, 8, %s" % (v(vV0), v(vG), v(vT)))
    a("    v_xor_b32 %s, 0x80, %s" % (v(vV1), v(vV0)))
    if KVM == 2:
        for i in (3, 2, 1, 0):
            a("    s_lshr_b32 %s, %s, 3" % (s(sT0), s(sRot + i)))
            a("    s_and_b32 %s, %s, 0x80" % (s(sT0), s(sT0)))
            a("    s_or_b32 %s, %s, %s" % (s(sT0), s(sT0), s(sRot + i)))
            a("    v_xor_b32 %s, %s, %s" % (v(vV0 + i), s(sT0), v(vV0)))
    if KVM == 1:
        a("    v_add_u32 %s, 0x%x, %s" % (v(vV0 + 3), 7168 * 3, v(vV1)))
        a("    v_add_u32 %s, 0x%x, %s" % (v(vV0 + 2), 7168 * 2, v(vV0)))
        a("    v_add_u32 %s, 0x%x, %s" % (v(vV1), 7168, v(vV1)))
    a("    s_add_u32 %s, %s, 0x%x" % (s(sTmp), s(sTmp), LV))
    a("    v_and_b32 %s, 1, v0" % v(vT))
    a("    v_lshlrev_b32 %s, 4, %s" % (v(vT), v(vT)))
    a("    v_lshlrev_b32 %s, %s, %s" % (v(vT + 1), v(vT), v(vT + 2)) if False else
      "    v_mov_b32 %s, 0xffff" % v(vT + 1))
    a("    v_lshlrev_b32 %s, %s, %s" % (v(vT + 1), v(vT), v(vT + 1)))
    a("    v_lshrrev_b32 %s, 1, %s" % (v(vT), v(vL7)))
    for r in range(4):
        a("    v_cmp_eq_u32 vcc, %d, %s" % (r, v(vT)))
        a("    v_cndmask_b32 %s, 0, %s, vcc" % (v(vM + r), v(vT + 1)))
    a("    v_lshrrev_b32 %s, 5, v0" % v(vT))
    a("    s_lshl_b32 %s, %s, 1" % (s(sT0), s(sW)))
    a("    v_add_u32 %s, %s, %s" % (v(vT), s(sT0), v(vT)))
    a("    v_mul_u32_u24 %s, 272, %s" % (v(vT), v(vT)))
    a("    v_and_b32 %s, 1, %s" % (v(vT + 1), v(vG)))
    a("    v_lshl_or_b32 %s, %s, 1, %s" % (v(vT + 1), v(vL7), v(vT + 1)))
    a("    v_lshl_add_u32 %s, %s, 4, %s" % (v(vT), v(vT + 1), v(vT)))
    a("    v_add_u32 %s, 0x%x, %s" % (v(vRedW), LRED, v(vT)))
    a("    v_and_b32 %s, 3, v0" % v(vT))
    a("    v_lshl_add_u32 %s, %s, 2, %s" % (v(vC4), v(vG), v(vT)))
    a("    v_lshlrev_b32 %s, 4, %s" % (v(vC4), v(vC4)))
    a("    v_bfe_u32 %s, v0, 2, 2" % v(vT))
    a("    v_mul_u32_u24 %s, 544, %s" % (v(vT), v(vT)))
    a("    v_add_u32 %s, %s, %s" % (v(vT + 1), v(vC4), v(vT)))
    a("    v_add_u32 %s, 0x%x, %s" % (v(vRedR8), LRED, v(vT + 1)))
    a("    v_add_u32 %s, %s, %s" % (v(vRedR), v(vRedR8), v(vT)))
    a("    s_mov_b32 %s, 0x3db504f3" % s(sScale))
    a("    s_mov_b32 %s, 0x3fb8aa3b" % s(sScale + 1))
    a("    s_mov_b32 %s, 0xffffff00" % s(sM8))
    a("    s_mov_b32 %s, 0xfffffc00" % s(sM10))

    def s1bases():
        a("    s_mul_i32 %s, %s, %d" % (s(sT0), s(sH), 4 * ST1))
        a("    s_add_u32 %s, %s, 0x%x" % (s(sT0), s(sT0), S1))
        a("    s_lshr_b32 %s, %s, 3" % (s(sT1), s(sJ)))
        a("    s_mul_i32 %s, %s, %d" % (s(sT1), s(sT1), ST1 - 2048))
        a("    s_add_u32 %s, %s, %s" % (s(sT2), s(sT1), s(sT0)))
        a("    s_lshl_b32 %s, %s, 8" % (s(sT1), s(sJ)))
        a("    s_add_u32 %s, %s, %s" % (s(sT1), s(sT1), s(sT2)))
        base(sB0, sWS, s(sT1))
        a("    s_lshl_b32 %s, %s, 8" % (s(sT1), s(sW)))
        a("    s_add_u32 %s, %s, %s" % (s(sT1), s(sT1), s(sT0)))
        base(sB1, sWS, s(sT1))

    a.c("LayerNorm of x, rounded to bf16 where the reference rounds")
    vXu = V(8, 4)
    vXk = V(8, 4)
    if LN0:
        a("    v_add_u32 %s, %s, %s" % (v(vXSo), s(sB0), v(vXSo)))
        a("    s_cmp_lg_u32 %s, 0" % s(sW))
        a("    s_cbranch_scc1 L_NOLN")
    def qoff():
        a("    v_lshlrev_b32 %s, 4, %s" % (v(vQo), v(vJ)))
        a("    v_mul_u32_u24 %s, %d, %s" % (v(vG0), ST1, v(vG)))
        a("    v_add_u32 %s, %s, %s" % (v(vQo), v(vG0), v(vQo)))
    if opt.get("lq", 0):
        qoff()
        a("    v_mov_b32 %s, %s" % (v(vXu), "0x3b003b00" if opt["lq"] == 2 else "0x3f803f80"))
        if opt["lq"] == 2:
            a("    v_mov_b32 %s, 0x3727c5ac" % v(vXu + 1))
        s1bases()
    LNL = opt.get("lnl", 0)

    def k12():
        if not opt.get("k1p", 0):
            waitfor("wq0")
            for i in range(WIN0, WIN + 1):
                sload(i)
        waitfor("wq1")
        if not opt.get("k2p", 0):
            sload(WIN + 1)
    if ST0:
        a("    s_cmp_lg_u32 %s, 0" % s(sW))
        a("    s_cbranch_scc1 L_GETST")
    if LNL == 1:
        k12()
    else:
        waitfor("xs")
    stamp(1)
    LQ2 = opt.get("lq", 0)
    if LQ2:
        for i in range(4):
            a("    v_dot2_f32_bf16 %s, %s, %s, %s" % (v(vT + 1), v(vXf + i), v(vXf + i), "0" if i == 0 else v(vT + 1)))
            a("    v_dot2_f32_bf16 %s, %s, %s, %s" % (v(vT), v(vXf + i), v(vXu), "0" if i == 0 else v(vT)))
    else:
        for i in range(4):
            a("    v_lshlrev_b32 %s, 16, %s" % (v(vXu + 2 * i), v(vXf + i)))
            a("    v_and_b32 %s, 0xffff0000, %s" % (v(vXu + 2 * i + 1), v(vXf + i)))
        for i in range(4):
            a("    v_add_f32 %s, %s, %s" % (v(vT + i), v(vXu + 2 * i), v(vXu + 2 * i + 1)))
        a("    v_add_f32 %s, %s, %s" % (v(vT), v(vT), v(vT + 1)))
        a("    v_add_f32 %s, %s, %s" % (v(vT + 2), v(vT + 2), v(vT + 3)))
        a("    v_add_f32 %s, %s, %s" % (v(vT), v(vT), v(vT + 2)))
    if opt.get("ln1p", 0):
        if not LQ2:
            a("    v_mul_f32 %s, %s, %s" % (v(vT + 1), v(vXu), v(vXu)))
            a("    v_mul_f32 %s, %s, %s" % (v(vT + 2), v(vXu + 1), v(vXu + 1)))
            for i in range(2, 8):
                a("    v_fmac_f32 %s, %s, %s" % (v(vT + 1 + (i & 1)), v(vXu + i), v(vXu + i)))
            a("    v_add_f32 %s, %s, %s" % (v(vT + 1), v(vT + 1), v(vT + 2)))
        for sh in (1, 2, 4, 8):
            for r in range(2):
                a("    v_add_f32_dpp %s, %s, %s row_ror:%d %s" % (v(vT + r), v(vT + r), v(vT + r), sh, DPP))
        for pat in ("row_bcast:15 row_mask:0xa", "row_bcast:31 row_mask:0xc"):
            for r in range(2):
                a("    v_add_f32_dpp %s, %s, %s %s bank_mask:0xf" % (v(vT + r), v(vT + r), v(vT + r), pat))
        if LQ2 != 2:
            a("    v_mul_f32 %s, 0x3b000000, %s" % (v(vT), v(vT)))
        a("    v_mul_f32 %s, 0x3b000000, %s" % (v(vT + 1), v(vT + 1)))
        a("    v_fma_f32 %s, -%s, %s, %s" % (v(vT + 1), v(vT), v(vT), v(vT + 1)))
        a("    v_max_f32 %s, 0, %s" % (v(vT + 1), v(vT + 1)))
        if LQ2 == 2:
            a("    v_cvt_pk_bf16_f32 %s, %s, %s" % (v(vT), v(vT + 1), v(vT)))
            a("    v_lshlrev_b32 %s, 16, %s" % (v(vT + 4), v(vXs)))
            a("    v_readlane_b32 %s, %s, 63" % (s(sMean), v(vT)))
            a("    v_and_b32 %s, 0xffff0000, %s" % (v(vT + 5), v(vXs)))
            a("    s_lshl_b32 %s, %s, 16" % (s(sVar), s(sMean)))
            a("    s_and_b32 %s, %s, 0xffff0000" % (s(sMean), s(sMean)))
            a("    v_add_f32 %s, %s, %s" % (v(vT), s(sVar), v(vXu + 1)))
            a("    v_pk_add_f32 %s, %s, %s op_sel_hi:[1,0] neg_lo:[0,1] neg_hi:[0,1]" % (v(vT + 4, 2), v(vT + 4, 2), s(sMean, 2)))
            bf16r(vT, vT)
            a("    v_sqrt_f32 %s, %s" % (v(vT), v(vT)))
            a("    v_cvt_pk_bf16_f32 %s, %s, %s" % (v(vT + 5), v(vT + 4), v(vT + 5)))
            bf16r(vT, vT)
            a("    v_rcp_f32 %s, %s" % (v(vT + 2), v(vT)))
            if ST0:
                a("    v_mov_b32 %s, %s" % (v(vT + 1), s(sMean)))
                a("    v_mov_b32 %s, 1" % v(vT + 3))
                setexec(1, 0)
                a("    ds_write_b128 %s, %s" % (v(vSS), v(vT, 4)))
                setexec(0xFFFFFFFF, 0xFFFFFFFF)
                a("    s_branch L_HAVEST")
                a("L_GETST:")
                a("    s_mov_b32 %s, 0" % s(sSpin))
                a("L_STL:")
                a("    ds_read_b128 %s, %s" % (v(vT, 4), v(vSS)))
                a("    s_add_u32 %s, %s, 1" % (s(sSpin), s(sSpin)))
                a("    s_cmp_ge_u32 %s, 0x%x" % (s(sSpin), SPIN_LIMIT))
                a("    s_waitcnt lgkmcnt(0)")
                a("    s_cbranch_scc1 L_STD")
                a("    v_cmp_eq_u32 vcc, 0, %s" % v(vT + 3))
                a("    s_cbranch_vccnz L_STL")
                a("L_STD:")
                waitfor("xs")
                a("    v_lshlrev_b32 %s, 16, %s" % (v(vT + 4), v(vXs)))
                a("    v_and_b32 %s, 0xffff0000, %s" % (v(vT + 5), v(vXs)))
                a("    v_pk_add_f32 %s, %s, %s op_sel:[0,1] op_sel_hi:[1,1] neg_lo:[0,1] neg_hi:[0,1]" % (v(vT + 4, 2), v(vT + 4, 2), v(vT, 2)))
                a("    v_cvt_pk_bf16_f32 %s, %s, %s" % (v(vT + 5), v(vT + 4), v(vT + 5)))
                a("L_HAVEST:")
        else:
            a("    v_readlane_b32 %s, %s, 63" % (s(sMean), v(vT)))
            a("    v_readlane_b32 %s, %s, 63" % (s(sVar), v(vT + 1)))
    else:
        a("    v_mul_f32 %s, 0x3b000000, %s" % (v(vT), v(vT)))
        wavesum_to_sgpr(vT, sMean)
        if LNL == 2:
            k12()
        for i in range(8):
            a("    v_subrev_f32 %s, %s, %s" % (v(vXk + i), s(sMean), v(vXu + i)))
        a("    v_mul_f32 %s, %s, %s" % (v(vT), v(vXk), v(vXk)))
        a("    v_mul_f32 %s, %s, %s" % (v(vT + 1), v(vXk + 1), v(vXk + 1)))
        for i in range(2, 8):
            a("    v_fmac_f32 %s, %s, %s" % (v(vT + (i & 1)), v(vXk + i), v(vXk + i)))
        a("    v_add_f32 %s, %s, %s" % (v(vT), v(vT), v(vT + 1)))
        a("    v_mul_f32 %s, 0x3b000000, %s" % (v(vT), v(vT)))
        wavesum_to_sgpr(vT, sVar)
    if LQ2 != 2:
        a("    v_mov_b32 %s, %s" % (v(vT + 1), s(sMean)))
        bf16r(vT + 1, vT + 1)
        a("    v_mov_b32 %s, %s" % (v(vT), s(sVar)))
        bf16r(vT, vT)
        a("    v_add_f32 %s, 0x3727c5ac, %s" % (v(vT), v(vT)))
        bf16r(vT, vT)
        a("    v_sqrt_f32 %s, %s" % (v(vT), v(vT)))
        bf16r(vT, vT)
        a("    v_rcp_f32 %s, %s" % (v(vT + 2), v(vT)))
    vA = V(8, 4)
    if LN0:
        for i in range(0, 8, 2):
            a("    v_pk_add_f32 %s, %s, %s op_sel:[0,1] op_sel_hi:[1,1] neg_lo:[0,1] neg_hi:[0,1]" % (v(vXu + i, 2), v(vXu + i, 2), v(vT, 2)))
        for i in range(4):
            a("    v_cvt_pk_bf16_f32 %s, %s, %s" % (v(vXf + i), v(vXu + 2 * i), v(vXu + 2 * i + 1)))
        for i in range(4):
            a("    v_lshlrev_b32 %s, 16, %s" % (v(vXu + 2 * i), v(vXf + i)))
            a("    v_and_b32 %s, 0xffff0000, %s" % (v(vXu + 2 * i + 1), v(vXf + i)))
        for i in range(0, 8, 2):
            a("    v_pk_mul_f32 %s, %s, %s op_sel_hi:[1,0]" % (v(vXk + i, 2), v(vXu + i, 2), v(vT + 2, 2)))
        for i in range(0, 8, 2):
            a("    v_pk_fma_f32 %s, %s, %s, %s op_sel_hi:[1,0,1] neg_lo:[1,0,0] neg_hi:[1,0,0]" %
              (v(vXu + i, 2), v(vXk + i, 2), v(vT, 2), v(vXu + i, 2)))
        for i in range(0, 8, 2):
            a("    v_pk_fma_f32 %s, %s, %s, %s op_sel_hi:[1,0,1]" % (v(vXk + i, 2), v(vXu + i, 2), v(vT + 2, 2), v(vXk + i, 2)))
        for i in range(4):
            a("    v_cvt_pk_bf16_f32 %s, %s, %s" % (v(vXf + i), v(vXk + 2 * i), v(vXk + 2 * i + 1)))
        a("    v_add_u32 %s, 0x%x, %s" % (v(vT), LH, v(vXo)))
        a("    ds_write_b128 %s, %s" % (v(vT), v(vXf, 4)))
        a("    s_waitcnt lgkmcnt(0)")
        a("    s_load_dword %s, %s, 0x%x" % (s(sE), s(sWS, 2), EPOCH))
        a("L_NOLN:")
        a("    s_barrier")
        a("    ds_read_b32 %s, %s" % (v(vXs), v(vXSo)))
        a("    s_mov_b32 %s, 0x01000100" % s(sT0))
        a("    s_mov_b32 %s, 0x03020302" % s(sT1))

        def xoperand():
            a("    s_waitcnt lgkmcnt(0)")
            for i in range(2):
                a("    v_perm_b32 %s, %s, %s, %s" % (v(vT + 5 + i), v(vXs), v(vXs), s(sT0 + i)))
            for i in range(2):
                for r in range(4):
                    a("    v_and_b32 %s, %s, %s" % (v(vA + 4 * i + r), v(vT + 5 + i), v(vM + r)))
        if LN0 == 1:
            xoperand()
    elif LQ2:
        if LQ2 != 2:
            a("    v_lshlrev_b32 %s, 16, %s" % (v(vT + 4), v(vXs)))
            a("    v_and_b32 %s, 0xffff0000, %s" % (v(vT + 5), v(vXs)))
            a("    v_pk_add_f32 %s, %s, %s op_sel:[0,1] op_sel_hi:[1,1] neg_lo:[0,1] neg_hi:[0,1]" % (v(vT + 4, 2), v(vT + 4, 2), v(vT, 2)))
            a("    v_cvt_pk_bf16_f32 %s, %s, %s" % (v(vT + 5), v(vT + 4), v(vT + 5)))
        a("    v_lshlrev_b32 %s, 16, %s" % (v(vT + 4), v(vT + 5)))
        a("    v_and_b32 %s, 0xffff0000, %s" % (v(vT + 5), v(vT + 5)))
        a("    v_pk_mul_f32 %s, %s, %s op_sel_hi:[1,0]" % (v(vT + 6, 2), v(vT + 4, 2), v(vT + 2, 2)))
        a("    v_pk_fma_f32 %s, %s, %s, %s op_sel_hi:[1,0,1] neg_lo:[1,0,0] neg_hi:[1,0,0]" % (v(vT + 4, 2), v(vT + 6, 2), v(vT, 2), v(vT + 4, 2)))
        a("    v_pk_fma_f32 %s, %s, %s, %s op_sel_hi:[1,0,1]" % (v(vT + 6, 2), v(vT + 4, 2), v(vT + 2, 2), v(vT + 6, 2)))
        for i in range(2):
            a("    v_cvt_pk_bf16_f32 %s, %s, %s" % (v(vT + 6 + i), v(vT + 6 + i), v(vT + 6 + i)))
        for i in range(2):
            for r in range(4):
                a("    v_and_b32 %s, %s, %s" % (v(vA + 4 * i + r), v(vT + 6 + i), v(vM + r)))
    else:
        a("    v_lshlrev_b32 %s, 16, %s" % (v(vT + 3), v(vXs)))
        a("    v_and_b32 %s, 0xffff0000, %s" % (v(vT + 4), v(vXs)))
        a("    v_sub_f32 %s, %s, %s" % (v(vT + 3), v(vT + 3), v(vT + 1)))
        a("    v_sub_f32 %s, %s, %s" % (v(vT + 4), v(vT + 4), v(vT + 1)))
        bf16r(vT + 3, vT + 3)
        bf16r(vT + 4, vT + 4)
        for i in range(2):
            y, q = vT + 3 + i, vT + 5 + i
            a("    v_mul_f32 %s, %s, %s" % (v(q), v(y), v(vT + 2)))
            a("    v_fma_f32 %s, -%s, %s, %s" % (v(y), v(q), v(vT), v(y)))
            a("    v_fmac_f32 %s, %s, %s" % (v(q), v(y), v(vT + 2)))
            a("    v_cvt_pk_bf16_f32 %s, %s, %s" % (v(q), v(q), v(q)))
            for r in range(4):
                a("    v_and_b32 %s, %s, %s" % (v(vA + 4 * i + r), v(q), v(vM + r)))
    if not LQ2:
        qoff()

    def tags():
        a("    s_add_u32 %s, %s, 1" % (s(sT32), s(sE)))
        a("    s_and_b32 %s, %s, 0xff" % (s(sTag8), s(sT32)))
        a("    s_and_b32 %s, %s, 0x3ff" % (s(sTag10), s(sT32)))
        a("    v_mov_b32 %s, %s" % (v(vTag8), s(sTag8)))
        a("    v_mov_b32 %s, %s" % (v(vTag10), s(sTag10)))
    if not E0:
        a("    s_waitcnt lgkmcnt(0)")
        tags()
    a.c("q partial: one-hot A operand turns the row-major weight registers into a GEMV")
    def eblock():
        if E0:
            a("    s_cmp_lg_u32 %s, 0" % s(sW))
            a("    s_cbranch_scc1 L_NOE2")
            a("    s_waitcnt lgkmcnt(0)")
            tags()
            a("    v_mov_b32 %s, 0x%x" % (v(vT), LEP))
            a("    v_mov_b32 %s, %s" % (v(vT + 1), s(sE)))
            a("    ds_write_b32 %s, %s" % (v(vT), v(vT + 1)))
            if opt.get("la", 0):
                a("    v_mov_b32 %s, 0" % v(vT + 4))
                a("    v_mov_b32 %s, 0" % v(vT + 5))
                a("    v_lshlrev_b32 %s, 3, v0" % v(vT + 6))
                a("    v_add_u32 %s, 0x%x, %s" % (v(vT + 6), LGP, v(vT + 6)))
                a("    ds_write_b64 %s, %s" % (v(vT + 6), v(vT + 4, 2)))
            if opt.get("pg", 0):
                a("    v_mov_b32 %s, 0" % v(vT + 4))
                a("    ds_write_b32 %s, %s offset:%d" % (v(vT), v(vT + 4), LRM - LEP))
            if opt.get("amx", 1):
                a("    v_lshlrev_b32 %s, 2, v0" % v(vT + 2))
                a("    v_mov_b32 %s, 0xff800000" % v(vT + 3))
                a("    v_and_b32 %s, 0x7c, %s" % (v(vT + 2), v(vT + 2)))
                a("    v_add_u32 %s, 0x%x, %s" % (v(vT + 2), LMX, v(vT + 2)))
                a("    ds_write_b32 %s, %s" % (v(vT + 2), v(vT + 3)))
            a("L_NOE2:")
    if opt.get("eb2", 0) == 2:
        eblock()
    if not LNL:
        k12()
    if opt.get("k3p", 0) == 3:
        sload(5)
    if LN0 == 3:
        xoperand()
    stamp(2)
    a("    v_mfma_f32_16x16x32_bf16 %s, %s, %s, 0" % (v(vD, 4), v(vA, 4), v(vW, 4)))
    a("    v_mfma_f32_16x16x32_bf16 %s, %s, %s, %s" % (v(vD, 4), v(vA + 4, 4), v(vW + 4, 4), v(vD, 4)))
    if opt.get("k1p", 0) == 2:
        sload(3)
    if opt.get("k2p", 0) == 3:
        sload(4)

    def red_publish(nrows, tagv, mask, rnd, basepair, label, mid=None):
        a("    s_waitcnt lgkmcnt(0)")
        a("    s_barrier")
        a("    s_cmp_lg_u32 %s, 0" % s(sW))
        a("    s_cbranch_scc1 %s" % label)
        m = V.mark()
        r = V(16, 4)
        n = nrows // 4
        for i in range(n):
            a("    ds_read_b128 %s, %s offset:%d" % (v(r + 4 * i, 4), v(vRedR if n == 4 else vRedR8), 272 * i))
        if mid:
            mid()
        a("    s_waitcnt lgkmcnt(%d)" % (0 if prof else n - 2))
        a("    v_pk_add_f32 %s, %s, %s" % (v(r, 2), v(r, 2), v(r + 4, 2)))
        a("    v_pk_add_f32 %s, %s, %s" % (v(r + 2, 2), v(r + 2, 2), v(r + 6, 2)))
        if n == 4:
            a("    s_waitcnt lgkmcnt(0)")
            a("    v_pk_add_f32 %s, %s, %s" % (v(r + 8, 2), v(r + 8, 2), v(r + 12, 2)))
            a("    v_pk_add_f32 %s, %s, %s" % (v(r + 10, 2), v(r + 10, 2), v(r + 14, 2)))
            a("    v_pk_add_f32 %s, %s, %s" % (v(r, 2), v(r, 2), v(r + 8, 2)))
            a("    v_pk_add_f32 %s, %s, %s" % (v(r + 2, 2), v(r + 2, 2), v(r + 10, 2)))
        for sh in (4, 8):
            for i in range(4):
                a("    v_add_f32_dpp %s, %s, %s row_ror:%d %s" % (v(r + i), v(r + i), v(r + i), sh, DPP))
        for i in range(4):
            if rnd:
                a("    v_add_u32 %s, 0x%x, %s" % (v(r + i), rnd, v(r + i)))
        setexec(0x000F000F, 0x000F000F)
        for i in range(4):
            a("    v_and_or_b32 %s, %s, %s, %s" % (v(r + i), v(r + i), s(mask), v(tagv)))
        a("    global_store_dwordx4 %s, %s, %s%s" % (v(vC4), v(r, 4), s(basepair, 2), "" if (nrows == 16 and opt.get("xs", 0) & 4) else " sc1"))
        setexec(0xFFFFFFFF, 0xFFFFFFFF)
        V.release(m)

    if not opt.get("lq", 0):
        s1bases()
    V.release(mk)
    EB2 = opt.get("eb2", 0)
    if not EB2:
        eblock()
    setexec(0x00FF00FF, 0xFF00FF00)
    a("    ds_write_b128 %s, %s" % (v(vRedW), v(vD, 4)))
    setexec(0xFFFFFFFF, 0xFFFFFFFF)
    if opt.get("k1p", 0) == 1:
        sload(3)
    if opt.get("k2p", 0) == 1:
        sload(4)
    if EB2 == 1:
        eblock()
    if opt.get("k3p", 0) == 1:
        waitfor("K0")
        sload(5)
    if opt.get("k3p", 0) == 2:
        sload(5)
    vQ = V(4, 4)
    vQ2 = V(4, 4)
    QP1 = opt.get("qp1", 0)
    K3F = opt.get("k3f", 0)

    def k3first():
        waitfor("K0")
        sload(5)
    a.c("cross-wave sum, wave 0 publishes 64 tagged q partials; K / V keep streaming, three pieces in flight per wave")
    keep0 = list(vm)
    red_publish(16, vTag8, sM8, 0 if opt.get("nornd") else 0x80, sB0, "L_QPUB", mid=k3first if K3F else None)

    def qload():
        a("    global_load_dwordx4 %s, %s, %s sc1" % (v(vQ, 4), v(vQo), s(sB1, 2)))

    extra = {}
    CW = opt.get("cw", 0)
    C3 = opt.get("c3", 0)

    def run_sched(text):
        for tok in text.split():
            if tok[0] == "|":
                waitfor(tok[1:])
            elif tok == "q":
                qload()
                vm.append("q")
            elif tok in stream:
                sload(stream.index(tok))
            else:
                extra[tok]()
                if len(tok) > 1:
                    vm.append(tok)

    def paced(gete=False):
        stamp(3)
        assert WIN == 3
        if "K2" not in vm:
            run_sched("K2")
        if "K3" not in vm:
            run_sched(["|K0 K3", "|K0 K3 V0", "K3 |K0 V0", "|K1 K3", "|K0 K3"][CW])
        if gete:
            a("    s_waitcnt lgkmcnt(0)")
            a("    v_readfirstlane_b32 %s, %s" % (s(sE), v(vT + 7)))
            a("    s_nop 0")
            tags()
        if PFL:
            codepf("a" if gete else "b")
        attn_addresses()
        run_sched(["|K1 V0", "|K1 V1", "|K1 V1", "|K2 V0", "|K2 V0"][CW])
        if C3:
            run_sched("|K2 V1")
    keep = keep0
    vm.append("qstore")
    DQ = opt.get("dq", 0)
    sQF = 88
    if DQ:
        a("    s_and_b32 %s, %s, 7" % (s(sT0), s(sJ)))
        a("    s_lshl3_add_u32 %s, %s, %s" % (s(sT0), s(sH), s(sT0)))
        a("    s_lshl_b32 %s, %s, 5" % (s(sT0), s(sT0)))
        a("    s_lshr_b32 %s, %s, 3" % (s(sT1), s(sJ)))
        a("    s_add_u32 %s, %s, %s" % (s(sT0), s(sT0), s(sT1)))
        a("    s_lshl_b32 %s, %s, 2" % (s(sT0), s(sT0)))
        a("    s_add_u32 %s, %s, 0x%x" % (s(sT0), s(sT0), SQF))
        setexec(1, 0)
        a("    v_mov_b32 %s, %s" % (v(vT), s(sT0)))
        a("    v_mov_b32 %s, %s" % (v(vT + 1), s(sT32)))
        a("    global_store_dword %s, %s, %s sc1" % (v(vT), v(vT + 1), s(sWS, 2)))
        setexec(0xFFFFFFFF, 0xFFFFFFFF)
        vm.append("qflag")
    paced()
    a("    s_branch L_PACED")
    a("L_QPUB:")
    vm[:] = keep
    if E0:
        a("    v_mov_b32 %s, 0x%x" % (v(vT + 7), LEP))
        a("    ds_read_b32 %s, %s" % (v(vT + 7), v(vT + 7)))
    paced(E0)
    a("L_PACED:")
    if opt.get("pdrop", 0) == 1:
        a("    s_setprio 0")
    if DQ:
        a("    s_lshl3_add_u32 %s, %s, %s" % (s(sT0), s(sH), s(sW)))
        a("    s_lshl_b32 %s, %s, 7" % (s(sT0), s(sT0)))
        a("    s_add_u32 %s, %s, 0x%x" % (s(sT0), s(sT0), SQF))
        a("    s_load_dwordx4 %s, %s, %s glc" % (s(sQF, 4), s(sWS, 2), s(sT0)))
        a("    s_mov_b32 %s, %s" % (s(sRep), s(sT32)))
        a("    s_mov_b32 %s, %s" % (s(sRep + 1), s(sT32)))
    common = list(vm)
    SCHED = {
        "s": ["|K2 V1 |K3 V2 q |V0 V3"],
        "w": ["|K2 V1 |K3 V2 q |V0 V3 A |V1 T0 B",
              "|K2 V1 |K3 V2 q |V0 V3 A T0 |V1 T1 B",
              "|K2 V1 |K3 V2 q V3 A |V0 T0 |V1 T1 B",
              "|K2 V1 |K3 V2 q V3 A |V0 T0 |V1 T1 T2 B",
              "|K2 V1 |K3 V2 q |V0 V3 A B",
              "|K2 V1 V2 |K3 V3 q A |V0 T0 |V1 T1 B |V2 T2",
              "|K2 V1 |K3 V2 q |V0 V3 A T0 |V1 T1",
              "|K2 V1 |K3 V2 q |V0 V3 A |V1 T0"],
        "f": ["|K2 V1 |K3 V2 q |V0 V3 A",
              "|K2 V1 |K3 V2 q |V0 V3 A |V1 D0 D1",
              "|K2 V1 |K3 V2 q |V0 V3 A D0 |V1 D1",
              "|K2 V1 |K3 V2 q |V0 V3 A |V1 D0",
              "|K2 V1 |K3 V2 q |V0 V3 A |V1 Qa"],
    }
    if C3:
        SCHED = {k_: [x_.replace("|K2 V1 ", "", 1) for x_ in v_] for k_, v_ in SCHED.items()}
    if opt.get("qe", 0) == 1:
        SCHED = {k_: [x_.replace("|K3 V2 q ", "q |K3 V2 ", 1) for x_ in v_] for k_, v_ in SCHED.items()}
    if opt.get("qe", 0) == 2:
        SCHED = {k_: [x_.replace("|K3 V2 q ", "|K3 q V2 ", 1) for x_ in v_] for k_, v_ in SCHED.items()}
    if opt.get("pt", 0):
        def pretouch():
            setexec(0xFFFF, 0)
            a("    global_load_dwordx4 %s, %s, %s%s" % (v(vQ2, 4), v(vAo), s(sBo, 2), ["", "", " nt"][opt["pt"]]))
            setexec(0xFFFFFFFF, 0xFFFFFFFF)
        extra["PT"] = pretouch
        SCHED = {k_: [x_.replace("|V0 V3", "|V0 V3 PT") for x_ in v_] for k_, v_ in SCHED.items()}
    QV = opt.get("qv", 0)
    if QV:
        old_, new_ = "|K2 V1 |K3 V2 q |V0 V3", ["", "|K2 V1 |K3 q V2 |V0 V3", "|K2 V1 |K3 V2 |V0 q V3", "|K2 V1 |K3 V2 |V0 V3 q",
                                                 "|K2 V1 |K3 q V2 V3", "|K3 q V1 V2 V3", "|K2 V1 |K3 q V2 V3 |V0"][QV]
        SCHED = {k_: [x_.replace(old_, new_) for x_ in v_] for k_, v_ in SCHED.items()}
    if CW >= 3:
        hd = ["|K3 q V1 V2 |V0 V3", "|K3 V1 q V2 |V0 V3", "|K3 V1 q |V0 V2 V3", "|K3 V1 V2 q |V0 V3"][opt.get("cv", 0)]
        SCHED = {k_: [x_.replace("|K2 V1 |K3 V2 q |V0 V3", hd) for x_ in v_] for k_, v_ in SCHED.items()}
    elif CW:
        SCHED = {
            "s": ["|K2 V2 |K3 V3 q"],
            "w": ["|K2 V2 |K3 V3 q A |V0 T0 |V1 T1 B |V2 T2",
                  "|K2 V2 |K3 V3 q A |V0 T0 |V1 T1 B |V2 T2 |V3 T3",
                  "|K2 V2 |K3 V3 q A |V1 T0 B |V2 T1",
                  "|K2 V2 |K3 V3 A |V0 q T0 |V1 T1 B |V2 T2"],
            "f": ["|K2 V2 |K3 V3 q A", "|K2 V2 |K3 V3 q A |V0 D0 |V1 D1", "|K2 V2 |K3 V3 A |V0 q D0 |V1 D1"],
        }
        if opt.get("ss"):
            SCHED["s"] = ["|K2 V2 |K3 V3 |V0 q"]
    a.c("roles after the attention part: j < 16 output projection, 112 workgroups FFN, 16 workgroups attention only")
    a("    s_cmp_lt_u32 %s, 16" % s(sJ))
    a("    s_cbranch_scc1 L_ROLE_WO")
    a("    s_cmp_lt_u32 %s, 4" % s(sH))
    a("    s_cbranch_scc1 L_ROLE_FFN")
    a("    s_cmp_lt_u32 %s, 28" % s(sJ))
    a("    s_cbranch_scc1 L_ROLE_FFN")

    def attention(sched, t0=(), t1=(), w0extra=None):
        m0 = V.mark()
        vKa = V(16, 4)
        vQb = V(16, 4)
        vPb = vQb
        vVa = vKa
        vS = V(4, 4)
        vMx, vMl = V(), V(4, 4)
        def kreads():
            for i in range(4):
                a("    ds_read_b128 %s, %s" % (v(vKa + 4 * i, 4), v(vAk + i)))

        vm[:] = common
        if DQ:
            uid[0] += 1
            ud = uid[0]
            head = "|K2 V1 "
            assert sched.startswith(head + "|K3 V2 q |V0 V3")
            run_sched(head)
            if DQ == 2:
                a("    s_getreg_b32 %s, hwreg(HW_REG_IB_STS, 8, 4)" % s(sT0))
                a("    s_cmp_lg_u32 %s, 0" % s(sT0))
                a("    s_cbranch_scc1 L_QLATE%d" % ud)
            a("    s_waitcnt lgkmcnt(0)")
            a("    s_xor_b64 %s, %s, %s" % (s(sQF, 2), s(sQF, 2), s(sRep, 2)))
            a("    s_xor_b64 %s, %s, %s" % (s(sQF + 2, 2), s(sQF + 2, 2), s(sRep, 2)))
            a("    s_or_b64 %s, %s, %s" % (s(sQF, 2), s(sQF, 2), s(sQF + 2, 2)))
            a("    s_cbranch_scc1 L_QLATE%d" % ud)
            mid = list(vm)
            rest_ = sched[len(head + "|K3 V2 q |V0 V3"):]
            run_sched("q |K3 V2 |V0 V3 " + " ".join(t for t in rest_.split() if t[0] != "|"))
            kreads()
            waitfor("q")
            early = [t for t in vm if t != "q"]
            a("    s_branch L_QJOIN%d" % ud)
            a("L_QLATE%d:" % ud)
            vm[:] = mid
            run_sched(sched[len(head):])
            kreads()
            waitfor("q")
            assert early == [t for t in vm if t != "q"]
            a("L_QJOIN%d:" % ud)
            NVA = 63
        else:
            run_sched(sched)
            kreads()
            NVA = len(vm) - 1 - vm.index("q")
        ntail = len(vm) - 1 - vm.index("V3") + len(t0)
        tp = ()
        def qcheck():
            for k in range(4):
                a("    v_xor_b32 %s, %s, %s" % (v(vQ + k), s(sTag8), v(vQ + k)))
            a("    v_or3_b32 %s, %s, %s, %s" % (v(vT), v(vQ), v(vQ + 1), v(vQ + 2)))
            a("    v_or_b32 %s, %s, %s" % (v(vT), v(vT), v(vQ + 3)))
            a("    v_and_b32 %s, 0xff, %s" % (v(vT), v(vT)))
            a("    v_cmp_ne_u32 vcc, 0, %s" % v(vT))
        SB2 = opt.get("sb2", 0)

        def sflag(t=vT):
            setexec((1 << R2) - 1, 0)
            a("    v_lshlrev_b32 %s, %d, v0" % (v(t), RS2))
            a("    global_store_byte %s, %s, %s%s" % (v(t), v(vTag8), s(sBfl, 2), "" if opt.get("xs", 0) & 2 else " sc1"))
            setexec(0xFFFFFFFF, 0xFFFFFFFF)

        def w0flag():
            uid[0] += 1
            a("    s_cmp_lg_u32 %s, 0" % s(sW))
            a("    s_cbranch_scc1 L_NF%d" % uid[0])
            sflag(vG0)
            a("L_NF%d:" % uid[0])
        RDY = opt.get("rdy", 0)

        def rdyhint():
            uid[0] += 1
            a("    s_cmp_lg_u32 %s, 7" % s(sW))
            a("    s_cbranch_scc1 L_NORDY%d" % uid[0])
            setexec(1, 0)
            a("    v_mov_b32 %s, 0x%x" % (v(vG0), SRDY - S2ML))
            a("    v_mov_b32 %s, %s" % (v(vMx), s(sT32)))
            a("    global_store_dword %s, %s, %s sc1" % (v(vG0), v(vMx), s(sBml, 2)))
            setexec(0xFFFFFFFF, 0xFFFFFFFF)
            a("L_NORDY%d:" % uid[0])
        a.c("q: sum of the four row partials -> bf16 -> LDS; scores, chunk max, exp, P V")
        MB = opt.get("mb", 1)
        AMX = opt.get("amx", 1)
        if QP1:
            uid[0] += 1
            uq = uid[0]
            a("    s_waitcnt vmcnt(%d)" % (len(vm) - 1 - vm.index("q1") + len(tp)))
            qcheck()
            a("    s_cbranch_vccz L_QOK%d" % uq)
            a("    s_waitcnt vmcnt(%d)" % (NVA + len(tp)))
            for i in range(0, 4, 2):
                a("    v_mov_b64 %s, %s" % (v(vQ + i, 2), v(vQ2 + i, 2)))
            poll(qload, qcheck, NVA + len(tp), cnt=15 if opt.get("astamps") else None)
            a("L_QOK%d:" % uq)
        else:
            poll(qload, qcheck, NVA + len(tp), cnt=15 if opt.get("astamps") else None)
        stamp(4)
        treduce4(vQ)
        a("    v_cvt_pk_bf16_f32 %s, %s, %s" % (v(vQ), v(vQ), v(vQ)))
        a("    ds_write_b16 %s, %s" % (v(vAqw), v(vQ)))
        a("    s_waitcnt lgkmcnt(0)")
        a("    s_barrier")
        for i in range(4):
            a("    ds_read_b128 %s, %s offset:%d" % (v(vQb + 4 * i, 4), v(vAq), 64 * i))
        if SB2 == 7:
            w0flag()
        T0P = opt.get("t0p", 1)
        if T0P == 0:
            for f in t0:
                f()
        for i in range(4):
            a("    s_waitcnt lgkmcnt(%d)" % (0 if prof else 3 - i))
            a("    v_mfma_f32_16x16x32_bf16 %s, %s, %s, %s" %
              (v(vD, 4), v(vKa + 4 * i, 4), v(vQb + 4 * i, 4), "0" if i == 0 else v(vD, 4)))
        if T0P == 1:
            for f in t0:
                f()
        a("    v_cvt_pk_bf16_f32 %s, %s, %s" % (v(vT), v(vD), v(vD + 1)))
        a("    v_cvt_pk_bf16_f32 %s, %s, %s" % (v(vT + 1), v(vD + 2), v(vD + 3)))
        for rnd in range(2):
            for i in range(2):
                a("    v_lshlrev_b32 %s, 16, %s" % (v(vS + 2 * i), v(vT + i)))
                a("    v_and_b32 %s, 0xffff0000, %s" % (v(vS + 2 * i + 1), v(vT + i)))
            if rnd == 0:
                for i in (0, 2):
                    a("    v_pk_mul_f32 %s, %s, %s op_sel_hi:[1,0]" % (v(vS + i, 2), v(vS + i, 2), s(sScale, 2)))
                a("    v_cvt_pk_bf16_f32 %s, %s, %s" % (v(vT), v(vS), v(vS + 1)))
                a("    v_cvt_pk_bf16_f32 %s, %s, %s" % (v(vT + 1), v(vS + 2), v(vS + 3)))
        a("    v_max3_f32 %s, %s, %s, %s" % (v(vMx), v(vS), v(vS + 1), v(vS + 2)))
        a("    v_max_f32 %s, %s, %s" % (v(vMx), v(vMx), v(vS + 3)))
        if AMX:
            setexec(0x000F000F, 0x000F000F)
            a("    ds_max_f32 %s, %s" % (v(vAmr), v(vMx)))
        else:
            for sw in ("16", "32"):
                a("    v_mov_b32 %s, %s" % (v(vT), v(vMx)))
                a("    v_permlane%s_swap_b32 %s, %s" % (sw, v(vMx), v(vT)))
                a("    v_max_f32 %s, %s, %s" % (v(vMx), v(vMx), v(vT)))
            setexec(0xF, 0)
            a("    ds_write_b32 %s, %s" % (v(vAmw), v(vMx)))
        setexec(0xFFFFFFFF, 0xFFFFFFFF)
        if T0P == 2:
            for f in t0:
                f()
        VB3 = opt.get("vb3", 0)

        def vreads(t):
            for hh in range(2):
                a("    ds_read_b64_tr_b16 %s, %s offset:%d" % (v(vVa + 4 * t + 2 * hh, 2), v(vAv), 8192 * t + 4096 * hh))
        if VB3:
            assert MB
            a("    s_waitcnt vmcnt(%d) lgkmcnt(0)" % ntail)
            for f in t1:
                f()
        else:
            a("    s_waitcnt lgkmcnt(0)")
        if RDY == 1:
            rdyhint()
        a("    s_barrier")
        if AMX:
            a("    ds_read_b32 %s, %s" % (v(vMl), v(vAmr)))
            if RDY == 2:
                rdyhint()
            if VB3:
                for t in range(4):
                    vreads(t)
            a("    s_waitcnt lgkmcnt(%d)" % (8 if VB3 and not prof else 0))
        else:
            a("    ds_read_b128 %s, %s" % (v(vT, 4), v(vAmr)))
            a("    ds_read_b128 %s, %s offset:16" % (v(vT + 4, 4), v(vAmr)))
            if SB2 == 5:
                w0flag()
            if VB3:
                for t in range(4):
                    vreads(t)
            a("    s_waitcnt lgkmcnt(%d)" % (8 if VB3 and not prof else 0))
            a("    v_max3_f32 %s, %s, %s, %s" % (v(vT), v(vT), v(vT + 1), v(vT + 2)))
            a("    v_max3_f32 %s, %s, %s, %s" % (v(vT + 4), v(vT + 4), v(vT + 5), v(vT + 6)))
            a("    v_max3_f32 %s, %s, %s, %s" % (v(vT), v(vT), v(vT + 3), v(vT + 7)))
            a("    v_max_f32 %s, %s, %s" % (v(vMl), v(vT), v(vT + 4)))
        for i in (0, 2):
            a("    v_pk_add_f32 %s, %s, %s op_sel_hi:[1,0] neg_lo:[0,1] neg_hi:[0,1]" % (v(vS + i, 2), v(vS + i, 2), v(vMl, 2)))
        for i in (0, 2):
            a("    v_pk_mul_f32 %s, %s, %s op_sel:[0,1] op_sel_hi:[1,1]" % (v(vS + i, 2), v(vS + i, 2), s(sScale, 2)))
        for i in range(4):
            a("    v_exp_f32 %s, %s" % (v(vS + i), v(vS + i)))
        a("    v_cvt_pk_bf16_f32 %s, %s, %s" % (v(vT + 2), v(vS), v(vS + 1)))
        a("    v_cvt_pk_bf16_f32 %s, %s, %s" % (v(vT + 3), v(vS + 2), v(vS + 3)))
        setexec(0x000F000F, 0x000F000F)
        a("    ds_write_b64 %s, %s" % (v(vApw), v(vT + 2, 2)))
        a("    v_pk_add_f32 %s, %s, %s" % (v(vT, 2), v(vS, 2), v(vS + 2, 2)))
        a("    v_add_f32 %s, %s, %s" % (v(vT), v(vT), v(vT + 1)))
        a("    ds_write_b32 %s, %s" % (v(vAlw), v(vT)))
        setexec(0xFFFFFFFF, 0xFFFFFFFF)
        if SB2 == 6:
            w0flag()
        if MB and not VB3:
            a("    s_waitcnt vmcnt(%d) lgkmcnt(0)" % ntail)
            for f in t1:
                f()
        else:
            a("    s_waitcnt lgkmcnt(0)")
        a("    s_barrier")
        if opt.get("astamps"):
            stamp(13)
        if RDY == 3:
            rdyhint()
        uid[0] += 1
        u = uid[0]

        def preads():
            for i in range(4):
                a("    ds_read_b128 %s, %s offset:%d" % (v(vPb + 4 * i, 4), v(vApr), 64 * i))

        def mlpub():
            a("    v_add_f32 %s, %s, %s" % (v(vMl + 2), v(vT), v(vT + 1)))
            allred_hi(vMl + 2, vT, "add")
            setexec(0xF, 0)
            a("    global_store_dwordx4 %s, %s, %s%s" % (v(vAo), v(vMl, 4), s(sBml, 2), XS))
            setexec(0xFFFFFFFF, 0xFFFFFFFF)

        def pv(first):
            for t in range(4):
                a("    s_waitcnt lgkmcnt(%d)" % (0 if prof else first[t]))
                a("    v_mfma_f32_16x16x32_bf16 %s, %s, %s, %s" %
                  (v(vD, 4), v(vPb + 4 * t, 4), v(vVa + 4 * t, 4), "0" if t == 0 else v(vD, 4)))
        if MB:
            a("    ds_read_b64 %s, %s" % (v(vT, 2), v(vAlr)))
            for t in range(4):
                a("    ds_read_b128 %s, %s offset:%d" % (v(vPb + 4 * t, 4), v(vApr), 64 * t))
                if not VB3:
                    vreads(t)
            a("    v_mov_b32 %s, %s" % (v(vMl + 1), s(sT32)))
            a("    v_mov_b32 %s, %s" % (v(vMl + 3), s(sT32)))
            a("    s_cmp_lg_u32 %s, 0" % s(sW))
            a("    s_cbranch_scc1 L_NOML%d" % u)
            if SB2 in (1, 3):
                sflag(vT + 2)
            a("    s_waitcnt lgkmcnt(%d)" % (0 if prof else (4 if VB3 else 12)))
            mlpub()
            if SB2 in (2, 4):
                sflag(vT + 2)
            a("L_NOML%d:" % u)
            pv([3, 2, 1, 0] if VB3 else [9, 6, 3, 0])
        else:
            preads()
            a("    s_cmp_lg_u32 %s, 0" % s(sW))
            a("    s_cbranch_scc1 L_NOML%d" % u)
            a("    ds_read_b64 %s, %s" % (v(vT, 2), v(vAlr)))
            if SB2 == 3:
                sflag(vT + 2)
            if SB2 == 4:
                a("    s_waitcnt vmcnt(%d)" % ntail)
                sflag(vT + 2)
            a("    v_mov_b32 %s, %s" % (v(vMl + 1), s(sT32)))
            a("    v_mov_b32 %s, %s" % (v(vMl + 3), s(sT32)))
            a("    s_waitcnt lgkmcnt(0)")
            mlpub()
            nx = w0extra() if w0extra else 0
            if SB2 in (3, 4, 5, 6, 7):
                nx += 1
            if SB2 == 1:
                sflag()
                nx += 1
            a("    s_waitcnt vmcnt(%d)" % (1 + nx + ntail))
            if SB2 == 2:
                sflag()
            a("    s_branch L_MLD%d" % u)
            a("L_NOML%d:" % u)
            a("    s_waitcnt vmcnt(%d)" % ntail)
            a("L_MLD%d:" % u)
            if opt.get("astamps"):
                stamp(14)
            for f in t1:
                f()
            a("    s_barrier")
            stamp(5)
            for t in range(4):
                vreads(t)
            pv([6, 4, 2, 0])
        setexec(0xFFFF, 0)
        if OCLR:
            a("    v_min_u32 %s, -2, %s" % (v(vD), v(vD)))
        else:
            for i in range(4):
                a("    v_and_or_b32 %s, %s, %s, %s" % (v(vD + i), v(vD + i), s(sM10), v(vTag10)))
        a("    global_store_dwordx4 %s, %s, %s%s" % (v(vAo), v(vD, 4), s(sBo, 2), XS))
        setexec(0xFFFFFFFF, 0xFFFFFFFF)
        stamp(6)
        if opt.get("ackstamp") and not w0extra:
            a("    s_waitcnt vmcnt(0)")
            stamp(1)
        V.release(m0)

    attention(SCHED["s"][0])
    finish()

    a("L_ROLE_WO:")
    mrole = V.mark()
    sD0 = sU
    vWo = V(4)

    def wo_setup():
        if opt.get("dh", 0):
            a("    s_%s_b32 %s, %s, %d" % ("xor", s(sH), s(sH), opt["dh"]))
        a("    s_lshr_b32 %s, %s, 3" % (s(sT1), s(sJ)))
        a("    s_lshl_b32 %s, %s, 3" % (s(sT1), s(sT1)))
        a("    s_add_u32 %s, %s, %s" % (s(sT1), s(sT1), s(sW)))
        a("    s_lshl_b32 %s, %s, 3" % (s(sD0), s(sT1)))
        a("    s_lshl_b32 %s, %s, 9" % (s(sT0), s(sH)))
        a("    s_add_u32 %s, %s, %s" % (s(sT0), s(sT0), s(sD0)))
        a("    s_lshl_b32 %s, %s, 10" % (s(sT0), s(sT0)))
        a("    s_and_b32 %s, %s, 7" % (s(sT1), s(sJ)))
        a("    s_lshl_b32 %s, %s, 7" % (s(sT1), s(sT1)))
        a("    s_add_u32 %s, %s, %s" % (s(sT0), s(sT0), s(sT1)))
        base(sB4, sWO, s(sT0))
        a("    v_lshlrev_b32 %s, 4, %s" % (v(vWo), v(vL7)))
        a("    v_lshl_or_b32 %s, %s, 10, %s" % (v(vWo), v(vL3), v(vWo)))
        for i in (1, 2, 3):
            a("    v_add_u32 %s, 0x%x, %s" % (v(vWo + i), i * (131072 - 1024), v(vWo)))
        a("    s_lshl_b32 %s, %s, 12" % (s(sFI), s(sW)))
        a("    s_add_u32 %s, %s, 0x%x" % (s(sFI), s(sFI), LG))

    def woload(i):
        def f():
            if i == 0:
                a("    s_mov_b32 m0, %s" % s(sFI))
            a("    global_load_lds_dwordx4 %s, %s offset:%d nt" % (v(vWo + i), s(sB4, 2), 1024 * i))
        return f
    vOo = V(4)
    vAtr, vAw, vArw = [V() for _ in range(3)]
    vO = V(16, 4)
    vWt = V(16, 4)
    vML = V(8, 4)
    vDt = V(16, 4)

    def wo_addresses():
        a("    s_lshl_b32 %s, %s, 11" % (s(sT1), s(sH)))
        a("    s_add_u32 %s, %s, 0x%x" % (s(sT1), s(sT1), S2ML))
        base(sB0, sWS, s(sT1))
        a("    s_mul_i32 %s, %s, %d" % (s(sT1), s(sH), 32 * ST2))
        a("    s_lshl_b32 %s, %s, 4" % (s(sT0), s(sD0)))
        a("    s_add_u32 %s, %s, %s" % (s(sT1), s(sT1), s(sT0)))
        a("    s_add_u32 %s, %s, 0x%x" % (s(sT1), s(sT1), S2O))
        base(sB5, sWS, s(sT1))
        a("    v_lshlrev_b32 %s, 4, %s" % (v(vT), v(vL7)))
        a("    v_mul_u32_u24 %s, %d, %s" % (v(vOo), ST2, v(vL3)))
        a("    v_add_u32 %s, %s, %s" % (v(vOo), v(vOo), v(vT)))
        for i in (1, 2, 3):
            a("    v_add_u32 %s, 0x%x, %s" % (v(vOo + i), 8 * ST2 * i, v(vOo)))
        a("    s_lshr_b32 %s, %s, 3" % (s(sT1), s(sJ)))
        a("    s_lshl1_add_u32 %s, %s, %s" % (s(sT0), s(sH), s(sT1)))
        a("    s_mul_i32 %s, %s, %d" % (s(sT0), s(sT0), ST3))
        a("    s_and_b32 %s, %s, 7" % (s(sT1), s(sJ)))
        a("    s_lshl_b32 %s, %s, 8" % (s(sT1), s(sT1)))
        a("    s_add_u32 %s, %s, %s" % (s(sT0), s(sT0), s(sT1)))
        a("    s_add_u32 %s, %s, 0x%x" % (s(sT0), s(sT0), S3))
        base(sB2, sWS, s(sT0))
        a("    v_lshrrev_b32 %s, 2, %s" % (v(vT), v(vJ)))
        a("    v_lshl_add_u32 %s, %s, 3, %s" % (v(vT), v(vG), v(vT)))
        a("    v_lshlrev_b32 %s, 7, %s" % (v(vT), v(vT)))
        a("    v_and_b32 %s, 3, v0" % v(vT + 1))
        a("    v_lshl_add_u32 %s, %s, 3, %s" % (v(vT), v(vT + 1), v(vT)))
        a("    v_add_u32 %s, %s, %s" % (v(vAtr), s(sFI), v(vT)))
        a("    v_lshlrev_b32 %s, 4, %s" % (v(vT), v(vL3)))
        a("    v_add_u32 %s, 0x%x, %s" % (v(vAw), LWT, v(vT)))
        a("    s_mul_i32 %s, %s, 272" % (s(sT0), s(sW)))
        a("    s_add_u32 %s, %s, 0x%x" % (s(sT0), s(sT0), LRED))
        a("    v_lshl_add_u32 %s, %s, 4, %s" % (v(vArw), v(vG), s(sT0)))
        per = 8 // P3
        a("    s_and_b32 %s, %s, %d" % (s(sT0), s(sH), per - 1))
        a("    s_lshl_b32 %s, %s, 2" % (s(sT0), s(sT0)))
        a("    s_lshr_b32 %s, %s, %d" % (s(sT1), s(sH), per.bit_length() - 1))
        a("    s_lshl_b32 %s, %s, 7" % (s(sT1), s(sT1)))
        a("    s_add_u32 %s, %s, %s" % (s(sT0), s(sT0), s(sT1)))
        a("    s_add_u32 %s, %s, 0x%x" % (s(sInb), s(sT0), SBELL))
        if opt.get("hn", 1) == 4:
            a("    s_lshr_b32 %s, %s, 2" % (s(sT0), s(sJ)))
            a("    s_add_u32 %s, %s, %s" % (s(sInb), s(sInb), s(sT0)))
    def bell():
        for i in range(2):
            a("    global_load_dwordx4 %s, %s, %s offset:%d%s" % (v(vML + 4 * i, 4), v(vAo), s(sB0, 2), 1024 * i, " nt" if opt.get("xl", 0) else " sc1"))

    def bellcheck():
        tagcheck([vML + 1, vML + 3, vML + 5, vML + 7], sT32, vT)
        a("    v_cmp_ne_u32 vcc, 0, %s" % v(vT))

    EB = opt.get("eb", 0)

    def earlybell():
        bell()
        return 2
    extra.update(A=wo_setup, B=wo_addresses, T0=woload(0), T1=woload(1), T2=woload(2), T3=woload(3))
    sw = SCHED["w"][opt.get("sw", 0)]
    rest = [i for i in range(4) if "T%d" % i not in sw.split()]
    WO2 = min(opt.get("wo2", 0), len(rest))
    late = rest[len(rest) - WO2:]
    rest = rest[:len(rest) - WO2]
    WO1 = min(opt.get("wo1", 0), len(rest))
    attention(sw, [woload(i) for i in rest[:len(rest) - WO1]], [woload(i) for i in rest[len(rest) - WO1:]],
              earlybell if EB else None)
    for i in late:
        woload(i)()
    def bellprep():
        a("    s_mul_i32 %s, %s, 0x01010101" % (s(sRep), s(sTag8)))
        a("    s_mov_b32 %s, %s" % (s(sRep + 1), s(sRep)))
        a("    s_and_b32 %s, %s, %d" % (s(sT0), s(sJ), (R2 // 2 if opt.get("dp2", 0) else R2) - 1))
        a("    s_lshl4_add_u32 %s, %s, %s" % (s(sT0), s(sH), s(sT0)))
        a("    s_lshl_b32 %s, %s, %d" % (s(sT0), s(sT0), RS2))
        a("    s_add_u32 %s, %s, 0x%x" % (s(sT0), s(sT0), SRDY))
    HE = opt.get("he", 0)
    if HE:
        a("    s_cmp_lg_u32 %s, 0" % s(sW))
        a("    s_cbranch_scc1 L_BP")
        bellprep()
        base(sB1, sWS, s(sT0))
        for k in range(P2):
            n_ = 8 // P2
            a("    s_load_dword%s %s, %s, 0x%x glc" % ("x%d" % n_ if n_ > 1 else "", s(sFl + n_ * k, n_), s(sB1, 2), 128 * k))
        a("L_BP:")
    if opt.get("dp2", 0) == 2:
        a("    s_cmp_lg_u32 %s, 0" % s(sW))
        a("    s_cbranch_scc1 L_BP")
        bellprep()
        spoll2(s(sT0), (R2 // 2) << RS2, sRep, P2, sB1, phase=1)
        a("L_BP:")
    if "B" not in sw.split():
        wo_addresses()

    NO = opt.get("dno", 4)

    def oloads():
        for i in range(NO):
            a("    global_load_dwordx4 %s, %s, %s%s" % (v(vO + 4 * i, 4), v(vOo + i), s(sB5, 2), [" sc1", " nt", "", " sc0"][opt.get("xl", 0)]))

    def wtr():
        for t in range(4):
            for hh in range(2):
                a("    ds_read_b64_tr_b16 %s, %s offset:%d" % (v(vW + 4 * t + 2 * hh, 2), v(vAtr), 512 * hh + 32 * t))
    a.c("combine the 32 chunks: wave 0 waits for the hints, turns (m, l) into weights; all waves gather o")
    a("    s_cmp_eq_u32 %s, 0" % s(sW))
    a("    s_cbranch_scc1 L_BELL1")
    S2M = opt.get("s2mode", 0)
    if opt.get("sb2", 0):
        a("    s_barrier")
        oloads()
        a("    s_waitcnt vmcnt(%d)" % NO)
        wtr()
    else:
        a("    s_waitcnt vmcnt(%d)" % (1 if EB else 0))
        stamp(12)
        wtr()
        a("    s_barrier")
        oloads()
    a("    s_branch L_BELL2")
    a("L_BELL1:")
    if opt.get("rdy", 0):
        a("    v_and_b32 %s, 31, v0" % v(vT + 1))
        a("    v_lshlrev_b32 %s, 6, %s" % (v(vT + 1), v(vT + 1)))
        a("    v_add_u32 %s, 0x%x, %s" % (v(vT + 1), SRDY - S2ML, v(vT + 1)))

        def rdy():
            a("    global_load_dword %s, %s, %s sc1" % (v(vT + 2), v(vT + 1), s(sB0, 2)))

        def rdycheck():
            a("    v_cmp_ne_u32 vcc, %s, %s" % (s(sT32), v(vT + 2)))
        setexec(0xFFFFFFFF, 0)
        rdy()
        poll(rdy, rdycheck, 0, cnt=13)
        a("    s_barrier")
        bell()
        oloads()
        stamp(11)
        wtr()
        poll(bell, bellcheck, 4)
    elif opt.get("sb2", 0):
        if opt.get("dp2", 0) != 2 and not HE:
            bellprep()
        stamp(12)
        if opt.get("dp2", 0):
            spoll2(s(sT0), (R2 // 2) << RS2, sRep, P2, sB1, phase=2 if opt["dp2"] == 2 else 0)
        elif HE:
            a("    s_waitcnt lgkmcnt(0)")
            for k in range(4):
                a("    s_cmp_eq_u64 %s, %s" % (s(sFl + 2 * k, 2), s(sRep, 2)))
                a("    s_cbranch_scc0 L_VEC")
        elif opt.get("hy", 0):
            spoll(sWS, s(sT0), sRep, P2, tries=opt["hy"], fail="L_VEC")
        else:
            spoll(sWS, s(sT0), sRep, P2)
        if prof:
            a("    s_mov_b32 %s, %s" % (s(sPROF + 26), s(sSpin)))
        a("    s_barrier")
        bell()
        oloads()
        stamp(11)
        if opt.get("wt", 0) == 1:
            a("    s_waitcnt vmcnt(6)")
            wtr()
            poll(bell, bellcheck, 4)
        elif opt.get("wt", 0) == 2:
            poll(bell, bellcheck, NO)
            if opt.get("hy", 0):
                a("    s_branch L_WTS")
                a("L_VEC:")
                bell()
                poll(bell, bellcheck, 0)
                a("    s_barrier")
                oloads()
                a("L_WTS:")
        else:
            poll(bell, bellcheck, 4, post=wtr)
    elif EB:
        assert WO1 == 0 and not opt.get("mb")
        poll(bell, bellcheck, 1, cnt=13)
        a("    s_barrier")
        oloads()
        wtr()
        stamp(11)
    else:
        bell()
        poll(bell, bellcheck, 0, cnt=13)
        a("    s_barrier")
        oloads()
        wtr()
        stamp(11)
    a("    v_max_f32 %s, %s, %s" % (v(vT + 1), v(vML), v(vML + 4)))
    allred_hi(vT + 1, vT, "max")
    for i in range(2):
        a("    v_sub_f32 %s, %s, %s" % (v(vML + 4 * i), v(vML + 4 * i), v(vT + 1)))
    for i in range(2):
        a("    v_mul_f32 %s, 0x3fb8aa3b, %s" % (v(vML + 4 * i), v(vML + 4 * i)))
    for i in range(2):
        a("    v_exp_f32 %s, %s" % (v(vML + 4 * i), v(vML + 4 * i)))
    a("    v_lshlrev_b32 %s, 2, v0" % v(vT + 2))
    a("    v_mul_f32 %s, %s, %s" % (v(vT + 1), v(vML), v(vML + 2)))
    a("    v_fmac_f32 %s, %s, %s" % (v(vT + 1), v(vML + 4), v(vML + 6)))
    allred_hi(vT + 1, vT, "add")
    a("    v_rcp_f32 %s, %s" % (v(vT + 1), v(vT + 1)))
    a("    v_add_u32 %s, 0x%x, %s" % (v(vT + 2), LWT, v(vT + 2)))
    for i in range(2):
        a("    v_mul_f32 %s, %s, %s" % (v(vML + 4 * i), v(vML + 4 * i), v(vT + 1)))
    for i in range(2):
        a("    ds_write_b32 %s, %s offset:%d" % (v(vT + 2), v(vML + 4 * i), 256 * i))
    a("    s_waitcnt lgkmcnt(0)")
    if opt.get("wt", 0) == 2:
        a("    s_barrier")
        wtr()
        a("    s_branch L_BELL3")
    a("L_BELL2:")
    WB = opt.get("wbar", 0)

    def wreads():
        a("    s_barrier")
        a("L_BELL3:")
        for i in range(4):
            a("    ds_read_b128 %s, %s offset:%d" % (v(vWt + 4 * i, 4), v(vAw), 128 * i))

    wreads()

    def oacc(i):
        for r in (0, 2):
            if i == 0:
                a("    v_pk_mul_f32 %s, %s, %s" % (v(vT + r, 2), v(vO + r, 2), v(vWt + r, 2)))
            else:
                a("    v_pk_fma_f32 %s, %s, %s, %s" % (v(vT + r, 2), v(vO + 4 * i + r, 2), v(vWt + 4 * i + r, 2), v(vT + r, 2)))

    HN = opt.get("hn", 1)

    def s3hint():
        if HN == 1:
            a("    s_or_b32 %s, %s, %s" % (s(sT0), s(sJ), s(sW)))
        else:
            a("    s_and_b32 %s, %s, 3" % (s(sT0), s(sJ)))
            a("    s_or_b32 %s, %s, %s" % (s(sT0), s(sT0), s(sW)))
        a("    s_cbranch_scc1 L_NOHINT")
        if R3 < 64:
            setexec((1 << (R3 + (8 if opt.get("hy3", 0) else 0))) - 1, 0)
        a("    v_lshl_add_u32 %s, v0, %d, %s" % (v(vG0), RS3, s(sInb)))
        if HN == 1:
            a("    v_mov_b32 %s, %s" % (v(vQo), s(sT32)))
            a("    global_store_dword %s, %s, %s sc1" % (v(vG0), v(vQo), s(sWS, 2)))
        else:
            a("    global_store_byte %s, %s, %s sc1" % (v(vG0), v(vTag8), s(sWS, 2)))
        setexec(0xFFFFFFFF, 0xFFFFFFFF)
        a("L_NOHINT:")
    HP = opt.get("hp", 0)

    def obefore():
        if HP == 1:
            a("    s_waitcnt vmcnt(3)")
            s3hint()
        a("    s_waitcnt lgkmcnt(0)")
    gather(oloads, [vO + 4 * i for i in range(NO)], sTag10, 0x3ff, oacc, cnt=14, before=obefore)
    stamp(7)
    if HP == 0:
        s3hint()
    a.c("o (bf16) times the wo piece, cross-wave sum, publish")
    treduce4(vT)
    a("    v_add_f32_dpp %s, %s, %s row_ror:8 %s" % (v(vT), v(vT), v(vT), DPP))
    rowpack(vT, vT + 4, 4)
    for t in range(4):
        a("    v_mfma_f32_16x16x32_bf16 %s, %s, %s, 0" % (v(vDt + 4 * t, 4), v(vW + 4 * t, 4), v(vT + 4, 4)))
    if HP == 2:
        s3hint()
    setexec(0x00010001, 0x00010001)
    for t in range(4):
        a("    ds_write_b128 %s, %s offset:%d" % (v(vArw), v(vDt + 4 * t, 4), 64 * t))
    setexec(0xFFFFFFFF, 0xFFFFFFFF)
    if HP == 5:
        s3hint()
    red_publish(8, vTag10, sM10, 0, sB2, "L_FIN", mid=s3hint if HP == 3 else None)
    if HP == 4:
        s3hint()
    stamp(8)
    a("L_FIN:")
    if opt.get("wb", 0):
        a("    s_lshl3_add_u32 %s, %s, %s" % (s(sT0), s(sJ), s(sW)))
        a("    s_cmp_lg_u32 %s, 1" % s(sT0))
        a("    s_cbranch_scc1 L_FIN3")
        a("    buffer_wbl2 sc1")
        a("    s_waitcnt vmcnt(0)")
        a("L_FIN3:")
    finish()
    V.release(mrole)

    a("L_ROLE_FFN:")
    vGo = V()
    vDo = V(2)

    def quarter_prep(n, pair, m0reg):
        a("    s_add_u32 %s, %s, %d" % (s(sT0), s(sU), 0 if opt.get("fdiag") == 4 else n))
        a("    s_and_b32 %s, %s, 1" % (s(sT1), s(sT0)))
        a("    s_bfe_u32 %s, %s, 0x10001" % (s(sT0), s(sT0)))
        a("    s_lshl_b32 %s, %s, 1" % (s(sT2), s(sW)))
        a("    s_add_u32 %s, %s, %s" % (s(sT2), s(sT2), s(sT1)))
        a("    s_lshl_b32 %s, %s, 4" % (s(sT3), s(sT0)))
        a("    s_add_u32 %s, %s, %s" % (s(sT3), s(sT3), s(sT2)))
        a("    s_lshl_b32 %s, %s, 10" % (s(sT3), s(sT3)))
        a("    s_add_u32 %s, %s, 0x%x" % (s(m0reg), s(sT3), LG))
        a("    s_mul_i32 %s, %s, %d" % (s(sT2), s(sT2), 32 * 3584))
        a("    s_lshl_b32 %s, %s, 5" % (s(sT1), s(sFI)))
        a("    s_add_u32 %s, %s, %s" % (s(sT2), s(sT2), s(sT1)))
        a("    s_cmp_eq_u32 %s, 0" % s(sT0))
        a("    s_cselect_b64 %s, %s, %s" % (s(pair, 2), s(sWG, 2), s(sWU, 2)))
        base(pair, pair, s(sT2))
    QB = [(sK, sPC), (sVp, sPC + 1), (sWQ, sMean), (sWO, sVar)]

    def quarter(n):
        a("    s_mov_b32 m0, %s" % s(QB[n][1]))
        a("    global_load_lds_dwordx4 %s, %s%s" % (v(vGo), s(QB[n][0], 2),
          {0: " nt", 1: "" if n == 0 else " nt", 2: "", 3: " nt" if n == 0 else "", 4: " nt" if n == 0 else " sc1"}[opt.get("qpol", 0)]))

    def ffn_setup():
        a("    s_and_b32 %s, %s, 3" % (s(sU), s(sJ)))
        a("    s_min_u32 %s, %s, 4" % (s(sT0), s(sH)))
        a("    s_mul_i32 %s, %s, 3" % (s(sT1), s(sH)))
        a("    s_add_u32 %s, %s, %s" % (s(sT0), s(sT0), s(sT1)))
        a("    s_lshl_b32 %s, %s, 2" % (s(sT0), s(sT0)))
        a("    s_add_u32 %s, %s, %s" % (s(sT0), s(sT0), s(sJ)))
        a("    s_sub_u32 %s, %s, 16" % (s(sFI), s(sT0)))
        a("    v_lshrrev_b32 %s, 1, v0" % v(vT))
        a("    v_mul_u32_u24 %s, 3584, %s" % (v(vT), v(vT)))
        a("    v_and_b32 %s, 1, v0" % v(vT + 1))
        a("    v_lshl_add_u32 %s, %s, 4, %s" % (v(vGo), v(vT + 1), v(vT)))
        for n in range(4):
            quarter_prep(n, *QB[n])
        a("    s_lshl_b32 %s, %s, 14" % (s(sT0), s(sFI)))
        a("    s_lshl_b32 %s, %s, 7" % (s(sT1), s(sW)))
        a("    s_add_u32 %s, %s, %s" % (s(sT0), s(sT0), s(sT1)))
        base(sB5, sWD, s(sT0))
        a("    s_lshl_b32 %s, %s, 11" % (s(sT1), s(sW)))
        a("    s_add_u32 %s, %s, 0x%x" % (s(sInb), s(sT1), LD))
        a("    v_lshlrev_b32 %s, 4, %s" % (v(vDo), v(vL7)))
        a("    v_lshl_or_b32 %s, %s, 10, %s" % (v(vDo), v(vL3), v(vDo)))
        a("    v_add_u32 %s, 0x1c00, %s" % (v(vDo + 1), v(vDo)))

    def dload(i):
        def f():
            a("    s_mov_b32 m0, %s" % s(sInb))
            a("    global_load_lds_dwordx4 %s, %s offset:%d nt" % (v(vDo + i), s(sB5, 2), 1024 * i))
        return f
    def qhalf(lo, hi, n=0):
        def f():
            setexec(lo, hi)
            quarter(n)
            setexec(0xFFFFFFFF, 0xFFFFFFFF)
        return f
    L = dict(D0=dload(0), D1=dload(1), Q0=lambda: quarter(0), Q1=lambda: quarter(1), Q2=lambda: quarter(2), Q3=lambda: quarter(3))
    L2 = dict(Qa=qhalf(0xFFFFFFFF, 0), Qb=qhalf(0, 0xFFFFFFFF), Qc=qhalf(0xFFFF, 0), Qd=qhalf(0xFFFF0000, 0xFFFFFFFF))
    L2.update(Qe=qhalf(0xFFFFFFFF, 0xFFFF), Qf=qhalf(0, 0xFFFF0000))
    for n_ in (1, 2, 3):
        L2["A%d" % n_] = qhalf(0xFFFFFFFF, 0, n_)
        L2["B%d" % n_] = qhalf(0, 0xFFFFFFFF, n_)
    extra.update(A=ffn_setup, **L)
    extra.update(L2)
    sf = SCHED["f"][opt.get("sf", 0)]
    FT = [("Q0", "Q1 Q2 Q3 b D0 D1"), ("Q0", "Q1 Q2 Q3"), ("", "Q0 b Q1 Q2 Q3"), ("D0 D1", "Q0 b Q1 Q2 Q3"),
          ("", "Q0 D1 b Q1 Q2 Q3"), ("", "Q0 D0 D1 b Q1 Q2 Q3"), ("D1", "Q0 b Q1 Q2 Q3"),
          ("Qa", "Qb b Q1 Q2 Q3"), ("Qc", "Qd b Q1 Q2 Q3"), ("Qa", "Qb D0 D1 b Q1 Q2 Q3"), ("Qa", "Qb b Q1 Q2 Q3 b D0 D1"),
          ("Qb", "D0 D1 b Q1 Q2 Q3"), ("Qb", "Q1 Q2 Q3 b D0 D1"),
          ("Qa", "D0 D1 b Q1 Q2 Q3", "Qb"), ("Qa", "Q1 Q2 Q3 b D0 D1", "Qb"), ("Qa", "D1 b Q1 Q2 Q3", "Qb"), ("Qa", "Q1 Q2 Q3", "Qb"),
          ("", "Qb b Q1 Q2 Q3", "Qa"), ("Qc", "Q1 Q2 Q3", "Qd"),
          ("Qb", "Q1 Q2 Q3"), ("", "Q1 Q2 Q3", "Qb"), ("Q0", "Q1 Q2 Q3"), ("Qa", "Q1 Q2 Q3", "Qb"), ("Qa", "Qb b Q1 Q2 Q3"),
          ("Qa", "Qb Q1 Q2 Q3"), ("Qa", "Qb b Q1 b Q2 b Q3"), ("Qa", "Qb Q1 b Q2 Q3"),
          ("Qa", "A1 A2 A3 b Qb b B1 B2 B3"), ("Qa", "A1 b Qb b A2 A3 b B1 B2 B3"), ("Qa", "Qb b A1 A2 A3 b B1 B2 B3"),
          ("Qe", "Qf b Q1 b Q2 b Q3"), ("Qa", "Q1 b Q2 b Q3", "Qb"), ("Qb", "D0 D1 b Q1 b Q2 b Q3"), ("Qa", "A1 A2 b Qb b A3 B1 b B2 B3")][opt.get("ft", 0)]
    FT = FT + ("",) * (3 - len(FT))
    DL = opt.get("dl", 0)
    allf = (sf + " " + FT[0] + " " + FT[1] + " " + FT[2] + " " + " ".join(["D0", "D1"][2 - DL:])).replace("Qb", "Q0").replace("Qd", "Q0").replace("Qf", "Q0").replace("B1", "Q1").replace("B2", "Q2").replace("B3", "Q3").split()
    assert sorted(t for t in allf if t in L) == sorted(L), allf
    L.update(L2)
    attention(sf, [L[t] for t in FT[0].split()], [L[t] for t in FT[2].split()])
    if opt.get("fack", 0):
        a("    s_waitcnt vmcnt(0)")
    if not opt.get("nfb", 0):
        a("    s_barrier")
    for t in FT[1].split():
        if t == "b":
            a("    s_barrier")
        else:
            L[t]()

    def hintprep():
        if opt.get("hn", 1) == 1:
            a("    s_mov_b32 %s, %s" % (s(sRep), s(sT32)))
        else:
            a("    s_mul_i32 %s, %s, 0x01010101" % (s(sRep), s(sTag8)))
        a("    s_mov_b32 %s, %s" % (s(sRep + 1), s(sRep)))
        a("    s_and_b32 %s, %s, %d" % (s(sT0), s(sFI), (R3 // 2 if opt.get("dp3", 0) else R3) - 1))
        a("    s_lshl_b32 %s, %s, %d" % (s(sT0), s(sT0), RS3))
        a("    s_add_u32 %s, %s, 0x%x" % (s(sT0), s(sT0), SBELL))
    a("    s_lshl_b32 %s, %s, 11" % (s(sT1), s(sW)))
    stamp(11)
    vXc = V()
    vHs = V(16, 4)
    vHo = V(4)
    vWg = V(16, 4)
    vWd = V(8, 4)
    P4 = opt.get("p4", 0)
    RW = P4 or opt.get("rw", 0)
    vWd2 = V(8, 4)
    vDv = V(4, 4)
    vAy2 = V(2)
    vHb = V(8, 4)
    vDu = V(4, 4)
    vCs = V(4, 4)
    vMt = V(4)
    vB = V(8, 4)
    vAgw, vAgr, vAsw, vAsr, vAy, vHr = [V() for _ in range(6)]
    a("    s_lshl_b32 %s, %s, 7" % (s(sT0), s(sW)))
    base(sB0, sX, s(sT0))
    a("    v_lshl_add_u32 %s, %s, 2, %s" % (v(vT + 2), v(vJ), v(vG)))
    a("    v_lshlrev_b32 %s, 1, %s" % (v(vT + 2), v(vT + 2)))
    a("    global_load_ushort %s, %s, %s" % (v(vXc), v(vT + 2), s(sB0, 2)))
    a.c("the value of this load is never used: it only fetches the translation and the lines of d_out ahead of the final store")
    a("    global_load_ushort %s, %s, %s" % (v(vHr), v(vT + 2), s(sOUT, 2)))
    if opt.get("dp3", 0) == 2:
        a("    s_cmp_lg_u32 %s, 0" % s(sW))
        a("    s_cbranch_scc1 L_HP")
        hintprep()
        spoll2(s(sT0), (R3 // 2) << RS3, sRep, P3, sB4, phase=1)
        a("    s_lshl_b32 %s, %s, 7" % (s(sT0), s(sW)))
        a("L_HP:")
    a("    s_add_u32 %s, %s, 0x%x" % (s(sT2), s(sT0), LGP))
    a("    v_lshl_add_u32 %s, %s, 4, %s" % (v(vAgw), v(vG), s(sT2)))
    a("    v_lshrrev_b32 %s, 3, %s" % (v(vT + 2), v(vJ)))
    a("    v_lshl_add_u32 %s, %s, 1, %s" % (v(vT + 2), v(vL7), v(vT + 2)))
    a("    v_lshlrev_b32 %s, 6, %s" % (v(vT + 2), v(vT + 2)))
    a("    v_lshl_add_u32 %s, %s, 4, %s" % (v(vT + 2), v(vG), v(vT + 2)))
    a("    v_add_u32 %s, 0x%x, %s" % (v(vAgr), LGP, v(vT + 2)))
    a("    s_lshl_b32 %s, %s, 3" % (s(sT2), s(sW)))
    a("    s_add_u32 %s, %s, 0x%x" % (s(sT2), s(sT2), LST))
    a("    v_mov_b32 %s, %s" % (v(vAsw), s(sT2)))
    a("    v_lshlrev_b32 %s, 3, %s" % (v(vT + 2), v(vL7)))
    a("    v_add_u32 %s, 0x%x, %s" % (v(vAsr), LST, v(vT + 2)))
    for t in range(4):
        a("    v_cmp_eq_u32 vcc, %d, %s" % (t, v(vJ)))
        a("    v_cndmask_b32 %s, 0, -1, vcc" % v(vMt + t))
    a("    s_lshl_b32 %s, %s, 8" % (s(sT0), s(sW)))
    a("    s_add_u32 %s, %s, 0x%x" % (s(sT0), s(sT0), S3))
    base(sB1, sWS, s(sT0))
    a("    v_lshlrev_b32 %s, 4, %s" % (v(vT + 2), v(vJ)))
    a("    v_mul_u32_u24 %s, %d, %s" % (v(vHo), ST3, v(vG)))
    a("    v_add_u32 %s, %s, %s" % (v(vHo), v(vHo), v(vT + 2)))
    for i in (1, 2, 3):
        a("    v_add_u32 %s, 0x%x, %s" % (v(vHo + i), 4 * ST3 * i, v(vHo)))
    a("    s_mul_i32 %s, %s, %d" % (s(sT0), s(sW), 4 * 7168))
    a("    s_lshl_b32 %s, %s, 6" % (s(sT2), s(sFI)))
    a("    s_add_u32 %s, %s, %s" % (s(sT0), s(sT0), s(sT2)))
    a("    s_add_u32 %s, %s, 0x%x" % (s(sT0), s(sT0), S4))
    base(sB2, sWS, s(sT0))
    a("    v_lshrrev_b32 %s, 2, %s" % (v(vT + 2), v(vJ)))
    a("    v_mul_u32_u24 %s, 7168, %s" % (v(vT + 2), v(vT + 2)))
    a("    v_and_b32 %s, 3, v0" % v(vT + 3))
    a("    v_lshl_add_u32 %s, %s, 4, %s" % (v(vAy), v(vT + 3), v(vT + 2)))
    a("    v_lshrrev_b32 %s, 2, %s" % (v(vT + 2), v(vJ)))
    a("    v_and_b32 %s, 3, v0" % v(vT + 3))
    a("    v_lshl_add_u32 %s, %s, 2, %s" % (v(vT + 4), v(vT + 2), v(vG)))
    a("    v_lshlrev_b32 %s, 5, %s" % (v(vT + 4), v(vT + 4)))
    a("    v_lshl_add_u32 %s, %s, 3, %s" % (v(vT + 4), v(vT + 3), v(vT + 4)))
    a("    s_add_u32 %s, %s, 0x%x" % (s(sT2), s(sT1), LG))
    a("    v_add_u32 %s, %s, %s" % (v(vT + 4), s(sT2), v(vT + 4)))
    a("    v_lshl_add_u32 %s, %s, 2, %s" % (v(vT + 5), v(vG), v(vT + 2)))
    a("    v_lshlrev_b32 %s, 7, %s" % (v(vT + 5), v(vT + 5)))
    a("    v_lshl_add_u32 %s, %s, 3, %s" % (v(vT + 5), v(vT + 3), v(vT + 5)))
    a("    s_add_u32 %s, %s, 0x%x" % (s(sT2), s(sT1), LD))
    a("    v_add_u32 %s, %s, %s" % (v(vT + 5), s(sT2), v(vT + 5)))
    for i in range(4):
        a("    v_mov_b32 %s, 0x3f803f80" % v(vHb + i))

    NH = opt.get("dnh", 4)

    def hloadsf():
        for i in range(NH):
            a("    global_load_dwordx4 %s, %s, %s sc1" % (v(vHs + 4 * i, 4), v(vHo + i), s(sB1, 2)))
    if opt.get("pdrop", 0) == 2:
        a("    s_setprio 0")
    a.c("gather the 16 wo partials; meanwhile transpose the weights and take their column sums")
    S3B = opt.get("s3bell", 1)
    PG = opt.get("pg", 0)
    if PG:
        sDone, sNew = sU + 0, sMean
        sDone = sVar
        a("    s_mov_b32 %s, %s" % (s(sRep), s(sT32)))
        a("    s_mov_b32 %s, %s" % (s(sRep + 1), s(sRep)))
        a("    s_and_b32 %s, %s, %d" % (s(sT0), s(sFI), R3 - 1))
        a("    s_lshl_b32 %s, %s, %d" % (s(sT0), s(sT0), RS3))
        a("    s_add_u32 %s, %s, 0x%x" % (s(sT0), s(sT0), SBELL))
        a("    v_mov_b32 %s, 0x%x" % (v(vT + 1), LRM))
        a("    s_mov_b32 %s, 0" % s(sDone))
        a("    s_mov_b32 %s, 0" % s(sSpin))
        sPrev = sPC
        a("    s_mov_b32 %s, 0" % s(sPrev))
        a("L_PG:")
        a("    s_add_u32 %s, %s, 1" % (s(sSpin), s(sSpin)))
        a("    v_xor_b32 %s, 4, %s" % (v(vT + 1), v(vT + 1)))
        a("    s_cmp_lg_u32 %s, 0" % s(sW))
        a("    s_cbranch_scc1 L_PGR")
        a("    s_load_dwordx8 %s, %s, %s glc" % (s(sFl, 8), s(sWS, 2), s(sT0)))
        a("    s_mov_b32 %s, 0" % s(sNew))
        a("    s_waitcnt lgkmcnt(0)")
        for k in range(4):
            a("    s_cmp_eq_u64 %s, %s" % (s(sFl + 2 * k, 2), s(sRep, 2)))
            a("    s_cselect_b32 %s, %d, 0" % (s(sT1), 1 << k))
            a("    s_or_b32 %s, %s, %s" % (s(sNew), s(sNew), s(sT1)))
        a("    s_cmp_ge_u32 %s, 0x%x" % (s(sSpin), SPIN_LIMIT))
        a("    s_cselect_b32 %s, 15, %s" % (s(sNew), s(sNew)))
        if PG >= 2:
            a("    s_cmp_eq_u32 %s, 15" % s(sNew))
            a("    s_cselect_b32 %s, 15, %s" % (s(sT1), s(sPrev)))
            a("    s_mov_b32 %s, %s" % (s(sPrev), s(sNew)))
            a("    s_mov_b32 %s, %s" % (s(sNew), s(sT1)))
        a("    v_mov_b32 %s, %s" % (v(vT + 2), s(sNew)))
        a("    ds_write_b32 %s, %s" % (v(vT + 1), v(vT + 2)))
        a("    s_waitcnt lgkmcnt(0)")
        a("    s_barrier")
        a("    s_branch L_PGI")
        a("L_PGR:")
        a("    s_barrier")
        a("    ds_read_b32 %s, %s" % (v(vT + 2), v(vT + 1)))
        a("    s_waitcnt lgkmcnt(0)")
        a("    v_readfirstlane_b32 %s, %s" % (s(sNew), v(vT + 2)))
        a("L_PGI:")
        a("    s_andn2_b32 %s, %s, %s" % (s(sNew), s(sNew), s(sDone)))
        a("    s_cbranch_scc0 L_PG")
        a("    s_or_b32 %s, %s, %s" % (s(sDone), s(sDone), s(sNew)))
        for i in range(4):
            a("    s_bitcmp1_b32 %s, %d" % (s(sNew), i))
            a("    s_cbranch_scc0 L_PGS%d" % i)
            a("    global_load_dwordx4 %s, %s, %s sc1" % (v(vHs + 4 * i, 4), v(vHo + i), s(sB1, 2)))
            a("L_PGS%d:" % i)
        a("    s_cmp_lg_u32 %s, 15" % s(sDone))
        a("    s_cbranch_scc1 L_PG")
    elif opt.get("sb3", 0):
        a("    s_cmp_lg_u32 %s, 0" % s(sW))
        a("    s_cbranch_scc1 L_HINT")
        if opt.get("dp3", 0) != 2:
            hintprep()
        if opt.get("dp3", 0):
            spoll2(s(sT0), (R3 // 2) << RS3, sRep, P3, sB4 if opt["dp3"] == 2 else sB0, phase=2 if opt["dp3"] == 2 else 0)
        elif opt.get("hy3", 0):
            if opt["hy3"] < 9:
                spoll(sWS, s(sT0), sRep, P3, True, tries=opt["hy3"], fail="L_VEC3")
                a("    s_branch L_HINT")
            a("L_VEC3:")
            a("    s_add_u32 %s, %s, 16" % (s(sT0), s(sH)))
            a("    s_lshl_b32 %s, %s, %d" % (s(sT0), s(sT0), RS3))
            a("    s_add_u32 %s, %s, 0x%x" % (s(sT0), s(sT0), SBELL))
            a("    v_lshl_add_u32 %s, %s, 2, %s" % (v(vT + 1), v(vL7), s(sT0)))

            def hint3():
                a("    global_load_dword %s, %s, %s sc1" % (v(vT + 2), v(vT + 1), s(sWS, 2)))

            def hint3check():
                a("    v_cmp_ne_u32 vcc, %s, %s" % (s(sT32), v(vT + 2)))
            setexec(0xFF, 0)
            hint3()
            poll(hint3, hint3check, 0)
        else:
            spoll(sWS, s(sT0), sRep, P3, True)
        a("L_HINT:")
        a("    s_barrier")
    elif S3B:
        a("    s_cmp_lg_u32 %s, 0" % s(sW))
        a("    s_cbranch_scc1 L_HINT")
        a("    v_lshlrev_b32 %s, 7, %s" % (v(vT + 1), v(vL7)))
        a("    v_add_u32 %s, 0x%x, %s" % (v(vT + 1), SBELL, v(vT + 1)))

        def hint():
            a("    global_load_dword %s, %s, %s sc1" % (v(vT + 2), v(vT + 1), s(sWS, 2)))

        def hintcheck():
            a("    v_cmp_ne_u32 vcc, %s, %s" % (s(sT32), v(vT + 2)))
        setexec(0xFF, 0)
        hint()
        poll(hint, hintcheck, 0, cnt=12)
        a("L_HINT:")
        a("    s_barrier")
    gstamp(1)
    if not PG:
        hloadsf()
    for t in ["D0", "D1"][2 - DL:]:
        L[t]()
    a("    s_waitcnt vmcnt(%d)" % (NH + DL))
    gstamp(2)
    stamp(7)
    for mat in range(2):
        for st in range(2):
            for hh in range(2):
                a("    ds_read_b64_tr_b16 %s, %s offset:%d" %
                  (v(vWg + 8 * mat + 4 * st + 2 * hh, 2), v(vT + 4), 16384 * mat + 1024 * st + 512 * hh))
    vAd = V()

    def dreads():
        for t in range(4):
            a("    ds_read_b64_tr_b16 %s, %s offset:%d" % (v(vWd + 2 * t, 2), v(vAd), 32 * t))
    a("    v_mov_b32 %s, %s" % (v(vAd), v(vT + 5)))
    if not DL:
        dreads()
    a("    v_lshlrev_b32 %s, 16, %s" % (v(vXc), v(vXc)))
    if P4:
        a("    v_add_u32 %s, 0x%x, %s" % (v(vAy2), 16 * 7168, v(vAy)))
    if RW:
        a("    s_lshl_b32 %s, %s, 8" % (s(sT0), s(sW)))
        a("    s_add_u32 %s, %s, 0x%x" % (s(sT0), s(sT0), LRED))
        a("    v_lshl_add_u32 %s, v0, 2, %s" % (v(vAy2 + 1), s(sT0)))
    LA = opt.get("la", 0)
    sM0, sM1, sM2, sM8_, sM9 = sB0, sB4, sPC, sMean, sBo
    if LA:
        a("    v_and_b32 %s, 3, v0" % v(vT))
        a("    v_lshl_add_u32 %s, %s, 2, %s" % (v(vT), v(vG), v(vT)))
        a("    v_bfe_u32 %s, v0, 2, 1" % v(vT + 1))
        a("    v_lshl_add_u32 %s, %s, 4, %s" % (v(vT), v(vT + 1), v(vT)))
        a("    v_add_u32 %s, 56, %s" % (v(vT + 1), v(vJ)))
        a("    v_cmp_gt_u32 vcc, 8, %s" % v(vJ))
        a("    v_cndmask_b32 %s, %s, %s, vcc" % (v(vT), v(vT + 1), v(vT)))
        a("    v_lshlrev_b32 %s, 2, %s" % (v(vT), v(vT)))
        a("    v_add_u32 %s, 0x%x, %s" % (v(vAgw), LGP, v(vT)))
        a("    v_lshlrev_b32 %s, 4, %s" % (v(vT), v(vG)))
        a("    v_add_u32 %s, 0x%x, %s" % (v(vAgr), LGP, v(vT)))
        a("    v_mov_b32 %s, 0x%x" % (v(vAsr), LGP + 256))
        for r_, c_ in ((sM0, 0xAAAAAAAA), (sM1, 0xCCCCCCCC), (sM2, 0xF0F0F0F0), (sM8_, 0x01000100), (sM9, 0x02000200)):
            a("    s_mov_b32 %s, 0x%x" % (s(r_), c_))
            a("    s_mov_b32 %s, 0x%x" % (s(r_ + 1), c_))

    def pick(dst):
        a("    v_cndmask_b32 %s, %s, %s, %s" % (v(vD), v(vD), v(vD + 1), s(sM0, 2)))
        a("    v_cndmask_b32 %s, %s, %s, %s" % (v(vD + 2), v(vD + 2), v(vD + 3), s(sM0, 2)))
        a("    v_cndmask_b32 %s, %s, %s, %s" % (v(vDu), v(vDu), v(vDu + 1), s(sM0, 2)))
        a("    v_cndmask_b32 %s, %s, %s, %s" % (v(vDu + 2), v(vDu + 2), v(vDu + 3), s(sM0, 2)))
        a("    v_cndmask_b32 %s, %s, %s, %s" % (v(vD), v(vD), v(vD + 2), s(sM1, 2)))
        a("    v_cndmask_b32 %s, %s, %s, %s" % (v(vDu), v(vDu), v(vDu + 2), s(sM1, 2)))
        a("    v_cndmask_b32 %s, %s, %s, %s" % (v(dst), v(vD), v(vDu), s(sM2, 2)))
    CF2 = opt.get("cf", 0) == 2
    vOne = V(4, 4) if CF2 else None
    vC1 = V(8, 4) if CF2 else None

    def gate_up(b0, b1, d0=None, d1=None):
        d0 = vD if d0 is None else d0
        d1 = vDu if d1 is None else d1
        a("    v_mfma_f32_16x16x32_bf16 %s, %s, %s, 0" % (v(d0, 4), v(vWg, 4), v(b0, 4)))
        a("    v_mfma_f32_16x16x32_bf16 %s, %s, %s, 0" % (v(d1, 4), v(vWg + 8, 4), v(b0, 4)))
        a("    v_mfma_f32_16x16x32_bf16 %s, %s, %s, %s" % (v(d0, 4), v(vWg + 4, 4), v(b1, 4), v(d0, 4)))
        a("    v_mfma_f32_16x16x32_bf16 %s, %s, %s, %s" % (v(d1, 4), v(vWg + 12, 4), v(b1, 4), v(d1, 4)))
    if CF2:
        for i in range(4):
            a("    v_mov_b32 %s, 0x3f803f80" % v(vOne + i))
    else:
        a("    s_waitcnt lgkmcnt(0)")
        gate_up(vHb, vHb)
        if LA:
            pick(vD)
            setexec(0x00FF00FF, 0x00FF00FF)
            a("    ds_add_f32 %s, %s offset:128" % (v(vAgw), v(vD)))
        else:
            setexec(0x00010001, 0x00010001)
            a("    ds_write_b128 %s, %s offset:%d" % (v(vAgw), v(vD, 4), LCS - LGP))
            a("    ds_write_b128 %s, %s offset:%d" % (v(vAgw), v(vDu, 4), LCS - LGP + 64))
        setexec(0xFFFFFFFF, 0xFFFFFFFF)
    CF = opt.get("cf", 0)
    if not CF:
        a("    s_waitcnt lgkmcnt(0)")
        a("    s_barrier")
        a("    ds_read_b128 %s, %s offset:%d" % (v(vCs, 4), v(vAgr), LCS - LGP))
        a("    s_waitcnt lgkmcnt(0)")
        for pat in ("quad_perm:[1,0,3,2]", "quad_perm:[2,3,0,1]", "row_half_mirror"):
            for r in range(4):
                a("    v_add_f32_dpp %s, %s, %s %s %s" % (v(vCs + r), v(vCs + r), v(vCs + r), pat, DPP))

    vHa = V(4, 4)

    def sumacc(dst, src):
        def f(i):
            for r in (0, 2):
                if i == 1:
                    a("    v_pk_add_f32 %s, %s, %s" % (v(dst + r, 2), v(src + r, 2), v(src + 4 + r, 2)))
                elif i > 1:
                    a("    v_pk_add_f32 %s, %s, %s" % (v(dst + r, 2), v(dst + r, 2), v(src + 4 * i + r, 2)))
        return f
    gstamp(3)
    gather(hloadsf, [vHs + 4 * i for i in range(NH)], sTag10, 0x3ff, sumacc(vHa, vHs), cnt=13, ordered=not PG, younger=DL)
    gstamp(6)
    stamp(8)
    if CF2:
        a("    s_waitcnt lgkmcnt(0)")
        gate_up(vOne, vOne, vC1, vC1 + 4)
    vHs = vHa
    a.c("h, gate / up products on h itself, statistics of h")
    treduce4(vHs)
    bf16r(vHs, vHs)
    a("    v_add_f32 %s, %s, %s" % (v(vHs), v(vHs), v(vXc)))
    bf16r(vHr, vHs)
    rowpack(vHs, vHb, 8, lambda: a("    v_mul_f32 %s, %s, %s" % (v(vT + 1), v(vHr), v(vHr))),
            lambda: a("    v_add_f32_dpp %s, %s, %s row_ror:1 %s" % (v(vT), v(vHr), v(vHr), DPP)))
    gate_up(vHb, vHb + 4)
    if RW:
        a("    ds_write_b32 %s, %s" % (v(vAy2 + 1), v(vHr)))
    if CF2:
        setexec(0x00010001, 0x00010001)
        a("    ds_write_b128 %s, %s offset:%d" % (v(vAgw), v(vC1, 4), LCS - LGP))
        a("    ds_write_b128 %s, %s offset:%d" % (v(vAgw), v(vC1 + 4, 4), LCS - LGP + 64))
        setexec(0xFFFFFFFF, 0xFFFFFFFF)
    a("    v_add_f32_dpp %s, %s, %s row_ror:1 %s" % (v(vT + 1), v(vT + 1), v(vT + 1), DPP))
    for sh in (2, 4, 8):
        for r in range(2):
            a("    v_add_f32_dpp %s, %s, %s row_ror:%d %s" % (v(vT + r), v(vT + r), v(vT + r), sh, DPP))
    if LA:
        pick(vD)
        a("    v_cndmask_b32 %s, %s, %s, %s" % (v(vD), v(vD), v(vT), s(sM8_, 2)))
        a("    v_cndmask_b32 %s, %s, %s, %s" % (v(vD), v(vD), v(vT + 1), s(sM9, 2)))
        setexec(0x03FF03FF, 0x03FF03FF)
        a("    ds_add_f32 %s, %s" % (v(vAgw), v(vD)))
        setexec(0xFFFFFFFF, 0xFFFFFFFF)
        a("    s_waitcnt lgkmcnt(0)")
        a("    s_barrier")
    else:
        for pat in ("row_bcast:15 row_mask:0xa", "row_bcast:31 row_mask:0xc"):
            for r in range(2):
                a("    v_add_f32_dpp %s, %s, %s %s bank_mask:0xf" % (v(vT + r), v(vT + r), v(vT + r), pat))
        if opt.get("fst") == 1:
            stamp(3)
        setexec(0, 0x80000000)
        a("    ds_write_b64 %s, %s" % (v(vAsw), v(vT, 2)))
        setexec(0x00010001, 0x00010001)
        a("    ds_write_b128 %s, %s" % (v(vAgw), v(vD, 4)))
        a("    ds_write_b128 %s, %s offset:64" % (v(vAgw), v(vDu, 4)))
        setexec(0xFFFFFFFF, 0xFFFFFFFF)
        a("    s_waitcnt lgkmcnt(0)")
        a("    s_barrier")
    cstamp(1)
    if DL:
        assert not P4
    if P4:
        a("    s_cmp_ge_u32 %s, 4" % s(sW))
        a("    s_cbranch_scc1 L_FIN2")
    a("    ds_read_b64 %s, %s" % (v(vT, 2), v(vAsr)))
    a("    ds_read_b128 %s, %s" % (v(vD, 4), v(vAgr)))
    if LA:
        a("    ds_read_b128 %s, %s offset:128" % (v(vCs, 4), v(vAgr)))
        a("    ds_read_b128 %s, %s offset:64" % (v(vHb, 4), v(vAgr)))
        a("    ds_read_b128 %s, %s offset:192" % (v(vHb + 4, 4), v(vAgr)))
    elif CF:
        a("    ds_read_b128 %s, %s offset:%d" % (v(vCs, 4), v(vAgr), LCS - LGP))
    if P4:
        assert CF
        for t in range(4):
            a("    ds_read_b64_tr_b16 %s, %s offset:%d" % (v(vWd2 + 2 * t, 2), v(vAd), 8192 + 32 * t))
    pats = ("quad_perm:[1,0,3,2]", "quad_perm:[2,3,0,1]", "row_half_mirror")

    def meanfix():
        a.c("g u with the mean removed, down projection, 1 / sigma^2, publish")
        a("    v_mul_f32 %s, 0x3b000000, %s" % (v(vT), v(vT)))
        bf16r(vT + 2, vT)
        for r in (0, 2):
            a("    v_pk_fma_f32 %s, %s, %s, %s op_sel_hi:[0,1,1] neg_lo:[1,0,0] neg_hi:[1,0,0]" %
              (v(vD + r, 2), v(vT + 2, 2), v(vCs + r, 2), v(vD + r, 2)))
    if LA:
        a("    s_waitcnt lgkmcnt(%d)" % (0 if prof else 4))
        a("    v_mul_f32 %s, 0x3b000000, %s" % (v(vT), v(vT)))
        bf16r(vT + 2, vT)
        a("    s_waitcnt lgkmcnt(%d)" % (0 if prof else 2))
        for r in (0, 2):
            a("    v_pk_fma_f32 %s, %s, %s, %s op_sel_hi:[0,1,1] neg_lo:[1,0,0] neg_hi:[1,0,0]" %
              (v(vD + r, 2), v(vT + 2, 2), v(vCs + r, 2), v(vD + r, 2)))
        a("    s_waitcnt lgkmcnt(0)")
        cstamp(2)
        for r in (0, 2):
            a("    v_pk_fma_f32 %s, %s, %s, %s op_sel_hi:[0,1,1] neg_lo:[1,0,0] neg_hi:[1,0,0]" %
              (v(vHb + r, 2), v(vT + 2, 2), v(vHb + 4 + r, 2), v(vHb + r, 2)))
    elif CF:
        a("    s_waitcnt lgkmcnt(%d)" % (0 if prof else (6 if P4 else 2)))
        for pat in pats:
            for r in (vT, vT + 1):
                a("    v_add_f32_dpp %s, %s, %s %s %s" % (v(r), v(r), v(r), pat, DPP))
        a("    s_waitcnt lgkmcnt(%d)" % (4 if P4 and not prof else 0))
        cstamp(2)
        meanfix()
        for pat in pats:
            for r in range(4):
                a("    v_add_f32_dpp %s, %s, %s %s %s" % (v(vD + r), v(vD + r), v(vD + r), pat, DPP))
    else:
        a("    s_waitcnt lgkmcnt(0)")
        for pat in pats:
            for r in (vT, vT + 1, vD, vD + 1, vD + 2, vD + 3):
                a("    v_add_f32_dpp %s, %s, %s %s %s" % (v(r), v(r), v(r), pat, DPP))
        meanfix()
    cstamp(3)
    a("    v_mul_f32 %s, 0x3b000000, %s" % (v(vT + 1), v(vT + 1)))
    a("    v_fma_f32 %s, -%s, %s, %s" % (v(vT + 1), v(vT), v(vT), v(vT + 1)))
    if LA:
        for r in (0, 2):
            a("    v_pk_mul_f32 %s, %s, %s" % (v(vT + 4 + r, 2), v(vD + r, 2), v(vHb + r, 2)))
    else:
        for r in range(4):
            a("    v_mul_f32_dpp %s, %s, %s row_ror:8 %s" % (v(vT + 4 + r), v(vD + r), v(vD + r), DPP))
    a("    v_cvt_pk_bf16_f32 %s, %s, %s" % (v(vT + 2), v(vT + 4), v(vT + 5)))
    a("    v_cvt_pk_bf16_f32 %s, %s, %s" % (v(vT + 3), v(vT + 6), v(vT + 7)))
    if DL or P4:
        a("    s_waitcnt lgkmcnt(0)")
    for t in range(4):
        a("    v_and_b32 %s, %s, %s" % (v(vB + 2 * t), v(vT + 2), v(vMt + t)))
        a("    v_and_b32 %s, %s, %s" % (v(vB + 2 * t + 1), v(vT + 3), v(vMt + t)))
        if t:
            a("    v_mfma_f32_16x16x16_bf16 %s, %s, %s, %s" %
              (v(vDu, 4), v(vB + 2 * t - 2, 2), v(vWd + 2 * t - 2, 2), "0" if t == 1 else v(vDu, 4)))
            if P4:
                a("    v_mfma_f32_16x16x16_bf16 %s, %s, %s, %s" %
                  (v(vDv, 4), v(vB + 2 * t - 2, 2), v(vWd2 + 2 * t - 2, 2), "0" if t == 1 else v(vDv, 4)))
    cstamp(4)
    a("    v_max_f32 %s, 0, %s" % (v(vT + 1), v(vT + 1)))
    a("    v_mfma_f32_16x16x16_bf16 %s, %s, %s, %s" % (v(vDu, 4), v(vB + 6, 2), v(vWd + 6, 2), v(vDu, 4)))
    if P4:
        a("    v_mfma_f32_16x16x16_bf16 %s, %s, %s, %s" % (v(vDv, 4), v(vB + 6, 2), v(vWd2 + 6, 2), v(vDv, 4)))
    bf16r(vT + 1, vT + 1)
    a("    v_add_f32 %s, 0x3727c5ac, %s" % (v(vT + 1), v(vT + 1)))
    bf16r(vT + 1, vT + 1)
    a("    v_sqrt_f32 %s, %s" % (v(vT + 1), v(vT + 1)))
    bf16r(vT + 1, vT + 1)
    a("    v_mul_f32 %s, %s, %s" % (v(vT + 1), v(vT + 1), v(vT + 1)))
    a("    v_rcp_f32 %s, %s" % (v(vT), v(vT + 1)))
    cstamp(5)
    setexec(0xFFFF, 0)
    for r in (0, 2):
        a("    v_pk_mul_f32 %s, %s, %s op_sel_hi:[1,0]" % (v(vDu + r, 2), v(vDu + r, 2), v(vT, 2)))
    for i in range(4):
        a("    v_and_or_b32 %s, %s, %s, %s" % (v(vDu + i), v(vDu + i), s(sM10), v(vTag10)))
    a("    global_store_dwordx4 %s, %s, %s sc1" % (v(vAy), v(vDu, 4), s(sB2, 2)))
    cstamp(6)
    if P4:
        for r in (0, 2):
            a("    v_pk_mul_f32 %s, %s, %s op_sel_hi:[1,0]" % (v(vDv + r, 2), v(vDv + r, 2), v(vT, 2)))
        for i in range(4):
            a("    v_and_or_b32 %s, %s, %s, %s" % (v(vDv + i), v(vDv + i), s(sM10), v(vTag10)))
        a("    global_store_dwordx4 %s, %s, %s sc1" % (v(vAy2), v(vDv, 4), s(sB2, 2)))
    stamp(9)
    if RW:
        a("    s_cmp_ge_u32 %s, 32" % s(sFI))
        a("    s_cbranch_scc1 L_FIN2")
    a.c("final sum over the 112 partials for 16 columns")
    a("    s_lshr_b32 %s, %s, 2" % (s(sT0), s(sFI)))
    if RW:
        a("    s_and_b32 %s, %s, 3" % (s(sT1), s(sT0)))
        if opt.get("rw") == 2:
            a("    s_add_u32 %s, %s, 4" % (s(sT1), s(sT1)))
        a("    s_cmp_lg_u32 %s, %s" % (s(sT1), s(sW)))
        a("    s_cbranch_scc1 L_FIN2")
        a("    s_mov_b32 %s, %s" % (s(sMean), s(sT0)))
    else:
        a("    s_cmp_lg_u32 %s, %s" % (s(sT0), s(sW)))
        a("    s_cbranch_scc1 L_FIN2")
    setexec(0xFFFFFFFF, 0xFFFFFFFF)
    if opt.get("yd", 0) >= 1:
        a("    s_waitcnt vmcnt(0)")
    vY = V(28, 4)
    vCo = V()
    a("    v_and_b32 %s, 3, v0" % v(vT))
    a("    v_lshlrev_b32 %s, 2, %s" % (v(vT + 1), v(vG)))
    a("    v_lshl_add_u32 %s, %s, 4, %s" % (v(vT + 1), v(vT), v(vT + 1)))
    a("    v_add_u32 %s, %s, %s" % (v(vT + 1), s(sU), v(vT + 1)))
    a("    v_lshlrev_b32 %s, 2, %s" % (v(vT + 1), v(vT + 1)))
    if RW:
        a("    s_lshl_b32 %s, %s, 8" % (s(sT0), s(sMean)))
        a("    s_add_u32 %s, %s, 0x%x" % (s(sT0), s(sT0), LRED))
        a("    v_add_u32 %s, %s, %s" % (v(vT + 1), s(sT0), v(vT + 1)))
        a("    ds_read_b32 %s, %s" % (v(vHr), v(vT + 1)))
    else:
        a("    ds_bpermute_b32 %s, %s, %s" % (v(vHr), v(vT + 1), v(vHr)))
    a("    v_lshl_add_u32 %s, %s, 4, %s" % (v(vCo), v(vG), v(vT)))
    a("    v_lshlrev_b32 %s, 1, %s" % (v(vCo), v(vCo)))
    a("    s_lshl_b32 %s, %s, 7" % (s(sT0), s(sMean if RW else sW)))
    a("    s_lshl_b32 %s, %s, 3" % (s(sT1), s(sU)))
    a("    s_add_u32 %s, %s, %s" % (s(sT0), s(sT0), s(sT1)))
    base(sB3, sOUT, s(sT0))
    if opt.get("odiag"):
        a("    s_lshl_b32 %s, %s, 12" % (s(sT0), s(sFI)))
        a("    s_add_u32 %s, %s, 0x180000" % (s(sT0), s(sT0)))
        base(sB3, sWS, s(sT0))
        if opt["odiag"] == 2:
            a("    v_lshlrev_b32 %s, 4, %s" % (v(vCo), v(vCo)))
    a("    s_mul_i32 %s, %s, 7168" % (s(sT1), s(sFI)))
    a("    s_add_u32 %s, %s, 0x%x" % (s(sT1), s(sT1), S4 + 3072))
    base(sB2, sWS, s(sT1))

    def yloads():
        for n in range(7):
            a("    global_load_dwordx4 %s, %s, %s offset:%d%s" % (v(vY + 4 * n, 4), v(vAo), s(sB2, 2), 1024 * n - 3072,
                                                                 [" sc1", " sc1 nt", " sc0 sc1 nt", " sc0 sc1"][opt.get("yl", 0)]))

    if opt.get("ackwait", 1):
        a("    s_waitcnt vmcnt(0)")
    if opt.get("yd", 0) >= 2:
        a("    global_load_ushort %s, %s, %s sc1" % (v(vY), v(vCo), s(sB3, 2)))
        a("    s_waitcnt vmcnt(0)")
    yloads()
    gather(yloads, [vY + 4 * i for i in range(7)], sTag10, 0x3ff, sumacc(vHa, vY), cnt=15)
    if not opt.get("astamps"):
        stamp(14)
    vY = vHa
    treduce4(vY)
    for sh in (4, 8):
        a("    v_add_f32_dpp %s, %s, %s row_ror:%d %s" % (v(vY), v(vY), v(vY), sh, DPP))
    bf16r(vY, vY)
    a("    s_waitcnt lgkmcnt(0)")
    a("    v_add_f32 %s, %s, %s" % (v(vY), v(vY), v(vHr)))
    a("    v_cvt_pk_bf16_f32 %s, %s, %s" % (v(vY), v(vY), v(vY)))
    setexec(0x000F000F, 0x000F000F)
    a("    global_store_short %s, %s, %s%s" % (v(vCo), v(vY), s(sB3, 2), ["", " sc1", " nt", " sc0 sc1"][opt.get("ost", 0)]))
    a.c("advance the epoch word: by now every workgroup of this launch has read it")
    a("    s_cmp_lg_u32 %s, 0" % s(sFI))
    a("    s_cbranch_scc1 L_FIN2")
    setexec(1, 0)
    a("    v_mov_b32 %s, 0" % v(vT))
    a("    v_mov_b32 %s, %s" % (v(vT + 1), s(sT32)))
    a("    global_store_dword %s, %s, %s sc1" % (v(vT), v(vT + 1), s(sWS, 2)))
    if opt.get("diagspin"):
        a("    s_waitcnt lgkmcnt(0)")
        if "diagph" in opt:
            a("    s_sub_u32 s90, s90, s96")
            a("    s_lshl_b32 s90, s90, 2")
            a("    s_add_u32 s96, s96, s90")
        a("    s_add_u32 s96, s96, %d" % opt["diagspin"])
        a("L_DIAG:")
        a("    s_memrealtime s[92:93]")
        a("    s_waitcnt lgkmcnt(0)")
        a("    s_sub_u32 s92, s92, s96")
        a("    s_cmp_lt_i32 s92, 0")
        a("    s_cbranch_scc1 L_DIAG")
    a("L_FIN2:")
    finish()

    if prof:
        a("L_PROF:")
        a("    s_memrealtime %s" % s(sPROF + 20, 2))
        a("    s_mov_b64 exec, 1")
        a("    s_lshl_b32 %s, s2, 3" % s(sT0))
        a("    s_add_u32 %s, %s, %s" % (s(sT0), s(sT0), s(sW)))
        a("    s_lshl_b32 %s, %s, 7" % (s(sT0), s(sT0)))
        a("    s_add_u32 %s, %s, 0x%x" % (s(sT0), s(sT0), PROFB))
        base(sB0, sWS, s(sT0))
        a("    v_mov_b32 v1, 0")
        a("    s_waitcnt lgkmcnt(0)")
        for i in range(16):
            a("    v_mov_b32 v2, %s" % s(sPROF + 2 * i))
            if prof == 2:
                a("    global_atomic_umax v1, v2, %s offset:%d sc1" % (s(sDBG, 2), 4 * i))
            else:
                a("    global_store_dword v1, v2, %s offset:%d" % (s(sB0, 2), 4 * i))
        if prof == 2:
            a("    s_not_b32 %s, %s" % (s(sT0), s(sPROF)))
            a("    v_mov_b32 v2, %s" % s(sT0))
            a("    global_atomic_umax v1, v2, %s offset:48 sc1" % s(sDBG, 2))
        a("    s_endpgm")
    a("L_END:")
    a("    s_endpgm")
    a("L_CODE_END:")
    nv = (V.hi + 7) // 8 * 8
    a('.section .rodata,"a"')
    a(".p2align 6")
    a(".amdhsa_kernel %s_kernel" % NAME)
    a("  .amdhsa_next_free_vgpr %d" % nv)
    a("  .amdhsa_next_free_sgpr 102")
    a("  .amdhsa_accum_offset %d" % nv)
    a("  .amdhsa_group_segment_fixed_size 0")
    a("  .amdhsa_kernarg_size 96")
    a("  .amdhsa_user_sgpr_count 2")
    a("  .amdhsa_user_sgpr_kernarg_segment_ptr 1")
    a("  .amdhsa_system_sgpr_workgroup_id_x 1")
    a("  .amdhsa_float_denorm_mode_32 3")
    a(".end_amdhsa_kernel")
    return out + a.finalize()


if __name__ == "__main__":
    import argparse
    ap = argparse.ArgumentParser()
    ap.add_argument("-o", default=None)
    ap.add_argument("--prof", type=int, default=0)
    ap.add_argument("--opt", default="")
    args = ap.parse_args()
    opt = {}
    for kv in args.opt.split(","):
        if kv:
            k, x = kv.split("=")
            opt[k] = int(x)
    txt = gen(args.prof, opt)
    path = args.o or os.path.join(os.path.dirname(os.path.abspath(__file__)), "..", "cdna_kernels", NAME + ".s")
    open(path, "w").write(txt)
    print("wrote", path, len(txt.split("\n")), "lines")
```
